```python
import torch

def _softmax(x, axis=-1):
    return torch.softmax(x, dim=axis)
def _gelu(x):
    return torch.nn.functional.gelu(x, approximate="tanh")
def _silu(x):
    return torch.nn.functional.silu(x)
def _sigmoid(x):
    return torch.sigmoid(x)
def _layernorm(x, axis=-1, eps=1e-5):
    m = x.mean(dim=axis, keepdim=True)
    v = x.var(dim=axis, keepdim=True, unbiased=False)
    return (x - m) / torch.sqrt(v + eps)
def _scatter_add(tgt, idx, src, axis=0):
    return tgt.clone().index_add_(axis, idx, src)
def _segment_sum(src, seg, n):
    out = torch.zeros((n,) + src.shape[1:], dtype=src.dtype)
    return out.index_add_(0, seg, src)
def _pad(x, pw):
    flat = tuple(v for pair in reversed(pw) for v in pair)
    return torch.nn.functional.pad(x, flat)

kernel_name = 'sequential_preLN__spectral_gfnet__glu_gated_glu__prompt'

def setup_inputs():

    _w = (lambda a: (lambda t: t.to(torch.bfloat16) if t.is_floating_point() else t)(torch.as_tensor(a)))
    def _A_setup():
        B, S, D = 1, 2048, 576
        Df = D // 2 + 1
        return {
            "x": _w((lambda *s: torch.randn(*s, dtype=torch.bfloat16) * 0.05)(B, S, D)),
            "w_r": _w((lambda *s: torch.randn(*s, dtype=torch.bfloat16) * 0.4)(S, Df) * 0.02),
            "w_i": _w((lambda *s: torch.randn(*s, dtype=torch.bfloat16) * 0.4)(S, Df) * 0.02),
        }
    _A_in = _A_setup()

    def _B_setup():
        B, S, D, F = 1, 2048, 576, 4608
        return {
            "x": _w((lambda *s: torch.randn(*s, dtype=torch.bfloat16) * 0.05)(B, S, D)),
            "w_gate": _w((lambda *s: torch.randn(*s, dtype=torch.bfloat16) * 0.05)(D, F)),
            "w_up": _w((lambda *s: torch.randn(*s, dtype=torch.bfloat16) * 0.05)(D, F)),
            "w_down": _w((lambda *s: torch.randn(*s, dtype=torch.bfloat16) * 0.05)(F, D)),
        }
    _B_in = _B_setup()

    return {
        "A_x": _A_in["x"],
        "A_w_r": _A_in["w_r"],
        "A_w_i": _A_in["w_i"],
        "B_x": _B_in["x"],
        "B_w_gate": _B_in["w_gate"],
        "B_w_up": _B_in["w_up"],
        "B_w_down": _B_in["w_down"],
    }

def reference(A_x, A_w_r, A_w_i, B_x, B_w_gate, B_w_up, B_w_down):
    def _A_ref(x, w_r, w_i):
        B, S, D = x.shape
        X = (lambda x, axes=(-2,-1): torch.fft.rfft2(x.float(), dim=axes))(x, axes=(-2, -1))
        W = w_r + 1j * w_i
        X = X * W
        y = (lambda x, s, axes=(-2,-1): torch.fft.irfft2(x, s=s, dim=axes).to(torch.bfloat16))(X, (S, D), axes=(-2, -1))
        return y

    def _B_ref(x, w_gate, w_up, w_down):
        g = torch.einsum("bsd,df->bsf", x, w_gate)
        u = torch.einsum("bsd,df->bsf", x, w_up)
        h = _sigmoid(g) * u
        return torch.einsum("bsf,fd->bsd", h, w_down)

    x = A_x
    h = x + _A_ref(_layernorm(x, axis=-1), A_w_r, A_w_i)
    h2 = h + _B_ref(_layernorm(h, axis=-1), B_w_gate, B_w_up, B_w_down)
    return h2
```

```python
import sys
NDUMMY = int(sys.argv[1]) if len(sys.argv) > 1 else 0
MB = 1 << 20
O_LN1, O_T, O_X, O_Y, O_H, O_LN2, O_HH = 0, 8*MB, 16*MB, 24*MB, 32*MB, 40*MB, 48*MB
S, D, DF, F = 2048, 576, 289, 4608
out = []
launches = []
def kernel(name, nthreads, body):
    nwg = (nthreads + 255)//256
    launches.append(f"; @launch kernel={name}_kernel grid=({nwg},1,1) block=(256,1,1) lds=0")
    out.append(f""".text
.globl {name}_kernel
.p2align 8
.type {name}_kernel,@function
{name}_kernel:
    s_load_dwordx4 s[4:7], s[0:1], 0      ; x, w_r
    s_load_dwordx2 s[8:9], s[0:1], 16     ; w_i
    s_load_dwordx4 s[12:15], s[0:1], 32
    s_load_dwordx4 s[16:19], s[0:1], 48
    s_load_dwordx2 s[20:21], s[0:1], 72   ; ws
    s_lshl_b32 s3, s2, 8
    v_add_u32 v0, s3, v0
    s_mov_b32 s22, {nthreads}
    v_cmp_gt_u32 vcc, s22, v0
    s_waitcnt lgkmcnt(0)
    s_and_saveexec_b64 s[24:25], vcc
    s_cbranch_execz {name}_done
{body}
{name}_done:
    s_endpgm
.section .rodata,"a"
.p2align 6
.amdhsa_kernel {name}_kernel
  .amdhsa_next_free_vgpr 64
  .amdhsa_next_free_sgpr 64
  .amdhsa_accum_offset 64
  .amdhsa_group_segment_fixed_size 0
  .amdhsa_kernarg_size 80
  .amdhsa_user_sgpr_count 2
  .amdhsa_user_sgpr_kernarg_segment_ptr 1
  .amdhsa_system_sgpr_workgroup_id_x 1
.end_amdhsa_kernel
""")
def divmod_const(q, r, src, c):
    sh = (c & -c).bit_length() - 1
    m = (1 << 32)//(c >> sh) + 1
    return f"""    s_mov_b32 s30, {m}
    v_lshrrev_b32 {q}, {sh}, {src}
    v_mul_hi_u32 {q}, {q}, s30
    s_mov_b32 s30, {c}
    v_mul_lo_u32 {r}, {q}, s30
    v_sub_u32 {r}, {src}, {r}
"""
RND = lambda v: f"    v_cvt_pk_bf16_f32 {v}, {v}, {v}\n    v_lshlrev_b32 {v}, 16, {v}\n"

def ln(name, src_is_x, osrc, odst):
    ld = (lambda off: f"    global_load_ushort v5, {off}, s[4:5]\n    s_waitcnt vmcnt(0)\n    v_lshlrev_b32 v5, 16, v5\n") if src_is_x else \
         (lambda off: f"    global_load_dword v5, {off}, s[20:21]\n    s_waitcnt vmcnt(0)\n")
    es = 2 if src_is_x else 4
    body = f"""    s_mov_b32 s30, {D*es}
    v_mul_lo_u32 v1, v0, s30
    v_add_u32 v1, {0 if src_is_x else osrc}, v1
    v_mov_b32 v2, v1
    v_mov_b32 v3, 0
    s_mov_b32 s31, 0
{name}_l1:
{ld('v2')}    v_add_f32 v3, v3, v5
    v_add_u32 v2, {es}, v2
    s_add_u32 s31, s31, 1
    s_cmp_lt_u32 s31, {D}
    s_cbranch_scc1 {name}_l1
    v_mul_f32 v3, {1.0/D!r}, v3
    v_mov_b32 v2, v1
    v_mov_b32 v4, 0
    s_mov_b32 s31, 0
{name}_l2:
{ld('v2')}    v_sub_f32 v5, v5, v3
    v_fmac_f32 v4, v5, v5
    v_add_u32 v2, {es}, v2
    s_add_u32 s31, s31, 1
    s_cmp_lt_u32 s31, {D}
    s_cbranch_scc1 {name}_l2
    v_mul_f32 v4, {1.0/D!r}, v4
    v_add_f32 v4, 1e-5, v4
    v_rsq_f32 v4, v4
    s_mov_b32 s30, {D*4}
    v_mul_lo_u32 v6, v0, s30
    v_add_u32 v6, {odst}, v6
    v_mov_b32 v2, v1
    s_mov_b32 s31, 0
{name}_l3:
{ld('v2')}    v_sub_f32 v5, v5, v3
    v_mul_f32 v5, v5, v4
{RND('v5')}    global_store_dword v6, v5, s[20:21]
    v_add_u32 v2, {es}, v2
    v_add_u32 v6, 4, v6
    s_add_u32 s31, s31, 1
    s_cmp_lt_u32 s31, {D}
    s_cbranch_scc1 {name}_l3
"""
    kernel(name, S, body)

ln("ln1", True, 0, O_LN1)
kernel("rdft", S*DF, divmod_const("v1", "v2", "v0", DF) + f"""    s_mov_b32 s30, {D*4}
    v_mul_lo_u32 v3, v1, s30
    v_add_u32 v3, {O_LN1}, v3
    v_mov_b32 v4, 0
    v_mov_b32 v6, 0
    v_mov_b32 v7, 0
    s_mov_b32 s31, 0
rdft_l:
    global_load_dword v5, v3, s[20:21]
    v_cvt_f32_u32 v8, v4
    v_mul_f32 v8, {1.0/D!r}, v8
    v_cos_f32 v9, v8
    v_sin_f32 v10, v8
    v_add_u32 v4, v4, v2
    v_subrev_u32 v11, {D}, v4
    v_min_u32 v4, v4, v11
    s_waitcnt vmcnt(0)
    v_fmac_f32 v6, v5, v9
    v_fma_f32 v7, -v5, v10, v7
    v_add_u32 v3, 4, v3
    s_add_u32 s31, s31, 1
    s_cmp_lt_u32 s31, {D}
    s_cbranch_scc1 rdft_l
    v_lshlrev_b32 v3, 3, v0
    v_add_u32 v3, {O_T}, v3
    global_store_dwordx2 v3, v[6:7], s[20:21]
""")
def cdft(name, osrc, odst, inverse):
    sg = '' if inverse else '-'
    sg2 = '-' if inverse else ''
    filt = "" if inverse else f"""    v_lshlrev_b32 v3, 1, v0
    global_load_ushort v12, v3, s[6:7]
    global_load_ushort v13, v3, s[8:9]
    s_waitcnt vmcnt(0)
    v_lshlrev_b32 v12, 16, v12
    v_lshlrev_b32 v13, 16, v13
    v_mul_f32 v14, v6, v12
    v_fma_f32 v14, -v7, v13, v14
    v_mul_f32 v15, v6, v13
    v_fma_f32 v7, v7, v12, v15
    v_mov_b32 v6, v14
"""
    kernel(name, S*DF, divmod_const("v1", "v2", "v0", DF) + f"""    v_lshlrev_b32 v3, 3, v2
    v_add_u32 v3, {osrc}, v3
    v_mov_b32 v4, 0
    v_mov_b32 v6, 0
    v_mov_b32 v7, 0
    s_mov_b32 s31, 0
{name}_l:
    global_load_dwordx2 v[12:13], v3, s[20:21]
    v_cvt_f32_u32 v8, v4
    v_mul_f32 v8, {1.0/S!r}, v8
    v_cos_f32 v9, v8
    v_sin_f32 v10, v8
    v_add_u32 v4, v4, v1
    v_and_b32 v4, {S-1}, v4
    s_waitcnt vmcnt(0)
    v_fmac_f32 v6, v12, v9
    v_fma_f32 v6, {sg2}v13, v10, v6
    v_fmac_f32 v7, v13, v9
    v_fma_f32 v7, {sg}v12, v10, v7
    v_add_u32 v3, {DF*8}, v3
    s_add_u32 s31, s31, 1
    s_cmp_lt_u32 s31, {S}
    s_cbranch_scc1 {name}_l
{filt}    v_lshlrev_b32 v3, 3, v0
    v_add_u32 v3, {odst}, v3
    global_store_dwordx2 v3, v[6:7], s[20:21]
""")
cdft("cdft", O_T, O_X, False)
cdft("icdft", O_X, O_Y, True)
kernel("irdft", S*D, divmod_const("v1", "v2", "v0", D) + f"""    s_mov_b32 s30, {DF*8}
    v_mul_lo_u32 v3, v1, s30
    v_add_u32 v3, {O_Y}, v3
    v_mov_b32 v4, 0
    v_mov_b32 v6, 0
    s_mov_b32 s31, 0
irdft_l:
    global_load_dwordx2 v[12:13], v3, s[20:21]
    v_cvt_f32_u32 v8, v4
    v_mul_f32 v8, {1.0/D!r}, v8
    v_cos_f32 v9, v8
    v_sin_f32 v10, v8
    v_add_u32 v4, v4, v2
    v_subrev_u32 v11, {D}, v4
    v_min_u32 v4, v4, v11
    s_mov_b32 s32, 2.0
    s_cmp_eq_u32 s31, 0
    s_cselect_b32 s32, 1.0, s32
    s_cmp_eq_u32 s31, {DF-1}
    s_cselect_b32 s32, 1.0, s32
    s_waitcnt vmcnt(0)
    v_mul_f32 v14, v12, v9
    v_fma_f32 v14, -v13, v10, v14
    v_fmac_f32 v6, s32, v14
    v_add_u32 v3, 8, v3
    s_add_u32 s31, s31, 1
    s_cmp_lt_u32 s31, {DF}
    s_cbranch_scc1 irdft_l
    v_mul_f32 v6, {1.0/(S*D)!r}, v6
{RND('v6')}    v_lshlrev_b32 v3, 1, v0
    global_load_ushort v5, v3, s[4:5]
    s_waitcnt vmcnt(0)
    v_lshlrev_b32 v5, 16, v5
    v_add_f32 v6, v6, v5
{RND('v6')}    v_lshlrev_b32 v3, 2, v0
    v_add_u32 v3, {O_H}, v3
    global_store_dword v3, v6, s[20:21]
""")
ln("ln2", False, O_H, O_LN2)
kernel("g1", S*F, divmod_const("v1", "v2", "v0", F) + f"""    s_mov_b32 s30, {D*4}
    v_mul_lo_u32 v3, v1, s30
    v_add_u32 v3, {O_LN2}, v3
    v_lshlrev_b32 v4, 1, v2
    v_mov_b32 v6, 0
    v_mov_b32 v7, 0
    s_mov_b32 s31, 0
g1_l:
    global_load_dword v5, v3, s[20:21]
    global_load_ushort v8, v4, s[12:13]
    global_load_ushort v9, v4, s[14:15]
    v_add_u32 v3, 4, v3
    v_add_u32 v4, {F*2}, v4
    s_waitcnt vmcnt(0)
    v_lshlrev_b32 v8, 16, v8
    v_lshlrev_b32 v9, 16, v9
    v_fmac_f32 v6, v5, v8
    v_fmac_f32 v7, v5, v9
    s_add_u32 s31, s31, 1
    s_cmp_lt_u32 s31, {D}
    s_cbranch_scc1 g1_l
    v_mul_f32 v6, -1.4426950408889634, v6
    v_exp_f32 v6, v6
    s_nop 1
    v_add_f32 v6, 1.0, v6
    v_rcp_f32 v6, v6
    s_nop 1
    v_mul_f32 v6, v6, v7
{RND('v6')}    v_lshlrev_b32 v3, 2, v0
    v_add_u32 v3, {O_HH}, v3
    global_store_dword v3, v6, s[20:21]
""")
kernel("g2", S*D, divmod_const("v1", "v2", "v0", D) + f"""    s_mov_b32 s30, {F*4}
    v_mul_lo_u32 v3, v1, s30
    v_add_u32 v3, {O_HH}, v3
    v_lshlrev_b32 v4, 1, v2
    v_mov_b32 v6, 0
    s_mov_b32 s31, 0
g2_l:
    global_load_dword v5, v3, s[20:21]
    global_load_ushort v8, v4, s[16:17]
    v_add_u32 v3, 4, v3
    v_add_u32 v4, {D*2}, v4
    s_waitcnt vmcnt(0)
    v_lshlrev_b32 v8, 16, v8
    v_fmac_f32 v6, v5, v8
    s_add_u32 s31, s31, 1
    s_cmp_lt_u32 s31, {F}
    s_cbranch_scc1 g2_l
{RND('v6')}    v_lshlrev_b32 v3, 2, v0
    v_add_u32 v3, {O_H}, v3
    global_load_dword v5, v3, s[20:21]
    s_waitcnt vmcnt(0)
    v_add_f32 v6, v6, v5
    v_cvt_pk_bf16_f32 v6, v6, v6
    v_lshlrev_b32 v3, 1, v0
    global_store_short v3, v6, s[18:19]
""")
if NDUMMY:
    kernel("dummy", 256*256, "")
    l = launches.pop()
    launches += [l]*NDUMMY
print("\n".join(launches))
print('.amdgcn_target "amdgcn-amd-amdhsa--gfx950"')
print("\n".join(out))
```

```python
import re, copy

_REG = re.compile(r"^(-|abs\(|\|)?([vsa])(?:(\d+)|\[(\d+):(\d+)\])\)?\|?$")
def regs_of(op):
    op = op.strip()
    if op in ("vcc",): return {("s", "vcc")}
    if op in ("exec",): return {("s", "exec")}
    if op == "m0": return {("s", "m0")}
    m = _REG.match(op)
    if not m: return set()
    f = m.group(2)
    if m.group(3) is not None: return {(f, int(m.group(3)))}
    return {(f, i) for i in range(int(m.group(4)), int(m.group(5))+1)}

TRANS = ("v_exp_f32", "v_log_f32", "v_rcp_f32", "v_rsq_f32", "v_sqrt_f32", "v_sin_f32", "v_cos_f32")
class Ins:
    __slots__ = ("text", "mn", "kind", "w", "r", "rc", "rab", "data", "passes", "dpp", "trans", "sdwa_dst", "states", "wide", "lds_dma")
    def __init__(s, text):
        s.text = text
        t = text.split(";")[0].strip()
        parts = t.split(None, 1)
        s.mn = mn = parts[0]
        rest = parts[1] if len(parts) > 1 else ""
        ops = []
        depth = 0; cur = ""
        for ch in rest:
            if ch in "[(": depth += 1
            if ch in "])": depth -= 1
            if ch == "," and depth == 0: ops.append(cur.strip()); cur = ""
            else: cur += ch
        if cur.strip(): ops.append(cur.strip())
        mods = ""
        if ops:
            last = ops[-1].split(None, 1)
            ops[-1] = last[0]
            mods = last[1] if len(last) > 1 else ""
        R = [regs_of(o) for o in ops]
        U = lambda l: set().union(*l) if l else set()
        s.w = set(); s.r = set(); s.rc = set(); s.rab = set(); s.data = set(); s.passes = 0
        s.dpp = "_dpp" in mn or "row_" in mods or "quad_perm" in mods
        s.trans = mn.replace("_e32", "").replace("_e64", "") in TRANS
        s.sdwa_dst = ("_sdwa" in mn and "dst_sel:DWORD" not in mods) or ("op_sel" in mods and not mn.startswith("v_pk") and not mn.startswith("v_mfma"))
        s.states = 1; s.wide = False; s.lds_dma = False
        if mn.startswith("v_mfma"):
            s.kind = "mfma"; s.w = R[0]; s.rab = R[1] | R[2]; s.rc = R[3]; s.r = s.rab | s.rc
            s.passes = 8 if "32x32" in mn else 4
        elif mn.startswith("v_cmpx"):
            s.kind = "valu"; s.w = R[0] | {("s", "exec")}; s.r = U(R[1:])
        elif mn.startswith("v_"):
            s.kind = "valu"
            if mn.startswith(("v_permlane", "v_swap")): s.w = R[0] | R[1]; s.r = R[0] | R[1]
            elif "_co_" in mn or mn.startswith(("v_div_scale", "v_mad_u64")): s.w = R[0] | R[1]; s.r = U(R[2:])
            elif mn == "v_nop": pass
            else:
                s.w = R[0]; s.r = U(R[1:])
                if mn.startswith(("v_fmac", "v_dot2c", "v_writelane", "v_pk_fmac")) or s.dpp or s.sdwa_dst: s.r |= R[0]
        elif mn.startswith("ds_"):
            s.kind = "ds"
            if mn.startswith(("ds_read", "ds_bpermute", "ds_permute", "ds_swizzle")) or "_rtn" in mn: s.w = R[0]; s.r = U(R[1:])
            else: s.r = U(R); s.data = U(R[1:])
        elif mn.startswith("buffer_") or mn.startswith("global_"):
            s.kind = "vmem"
            lds = re.search(r"\blds\b", mods) is not None or "load_lds" in mn
            if mn.startswith(("buffer_wbl2", "buffer_inv")): pass
            elif lds: s.r = U(R) | {("s", "m0")}; s.lds_dma = True
            elif "_load" in mn:
                s.w = R[0]; s.r = U(R[1:])
                if "d16" in mn: s.r |= R[0]
            elif "atomic" in mn:
                ret = "sc0" in mods
                if mn.startswith("global_"):
                    if ret: s.w = R[0]; s.r = U(R[1:])
                    else: s.r = U(R)
                else:
                    s.r = U(R); s.w = R[0] if ret else set()
            else:
                s.r = U(R); s.data = R[0] if mn.startswith("buffer_") else R[1]
                s.wide = "x3" in mn or "x4" in mn
        elif mn.startswith(("s_load", "s_buffer_load", "s_memtime", "s_memrealtime")):
            s.kind = "smem"; s.w = R[0]; s.r = U(R[1:])
        elif mn.startswith("s_"):
            s.kind = "salu"
            if mn == "s_nop": s.states = int(ops[0], 0)+1
            elif mn.startswith(("s_cmp", "s_bitcmp", "s_setpc")): s.r = U(R)
            elif mn.startswith(("s_waitcnt", "s_barrier", "s_branch", "s_cbranch", "s_setprio", "s_sleep", "s_endpgm")): pass
            elif "saveexec" in mn: s.w = R[0] | {("s", "exec")}; s.r = U(R[1:])
            else:
                s.w = R[0]; s.r = U(R[1:])
                if mn.startswith(("s_addk", "s_mulk", "s_cmov", "s_bitset")): s.r |= R[0]
        else:
            raise ValueError("unknown instr: " + text)

def isv(x): return x[0] in "va"
def need_states(p, c):
    n = 0
    if p.kind == "valu":
        pv = {x for x in p.w if isv(x)}; ps = p.w - pv
        if c.kind == "mfma":
            if pv & c.r: n = max(n, 2)
            if ("s", "exec") in ps: n = max(n, 4)
        if c.kind == "valu":
            if c.mn.startswith("v_permlane"):
                if pv & c.r: n = max(n, 2)
                if ("s", "exec") in ps: n = max(n, 4)
            if c.dpp:
                if pv & c.r: n = max(n, 2)
                if ("s", "exec") in ps: n = max(n, 5)
            if c.mn.startswith(("v_readlane", "v_readfirstlane", "v_writelane")):
                if pv & c.r: n = max(n, 1)
                if ps & c.r: n = max(n, 4)
                if ("s", "exec") in ps: n = max(n, 4)
            if ps & c.r: n = max(n, 2)
            if c.mn.startswith("v_div_fmas") and ("s", "vcc") in ps: n = max(n, 4)
            if p.trans and not c.trans and (pv & c.r): n = max(n, 1)
            if p.sdwa_dst and (pv & (c.r | c.w)): n = max(n, 1)
        if c.kind in ("vmem", "ds") and (ps & c.r): n = max(n, 5)
        if c.kind in ("vmem", "ds") and p.trans and (pv & c.r): n = max(n, 1)
        if c.kind in ("salu", "smem") and (ps & c.r): n = max(n, 1)
    elif p.kind == "mfma":
        big = {4: 8, 8: 12}[p.passes]
        if c.kind == "mfma":
            if p.w & c.rab: n = max(n, big)
            if p.w & c.rc:
                if not (p.w == c.rc and p.passes == c.passes): n = max(n, {4: 6, 8: 10}[p.passes])
            elif p.w & c.w: n = max(n, big)
        elif c.kind in ("valu", "ds", "vmem"):
            if p.w & (c.r | c.w): n = max(n, big)
            if c.kind == "valu" and (p.rc & c.w): n = max(n, {4: 3, 8: 7}[p.passes])
            if c.kind != "valu" and (p.rc & c.w): n = max(n, big)
    elif p.kind == "vmem":
        if p.wide and c.kind in ("valu", "mfma") and (p.data & c.w): n = max(n, 2)
        elif p.wide and (p.data & c.w): n = max(n, 1)
    elif p.kind == "ds":
        if len(p.data) >= 3 and c.kind in ("valu", "mfma") and (p.data & c.w): n = max(n, 2)
    elif p.kind == "salu":
        if ("s", "m0") in p.w and (c.lds_dma or "addtid" in c.mn): n = max(n, 1)
    return n

class State:
    def __init__(s):
        s.hist = []
        s.vm = []
        s.lg = []
        s.sm = set()
    def clone(s):
        o = State(); o.hist = list(s.hist); o.vm = list(s.vm); o.lg = list(s.lg); o.sm = set(s.sm); return o

class K:
    def __init__(self, name, grid, block, lds=0, vgpr=128, agpr=0, sgpr=96, auto=True):
        self.name, self.grid, self.block, self.lds = name, grid, block, lds
        self.vgpr, self.agpr, self.sgpr = vgpr, agpr, sgpr
        self.lines = []; self.data = []
        self.auto = auto
        self.st = [State()]
        self.saved = {}
        self.ntag = 0
        self.nops = 0
        self.maxv = 0
        self.count = {}
    def __call__(self, s, tag=None):
        for l in s.strip("\n").split("\n"):
            l = l.strip()
            if not l: continue
            if l.startswith(";"): self.lines.append(l); continue
            if l.endswith(":"): self._label(l[:-1]); continue
            if l.startswith("."): self.lines.append(l); continue
            if not self.auto: self.lines.append(l); continue
            self._ins(l, tag)
    def _label(self, lab):
        self.lines.append(lab + ":")
        self.st = self.st + self.saved.pop(lab, [])
        if not self.st: self.st = [State()]
    def _emit(self, i):
        self.lines.append(i.text)
        self.count[i.kind] = self.count.get(i.kind, 0) + 1
        for st in self.st:
            st.hist.append(i)
            if len(st.hist) > 24: st.hist.pop(0)
    def _wait(self, vm=None, lg=None):
        t = "s_waitcnt"
        if vm is not None: t += f" vmcnt({vm})"
        if lg is not None: t += f" lgkmcnt({lg})"
        self._apply_wait(vm, lg)
        self._emit(Ins(t))
    def _apply_wait(self, vm, lg):
        for st in self.st:
            if vm is not None and len(st.vm) > vm: st.vm = st.vm[len(st.vm)-vm:] if vm else []
            if lg is not None:
                if lg == 0: st.lg = []; st.sm = set()
                elif not st.sm and len(st.lg) > lg: st.lg = st.lg[len(st.lg)-lg:]
    def _ins(self, text, tag):
        i = Ins(text)
        for f, n in (i.w | i.r):
            if f == "v": self.maxv = max(self.maxv, n)
        if i.mn == "s_waitcnt":
            vm = re.search(r"vmcnt\((\d+)\)", text); lg = re.search(r"lgkmcnt\((\d+)\)", text)
            self._apply_wait(int(vm.group(1)) if vm else None, int(lg.group(1)) if lg else None)
            self._emit(i); return
        touch = i.r | i.w
        vm = lg = None
        for st in self.st:
            for q, (tg, d) in enumerate(st.vm):
                if d & touch:
                    n = min(63, len(st.vm)-1-q); vm = n if vm is None else min(vm, n)
            for q, (tg, d) in enumerate(st.lg):
                if d & touch:
                    n = 0 if st.sm else min(15, len(st.lg)-1-q); lg = n if lg is None else min(lg, n)
            if st.sm & touch: lg = 0
        if vm is not None or lg is not None: self._wait(vm, lg)
        need = 0
        for st in self.st:
            dist = 0
            for p in reversed(st.hist):
                n = need_states(p, i)
                if n > dist: need = max(need, n-dist)
                dist += p.states
                if dist >= 20: break
        if need:
            self.nops += need
            self._emit(Ins(f"s_nop {need-1}"))
        self._emit(i)
        for st in self.st:
            if i.kind == "vmem": st.vm.append((tag, i.w))
            elif i.kind == "ds": st.lg.append((tag, i.w))
            elif i.kind == "smem": st.sm |= (i.w or {("s", -1)})
        if i.mn.startswith(("s_cbranch", "s_branch")):
            lab = text.split()[1]
            self.saved.setdefault(lab, []).extend(st.clone() for st in self.st)
            if i.mn == "s_branch": self.st = []
        if i.mn == "s_endpgm": self.st = []
    def wait_vm(self, *tags):
        n = None
        for st in self.st:
            for q, (tg, d) in enumerate(st.vm):
                if tg in tags:
                    m = min(63, len(st.vm)-1-q); n = m if n is None else min(n, m)
        if n is not None: self._wait(vm=n)
    def wait_lg(self, *tags):
        n = None
        for st in self.st:
            for q, (tg, d) in enumerate(st.lg):
                if not tags or tg in tags:
                    m = 0 if st.sm else min(15, len(st.lg)-1-q); n = m if n is None else min(n, m)
        if n is not None: self._wait(lg=n)
    def launch_line(self):
        g = self.grid if isinstance(self.grid, tuple) else (self.grid, 1, 1)
        return f"; @launch kernel={self.name}_kernel grid=({g[0]},{g[1]},{g[2]}) block=({self.block},1,1) lds={self.lds}"
    def text(self):
        assert self.maxv < self.vgpr, (self.name, self.maxv, self.vgpr)
        acc = (self.vgpr + 3)//4*4
        nfv = acc + self.agpr if self.agpr else self.vgpr
        body = "\n".join(self.lines)
        return f""".text
.globl {self.name}_kernel
.p2align 8
.type {self.name}_kernel,@function
{self.name}_kernel:
{body}
s_endpgm
{self.name}_code_end:
{chr(10).join(self.data)}
.section .rodata,"a"
.p2align 6
.amdhsa_kernel {self.name}_kernel
  .amdhsa_next_free_vgpr {nfv}
  .amdhsa_next_free_sgpr {self.sgpr}
  .amdhsa_accum_offset {acc}
  .amdhsa_group_segment_fixed_size 0
  .amdhsa_kernarg_size 80
  .amdhsa_user_sgpr_count 2
  .amdhsa_user_sgpr_kernarg_segment_ptr 1
  .amdhsa_system_sgpr_workgroup_id_x 1
  .amdhsa_float_denorm_mode_32 3
.end_amdhsa_kernel
"""
def emit(launch_order, kernels, header="", tail=""):
    out = [k.launch_line() for k in launch_order]
    if header: out.append(header)
    out.append('.amdgcn_target "amdgcn-amd-amdhsa--gfx950"')
    for k in kernels: out.append(k.text())
    if tail: out.append(tail)
    return "\n".join(out) + "\n"
def vr(a, n=1): return f"v{a}" if n == 1 else f"v[{a}:{a+n-1}]"
def sr(a, n=1): return f"s{a}" if n == 1 else f"s[{a}:{a+n-1}]"
def srd(k, d, base, nbytes):
    k(f"s_mov_b32 s{d}, s{base}\ns_mov_b32 s{d+1}, s{base+1}\ns_mov_b32 s{d+2}, {nbytes}\ns_mov_b32 s{d+3}, 0x20000")
def interleave(main, fill):
    out = []; n, m = len(main), len(fill); j = 0
    for i, x in enumerate(main):
        out.append(x)
        hi = (i+1)*m//n
        out += fill[j:hi]; j = hi
    return out
```

```python
from asmlib import *
from layout import *

def ws_srd(k, d, off, nbytes, ws=6):
    k(f"s_add_u32 s{d}, s{ws}, {off}\ns_addc_u32 s{d+1}, s{ws+1}, 0\ns_mov_b32 s{d+2}, {nbytes}\ns_mov_b32 s{d+3}, 0x20000")

SLOT_A = [0, 45056, 90112]
RING_B = [0, 36864, 90112, 126976]
HH = 90112
def build_f1(look=3, stamp=False, abl="", name="f1"):
    k = K(name, 256, 512, lds=163840, vgpr=256)
    sG, sU, sD, sX, sP = 8, 12, 16, 20, 24
    sW, sMT, sSL, sRG, sA, sKW, sKX, sM0a, sM0x, sM0s, sKD, sM0d, sPO, sCG = 30, 31, 32, 33, 34, 35, 36, 37, 38, 39, 40, 41, 42, 43
    vL, vDX, vD0, vD1, vD2, vT0, vT1, vT2 = 0, 1, 2, 3, 4, 5, 6, 7
    vXr = [8, 9, 10]; vWA = [11, 12, 13]; vWB = [14, 15, 16]
    vDD, vPO, vHW = 17, 18, 19
    vWD = [20, 21, 22, 23]
    vHR = 24
    k(f"""
s_load_dwordx4 s[44:47], s[0:1], 32
s_load_dwordx2 s[48:49], s[0:1], 48
s_load_dwordx2 s[6:7], s[0:1], 72
s_cmp_ge_u32 s2, 256
s_cbranch_scc1 {name}_end
v_lshrrev_b32 v{vT0}, 6, v0
v_and_b32 v{vL}, 63, v0
v_readfirstlane_b32 s{sW}, v{vT0}
s_lshr_b32 s3, s2, 3
s_and_b32 s{sMT}, s3, 15
s_lshr_b32 s3, s3, 4
s_and_b32 s4, s2, 7
s_lshl_b32 s4, s4, 1
s_add_u32 s{sSL}, s4, s3
s_and_b32 s{sRG}, s{sW}, 1
s_bfe_u32 s{sA}, s{sW}, 0x10001
s_lshr_b32 s{sCG}, s{sW}, 1
v_lshlrev_b32 v{vDX}, 4, v{vL}
""")
    if stamp: k("s_memrealtime s[60:61]\ns_memtime s[72:73]")
    def pattern(vd):
        k(f"""
s_lshl_b32 s4, s3, 6
v_add_u32 v{vT0}, s4, v{vL}
v_mul_u32_u24 v{vT1}, 1821, v{vT0}
v_lshrrev_b32 v{vT1}, 16, v{vT1}
v_mul_u32_u24 v{vT2}, 36, v{vT1}
v_sub_u32 v{vT0}, v{vT0}, v{vT2}
v_lshrrev_b32 v{vT2}, 2, v{vT1}
v_and_b32 v{vT2}, 2, v{vT2}
v_xor_b32 v{vT0}, v{vT0}, v{vT2}
v_lshlrev_b32 v{vT0}, 4, v{vT0}
v_mul_u32_u24 v{vT1}, 9216, v{vT1}
v_add_u32 v{vd}, v{vT0}, v{vT1}
""")
    k(f"s_lshl_b32 s3, s{sW}, 1"); pattern(vD0)
    k(f"s_add_u32 s3, s3, 1"); pattern(vD1)
    k(f"s_add_u32 s3, s{sRG}, 16"); pattern(vD2)
    k(f"""
s_mul_i32 s{sKW}, s{sSL}, 576
s_mul_i32 s{sKX}, s{sMT}, {18*8192}
s_lshl_b32 s3, s{sW}, 10
s_add_u32 s{sKX}, s{sKX}, s3
s_mov_b32 s{sM0x}, s3
s_lshl_b32 s{sM0a}, s{sW}, 11
s_add_u32 s{sM0a}, s{sM0a}, 8192
s_mul_i32 s3, s{sA}, 18432
s_lshl_b32 s4, s{sRG}, 10
s_add_u32 s3, s3, s4
s_add_u32 s{sM0s}, s3, {8192+16*1024}
s_waitcnt lgkmcnt(0)
""")
    srd(k, sG, 44, N_W); srd(k, sU, 46, N_W); srd(k, sD, 48, N_W)
    ws_srd(k, sX, O_XF, N_XF); ws_srd(k, sP, O_P, N_P)
    sS = 52
    k(f"""
s_cmp_eq_u32 s{sA}, 0
s_cselect_b32 s{sS}, s44, s46
s_cselect_b32 s{sS+1}, s45, s47
s_mov_b32 s{sS+2}, {N_W}
s_mov_b32 s{sS+3}, 0x20000
""")
    def dmaA(s, five):
        o = SLOT_A[s % 3]; t = f"A{s}"
        g = [f"s_add_u32 m0, s{sM0x}, {o}\ns_add_u32 s3, s{sKX}, {s*8192}\nbuffer_load_dwordx4 v{vDX}, s[{sX}:{sX+3}], s3 offen lds",
             f"s_add_u32 m0, s{sM0a}, {o}\ns_add_u32 s4, s{sKW}, {s*32*9216}\nbuffer_load_dwordx4 v{vD0}, s[{sG}:{sG+3}], s4 offen lds",
             f"s_add_u32 m0, s{sM0a}, {o+1024}\ns_nop 0\nbuffer_load_dwordx4 v{vD1}, s[{sG}:{sG+3}], s4 offen lds",
             f"s_add_u32 m0, s{sM0a}, {o+18432}\ns_nop 0\nbuffer_load_dwordx4 v{vD0}, s[{sU}:{sU+3}], s4 offen lds",
             f"s_add_u32 m0, s{sM0a}, {o+18432+1024}\ns_nop 0\nbuffer_load_dwordx4 v{vD1}, s[{sU}:{sU+3}], s4 offen lds"]
        if not five:
            g.append(f"s_add_u32 m0, s{sM0s}, {o}\ns_nop 0\nbuffer_load_dwordx4 v{vD2}, s[{sS}:{sS+3}], s4 offen lds")
        return [(x, t) for x in g]
    def dmaB(u, five):
        o = RING_B[u % 4]; t = f"B{u}"
        n = 4 if five else 5
        return [(f"s_add_u32 m0, s{sM0d}, {o+i*1024}\ns_add_u32 s3, s{sKD}, {i*8*1152+u*128}\nbuffer_load_dwordx4 v{vDD}, s[{sD}:{sD+3}], s3 offen lds", t) for i in range(n)]
    def put(items):
        for x in items:
            t = x[0] if isinstance(x, tuple) else x
            if "nodma" in abl and " lds" in t and not (x[1] in ("A0", "A1")): continue
            if "nost" in abl and "buffer_store" in t: continue
            if "plainst" in abl and "buffer_store" in t: x = (t.replace(" sc1", ""), x[1])
            if "nords" in abl and "ds_read" in t: continue
            if "nomfma" in abl and "v_mfma" in t: continue
            if isinstance(x, tuple): k(x[0], tag=x[1])
            else: k(x)

    def path(five):
        nt5 = 5 if five else 4
        nf = 2*nt5
        put(dmaA(0, five)); put(dmaA(1, five))
        k(f"""
v_lshrrev_b32 v{vT0}, 4, v{vL}
v_bfe_u32 v{vT1}, v{vL}, 2, 2
v_lshl_add_u32 v{vT2}, v{vT0}, 3, v{vT1}
v_mul_u32_u24 v{vT2}, 576, v{vT2}
v_and_b32 v{vWB[0]}, 3, v{vL}
v_lshl_add_u32 v{vT2}, v{vWB[0]}, 3, v{vT2}
s_mul_i32 s3, s{sA}, 9
s_add_u32 s3, s3, {0 if five else 5}
s_lshl_b32 s4, s3, 5
s_add_u32 s4, s4, 8192
v_add_u32 v{vT2}, s4, v{vT2}
s_and_b32 s3, s3, 1
s_cmp_eq_u32 s3, 0
s_cselect_b32 s3, 32, -32
v_and_b32 v{vWB[0]}, 1, v{vT0}
v_mul_i32_i24 v{vWB[0]}, s3, v{vWB[0]}
v_add_u32 v{vWA[0]}, v{vT2}, v{vWB[0]}
v_sub_u32 v{vWB[0]}, v{vT2}, v{vWB[0]}
s_lshl_b32 s3, s{sRG}, 12
v_add_u32 v{vXr[0]}, s3, v{vDX}
""")
        for i in (1, 2):
            k(f"v_add_u32 v{vXr[i]}, {SLOT_A[i]}, v{vXr[0]}\nv_add_u32 v{vWA[i]}, {SLOT_A[i]}, v{vWA[0]}\nv_add_u32 v{vWB[i]}, {SLOT_A[i]}, v{vWB[0]}")
        k(f"""
v_lshrrev_b32 v{vDD}, 3, v{vL}
v_mul_u32_u24 v{vDD}, 1152, v{vDD}
v_bfe_u32 v{vT2}, v{vL}, 1, 2
v_xor_b32 v{vT2}, v{vT2}, v{vT0}
v_lshl_add_u32 v{vDD}, v{vT2}, 5, v{vDD}
v_and_b32 v{vT2}, 1, v{vL}
v_lshl_add_u32 v{vDD}, v{vT2}, 4, v{vDD}
s_mul_i32 s3, s{sW}, {4 if five else 5}
s_sub_u32 s3, s3, {0 if five else 4}
s_lshl_b32 s{sM0d}, s3, 10
s_mul_i32 s3, s3, {8*1152}
s_mul_i32 s{sKD}, s{sSL}, {288*1152}
s_add_u32 s{sKD}, s{sKD}, s3
v_lshl_add_u32 v{vWD[0]}, v{vT0}, 2, v{vT1}
v_bfe_u32 v{vT2}, v{vWD[0]}, 1, 2
v_xor_b32 v{vT2}, s{sCG}, v{vT2}
v_lshlrev_b32 v{vT2}, 5, v{vT2}
v_lshl_add_u32 v{vWD[0]}, v{vWD[0]}, 7, v{vT2}
v_and_b32 v{vT2}, 3, v{vL}
v_lshl_add_u32 v{vWD[0]}, v{vT2}, 3, v{vWD[0]}
v_add_u32 v{vWD[1]}, {RING_B[1]}, v{vWD[0]}
v_add_u32 v{vWD[2]}, {RING_B[2]}, v{vWD[0]}
v_add_u32 v{vWD[3]}, {RING_B[3]}, v{vWD[0]}
s_mul_i32 s3, s{sRG}, {4*9*1024}
s_add_u32 s3, s3, {HH}
v_add_u32 v{vHR}, s3, v{vDX}
s_mul_i32 s4, s{sA}, 9
s_add_u32 s4, s4, {0 if five else 5}
s_lshr_b32 s5, s4, 1
s_lshl_b32 s5, s5, 10
s_add_u32 s3, s3, s5
s_and_b32 s4, s4, 1
s_lshl_b32 s5, s4, 3
s_add_u32 s5, s5, s3
v_add_u32 v{vHW}, s5, v{vDX}
s_mul_i32 s5, s4, 1024
s_add_u32 s5, s5, s3
s_xor_b32 s4, s4, 1
s_lshl_b32 s4, s4, 3
s_add_u32 s5, s5, s4
v_add_u32 v{vHW+6}, s5, v{vDX}
v_bfe_u32 v{vT2}, v{vL}, 1, 3
s_lshl_b32 s3, s{sRG}, 3
v_add_u32 v{vT2}, s3, v{vT2}
s_mov_b32 s3, {9*16*1024}
v_mul_lo_u32 v{vPO}, v{vT2}, s3
v_and_b32 v{vT2}, 1, v{vL}
v_lshl_add_u32 v{vPO}, v{vT2}, 6, v{vPO}
v_lshl_add_u32 v{vPO}, v{vT0}, 4, v{vPO}
s_lshl_b32 s3, s{sCG}, 8
v_add_u32 v{vPO}, s3, v{vPO}
s_mul_i32 s{sPO}, s{sMT}, {16*9*16*1024}
s_lshl_b32 s3, s{sSL}, 10
s_add_u32 s{sPO}, s{sPO}, s3
""")
        vHW2 = vHW+6
        ACC = 256-nf*16
        XB = [64, 80]
        WR = 32
        def acc(f, nt): return ACC + f*16 + nt*4
        def wreg(s, f): return WR + 4*((s*nf+f) % 8)
        def wread(s, f):
            i, u = f >> 1, f & 1
            va = (vWA if i % 2 == 0 else vWB)[s % 3]; d = wreg(s, f)
            return [f"ds_read_b64_tr_b16 v[{d+2*h}:{d+2*h+1}], v{va} offset:{h*4*576 + i*32 + u*18432}" for h in range(2)]
        def mf(s, f):
            w = wreg(s, f)
            return [f"v_mfma_f32_16x16x32_bf16 {vr(acc(f, nt), 4)}, {vr(w, 4)}, {vr(XB[s % 2]+4*nt, 4)}, {'0' if s == 0 else vr(acc(f, nt), 4)}" for nt in range(4)]
        k.wait_vm("A0"); k("s_barrier")
        if stamp: k("s_memrealtime s[62:63]\ns_memtime s[74:75]")
        for s in range(18):
            for nt in range(4): k(f"ds_read_b128 {vr(XB[s % 2]+4*nt, 4)}, v{vXr[s % 3]} offset:{nt*1024}")
            for f in range(look): put(wread(s, f))
            dma = dmaA(s+2, five) if s+2 < 18 else dmaB(s-16, five)
            if s > 0: put(interleave(mf(s-1, nf-2)+mf(s-1, nf-1), dma))
            else: put(dma)
            for f in range(nf-2):
                put(interleave(mf(s, f), wread(s, f+look) if f+look < nf else []))
            k.wait_lg()
            k.wait_vm(f"A{s+1}")
            k("s_barrier")
        put(mf(17, nf-2)+mf(17, nf-1))
        if stamp: k("s_memrealtime s[64:65]\ns_memtime s[76:77]")
        for i in range(nt5):
            for nt in range(4):
                g, u = acc(2*i, nt), acc(2*i+1, nt)
                for r in range(4): k(f"v_exp_f32 v{g+r}, -v{g+r}")
                for r in range(4): k(f"v_add_f32 v{g+r}, 1.0, v{g+r}")
                for r in range(4): k(f"v_rcp_f32 v{g+r}, v{g+r}")
                for r in range(4): k(f"v_mul_f32 v{g+r}, v{g+r}, v{u+r}")
                k(f"v_cvt_pk_bf16_f32 v{u}, v{g}, v{g+1}\nv_cvt_pk_bf16_f32 v{u+1}, v{g+2}, v{g+3}")
                k(f"ds_write_b64 v{vHW if i % 2 == 0 else vHW2}, {vr(u, 2)} offset:{nt*9*1024 + (i >> 1)*1024}")
        k.wait_lg(); k.wait_vm("B0"); k("s_barrier")
        if stamp: k("s_memrealtime s[66:67]\ns_memtime s[78:79]")
        HB = 112; AB = [80, 96]; WG = [28, 40, 52]; PK = 64
        def hreg(kp, nt): return HB + (kp*4+nt)*4
        def wgreg(u, gi, c): return WG[(u*3+gi) % 3] + 4*c
        def wdread(u, gi):
            out = []
            for c in range(3):
                d = wgreg(u, gi, c); kp = gi*3+c
                out += [f"ds_read_b64_tr_b16 v[{d+2*h}:{d+2*h+1}], v{vWD[u % 4]} offset:{kp*4096 + h*2048}" for h in range(2)]
            return out
        def mfb(u, gi):
            out = []
            for nt in range(4):
                a = AB[u % 2]+4*nt
                for c in range(3):
                    out.append(f"v_mfma_f32_16x16x32_bf16 {vr(a, 4)}, {vr(wgreg(u, gi, c), 4)}, {vr(hreg(gi*3+c, nt), 4)}, {'0' if gi == 0 and c == 0 else vr(a, 4)}")
            return out
        def epib(u):
            out = []
            for h in range(2):
                for q in range(2):
                    a = AB[u % 2]+4*(2*h+q)
                    out += [f"v_cvt_pk_bf16_f32 v{PK+4*h+2*q}, v{a}, v{a+1}", f"v_cvt_pk_bf16_f32 v{PK+4*h+2*q+1}, v{a+2}, v{a+3}"]
                out.append((f"s_add_u32 s3, s{sPO}, {u*16384}\nbuffer_store_dwordx4 {vr(PK+4*h, 4)}, v{vPO}, s[{sP}:{sP+3}], s3 offen offset:{h*128} sc1", f"P{u}"))
            return out
        hread = lambda kp: [f"ds_read_b128 {vr(hreg(kp, nt), 4)}, v{vHR} offset:{(nt*9+kp)*1024}" for nt in range(4)]
        for u in range(9):
            put(wdread(u, 0))
            if u == 0:
                for kp in range(3): put(hread(kp))
                put(interleave(mfb(0, 0), wdread(0, 1) + hread(3)+hread(4)+hread(5)))
                put(interleave(mfb(0, 1), wdread(0, 2) + hread(6)+hread(7)+hread(8)))
            else:
                dma = (dmaB(2, five) + dmaB(3, five)) if u == 1 else (dmaB(u+2, five) if u+2 < 9 else [])
                put(interleave(mfb(u-1, 2), dma))
                put(interleave(mfb(u, 0), wdread(u, 1) + epib(u-1)))
                put(interleave(mfb(u, 1), wdread(u, 2) + [""]*6))
            if u < 8:
                k.wait_lg(); k.wait_vm(f"B{u+1}"); k("s_barrier")
        put(mfb(8, 2)); put(epib(8))
        if stamp:
            k(f"""
s_memrealtime s[68:69]
s_memtime s[80:81]
s_waitcnt vmcnt(0) lgkmcnt(0)
s_memrealtime s[70:71]
s_waitcnt lgkmcnt(0)
v_mov_b32 v28, s60
v_mov_b32 v29, s62
v_mov_b32 v30, s64
v_mov_b32 v31, s66
v_mov_b32 v32, s68
v_mov_b32 v33, s70
s_sub_u32 s3, s76, s74
v_mov_b32 v34, s3
s_sub_u32 s3, s80, s78
v_mov_b32 v35, s3
s_lshl_b32 s3, s2, 3
s_add_u32 s3, s3, s{sW}
s_lshl_b32 s3, s3, 5
s_add_u32 s3, s3, {O_FLG + 65536}
v_mov_b32 v36, s3
global_store_dwordx4 v36, v[28:31], s[6:7]
global_store_dwordx4 v36, v[32:35], s[6:7] offset:16
""")
    k(f"s_cmp_ge_u32 s{sW}, 4\ns_cbranch_scc1 {name}_p4")
    path(True)
    k(f"s_endpgm\n{name}_p4:")
    path(False)
    k(f"{name}_end:")
    return k

def build_red():
    k = K("red", 256, 384, vgpr=96)
    sP, sH, sO = 8, 12, 16
    k(f"""
s_load_dwordx2 s[4:5], s[0:1], 56
s_load_dwordx2 s[6:7], s[0:1], 72
s_cmp_ge_u32 s2, 256
s_cbranch_scc1 red_end
v_lshrrev_b32 v1, 6, v0
v_and_b32 v0, 63, v0
v_readfirstlane_b32 s30, v1
s_lshr_b32 s31, s2, 4
s_and_b32 s32, s2, 15
v_lshrrev_b32 v1, 4, v0
v_and_b32 v2, 15, v0
v_lshlrev_b32 v3, 10, v1
v_lshrrev_b32 v4, 2, v2
v_lshl_add_u32 v3, v4, 8, v3
v_and_b32 v4, 3, v2
v_lshl_add_u32 v3, v4, 4, v3
s_mov_b32 s3, 0x3f80
s_mov_b32 s33, 0x3f800000
v_and_b32 v4, 1, v2
v_cmp_eq_u32 vcc, 0, v4
v_mov_b32 v5, s33
v_mov_b32 v6, s3
v_cndmask_b32 v5, v5, v6, vcc
v_lshrrev_b32 v4, 1, v2
""")
    for i in range(8):
        k(f"v_cmp_eq_u32 vcc, {i}, v4\nv_cndmask_b32 v{8+i}, 0, v5, vcc")
    k("s_waitcnt lgkmcnt(0)")
    ws_srd(k, sP, O_P, N_P); ws_srd(k, sH, O_H, N_H); srd(k, sO, 4, N_H)
    k(f"""
s_mul_i32 s34, s2, {9*16*1024}
s_lshr_b32 s35, s32, 3
s_lshl_b32 s35, s35, 1
s_lshl_b32 s3, s31, 2
s_add_u32 s35, s35, s3
s_and_b32 s3, s32, 7
s_lshl_b32 s3, s3, 1
v_lshrrev_b32 v4, 1, v1
v_add_u32 v4, s3, v4
v_and_b32 v5, 1, v1
v_lshl_add_u32 v4, v5, 4, v4
v_lshlrev_b32 v4, 6, v4
v_add_u32 v4, s35, v4
v_mul_u32_u24 v4, 1152, v4
v_lshl_add_u32 v4, v2, 3, v4
s_mov_b32 s36, {LN2!r}
""")
    for i in range(3):
        b = 16 + 0
        k(f"""
s_mul_i32 s3, s30, 3
s_add_u32 s3, s3, {i}
s_lshr_b32 s33, s3, 1
s_and_b32 s3, s3, 1
s_lshl_b32 s37, s33, 14
s_add_u32 s37, s37, s34
s_lshl_b32 s38, s3, 7
s_add_u32 s37, s37, s38
s_lshl_b32 s38, s33, 7
s_mul_i32 s3, s3, 1152
s_add_u32 s{40+i}, s38, s3
""")
        for n1 in range(2):
            for pg in range(4):
                r = 16 + (i % 2)*32 + (n1*4+pg)*4
                k(f"s_add_u32 s3, s37, {pg*4096}\nbuffer_load_dwordx4 {vr(r, 4)}, v3, s[{sP}:{sP+3}], s3 offen offset:{n1*64}")
        k(f"buffer_load_dwordx2 v[{80+2*i}:{81+2*i}], v4, s[{sH}:{sH+3}], s{40+i} offen")
        def fin(i):
            for n1 in range(2):
                for pg in range(4):
                    r = 16 + (i % 2)*32 + (n1*4+pg)*4
                    k(f"v_mfma_f32_16x16x32_bf16 v[88:91], {vr(8+4*n1, 4)}, {vr(r, 4)}, {'0' if n1 == 0 and pg == 0 else 'v[88:91]'}")
            h = 80+2*i
            k(f"""
v_lshlrev_b32 v92, 16, v{h}
v_and_b32 v93, 0xffff0000, v{h}
v_lshlrev_b32 v94, 16, v{h+1}
v_and_b32 v95, 0xffff0000, v{h+1}
v_fma_f32 v92, v88, s36, v92
v_fma_f32 v93, v89, s36, v93
v_fma_f32 v94, v90, s36, v94
v_fma_f32 v95, v91, s36, v95
v_cvt_pk_bf16_f32 v{h}, v92, v93
v_cvt_pk_bf16_f32 v{h+1}, v94, v95
buffer_store_dwordx2 v[{h}:{h+1}], v4, s[{sO}:{sO+3}], s{40+i} offen
""")
        if i >= 1: fin(i-1)
    fin(2)
    k("red_end:")
    return k

if __name__ == "__main__":
    import sys
    f1 = build_f1(stamp=True, abl=sys.argv[1] if len(sys.argv) > 1 else "", look=int(sys.argv[2]) if len(sys.argv) > 2 else 3); red = build_red()
    print(emit([f1, red], [f1, red]))
    print(f1.count, f1.nops, file=sys.stderr)
```

```python
from asmlib import *
from layout import *
from f1 import ws_srd
import struct
def fl(x): return "0x%08x" % struct.unpack("<I", struct.pack("<f", x))[0]
MF32 = "v_mfma_f32_16x16x32_bf16"
MF16 = "v_mfma_f32_16x16x16_bf16"

def stamp(k, on, i):
    if on: k(f"s_memrealtime s[{60+2*i}:{61+2*i}]")
def stamp_out(k, on, slot, wavereg, n):
    if not on: return
    k("s_waitcnt vmcnt(0)"); stamp(k, on, n)
    k("s_waitcnt lgkmcnt(0)")
    for i in range(8): k(f"v_mov_b32 v{8+i}, s{60+2*i}" if i <= n else f"v_mov_b32 v{8+i}, 0")
    k(f"""
s_lshl_b32 s3, s2, 3
s_add_u32 s3, s3, {wavereg}
s_lshl_b32 s3, s3, 5
s_add_u32 s3, s3, {O_FLG + 65536*2*slot}
v_mov_b32 v16, s3
global_store_dwordx4 v16, v[8:11], s[6:7]
global_store_dwordx4 v16, v[12:15], s[6:7] offset:16
""")

def build_p1(st=False):
    PITCH = 1216
    XL = 8*PITCH
    EX = 4*XL
    k = K("p1", 488, 256, lds=EX+8192, vgpr=168)
    sW, sS2, sJT = 30, 31, 32
    stamp(k, st, 0)
    k(f"""
s_load_dwordx4 s[44:47], s[0:1], 0
s_load_dwordx2 s[48:49], s[0:1], 16
s_load_dwordx2 s[6:7], s[0:1], 72
v_lshrrev_b32 v1, 6, v0
v_and_b32 v0, 63, v0
v_readfirstlane_b32 s{sW}, v1
v_lshrrev_b32 v2, 4, v0
v_and_b32 v3, 15, v0
s_cmp_ge_u32 s2, 320
s_cbranch_scc1 p1_side
s_lshr_b32 s3, s2, 3
s_mul_i32 s4, s3, 52
s_lshr_b32 s4, s4, 8
s_mul_i32 s5, s4, 5
s_sub_u32 s{sJT}, s3, s5
s_lshl_b32 s4, s4, 3
s_and_b32 s3, s2, 7
s_add_u32 s{sS2}, s4, s3
v_lshrrev_b32 v4, 3, v0
v_and_b32 v5, 7, v0
s_lshl_b32 s3, s{sW}, 9
s_add_u32 s3, s3, s{sS2}
v_lshl_add_u32 v6, v4, 6, s3
v_mul_u32_u24 v6, 1152, v6
v_lshl_add_u32 v6, v5, 4, v6
s_waitcnt lgkmcnt(0)
""")
    srd(k, 8, 44, N_H)
    X, FR, FI, AF, AC, MA, TW = 20, 56, 74, 92, 128, 144, 152
    for i in range(9): k(f"buffer_load_dwordx4 {vr(X+4*i, 4)}, v6, s[8:11], 0 offen offset:{i*128}")
    ws_srd(k, 12, O_U, N_U)
    k(f"""
s_mul_i32 s3, s{sW}, {XL}
v_mul_u32_u24 v7, {PITCH}, v4
v_lshl_add_u32 v7, v5, 4, v7
v_add_u32 v7, s3, v7
v_and_b32 v8, 3, v0
v_mul_u32_u24 v8, {PITCH}, v8
v_lshrrev_b32 v9, 2, v0
v_lshl_add_u32 v8, v9, 3, v8
v_add_u32 v8, s3, v8
s_lshl_b32 s3, s{sJT}, 4
v_add_u32 v13, s3, v3
v_cvt_f32_u32 v9, v13
v_lshlrev_b32 v11, 4, v0
v_add_u32 v11, {EX}, v11
s_lshr_b32 s3, s{sW}, 1
s_lshl_b32 s3, s3, 10
s_and_b32 s4, s{sW}, 1
s_lshl_b32 s4, s4, 3
s_add_u32 s3, s3, s4
v_add_u32 v10, s3, v11
s_lshl_b32 s3, s{sW}, 9
s_add_u32 s3, s3, s{sS2}
v_lshl_add_u32 v12, v2, 7, s3
v_mul_u32_u24 v12, {ROWB}, v12
v_lshl_add_u32 v12, v13, 4, v12
v_mov_b32 v14, {OOB}
v_cmp_gt_u32 vcc, 76, v13
v_cndmask_b32 v12, v14, v12, vcc
v_cvt_f32_u32 v14, v2
v_mul_f32 v15, {fl(1/144)}, v9
v_mul_f32 v14, 4.0, v14
v_mul_f32 v16, v14, v15
""")
    t = 158
    for kk in range(5):
        for p in range(4 if kk < 4 else 2):
            for h in range(2):
                e = 2*p+h
                c0 = 32*kk + (e if e < 4 else 12+e)
                k(f"v_fmamk_f32 v{t+h}, v15, {fl(float(c0))}, v16")
            k(f"v_cos_f32 v{t+2}, v{t}\nv_cos_f32 v{t+3}, v{t+1}\nv_sin_f32 v{t}, v{t}\nv_sin_f32 v{t+1}, v{t+1}")
            k(f"v_cvt_pk_bf16_f32 v{FR+4*kk+p}, v{t+2}, v{t+3}\nv_cvt_pk_bf16_f32 v{FI+4*kk+p}, -v{t}, -v{t+1}")
    for q in range(1, 4):
        k(f"v_mul_f32 v{t}, {fl(q/576)}, v9\nv_cos_f32 v{TW+2*q-2}, v{t}\nv_sin_f32 v{TW+2*q-1}, v{t}")
    k(f"""
v_lshrrev_b32 v14, 1, v3
s_lshl_b32 s3, s{sW}, 3
v_add_u32 v14, s3, v14
v_lshl_add_u32 v15, v2, 6, s{sS2}
v_mul_u32_u24 v15, v14, v15
v_and_b32 v16, 1, v3
v_lshl_add_u32 v15, v16, 9, v15
v_cvt_f32_u32 v15, v15
v_mul_f32 v15, {fl(1/2048)}, v15
v_cvt_f32_u32 v14, v14
""")
    for kk in range(2):
        for tt in range(4):
            k(f"v_fmamk_f32 v{t}, v14, {fl((16*kk+4*tt)/32)}, v15\nv_cos_f32 v{t+1}, v{t}\nv_sin_f32 v{t}, v{t}\nv_cvt_pk_bf16_f32 v{MA+4*kk+tt}, v{t+1}, v{t}")
    k("v_mov_b32 v14, 0\nv_mov_b32 v15, 0\nv_mov_b32 v16, 0\nv_mov_b32 v17, 0\ns_mov_b32 s33, 0x3f803f80")
    k(f"v_lshlrev_b32 v18, 5, v2\nv_add_u32 v19, 128, v18")
    stamp(k, st, 1)
    for i in range(9): k(f"ds_write_b128 v7, {vr(X+4*i, 4)} offset:{i*128}")
    stamp(k, st, 2)
    rd = []
    for mu in range(2):
        for kk in range(5):
            for h in range(2 if kk < 4 else 1):
                d = AF+18*mu+4*kk+2*h
                rd.append(f"ds_read_b64_tr_b16 v[{d}:{d+1}], v8 offset:{mu*4*PITCH + kk*256 + h*128}")
    dots = []
    for i in range(36):
        dots += [f"v_dot2_f32_bf16 v{14+(i&1)}, v{X+i}, s33, v{14+(i&1)}", f"v_dot2_f32_bf16 v{16+(i&1)}, v{X+i}, v{X+i}, v{16+(i&1)}"]
    for x in interleave(rd, dots[:36]): k(x)
    mf = []
    for mu in range(2):
        for kk in range(5):
            for c, Fb in enumerate((FR, FI)):
                a = AC+8*mu+4*c
                if kk < 4: mf.append(f"{MF32} {vr(a, 4)}, {vr(AF+18*mu+4*kk, 4)}, {vr(Fb+4*kk, 4)}, {'0' if kk == 0 else vr(a, 4)}")
                else: mf.append(f"{MF16} {vr(a, 4)}, {vr(AF+18*mu+16, 2)}, {vr(Fb+16, 2)}, {vr(a, 4)}")
    dpp = "row_mask:0xf bank_mask:0xf"
    stats = dots[36:] + f"""v_add_f32 v14, v14, v15
v_add_f32 v16, v16, v17
v_add_f32_dpp v14, v14, v14 quad_perm:[1,0,3,2] {dpp}
v_add_f32_dpp v16, v16, v16 quad_perm:[1,0,3,2] {dpp}
v_add_f32_dpp v14, v14, v14 quad_perm:[2,3,0,1] {dpp}
v_add_f32_dpp v16, v16, v16 quad_perm:[2,3,0,1] {dpp}
v_add_f32_dpp v14, v14, v14 row_half_mirror {dpp}
v_add_f32_dpp v16, v16, v16 row_half_mirror {dpp}
v_mul_f32 v14, {fl(1/576)}, v14
v_mul_f32 v14, v14, v14
v_fmamk_f32 v16, v16, {fl(1/576)}, v14
v_fma_f32 v16, -2.0, v14, v16
v_max_f32 v16, 0, v16
v_add_f32 v16, {fl(1e-5)}, v16
v_rsq_f32 v16, v16
ds_bpermute_b32 v14, v18, v16
ds_bpermute_b32 v15, v19, v16""".split("\n")
    for x in interleave(mf, stats): k(x)
    stamp(k, st, 3)
    E = X
    for mu in range(2):
        R, I = AC+8*mu, AC+8*mu+4
        T = AF
        for q in range(1, 4):
            c, s = TW+2*q-2, TW+2*q-1
            k(f"v_mul_f32 v{T+2*q}, v{c}, v{R+q}\nv_mul_f32 v{T+2*q+1}, v{c}, v{I+q}")
        for q in range(1, 4):
            c, s = TW+2*q-2, TW+2*q-1
            k(f"v_fmac_f32 v{T+2*q}, v{s}, v{I+q}\nv_fma_f32 v{T+2*q+1}, -v{s}, v{R+q}, v{T+2*q+1}")
        a, b, c, d = T+8, T+10, T+12, T+14
        k(f"""
v_add_f32 v{c}, v{T+2}, v{T+6}
v_add_f32 v{c+1}, v{T+3}, v{T+7}
v_sub_f32 v{d}, v{T+2}, v{T+6}
v_sub_f32 v{d+1}, v{T+3}, v{T+7}
v_add_f32 v{a}, v{R}, v{T+4}
v_add_f32 v{a+1}, v{I}, v{T+5}
v_sub_f32 v{b}, v{R}, v{T+4}
v_sub_f32 v{b+1}, v{I}, v{T+5}
v_mul_f32 v{c}, v{14+mu}, v{c}
v_mul_f32 v{c+1}, v{14+mu}, v{c+1}
v_mul_f32 v{d}, v{14+mu}, v{d}
v_mul_f32 v{d+1}, v{14+mu}, v{d+1}
v_fma_f32 v{T}, v{14+mu}, v{a}, v{c}
v_fma_f32 v{T+1}, v{14+mu}, v{a+1}, v{c+1}
v_fma_f32 v{T+2}, v{14+mu}, v{b}, v{d+1}
v_fma_f32 v{T+3}, v{14+mu}, v{b+1}, -v{d}
v_fma_f32 v{T+4}, v{14+mu}, v{a}, -v{c}
v_fma_f32 v{T+5}, v{14+mu}, v{a+1}, -v{c+1}
v_fma_f32 v{T+6}, v{14+mu}, v{b}, -v{d+1}
v_fma_f32 v{T+7}, v{14+mu}, v{b+1}, v{d}
""")
        for m in range(4): k(f"v_cvt_pk_bf16_f32 v{E+2*m+mu}, v{T+2*m}, v{T+2*m+1}")
    for m in range(4): k(f"ds_write_b64 v10, {vr(E+2*m, 2)} offset:{m*2048}")
    k.wait_lg(); k("s_barrier")
    stamp(k, st, 4)
    B = FR
    for m in range(4):
        for kk in range(2): k(f"ds_read_b128 {vr(B+8*m+4*kk, 4)}, v11 offset:{m*2048+kk*1024}")
    for kk in range(2):
        for m in range(4): k(f"{MF32} {vr(AC+4*m, 4)}, {vr(MA+4*kk, 4)}, {vr(B+8*m+4*kk, 4)}, {'0' if kk == 0 else vr(AC+4*m, 4)}")
    k(f"s_mov_b32 s3, {64*ROWB}")
    for a in range(2):
        for m in range(4): k(f"v_cvt_pk_bf16_f32 v{X+4*a+m}, v{AC+4*m+2*a}, v{AC+4*m+2*a+1}")
        k(f"buffer_store_dwordx4 {vr(X+4*a, 4)}, v12, s[12:15], {'s3' if a else '0'} offen sc1")
    stamp(k, st, 5)
    stamp_out(k, st, 1, f"s{sW}", 6)
    k("s_endpgm\np1_side:")
    k(f"""
s_cmp_ge_u32 s2, 472
s_cbranch_scc1 p1_tab
s_sub_u32 s3, s2, 320
s_lshr_b32 s31, s3, 3
s_and_b32 s3, s3, 7
s_lshl_b32 s3, s3, 2
s_add_u32 s32, s3, s{sW}
s_lshl_b32 s3, s31, 2
v_lshrrev_b32 v4, 2, v3
v_add_u32 v4, s3, v4
v_and_b32 v5, 3, v3
v_mul_u32_u24 v6, 144, v5
v_add_u32 v7, v6, v4
v_sub_u32 v8, 576, v7
v_cmp_gt_u32 vcc, 2, v5
v_cndmask_b32 v8, v8, v7, vcc
v_lshlrev_b32 v8, 1, v8
v_cmp_lt_u32 vcc, 288, v7
v_mov_b32 v9, 0xffffffe0
v_bfrev_b32 v10, 1
v_cndmask_b32 v9, 32, v9, vcc
v_cndmask_b32 v10, 0, v10, vcc
v_lshl_add_u32 v11, v2, 7, s32
v_sub_u32 v12, 0, v11
v_cndmask_b32 v11, v11, v12, vcc
v_mov_b32 v12, {OOB}
v_cmp_lt_u32 vcc, 72, v4
v_cndmask_b32 v8, v8, v12, vcc
v_cmp_eq_u32 vcc, 0, v7
v_cndmask_b32 v8, v8, v12, vcc
s_movk_i32 s33, 578
s_waitcnt lgkmcnt(0)
""")
    srd(k, 8, 46, N_WF); srd(k, 12, 48, N_WF); ws_srd(k, 16, O_WH, N_WH)
    for T in range(4):
        for r in range(4):
            i = 4*T+r
            k(f"""v_mad_i32_i24 v13, v9, {16*T+r}, v11
v_and_b32 v13, 2047, v13
v_mad_u32_u24 v13, v13, s33, v8
buffer_load_ushort v{20+i}, v13, s[8:11], 0 offen
buffer_load_ushort v{36+i}, v13, s[12:15], 0 offen""")
    k(f"s_mul_i32 s3, s32, 19\ns_add_u32 s3, s3, s31\ns_lshl_b32 s3, s3, 12\nv_lshlrev_b32 v14, 4, v0")
    for T in range(4):
        for r in range(4):
            i = 4*T+r
            k(f"v_lshl_or_b32 v{20+i}, v{36+i}, 16, v{20+i}\nv_xor_b32 v{20+i}, v10, v{20+i}")
        k(f"buffer_store_dwordx4 {vr(20+4*T, 4)}, v14, s[16:19], s3 offen offset:{T*1024} sc1")
    k("s_endpgm\np1_tab:")
    sc = 1.0/(S*D)
    k(f"""
s_cmp_ge_u32 s2, 488
s_cbranch_scc1 p1_end
s_sub_u32 s3, s2, 472
s_lshl_b32 s3, s3, 2
s_add_u32 s31, s3, s{sW}
s_cmp_ge_u32 s31, 61
s_cbranch_scc1 p1_end
s_lshr_b32 s32, s31, 2
s_and_b32 s33, s31, 3
s_mov_b32 s34, {fl(1/64)}
s_cmp_lt_u32 s31, 16
s_cbranch_scc1 p1_tabA
s_sub_u32 s3, s31, 16
s_mul_i32 s32, s3, 52
s_lshr_b32 s32, s32, 8
s_mul_i32 s4, s32, 5
s_sub_u32 s33, s3, s4
s_mov_b32 s34, {fl(1/144)}
p1_tabA:
s_lshl_b32 s32, s32, 4
s_lshl_b32 s33, s33, 4
v_add_u32 v4, s32, v3
v_lshl_add_u32 v5, v2, 2, s33
s_waitcnt lgkmcnt(0)
""")
    ws_srd(k, 8, O_TAB, N_TAB)
    for r in range(4):
        k(f"""
v_add_u32 v6, {r}, v5
v_mul_u32_u24 v7, v6, v4
v_cvt_f32_u32 v7, v7
v_mul_f32 v7, s34, v7
v_fract_f32 v7, v7
v_cos_f32 v8, v7
v_sin_f32 v9, v7
s_cmp_lt_u32 s31, 16
s_cbranch_scc1 p1_tabB{r}
v_mov_b32 v10, {fl(2*sc)}
v_mov_b32 v11, {fl(sc)}
v_cmp_eq_u32 vcc, 0, v6
v_cndmask_b32 v10, v10, v11, vcc
v_cmp_eq_u32 vcc, 72, v6
v_cndmask_b32 v10, v10, v11, vcc
v_cmp_gt_u32 vcc, 73, v6
v_cndmask_b32 v10, 0, v10, vcc
v_mul_f32 v8, v8, v10
v_mul_f32 v9, -v9, v10
p1_tabB{r}:
v_cvt_pk_bf16_f32 v{12+r}, v8, v9
""")
    k(f"v_lshlrev_b32 v4, 4, v0\ns_lshl_b32 s3, s31, 10\nbuffer_store_dwordx4 v[12:15], v4, s[8:11], s3 offen sc1\np1_end:")
    return k

def build_p2(st=False):
    k = K("p2", 608, 64, vgpr=168)
    stamp(k, st, 0)
    k(f"""
s_load_dwordx2 s[6:7], s[0:1], 72
s_cmp_ge_u32 s2, 608
s_cbranch_scc1 p2_end
s_lshr_b32 s3, s2, 3
s_mul_i32 s4, s3, 27
s_lshr_b32 s4, s4, 9
s_mul_i32 s5, s4, 19
s_sub_u32 s31, s3, s5
s_and_b32 s3, s2, 7
s_lshl_b32 s3, s3, 2
s_add_u32 s32, s3, s4
v_lshrrev_b32 v2, 4, v0
v_and_b32 v3, 15, v0
v_mul_u32_u24 v4, {4*ROWB}, v2
v_lshl_add_u32 v4, v3, 2, v4
v_lshlrev_b32 v5, 4, v0
s_mul_i32 s33, s32, {64*ROWB}
s_lshl_b32 s3, s31, 6
s_add_u32 s33, s33, s3
s_mul_i32 s34, s32, 19
s_add_u32 s34, s34, s31
s_lshl_b32 s34, s34, 12
s_waitcnt lgkmcnt(0)
""")
    ws_srd(k, 8, O_U, N_U)
    B, B2, A, WH, XR, XI = 8, 24, 40, 104, 120, 136
    for T in range(4):
        if T: k(f"s_add_u32 s33, s33, {16*ROWB}")
        for r in range(4): k(f"buffer_load_dword v{B+4*T+r}, v4, s[8:11], s33 offen offset:{r*ROWB}")
    ws_srd(k, 12, O_TAB, N_TAB)
    for f in range(16):
        if f % 4 == 0: k(f"s_movk_i32 s3, {f*1024}")
        k(f"buffer_load_dwordx4 {vr(A+4*f, 4)}, v5, s[12:15], s3 offen offset:{(f % 4)*1024}")
    ws_srd(k, 16, O_WH, N_WH)
    for T in range(4): k(f"buffer_load_dwordx4 {vr(WH+4*T, 4)}, v5, s[16:19], s34 offen offset:{T*1024}")
    ws_srd(k, 20, O_V, N_U)
    k(f"""
v_mul_u32_u24 v6, {32*ROWB}, v3
v_lshl_add_u32 v6, v2, 4, v6
s_mul_i32 s35, s32, {ROWB}
s_lshl_b32 s3, s31, 6
s_add_u32 s35, s35, s3
s_brev_b32 s36, 1
s_mov_b32 s37, 0xffff0000
""")
    stamp(k, st, 1)
    for i in range(16): k(f"v_alignbit_b32 v{B2+i}, v{B+i}, v{B+i}, 16\nv_xor_b32 v{B2+i}, s36, v{B2+i}")
    stamp(k, st, 2)
    def fwd(Tp): return [f"{MF32} {vr(o+4*Tp, 4)}, {vr(A+16*Tp+4*T, 4)}, {vr(b+4*T, 4)}, {'0' if T == 0 else vr(o+4*Tp, 4)}" for T in range(4) for o, b in ((XR, B), (XI, B2))]
    D1, D2 = 152, B
    def filt(T):
        out = []
        for r in range(4):
            w = WH+4*T+r; xr, xi = XR+4*T+r, XI+4*T+r
            out += [f"v_lshlrev_b32 v152, 16, v{w}", f"v_and_b32 v153, s37, v{w}",
                    f"v_mul_f32 v154, v{xr}, v152", f"v_mul_f32 v155, v{xr}, v153",
                    f"v_fma_f32 v154, -v{xi}, v153, v154", f"v_fmac_f32 v155, v{xi}, v152",
                    f"v_cvt_pk_bf16_f32 v{w}, v154, -v155", f"v_cvt_pk_bf16_f32 v{xr}, v155, v154"]
        return out
    for x in fwd(0): k(x)
    for Tp in range(1, 4):
        for x in interleave(fwd(Tp), filt(Tp-1)): k(x)
    for x in filt(3): k(x)
    stamp(k, st, 3)
    VR, VI = B, B2
    def inv(Tp): return [f"{MF32} {vr(o+4*Tp, 4)}, {vr(d+4*T, 4)}, {vr(A+16*Tp+4*T, 4)}, {'0' if T == 0 else vr(o+4*Tp, 4)}" for T in range(4) for o, d in ((VR, WH), (VI, XR))]
    def outp(Tp):
        return [f"v_cvt_pk_bf16_f32 v{XI+4*Tp+r}, v{VR+4*Tp+r}, v{VI+4*Tp+r}" for r in range(4)] + \
               [f"buffer_store_dwordx4 {vr(XI+4*Tp, 4)}, v6, s[20:23], s35 offen sc1\ns_add_u32 s35, s35, {16*32*ROWB}"]
    for x in inv(0): k(x)
    for Tp in range(1, 4):
        m = inv(Tp)
        for x in m[:3] + interleave(m[3:], outp(Tp-1)): k(x)
    for x in outp(3): k(x)
    stamp(k, st, 4)
    stamp_out(k, st, 2, "0", 5)
    k("p2_end:")
    return k

def build_p3(st=False):
    EZ = 0; ES = 20*1024
    k = K("p3", 128, 320, lds=ES+1024, vgpr=168)
    sW, sS2, sNT = 30, 31, 32
    stamp(k, st, 0)
    k(f"""
s_load_dwordx2 s[44:45], s[0:1], 0
s_load_dwordx2 s[6:7], s[0:1], 72
s_cmp_ge_u32 s2, 128
s_cbranch_scc1 p3_end
v_lshrrev_b32 v1, 6, v0
v_and_b32 v0, 63, v0
v_readfirstlane_b32 s{sW}, v1
s_lshr_b32 s3, s2, 4
s_lshl_b32 s3, s3, 3
s_and_b32 s4, s2, 7
s_add_u32 s{sS2}, s3, s4
s_bfe_u32 s{sNT}, s2, 0x10003
v_lshrrev_b32 v2, 4, v0
v_and_b32 v3, 15, v0
s_lshl_b32 s3, s{sW}, 4
v_add_u32 v4, s3, v3
v_min_u32 v4, 75, v4
v_lshlrev_b32 v4, 4, v4
v_mul_u32_u24 v5, {4*ROWB}, v2
v_add_u32 v4, v4, v5
s_mul_i32 s33, s{sS2}, {32*ROWB}
s_add_u32 s34, s33, {16*ROWB}
s_waitcnt lgkmcnt(0)
""")
    ws_srd(k, 8, O_V, N_U)
    L, MB_, AC, TW, G, A2, XX = 16, 48, 64, 96, 120, 16, 48
    for kk in range(2):
        for t in range(4): k(f"buffer_load_dwordx4 {vr(L+16*kk+4*t, 4)}, v4, s[8:11], s{33+kk} offen offset:{t*ROWB}")
    srd(k, 12, 44, N_H); ws_srd(k, 16, O_TAB, N_TAB); ws_srd(k, 20, O_H, N_H); ws_srd(k, 24, O_XF, N_XF)
    k(f"""
s_lshl_b32 s3, s{sNT}, 4
v_add_u32 v6, s3, v3
v_lshl_add_u32 v6, v6, 6, s{sS2}
v_mul_u32_u24 v7, 1152, v6
v_lshl_add_u32 v7, v2, 5, v7
v_lshlrev_b32 v8, 4, v0
s_mul_i32 s35, s{sW}, {10*1024}
s_add_u32 s35, s35, {16*1024}
s_add_u32 s36, s35, 4096
s_add_u32 s37, s35, 8192
s_lshl_b32 s38, s{sW}, 8
""")
    for f in range(10):
        k(f"buffer_load_dwordx4 {vr(G+4*f, 4)}, v8, s[16:19], s{35+f//4} offen offset:{(f % 4)*1024}")
    XR_ = 160
    k(f"""
v_cvt_f32_u32 v9, v6
v_mul_f32 v9, {fl(1/2048)}, v9
v_cvt_f32_u32 v10, v2
v_mul_f32 v10, 4.0, v10
v_mul_f32 v11, v9, v10
""")
    for kk in range(2):
        for t in range(4):
            k(f"""v_fmamk_f32 v12, v9, {fl(float(16*kk+t))}, v11
v_cos_f32 v13, v12
v_sin_f32 v12, v12
v_cvt_pk_bf16_f32 v{MB_+4*kk+t}, v13, -v12
v_cvt_pk_bf16_f32 v{MB_+8+4*kk+t}, v12, v13""")
    k(f"s_lshl_b32 s3, s{sW}, 4\nv_cvt_f32_u32 v11, s3\nv_add_f32 v10, v10, v11")
    for r in range(4):
        k(f"v_add_f32 v11, {float(r) if r != 3 else fl(3.0)}, v10" if r else "v_mov_b32 v11, v10")
        for q in range(1, 4):
            k(f"v_mul_f32 v12, {fl(q/576)}, v11\nv_cos_f32 v{TW+6*r+2*q-2}, v12\nv_sin_f32 v{TW+6*r+2*q-1}, v12")
    stamp(k, st, 1)
    for kk in range(2):
        for a in range(4):
            for b in range(a+1, 4): k(f"v_swap_b32 v{L+16*kk+4*a+b}, v{L+16*kk+4*b+a}")
    stamp(k, st, 2)
    for m in range(4):
        for kk in range(2):
            for c in range(2):
                a = AC+8*m+4*c
                k(f"{MF32} {vr(a, 4)}, {vr(L+16*kk+4*m, 4)}, {vr(MB_+8*c+4*kk, 4)}, {'0' if kk == 0 else vr(a, 4)}")
    k(f"""buffer_load_dwordx4 {vr(XX, 4)}, v7, s[12:15], s38 offen
buffer_load_dwordx4 {vr(XX+4, 4)}, v7, s[12:15], s38 offen offset:16
buffer_load_dwordx4 {vr(XX+8, 4)}, v7, s[12:15], s38 offen offset:128
buffer_load_dwordx4 {vr(XX+12, 4)}, v7, s[12:15], s38 offen offset:144""")
    Z = L
    T = L+16
    for r in range(4):
        R = lambda m: AC+8*m+r
        I = lambda m: AC+8*m+4+r
        a, b, c, d = T, T+2, T+4, T+6
        u = T+8
        k(f"""
v_add_f32 v{a}, v{R(0)}, v{R(2)}
v_add_f32 v{a+1}, v{I(0)}, v{I(2)}
v_sub_f32 v{b}, v{R(0)}, v{R(2)}
v_sub_f32 v{b+1}, v{I(0)}, v{I(2)}
v_add_f32 v{c}, v{R(1)}, v{R(3)}
v_add_f32 v{c+1}, v{I(1)}, v{I(3)}
v_sub_f32 v{d}, v{R(1)}, v{R(3)}
v_sub_f32 v{d+1}, v{I(1)}, v{I(3)}
v_add_f32 v{u}, v{a}, v{c}
v_add_f32 v{u+1}, v{a+1}, v{c+1}
v_sub_f32 v{u+2}, v{b}, v{d+1}
v_add_f32 v{u+3}, v{b+1}, v{d}
v_sub_f32 v{u+4}, v{a}, v{c}
v_sub_f32 v{u+5}, v{a+1}, v{c+1}
v_add_f32 v{u+6}, v{b}, v{d+1}
v_sub_f32 v{u+7}, v{b+1}, v{d}
v_cvt_pk_bf16_f32 v{Z+r}, v{u}, v{u+1}
""")
        for q in range(1, 4):
            cc = TW+6*r+2*q-2
            k(f"v_mul_f32 v{T+2*q}, v{cc}, v{u+2*q}\nv_mul_f32 v{T+2*q+1}, v{cc}, v{u+2*q+1}")
        for q in range(1, 4):
            ss = TW+6*r+2*q-1
            k(f"v_fma_f32 v{T+2*q}, -v{ss}, v{u+2*q+1}, v{T+2*q}\nv_fmac_f32 v{T+2*q+1}, v{ss}, v{u+2*q}")
        for q in range(1, 4): k(f"v_cvt_pk_bf16_f32 v{Z+4*q+r}, v{T+2*q}, v{T+2*q+1}")
    k(f"s_lshl_b32 s3, s{sW}, 10\nv_add_u32 v9, s3, v8")
    for q in range(4): k(f"ds_write_b128 v9, {vr(Z+4*q, 4)} offset:{EZ+q*5120}")
    A2 = AC
    k("s_mov_b32 s39, 0xffff0000")
    for mt in range(2):
        for r in range(4):
            for q in range(4):
                src = XX+8*mt+2*r+(q >> 1); dst = A2+16*mt+4*q+r
                k(f"v_and_b32 v{dst}, s39, v{src}" if q & 1 else f"v_lshlrev_b32 v{dst}, 16, v{src}")
    k.wait_lg(); k("s_barrier")
    stamp(k, st, 3)
    ZR = L
    def final(nmt):
        idx = [(jt, q) for jt in range(5) for q in range(4)]
        rd = lambda i: f"ds_read_b128 {vr(ZR+4*(i % 8), 4)}, v8 offset:{EZ+idx[i][1]*5120+idx[i][0]*1024}"
        for i in range(6): k(rd(i))
        for i, (jt, q) in enumerate(idx):
            for mt in range(nmt):
                a = A2+16*mt+4*q
                k(f"{MF32} {vr(a, 4)}, {vr(G+20*mt+4*jt, 4)}, {vr(ZR+4*(i % 8), 4)}, {vr(a, 4)}")
            if i+6 < 20: k(rd(i+6))
        stamp(k, st, 4)
        first = True
        for mt in range(nmt):
            for q in range(4):
                for p in range(2):
                    a = A2+16*mt+4*q+2*p
                    if first: k(f"v_mov_b64 v[10:11], {vr(a, 2)}\nv_pk_mul_f32 v[12:13], {vr(a, 2)}, {vr(a, 2)}"); first = False
                    else: k(f"v_pk_add_f32 v[10:11], v[10:11], {vr(a, 2)}\nv_pk_fma_f32 v[12:13], {vr(a, 2)}, {vr(a, 2)}, v[12:13]")
        k(f"""
v_add_f32 v10, v10, v11
v_add_f32 v12, v12, v13
v_permlane32_swap_b32 v10, v12
v_add_f32 v10, v10, v12
v_mov_b32 v11, v10
v_permlane16_swap_b32 v10, v11
v_add_f32 v10, v10, v11
ds_write_b32 v14, v10 offset:{ES}
""")
        for mt in range(nmt):
            for h in range(2):
                for p in range(4):
                    r, q = 2*h+(p >> 1), 2*(p & 1)
                    k(f"v_cvt_pk_bf16_f32 v{XX+8*mt+4*h+p}, v{A2+16*mt+4*q+r}, v{A2+16*mt+4*(q+1)+r}")
                k(f"buffer_store_dwordx4 {vr(XX+8*mt+4*h, 4)}, v7, s[20:23], s38 offen offset:{mt*128+h*16} sc1")
        k.wait_lg(); k("s_barrier")
        for w in range(5): k(f"ds_read_b64 {vr(L+2*w, 2)}, v15 offset:{ES+8*w}")
        k(f"""
v_pk_add_f32 v[{L}:{L+1}], v[{L}:{L+1}], v[{L+2}:{L+3}]
v_pk_add_f32 v[{L+4}:{L+5}], v[{L+4}:{L+5}], v[{L+6}:{L+7}]
v_pk_add_f32 v[{L}:{L+1}], v[{L}:{L+1}], v[{L+8}:{L+9}]
v_pk_add_f32 v[{L}:{L+1}], v[{L}:{L+1}], v[{L+4}:{L+5}]
v_mul_f32 v10, {fl(1/576)}, v{L}
v_mul_f32 v11, v10, v10
v_fmamk_f32 v12, v{L+1}, {fl(1/576)}, v11
v_fma_f32 v12, -2.0, v11, v12
v_max_f32 v12, 0, v12
v_add_f32 v12, {fl(1e-5)}, v12
v_rsq_f32 v12, v12
v_mul_f32 v12, {fl(LOG2E)}, v12
v_mul_f32 v10, -v10, v12
v_mov_b32 v13, v12
v_mov_b32 v11, v10
""")
        stamp(k, st, 5)
        for mt in range(nmt):
            for q in range(4):
                for p in range(2):
                    a = A2+16*mt+4*q+2*p
                    k(f"v_pk_fma_f32 {vr(a, 2)}, {vr(a, 2)}, v[12:13], v[10:11]")
            for h in range(2):
                for p in range(4):
                    r, q = 2*h+(p >> 1), 2*(p & 1)
                    k(f"v_cvt_pk_bf16_f32 v{L+8*mt+4*h+p}, v{A2+16*mt+4*q+r}, v{A2+16*mt+4*(q+1)+r}")
                k(f"buffer_store_dwordx4 {vr(L+8*mt+4*h, 4)}, v5, s[24:27], s{40+mt} offen offset:{h*256} sc1")
        stamp(k, st, 6)
        stamp_out(k, st, 3, f"s{sW}", 7)
    k(f"""
v_lshlrev_b32 v15, 6, v3
v_lshrrev_b32 v14, 1, v2
v_lshl_add_u32 v14, v14, 2, v15
s_lshl_b32 s3, s{sW}, 3
v_add_u32 v14, s3, v14
v_lshrrev_b32 v5, 1, v2
v_lshlrev_b32 v5, 13, v5
v_and_b32 v9, 1, v2
v_lshl_add_u32 v5, v9, 9, v5
v_lshl_add_u32 v5, v3, 4, v5
s_lshl_b32 s3, s{sS2}, 1
s_add_u32 s3, s3, s{sNT}
s_lshr_b32 s4, s3, 3
s_mul_i32 s4, s4, {18*8192}
s_and_b32 s3, s3, 7
s_lshl_b32 s3, s3, 10
s_add_u32 s4, s4, s3
s_lshl_b32 s3, s{sW}, 15
s_add_u32 s40, s4, s3
s_add_u32 s41, s40, 16384
s_cmp_eq_u32 s{sW}, 4
s_cbranch_scc1 p3_w4
""")
    final(2)
    k("s_endpgm\np3_w4:")
    final(1)
    k("p3_end:")
    return k
```

```python
S, D, F = 2048, 576, 4608
MB = 1 << 20
ROWB = 1216
O_U   = 0
O_V   = 4*MB
O_WH  = 8*MB
O_XF  = 12*MB
O_H   = 16*MB
O_FLG = 20*MB
O_P   = 24*MB
N_U = 2048*ROWB
N_WH = 32*19*4096
N_XF = 16*18*8*1024
N_H = S*D*2
N_P = 16*16*9*16*1024
N_W = D*F*2
LOG2E = 1.4426950408889634
LN2 = 0.6931471805599453
O_TAB = 11*MB
N_TAB = 61*1024
N_WF = 2048*289*2
OOB = 0x40000000
```

```python
import sys
from asmlib import *
from f1 import *
from fft import *
st = "stamp" in sys.argv
HEADER = open("sequential_preLN__spectral_gfnet__glu_gated_glu__prompt.s.ref").read().split("; Override launch")[0].rstrip()
ks = [build_p1(st), build_p2(st), build_p3(st), build_f1(stamp=st), build_red()]
print(emit(ks, ks, header=HEADER))
for k in ks: print(k.name, k.count, "nops", k.nops, "maxv", k.maxv, file=sys.stderr)
```

```python
import re, copy

_REG = re.compile(r"^(-|abs\(|\|)?([vsa])(?:(\d+)|\[(\d+):(\d+)\])\)?\|?$")
def regs_of(op):
    op = op.strip()
    if op in ("vcc",): return {("s", "vcc")}
    if op in ("exec", "exec_lo", "exec_hi"): return {("s", "exec")}
    if op == "m0": return {("s", "m0")}
    m = _REG.match(op)
    if not m: return set()
    f = m.group(2)
    if m.group(3) is not None: return {(f, int(m.group(3)))}
    return {(f, i) for i in range(int(m.group(4)), int(m.group(5))+1)}

TRANS = ("v_exp_f32", "v_log_f32", "v_rcp_f32", "v_rsq_f32", "v_sqrt_f32", "v_sin_f32", "v_cos_f32")
class Ins:
    __slots__ = ("text", "mn", "kind", "w", "r", "rc", "rab", "data", "passes", "dpp", "trans", "sdwa_dst", "states", "wide", "lds_dma")
    def __init__(s, text):
        s.text = text
        t = text.split(";")[0].strip()
        parts = t.split(None, 1)
        s.mn = mn = parts[0]
        rest = parts[1] if len(parts) > 1 else ""
        ops = []
        depth = 0; cur = ""
        for ch in rest:
            if ch in "[(": depth += 1
            if ch in "])": depth -= 1
            if ch == "," and depth == 0: ops.append(cur.strip()); cur = ""
            else: cur += ch
        if cur.strip(): ops.append(cur.strip())
        mods = ""
        if ops:
            last = ops[-1].split(None, 1)
            ops[-1] = last[0]
            mods = last[1] if len(last) > 1 else ""
        R = [regs_of(o) for o in ops]
        U = lambda l: set().union(*l) if l else set()
        s.w = set(); s.r = set(); s.rc = set(); s.rab = set(); s.data = set(); s.passes = 0
        s.dpp = "_dpp" in mn or "row_" in mods or "quad_perm" in mods
        s.trans = mn.replace("_e32", "").replace("_e64", "") in TRANS
        s.sdwa_dst = ("_sdwa" in mn and "dst_sel:DWORD" not in mods) or ("op_sel" in mods and not mn.startswith("v_pk") and not mn.startswith("v_mfma"))
        s.states = 1; s.wide = False; s.lds_dma = False
        if mn.startswith("v_mfma"):
            s.kind = "mfma"; s.w = R[0]; s.rab = R[1] | R[2]; s.rc = R[3]; s.r = s.rab | s.rc
            s.passes = 8 if "32x32" in mn else 4
        elif mn.startswith("v_cmpx"):
            s.kind = "valu"; s.w = R[0] | {("s", "exec")}; s.r = U(R[1:])
        elif mn.startswith("v_"):
            s.kind = "valu"
            if mn.startswith(("v_permlane", "v_swap")): s.w = R[0] | R[1]; s.r = R[0] | R[1]
            elif "_co_" in mn or mn.startswith(("v_div_scale", "v_mad_u64")): s.w = R[0] | R[1]; s.r = U(R[2:])
            elif mn == "v_nop": pass
            else:
                s.w = R[0]; s.r = U(R[1:])
                if mn.startswith(("v_fmac", "v_dot2c", "v_writelane", "v_pk_fmac")) or s.dpp or s.sdwa_dst: s.r |= R[0]
        elif mn.startswith("ds_"):
            s.kind = "ds"
            if mn.startswith(("ds_read", "ds_bpermute", "ds_permute", "ds_swizzle")) or "_rtn" in mn: s.w = R[0]; s.r = U(R[1:])
            else: s.r = U(R); s.data = U(R[1:])
        elif mn.startswith("buffer_") or mn.startswith("global_"):
            s.kind = "vmem"
            lds = re.search(r"\blds\b", mods) is not None or "load_lds" in mn
            if mn.startswith(("buffer_wbl2", "buffer_inv")): pass
            elif lds: s.r = U(R) | {("s", "m0")}; s.lds_dma = True
            elif "_load" in mn:
                s.w = R[0]; s.r = U(R[1:])
                if "d16" in mn: s.r |= R[0]
            elif "atomic" in mn:
                ret = "sc0" in mods
                if mn.startswith("global_"):
                    if ret: s.w = R[0]; s.r = U(R[1:])
                    else: s.r = U(R)
                else:
                    s.r = U(R); s.w = R[0] if ret else set()
            else:
                s.r = U(R); s.data = R[0] if mn.startswith("buffer_") else R[1]
                s.wide = "x3" in mn or "x4" in mn
        elif mn.startswith(("s_load", "s_buffer_load", "s_memtime", "s_memrealtime")):
            s.kind = "smem"; s.w = R[0]; s.r = U(R[1:])
        elif mn.startswith("s_"):
            s.kind = "salu"
            if mn == "s_nop": s.states = int(ops[0], 0)+1
            elif mn.startswith(("s_cmp", "s_bitcmp", "s_setpc")): s.r = U(R)
            elif mn.startswith(("s_waitcnt", "s_barrier", "s_branch", "s_cbranch", "s_setprio", "s_sleep", "s_endpgm")): pass
            elif "saveexec" in mn: s.w = R[0] | {("s", "exec")}; s.r = U(R[1:])
            else:
                s.w = R[0]; s.r = U(R[1:])
                if mn.startswith(("s_addk", "s_mulk", "s_cmov", "s_bitset")): s.r |= R[0]
        else:
            raise ValueError("unknown instr: " + text)

def isv(x): return x[0] in "va"
def need_states(p, c):
    n = 0
    if p.kind == "valu":
        pv = {x for x in p.w if isv(x)}; ps = p.w - pv
        if c.kind == "mfma":
            if pv & c.r: n = max(n, 2)
            if ("s", "exec") in ps: n = max(n, 4)
        if c.kind == "valu":
            if c.mn.startswith("v_permlane"):
                if pv & c.r: n = max(n, 2)
                if ("s", "exec") in ps: n = max(n, 4)
            if c.dpp:
                if pv & c.r: n = max(n, 2)
                if ("s", "exec") in ps: n = max(n, 5)
            if c.mn.startswith(("v_readlane", "v_readfirstlane", "v_writelane")):
                if pv & c.r: n = max(n, 1)
                if ps & c.r: n = max(n, 4)
                if ("s", "exec") in ps: n = max(n, 4)
            if ps & c.r: n = max(n, 2)
            if c.mn.startswith("v_div_fmas") and ("s", "vcc") in ps: n = max(n, 4)
            if p.trans and not c.trans and (pv & c.r): n = max(n, 1)
            if p.sdwa_dst and (pv & (c.r | c.w)): n = max(n, 1)
        if c.kind in ("vmem", "ds") and (ps & c.r): n = max(n, 5)
        if c.kind in ("vmem", "ds") and p.trans and (pv & c.r): n = max(n, 1)
        if c.kind in ("salu", "smem") and (ps & c.r): n = max(n, 1)
    elif p.kind == "mfma":
        big = {4: 8, 8: 12}[p.passes]
        if c.kind == "mfma":
            if p.w & c.rab: n = max(n, big)
            if p.w & c.rc:
                if not (p.w == c.rc and p.passes == c.passes): n = max(n, {4: 6, 8: 10}[p.passes])
            elif p.w & c.w: n = max(n, big)
        elif c.kind in ("valu", "ds", "vmem"):
            if p.w & (c.r | c.w): n = max(n, big)
            if c.kind == "valu" and (p.rc & c.w): n = max(n, {4: 3, 8: 7}[p.passes])
            if c.kind != "valu" and (p.rc & c.w): n = max(n, big)
    elif p.kind == "vmem":
        if p.wide and c.kind in ("valu", "mfma") and (p.data & c.w): n = max(n, 2)
        elif p.wide and (p.data & c.w): n = max(n, 1)
    elif p.kind == "ds":
        if len(p.data) >= 3 and c.kind in ("valu", "mfma") and (p.data & c.w): n = max(n, 2)
    elif p.kind == "salu":
        if ("s", "m0") in p.w and (c.lds_dma or "addtid" in c.mn): n = max(n, 1)
    return n

class Q:
    def __init__(s): s.e = []; s.done = 0
    def clone(s):
        o = Q(); o.e = list(s.e); o.done = s.done; return o
    def younger(s, q): return sum(1 for x in s.e[q+1:] if not x[3])
    def wait(s, n, now):
        if n == 0: s.e = []; s.done = now; return
        for q in range(len(s.e)-1, -1, -1):
            if s.younger(q) >= n:
                s.done = max(s.done, s.e[q][0]); s.e = s.e[q+1:]; return
    @staticmethod
    def merge(a, b):
        A = {x[0]: x for x in a.e}; B = {x[0]: x for x in b.e}
        o = Q(); o.done = min(a.done, b.done)
        for sq in sorted(set(A) | set(B)):
            if sq in A and sq in B: o.e.append((sq, A[sq][1], A[sq][2], A[sq][3] or B[sq][3]))
            else:
                x, other = (A[sq], b) if sq in A else (B[sq], a)
                o.e.append((sq, x[1], x[2], x[3] or sq > other.done))
        return o

class State:
    def __init__(s):
        s.hists = [[]]; s.vm = Q(); s.lg = Q(); s.sm = set()
    def clone(s):
        o = State(); o.hists = [list(h) for h in s.hists]; o.vm = s.vm.clone(); o.lg = s.lg.clone(); o.sm = set(s.sm); return o
    @staticmethod
    def merge(a, b):
        o = State(); o.vm = Q.merge(a.vm, b.vm); o.lg = Q.merge(a.lg, b.lg); o.sm = a.sm | b.sm
        seen = {}
        for h in a.hists + b.hists: seen.setdefault(tuple(id(i) for i in h), h)
        o.hists = [list(h) for h in seen.values()]
        return o

class K:
    def __init__(self, name, grid, block, lds=0, vgpr=128, agpr=0, sgpr=96, auto=True):
        self.name, self.grid, self.block, self.lds = name, grid, block, lds
        self.vgpr, self.agpr, self.sgpr = vgpr, agpr, sgpr
        self.lines = []; self.data = []
        self.auto = auto
        self.st = State()
        self.saved = {}
        self.seq = 0
        self.nops = 0
        self.maxv = 0
        self.count = {}
    def __call__(self, s, tag=None):
        for l in s.strip("\n").split("\n"):
            l = l.strip()
            if not l: continue
            if l.startswith(";"): self.lines.append(l); continue
            if l.endswith(":"): self._label(l[:-1]); continue
            if l.startswith("."): self.lines.append(l); continue
            if not self.auto: self.lines.append(l); continue
            self._ins(l, tag)
    def _label(self, lab):
        self.lines.append(lab + ":")
        for o in self.saved.pop(lab, []):
            self.st = o if self.st is None else State.merge(self.st, o)
        if self.st is None: self.st = State()
    def _emit(self, i):
        self.lines.append(i.text)
        self.count[i.kind] = self.count.get(i.kind, 0) + 1
        seen = {}
        for h in self.st.hists:
            h.append(i)
            d = 0; n = len(h)
            while n > 0 and d < 14: n -= 1; d += h[n].states
            del h[:n]
            seen.setdefault(tuple(id(x) for x in h), h)
        self.st.hists = list(seen.values())
        assert len(self.st.hists) < 256
    def _wait(self, vm=None, lg=None):
        t = "s_waitcnt"
        if vm is not None: t += f" vmcnt({vm})"
        if lg is not None: t += f" lgkmcnt({lg})"
        self._apply_wait(vm, lg)
        self._emit(Ins(t))
    def _apply_wait(self, vm, lg):
        st = self.st
        if vm is not None: st.vm.wait(vm, self.seq)
        if lg is not None:
            if lg == 0: st.lg.wait(0, self.seq); st.sm = set()
            elif not st.sm: st.lg.wait(lg, self.seq)
    def _need(self, q, pred, cap):
        n = None
        for j, x in enumerate(q.e):
            if pred(x):
                m = min(cap, q.younger(j)); n = m if n is None else min(n, m)
        return n
    def _ins(self, text, tag):
        i = Ins(text)
        if tag == "touch": i.w = set()
        if self.st is None: self.st = State()
        st = self.st
        for f, n in (i.w | i.r):
            if f == "v": self.maxv = max(self.maxv, n)
        if i.mn == "s_waitcnt":
            vm = re.search(r"vmcnt\((\d+)\)", text); lg = re.search(r"lgkmcnt\((\d+)\)", text)
            self._apply_wait(int(vm.group(1)) if vm else None, int(lg.group(1)) if lg else None)
            self._emit(i); return
        touch = i.r | i.w
        vm = self._need(st.vm, lambda x: x[2] & touch, 63)
        lg = self._need(st.lg, lambda x: x[2] & touch, 15)
        if (lg is not None and st.sm) or (st.sm & touch): lg = 0
        if vm is not None or lg is not None: self._wait(vm, lg)
        need = 0
        for h in st.hists:
            dist = 0
            for p in reversed(h):
                n = need_states(p, i)
                if n > dist: need = max(need, n-dist)
                dist += p.states
        if need:
            self.nops += need
            self._emit(Ins(f"s_nop {need-1}"))
        self._emit(i)
        self.seq += 1
        if i.kind == "vmem": st.vm.e.append((self.seq, tag, i.w, False))
        elif i.kind == "ds": st.lg.e.append((self.seq, tag, i.w, False))
        elif i.kind == "smem": st.sm |= (i.w or {("s", -1)})
        if i.mn.startswith(("s_cbranch", "s_branch")):
            lab = text.split()[1]
            self.saved.setdefault(lab, []).append(st.clone())
            if i.mn == "s_branch": self.st = None
        if i.mn == "s_endpgm": self.st = None
    def wait_vm(self, *tags):
        n = self._need(self.st.vm, lambda x: x[1] in tags, 63)
        if n is not None: self._wait(vm=n)
    def wait_lg(self, *tags):
        n = self._need(self.st.lg, lambda x: not tags or x[1] in tags, 15)
        if n is not None: self._wait(lg=0 if self.st.sm else n)
    def launch_line(self):
        g = self.grid if isinstance(self.grid, tuple) else (self.grid, 1, 1)
        return f"; @launch kernel={self.name}_kernel grid=({g[0]},{g[1]},{g[2]}) block=({self.block},1,1) lds={self.lds}"
    def text(self):
        assert self.maxv < self.vgpr, (self.name, self.maxv, self.vgpr)
        acc = (self.vgpr + 3)//4*4
        nfv = acc + self.agpr if self.agpr else self.vgpr
        body = "\n".join(self.lines)
        return f""".text
.globl {self.name}_kernel
.p2align 8
.type {self.name}_kernel,@function
{self.name}_kernel:
{body}
s_endpgm
{self.name}_code_end:
{chr(10).join(self.data)}
.section .rodata,"a"
.p2align 6
.amdhsa_kernel {self.name}_kernel
  .amdhsa_next_free_vgpr {nfv}
  .amdhsa_next_free_sgpr {self.sgpr}
  .amdhsa_accum_offset {acc}
  .amdhsa_group_segment_fixed_size 0
  .amdhsa_kernarg_size 80
  .amdhsa_user_sgpr_count 2
  .amdhsa_user_sgpr_kernarg_segment_ptr 1
  .amdhsa_system_sgpr_workgroup_id_x 1
  .amdhsa_float_denorm_mode_32 3
.end_amdhsa_kernel
"""
def emit(launch_order, kernels, header="", tail=""):
    out = [k.launch_line() for k in launch_order]
    if header: out.append(header)
    out.append('.amdgcn_target "amdgcn-amd-amdhsa--gfx950"')
    for k in kernels: out.append(k.text())
    if tail: out.append(tail)
    return "\n".join(out) + "\n"
def vr(a, n=1): return f"v{a}" if n == 1 else f"v[{a}:{a+n-1}]"
def sr(a, n=1): return f"s{a}" if n == 1 else f"s[{a}:{a+n-1}]"
def srd(k, d, base, nbytes):
    k(f"s_mov_b32 s{d}, s{base}\ns_mov_b32 s{d+1}, s{base+1}\ns_mov_b32 s{d+2}, {nbytes}\ns_mov_b32 s{d+3}, 0x20000")
def interleave(main, fill):
    out = []; n, m = len(main), len(fill); j = 0
    for i, x in enumerate(main):
        out.append(x)
        hi = (i+1)*m//n
        out += fill[j:hi]; j = hi
    return out
```

```python
from asmlib import *
from layout import *
from pf import ws_srd
import struct
def fl(x): return "0x%08x" % struct.unpack("<I", struct.pack("<f", x))[0]
MF32 = "v_mfma_f32_16x16x32_bf16"
MF16 = "v_mfma_f32_16x16x16_bf16"

def stamp(k, on, i):
    if on: k(f"s_memrealtime s[{60+2*i}:{61+2*i}]")
def stamp_out(k, on, slot, wavereg, n):
    if not on: return
    k("s_waitcnt vmcnt(0)"); stamp(k, on, n)
    k("s_waitcnt lgkmcnt(0)")
    for i in range(8): k(f"v_mov_b32 v{8+i}, s{60+2*i}" if i <= n else f"v_mov_b32 v{8+i}, 0")
    k(f"""
s_lshl_b32 s3, s2, 3
s_add_u32 s3, s3, {wavereg}
s_lshl_b32 s3, s3, 5
s_add_u32 s3, s3, {O_STAMP + 262144*slot}
v_mov_b32 v16, s3
global_store_dwordx4 v16, v[8:11], s[6:7]
global_store_dwordx4 v16, v[12:15], s[6:7] offset:16
""")

def build_p1(st=False, FPOL=""):
    PITCH = 1216
    XL = 8*PITCH
    EX = 4*XL
    k = K("p1", 432, 256, lds=EX+8192, vgpr=168)
    sW, sS2, sJT = 30, 31, 32
    stamp(k, st, 0)
    k(f"""
s_load_dwordx4 s[44:47], s[0:1], 0
s_load_dwordx2 s[48:49], s[0:1], 16
s_load_dwordx2 s[6:7], s[0:1], 72
v_lshrrev_b32 v1, 6, v0
v_and_b32 v0, 63, v0
v_readfirstlane_b32 s{sW}, v1
v_lshrrev_b32 v2, 4, v0
v_and_b32 v3, 15, v0
s_cmp_ge_u32 s2, 320
s_cbranch_scc1 p1_side
s_lshr_b32 s3, s2, 3
s_mul_i32 s4, s3, 52
s_lshr_b32 s4, s4, 8
s_mul_i32 s5, s4, 5
s_sub_u32 s{sJT}, s3, s5
s_lshl_b32 s4, s4, 3
s_and_b32 s3, s2, 7
s_add_u32 s{sS2}, s4, s3
v_lshrrev_b32 v4, 3, v0
v_and_b32 v5, 7, v0
s_lshl_b32 s3, s{sW}, 9
s_add_u32 s3, s3, s{sS2}
v_lshl_add_u32 v6, v4, 6, s3
v_mul_u32_u24 v6, 1152, v6
v_lshl_add_u32 v6, v5, 4, v6
s_waitcnt lgkmcnt(0)
""")
    srd(k, 8, 44, N_H)
    X, FR, FI, AF, AC, MA, TW = 20, 56, 74, 92, 128, 144, 152
    for i in range(9): k(f"buffer_load_dwordx4 {vr(X+4*i, 4)}, v6, s[8:11], 0 offen offset:{i*128} nt")
    ws_srd(k, 12, O_U, N_U)
    k(f"""
s_mul_i32 s3, s{sW}, {XL}
v_mul_u32_u24 v7, {PITCH}, v4
v_lshl_add_u32 v7, v5, 4, v7
v_add_u32 v7, s3, v7
v_and_b32 v8, 3, v0
v_mul_u32_u24 v8, {PITCH}, v8
v_lshrrev_b32 v9, 2, v0
v_lshl_add_u32 v8, v9, 3, v8
v_add_u32 v8, s3, v8
s_lshl_b32 s3, s{sJT}, 4
v_add_u32 v13, s3, v3
v_cvt_f32_u32 v9, v13
v_lshlrev_b32 v11, 4, v0
v_add_u32 v11, {EX}, v11
s_lshr_b32 s3, s{sW}, 1
s_lshl_b32 s3, s3, 10
s_and_b32 s4, s{sW}, 1
s_lshl_b32 s4, s4, 3
s_add_u32 s3, s3, s4
v_add_u32 v10, s3, v11
s_lshl_b32 s3, s{sW}, 9
s_add_u32 s3, s3, s{sS2}
v_lshl_add_u32 v12, v2, 7, s3
v_mul_u32_u24 v12, {ROWB}, v12
v_lshl_add_u32 v12, v13, 4, v12
v_cvt_f32_u32 v14, v2
v_mul_f32 v15, {fl(1/144)}, v9
v_mul_f32 v14, 4.0, v14
v_mul_f32 v16, v14, v15
""")
    t = 158
    for kk in range(5):
        for p in range(4 if kk < 4 else 2):
            for h in range(2):
                e = 2*p+h
                c0 = 32*kk + (e if e < 4 else 12+e)
                k(f"v_fmamk_f32 v{t+h}, v15, {fl(float(c0))}, v16")
            k(f"v_cos_f32 v{t+2}, v{t}\nv_cos_f32 v{t+3}, v{t+1}\nv_sin_f32 v{t}, v{t}\nv_sin_f32 v{t+1}, v{t+1}")
            k(f"v_cvt_pk_bf16_f32 v{FR+4*kk+p}, v{t+2}, v{t+3}\nv_cvt_pk_bf16_f32 v{FI+4*kk+p}, -v{t}, -v{t+1}")
    for q in range(1, 4):
        k(f"v_mul_f32 v{t}, {fl(q/576)}, v9\nv_cos_f32 v{TW+2*q-2}, v{t}\nv_sin_f32 v{TW+2*q-1}, v{t}")
    k(f"""
v_lshrrev_b32 v14, 1, v3
s_lshl_b32 s3, s{sW}, 3
v_add_u32 v14, s3, v14
v_lshl_add_u32 v15, v2, 6, s{sS2}
v_mul_u32_u24 v15, v14, v15
v_and_b32 v16, 1, v3
v_lshl_add_u32 v15, v16, 9, v15
v_cvt_f32_u32 v15, v15
v_mul_f32 v15, {fl(1/2048)}, v15
v_cvt_f32_u32 v14, v14
""")
    for kk in range(2):
        for tt in range(4):
            k(f"v_fmamk_f32 v{t}, v14, {fl((16*kk+4*tt)/32)}, v15\nv_cos_f32 v{t+1}, v{t}\nv_sin_f32 v{t}, v{t}\nv_cvt_pk_bf16_f32 v{MA+4*kk+tt}, v{t+1}, v{t}")
    k("v_mov_b32 v14, 0\nv_mov_b32 v15, 0\nv_mov_b32 v16, 0\nv_mov_b32 v17, 0\ns_mov_b32 s33, 0x3f803f80")
    k(f"v_lshlrev_b32 v18, 5, v2\nv_add_u32 v19, 128, v18")
    stamp(k, st, 1)
    for i in range(9): k(f"ds_write_b128 v7, {vr(X+4*i, 4)} offset:{i*128}")
    stamp(k, st, 2)
    rd = []
    for mu in range(2):
        for kk in range(5):
            for h in range(2 if kk < 4 else 1):
                d = AF+18*mu+4*kk+2*h
                rd.append(f"ds_read_b64_tr_b16 v[{d}:{d+1}], v8 offset:{mu*4*PITCH + kk*256 + h*128}")
    dots = []
    for i in range(36):
        dots += [f"v_dot2_f32_bf16 v{14+(i&1)}, v{X+i}, s33, v{14+(i&1)}", f"v_dot2_f32_bf16 v{16+(i&1)}, v{X+i}, v{X+i}, v{16+(i&1)}"]
    for x in interleave(rd, dots[:36]): k(x)
    mf = []
    for mu in range(2):
        for kk in range(5):
            for c, Fb in enumerate((FR, FI)):
                a = AC+8*mu+4*c
                if kk < 4: mf.append(f"{MF32} {vr(a, 4)}, {vr(AF+18*mu+4*kk, 4)}, {vr(Fb+4*kk, 4)}, {'0' if kk == 0 else vr(a, 4)}")
                else: mf.append(f"{MF16} {vr(a, 4)}, {vr(AF+18*mu+16, 2)}, {vr(Fb+16, 2)}, {vr(a, 4)}")
    dpp = "row_mask:0xf bank_mask:0xf"
    stats = dots[36:] + f"""v_add_f32 v14, v14, v15
v_add_f32 v16, v16, v17
v_add_f32_dpp v14, v14, v14 quad_perm:[1,0,3,2] {dpp}
v_add_f32_dpp v16, v16, v16 quad_perm:[1,0,3,2] {dpp}
v_add_f32_dpp v14, v14, v14 quad_perm:[2,3,0,1] {dpp}
v_add_f32_dpp v16, v16, v16 quad_perm:[2,3,0,1] {dpp}
v_add_f32_dpp v14, v14, v14 row_half_mirror {dpp}
v_add_f32_dpp v16, v16, v16 row_half_mirror {dpp}
v_mul_f32 v14, {fl(1/576)}, v14
v_mul_f32 v14, v14, v14
v_fmamk_f32 v16, v16, {fl(1/576)}, v14
v_fma_f32 v16, -2.0, v14, v16
v_max_f32 v16, 0, v16
v_add_f32 v16, {fl(1e-5)}, v16
v_rsq_f32 v16, v16
ds_bpermute_b32 v14, v18, v16
ds_bpermute_b32 v15, v19, v16""".split("\n")
    for x in interleave(mf, stats): k(x)
    stamp(k, st, 3)
    E = X
    for mu in range(2):
        R, I = AC+8*mu, AC+8*mu+4
        T = AF
        for q in range(1, 4):
            c, s = TW+2*q-2, TW+2*q-1
            k(f"v_mul_f32 v{T+2*q}, v{c}, v{R+q}\nv_mul_f32 v{T+2*q+1}, v{c}, v{I+q}")
        for q in range(1, 4):
            c, s = TW+2*q-2, TW+2*q-1
            k(f"v_fmac_f32 v{T+2*q}, v{s}, v{I+q}\nv_fma_f32 v{T+2*q+1}, -v{s}, v{R+q}, v{T+2*q+1}")
        a, b, c, d = T+8, T+10, T+12, T+14
        k(f"""
v_add_f32 v{c}, v{T+2}, v{T+6}
v_add_f32 v{c+1}, v{T+3}, v{T+7}
v_sub_f32 v{d}, v{T+2}, v{T+6}
v_sub_f32 v{d+1}, v{T+3}, v{T+7}
v_add_f32 v{a}, v{R}, v{T+4}
v_add_f32 v{a+1}, v{I}, v{T+5}
v_sub_f32 v{b}, v{R}, v{T+4}
v_sub_f32 v{b+1}, v{I}, v{T+5}
v_mul_f32 v{c}, v{14+mu}, v{c}
v_mul_f32 v{c+1}, v{14+mu}, v{c+1}
v_mul_f32 v{d}, v{14+mu}, v{d}
v_mul_f32 v{d+1}, v{14+mu}, v{d+1}
v_fma_f32 v{T}, v{14+mu}, v{a}, v{c}
v_fma_f32 v{T+1}, v{14+mu}, v{a+1}, v{c+1}
v_fma_f32 v{T+2}, v{14+mu}, v{b}, v{d+1}
v_fma_f32 v{T+3}, v{14+mu}, v{b+1}, -v{d}
v_fma_f32 v{T+4}, v{14+mu}, v{a}, -v{c}
v_fma_f32 v{T+5}, v{14+mu}, v{a+1}, -v{c+1}
v_fma_f32 v{T+6}, v{14+mu}, v{b}, -v{d+1}
v_fma_f32 v{T+7}, v{14+mu}, v{b+1}, v{d}
""")
        for m in range(4): k(f"v_cvt_pk_bf16_f32 v{E+2*m+mu}, v{T+2*m}, v{T+2*m+1}")
    for m in range(4): k(f"ds_write_b64 v10, {vr(E+2*m, 2)} offset:{m*2048}")
    k.wait_lg(); k("s_barrier")
    stamp(k, st, 4)
    B = FR
    for m in range(4):
        for kk in range(2): k(f"ds_read_b128 {vr(B+8*m+4*kk, 4)}, v11 offset:{m*2048+kk*1024}")
    for kk in range(2):
        for m in range(4): k(f"{MF32} {vr(AC+4*m, 4)}, {vr(MA+4*kk, 4)}, {vr(B+8*m+4*kk, 4)}, {'0' if kk == 0 else vr(AC+4*m, 4)}")
    k(f"s_mov_b32 s3, {64*ROWB}")
    for a in range(2):
        for m in range(4): k(f"v_cvt_pk_bf16_f32 v{X+4*a+m}, v{AC+4*m+2*a}, v{AC+4*m+2*a+1}")
        k(f"buffer_store_dwordx4 {vr(X+4*a, 4)}, v12, s[12:15], {'s3' if a else '0'} offen sc1")
    stamp(k, st, 5)
    stamp_out(k, st, 1, f"s{sW}", 6)
    k("s_endpgm\np1_side:")
    k(f"""
s_cmp_ge_u32 s2, 400
s_cbranch_scc1 p1_tab
s_sub_u32 s3, s2, 320
s_and_b32 s32, s3, 7
s_lshl_b32 s32, s32, 2
s_lshr_b32 s3, s3, 3
s_lshl_b32 s3, s3, 2
s_add_u32 s3, s3, s{sW}
v_lshl_add_u32 v13, s3, 6, v0
v_mul_u32_u24 v14, 13108, v13
v_lshrrev_b32 v14, 16, v14
v_mul_u32_u24 v15, 5, v14
v_sub_u32 v15, v13, v15
v_and_b32 v16, 3, v14
v_add_u32 v16, s32, v16
v_lshrrev_b32 v17, 3, v14
v_lshl_add_u32 v16, v17, 5, v16
v_sub_u32 v17, 0, v16
v_and_b32 v17, 2047, v17
v_and_b32 v14, 4, v14
v_cmp_eq_u32 vcc, 0, v14
v_cndmask_b32 v16, v17, v16, vcc
v_mul_u32_u24 v16, 578, v16
v_lshl_add_u32 v16, v15, 7, v16
v_and_b32 v16, -4, v16
s_waitcnt lgkmcnt(0)
""")
    srd(k, 8, 46, N_WF); srd(k, 12, 48, N_WF)
    k(f"""
buffer_load_dword v17, v16, s[8:11], 0 offen {FPOL}
buffer_load_dword v18, v16, s[12:15], 0 offen {FPOL}
buffer_load_dword v19, v16, s[8:11], 0 offen offset:64 {FPOL}
buffer_load_dword v15, v16, s[12:15], 0 offen offset:64 {FPOL}
s_endpgm
p1_tab:""")
    sc = 1.0/(S*D)
    k(f"""
s_cmp_ge_u32 s2, 416
s_cbranch_scc1 p1_pf
s_sub_u32 s3, s2, 400
s_lshl_b32 s3, s3, 2
s_add_u32 s31, s3, s{sW}
s_cmp_ge_u32 s31, 61
s_cbranch_scc1 p1_end
s_lshr_b32 s32, s31, 2
s_and_b32 s33, s31, 3
s_mov_b32 s34, {fl(1/64)}
s_cmp_lt_u32 s31, 16
s_cbranch_scc1 p1_tabA
s_sub_u32 s3, s31, 16
s_mul_i32 s32, s3, 52
s_lshr_b32 s32, s32, 8
s_mul_i32 s4, s32, 5
s_sub_u32 s33, s3, s4
s_mov_b32 s34, {fl(1/144)}
p1_tabA:
s_lshl_b32 s32, s32, 4
s_lshl_b32 s33, s33, 4
v_add_u32 v4, s32, v3
v_lshl_add_u32 v5, v2, 2, s33
s_waitcnt lgkmcnt(0)
""")
    ws_srd(k, 8, O_TAB, N_TAB)
    for r in range(4):
        k(f"""
v_add_u32 v6, {r}, v5
v_mul_u32_u24 v7, v6, v4
v_cvt_f32_u32 v7, v7
v_mul_f32 v7, s34, v7
v_fract_f32 v7, v7
v_cos_f32 v8, v7
v_sin_f32 v9, v7
s_cmp_lt_u32 s31, 16
s_cbranch_scc1 p1_tabB{r}
v_mov_b32 v10, {fl(2*sc)}
v_mov_b32 v11, {fl(sc)}
v_cmp_eq_u32 vcc, 0, v6
v_cndmask_b32 v10, v10, v11, vcc
v_cmp_eq_u32 vcc, 72, v6
v_cndmask_b32 v10, v10, v11, vcc
v_cmp_gt_u32 vcc, 73, v6
v_cndmask_b32 v10, 0, v10, vcc
v_mul_f32 v8, v8, v10
v_mul_f32 v9, -v9, v10
p1_tabB{r}:
v_cvt_pk_bf16_f32 v{12+r}, v8, v9
""")
    k(f"v_lshlrev_b32 v4, 4, v0\ns_lshl_b32 s3, s31, 10\nbuffer_store_dwordx4 v[12:15], v4, s[8:11], s3 offen sc1\ns_endpgm\np1_pf:")
    k(f"""
s_cmp_ge_u32 s2, 432
s_cbranch_scc1 p1_end
s_getpc_b64 s[4:5]
p1_pc:
s_add_u32 s4, s4, p2_kernel-p1_pc
s_addc_u32 s5, s5, 0
s_lshl_b32 s3, s{sW}, 6
v_add_u32 v4, s3, v0
s_bfe_u32 s3, s2, 0x10003
s_lshl_b32 s3, s3, 15
v_lshl_add_u32 v5, v4, 7, s3
v_min_u32 v5, pf_code_end-p2_kernel-4, v5
global_load_dword v6, v5, s[4:5]
s_waitcnt lgkmcnt(0)
""")
    ws_srd(k, 8, O_FLG, N_ZERO)
    k(f"""
s_and_b32 s3, s2, 15
s_lshl_b32 s3, s3, 14
v_lshlrev_b32 v4, 4, v4
v_mov_b32 v8, 0
v_mov_b32 v9, 0
v_mov_b32 v10, 0
v_mov_b32 v11, 0
""")
    for i in range(4): k(f"buffer_store_dwordx4 v[8:11], v4, s[8:11], s3 offen sc1\ns_add_u32 s3, s3, 4096")
    k(f"""p1_end:""")
    return k

def build_p2(st=False):
    k = K("p2", 608, 64, vgpr=176)
    stamp(k, st, 0)
    k(f"""
s_load_dwordx2 s[6:7], s[0:1], 72
s_load_dwordx4 s[44:47], s[0:1], 8
s_cmp_ge_u32 s2, 608
s_cbranch_scc1 p2_end
s_lshr_b32 s3, s2, 3
s_mul_i32 s4, s3, 27
s_lshr_b32 s4, s4, 9
s_mul_i32 s5, s4, 19
s_sub_u32 s31, s3, s5
s_and_b32 s3, s2, 7
s_lshl_b32 s3, s3, 2
s_add_u32 s32, s3, s4
v_lshrrev_b32 v2, 4, v0
v_and_b32 v3, 15, v0
v_mul_u32_u24 v4, {4*ROWB}, v2
v_lshl_add_u32 v4, v3, 2, v4
v_lshlrev_b32 v5, 4, v0
s_mul_i32 s33, s32, {64*ROWB}
s_lshl_b32 s3, s31, 6
s_add_u32 s33, s33, s3
s_waitcnt lgkmcnt(0)
""")
    ws_srd(k, 8, O_U, N_U)
    B, B2, A, WH, XR, XI = 8, 24, 40, 104, 120, 136
    for T in range(4):
        if T: k(f"s_add_u32 s33, s33, {16*ROWB}")
        for r in range(4): k(f"buffer_load_dword v{B+4*T+r}, v4, s[8:11], s33 offen offset:{r*ROWB}")
    ws_srd(k, 12, O_TAB, N_TAB)
    for f in range(16):
        if f % 4 == 0: k(f"s_movk_i32 s3, {f*1024}")
        k(f"buffer_load_dwordx4 {vr(A+4*f, 4)}, v5, s[12:15], s3 offen offset:{(f % 4)*1024}")
    srd(k, 16, 44, N_WF); srd(k, 20, 46, N_WF)
    WI = 156
    k(f"""
s_lshl_b32 s3, s31, 2
v_lshrrev_b32 v152, 2, v3
v_add_u32 v152, s3, v152
v_and_b32 v153, 3, v3
v_mul_u32_u24 v154, 144, v153
v_add_u32 v154, v154, v152
v_sub_u32 v155, 576, v154
v_cmp_gt_u32 vcc, 2, v153
v_cndmask_b32 v155, v155, v154, vcc
v_lshlrev_b32 v155, 1, v155
v_cmp_lt_u32 vcc, 288, v154
v_mov_b32 v153, 0xffffffe0
v_mov_b32 v7, -1.0
v_cndmask_b32 v153, 32, v153, vcc
v_cndmask_b32 v7, 1.0, v7, vcc
v_lshl_add_u32 v1, v2, 7, s32
v_sub_u32 v6, 0, v1
v_cndmask_b32 v1, v1, v6, vcc
v_mov_b32 v6, {OOB}
v_cmp_lt_u32 vcc, 72, v152
v_cndmask_b32 v155, v155, v6, vcc
v_cmp_eq_u32 vcc, 0, v154
v_cndmask_b32 v155, v155, v6, vcc
s_movk_i32 s34, 578
""")
    for T in range(4):
        for r in range(4):
            i = 4*T+r
            k(f"""v_mad_i32_i24 v6, v153, {16*T+r}, v1
v_and_b32 v6, 2047, v6
v_mad_u32_u24 v6, v6, s34, v155
buffer_load_ushort v{WH+i}, v6, s[16:19], 0 offen
buffer_load_ushort v{WI+i}, v6, s[20:23], 0 offen""")
    k(f"""
v_mul_u32_u24 v6, {ROWB}, v3
v_lshl_add_u32 v6, v2, 4, v6
s_mul_i32 s35, s32, {64*ROWB}
s_lshl_b32 s3, s31, 6
s_add_u32 s35, s35, s3
s_brev_b32 s36, 1
s_mov_b32 s37, 0xffff0000
""")
    stamp(k, st, 1)
    for i in range(16): k(f"v_alignbit_b32 v{B2+i}, v{B+i}, v{B+i}, 16\nv_xor_b32 v{B2+i}, s36, v{B2+i}")
    stamp(k, st, 2)
    def fwd(Tp): return [f"{MF32} {vr(o+4*Tp, 4)}, {vr(A+16*Tp+4*T, 4)}, {vr(b+4*T, 4)}, {'0' if T == 0 else vr(o+4*Tp, 4)}" for T in range(4) for o, b in ((XR, B), (XI, B2))]
    D1, D2 = 152, B
    def filt(T):
        out = []
        for r in range(4):
            w = WH+4*T+r; xr, xi = XR+4*T+r, XI+4*T+r
            out += [f"v_lshlrev_b32 v153, 16, v{WI+4*T+r}", f"v_lshlrev_b32 v152, 16, v{w}", f"v_mul_f32 v153, v7, v153",
                    f"v_mul_f32 v154, v{xr}, v152", f"v_mul_f32 v155, v{xr}, v153",
                    f"v_fma_f32 v154, -v{xi}, v153, v154", f"v_fmac_f32 v155, v{xi}, v152",
                    f"v_cvt_pk_bf16_f32 v{w}, v154, -v155", f"v_cvt_pk_bf16_f32 v{xr}, v155, v154"]
        return out
    for x in fwd(0): k(x)
    for Tp in range(1, 4):
        for x in interleave(fwd(Tp), filt(Tp-1)): k(x)
    for x in filt(3): k(x)
    stamp(k, st, 3)
    VR, VI = B, B2
    def inv(Tp): return [f"{MF32} {vr(o+4*Tp, 4)}, {vr(d+4*T, 4)}, {vr(A+16*Tp+4*T, 4)}, {'0' if T == 0 else vr(o+4*Tp, 4)}" for T in range(4) for o, d in ((VR, WH), (VI, XR))]
    def outp(Tp):
        return [f"v_cvt_pk_bf16_f32 v{XI+4*Tp+r}, v{VR+4*Tp+r}, v{VI+4*Tp+r}" for r in range(4)] + \
               [f"buffer_store_dwordx4 {vr(XI+4*Tp, 4)}, v6, s[8:11], s35 offen sc1\ns_add_u32 s35, s35, {16*ROWB}"]
    for x in inv(0): k(x)
    for Tp in range(1, 4):
        m = inv(Tp)
        for x in m[:3] + interleave(m[3:], outp(Tp-1)): k(x)
    for x in outp(3): k(x)
    stamp(k, st, 4)
    stamp_out(k, st, 2, "0", 5)
    k("p2_end:")
    return k
```

```python
S, D, F = 2048, 576, 4608
MB = 1 << 20
ROWB = 1280
O_U   = 0
O_V   = 0
O_WH  = 8*MB
O_XF  = 12*MB
O_H   = 16*MB
O_STAMP = 30*MB
O_FLG = 20*MB
O_P   = 32*MB
N_U = 2048*ROWB
N_WH = 32*19*4096
N_XF = 16*18*8*1024
N_H = S*D*2
N_P = 16*2*8*9*8192
N_W = D*F*2
LOG2E = 1.4426950408889634
LN2 = 0.6931471805599453
O_TAB = 11*MB
N_TAB = 61*1024
N_WF = 2048*289*2
OOB = 0x40000000
F_X = 0
F_2 = 32768
F_1 = 131072
N_ZERO = 262144
O_S1 = 1*MB
N_FLG = 9*MB
```

```python
from asmlib import *
from layout import *
import struct
def fl(x): return "0x%08x" % struct.unpack("<I", struct.pack("<f", x))[0]
MF = "v_mfma_f32_16x16x32_bf16"
def ws_srd(k, d, off, nbytes, ws=6):
    k(f"s_add_u32 s{d}, s{ws}, {off}\ns_addc_u32 s{d+1}, s{ws+1}, 0\ns_mov_b32 s{d+2}, {nbytes}\ns_mov_b32 s{d+3}, 0x20000")
def srd_tail(k, d, nbytes): k(f"s_mov_b32 s{d+2}, {nbytes}\ns_mov_b32 s{d+3}, 0x20000")
S4 = lambda d: f"s[{d}:{d+3}]"

SLOT_A = [0, 45056, 90112]
RING_B = [0, 36864, 90112, 126976]
HH = 90112
CNT = 73728
PHASES = [4, 6, 8]

def build_pf(look=3, nd=2, spread=4, stamp=False, abl="", name="pf", OUTPOL="", WPOL="nt", DPOL="", TPOL="nt", dstage=9, pxor=128, safe=0, XPOL="sc1", TPOLD=""):
    k = K(name, 256, 512, lds=163840, vgpr=256, sgpr=102)
    sG, sU, sD, sX, sP, sF, sS, sH, sO, sV, sI, sT = 8, 12, 16, 20, 24, 28, 32, 36, 40, 44, 48, 52
    sW, sMT, sSL, sRG = 56, 57, 58, 59
    sA, sKW, sKX, sM0a, sM0x, sM0s, sKD, sM0d, sPO, sCG, sRD, sLN, sLoc, sS1 = range(80, 94)
    sF1 = 96; sB = 97; sXC = 98
    vL, vDX, vD0, vD1, vD2, vT0, vT1, vT2 = range(8)
    vXr = [8, 9, 10]; vWA = [11, 12, 13]; vWB = [14, 15, 16]
    vDD, vPO, vHW = 17, 18, 19
    vWD = [20, 21, 22, 23]
    vHR, vHW2, vZ, vQ = 24, 25, 26, 27
    def stb(i):
        if stamp and "bst" in abl: k(f"s_memrealtime s[{60+2*i}:{61+2*i}]")
    def st(i):
        if stamp and "bst" not in abl: k(f"s_memrealtime s[{60+2*i}:{61+2*i}]")
    def put(items):
        for x in items:
            t = x[0] if isinstance(x, tuple) else x
            if "nodma" in abl and " lds" in t and x[1] not in ("A0", "A1"): continue
            if "nop2" in abl and "buffer_store" in t and isinstance(x, tuple) and x[1].startswith("P"): continue
            if "nomfma" in abl and "v_mfma" in t: continue
            if isinstance(x, tuple): k(x[0], tag=x[1])
            else: k(x)
    def spin(lab, load, cond):
        bound = f"s_sub_u32 s100, s100, 1\ns_cbranch_scc1 {lab}_ok\n" if safe else ""
        k(f"{cond}\ns_cbranch_vccz {lab}_ok\n{'s_movk_i32 s100, 20000' if safe else ''}\n{lab}_spin:\n{'s_add_u32 s99, s99, 1' if 'cnt' in abl else ''}\n{bound}{load}\ns_waitcnt vmcnt(0)\n{cond}\ns_cbranch_vccnz {lab}_spin\n{lab}_ok:")
        k.saved.pop(lab + "_spin", None)
    st(0)
    k(f"""
s_load_dwordx2 s[6:7], s[0:1], 72
s_load_dwordx2 s[{sG}:{sG+1}], s[0:1], 32
s_load_dwordx2 s[{sU}:{sU+1}], s[0:1], 40
s_load_dwordx2 s[{sI}:{sI+1}], s[0:1], 0
s_load_dwordx2 s[{sD}:{sD+1}], s[0:1], 48
s_load_dwordx2 s[{sO}:{sO+1}], s[0:1], 56
s_cmp_ge_u32 s2, 256
s_cbranch_scc1 {name}_end
v_lshrrev_b32 v{vT0}, 6, v0
v_and_b32 v{vL}, 63, v0
v_readfirstlane_b32 s{sW}, v{vT0}
s_lshr_b32 s3, s2, 3
s_and_b32 s{sMT}, s3, 15
s_lshr_b32 s{sB}, s3, 4
s_and_b32 s{sXC}, s2, 7
s_lshl_b32 s4, s{sXC}, 1
s_add_u32 s{sSL}, s4, s{sB}
v_lshlrev_b32 v{vDX}, 4, v{vL}
v_mov_b32 v{vZ}, 0
""")
    o = 28
    R = lambda n: n + o
    sS2, sNT, sVB, sXO, sSO = 99, sB, 100, 101, sRD
    L, MB_, AC, TW, G, XX = R(16), R(48), R(64), R(96), R(120), R(160)
    EZ = 90112; ES = EZ + 20480
    g_, n_, vVA, vHS, vRow, vXo, vEW, vSW, vSR = R(2), R(3), R(4), R(5), R(6), R(7), R(9), R(14), R(15)
    t0, t1, t2, t3 = R(10), R(11), R(12), R(13)
    k(f"""
s_lshr_b32 s3, s{sXC}, 2
s_and_b32 s4, s{sMT}, 1
s_cmp_lg_u32 s3, s4
s_cbranch_scc1 {name}_idle
s_and_b32 s3, s{sXC}, 3
s_lshl_b32 s{sS2}, s{sMT}, 2
s_add_u32 s{sS2}, s{sS2}, s3
v_lshrrev_b32 v{g_}, 4, v{vL}
v_and_b32 v{n_}, 15, v{vL}
s_lshl_b32 s3, s{sW}, 4
v_add_u32 v{vVA}, s3, v{n_}
v_lshlrev_b32 v{vVA}, 4, v{vVA}
v_mul_u32_u24 v{t0}, {4*64*ROWB}, v{g_}
v_add_u32 v{vVA}, v{vVA}, v{t0}
s_mul_i32 s{sVB}, s{sS2}, {ROWB}
s_lshl_b32 s3, s{sNT}, 4
v_add_u32 v{vRow}, s3, v{n_}
v_lshl_add_u32 v{vRow}, v{vRow}, 6, s{sS2}
v_mul_u32_u24 v{vXo}, 1152, v{vRow}
v_lshl_add_u32 v{vXo}, v{g_}, 5, v{vXo}
s_lshl_b32 s{sXO}, s{sW}, 7
s_waitcnt lgkmcnt(0)
""")
    ws_srd(k, sV, O_V, N_U)
    k(f"s_cmp_ge_u32 s{sW}, 5\ns_cbranch_scc1 {name}_nov")
    for kk in range(2):
        for t in range(4): k(f"s_add_u32 s3, s{sVB}, {(16*kk+t)*64*ROWB}\nbuffer_load_dwordx4 {vr(L+16*kk+4*t, 4)}, v{vVA}, {S4(sV)}, s3 offen", tag="V")
    k(f"{name}_nov:")
    srd_tail(k, sI, N_H); ws_srd(k, sT, O_TAB, N_TAB)
    k(f"buffer_load_dwordx4 {vr(XX, 4)}, v{vXo}, {S4(sI)}, s{sXO} offen\nbuffer_load_dwordx4 {vr(XX+4, 4)}, v{vXo}, {S4(sI)}, s{sXO} offen offset:16")
    k(f"s_mul_i32 s3, s{sW}, 5120\ns_add_u32 s3, s3, 16384\ns_add_u32 s4, s3, 4096")
    for f in range(5): k(f"buffer_load_dwordx4 {vr(G+4*f, 4)}, v{vDX}, {S4(sT)}, s{3+f//4} offen offset:{(f % 4)*1024}")
    k(f"s_cmp_lg_u32 s{sW}, 5\ns_cbranch_scc1 {name}_no2")
    k(f"buffer_load_dwordx4 {vr(XX+8, 4)}, v{vXo}, {S4(sI)}, 0 offen offset:1024\nbuffer_load_dwordx4 {vr(XX+12, 4)}, v{vXo}, {S4(sI)}, 0 offen offset:1040")
    k(f"s_mov_b32 s3, {(16+40)*1024}\ns_mov_b32 s4, {(16+44)*1024}")
    for f in range(5): k(f"buffer_load_dwordx4 {vr(G+20+4*f, 4)}, v{vDX}, {S4(sT)}, s{3+f//4} offen offset:{(f % 4)*1024}")
    k(f"{name}_no2:\ns_branch {name}_common\n{name}_idle:\ns_mov_b32 s{sS2}, -1\ns_waitcnt lgkmcnt(0)")
    ws_srd(k, sV, O_V, N_U); srd_tail(k, sI, N_H); ws_srd(k, sT, O_TAB, N_TAB)
    k(f"{name}_common:")

    def pattern(vd):
        k(f"""
s_lshl_b32 s4, s3, 6
v_add_u32 v{vT0}, s4, v{vL}
v_mul_u32_u24 v{vT1}, 1821, v{vT0}
v_lshrrev_b32 v{vT1}, 16, v{vT1}
v_mul_u32_u24 v{vT2}, 36, v{vT1}
v_sub_u32 v{vT0}, v{vT0}, v{vT2}
v_lshrrev_b32 v{vT2}, 2, v{vT1}
v_and_b32 v{vT2}, 2, v{vT2}
v_xor_b32 v{vT0}, v{vT0}, v{vT2}
v_lshlrev_b32 v{vT0}, 4, v{vT0}
v_and_b32 v{vT2}, 24, v{vT1}
v_add_u32 v{vT1}, v{vT1}, v{vT2}
v_mul_u32_u24 v{vT1}, 9216, v{vT1}
v_add_u32 v{vd}, v{vT0}, v{vT1}
""")
    k(f"s_and_b32 s{sRG}, s{sW}, 1\ns_bfe_u32 s{sA}, s{sW}, 0x10001\ns_and_b32 s{sCG}, s{sW}, 3")
    k(f"s_lshl_b32 s3, s{sW}, 1"); pattern(vD0)
    k(f"s_add_u32 s3, s3, 1"); pattern(vD1)
    k(f"s_add_u32 s3, s{sRG}, 16"); pattern(vD2)
    k(f"""
s_mul_i32 s{sKW}, s{sSL}, 576
s_lshl_b32 s3, s{sMT}, 3
s_add_u32 s3, s3, s{sW}
s_mul_i32 s{sKX}, s3, 18432
s_lshl_b32 s{sM0x}, s{sW}, 10
s_lshl_b32 s{sM0a}, s{sW}, 11
s_add_u32 s{sM0a}, s{sM0a}, 8192
s_mul_i32 s3, s{sA}, 18432
s_lshl_b32 s4, s{sRG}, 10
s_add_u32 s3, s3, s4
s_add_u32 s{sM0s}, s3, {8192+16*1024}
s_cmp_eq_u32 s{sA}, 0
s_cselect_b32 s{sS}, s{sG}, s{sU}
s_cselect_b32 s{sS+1}, s{sG+1}, s{sU+1}
""")
    for d in (sG, sU, sD, sS): srd_tail(k, d, N_W)
    srd_tail(k, sO, N_H)
    ws_srd(k, sX, O_XF, N_XF); ws_srd(k, sP, O_P, N_P); ws_srd(k, sH, O_H, N_H); ws_srd(k, sF, O_FLG, N_FLG)
    def dmaX(s):
        return [(f"s_add_u32 m0, s{sM0x}, {SLOT_A[s % 3]}\ns_add_u32 s94, s{sKX}, {s*1024}\nbuffer_load_dwordx4 v{vDX}, {S4(sX)}, s94 offen {XPOL} lds", f"A{s}")]
    def dmaW(s, six):
        o = SLOT_A[s % 3]
        g = [f"s_add_u32 m0, s{sM0a}, {o}\ns_add_u32 s95, s{sKW}, {((s >> 1)*64 + (s & 1)*8)*9216}\nbuffer_load_dwordx4 v{vD0}, {S4(sG)}, s95 offen {WPOL} lds",
             f"s_add_u32 m0, s{sM0a}, {o+1024}\nbuffer_load_dwordx4 v{vD1}, {S4(sG)}, s95 offen {WPOL} lds",
             f"s_add_u32 m0, s{sM0a}, {o+18432}\nbuffer_load_dwordx4 v{vD0}, {S4(sU)}, s95 offen {WPOL} lds",
             f"s_add_u32 m0, s{sM0a}, {o+18432+1024}\nbuffer_load_dwordx4 v{vD1}, {S4(sU)}, s95 offen {WPOL} lds"]
        if six: g.append(f"s_add_u32 m0, s{sM0s}, {o}\nbuffer_load_dwordx4 v{vD2}, {S4(sS)}, s95 offen {WPOL} lds")
        return [(x, f"A{s}") for x in g]
    def dmaB(u, five):
        o = RING_B[u % 4]
        return [(f"s_add_u32 m0, s{sM0d}, {o+i*1024}\ns_add_u32 s94, s{sKD}, {i*8*1152+u*128}\nbuffer_load_dwordx4 v{vDD}, {S4(sD)}, s94 offen {DPOL} lds", f"B{u}") for i in range(4 if five else 5)]
    for s in (0, 1):
        put(dmaW(s, False))
        k(f"s_cmp_lt_u32 s{sW}, 4\ns_cbranch_scc1 {name}_w{s}")
        put(dmaW(s, True)[4:])
        k(f"{name}_w{s}:")
    k(f"""
s_getreg_b32 s{sLoc}, hwreg(HW_REG_XCC_ID, 0, 4)
s_add_u32 s{sLoc}, s{sLoc}, 1
v_mov_b32 v{vQ}, s{sLoc}
s_lshl_b32 s3, s2, 9
s_lshl_b32 s4, s{sCG}, 7
s_add_u32 s3, s3, s4
s_add_u32 s{sF1}, s3, {F_1}
s_cmp_lt_u32 s{sW}, 4
s_cbranch_scc1 {name}_noxid
buffer_store_dword v{vQ}, v{vZ}, {S4(sF)}, s{sF1} offen offset:4 sc1
{name}_noxid:

""")
    def touch(mats, lab, dst):
        k(f"""
s_lshr_b32 s3, s2, 3
s_lshl_b32 s3, s3, 3
s_add_u32 s3, s3, s{sW}
s_cmp_ge_u32 s3, {81*len(mats)}
s_cbranch_scc1 {lab}_x
s_cmp_ge_u32 s3, 81
s_cselect_b32 s4, 81, 0
s_sub_u32 s4, s3, s4
v_lshl_add_u32 v{vT0}, s4, 6, v{vL}
v_mul_u32_u24 v{vT1}, 7282, v{vT0}
v_lshrrev_b32 v{vT1}, 16, v{vT1}
v_mul_u32_u24 v{vT2}, 9, v{vT1}
v_sub_u32 v{vT2}, v{vT0}, v{vT2}
v_mul_u32_u24 v{vT1}, {9216 if mats[0] != sD else 1152}, v{vT1}
v_lshl_add_u32 v{vT1}, v{vT2}, 7, v{vT1}
s_mul_i32 s4, s{sXC}, {1152 if mats[0] != sD else 576*1152}
""")
        if len(mats) == 2: k(f"s_cmp_ge_u32 s3, 81\ns_cbranch_scc1 {lab}_u")
        k(f"buffer_load_dword v{dst}, v{vT1}, {S4(mats[0])}, s4 offen {TPOL if len(mats) == 2 else TPOLD}")
        if len(mats) == 2: k(f"s_branch {lab}_x\n{lab}_u:\nbuffer_load_dword v{dst}, v{vT1}, {S4(mats[1])}, s4 offen {TPOL}")
        k(f"{lab}_x:")
    if "notouch" not in abl: touch([sG, sU], f"{name}_tg", 28)
    st(1)
    k(f"s_cmp_eq_u32 s{sS2}, -1\ns_cbranch_scc1 {name}_p3done")
    k(f"s_cmp_ge_u32 s{sW}, 5\ns_cbranch_scc1 {name}_noA")
    k(f"""
v_cvt_f32_u32 v{t0}, v{vRow}
v_mul_f32 v{t0}, {fl(1/2048)}, v{t0}
v_cvt_f32_u32 v{t1}, v{g_}
v_mul_f32 v{t1}, 4.0, v{t1}
v_mul_f32 v{vEW}, v{t0}, v{t1}
""")
    for kk in range(2):
        for t in range(4):
            k(f"""v_fmamk_f32 v{t2}, v{t0}, {fl(float(16*kk+t))}, v{vEW}
v_cos_f32 v{t3}, v{t2}
v_sin_f32 v{t2}, v{t2}
v_cvt_pk_bf16_f32 v{MB_+4*kk+t}, v{t3}, -v{t2}
v_cvt_pk_bf16_f32 v{MB_+8+4*kk+t}, v{t2}, v{t3}""")
    tw = [f"s_lshl_b32 s3, s{sW}, 4", f"v_cvt_f32_u32 v{t0}, s3", f"v_add_f32 v{t1}, v{t1}, v{t0}"]
    for r in range(4):
        if r: tw.append(f"v_add_f32 v{t1}, 1.0, v{t1}")
        for q in range(1, 4):
            tw += [f"v_mul_f32 v{t2}, {fl(q/576)}, v{t1}", f"v_cos_f32 v{TW+6*r+2*q-2}, v{t2}", f"v_sin_f32 v{TW+6*r+2*q-1}, v{t2}"]
    put(tw[:22])
    st(2)
    for kk in range(2):
        for a in range(4):
            for b in range(a+1, 4): k(f"v_swap_b32 v{L+16*kk+4*a+b}, v{L+16*kk+4*b+a}")
    mf = []
    for m in (0, 2, 1, 3):
        for kk in range(2):
            for c in range(2):
                a = AC+8*m+4*c
                mf.append(f"{MF} {vr(a, 4)}, {vr(L+16*kk+4*m, 4)}, {vr(MB_+8*c+4*kk, 4)}, {'0' if kk == 0 else vr(a, 4)}")
    put(interleave(mf, tw[22:]))
    Z = L; T = L+16
    for r in range(4):
        Rr = lambda m: AC+8*m+r
        I = lambda m: AC+8*m+4+r
        a, b, c, d, u = T, T+2, T+4, T+6, T+8
        k(f"""
v_add_f32 v{a}, v{Rr(0)}, v{Rr(2)}
v_add_f32 v{a+1}, v{I(0)}, v{I(2)}
v_sub_f32 v{b}, v{Rr(0)}, v{Rr(2)}
v_sub_f32 v{b+1}, v{I(0)}, v{I(2)}
v_add_f32 v{c}, v{Rr(1)}, v{Rr(3)}
v_add_f32 v{c+1}, v{I(1)}, v{I(3)}
v_sub_f32 v{d}, v{Rr(1)}, v{Rr(3)}
v_sub_f32 v{d+1}, v{I(1)}, v{I(3)}
v_add_f32 v{u}, v{a}, v{c}
v_add_f32 v{u+1}, v{a+1}, v{c+1}
v_sub_f32 v{u+2}, v{b}, v{d+1}
v_add_f32 v{u+3}, v{b+1}, v{d}
v_sub_f32 v{u+4}, v{a}, v{c}
v_sub_f32 v{u+5}, v{a+1}, v{c+1}
v_add_f32 v{u+6}, v{b}, v{d+1}
v_sub_f32 v{u+7}, v{b+1}, v{d}
v_cvt_pk_bf16_f32 v{Z+r}, v{u}, v{u+1}
""")
        for q in range(1, 4):
            cc = TW+6*r+2*q-2
            k(f"v_mul_f32 v{T+2*q}, v{cc}, v{u+2*q}\nv_mul_f32 v{T+2*q+1}, v{cc}, v{u+2*q+1}")
        for q in range(1, 4):
            ss = TW+6*r+2*q-1
            k(f"v_fma_f32 v{T+2*q}, -v{ss}, v{u+2*q+1}, v{T+2*q}\nv_fmac_f32 v{T+2*q+1}, v{ss}, v{u+2*q}")
        for q in range(1, 4): k(f"v_cvt_pk_bf16_f32 v{Z+4*q+r}, v{T+2*q}, v{T+2*q+1}")
    k(f"s_lshl_b32 s3, s{sW}, 10\ns_add_u32 s3, s3, {EZ}\nv_add_u32 v{vEW}, s3, v{vDX}")
    for q in range(4): k(f"ds_write_b128 v{vEW}, {vr(Z+4*q, 4)} offset:{q*5120}")
    k(f"{name}_noA:")
    k(f"""
v_lshlrev_b32 v{vSR}, 6, v{n_}
v_add_u32 v{vSR}, {ES}, v{vSR}
v_lshrrev_b32 v{vSW}, 1, v{g_}
v_lshl_add_u32 v{vSW}, v{vSW}, 2, v{vSR}
s_lshl_b32 s3, s{sW}, 3
v_add_u32 v{vSW}, s3, v{vSW}
v_lshrrev_b32 v{vHS}, 1, v{n_}
v_lshlrev_b32 v{vHS}, 7, v{vHS}
v_and_b32 v{t0}, 1, v{n_}
v_lshl_add_u32 v{vHS}, v{t0}, 6, v{vHS}
v_lshl_add_u32 v{vHS}, v{g_}, 4, v{vHS}
v_add_u32 v{vEW}, {EZ}, v{vDX}
s_lshl_b32 s3, s{sS2}, 1
s_add_u32 s3, s3, s{sNT}
s_mul_i32 s4, s3, 18432
s_lshl_b32 s5, s{sW}, 11
s_add_u32 s{sSO}, s4, s5
s_add_u32 s{sVB}, s4, 16384
s_and_b32 s3, s3, 7
s_lshl_b32 s3, s3, 2
s_lshl_b32 s4, s{sMT}, 11
s_add_u32 s{sXO}, s3, s4
s_mov_b32 s5, 0xffff0000
""")
    A2 = AC; ZR = L
    def final(nmt):
        so = [sSO, sVB]
        for mt in range(nmt):
            for r in range(4):
                for q in range(4):
                    src = XX+8*mt+2*r+(q >> 1); dst = A2+16*mt+4*q+r
                    k(f"v_and_b32 v{dst}, s5, v{src}" if q & 1 else f"v_lshlrev_b32 v{dst}, 16, v{src}")
        k.wait_lg(); k("s_barrier")
        st(3)
        idx = [(jt, q) for jt in range(5) for q in range(4)]
        rd = lambda i: f"ds_read_b128 {vr(ZR+4*(i % 8), 4)}, v{vEW} offset:{idx[i][1]*5120+idx[i][0]*1024}"
        for i in range(7): k(rd(i))
        for i, (jt, q) in enumerate(idx):
            for mt in range(nmt):
                a = A2+16*mt+4*q
                k(f"{MF} {vr(a, 4)}, {vr(G+20*mt+4*jt, 4)}, {vr(ZR+4*(i % 8), 4)}, {vr(a, 4)}")
            if i+7 < 20: k(rd(i+7))
        first = True
        for mt in range(nmt):
            for q in range(4):
                for p in range(2):
                    a = A2+16*mt+4*q+2*p
                    if first: k(f"v_mov_b64 {vr(t0, 2)}, {vr(a, 2)}\nv_pk_mul_f32 {vr(t2, 2)}, {vr(a, 2)}, {vr(a, 2)}"); first = False
                    else: k(f"v_pk_add_f32 {vr(t0, 2)}, {vr(t0, 2)}, {vr(a, 2)}\nv_pk_fma_f32 {vr(t2, 2)}, {vr(a, 2)}, {vr(a, 2)}, {vr(t2, 2)}")
        k(f"""
v_add_f32 v{t0}, v{t0}, v{t1}
v_add_f32 v{t2}, v{t2}, v{t3}
v_permlane32_swap_b32 v{t0}, v{t2}
v_add_f32 v{t0}, v{t0}, v{t2}
v_mov_b32 v{t1}, v{t0}
v_permlane16_swap_b32 v{t0}, v{t1}
v_add_f32 v{t0}, v{t0}, v{t1}
ds_write_b32 v{vSW}, v{t0}
""")
        def pack(dst, mt, h):
            for p in range(4):
                r, q = 2*h+(p >> 1), 2*(p & 1)
                k(f"v_cvt_pk_bf16_f32 v{dst+p}, v{A2+16*mt+4*q+r}, v{A2+16*mt+4*(q+1)+r}")
        for mt in range(nmt):
            for h in range(2): pack(XX+8*mt+4*h, mt, h)
        k.wait_lg(); k("s_barrier")
        for w in range(4): k(f"ds_read_b128 {vr(L+4*w, 4)}, v{vSR} offset:{16*w}")
        for mt in range(nmt):
            for h in range(2): k(f"buffer_store_dwordx4 {vr(XX+8*mt+4*h, 4)}, v{vHS}, {S4(sH)}, s{so[mt]} offen offset:{h*1024} sc1")
        for a, b in ((0, 2), (4, 6), (8, 10), (12, 14), (0, 4), (8, 12), (0, 8)):
            k(f"v_pk_add_f32 {vr(L+a, 2)}, {vr(L+a, 2)}, {vr(L+b, 2)}")
        k(f"""
v_mul_f32 v{t0}, {fl(1/576)}, v{L}
v_mul_f32 v{t1}, v{t0}, v{t0}
v_fmamk_f32 v{t2}, v{L+1}, {fl(1/576)}, v{t1}
v_fma_f32 v{t2}, -2.0, v{t1}, v{t2}
v_max_f32 v{t2}, 0, v{t2}
v_add_f32 v{t2}, {fl(1e-5)}, v{t2}
v_rsq_f32 v{t2}, v{t2}
v_mul_f32 v{t2}, {fl(LOG2E)}, v{t2}
v_mul_f32 v{t0}, -v{t0}, v{t2}
v_mov_b32 v{t3}, v{t2}
v_mov_b32 v{t1}, v{t0}
""")
        for mt in range(nmt):
            for q in range(4):
                for p in range(2):
                    a = A2+16*mt+4*q+2*p
                    k(f"v_pk_fma_f32 {vr(a, 2)}, {vr(a, 2)}, {vr(t2, 2)}, {vr(t0, 2)}")
            for h in range(2):
                pack(L+8*mt+4*h, mt, h)
                k(f"buffer_store_dwordx4 {vr(L+8*mt+4*h, 4)}, v{vDX}, {S4(sX)}, s{so[mt]} offen offset:{h*1024} sc1")
    k(f"s_cmp_eq_u32 s{sW}, 5\ns_cbranch_scc1 {name}_fin2")
    final(1)
    k(f"s_branch {name}_fin\n{name}_fin2:")
    final(2)
    k(f"""{name}_fin:
v_lshl_add_u32 v{t0}, v{vL}, 7, s{sXO}
v_mov_b32 v{t1}, {OOB}
v_cmp_gt_u32 vcc, 16, v{vL}
v_cndmask_b32 v{t0}, v{t1}, v{t0}, vcc
v_mov_b32 v{t1}, 1
s_waitcnt vmcnt(0)
s_barrier
s_cmp_lg_u32 s{sW}, 0
s_cbranch_scc1 {name}_p3done
buffer_store_dword v{t1}, v{t0}, {S4(sF)}, 0 offen sc1
{name}_p3done:
""")
    st(4)

    def path(five):
        nt5 = 5 if five else 4
        nf = 2*nt5
        P = "a" if five else "b"
        k(f"""
s_lshl_b32 s3, s{sMT}, 4
s_add_u32 s3, s3, s{sSL}
s_lshl_b32 s3, s3, 7
s_lshl_b32 s4, s{sW}, 2
s_add_u32 s{sLN}, s3, s4
buffer_load_dword v{vQ}, v{vZ}, {S4(sF)}, s{sLN} offen sc1
v_lshrrev_b32 v{vT0}, 4, v{vL}
v_bfe_u32 v{vT1}, v{vL}, 2, 2
v_lshl_add_u32 v{vT2}, v{vT0}, 3, v{vT1}
v_mul_u32_u24 v{vT2}, 576, v{vT2}
v_and_b32 v{vWB[0]}, 3, v{vL}
v_lshl_add_u32 v{vT2}, v{vWB[0]}, 3, v{vT2}
s_mul_i32 s3, s{sA}, 9
s_add_u32 s3, s3, {0 if five else 5}
s_lshl_b32 s4, s3, 5
s_add_u32 s4, s4, 8192
v_add_u32 v{vT2}, s4, v{vT2}
s_and_b32 s3, s3, 1
s_cmp_eq_u32 s3, 0
s_cselect_b32 s3, 32, -32
v_and_b32 v{vWB[0]}, 1, v{vT0}
v_mul_i32_i24 v{vWB[0]}, s3, v{vWB[0]}
v_add_u32 v{vWA[0]}, v{vT2}, v{vWB[0]}
v_sub_u32 v{vWB[0]}, v{vT2}, v{vWB[0]}
s_lshl_b32 s3, s{sRG}, 12
v_add_u32 v{vXr[0]}, s3, v{vDX}
""")
        for i in (1, 2):
            k(f"v_add_u32 v{vXr[i]}, {SLOT_A[i]}, v{vXr[0]}\nv_add_u32 v{vWA[i]}, {SLOT_A[i]}, v{vWA[0]}\nv_add_u32 v{vWB[i]}, {SLOT_A[i]}, v{vWB[0]}")
        k(f"""
v_lshrrev_b32 v{vDD}, 3, v{vL}
v_mul_u32_u24 v{vDD}, 1152, v{vDD}
v_bfe_u32 v{vT2}, v{vL}, 1, 2
v_xor_b32 v{vT2}, v{vT2}, v{vT0}
v_lshl_add_u32 v{vDD}, v{vT2}, 5, v{vDD}
v_and_b32 v{vT2}, 1, v{vL}
v_lshl_add_u32 v{vDD}, v{vT2}, 4, v{vDD}
s_mul_i32 s3, s{sW}, {4 if five else 5}
s_sub_u32 s3, s3, {0 if five else 4}
s_lshl_b32 s{sM0d}, s3, 10
s_mul_i32 s3, s3, {8*1152}
s_mul_i32 s{sKD}, s{sSL}, {288*1152}
s_add_u32 s{sKD}, s{sKD}, s3
v_lshl_add_u32 v{vWD[0]}, v{vT0}, 2, v{vT1}
v_bfe_u32 v{vT2}, v{vWD[0]}, 1, 2
v_xor_b32 v{vT2}, s{sCG}, v{vT2}
v_lshlrev_b32 v{vT2}, 5, v{vT2}
v_lshl_add_u32 v{vWD[0]}, v{vWD[0]}, 7, v{vT2}
v_and_b32 v{vT2}, 3, v{vL}
v_lshl_add_u32 v{vWD[0]}, v{vT2}, 3, v{vWD[0]}
v_add_u32 v{vWD[1]}, {RING_B[1]}, v{vWD[0]}
v_add_u32 v{vWD[2]}, {RING_B[2]}, v{vWD[0]}
v_add_u32 v{vWD[3]}, {RING_B[3]}, v{vWD[0]}
s_xor_b32 s3, s{sB}, {0 if five else 1}
s_mul_i32 s3, s3, {4*9*1024}
s_add_u32 s3, s3, {HH}
v_add_u32 v{vHR}, s3, v{vDX}
s_mul_i32 s3, s{sRG}, {4*9*1024}
s_add_u32 s3, s3, {HH}
s_mul_i32 s4, s{sA}, 9
s_add_u32 s4, s4, {0 if five else 5}
s_lshr_b32 s5, s4, 1
s_lshl_b32 s5, s5, 10
s_add_u32 s3, s3, s5
s_and_b32 s4, s4, 1
s_lshl_b32 s5, s4, 3
s_add_u32 s5, s5, s3
v_add_u32 v{vHW}, s5, v{vDX}
s_mul_i32 s5, s4, 1024
s_add_u32 s5, s5, s3
s_xor_b32 s4, s4, 1
s_lshl_b32 s4, s4, 3
s_add_u32 s5, s5, s4
v_add_u32 v{vHW2}, s5, v{vDX}
v_bfe_u32 v{vT2}, v{vL}, 1, 3
v_lshlrev_b32 v{vPO}, 7, v{vT2}
v_and_b32 v{vT2}, 1, v{vL}
v_lshl_add_u32 v{vPO}, v{vT2}, 6, v{vPO}
v_lshl_add_u32 v{vPO}, v{vT0}, 4, v{vPO}
s_lshl_b32 s3, s{sMT}, 1
s_add_u32 s3, s3, s{sB}
s_mul_i32 s{sRD}, s3, {8*9*8192}
s_mul_i32 s3, s{sXC}, {9*8192}
s_add_u32 s{sPO}, s{sRD}, s3
s_lshl_b32 s4, s{sCG}, 11
s_add_u32 s{sPO}, s{sPO}, s4
s_xor_b32 s3, s2, {pxor if five else 0}
s_lshl_b32 s3, s3, 15
s_add_u32 s3, s3, s4
s_add_u32 s{sS1}, s3, {O_S1}
s_xor_b32 s101, s{sF1}, {pxor << 9}
""")
        sF1p = 101
        spin(f"{name}_{P}x", f"buffer_load_dword v{vQ}, v{vZ}, {S4(sF)}, s{sLN} offen sc1", f"v_cmp_eq_u32 vcc, 0, v{vQ}")
        put(dmaX(0)); put(dmaX(1))
        st(5)
        ACC = 256-nf*16; XB = [64, 80]; WR = 32
        def acc(f, nt): return ACC + f*16 + nt*4
        def wreg(s, f): return WR + 4*((s*nf+f) % 8)
        def wread(s, f):
            i, u = f >> 1, f & 1
            va = (vWA if i % 2 == 0 else vWB)[s % 3]; d = wreg(s, f)
            return [f"ds_read_b64_tr_b16 v[{d+2*h}:{d+2*h+1}], v{va} offset:{h*4*576 + i*32 + u*18432}" for h in range(2)]
        def mfa(s, f):
            w = wreg(s, f)
            return [f"{MF} {vr(acc(f, nt), 4)}, {vr(w, 4)}, {vr(XB[s % 2]+4*nt, 4)}, {'0' if s == 0 else vr(acc(f, nt), 4)}" for nt in range(4)]
        vRD, vHO, vOO, vFL, vFS, SEL, vFV = 2, 3, 4, 8, 9, 12, 5
        late = f"""v_mov_b32 v{vFS}, {OOB}
s_lshl_b32 s4, s{sMT}, 11
s_lshl_b32 s5, s{sB}, 7
s_add_u32 s4, s4, s5
s_add_u32 s4, s4, {F_2}""".split("\n")
        if five:
            late += f"""s_lshl_b32 s5, s{sXC}, 2
s_add_u32 s5, s5, s4
v_lshl_add_u32 v5, v{vL}, 8, s5
v_cmp_gt_u32 vcc, 8, v{vL}
v_cndmask_b32 v{vFS}, v{vFS}, v5, vcc
v_mov_b32 v{vFL}, {CNT}""".split("\n")
        else:
            late += f"""s_lshl_b32 s5, s{sXC}, 8
s_add_u32 s5, s5, s4
v_and_b32 v5, 7, v{vL}
v_lshl_add_u32 v{vFL}, v5, 2, s5
v_lshrrev_b32 v5, 4, v{vL}
v_and_b32 v6, 3, v{vL}
v_bfe_u32 v7, v{vL}, 3, 1
v_mul_u32_u24 v{vRD}, {9*8192}, v5
v_lshl_add_u32 v{vRD}, v7, 11, v{vRD}
v_and_b32 v{vHO}, 7, v{vL}
v_lshl_add_u32 v{vRD}, v{vHO}, 4, v{vRD}
s_lshl_b32 s4, s{sRG}, 1
v_add_u32 v7, s4, v7
s_lshl_b32 s4, s{sA}, 10
s_add_u32 s{sRD}, s{sRD}, s4
s_lshl_b32 s4, s{sRG}, 12
s_add_u32 s{sRD}, s{sRD}, s4
s_lshl_b32 s5, s{sXC}, 7
s_add_u32 s{sRD}, s{sRD}, s5
s_lshl_b32 s{sLN}, s{sMT}, 2
s_lshl_b32 s3, s{sB}, 1
s_add_u32 s{sLN}, s{sLN}, s3
s_add_u32 s{sLN}, s{sLN}, s{sA}
s_lshl_b32 s3, s{sLN}, 1
v_add_u32 v{vHO}, s3, v5
v_mul_u32_u24 v{vHO}, 18432, v{vHO}
v_lshrrev_b32 v11, 1, v6
v_lshl_add_u32 v{vHO}, v11, 10, v{vHO}
v_lshl_add_u32 v{vHO}, v7, 4, v{vHO}
v_and_b32 v11, 1, v6
v_lshl_add_u32 v{vHO}, v11, 3, v{vHO}
v_add_u32 v{vHO}, s5, v{vHO}
v_bfe_u32 v11, v{vL}, 2, 1
v_lshl_add_u32 v{vHO}, v11, 6, v{vHO}
s_lshl_b32 s4, s{sXC}, 1
v_lshl_add_u32 v{vOO}, v5, 4, s4
v_add_u32 v{vOO}, v{vOO}, v11
v_lshl_add_u32 v{vOO}, v{vOO}, 6, s{sLN}
v_mul_u32_u24 v{vOO}, 1152, v{vOO}
v_lshl_add_u32 v{vOO}, v7, 5, v{vOO}
v_lshl_add_u32 v{vOO}, v6, 3, v{vOO}
v_cmp_gt_u32 vcc, 32, v{vL}
v_cndmask_b32 v{vHO}, v{vFS}, v{vHO}, vcc
v_cndmask_b32 v{vOO}, v{vFS}, v{vOO}, vcc
s_mov_b32 s{sLN}, {LN2!r}""".split("\n")
        SK = 72
        sel = f"""v_and_b32 v5, 1, v{vL}
v_lshlrev_b32 v5, 4, v5
s_movk_i32 s3, 0x3f80
v_lshlrev_b32 v5, v5, s3
v_bfe_u32 v6, v{vL}, 1, 3""".split("\n")
        if five:
            sel += [f"v_lshrrev_b32 v7, 3, v{vL}", f"v_and_b32 v7, 6, v7", f"v_sub_u32 v6, v6, v7"]
            for i in range(2): sel += [f"v_cmp_eq_u32 vcc, {i}, v6", f"v_cndmask_b32 v{SK+2+i}, 0, v5, vcc"]
            sel += [f"v_mov_b32 v{SK+i}, 0" for i in (0, 1, 4, 5)]
            sel += [f"ds_write_b64 v{vFL}, v[{SK}:{SK+1}]", f"ds_write_b64 v{vFL}, v[{SK}:{SK+1}] offset:8"]
        else:
            for i in range(4): sel += [f"v_cmp_eq_u32 vcc, {i}, v6", f"v_cndmask_b32 v{SEL+i}, 0, v5, vcc"]
        def split_m0(d):
            out = []
            for t, tag in d:
                ls = t.split("\n")
                out += ["\n".join(ls[:-1]), (ls[-1], tag)]
            return out
        def spread_in(seq, dma, every):
            items = split_m0(dma); out = []; n = 0; j = 0
            for x in seq:
                out.append(x)
                if isinstance(x, str) and x.startswith("v_mfma"):
                    n += 1
                    if j < len(items) and (j % 2 == 1 or n % every == every-1): out.append(items[j]); j += 1
            return out + items[j:]
        k.wait_lg(); k.wait_vm("A0"); k("s_barrier")
        st(6)
        for s in range(18):
            for nt in range(4): k(f"ds_read_b128 {vr(XB[s % 2]+4*nt, 4)}, v{vXr[s % 3]} offset:{nt*1024}")
            for f in range(look): put(wread(s, f))
            dma = dmaX(s+2) + dmaW(s+2, not five) if s+2 < 18 else dmaB(s-16, five)
            seq = sum((mfa(s-1, f) for f in range(nf-nd, nf)), []) if s > 0 else []
            for f in range(nf-nd):
                extra = late[f*len(late)//(nf-nd):(f+1)*len(late)//(nf-nd)] if s == 17 else []
                seq += interleave(mfa(s, f), (wread(s, f+look) if f+look < nf else []) + extra)
            put(spread_in(seq, dma, spread))
            if s == dstage and "notouch" not in abl: touch([sD], f"{name}_{P}td", 29)
            if s == dstage+2:
                k(f"s_lshl_b32 s3, s2, 15\ns_lshl_b32 s4, s{sW}, 12\ns_add_u32 s3, s3, s4\ns_add_u32 s3, s3, {O_S1}\nv_lshlrev_b32 v{vT0}, 6, v{vL}\nbuffer_load_dword v30, v{vT0}, {S4(sF)}, s3 offen")
                if not five: k(f"buffer_load_dword v{vQ}, v{vZ}, {S4(sF)}, s{sF1p} offen offset:4 sc1")
            if s == dstage+4 and not five:
                spin(f"{name}_xid", f"buffer_load_dword v{vQ}, v{vZ}, {S4(sF)}, s{sF1p} offen offset:4 sc1", f"v_cmp_eq_u32 vcc, 0, v{vQ}")
                k(f"v_readfirstlane_b32 s3, v{vQ}\ns_cmp_eq_u32 s3, s{sLoc}\ns_cselect_b32 s{sLoc}, {0 if 'remote' in abl else 1}, 0")
            k.wait_lg(); k.wait_vm(f"A{s+1}"); k("s_barrier")
        put(sum((mfa(17, f) for f in range(nf-nd, nf)), []))
        st(7)
        for i in range(nt5):
            for nt in range(4):
                g, u = acc(2*i, nt), acc(2*i+1, nt)
                for r in range(4): k(f"v_exp_f32 v{g+r}, -v{g+r}")
                for r in range(4): k(f"v_add_f32 v{g+r}, 1.0, v{g+r}")
                for r in range(4): k(f"v_rcp_f32 v{g+r}, v{g+r}")
                for r in range(4): k(f"v_mul_f32 v{g+r}, v{g+r}, v{u+r}")
                k(f"v_cvt_pk_bf16_f32 v{u}, v{g}, v{g+1}\nv_cvt_pk_bf16_f32 v{u+1}, v{g+2}, v{g+3}")
                k(f"ds_write_b64 v{vHW if i % 2 == 0 else vHW2}, {vr(u, 2)} offset:{nt*9*1024 + (i >> 1)*1024}")
        put(sel)
        k.wait_lg(); k.wait_vm("B0"); k("s_barrier")
        st(8); stb(0)
        if "cnt" in abl: k("s_mov_b32 s99, 0")
        HB = 112; AB = [80, 96]; WG = [28, 40, 52]; SD = 64
        def hreg(kp, nt): return HB + (kp*4+nt)*4
        def wgreg(gi, c): return WG[gi] + 4*c
        def wdread(u, gi):
            out = []
            for c in range(3):
                d = wgreg(gi, c); kp = gi*3+c
                out += [f"ds_read_b64_tr_b16 v[{d+2*h}:{d+2*h+1}], v{vWD[u % 4]} offset:{kp*4096 + h*2048}" for h in range(2)]
            return out
        def mfb(u, gi):
            out = []
            for nt in range(4):
                a = AB[u % 2]+4*nt
                for c in range(3):
                    out.append(f"{MF} {vr(a, 4)}, {vr(wgreg(gi, c), 4)}, {vr(hreg(gi*3+c, nt), 4)}, {'0' if gi == 0 and c == 0 else vr(a, 4)}")
            return out
        cvt = lambda u, h: [f"v_cvt_pk_bf16_f32 v{AB[u % 2]+8*h+q}, v{AB[u % 2]+8*h+2*q}, v{AB[u % 2]+8*h+2*q+1}" for q in range(4)]
        hread = lambda kp: [f"ds_read_b128 {vr(hreg(kp, nt), 4)}, v{vHR} offset:{(nt*9+kp)*1024}" for nt in range(4)]
        dmat = lambda t: (dmaB(2, five) + dmaB(3, five)) if t == 1 else (dmaB(t+2, five) if 2 <= t <= 6 else [])
        def endslot(t):
            if t <= 7: k.wait_lg(); k.wait_vm(f"B{t+1}"); k("s_barrier")
            if t < 9: stb(t+1)
        def both(lab, text, tag):
            k(f"s_cmp_eq_u32 s{sLoc}, 0\ns_cbranch_scc1 {lab}_r")
            q0 = k.seq
            k(text.replace("POL", ""), tag=tag)
            k(f"s_branch {lab}_d\n{lab}_r:")
            k.seq = q0
            k(text.replace("POL", "sc1"), tag=tag)
            k.seq += 1
            k(f"{lab}_d:")
        if not five:
            def send(u): both(f"{name}_s{u}", f"s_add_u32 s3, s{sS1}, {(u % 4)*8192}\n" + "\n".join(f"buffer_store_dwordx4 {vr(AB[u % 2]+8*h, 4)}, v{vDX}, {S4(sF)}, s3 offen offset:{h*1024} POL" for h in range(2)), f"S{u}")
            def flag(u):
                k.wait_vm(f"S{u}")
                k(f"v_mov_b32 v{vFV}, {u+1}")
                both(f"{name}_f{u}", f"buffer_store_dword v{vFV}, v{vZ}, {S4(sF)}, s{sF1} offen POL", "L")
            for t in range(9):
                put(wdread(t, 0))
                if t == 0:
                    for kp in range(3): put(hread(kp))
                    put(interleave(mfb(0, 0), wdread(0, 1) + hread(3)+hread(4)+hread(5)))
                    put(interleave(mfb(0, 1), wdread(0, 2) + hread(6)+hread(7)+hread(8)))
                else:
                    put(spread_in(mfb(t-1, 2), dmat(t), 2))
                    g0 = mfb(t, 0)
                    put(interleave(g0[:8], wdread(t, 1)[:2] + cvt(t-1, 0) + wdread(t, 1)[2:4] + cvt(t-1, 1) + wdread(t, 1)[4:]))
                    send(t-1)
                    put(g0[8:])
                    g1 = mfb(t, 1)
                    put(interleave(g1[:6], wdread(t, 2)))
                    flag(t-1); put(g1[6:])
                endslot(t)
            poll = lambda ph, tv: f"s_mov_b32 s3, {ph*32768}\nbuffer_load_dword v{tv}, v{vFL}, {S4(sF)}, s3 offen sc1"
            k(poll(0, 10))
            put(mfb(8, 2)); put(cvt(8, 0) + cvt(8, 1)); send(8); flag(8)
            st(9)
            home = lambda r: (HB+16*r, HB+16*r+8, HB+16*r+12)
            def rloads(r):
                RB, HV, DA = home(r)
                for pg in range(2): k(f"s_add_u32 s3, s{sRD}, {r*8192 + pg*4*9*8192}\nbuffer_load_dwordx4 {vr(RB+4*pg, 4)}, v{vRD}, {S4(sP)}, s3 offen sc1")
                k(f"s_movk_i32 s3, {r*2048}\nbuffer_load_dwordx2 {vr(HV, 2)}, v{vHO}, {S4(sH)}, s3 offen sc1")
            def rsum(r):
                RB, HV, DA = home(r)
                for pg in range(2): k(f"{MF} {vr(DA, 4)}, {vr(SEL, 4)}, {vr(RB+4*pg, 4)}, {'0' if pg == 0 else vr(DA, 4)}")
                k(f"v_lshlrev_b32 v{RB}, 16, v{HV}\nv_and_b32 v{RB+1}, 0xffff0000, v{HV}\nv_lshlrev_b32 v{RB+2}, 16, v{HV+1}\nv_and_b32 v{RB+3}, 0xffff0000, v{HV+1}")
            def rfin(r):
                RB, HV, DA = home(r)
                for q in range(4): k(f"v_fma_f32 v{RB+q}, v{DA+q}, s{sLN}, v{RB+q}")
                k(f"v_cvt_pk_bf16_f32 v{HV}, v{RB}, v{RB+1}\nv_cvt_pk_bf16_f32 v{HV+1}, v{RB+2}, v{RB+3}")
            rout = lambda r: k(f"buffer_store_dwordx2 {vr(home(r)[1], 2)}, v{vOO}, {S4(sO)}, 0 offen offset:{r*128} {OUTPOL}")
            lo = 0; pend = []
            for ph, c in enumerate(PHASES):
                spin(f"{name}_c{ph}", poll(ph, 10).split("\n")[1], f"s_mov_b32 s3, {ph*32768}\nv_cmp_eq_u32 vcc, 0, v10")
                for r in range(lo, c+1): rloads(r)
                for r in pend: rout(r)
                if ph+1 < len(PHASES): k(poll(ph+1, 10))
                pend = list(range(lo, c+1))
                for r in pend: rsum(r)
                for r in pend: rfin(r)
                lo = c+1
            for r in pend: rout(r)
        else:
            pl = f"buffer_load_dword v78, v{vZ}, {S4(sF)}, s{sF1p} offen sc1"
            def fetch(u):
                if "nol1chk" not in abl: spin(f"{name}_k{u}", pl, f"v_cmp_ge_u32 vcc, {u}, v78")
                k(f"s_add_u32 s3, s{sS1}, {(u % 4)*8192}")
                for h in range(2): k(f"buffer_load_dwordx4 {vr(SD+4*h, 4)}, v{vDX}, {S4(sF)}, s3 offen offset:{h*1024} sc1")
            add = lambda u: [f"{MF} {vr(AB[u % 2]+8*h+4*q, 4)}, {vr(SK+2-2*q, 4)}, {vr(SD+4*h, 4)}, {vr(AB[u % 2]+8*h+4*q, 4)}" for h in range(2) for q in range(2)]
            pst = lambda u, h: (f"s_add_u32 s3, s{sPO}, {u*8192}\nbuffer_store_dwordx4 {vr(AB[u % 2]+8*h, 4)}, v{vPO}, {S4(sP)}, s3 offen offset:{h*1024} sc1", f"P{u}")
            def arrive(ph):
                k.wait_vm(f"P{PHASES[ph]}")
                lab = f"{name}_ar{ph}"
                k(f"""v_mov_b32 v{vFV}, 1
s_mov_b64 exec, 1
ds_add_rtn_u32 v79, v{vFL}, v{vFV} offset:{ph*4}
s_mov_b64 exec, -1
s_waitcnt lgkmcnt(0)
v_readfirstlane_b32 s3, v79
s_cmp_lg_u32 s3, 3
s_cbranch_scc1 {lab}
s_mov_b32 s3, {ph*32768}
buffer_store_dword v{vFV}, v{vFS}, {S4(sF)}, s3 offen sc1
{lab}:""")
            for kp in range(9): put(hread(kp))
            endslot(0)
            for t in range(1, 10):
                u = t-1
                if u >= 1: k(pl)
                put(wdread(u, 0))
                put(spread_in(mfb(u-1, 2), dmat(t), 2) if u >= 1 else dmat(t))
                if u >= 1: fetch(u-1)
                if u >= 2: put([pst(u-2, 0), pst(u-2, 1)])
                put(interleave(mfb(u, 0), wdread(u, 1) + [""]*6))
                if u-3 == PHASES[0]: arrive(0)
                g1 = mfb(u, 1)
                put(interleave(g1[:6], wdread(u, 2)))
                if u >= 1:
                    put(add(u-1))
                    if t == 9: k(pl)
                    put(g1[6:9])
                    put(interleave(g1[9:], cvt(u-1, 0) + cvt(u-1, 1)))
                else: put(g1[6:])
                endslot(t)
            fetch(8)
            put([pst(7, 0), pst(7, 1)])
            put(mfb(8, 2)); put(add(8))
            st(9)
            put(cvt(8, 0) + [pst(8, 0)] + cvt(8, 1) + [pst(8, 1)])
            arrive(1); arrive(2)
        if stamp:
            k("s_waitcnt vmcnt(0) lgkmcnt(0)\ns_memrealtime s[4:5]\ns_waitcnt lgkmcnt(0)")
            for i in range(10): k(f"v_mov_b32 v{28+i}, s{60+2*i}")
            k(f"""v_mov_b32 v38, s4
v_mov_b32 v39, s{99 if 'cnt' in abl else sLoc}
s_lshl_b32 s3, s2, 3
s_add_u32 s3, s3, s{sW}
s_lshl_b32 s3, s3, 6
s_add_u32 s3, s3, {O_STAMP}
v_mov_b32 v40, s3
global_store_dwordx4 v40, v[28:31], s[6:7]
global_store_dwordx4 v40, v[32:35], s[6:7] offset:16
global_store_dwordx4 v40, v[36:39], s[6:7] offset:32""")
    k(f"s_cmp_ge_u32 s{sW}, 4\ns_cbranch_scc1 {name}_p4")
    path(True)
    k(f"s_endpgm\n{name}_p4:")
    path(False)
    k(f"{name}_end:")
    return k
```

```python
import sys
from asmlib import *
from pf import *
from fft import *
st = "stamp" in sys.argv
HEADER = open("sequential_preLN__spectral_gfnet__glu_gated_glu__prompt.s.ref").read().split("; Override launch")[0].rstrip()
opt = dict(a.split("=") for a in sys.argv[1:] if "=" in a)
pfo = {q: (int(v) if v.lstrip("-").isdigit() else v) for q, v in opt.items() if q not in ("FPOL",)}
ks = [build_p1(st, FPOL=opt.get("FPOL", "")), build_p2(st), build_pf(stamp=st, **pfo)]
print(emit(ks, ks, header=HEADER))
print("; " + " ".join(sys.argv[1:]))
for k in ks: print(k.name, k.count, "nops", k.nops, "maxv", k.maxv, file=sys.stderr)
```

```python
from asmlib import *
from layout import *
import struct
def fl(x): return "0x%08x" % struct.unpack("<I", struct.pack("<f", x))[0]
MF = "v_mfma_f32_16x16x32_bf16"
def ws_srd(k, d, off, nbytes, ws=6):
    k(f"s_add_u32 s{d}, s{ws}, {off}\ns_addc_u32 s{d+1}, s{ws+1}, 0\ns_mov_b32 s{d+2}, {nbytes}\ns_mov_b32 s{d+3}, 0x20000")
def srd_tail(k, d, nbytes): k(f"s_mov_b32 s{d+2}, {nbytes}\ns_mov_b32 s{d+3}, 0x20000")
S4 = lambda d: f"s[{d}:{d+3}]"

SLOT_A = [0, 45056, 90112]
RING_B = [0, 36864, 90112, 126976]
HH = 90112
CNT = 73728
PHASES = [4, 6, 8]

def build_pf(look=3, nd=2, spread=4, stamp=False, abl="", name="pf", OUTPOL="", WPOL="nt", DPOL="", TPOL="nt", dstage=9, pxor=128, safe=0, XPOL="sc1", TPOLD=""):
    k = K(name, 256, 512, lds=163840, vgpr=256, sgpr=102)
    sG, sU, sD, sX, sP, sF, sS, sH, sO, sV, sI, sT = 8, 12, 16, 20, 24, 28, 32, 36, 40, 44, 48, 52
    sW, sMT, sSL, sRG = 56, 57, 58, 59
    sA, sKW, sKX, sM0a, sM0x, sM0s, sKD, sM0d, sPO, sCG, sRD, sLN, sLoc, sS1 = range(80, 94)
    sF1 = 96; sB = 97; sXC = 98
    vL, vDX, vD0, vD1, vD2, vT0, vT1, vT2 = range(8)
    vXr = [8, 9, 10]; vWA = [11, 12, 13]; vWB = [14, 15, 16]
    vDD, vPO, vHW = 17, 18, 19
    vWD = [20, 21, 22, 23]
    vHR, vHW2, vZ, vQ = 24, 25, 26, 27
    def stb(i):
        if stamp and "bst" in abl: k(f"s_memrealtime s[{60+2*i}:{61+2*i}]")
    def st(i):
        if stamp and "bst" not in abl: k(f"s_memrealtime s[{60+2*i}:{61+2*i}]")
    def put(items):
        for x in items:
            t = x[0] if isinstance(x, tuple) else x
            if "nodma" in abl and " lds" in t and x[1] not in ("A0", "A1"): continue
            if "nop2" in abl and "buffer_store" in t and isinstance(x, tuple) and x[1].startswith("P"): continue
            if "nomfma" in abl and "v_mfma" in t: continue
            if isinstance(x, tuple): k(x[0], tag=x[1])
            else: k(x)
    def spin(lab, load, cond):
        bound = f"s_sub_u32 s100, s100, 1\ns_cbranch_scc1 {lab}_ok\n" if safe else ""
        k(f"{cond}\ns_cbranch_vccz {lab}_ok\n{'s_movk_i32 s100, 20000' if safe else ''}\n{lab}_spin:\n{'s_add_u32 s99, s99, 1' if 'cnt' in abl else ''}\n{bound}{load}\ns_waitcnt vmcnt(0)\n{cond}\ns_cbranch_vccnz {lab}_spin\n{lab}_ok:")
        k.saved.pop(lab + "_spin", None)
    st(0)
    k(f"""
s_load_dwordx2 s[6:7], s[0:1], 72
s_load_dwordx2 s[{sG}:{sG+1}], s[0:1], 32
s_load_dwordx2 s[{sU}:{sU+1}], s[0:1], 40
s_load_dwordx2 s[{sI}:{sI+1}], s[0:1], 0
s_load_dwordx2 s[{sD}:{sD+1}], s[0:1], 48
s_load_dwordx2 s[{sO}:{sO+1}], s[0:1], 56
s_cmp_ge_u32 s2, 256
s_cbranch_scc1 {name}_end
v_lshrrev_b32 v{vT0}, 6, v0
v_and_b32 v{vL}, 63, v0
v_readfirstlane_b32 s{sW}, v{vT0}
s_lshr_b32 s3, s2, 3
s_and_b32 s{sMT}, s3, 15
s_lshr_b32 s{sB}, s3, 4
s_and_b32 s{sXC}, s2, 7
s_lshl_b32 s4, s{sXC}, 1
s_add_u32 s{sSL}, s4, s{sB}
v_lshlrev_b32 v{vDX}, 4, v{vL}
v_mov_b32 v{vZ}, 0
""")
    o = 28
    R = lambda n: n + o
    sS2, sNT, sVB, sXO, sSO = 99, sB, 100, 101, sRD
    L, MB_, AC, TW, G, XX = R(16), R(48), R(64), R(96), R(120), R(160)
    EZ = 90112; ES = EZ + 20480
    g_, n_, vVA, vHS, vRow, vXo, vEW, vSW, vSR = R(2), R(3), R(4), R(5), R(6), R(7), R(9), R(14), R(15)
    t0, t1, t2, t3 = R(10), R(11), R(12), R(13)
    k(f"""
s_lshr_b32 s3, s{sXC}, 2
s_and_b32 s4, s{sMT}, 1
s_cmp_lg_u32 s3, s4
s_cbranch_scc1 {name}_idle
s_and_b32 s3, s{sXC}, 3
s_lshl_b32 s{sS2}, s{sMT}, 2
s_add_u32 s{sS2}, s{sS2}, s3
v_lshrrev_b32 v{g_}, 4, v{vL}
v_and_b32 v{n_}, 15, v{vL}
s_lshl_b32 s3, s{sW}, 4
v_add_u32 v{vVA}, s3, v{n_}
v_lshlrev_b32 v{vVA}, 4, v{vVA}
v_mul_u32_u24 v{t0}, {4*64*ROWB}, v{g_}
v_add_u32 v{vVA}, v{vVA}, v{t0}
s_mul_i32 s{sVB}, s{sS2}, {ROWB}
s_lshl_b32 s3, s{sNT}, 4
v_add_u32 v{vRow}, s3, v{n_}
v_lshl_add_u32 v{vRow}, v{vRow}, 6, s{sS2}
v_mul_u32_u24 v{vXo}, 1152, v{vRow}
v_lshl_add_u32 v{vXo}, v{g_}, 5, v{vXo}
s_lshl_b32 s{sXO}, s{sW}, 7
s_waitcnt lgkmcnt(0)
""")
    ws_srd(k, sV, O_V, N_U)
    k(f"s_cmp_ge_u32 s{sW}, 5\ns_cbranch_scc1 {name}_nov")
    for kk in range(2):
        for t in range(4): k(f"s_add_u32 s3, s{sVB}, {(16*kk+t)*64*ROWB}\nbuffer_load_dwordx4 {vr(L+16*kk+4*t, 4)}, v{vVA}, {S4(sV)}, s3 offen", tag="V")
    k(f"{name}_nov:")
    srd_tail(k, sI, N_H); ws_srd(k, sT, O_TAB, N_TAB)
    k(f"buffer_load_dwordx4 {vr(XX, 4)}, v{vXo}, {S4(sI)}, s{sXO} offen\nbuffer_load_dwordx4 {vr(XX+4, 4)}, v{vXo}, {S4(sI)}, s{sXO} offen offset:16")
    k(f"s_mul_i32 s3, s{sW}, 5120\ns_add_u32 s3, s3, 16384\ns_add_u32 s4, s3, 4096")
    for f in range(5): k(f"buffer_load_dwordx4 {vr(G+4*f, 4)}, v{vDX}, {S4(sT)}, s{3+f//4} offen offset:{(f % 4)*1024}")
    k(f"s_cmp_lg_u32 s{sW}, 5\ns_cbranch_scc1 {name}_no2")
    k(f"buffer_load_dwordx4 {vr(XX+8, 4)}, v{vXo}, {S4(sI)}, 0 offen offset:1024\nbuffer_load_dwordx4 {vr(XX+12, 4)}, v{vXo}, {S4(sI)}, 0 offen offset:1040")
    k(f"s_mov_b32 s3, {(16+40)*1024}\ns_mov_b32 s4, {(16+44)*1024}")
    for f in range(5): k(f"buffer_load_dwordx4 {vr(G+20+4*f, 4)}, v{vDX}, {S4(sT)}, s{3+f//4} offen offset:{(f % 4)*1024}")
    k(f"{name}_no2:\ns_branch {name}_common\n{name}_idle:\ns_mov_b32 s{sS2}, -1\ns_waitcnt lgkmcnt(0)")
    ws_srd(k, sV, O_V, N_U); srd_tail(k, sI, N_H); ws_srd(k, sT, O_TAB, N_TAB)
    k(f"{name}_common:")

    def pattern(vd):
        k(f"""
s_lshl_b32 s4, s3, 6
v_add_u32 v{vT0}, s4, v{vL}
v_mul_u32_u24 v{vT1}, 1821, v{vT0}
v_lshrrev_b32 v{vT1}, 16, v{vT1}
v_mul_u32_u24 v{vT2}, 36, v{vT1}
v_sub_u32 v{vT0}, v{vT0}, v{vT2}
v_lshrrev_b32 v{vT2}, 2, v{vT1}
v_and_b32 v{vT2}, 2, v{vT2}
v_xor_b32 v{vT0}, v{vT0}, v{vT2}
v_lshlrev_b32 v{vT0}, 4, v{vT0}
v_and_b32 v{vT2}, 24, v{vT1}
v_add_u32 v{vT1}, v{vT1}, v{vT2}
v_mul_u32_u24 v{vT1}, 9216, v{vT1}
v_add_u32 v{vd}, v{vT0}, v{vT1}
""")
    k(f"s_and_b32 s{sRG}, s{sW}, 1\ns_bfe_u32 s{sA}, s{sW}, 0x10001\ns_and_b32 s{sCG}, s{sW}, 3")
    k(f"s_lshl_b32 s3, s{sW}, 1"); pattern(vD0)
    k(f"s_add_u32 s3, s3, 1"); pattern(vD1)
    k(f"s_add_u32 s3, s{sRG}, 16"); pattern(vD2)
    k(f"""
s_mul_i32 s{sKW}, s{sSL}, 576
s_lshl_b32 s3, s{sMT}, 3
s_add_u32 s3, s3, s{sW}
s_mul_i32 s{sKX}, s3, 18432
s_lshl_b32 s{sM0x}, s{sW}, 10
s_lshl_b32 s{sM0a}, s{sW}, 11
s_add_u32 s{sM0a}, s{sM0a}, 8192
s_mul_i32 s3, s{sA}, 18432
s_lshl_b32 s4, s{sRG}, 10
s_add_u32 s3, s3, s4
s_add_u32 s{sM0s}, s3, {8192+16*1024}
s_cmp_eq_u32 s{sA}, 0
s_cselect_b32 s{sS}, s{sG}, s{sU}
s_cselect_b32 s{sS+1}, s{sG+1}, s{sU+1}
""")
    for d in (sG, sU, sD, sS): srd_tail(k, d, N_W)
    srd_tail(k, sO, N_H)
    ws_srd(k, sX, O_XF, N_XF); ws_srd(k, sP, O_P, N_P); ws_srd(k, sH, O_H, N_H); ws_srd(k, sF, O_FLG, N_FLG)
    def dmaX(s):
        return [(f"s_add_u32 m0, s{sM0x}, {SLOT_A[s % 3]}\ns_add_u32 s94, s{sKX}, {s*1024}\nbuffer_load_dwordx4 v{vDX}, {S4(sX)}, s94 offen {XPOL} lds", f"A{s}")]
    def dmaW(s, six):
        o = SLOT_A[s % 3]
        g = [f"s_add_u32 m0, s{sM0a}, {o}\ns_add_u32 s95, s{sKW}, {((s >> 1)*64 + (s & 1)*8)*9216}\nbuffer_load_dwordx4 v{vD0}, {S4(sG)}, s95 offen {WPOL} lds",
             f"s_add_u32 m0, s{sM0a}, {o+1024}\nbuffer_load_dwordx4 v{vD1}, {S4(sG)}, s95 offen {WPOL} lds",
             f"s_add_u32 m0, s{sM0a}, {o+18432}\nbuffer_load_dwordx4 v{vD0}, {S4(sU)}, s95 offen {WPOL} lds",
             f"s_add_u32 m0, s{sM0a}, {o+18432+1024}\nbuffer_load_dwordx4 v{vD1}, {S4(sU)}, s95 offen {WPOL} lds"]
        if six: g.append(f"s_add_u32 m0, s{sM0s}, {o}\nbuffer_load_dwordx4 v{vD2}, {S4(sS)}, s95 offen {WPOL} lds")
        return [(x, f"A{s}") for x in g]
    def dmaB(u, five):
        o = RING_B[u % 4]
        return [(f"s_add_u32 m0, s{sM0d}, {o+i*1024}\ns_add_u32 s94, s{sKD}, {i*8*1152+u*128}\nbuffer_load_dwordx4 v{vDD}, {S4(sD)}, s94 offen {DPOL} lds", f"B{u}") for i in range(4 if five else 5)]
    for s in (0, 1):
        put(dmaW(s, False))
        k(f"s_cmp_lt_u32 s{sW}, 4\ns_cbranch_scc1 {name}_w{s}")
        put(dmaW(s, True)[4:])
        k(f"{name}_w{s}:")
    k(f"""
s_getreg_b32 s{sLoc}, hwreg(HW_REG_XCC_ID, 0, 4)
s_add_u32 s{sLoc}, s{sLoc}, 1
v_mov_b32 v{vQ}, s{sLoc}
s_lshl_b32 s3, s2, 9
s_lshl_b32 s4, s{sCG}, 7
s_add_u32 s3, s3, s4
s_add_u32 s{sF1}, s3, {F_1}
s_cmp_lt_u32 s{sW}, 4
s_cbranch_scc1 {name}_noxid
buffer_store_dword v{vQ}, v{vZ}, {S4(sF)}, s{sF1} offen offset:4 sc1
{name}_noxid:

""")
    def touch(mats, lab, dst):
        k(f"""
s_lshr_b32 s3, s2, 3
s_lshl_b32 s3, s3, 3
s_add_u32 s3, s3, s{sW}
s_cmp_ge_u32 s3, {81*len(mats)}
s_cbranch_scc1 {lab}_x
s_cmp_ge_u32 s3, 81
s_cselect_b32 s4, 81, 0
s_sub_u32 s4, s3, s4
v_lshl_add_u32 v{vT0}, s4, 6, v{vL}
v_mul_u32_u24 v{vT1}, 7282, v{vT0}
v_lshrrev_b32 v{vT1}, 16, v{vT1}
v_mul_u32_u24 v{vT2}, 9, v{vT1}
v_sub_u32 v{vT2}, v{vT0}, v{vT2}
v_mul_u32_u24 v{vT1}, {9216 if mats[0] != sD else 1152}, v{vT1}
v_lshl_add_u32 v{vT1}, v{vT2}, 7, v{vT1}
s_mul_i32 s4, s{sXC}, {1152 if mats[0] != sD else 576*1152}
""")
        if len(mats) == 2: k(f"s_cmp_ge_u32 s3, 81\ns_cbranch_scc1 {lab}_u")
        k(f"buffer_load_dword v{dst}, v{vT1}, {S4(mats[0])}, s4 offen {TPOL if len(mats) == 2 else TPOLD}")
        if len(mats) == 2: k(f"s_branch {lab}_x\n{lab}_u:\nbuffer_load_dword v{dst}, v{vT1}, {S4(mats[1])}, s4 offen {TPOL}")
        k(f"{lab}_x:")
    if "notouch" not in abl: touch([sG, sU], f"{name}_tg", 28)
    st(1)
    k(f"s_cmp_eq_u32 s{sS2}, -1\ns_cbranch_scc1 {name}_p3done")
    k(f"s_cmp_ge_u32 s{sW}, 5\ns_cbranch_scc1 {name}_noA")
    k(f"""
v_cvt_f32_u32 v{t0}, v{vRow}
v_mul_f32 v{t0}, {fl(1/2048)}, v{t0}
v_cvt_f32_u32 v{t1}, v{g_}
v_mul_f32 v{t1}, 4.0, v{t1}
v_mul_f32 v{vEW}, v{t0}, v{t1}
""")
    for kk in range(2):
        for t in range(4):
            k(f"""v_fmamk_f32 v{t2}, v{t0}, {fl(float(16*kk+t))}, v{vEW}
v_cos_f32 v{t3}, v{t2}
v_sin_f32 v{t2}, v{t2}
v_cvt_pk_bf16_f32 v{MB_+4*kk+t}, v{t3}, -v{t2}
v_cvt_pk_bf16_f32 v{MB_+8+4*kk+t}, v{t2}, v{t3}""")
    tw = [f"s_lshl_b32 s3, s{sW}, 4", f"v_cvt_f32_u32 v{t0}, s3", f"v_add_f32 v{t1}, v{t1}, v{t0}"]
    for r in range(4):
        if r: tw.append(f"v_add_f32 v{t1}, 1.0, v{t1}")
        for q in range(1, 4):
            tw += [f"v_mul_f32 v{t2}, {fl(q/576)}, v{t1}", f"v_cos_f32 v{TW+6*r+2*q-2}, v{t2}", f"v_sin_f32 v{TW+6*r+2*q-1}, v{t2}"]
    put(tw[:22])
    st(2)
    for kk in range(2):
        for a in range(4):
            for b in range(a+1, 4): k(f"v_swap_b32 v{L+16*kk+4*a+b}, v{L+16*kk+4*b+a}")
    mf = []
    for m in (0, 2, 1, 3):
        for kk in range(2):
            for c in range(2):
                a = AC+8*m+4*c
                mf.append(f"{MF} {vr(a, 4)}, {vr(L+16*kk+4*m, 4)}, {vr(MB_+8*c+4*kk, 4)}, {'0' if kk == 0 else vr(a, 4)}")
    put(interleave(mf, tw[22:]))
    Z = L; T = L+16
    for r in range(4):
        Rr = lambda m: AC+8*m+r
        I = lambda m: AC+8*m+4+r
        a, b, c, d, u = T, T+2, T+4, T+6, T+8
        k(f"""
v_add_f32 v{a}, v{Rr(0)}, v{Rr(2)}
v_add_f32 v{a+1}, v{I(0)}, v{I(2)}
v_sub_f32 v{b}, v{Rr(0)}, v{Rr(2)}
v_sub_f32 v{b+1}, v{I(0)}, v{I(2)}
v_add_f32 v{c}, v{Rr(1)}, v{Rr(3)}
v_add_f32 v{c+1}, v{I(1)}, v{I(3)}
v_sub_f32 v{d}, v{Rr(1)}, v{Rr(3)}
v_sub_f32 v{d+1}, v{I(1)}, v{I(3)}
v_add_f32 v{u}, v{a}, v{c}
v_add_f32 v{u+1}, v{a+1}, v{c+1}
v_sub_f32 v{u+2}, v{b}, v{d+1}
v_add_f32 v{u+3}, v{b+1}, v{d}
v_sub_f32 v{u+4}, v{a}, v{c}
v_sub_f32 v{u+5}, v{a+1}, v{c+1}
v_add_f32 v{u+6}, v{b}, v{d+1}
v_sub_f32 v{u+7}, v{b+1}, v{d}
v_cvt_pk_bf16_f32 v{Z+r}, v{u}, v{u+1}
""")
        for q in range(1, 4):
            cc = TW+6*r+2*q-2
            k(f"v_mul_f32 v{T+2*q}, v{cc}, v{u+2*q}\nv_mul_f32 v{T+2*q+1}, v{cc}, v{u+2*q+1}")
        for q in range(1, 4):
            ss = TW+6*r+2*q-1
            k(f"v_fma_f32 v{T+2*q}, -v{ss}, v{u+2*q+1}, v{T+2*q}\nv_fmac_f32 v{T+2*q+1}, v{ss}, v{u+2*q}")
        for q in range(1, 4): k(f"v_cvt_pk_bf16_f32 v{Z+4*q+r}, v{T+2*q}, v{T+2*q+1}")
    k(f"s_lshl_b32 s3, s{sW}, 10\ns_add_u32 s3, s3, {EZ}\nv_add_u32 v{vEW}, s3, v{vDX}")
    for q in range(4): k(f"ds_write_b128 v{vEW}, {vr(Z+4*q, 4)} offset:{q*5120}")
    k(f"{name}_noA:")
    k(f"""
v_lshlrev_b32 v{vSR}, 6, v{n_}
v_add_u32 v{vSR}, {ES}, v{vSR}
v_lshrrev_b32 v{vSW}, 1, v{g_}
v_lshl_add_u32 v{vSW}, v{vSW}, 2, v{vSR}
s_lshl_b32 s3, s{sW}, 3
v_add_u32 v{vSW}, s3, v{vSW}
v_lshrrev_b32 v{vHS}, 1, v{n_}
v_lshlrev_b32 v{vHS}, 7, v{vHS}
v_and_b32 v{t0}, 1, v{n_}
v_lshl_add_u32 v{vHS}, v{t0}, 6, v{vHS}
v_lshl_add_u32 v{vHS}, v{g_}, 4, v{vHS}
v_add_u32 v{vEW}, {EZ}, v{vDX}
s_lshl_b32 s3, s{sS2}, 1
s_add_u32 s3, s3, s{sNT}
s_mul_i32 s4, s3, 18432
s_lshl_b32 s5, s{sW}, 11
s_add_u32 s{sSO}, s4, s5
s_add_u32 s{sVB}, s4, 16384
s_and_b32 s3, s3, 7
s_lshl_b32 s3, s3, 2
s_lshl_b32 s4, s{sMT}, 11
s_add_u32 s{sXO}, s3, s4
s_mov_b32 s5, 0xffff0000
""")
    A2 = AC; ZR = L
    def final(nmt):
        so = [sSO, sVB]
        for mt in range(nmt):
            for r in range(4):
                for q in range(4):
                    src = XX+8*mt+2*r+(q >> 1); dst = A2+16*mt+4*q+r
                    k(f"v_and_b32 v{dst}, s5, v{src}" if q & 1 else f"v_lshlrev_b32 v{dst}, 16, v{src}")
        k.wait_lg(); k("s_barrier")
        st(3)
        idx = [(jt, q) for jt in range(5) for q in range(4)]
        rd = lambda i: f"ds_read_b128 {vr(ZR+4*(i % 8), 4)}, v{vEW} offset:{idx[i][1]*5120+idx[i][0]*1024}"
        for i in range(7): k(rd(i))
        for i, (jt, q) in enumerate(idx):
            for mt in range(nmt):
                a = A2+16*mt+4*q
                k(f"{MF} {vr(a, 4)}, {vr(G+20*mt+4*jt, 4)}, {vr(ZR+4*(i % 8), 4)}, {vr(a, 4)}")
            if i+7 < 20: k(rd(i+7))
        first = True
        for mt in range(nmt):
            for q in range(4):
                for p in range(2):
                    a = A2+16*mt+4*q+2*p
                    if first: k(f"v_mov_b64 {vr(t0, 2)}, {vr(a, 2)}\nv_pk_mul_f32 {vr(t2, 2)}, {vr(a, 2)}, {vr(a, 2)}"); first = False
                    else: k(f"v_pk_add_f32 {vr(t0, 2)}, {vr(t0, 2)}, {vr(a, 2)}\nv_pk_fma_f32 {vr(t2, 2)}, {vr(a, 2)}, {vr(a, 2)}, {vr(t2, 2)}")
        k(f"""
v_add_f32 v{t0}, v{t0}, v{t1}
v_add_f32 v{t2}, v{t2}, v{t3}
v_permlane32_swap_b32 v{t0}, v{t2}
v_add_f32 v{t0}, v{t0}, v{t2}
v_mov_b32 v{t1}, v{t0}
v_permlane16_swap_b32 v{t0}, v{t1}
v_add_f32 v{t0}, v{t0}, v{t1}
ds_write_b32 v{vSW}, v{t0}
""")
        def pack(dst, mt, h):
            for p in range(4):
                r, q = 2*h+(p >> 1), 2*(p & 1)
                k(f"v_cvt_pk_bf16_f32 v{dst+p}, v{A2+16*mt+4*q+r}, v{A2+16*mt+4*(q+1)+r}")
        for mt in range(nmt):
            for h in range(2): pack(XX+8*mt+4*h, mt, h)
        k.wait_lg(); k("s_barrier")
        for w in range(4): k(f"ds_read_b128 {vr(L+4*w, 4)}, v{vSR} offset:{16*w}")
        for mt in range(nmt):
            for h in range(2): k(f"buffer_store_dwordx4 {vr(XX+8*mt+4*h, 4)}, v{vHS}, {S4(sH)}, s{so[mt]} offen offset:{h*1024} sc1")
        for a, b in ((0, 2), (4, 6), (8, 10), (12, 14), (0, 4), (8, 12), (0, 8)):
            k(f"v_pk_add_f32 {vr(L+a, 2)}, {vr(L+a, 2)}, {vr(L+b, 2)}")
        k(f"""
v_mul_f32 v{t0}, {fl(1/576)}, v{L}
v_mul_f32 v{t1}, v{t0}, v{t0}
v_fmamk_f32 v{t2}, v{L+1}, {fl(1/576)}, v{t1}
v_fma_f32 v{t2}, -2.0, v{t1}, v{t2}
v_max_f32 v{t2}, 0, v{t2}
v_add_f32 v{t2}, {fl(1e-5)}, v{t2}
v_rsq_f32 v{t2}, v{t2}
v_mul_f32 v{t2}, {fl(LOG2E)}, v{t2}
v_mul_f32 v{t0}, -v{t0}, v{t2}
v_mov_b32 v{t3}, v{t2}
v_mov_b32 v{t1}, v{t0}
""")
        for mt in range(nmt):
            for q in range(4):
                for p in range(2):
                    a = A2+16*mt+4*q+2*p
                    k(f"v_pk_fma_f32 {vr(a, 2)}, {vr(a, 2)}, {vr(t2, 2)}, {vr(t0, 2)}")
            for h in range(2):
                pack(L+8*mt+4*h, mt, h)
                k(f"buffer_store_dwordx4 {vr(L+8*mt+4*h, 4)}, v{vDX}, {S4(sX)}, s{so[mt]} offen offset:{h*1024} sc1")
    k(f"s_cmp_eq_u32 s{sW}, 5\ns_cbranch_scc1 {name}_fin2")
    final(1)
    k(f"s_branch {name}_fin\n{name}_fin2:")
    final(2)
    k(f"""{name}_fin:
v_lshl_add_u32 v{t0}, v{vL}, 7, s{sXO}
v_mov_b32 v{t1}, {OOB}
v_cmp_gt_u32 vcc, 16, v{vL}
v_cndmask_b32 v{t0}, v{t1}, v{t0}, vcc
v_mov_b32 v{t1}, 1
s_waitcnt vmcnt(0)
s_barrier
s_cmp_lg_u32 s{sW}, 0
s_cbranch_scc1 {name}_p3done
buffer_store_dword v{t1}, v{t0}, {S4(sF)}, 0 offen sc1
{name}_p3done:
""")
    st(4)

    def path(five):
        nt5 = 5 if five else 4
        nf = 2*nt5
        P = "a" if five else "b"
        k(f"""
s_lshl_b32 s3, s{sMT}, 4
s_add_u32 s3, s3, s{sSL}
s_lshl_b32 s3, s3, 7
s_lshl_b32 s4, s{sW}, 2
s_add_u32 s{sLN}, s3, s4
buffer_load_dword v{vQ}, v{vZ}, {S4(sF)}, s{sLN} offen sc1
v_lshrrev_b32 v{vT0}, 4, v{vL}
v_bfe_u32 v{vT1}, v{vL}, 2, 2
v_lshl_add_u32 v{vT2}, v{vT0}, 3, v{vT1}
v_mul_u32_u24 v{vT2}, 576, v{vT2}
v_and_b32 v{vWB[0]}, 3, v{vL}
v_lshl_add_u32 v{vT2}, v{vWB[0]}, 3, v{vT2}
s_mul_i32 s3, s{sA}, 9
s_add_u32 s3, s3, {0 if five else 5}
s_lshl_b32 s4, s3, 5
s_add_u32 s4, s4, 8192
v_add_u32 v{vT2}, s4, v{vT2}
s_and_b32 s3, s3, 1
s_cmp_eq_u32 s3, 0
s_cselect_b32 s3, 32, -32
v_and_b32 v{vWB[0]}, 1, v{vT0}
v_mul_i32_i24 v{vWB[0]}, s3, v{vWB[0]}
v_add_u32 v{vWA[0]}, v{vT2}, v{vWB[0]}
v_sub_u32 v{vWB[0]}, v{vT2}, v{vWB[0]}
s_lshl_b32 s3, s{sRG}, 12
v_add_u32 v{vXr[0]}, s3, v{vDX}
""")
        for i in (1, 2):
            k(f"v_add_u32 v{vXr[i]}, {SLOT_A[i]}, v{vXr[0]}\nv_add_u32 v{vWA[i]}, {SLOT_A[i]}, v{vWA[0]}\nv_add_u32 v{vWB[i]}, {SLOT_A[i]}, v{vWB[0]}")
        k(f"""
v_lshrrev_b32 v{vDD}, 3, v{vL}
v_mul_u32_u24 v{vDD}, 1152, v{vDD}
v_bfe_u32 v{vT2}, v{vL}, 1, 2
v_xor_b32 v{vT2}, v{vT2}, v{vT0}
v_lshl_add_u32 v{vDD}, v{vT2}, 5, v{vDD}
v_and_b32 v{vT2}, 1, v{vL}
v_lshl_add_u32 v{vDD}, v{vT2}, 4, v{vDD}
s_mul_i32 s3, s{sW}, {4 if five else 5}
s_sub_u32 s3, s3, {0 if five else 4}
s_lshl_b32 s{sM0d}, s3, 10
s_mul_i32 s3, s3, {8*1152}
s_mul_i32 s{sKD}, s{sSL}, {288*1152}
s_add_u32 s{sKD}, s{sKD}, s3
v_lshl_add_u32 v{vWD[0]}, v{vT0}, 2, v{vT1}
v_bfe_u32 v{vT2}, v{vWD[0]}, 1, 2
v_xor_b32 v{vT2}, s{sCG}, v{vT2}
v_lshlrev_b32 v{vT2}, 5, v{vT2}
v_lshl_add_u32 v{vWD[0]}, v{vWD[0]}, 7, v{vT2}
v_and_b32 v{vT2}, 3, v{vL}
v_lshl_add_u32 v{vWD[0]}, v{vT2}, 3, v{vWD[0]}
v_add_u32 v{vWD[1]}, {RING_B[1]}, v{vWD[0]}
v_add_u32 v{vWD[2]}, {RING_B[2]}, v{vWD[0]}
v_add_u32 v{vWD[3]}, {RING_B[3]}, v{vWD[0]}
s_xor_b32 s3, s{sB}, {0 if five else 1}
s_mul_i32 s3, s3, {4*9*1024}
s_add_u32 s3, s3, {HH}
v_add_u32 v{vHR}, s3, v{vDX}
s_mul_i32 s3, s{sRG}, {4*9*1024}
s_add_u32 s3, s3, {HH}
s_mul_i32 s4, s{sA}, 9
s_add_u32 s4, s4, {0 if five else 5}
s_lshr_b32 s5, s4, 1
s_lshl_b32 s5, s5, 10
s_add_u32 s3, s3, s5
s_and_b32 s4, s4, 1
s_lshl_b32 s5, s4, 3
s_add_u32 s5, s5, s3
v_add_u32 v{vHW}, s5, v{vDX}
s_mul_i32 s5, s4, 1024
s_add_u32 s5, s5, s3
s_xor_b32 s4, s4, 1
s_lshl_b32 s4, s4, 3
s_add_u32 s5, s5, s4
v_add_u32 v{vHW2}, s5, v{vDX}
v_bfe_u32 v{vT2}, v{vL}, 1, 3
v_lshlrev_b32 v{vPO}, 7, v{vT2}
v_and_b32 v{vT2}, 1, v{vL}
v_lshl_add_u32 v{vPO}, v{vT2}, 6, v{vPO}
v_lshl_add_u32 v{vPO}, v{vT0}, 4, v{vPO}
s_lshl_b32 s3, s{sMT}, 1
s_add_u32 s3, s3, s{sB}
s_mul_i32 s{sRD}, s3, {8*9*8192}
s_mul_i32 s3, s{sXC}, {9*8192}
s_add_u32 s{sPO}, s{sRD}, s3
s_lshl_b32 s4, s{sCG}, 11
s_add_u32 s{sPO}, s{sPO}, s4
s_xor_b32 s3, s2, {pxor if five else 0}
s_lshl_b32 s3, s3, 15
s_add_u32 s3, s3, s4
s_add_u32 s{sS1}, s3, {O_S1}
s_xor_b32 s101, s{sF1}, {pxor << 9}
""")
        sF1p = 101
        spin(f"{name}_{P}x", f"buffer_load_dword v{vQ}, v{vZ}, {S4(sF)}, s{sLN} offen sc1", f"v_cmp_eq_u32 vcc, 0, v{vQ}")
        put(dmaX(0)); put(dmaX(1))
        st(5)
        ACC = 256-nf*16; XB = [64, 80]; WR = 32
        def acc(f, nt): return ACC + f*16 + nt*4
        def wreg(s, f): return WR + 4*((s*nf+f) % 8)
        def wread(s, f):
            i, u = f >> 1, f & 1
            va = (vWA if i % 2 == 0 else vWB)[s % 3]; d = wreg(s, f)
            return [f"ds_read_b64_tr_b16 v[{d+2*h}:{d+2*h+1}], v{va} offset:{h*4*576 + i*32 + u*18432}" for h in range(2)]
        def mfa(s, f):
            w = wreg(s, f)
            return [f"{MF} {vr(acc(f, nt), 4)}, {vr(w, 4)}, {vr(XB[s % 2]+4*nt, 4)}, {'0' if s == 0 else vr(acc(f, nt), 4)}" for nt in range(4)]
        vRD, vHO, vOO, vFL, vFS, SEL, vFV = 2, 3, 4, 8, 9, 12, 5
        late = f"""v_mov_b32 v{vFS}, {OOB}
s_lshl_b32 s4, s{sMT}, 11
s_lshl_b32 s5, s{sB}, 7
s_add_u32 s4, s4, s5
s_add_u32 s4, s4, {F_2}""".split("\n")
        if five:
            late += f"""s_lshl_b32 s5, s{sXC}, 2
s_add_u32 s5, s5, s4
v_lshl_add_u32 v5, v{vL}, 8, s5
v_cmp_gt_u32 vcc, 8, v{vL}
v_cndmask_b32 v{vFS}, v{vFS}, v5, vcc
v_mov_b32 v{vFL}, {CNT}""".split("\n")
        else:
            late += f"""s_lshl_b32 s5, s{sXC}, 8
s_add_u32 s5, s5, s4
v_and_b32 v5, 7, v{vL}
v_lshl_add_u32 v{vFL}, v5, 2, s5
v_lshrrev_b32 v5, 4, v{vL}
v_and_b32 v6, 3, v{vL}
v_bfe_u32 v7, v{vL}, 3, 1
v_mul_u32_u24 v{vRD}, {9*8192}, v5
v_lshl_add_u32 v{vRD}, v7, 11, v{vRD}
v_and_b32 v{vHO}, 7, v{vL}
v_lshl_add_u32 v{vRD}, v{vHO}, 4, v{vRD}
s_lshl_b32 s4, s{sRG}, 1
v_add_u32 v7, s4, v7
s_lshl_b32 s4, s{sA}, 10
s_add_u32 s{sRD}, s{sRD}, s4
s_lshl_b32 s4, s{sRG}, 12
s_add_u32 s{sRD}, s{sRD}, s4
s_lshl_b32 s5, s{sXC}, 7
s_add_u32 s{sRD}, s{sRD}, s5
s_lshl_b32 s{sLN}, s{sMT}, 2
s_lshl_b32 s3, s{sB}, 1
s_add_u32 s{sLN}, s{sLN}, s3
s_add_u32 s{sLN}, s{sLN}, s{sA}
s_lshl_b32 s3, s{sLN}, 1
v_add_u32 v{vHO}, s3, v5
v_mul_u32_u24 v{vHO}, 18432, v{vHO}
v_lshrrev_b32 v11, 1, v6
v_lshl_add_u32 v{vHO}, v11, 10, v{vHO}
v_lshl_add_u32 v{vHO}, v7, 4, v{vHO}
v_and_b32 v11, 1, v6
v_lshl_add_u32 v{vHO}, v11, 3, v{vHO}
v_add_u32 v{vHO}, s5, v{vHO}
v_bfe_u32 v11, v{vL}, 2, 1
v_lshl_add_u32 v{vHO}, v11, 6, v{vHO}
s_lshl_b32 s4, s{sXC}, 1
v_lshl_add_u32 v{vOO}, v5, 4, s4
v_add_u32 v{vOO}, v{vOO}, v11
v_lshl_add_u32 v{vOO}, v{vOO}, 6, s{sLN}
v_mul_u32_u24 v{vOO}, 1152, v{vOO}
v_lshl_add_u32 v{vOO}, v7, 5, v{vOO}
v_lshl_add_u32 v{vOO}, v6, 3, v{vOO}
v_cmp_gt_u32 vcc, 32, v{vL}
v_cndmask_b32 v{vHO}, v{vFS}, v{vHO}, vcc
v_cndmask_b32 v{vOO}, v{vFS}, v{vOO}, vcc
s_mov_b32 s{sLN}, {LN2!r}""".split("\n")
        SK = 72
        sel = f"""v_and_b32 v5, 1, v{vL}
v_lshlrev_b32 v5, 4, v5
s_movk_i32 s3, 0x3f80
v_lshlrev_b32 v5, v5, s3
v_bfe_u32 v6, v{vL}, 1, 3""".split("\n")
        if five:
            sel += [f"v_lshrrev_b32 v7, 3, v{vL}", f"v_and_b32 v7, 6, v7", f"v_sub_u32 v6, v6, v7"]
            for i in range(2): sel += [f"v_cmp_eq_u32 vcc, {i}, v6", f"v_cndmask_b32 v{SK+2+i}, 0, v5, vcc"]
            sel += [f"v_mov_b32 v{SK+i}, 0" for i in (0, 1, 4, 5)]
            sel += [f"ds_write_b64 v{vFL}, v[{SK}:{SK+1}]", f"ds_write_b64 v{vFL}, v[{SK}:{SK+1}] offset:8"]
        else:
            for i in range(4): sel += [f"v_cmp_eq_u32 vcc, {i}, v6", f"v_cndmask_b32 v{SEL+i}, 0, v5, vcc"]
        def split_m0(d):
            out = []
            for t, tag in d:
                ls = t.split("\n")
                out += ["\n".join(ls[:-1]), (ls[-1], tag)]
            return out
        def spread_in(seq, dma, every):
            items = split_m0(dma); out = []; n = 0; j = 0
            for x in seq:
                out.append(x)
                if isinstance(x, str) and x.startswith("v_mfma"):
                    n += 1
                    if j < len(items) and (j % 2 == 1 or n % every == every-1): out.append(items[j]); j += 1
            return out + items[j:]
        k.wait_lg(); k.wait_vm("A0"); k("s_barrier")
        st(6)
        for s in range(18):
            for nt in range(4): k(f"ds_read_b128 {vr(XB[s % 2]+4*nt, 4)}, v{vXr[s % 3]} offset:{nt*1024}")
            for f in range(look): put(wread(s, f))
            dma = dmaX(s+2) + dmaW(s+2, not five) if s+2 < 18 else dmaB(s-16, five)
            seq = sum((mfa(s-1, f) for f in range(nf-nd, nf)), []) if s > 0 else []
            for f in range(nf-nd):
                extra = late[f*len(late)//(nf-nd):(f+1)*len(late)//(nf-nd)] if s == 17 else []
                seq += interleave(mfa(s, f), (wread(s, f+look) if f+look < nf else []) + extra)
            put(spread_in(seq, dma, spread))
            if s == dstage and "notouch" not in abl: touch([sD], f"{name}_{P}td", 29)
            if s == dstage+2:
                k(f"s_lshl_b32 s3, s2, 15\ns_lshl_b32 s4, s{sW}, 12\ns_add_u32 s3, s3, s4\ns_add_u32 s3, s3, {O_S1}\nv_lshlrev_b32 v{vT0}, 6, v{vL}\nbuffer_load_dword v30, v{vT0}, {S4(sF)}, s3 offen")
                if not five: k(f"buffer_load_dword v{vQ}, v{vZ}, {S4(sF)}, s{sF1p} offen offset:4 sc1")
            if s == dstage+4 and not five:
                spin(f"{name}_xid", f"buffer_load_dword v{vQ}, v{vZ}, {S4(sF)}, s{sF1p} offen offset:4 sc1", f"v_cmp_eq_u32 vcc, 0, v{vQ}")
                k(f"v_readfirstlane_b32 s3, v{vQ}\ns_cmp_eq_u32 s3, s{sLoc}\ns_cselect_b32 s{sLoc}, {0 if 'remote' in abl else 1}, 0")
            k.wait_lg(); k.wait_vm(f"A{s+1}"); k("s_barrier")
        put(sum((mfa(17, f) for f in range(nf-nd, nf)), []))
        st(7)
        for i in range(nt5):
            for nt in range(4):
                g, u = acc(2*i, nt), acc(2*i+1, nt)
                for r in range(4): k(f"v_exp_f32 v{g+r}, -v{g+r}")
                for r in range(4): k(f"v_add_f32 v{g+r}, 1.0, v{g+r}")
                for r in range(4): k(f"v_rcp_f32 v{g+r}, v{g+r}")
                for r in range(4): k(f"v_mul_f32 v{g+r}, v{g+r}, v{u+r}")
                k(f"v_cvt_pk_bf16_f32 v{u}, v{g}, v{g+1}\nv_cvt_pk_bf16_f32 v{u+1}, v{g+2}, v{g+3}")
                k(f"ds_write_b64 v{vHW if i % 2 == 0 else vHW2}, {vr(u, 2)} offset:{nt*9*1024 + (i >> 1)*1024}")
        put(sel)
        k.wait_lg(); k.wait_vm("B0"); k("s_barrier")
        st(8); stb(0)
        if "cnt" in abl: k("s_mov_b32 s99, 0")
        HB = 112; AB = [80, 96]; WG = [28, 40, 52]; SD = 64
        def hreg(kp, nt): return HB + (kp*4+nt)*4
        def wgreg(gi, c): return WG[gi] + 4*c
        def wdread(u, gi):
            out = []
            for c in range(3):
                d = wgreg(gi, c); kp = gi*3+c
                out += [f"ds_read_b64_tr_b16 v[{d+2*h}:{d+2*h+1}], v{vWD[u % 4]} offset:{kp*4096 + h*2048}" for h in range(2)]
            return out
        def mfb(u, gi):
            out = []
            for nt in range(4):
                a = AB[u % 2]+4*nt
                for c in range(3):
                    out.append(f"{MF} {vr(a, 4)}, {vr(wgreg(gi, c), 4)}, {vr(hreg(gi*3+c, nt), 4)}, {'0' if gi == 0 and c == 0 else vr(a, 4)}")
            return out
        cvt = lambda u, h: [f"v_cvt_pk_bf16_f32 v{AB[u % 2]+8*h+q}, v{AB[u % 2]+8*h+2*q}, v{AB[u % 2]+8*h+2*q+1}" for q in range(4)]
        hread = lambda kp: [f"ds_read_b128 {vr(hreg(kp, nt), 4)}, v{vHR} offset:{(nt*9+kp)*1024}" for nt in range(4)]
        dmat = lambda t: (dmaB(2, five) + dmaB(3, five)) if t == 1 else (dmaB(t+2, five) if 2 <= t <= 6 else [])
        def endslot(t):
            if t <= 7: k.wait_lg(); k.wait_vm(f"B{t+1}"); k("s_barrier")
            if t < 9: stb(t+1)
        def both(lab, text, tag):
            k(f"s_cmp_eq_u32 s{sLoc}, 0\ns_cbranch_scc1 {lab}_r")
            q0 = k.seq
            k(text.replace("POL", ""), tag=tag)
            k(f"s_branch {lab}_d\n{lab}_r:")
            k.seq = q0
            k(text.replace("POL", "sc1"), tag=tag)
            k.seq += 1
            k(f"{lab}_d:")
        if not five:
            def send(u): both(f"{name}_s{u}", f"s_add_u32 s3, s{sS1}, {(u % 4)*8192}\n" + "\n".join(f"buffer_store_dwordx4 {vr(AB[u % 2]+8*h, 4)}, v{vDX}, {S4(sF)}, s3 offen offset:{h*1024} POL" for h in range(2)), f"S{u}")
            def flag(u):
                k.wait_vm(f"S{u}")
                k(f"v_mov_b32 v{vFV}, {u+1}")
                both(f"{name}_f{u}", f"buffer_store_dword v{vFV}, v{vZ}, {S4(sF)}, s{sF1} offen POL", "L")
            for t in range(9):
                put(wdread(t, 0))
                if t == 0:
                    for kp in range(3): put(hread(kp))
                    put(interleave(mfb(0, 0), wdread(0, 1) + hread(3)+hread(4)+hread(5)))
                    put(interleave(mfb(0, 1), wdread(0, 2) + hread(6)+hread(7)+hread(8)))
                else:
                    put(spread_in(mfb(t-1, 2), dmat(t), 2))
                    g0 = mfb(t, 0)
                    put(interleave(g0[:8], wdread(t, 1)[:2] + cvt(t-1, 0) + wdread(t, 1)[2:4] + cvt(t-1, 1) + wdread(t, 1)[4:]))
                    send(t-1)
                    put(g0[8:])
                    g1 = mfb(t, 1)
                    put(interleave(g1[:6], wdread(t, 2)))
                    flag(t-1); put(g1[6:])
                endslot(t)
            poll = lambda ph, tv: f"s_mov_b32 s3, {ph*32768}\nbuffer_load_dword v{tv}, v{vFL}, {S4(sF)}, s3 offen sc1"
            k(poll(0, 10))
            put(mfb(8, 2)); put(cvt(8, 0) + cvt(8, 1)); send(8); flag(8)
            st(9)
            home = lambda r: (HB+16*r, HB+16*r+8, HB+16*r+12)
            def rloads(r):
                RB, HV, DA = home(r)
                for pg in range(2): k(f"s_add_u32 s3, s{sRD}, {r*8192 + pg*4*9*8192}\nbuffer_load_dwordx4 {vr(RB+4*pg, 4)}, v{vRD}, {S4(sP)}, s3 offen sc1")
                k(f"s_movk_i32 s3, {r*2048}\nbuffer_load_dwordx2 {vr(HV, 2)}, v{vHO}, {S4(sH)}, s3 offen sc1")
            def rsum(r):
                RB, HV, DA = home(r)
                for pg in range(2): k(f"{MF} {vr(DA, 4)}, {vr(SEL, 4)}, {vr(RB+4*pg, 4)}, {'0' if pg == 0 else vr(DA, 4)}")
                k(f"v_lshlrev_b32 v{RB}, 16, v{HV}\nv_and_b32 v{RB+1}, 0xffff0000, v{HV}\nv_lshlrev_b32 v{RB+2}, 16, v{HV+1}\nv_and_b32 v{RB+3}, 0xffff0000, v{HV+1}")
            def rfin(r):
                RB, HV, DA = home(r)
                for q in range(4): k(f"v_fma_f32 v{RB+q}, v{DA+q}, s{sLN}, v{RB+q}")
                k(f"v_cvt_pk_bf16_f32 v{HV}, v{RB}, v{RB+1}\nv_cvt_pk_bf16_f32 v{HV+1}, v{RB+2}, v{RB+3}")
            rout = lambda r: k(f"buffer_store_dwordx2 {vr(home(r)[1], 2)}, v{vOO}, {S4(sO)}, 0 offen offset:{r*128} {OUTPOL}")
            lo = 0; pend = []
            for ph, c in enumerate(PHASES):
                spin(f"{name}_c{ph}", poll(ph, 10).split("\n")[1], f"s_mov_b32 s3, {ph*32768}\nv_cmp_eq_u32 vcc, 0, v10")
                for r in range(lo, c+1): rloads(r)
                for r in pend: rout(r)
                if ph+1 < len(PHASES): k(poll(ph+1, 10))
                pend = list(range(lo, c+1))
                for r in pend: rsum(r)
                for r in pend: rfin(r)
                lo = c+1
            for r in pend: rout(r)
        else:
            pl = f"buffer_load_dword v78, v{vZ}, {S4(sF)}, s{sF1p} offen sc1"
            def fetch(u):
                if "nol1chk" not in abl: spin(f"{name}_k{u}", pl, f"v_cmp_ge_u32 vcc, {u}, v78")
                k(f"s_add_u32 s3, s{sS1}, {(u % 4)*8192}")
                for h in range(2): k(f"buffer_load_dwordx4 {vr(SD+4*h, 4)}, v{vDX}, {S4(sF)}, s3 offen offset:{h*1024} sc1")
            add = lambda u: [f"{MF} {vr(AB[u % 2]+8*h+4*q, 4)}, {vr(SK+2-2*q, 4)}, {vr(SD+4*h, 4)}, {vr(AB[u % 2]+8*h+4*q, 4)}" for h in range(2) for q in range(2)]
            pst = lambda u, h: (f"s_add_u32 s3, s{sPO}, {u*8192}\nbuffer_store_dwordx4 {vr(AB[u % 2]+8*h, 4)}, v{vPO}, {S4(sP)}, s3 offen offset:{h*1024} sc1", f"P{u}")
            def arrive(ph):
                k.wait_vm(f"P{PHASES[ph]}")
                lab = f"{name}_ar{ph}"
                k(f"""v_mov_b32 v{vFV}, 1
s_mov_b64 exec, 1
ds_add_rtn_u32 v79, v{vFL}, v{vFV} offset:{ph*4}
s_mov_b64 exec, -1
s_waitcnt lgkmcnt(0)
v_readfirstlane_b32 s3, v79
s_cmp_lg_u32 s3, 3
s_cbranch_scc1 {lab}
s_mov_b32 s3, {ph*32768}
buffer_store_dword v{vFV}, v{vFS}, {S4(sF)}, s3 offen sc1
{lab}:""")
            for kp in range(9): put(hread(kp))
            endslot(0)
            for t in range(1, 10):
                u = t-1
                if u >= 1: k(pl)
                put(wdread(u, 0))
                put(spread_in(mfb(u-1, 2), dmat(t), 2) if u >= 1 else dmat(t))
                if u >= 1: fetch(u-1)
                if u >= 2: put([pst(u-2, 0), pst(u-2, 1)])
                put(interleave(mfb(u, 0), wdread(u, 1) + [""]*6))
                if u-3 == PHASES[0]: arrive(0)
                g1 = mfb(u, 1)
                put(interleave(g1[:6], wdread(u, 2)))
                if u >= 1:
                    put(add(u-1))
                    if t == 9: k(pl)
                    put(g1[6:9])
                    put(interleave(g1[9:], cvt(u-1, 0) + cvt(u-1, 1)))
                else: put(g1[6:])
                endslot(t)
            fetch(8)
            put([pst(7, 0), pst(7, 1)])
            put(mfb(8, 2)); put(add(8))
            st(9)
            put(cvt(8, 0) + [pst(8, 0)] + cvt(8, 1) + [pst(8, 1)])
            arrive(1); arrive(2)
        if stamp:
            k("s_waitcnt vmcnt(0) lgkmcnt(0)\ns_memrealtime s[4:5]\ns_waitcnt lgkmcnt(0)")
            for i in range(10): k(f"v_mov_b32 v{28+i}, s{60+2*i}")
            k(f"""v_mov_b32 v38, s4
v_mov_b32 v39, s{99 if 'cnt' in abl else sLoc}
s_lshl_b32 s3, s2, 3
s_add_u32 s3, s3, s{sW}
s_lshl_b32 s3, s3, 6
s_add_u32 s3, s3, {O_STAMP}
v_mov_b32 v40, s3
global_store_dwordx4 v40, v[28:31], s[6:7]
global_store_dwordx4 v40, v[32:35], s[6:7] offset:16
global_store_dwordx4 v40, v[36:39], s[6:7] offset:32""")
            if "dbg" in abl and not five:
                k(f"""s_cmp_lg_u32 s2, 0
s_cbranch_scc1 {name}_nodbg
s_cmp_lg_u32 s{sW}, 4
s_cbranch_scc1 {name}_nodbg
s_load_dwordx2 s[8:9], s[0:1], 64
v_mov_b32 v41, {O_STAMP + 262144}
global_load_dwordx4 v[44:47], v41, s[6:7]
global_load_dwordx4 v[48:51], v41, s[6:7] offset:16
v_mov_b32 v41, {O_STAMP + 2*262144}
global_load_dwordx4 v[52:55], v41, s[6:7]
global_load_dwordx4 v[56:59], v41, s[6:7] offset:16
s_waitcnt vmcnt(0) lgkmcnt(0)
s_sub_u32 s8, s8, {int(abl.split('dbg')[1][0])*512}
s_subb_u32 s9, s9, 0
v_sub_u32 v60, v46, v44
v_sub_u32 v61, v50, v44
v_sub_u32 v62, v52, v44
v_sub_u32 v63, v57, v44""")
                for i in range(11): k(f"v_sub_u32 v{64+i}, v{28+i}, v44")
                k(f"""v_mov_b32 v75, 12345
v_mov_b32 v41, 0
global_store_dwordx4 v41, v[60:63], s[8:9]
global_store_dwordx4 v41, v[64:67], s[8:9] offset:16
global_store_dwordx4 v41, v[68:71], s[8:9] offset:32
global_store_dwordx4 v41, v[72:75], s[8:9] offset:48
{name}_nodbg:""")
    k(f"s_cmp_ge_u32 s{sW}, 4\ns_cbranch_scc1 {name}_p4")
    path(True)
    k(f"s_endpgm\n{name}_p4:")
    path(False)
    k(f"{name}_end:")
    return k
```

```python
from asmlib import *
from layout import *
import struct
def fl(x): return "0x%08x" % struct.unpack("<I", struct.pack("<f", x))[0]
MF = "v_mfma_f32_16x16x32_bf16"
def ws_srd(k, d, off, nbytes, ws=6):
    k(f"s_add_u32 s{d}, s{ws}, {off}\ns_addc_u32 s{d+1}, s{ws+1}, 0\ns_mov_b32 s{d+2}, {nbytes}\ns_mov_b32 s{d+3}, 0x20000")
def srd_tail(k, d, nbytes): k(f"s_mov_b32 s{d+2}, {nbytes}\ns_mov_b32 s{d+3}, 0x20000")
S4 = lambda d: f"s[{d}:{d+3}]"

SLOT_A = [0, 45056, 90112]
RING_B = [0, 36864, 90112, 126976]
HH = 90112
CNT = 73728
PHASES = [4, 6, 8]

def build_pf(look=3, nd=2, spread=4, stamp=False, abl="", name="pf", OUTPOL="", WPOL="nt", DPOL="", TPOL="nt", dstage=9, pxor=128, safe=0, XPOL="sc1", TPOLD=""):
    k = K(name, 256, 512, lds=163840, vgpr=256, sgpr=102)
    sG, sU, sD, sX, sP, sF, sS, sH, sO, sV, sI, sT = 8, 12, 16, 20, 24, 28, 32, 36, 40, 44, 48, 52
    sW, sMT, sSL, sRG = 56, 57, 58, 59
    sA, sKW, sKX, sM0a, sM0x, sM0s, sKD, sM0d, sPO, sCG, sRD, sLN, sLoc, sS1 = range(80, 94)
    sF1 = 96; sB = 97; sXC = 98
    vL, vDX, vD0, vD1, vD2, vT0, vT1, vT2 = range(8)
    vXr = [8, 9, 10]; vWA = [11, 12, 13]; vWB = [14, 15, 16]
    vDD, vPO, vHW = 17, 18, 19
    vWD = [20, 21, 22, 23]
    vHR, vHW2, vZ, vQ = 24, 25, 26, 27
    def stb(i):
        if stamp and "bst" in abl: k(f"s_memrealtime s[{60+2*i}:{61+2*i}]")
    def st(i):
        if stamp and "bst" not in abl: k(f"s_memrealtime s[{60+2*i}:{61+2*i}]")
    def put(items):
        for x in items:
            t = x[0] if isinstance(x, tuple) else x
            if "nodma" in abl and " lds" in t and x[1] not in ("A0", "A1"): continue
            if "nop2" in abl and "buffer_store" in t and isinstance(x, tuple) and x[1].startswith("P"): continue
            if "nomfma" in abl and "v_mfma" in t: continue
            if isinstance(x, tuple): k(x[0], tag=x[1])
            else: k(x)
    def spin(lab, load, cond):
        bound = f"s_sub_u32 s100, s100, 1\ns_cbranch_scc1 {lab}_ok\n" if safe else ""
        k(f"{cond}\ns_cbranch_vccz {lab}_ok\n{'s_movk_i32 s100, 20000' if safe else ''}\n{lab}_spin:\n{'s_add_u32 s99, s99, 1' if 'cnt' in abl else ''}\n{bound}{load}\ns_waitcnt vmcnt(0)\n{cond}\ns_cbranch_vccnz {lab}_spin\n{lab}_ok:")
        k.saved.pop(lab + "_spin", None)
    st(0)
    k(f"""
s_load_dwordx2 s[6:7], s[0:1], 72
s_load_dwordx2 s[{sG}:{sG+1}], s[0:1], 32
s_load_dwordx2 s[{sU}:{sU+1}], s[0:1], 40
s_load_dwordx2 s[{sI}:{sI+1}], s[0:1], 0
s_load_dwordx2 s[{sD}:{sD+1}], s[0:1], 48
s_load_dwordx2 s[{sO}:{sO+1}], s[0:1], 56
s_cmp_ge_u32 s2, 256
s_cbranch_scc1 {name}_end
v_lshrrev_b32 v{vT0}, 6, v0
v_and_b32 v{vL}, 63, v0
v_readfirstlane_b32 s{sW}, v{vT0}
s_lshr_b32 s3, s2, 3
s_and_b32 s{sMT}, s3, 15
s_lshr_b32 s{sB}, s3, 4
s_and_b32 s{sXC}, s2, 7
s_lshl_b32 s4, s{sXC}, 1
s_add_u32 s{sSL}, s4, s{sB}
v_lshlrev_b32 v{vDX}, 4, v{vL}
v_mov_b32 v{vZ}, 0
""")
    o = 28
    R = lambda n: n + o
    sS2, sNT, sVB, sXO, sSO = 99, sB, 100, 101, sRD
    L, MB_, AC, TW, G, XX = R(16), R(48), R(64), R(96), R(120), R(160)
    EZ = 90112; ES = EZ + 20480
    g_, n_, vVA, vHS, vRow, vXo, vEW, vSW, vSR = R(2), R(3), R(4), R(5), R(6), R(7), R(9), R(14), R(15)
    t0, t1, t2, t3 = R(10), R(11), R(12), R(13)
    k(f"""
s_lshr_b32 s3, s{sXC}, 2
s_and_b32 s4, s{sMT}, 1
s_cmp_lg_u32 s3, s4
s_cbranch_scc1 {name}_idle
s_and_b32 s3, s{sXC}, 3
s_lshl_b32 s{sS2}, s{sMT}, 2
s_add_u32 s{sS2}, s{sS2}, s3
v_lshrrev_b32 v{g_}, 4, v{vL}
v_and_b32 v{n_}, 15, v{vL}
s_lshl_b32 s3, s{sW}, 4
v_add_u32 v{vVA}, s3, v{n_}
v_lshlrev_b32 v{vVA}, 4, v{vVA}
v_mul_u32_u24 v{t0}, {4*64*ROWB}, v{g_}
v_add_u32 v{vVA}, v{vVA}, v{t0}
s_mul_i32 s{sVB}, s{sS2}, {ROWB}
s_lshl_b32 s3, s{sNT}, 4
v_add_u32 v{vRow}, s3, v{n_}
v_lshl_add_u32 v{vRow}, v{vRow}, 6, s{sS2}
v_mul_u32_u24 v{vXo}, 1152, v{vRow}
v_lshl_add_u32 v{vXo}, v{g_}, 5, v{vXo}
s_lshl_b32 s{sXO}, s{sW}, 7
s_waitcnt lgkmcnt(0)
""")
    ws_srd(k, sV, O_V, N_U)
    k(f"s_cmp_ge_u32 s{sW}, 5\ns_cbranch_scc1 {name}_nov")
    for kk in range(2):
        for t in range(4): k(f"s_add_u32 s3, s{sVB}, {(16*kk+t)*64*ROWB}\nbuffer_load_dwordx4 {vr(L+16*kk+4*t, 4)}, v{vVA}, {S4(sV)}, s3 offen", tag="V")
    k(f"{name}_nov:")
    srd_tail(k, sI, N_H); ws_srd(k, sT, O_TAB, N_TAB)
    k(f"buffer_load_dwordx4 {vr(XX, 4)}, v{vXo}, {S4(sI)}, s{sXO} offen\nbuffer_load_dwordx4 {vr(XX+4, 4)}, v{vXo}, {S4(sI)}, s{sXO} offen offset:16")
    k(f"s_mul_i32 s3, s{sW}, 5120\ns_add_u32 s3, s3, 16384\ns_add_u32 s4, s3, 4096")
    for f in range(5): k(f"buffer_load_dwordx4 {vr(G+4*f, 4)}, v{vDX}, {S4(sT)}, s{3+f//4} offen offset:{(f % 4)*1024}")
    k(f"s_cmp_lg_u32 s{sW}, 5\ns_cbranch_scc1 {name}_no2")
    k(f"buffer_load_dwordx4 {vr(XX+8, 4)}, v{vXo}, {S4(sI)}, 0 offen offset:1024\nbuffer_load_dwordx4 {vr(XX+12, 4)}, v{vXo}, {S4(sI)}, 0 offen offset:1040")
    k(f"s_mov_b32 s3, {(16+40)*1024}\ns_mov_b32 s4, {(16+44)*1024}")
    for f in range(5): k(f"buffer_load_dwordx4 {vr(G+20+4*f, 4)}, v{vDX}, {S4(sT)}, s{3+f//4} offen offset:{(f % 4)*1024}")
    k(f"{name}_no2:\ns_branch {name}_common\n{name}_idle:\ns_mov_b32 s{sS2}, -1\ns_waitcnt lgkmcnt(0)")
    ws_srd(k, sV, O_V, N_U); srd_tail(k, sI, N_H); ws_srd(k, sT, O_TAB, N_TAB)
    k(f"{name}_common:")

    def pattern(vd):
        k(f"""
s_lshl_b32 s4, s3, 6
v_add_u32 v{vT0}, s4, v{vL}
v_mul_u32_u24 v{vT1}, 1821, v{vT0}
v_lshrrev_b32 v{vT1}, 16, v{vT1}
v_mul_u32_u24 v{vT2}, 36, v{vT1}
v_sub_u32 v{vT0}, v{vT0}, v{vT2}
v_lshrrev_b32 v{vT2}, 2, v{vT1}
v_and_b32 v{vT2}, 2, v{vT2}
v_xor_b32 v{vT0}, v{vT0}, v{vT2}
v_lshlrev_b32 v{vT0}, 4, v{vT0}
v_and_b32 v{vT2}, 24, v{vT1}
v_add_u32 v{vT1}, v{vT1}, v{vT2}
v_mul_u32_u24 v{vT1}, 9216, v{vT1}
v_add_u32 v{vd}, v{vT0}, v{vT1}
""")
    k(f"s_and_b32 s{sRG}, s{sW}, 1\ns_bfe_u32 s{sA}, s{sW}, 0x10001\ns_and_b32 s{sCG}, s{sW}, 3")
    k(f"s_lshl_b32 s3, s{sW}, 1"); pattern(vD0)
    k(f"s_add_u32 s3, s3, 1"); pattern(vD1)
    k(f"s_add_u32 s3, s{sRG}, 16"); pattern(vD2)
    k(f"""
s_mul_i32 s{sKW}, s{sSL}, 576
s_lshl_b32 s3, s{sMT}, 3
s_add_u32 s3, s3, s{sW}
s_mul_i32 s{sKX}, s3, 18432
s_lshl_b32 s{sM0x}, s{sW}, 10
s_lshl_b32 s{sM0a}, s{sW}, 11
s_add_u32 s{sM0a}, s{sM0a}, 8192
s_mul_i32 s3, s{sA}, 18432
s_lshl_b32 s4, s{sRG}, 10
s_add_u32 s3, s3, s4
s_add_u32 s{sM0s}, s3, {8192+16*1024}
s_cmp_eq_u32 s{sA}, 0
s_cselect_b32 s{sS}, s{sG}, s{sU}
s_cselect_b32 s{sS+1}, s{sG+1}, s{sU+1}
""")
    for d in (sG, sU, sD, sS): srd_tail(k, d, N_W)
    srd_tail(k, sO, N_H)
    ws_srd(k, sX, O_XF, N_XF); ws_srd(k, sP, O_P, N_P); ws_srd(k, sH, O_H, N_H); ws_srd(k, sF, O_FLG, N_FLG)
    def dmaX(s):
        return [(f"s_add_u32 m0, s{sM0x}, {SLOT_A[s % 3]}\ns_add_u32 s94, s{sKX}, {s*1024}\nbuffer_load_dwordx4 v{vDX}, {S4(sX)}, s94 offen {XPOL} lds", f"A{s}")]
    def dmaW(s, six):
        o = SLOT_A[s % 3]
        g = [f"s_add_u32 m0, s{sM0a}, {o}\ns_add_u32 s95, s{sKW}, {((s >> 1)*64 + (s & 1)*8)*9216}\nbuffer_load_dwordx4 v{vD0}, {S4(sG)}, s95 offen {WPOL} lds",
             f"s_add_u32 m0, s{sM0a}, {o+1024}\nbuffer_load_dwordx4 v{vD1}, {S4(sG)}, s95 offen {WPOL} lds",
             f"s_add_u32 m0, s{sM0a}, {o+18432}\nbuffer_load_dwordx4 v{vD0}, {S4(sU)}, s95 offen {WPOL} lds",
             f"s_add_u32 m0, s{sM0a}, {o+18432+1024}\nbuffer_load_dwordx4 v{vD1}, {S4(sU)}, s95 offen {WPOL} lds"]
        if six: g.append(f"s_add_u32 m0, s{sM0s}, {o}\nbuffer_load_dwordx4 v{vD2}, {S4(sS)}, s95 offen {WPOL} lds")
        return [(x, f"A{s}") for x in g]
    def dmaB(u, five):
        o = RING_B[u % 4]
        return [(f"s_add_u32 m0, s{sM0d}, {o+i*1024}\ns_add_u32 s94, s{sKD}, {i*8*1152+u*128}\nbuffer_load_dwordx4 v{vDD}, {S4(sD)}, s94 offen {DPOL} lds", f"B{u}") for i in range(4 if five else 5)]
    for s in (0, 1):
        put(dmaW(s, False))
        k(f"s_cmp_lt_u32 s{sW}, 4\ns_cbranch_scc1 {name}_w{s}")
        put(dmaW(s, True)[4:])
        k(f"{name}_w{s}:")
    k(f"""
s_getreg_b32 s{sLoc}, hwreg(HW_REG_XCC_ID, 0, 4)
s_add_u32 s{sLoc}, s{sLoc}, 1
v_mov_b32 v{vQ}, s{sLoc}
s_lshl_b32 s3, s2, 9
s_lshl_b32 s4, s{sCG}, 7
s_add_u32 s3, s3, s4
s_add_u32 s{sF1}, s3, {F_1}
s_cmp_lt_u32 s{sW}, 4
s_cbranch_scc1 {name}_noxid
buffer_store_dword v{vQ}, v{vZ}, {S4(sF)}, s{sF1} offen offset:4 sc1
{name}_noxid:

""")
    def touch(mats, lab, dst):
        k(f"""
s_lshr_b32 s3, s2, 3
s_lshl_b32 s3, s3, 3
s_add_u32 s3, s3, s{sW}
s_cmp_ge_u32 s3, {81*len(mats)}
s_cbranch_scc1 {lab}_x
s_cmp_ge_u32 s3, 81
s_cselect_b32 s4, 81, 0
s_sub_u32 s4, s3, s4
v_lshl_add_u32 v{vT0}, s4, 6, v{vL}
v_mul_u32_u24 v{vT1}, 7282, v{vT0}
v_lshrrev_b32 v{vT1}, 16, v{vT1}
v_mul_u32_u24 v{vT2}, 9, v{vT1}
v_sub_u32 v{vT2}, v{vT0}, v{vT2}
v_mul_u32_u24 v{vT1}, {9216 if mats[0] != sD else 1152}, v{vT1}
v_lshl_add_u32 v{vT1}, v{vT2}, 7, v{vT1}
s_mul_i32 s4, s{sXC}, {1152 if mats[0] != sD else 576*1152}
""")
        if len(mats) == 2: k(f"s_cmp_ge_u32 s3, 81\ns_cbranch_scc1 {lab}_u")
        k(f"buffer_load_dword v{dst}, v{vT1}, {S4(mats[0])}, s4 offen {TPOL if len(mats) == 2 else TPOLD}")
        if len(mats) == 2: k(f"s_branch {lab}_x\n{lab}_u:\nbuffer_load_dword v{dst}, v{vT1}, {S4(mats[1])}, s4 offen {TPOL}")
        k(f"{lab}_x:")
    if "notouch" not in abl: touch([sG, sU], f"{name}_tg", 28)
    st(1)
    k(f"s_cmp_eq_u32 s{sS2}, -1\ns_cbranch_scc1 {name}_p3done")
    k(f"s_cmp_ge_u32 s{sW}, 5\ns_cbranch_scc1 {name}_noA")
    k(f"""
v_cvt_f32_u32 v{t0}, v{vRow}
v_mul_f32 v{t0}, {fl(1/2048)}, v{t0}
v_cvt_f32_u32 v{t1}, v{g_}
v_mul_f32 v{t1}, 4.0, v{t1}
v_mul_f32 v{vEW}, v{t0}, v{t1}
""")
    for kk in range(2):
        for t in range(4):
            k(f"""v_fmamk_f32 v{t2}, v{t0}, {fl(float(16*kk+t))}, v{vEW}
v_cos_f32 v{t3}, v{t2}
v_sin_f32 v{t2}, v{t2}
v_cvt_pk_bf16_f32 v{MB_+4*kk+t}, v{t3}, -v{t2}
v_cvt_pk_bf16_f32 v{MB_+8+4*kk+t}, v{t2}, v{t3}""")
    tw = [f"s_lshl_b32 s3, s{sW}, 4", f"v_cvt_f32_u32 v{t0}, s3", f"v_add_f32 v{t1}, v{t1}, v{t0}"]
    for r in range(4):
        if r: tw.append(f"v_add_f32 v{t1}, 1.0, v{t1}")
        for q in range(1, 4):
            tw += [f"v_mul_f32 v{t2}, {fl(q/576)}, v{t1}", f"v_cos_f32 v{TW+6*r+2*q-2}, v{t2}", f"v_sin_f32 v{TW+6*r+2*q-1}, v{t2}"]
    put(tw[:22])
    st(2)
    for kk in range(2):
        for a in range(4):
            for b in range(a+1, 4): k(f"v_swap_b32 v{L+16*kk+4*a+b}, v{L+16*kk+4*b+a}")
    mf = []
    for m in (0, 2, 1, 3):
        for kk in range(2):
            for c in range(2):
                a = AC+8*m+4*c
                mf.append(f"{MF} {vr(a, 4)}, {vr(L+16*kk+4*m, 4)}, {vr(MB_+8*c+4*kk, 4)}, {'0' if kk == 0 else vr(a, 4)}")
    put(interleave(mf, tw[22:]))
    Z = L; T = L+16
    for r in range(4):
        Rr = lambda m: AC+8*m+r
        I = lambda m: AC+8*m+4+r
        a, b, c, d, u = T, T+2, T+4, T+6, T+8
        k(f"""
v_add_f32 v{a}, v{Rr(0)}, v{Rr(2)}
v_add_f32 v{a+1}, v{I(0)}, v{I(2)}
v_sub_f32 v{b}, v{Rr(0)}, v{Rr(2)}
v_sub_f32 v{b+1}, v{I(0)}, v{I(2)}
v_add_f32 v{c}, v{Rr(1)}, v{Rr(3)}
v_add_f32 v{c+1}, v{I(1)}, v{I(3)}
v_sub_f32 v{d}, v{Rr(1)}, v{Rr(3)}
v_sub_f32 v{d+1}, v{I(1)}, v{I(3)}
v_add_f32 v{u}, v{a}, v{c}
v_add_f32 v{u+1}, v{a+1}, v{c+1}
v_sub_f32 v{u+2}, v{b}, v{d+1}
v_add_f32 v{u+3}, v{b+1}, v{d}
v_sub_f32 v{u+4}, v{a}, v{c}
v_sub_f32 v{u+5}, v{a+1}, v{c+1}
v_add_f32 v{u+6}, v{b}, v{d+1}
v_sub_f32 v{u+7}, v{b+1}, v{d}
v_cvt_pk_bf16_f32 v{Z+r}, v{u}, v{u+1}
""")
        for q in range(1, 4):
            cc = TW+6*r+2*q-2
            k(f"v_mul_f32 v{T+2*q}, v{cc}, v{u+2*q}\nv_mul_f32 v{T+2*q+1}, v{cc}, v{u+2*q+1}")
        for q in range(1, 4):
            ss = TW+6*r+2*q-1
            k(f"v_fma_f32 v{T+2*q}, -v{ss}, v{u+2*q+1}, v{T+2*q}\nv_fmac_f32 v{T+2*q+1}, v{ss}, v{u+2*q}")
        for q in range(1, 4): k(f"v_cvt_pk_bf16_f32 v{Z+4*q+r}, v{T+2*q}, v{T+2*q+1}")
    k(f"s_lshl_b32 s3, s{sW}, 10\ns_add_u32 s3, s3, {EZ}\nv_add_u32 v{vEW}, s3, v{vDX}")
    for q in range(4): k(f"ds_write_b128 v{vEW}, {vr(Z+4*q, 4)} offset:{q*5120}")
    k(f"{name}_noA:")
    k(f"""
v_lshlrev_b32 v{vSR}, 6, v{n_}
v_add_u32 v{vSR}, {ES}, v{vSR}
v_lshrrev_b32 v{vSW}, 1, v{g_}
v_lshl_add_u32 v{vSW}, v{vSW}, 2, v{vSR}
s_lshl_b32 s3, s{sW}, 3
v_add_u32 v{vSW}, s3, v{vSW}
v_lshrrev_b32 v{vHS}, 1, v{n_}
v_lshlrev_b32 v{vHS}, 7, v{vHS}
v_and_b32 v{t0}, 1, v{n_}
v_lshl_add_u32 v{vHS}, v{t0}, 6, v{vHS}
v_lshl_add_u32 v{vHS}, v{g_}, 4, v{vHS}
v_add_u32 v{vEW}, {EZ}, v{vDX}
s_lshl_b32 s3, s{sS2}, 1
s_add_u32 s3, s3, s{sNT}
s_mul_i32 s4, s3, 18432
s_lshl_b32 s5, s{sW}, 11
s_add_u32 s{sSO}, s4, s5
s_add_u32 s{sVB}, s4, 16384
s_and_b32 s3, s3, 7
s_lshl_b32 s3, s3, 2
s_lshl_b32 s4, s{sMT}, 11
s_add_u32 s{sXO}, s3, s4
s_mov_b32 s5, 0xffff0000
""")
    A2 = AC; ZR = L
    def final(nmt):
        so = [sSO, sVB]
        for mt in range(nmt):
            for r in range(4):
                for q in range(4):
                    src = XX+8*mt+2*r+(q >> 1); dst = A2+16*mt+4*q+r
                    k(f"v_and_b32 v{dst}, s5, v{src}" if q & 1 else f"v_lshlrev_b32 v{dst}, 16, v{src}")
        k.wait_lg(); k("s_barrier")
        st(3)
        idx = [(jt, q) for jt in range(5) for q in range(4)]
        rd = lambda i: f"ds_read_b128 {vr(ZR+4*(i % 8), 4)}, v{vEW} offset:{idx[i][1]*5120+idx[i][0]*1024}"
        for i in range(7): k(rd(i))
        for i, (jt, q) in enumerate(idx):
            for mt in range(nmt):
                a = A2+16*mt+4*q
                k(f"{MF} {vr(a, 4)}, {vr(G+20*mt+4*jt, 4)}, {vr(ZR+4*(i % 8), 4)}, {vr(a, 4)}")
            if i+7 < 20: k(rd(i+7))
        first = True
        for mt in range(nmt):
            for q in range(4):
                for p in range(2):
                    a = A2+16*mt+4*q+2*p
                    if first: k(f"v_mov_b64 {vr(t0, 2)}, {vr(a, 2)}\nv_pk_mul_f32 {vr(t2, 2)}, {vr(a, 2)}, {vr(a, 2)}"); first = False
                    else: k(f"v_pk_add_f32 {vr(t0, 2)}, {vr(t0, 2)}, {vr(a, 2)}\nv_pk_fma_f32 {vr(t2, 2)}, {vr(a, 2)}, {vr(a, 2)}, {vr(t2, 2)}")
        k(f"""
v_add_f32 v{t0}, v{t0}, v{t1}
v_add_f32 v{t2}, v{t2}, v{t3}
v_permlane32_swap_b32 v{t0}, v{t2}
v_add_f32 v{t0}, v{t0}, v{t2}
v_mov_b32 v{t1}, v{t0}
v_permlane16_swap_b32 v{t0}, v{t1}
v_add_f32 v{t0}, v{t0}, v{t1}
ds_write_b32 v{vSW}, v{t0}
""")
        def pack(dst, mt, h):
            for p in range(4):
                r, q = 2*h+(p >> 1), 2*(p & 1)
                k(f"v_cvt_pk_bf16_f32 v{dst+p}, v{A2+16*mt+4*q+r}, v{A2+16*mt+4*(q+1)+r}")
        for mt in range(nmt):
            for h in range(2): pack(XX+8*mt+4*h, mt, h)
        k.wait_lg(); k("s_barrier")
        for w in range(4): k(f"ds_read_b128 {vr(L+4*w, 4)}, v{vSR} offset:{16*w}")
        for mt in range(nmt):
            for h in range(2): k(f"buffer_store_dwordx4 {vr(XX+8*mt+4*h, 4)}, v{vHS}, {S4(sH)}, s{so[mt]} offen offset:{h*1024} sc1")
        for a, b in ((0, 2), (4, 6), (8, 10), (12, 14), (0, 4), (8, 12), (0, 8)):
            k(f"v_pk_add_f32 {vr(L+a, 2)}, {vr(L+a, 2)}, {vr(L+b, 2)}")
        k(f"""
v_mul_f32 v{t0}, {fl(1/576)}, v{L}
v_mul_f32 v{t1}, v{t0}, v{t0}
v_fmamk_f32 v{t2}, v{L+1}, {fl(1/576)}, v{t1}
v_fma_f32 v{t2}, -2.0, v{t1}, v{t2}
v_max_f32 v{t2}, 0, v{t2}
v_add_f32 v{t2}, {fl(1e-5)}, v{t2}
v_rsq_f32 v{t2}, v{t2}
v_mul_f32 v{t2}, {fl(LOG2E)}, v{t2}
v_mul_f32 v{t0}, -v{t0}, v{t2}
v_mov_b32 v{t3}, v{t2}
v_mov_b32 v{t1}, v{t0}
""")
        for mt in range(nmt):
            for q in range(4):
                for p in range(2):
                    a = A2+16*mt+4*q+2*p
                    k(f"v_pk_fma_f32 {vr(a, 2)}, {vr(a, 2)}, {vr(t2, 2)}, {vr(t0, 2)}")
            for h in range(2):
                pack(L+8*mt+4*h, mt, h)
                k(f"buffer_store_dwordx4 {vr(L+8*mt+4*h, 4)}, v{vDX}, {S4(sX)}, s{so[mt]} offen offset:{h*1024} sc1")
    k(f"s_cmp_eq_u32 s{sW}, 5\ns_cbranch_scc1 {name}_fin2")
    final(1)
    k(f"s_branch {name}_fin\n{name}_fin2:")
    final(2)
    k(f"""{name}_fin:
v_lshl_add_u32 v{t0}, v{vL}, 7, s{sXO}
v_mov_b32 v{t1}, {OOB}
v_cmp_gt_u32 vcc, 16, v{vL}
v_cndmask_b32 v{t0}, v{t1}, v{t0}, vcc
v_mov_b32 v{t1}, 1
s_waitcnt vmcnt(0)
s_barrier
s_cmp_lg_u32 s{sW}, 0
s_cbranch_scc1 {name}_p3done
buffer_store_dword v{t1}, v{t0}, {S4(sF)}, 0 offen sc1
{name}_p3done:
""")
    st(4)

    def path(five):
        nt5 = 5 if five else 4
        nf = 2*nt5
        P = "a" if five else "b"
        k(f"""
s_lshl_b32 s3, s{sMT}, 4
s_add_u32 s3, s3, s{sSL}
s_lshl_b32 s3, s3, 7
s_lshl_b32 s4, s{sW}, 2
s_add_u32 s{sLN}, s3, s4
buffer_load_dword v{vQ}, v{vZ}, {S4(sF)}, s{sLN} offen sc1
v_lshrrev_b32 v{vT0}, 4, v{vL}
v_bfe_u32 v{vT1}, v{vL}, 2, 2
v_lshl_add_u32 v{vT2}, v{vT0}, 3, v{vT1}
v_mul_u32_u24 v{vT2}, 576, v{vT2}
v_and_b32 v{vWB[0]}, 3, v{vL}
v_lshl_add_u32 v{vT2}, v{vWB[0]}, 3, v{vT2}
s_mul_i32 s3, s{sA}, 9
s_add_u32 s3, s3, {0 if five else 5}
s_lshl_b32 s4, s3, 5
s_add_u32 s4, s4, 8192
v_add_u32 v{vT2}, s4, v{vT2}
s_and_b32 s3, s3, 1
s_cmp_eq_u32 s3, 0
s_cselect_b32 s3, 32, -32
v_and_b32 v{vWB[0]}, 1, v{vT0}
v_mul_i32_i24 v{vWB[0]}, s3, v{vWB[0]}
v_add_u32 v{vWA[0]}, v{vT2}, v{vWB[0]}
v_sub_u32 v{vWB[0]}, v{vT2}, v{vWB[0]}
s_lshl_b32 s3, s{sRG}, 12
v_add_u32 v{vXr[0]}, s3, v{vDX}
""")
        for i in (1, 2):
            k(f"v_add_u32 v{vXr[i]}, {SLOT_A[i]}, v{vXr[0]}\nv_add_u32 v{vWA[i]}, {SLOT_A[i]}, v{vWA[0]}\nv_add_u32 v{vWB[i]}, {SLOT_A[i]}, v{vWB[0]}")
        k(f"""
v_lshrrev_b32 v{vDD}, 3, v{vL}
v_mul_u32_u24 v{vDD}, 1152, v{vDD}
v_bfe_u32 v{vT2}, v{vL}, 1, 2
v_xor_b32 v{vT2}, v{vT2}, v{vT0}
v_lshl_add_u32 v{vDD}, v{vT2}, 5, v{vDD}
v_and_b32 v{vT2}, 1, v{vL}
v_lshl_add_u32 v{vDD}, v{vT2}, 4, v{vDD}
s_mul_i32 s3, s{sW}, {4 if five else 5}
s_sub_u32 s3, s3, {0 if five else 4}
s_lshl_b32 s{sM0d}, s3, 10
s_mul_i32 s3, s3, {8*1152}
s_mul_i32 s{sKD}, s{sSL}, {288*1152}
s_add_u32 s{sKD}, s{sKD}, s3
v_lshl_add_u32 v{vWD[0]}, v{vT0}, 2, v{vT1}
v_bfe_u32 v{vT2}, v{vWD[0]}, 1, 2
v_xor_b32 v{vT2}, s{sCG}, v{vT2}
v_lshlrev_b32 v{vT2}, 5, v{vT2}
v_lshl_add_u32 v{vWD[0]}, v{vWD[0]}, 7, v{vT2}
v_and_b32 v{vT2}, 3, v{vL}
v_lshl_add_u32 v{vWD[0]}, v{vT2}, 3, v{vWD[0]}
v_add_u32 v{vWD[1]}, {RING_B[1]}, v{vWD[0]}
v_add_u32 v{vWD[2]}, {RING_B[2]}, v{vWD[0]}
v_add_u32 v{vWD[3]}, {RING_B[3]}, v{vWD[0]}
s_xor_b32 s3, s{sB}, {0 if five else 1}
s_mul_i32 s3, s3, {4*9*1024}
s_add_u32 s3, s3, {HH}
v_add_u32 v{vHR}, s3, v{vDX}
s_mul_i32 s3, s{sRG}, {4*9*1024}
s_add_u32 s3, s3, {HH}
s_mul_i32 s4, s{sA}, 9
s_add_u32 s4, s4, {0 if five else 5}
s_lshr_b32 s5, s4, 1
s_lshl_b32 s5, s5, 10
s_add_u32 s3, s3, s5
s_and_b32 s4, s4, 1
s_lshl_b32 s5, s4, 3
s_add_u32 s5, s5, s3
v_add_u32 v{vHW}, s5, v{vDX}
s_mul_i32 s5, s4, 1024
s_add_u32 s5, s5, s3
s_xor_b32 s4, s4, 1
s_lshl_b32 s4, s4, 3
s_add_u32 s5, s5, s4
v_add_u32 v{vHW2}, s5, v{vDX}
v_bfe_u32 v{vT2}, v{vL}, 1, 3
v_lshlrev_b32 v{vPO}, 7, v{vT2}
v_and_b32 v{vT2}, 1, v{vL}
v_lshl_add_u32 v{vPO}, v{vT2}, 6, v{vPO}
v_lshl_add_u32 v{vPO}, v{vT0}, 4, v{vPO}
s_lshl_b32 s3, s{sMT}, 1
s_add_u32 s3, s3, s{sB}
s_mul_i32 s{sRD}, s3, {8*9*8192}
s_mul_i32 s3, s{sXC}, {9*8192}
s_add_u32 s{sPO}, s{sRD}, s3
s_lshl_b32 s4, s{sCG}, 11
s_add_u32 s{sPO}, s{sPO}, s4
s_xor_b32 s3, s2, {pxor if five else 0}
s_lshl_b32 s3, s3, 15
s_add_u32 s3, s3, s4
s_add_u32 s{sS1}, s3, {O_S1}
s_xor_b32 s101, s{sF1}, {pxor << 9}
""")
        sF1p = 101
        spin(f"{name}_{P}x", f"buffer_load_dword v{vQ}, v{vZ}, {S4(sF)}, s{sLN} offen sc1", f"v_cmp_eq_u32 vcc, 0, v{vQ}")
        put(dmaX(0)); put(dmaX(1))
        st(5)
        ACC = 256-nf*16; XB = [64, 80]; WR = 32
        def acc(f, nt): return ACC + f*16 + nt*4
        def wreg(s, f): return WR + 4*((s*nf+f) % 8)
        def wread(s, f):
            i, u = f >> 1, f & 1
            va = (vWA if i % 2 == 0 else vWB)[s % 3]; d = wreg(s, f)
            return [f"ds_read_b64_tr_b16 v[{d+2*h}:{d+2*h+1}], v{va} offset:{h*4*576 + i*32 + u*18432}" for h in range(2)]
        def mfa(s, f):
            w = wreg(s, f)
            return [f"{MF} {vr(acc(f, nt), 4)}, {vr(w, 4)}, {vr(XB[s % 2]+4*nt, 4)}, {'0' if s == 0 else vr(acc(f, nt), 4)}" for nt in range(4)]
        vRD, vHO, vOO, vFL, vFS, SEL, vFV = 2, 3, 4, 8, 9, 12, 5
        late = f"""v_mov_b32 v{vFS}, {OOB}
s_lshl_b32 s4, s{sMT}, 11
s_lshl_b32 s5, s{sB}, 7
s_add_u32 s4, s4, s5
s_add_u32 s4, s4, {F_2}""".split("\n")
        if five:
            late += f"""s_lshl_b32 s5, s{sXC}, 2
s_add_u32 s5, s5, s4
v_lshl_add_u32 v5, v{vL}, 8, s5
v_cmp_gt_u32 vcc, 8, v{vL}
v_cndmask_b32 v{vFS}, v{vFS}, v5, vcc
v_mov_b32 v{vFL}, {CNT}""".split("\n")
        else:
            late += f"""s_lshl_b32 s5, s{sXC}, 8
s_add_u32 s5, s5, s4
v_and_b32 v5, 7, v{vL}
v_lshl_add_u32 v{vFL}, v5, 2, s5
v_lshrrev_b32 v5, 4, v{vL}
v_and_b32 v6, 3, v{vL}
v_bfe_u32 v7, v{vL}, 3, 1
v_mul_u32_u24 v{vRD}, {9*8192}, v5
v_lshl_add_u32 v{vRD}, v7, 11, v{vRD}
v_and_b32 v{vHO}, 7, v{vL}
v_lshl_add_u32 v{vRD}, v{vHO}, 4, v{vRD}
s_lshl_b32 s4, s{sRG}, 1
v_add_u32 v7, s4, v7
s_lshl_b32 s4, s{sA}, 10
s_add_u32 s{sRD}, s{sRD}, s4
s_lshl_b32 s4, s{sRG}, 12
s_add_u32 s{sRD}, s{sRD}, s4
s_lshl_b32 s5, s{sXC}, 7
s_add_u32 s{sRD}, s{sRD}, s5
s_lshl_b32 s{sLN}, s{sMT}, 2
s_lshl_b32 s3, s{sB}, 1
s_add_u32 s{sLN}, s{sLN}, s3
s_add_u32 s{sLN}, s{sLN}, s{sA}
s_lshl_b32 s3, s{sLN}, 1
v_add_u32 v{vHO}, s3, v5
v_mul_u32_u24 v{vHO}, 18432, v{vHO}
v_lshrrev_b32 v11, 1, v6
v_lshl_add_u32 v{vHO}, v11, 10, v{vHO}
v_lshl_add_u32 v{vHO}, v7, 4, v{vHO}
v_and_b32 v11, 1, v6
v_lshl_add_u32 v{vHO}, v11, 3, v{vHO}
v_add_u32 v{vHO}, s5, v{vHO}
v_bfe_u32 v11, v{vL}, 2, 1
v_lshl_add_u32 v{vHO}, v11, 6, v{vHO}
s_lshl_b32 s4, s{sXC}, 1
v_lshl_add_u32 v{vOO}, v5, 4, s4
v_add_u32 v{vOO}, v{vOO}, v11
v_lshl_add_u32 v{vOO}, v{vOO}, 6, s{sLN}
v_mul_u32_u24 v{vOO}, 1152, v{vOO}
v_lshl_add_u32 v{vOO}, v7, 5, v{vOO}
v_lshl_add_u32 v{vOO}, v6, 3, v{vOO}
v_cmp_gt_u32 vcc, 32, v{vL}
v_cndmask_b32 v{vHO}, v{vFS}, v{vHO}, vcc
v_cndmask_b32 v{vOO}, v{vFS}, v{vOO}, vcc
s_mov_b32 s{sLN}, {LN2!r}""".split("\n")
        SK = 72
        sel = f"""v_and_b32 v5, 1, v{vL}
v_lshlrev_b32 v5, 4, v5
s_movk_i32 s3, 0x3f80
v_lshlrev_b32 v5, v5, s3
v_bfe_u32 v6, v{vL}, 1, 3""".split("\n")
        if five:
            sel += [f"v_lshrrev_b32 v7, 3, v{vL}", f"v_and_b32 v7, 6, v7", f"v_sub_u32 v6, v6, v7"]
            for i in range(2): sel += [f"v_cmp_eq_u32 vcc, {i}, v6", f"v_cndmask_b32 v{SK+2+i}, 0, v5, vcc"]
            sel += [f"v_mov_b32 v{SK+i}, 0" for i in (0, 1, 4, 5)]
            sel += [f"ds_write_b64 v{vFL}, v[{SK}:{SK+1}]", f"ds_write_b64 v{vFL}, v[{SK}:{SK+1}] offset:8"]
        else:
            for i in range(4): sel += [f"v_cmp_eq_u32 vcc, {i}, v6", f"v_cndmask_b32 v{SEL+i}, 0, v5, vcc"]
        def split_m0(d):
            out = []
            for t, tag in d:
                ls = t.split("\n")
                out += ["\n".join(ls[:-1]), (ls[-1], tag)]
            return out
        def spread_in(seq, dma, every):
            items = split_m0(dma); out = []; n = 0; j = 0
            for x in seq:
                out.append(x)
                if isinstance(x, str) and x.startswith("v_mfma"):
                    n += 1
                    if j < len(items) and (j % 2 == 1 or n % every == every-1): out.append(items[j]); j += 1
            return out + items[j:]
        k.wait_lg(); k.wait_vm("A0"); k("s_barrier")
        st(6)
        for s in range(18):
            for nt in range(4): k(f"ds_read_b128 {vr(XB[s % 2]+4*nt, 4)}, v{vXr[s % 3]} offset:{nt*1024}")
            for f in range(look): put(wread(s, f))
            dma = dmaX(s+2) + dmaW(s+2, not five) if s+2 < 18 else dmaB(s-16, five)
            seq = sum((mfa(s-1, f) for f in range(nf-nd, nf)), []) if s > 0 else []
            for f in range(nf-nd):
                extra = late[f*len(late)//(nf-nd):(f+1)*len(late)//(nf-nd)] if s == 17 else []
                seq += interleave(mfa(s, f), (wread(s, f+look) if f+look < nf else []) + extra)
            put(spread_in(seq, dma, spread))
            if s == dstage and "notouch" not in abl: touch([sD], f"{name}_{P}td", 29)
            if s == dstage+2:
                k(f"s_lshl_b32 s3, s2, 15\ns_lshl_b32 s4, s{sW}, 12\ns_add_u32 s3, s3, s4\ns_add_u32 s3, s3, {O_S1}\nv_lshlrev_b32 v{vT0}, 6, v{vL}\nbuffer_load_dword v30, v{vT0}, {S4(sF)}, s3 offen")
                if not five: k(f"buffer_load_dword v{vQ}, v{vZ}, {S4(sF)}, s{sF1p} offen offset:4 sc1")
            if s == dstage+4 and not five:
                spin(f"{name}_xid", f"buffer_load_dword v{vQ}, v{vZ}, {S4(sF)}, s{sF1p} offen offset:4 sc1", f"v_cmp_eq_u32 vcc, 0, v{vQ}")
                k(f"v_readfirstlane_b32 s3, v{vQ}\ns_cmp_eq_u32 s3, s{sLoc}\ns_cselect_b32 s{sLoc}, {0 if 'remote' in abl else 1}, 0")
            k.wait_lg(); k.wait_vm(f"A{s+1}"); k("s_barrier")
        put(sum((mfa(17, f) for f in range(nf-nd, nf)), []))
        st(7)
        for i in range(nt5):
            for nt in range(4):
                g, u = acc(2*i, nt), acc(2*i+1, nt)
                for r in range(4): k(f"v_exp_f32 v{g+r}, -v{g+r}")
                for r in range(4): k(f"v_add_f32 v{g+r}, 1.0, v{g+r}")
                for r in range(4): k(f"v_rcp_f32 v{g+r}, v{g+r}")
                for r in range(4): k(f"v_mul_f32 v{g+r}, v{g+r}, v{u+r}")
                k(f"v_cvt_pk_bf16_f32 v{u}, v{g}, v{g+1}\nv_cvt_pk_bf16_f32 v{u+1}, v{g+2}, v{g+3}")
                k(f"ds_write_b64 v{vHW if i % 2 == 0 else vHW2}, {vr(u, 2)} offset:{nt*9*1024 + (i >> 1)*1024}")
        put(sel)
        k.wait_lg(); k.wait_vm("B0"); k("s_barrier")
        st(8); stb(0)
        if "cnt" in abl: k("s_mov_b32 s99, 0")
        HB = 112; AB = [80, 96]; WG = [28, 40, 52]; SD = 64
        def hreg(kp, nt): return HB + (kp*4+nt)*4
        def wgreg(gi, c): return WG[gi] + 4*c
        def wdread(u, gi):
            out = []
            for c in range(3):
                d = wgreg(gi, c); kp = gi*3+c
                out += [f"ds_read_b64_tr_b16 v[{d+2*h}:{d+2*h+1}], v{vWD[u % 4]} offset:{kp*4096 + h*2048}" for h in range(2)]
            return out
        def mfb(u, gi):
            out = []
            for nt in range(4):
                a = AB[u % 2]+4*nt
                for c in range(3):
                    out.append(f"{MF} {vr(a, 4)}, {vr(wgreg(gi, c), 4)}, {vr(hreg(gi*3+c, nt), 4)}, {'0' if gi == 0 and c == 0 else vr(a, 4)}")
            return out
        cvt = lambda u, h: [f"v_cvt_pk_bf16_f32 v{AB[u % 2]+8*h+q}, v{AB[u % 2]+8*h+2*q}, v{AB[u % 2]+8*h+2*q+1}" for q in range(4)]
        hread = lambda kp: [f"ds_read_b128 {vr(hreg(kp, nt), 4)}, v{vHR} offset:{(nt*9+kp)*1024}" for nt in range(4)]
        dmat = lambda t: (dmaB(2, five) + dmaB(3, five)) if t == 1 else (dmaB(t+2, five) if 2 <= t <= 6 else [])
        def endslot(t):
            if t <= 7: k.wait_lg(); k.wait_vm(f"B{t+1}"); k("s_barrier")
            if t < 9: stb(t+1)
        def both(lab, text, tag):
            k(f"s_cmp_eq_u32 s{sLoc}, 0\ns_cbranch_scc1 {lab}_r")
            q0 = k.seq
            k(text.replace("POL", ""), tag=tag)
            k(f"s_branch {lab}_d\n{lab}_r:")
            k.seq = q0
            k(text.replace("POL", "sc1"), tag=tag)
            k.seq += 1
            k(f"{lab}_d:")
        if not five:
            def send(u): both(f"{name}_s{u}", f"s_add_u32 s3, s{sS1}, {(u % 4)*8192}\n" + "\n".join(f"buffer_store_dwordx4 {vr(AB[u % 2]+8*h, 4)}, v{vDX}, {S4(sF)}, s3 offen offset:{h*1024} POL" for h in range(2)), f"S{u}")
            def flag(u):
                k.wait_vm(f"S{u}")
                k(f"v_mov_b32 v{vFV}, {u+1}")
                both(f"{name}_f{u}", f"buffer_store_dword v{vFV}, v{vZ}, {S4(sF)}, s{sF1} offen POL", "L")
            for t in range(9):
                put(wdread(t, 0))
                if t == 0:
                    for kp in range(3): put(hread(kp))
                    put(interleave(mfb(0, 0), wdread(0, 1) + hread(3)+hread(4)+hread(5)))
                    put(interleave(mfb(0, 1), wdread(0, 2) + hread(6)+hread(7)+hread(8)))
                else:
                    put(spread_in(mfb(t-1, 2), dmat(t), 2))
                    g0 = mfb(t, 0)
                    put(interleave(g0[:8], wdread(t, 1)[:2] + cvt(t-1, 0) + wdread(t, 1)[2:4] + cvt(t-1, 1) + wdread(t, 1)[4:]))
                    send(t-1)
                    put(g0[8:])
                    g1 = mfb(t, 1)
                    put(interleave(g1[:6], wdread(t, 2)))
                    flag(t-1); put(g1[6:])
                endslot(t)
            poll = lambda ph, tv: f"s_mov_b32 s3, {ph*32768}\nbuffer_load_dword v{tv}, v{vFL}, {S4(sF)}, s3 offen sc1"
            k(poll(0, 10))
            put(mfb(8, 2)); put(cvt(8, 0) + cvt(8, 1)); send(8); flag(8)
            st(9)
            home = lambda r: (HB+16*r, HB+16*r+8, HB+16*r+12)
            def rloads(r):
                RB, HV, DA = home(r)
                for pg in range(2): k(f"s_add_u32 s3, s{sRD}, {r*8192 + pg*4*9*8192}\nbuffer_load_dwordx4 {vr(RB+4*pg, 4)}, v{vRD}, {S4(sP)}, s3 offen sc1")
                k(f"s_movk_i32 s3, {r*2048}\nbuffer_load_dwordx2 {vr(HV, 2)}, v{vHO}, {S4(sH)}, s3 offen sc1")
            def rsum(r):
                RB, HV, DA = home(r)
                for pg in range(2): k(f"{MF} {vr(DA, 4)}, {vr(SEL, 4)}, {vr(RB+4*pg, 4)}, {'0' if pg == 0 else vr(DA, 4)}")
                k(f"v_lshlrev_b32 v{RB}, 16, v{HV}\nv_and_b32 v{RB+1}, 0xffff0000, v{HV}\nv_lshlrev_b32 v{RB+2}, 16, v{HV+1}\nv_and_b32 v{RB+3}, 0xffff0000, v{HV+1}")
            def rfin(r):
                RB, HV, DA = home(r)
                for q in range(4): k(f"v_fma_f32 v{RB+q}, v{DA+q}, s{sLN}, v{RB+q}")
                k(f"v_cvt_pk_bf16_f32 v{HV}, v{RB}, v{RB+1}\nv_cvt_pk_bf16_f32 v{HV+1}, v{RB+2}, v{RB+3}")
            rout = lambda r: k(f"buffer_store_dwordx2 {vr(home(r)[1], 2)}, v{vOO}, {S4(sO)}, 0 offen offset:{r*128} {OUTPOL}")
            lo = 0; pend = []
            for ph, c in enumerate(PHASES):
                spin(f"{name}_c{ph}", poll(ph, 10).split("\n")[1], f"s_mov_b32 s3, {ph*32768}\nv_cmp_eq_u32 vcc, 0, v10")
                for r in range(lo, c+1): rloads(r)
                for r in pend: rout(r)
                if ph+1 < len(PHASES): k(poll(ph+1, 10))
                pend = list(range(lo, c+1))
                for r in pend: rsum(r)
                for r in pend: rfin(r)
                lo = c+1
            for r in pend: rout(r)
        else:
            pl = f"buffer_load_dword v78, v{vZ}, {S4(sF)}, s{sF1p} offen sc1"
            def fetch(u):
                if "nol1chk" not in abl: spin(f"{name}_k{u}", pl, f"v_cmp_ge_u32 vcc, {u}, v78")
                k(f"s_add_u32 s3, s{sS1}, {(u % 4)*8192}")
                for h in range(2): k(f"buffer_load_dwordx4 {vr(SD+4*h, 4)}, v{vDX}, {S4(sF)}, s3 offen offset:{h*1024} sc1")
            add = lambda u: [f"{MF} {vr(AB[u % 2]+8*h+4*q, 4)}, {vr(SK+2-2*q, 4)}, {vr(SD+4*h, 4)}, {vr(AB[u % 2]+8*h+4*q, 4)}" for h in range(2) for q in range(2)]
            pst = lambda u, h: (f"s_add_u32 s3, s{sPO}, {u*8192}\nbuffer_store_dwordx4 {vr(AB[u % 2]+8*h, 4)}, v{vPO}, {S4(sP)}, s3 offen offset:{h*1024} sc1", f"P{u}")
            def arrive(ph):
                k.wait_vm(f"P{PHASES[ph]}")
                lab = f"{name}_ar{ph}"
                k(f"""v_mov_b32 v{vFV}, 1
s_mov_b64 exec, 1
ds_add_rtn_u32 v79, v{vFL}, v{vFV} offset:{ph*4}
s_mov_b64 exec, -1
s_waitcnt lgkmcnt(0)
v_readfirstlane_b32 s3, v79
s_cmp_lg_u32 s3, 3
s_cbranch_scc1 {lab}
s_mov_b32 s3, {ph*32768}
buffer_store_dword v{vFV}, v{vFS}, {S4(sF)}, s3 offen sc1
{lab}:""")
            for kp in range(9): put(hread(kp))
            endslot(0)
            for t in range(1, 10):
                u = t-1
                if u >= 1: k(pl)
                put(wdread(u, 0))
                put(spread_in(mfb(u-1, 2), dmat(t), 2) if u >= 1 else dmat(t))
                if u >= 1: fetch(u-1)
                if u >= 2: put([pst(u-2, 0), pst(u-2, 1)])
                put(interleave(mfb(u, 0), wdread(u, 1) + [""]*6))
                if u-3 == PHASES[0]: arrive(0)
                g1 = mfb(u, 1)
                put(interleave(g1[:6], wdread(u, 2)))
                if u >= 1:
                    put(add(u-1))
                    if t == 9: k(pl)
                    put(g1[6:9])
                    put(interleave(g1[9:], cvt(u-1, 0) + cvt(u-1, 1)))
                else: put(g1[6:])
                endslot(t)
            fetch(8)
            put([pst(7, 0), pst(7, 1)])
            put(mfb(8, 2)); put(add(8))
            st(9)
            put(cvt(8, 0) + [pst(8, 0)] + cvt(8, 1) + [pst(8, 1)])
            arrive(1); arrive(2)
        if stamp:
            k("s_waitcnt vmcnt(0) lgkmcnt(0)\ns_memrealtime s[4:5]\ns_waitcnt lgkmcnt(0)")
            for i in range(10): k(f"v_mov_b32 v{28+i}, s{60+2*i}")
            k(f"""v_mov_b32 v38, s4
v_mov_b32 v39, s{99 if 'cnt' in abl else sLoc}
s_lshl_b32 s3, s2, 3
s_add_u32 s3, s3, s{sW}
s_lshl_b32 s3, s3, 6
s_add_u32 s3, s3, {O_STAMP}
v_mov_b32 v40, s3
global_store_dwordx4 v40, v[28:31], s[6:7]
global_store_dwordx4 v40, v[32:35], s[6:7] offset:16
global_store_dwordx4 v40, v[36:39], s[6:7] offset:32""")
            if "orc" in abl and not five:
                X = int(abl.split("orc")[1][:2]); which = abl.split("orc")[1][2:3] or "a"
                k(f"""s_cmp_lg_u32 s2, 0
s_cbranch_scc1 {name}_noorc
s_cmp_lg_u32 s{sW}, 4
s_cbranch_scc1 {name}_noorc
v_mov_b32 v41, {O_STAMP + 262144}
global_load_dword v44, v41, s[6:7]
s_waitcnt vmcnt(0)
v_readfirstlane_b32 s3, v44
s_sub_u32 s3, s{4 if which == 'a' else 60+2*int(which)}, s3
s_cmp_lt_u32 s3, {X*100}
s_cbranch_scc1 {name}_noorc
s_movk_i32 s3, 60
{name}_orcl:
s_sleep 64
s_sub_u32 s3, s3, 1
s_cbranch_scc0 {name}_orcl
{name}_noorc:""")
                k.saved.pop(f"{name}_orcl", None)
            if "until" in abl and not five:
                k(f"""s_cmp_lg_u32 s2, 0
s_cbranch_scc1 {name}_nount
s_cmp_lg_u32 s{sW}, 4
s_cbranch_scc1 {name}_nount
v_mov_b32 v41, {O_STAMP + 262144}
global_load_dword v44, v41, s[6:7]
s_waitcnt vmcnt(0)
v_readfirstlane_b32 s3, v44
{name}_untl:
s_memrealtime s[4:5]
s_waitcnt lgkmcnt(0)
s_sub_u32 s4, s4, s3
s_cmp_lt_u32 s4, 8000
s_cbranch_scc1 {name}_untl
{name}_nount:""")
                k.saved.pop(f"{name}_untl", None)
            if "dbg" in abl and not five:
                k(f"""s_cmp_lg_u32 s2, 0
s_cbranch_scc1 {name}_nodbg
s_cmp_lg_u32 s{sW}, 4
s_cbranch_scc1 {name}_nodbg
s_load_dwordx2 s[8:9], s[0:1], 64
v_mov_b32 v41, {O_STAMP + 262144}
global_load_dwordx4 v[44:47], v41, s[6:7]
global_load_dwordx4 v[48:51], v41, s[6:7] offset:16
v_mov_b32 v41, {O_STAMP + 2*262144}
global_load_dwordx4 v[52:55], v41, s[6:7]
global_load_dwordx4 v[56:59], v41, s[6:7] offset:16
s_waitcnt vmcnt(0) lgkmcnt(0)
s_sub_u32 s8, s8, {int(abl.split('dbg')[1][0])*512}
s_subb_u32 s9, s9, 0
v_sub_u32 v60, v46, v44
v_sub_u32 v61, v50, v44
v_sub_u32 v62, v52, v44
v_sub_u32 v63, v57, v44""")
                for i in range(11): k(f"v_sub_u32 v{64+i}, v{28+i}, v44")
                k(f"""v_mov_b32 v75, 12345
v_mov_b32 v41, 0
global_store_dwordx4 v41, v[60:63], s[8:9]
global_store_dwordx4 v41, v[64:67], s[8:9] offset:16
global_store_dwordx4 v41, v[68:71], s[8:9] offset:32
global_store_dwordx4 v41, v[72:75], s[8:9] offset:48
{name}_nodbg:""")
    k(f"s_cmp_ge_u32 s{sW}, 4\ns_cbranch_scc1 {name}_p4")
    path(True)
    k(f"s_endpgm\n{name}_p4:")
    path(False)
    k(f"{name}_end:")
    return k
```

```python
import sys
from asmlib import *
from pf import *
from fft import *
st = "stamp" in sys.argv
HEADER = open("sequential_preLN__spectral_gfnet__glu_gated_glu__prompt.s.ref").read().split("; Override launch")[0].rstrip()
opt = dict(a.split("=") for a in sys.argv[1:] if "=" in a)
pfo = {q: (int(v) if v.lstrip("-").isdigit() else v) for q, v in opt.items() if q not in ("FPOL",)}
ks = [build_p1(st, FPOL=opt.get("FPOL", "")), build_p2(st), build_pf(stamp=st, **pfo)]
order = list(ks)
if "dummyfirst" in sys.argv or "dummylast" in sys.argv:
    d = K("dummy", 1, 64, vgpr=8); ks.append(d)
    order = [d] + order if "dummyfirst" in sys.argv else order + [d]
print(emit(order, ks, header=HEADER))
print("; " + " ".join(sys.argv[1:]))
for k in ks: print(k.name, k.count, "nops", k.nops, "maxv", k.maxv, file=sys.stderr)
```

```python
from asmlib import *
from layout import *
from pf import ws_srd
import struct
def fl(x): return "0x%08x" % struct.unpack("<I", struct.pack("<f", x))[0]
MF32 = "v_mfma_f32_16x16x32_bf16"
MF16 = "v_mfma_f32_16x16x16_bf16"

def stamp(k, on, i):
    if on: k(f"s_memrealtime s[{60+2*i}:{61+2*i}]")
def stamp_out(k, on, slot, wavereg, n):
    if not on: return
    k("s_waitcnt vmcnt(0)"); stamp(k, on, n)
    k("s_waitcnt lgkmcnt(0)")
    for i in range(8): k(f"v_mov_b32 v{8+i}, s{60+2*i}" if i <= n else f"v_mov_b32 v{8+i}, 0")
    k(f"""
s_lshl_b32 s3, s2, 3
s_add_u32 s3, s3, {wavereg}
s_lshl_b32 s3, s3, 5
s_add_u32 s3, s3, {O_STAMP + 262144*slot}
v_mov_b32 v16, s3
global_store_dwordx4 v16, v[8:11], s[6:7]
global_store_dwordx4 v16, v[12:15], s[6:7] offset:16
""")

def build_p1(st=False, FPOL="", P1PRIO=1, SELFPF=0, SIDEFIRST=0, TLB=0):
    PITCH = 1216
    XL = 8*PITCH
    EX = 4*XL
    k = K("p1", 480, 256, lds=EX+8192, vgpr=168)
    sW, sS2, sJT = 30, 31, 32
    stamp(k, st, 0)
    if SELFPF:
        k(f"""s_getpc_b64 s[4:5]
p1_pc0:
v_lshlrev_b32 v1, 7, v0
v_min_u32 v1, p1_code_end-p1_pc0-4, v1""")
        k("global_load_dword v163, v1, s[4:5]", tag="touch")
    if SIDEFIRST: k("s_add_u32 s3, s2, 320\ns_sub_u32 s4, s2, 128\ns_cmp_lt_u32 s2, 128\ns_cselect_b32 s3, s3, s4\ns_cmp_lt_u32 s2, 448\ns_cselect_b32 s2, s3, s2")
    k(f"""
s_setprio 3
s_load_dwordx4 s[44:47], s[0:1], 0
s_load_dwordx2 s[48:49], s[0:1], 16
s_load_dwordx2 s[6:7], s[0:1], 72
v_lshrrev_b32 v1, 6, v0
v_and_b32 v0, 63, v0
v_readfirstlane_b32 s{sW}, v1
v_lshrrev_b32 v2, 4, v0
v_and_b32 v3, 15, v0
s_cmp_ge_u32 s2, 320
s_cbranch_scc1 p1_side
s_lshr_b32 s3, s2, 3
s_mul_i32 s4, s3, 52
s_lshr_b32 s4, s4, 8
s_mul_i32 s5, s4, 5
s_sub_u32 s{sJT}, s3, s5
s_lshl_b32 s4, s4, 3
s_and_b32 s3, s2, 7
s_add_u32 s{sS2}, s4, s3
v_lshrrev_b32 v4, 3, v0
v_and_b32 v5, 7, v0
s_lshl_b32 s3, s{sW}, 9
s_add_u32 s3, s3, s{sS2}
v_lshl_add_u32 v6, v4, 6, s3
v_mul_u32_u24 v6, 1152, v6
v_lshl_add_u32 v6, v5, 4, v6
s_waitcnt lgkmcnt(0)
""")
    srd(k, 8, 44, N_H)
    X, FR, FI, AF, AC, MA, TW = 20, 56, 74, 92, 128, 144, 152
    for i in range(9): k(f"buffer_load_dwordx4 {vr(X+4*i, 4)}, v6, s[8:11], 0 offen offset:{i*128} nt")
    k("s_setprio 0")
    ws_srd(k, 12, O_U, N_U)
    k(f"""
s_mul_i32 s3, s{sW}, {XL}
v_mul_u32_u24 v7, {PITCH}, v4
v_lshl_add_u32 v7, v5, 4, v7
v_add_u32 v7, s3, v7
v_and_b32 v8, 3, v0
v_mul_u32_u24 v8, {PITCH}, v8
v_lshrrev_b32 v9, 2, v0
v_lshl_add_u32 v8, v9, 3, v8
v_add_u32 v8, s3, v8
s_lshl_b32 s3, s{sJT}, 4
v_add_u32 v13, s3, v3
v_cvt_f32_u32 v9, v13
v_lshlrev_b32 v11, 4, v0
v_add_u32 v11, {EX}, v11
s_lshr_b32 s3, s{sW}, 1
s_lshl_b32 s3, s3, 10
s_and_b32 s4, s{sW}, 1
s_lshl_b32 s4, s4, 3
s_add_u32 s3, s3, s4
v_add_u32 v10, s3, v11
s_lshl_b32 s3, s{sW}, 9
s_add_u32 s3, s3, s{sS2}
v_lshl_add_u32 v12, v2, 7, s3
v_mul_u32_u24 v12, {ROWB}, v12
v_lshl_add_u32 v12, v13, 4, v12
v_cvt_f32_u32 v14, v2
v_mul_f32 v15, {fl(1/144)}, v9
v_mul_f32 v14, 4.0, v14
v_mul_f32 v16, v14, v15
""")
    t = 158
    k(f"""v_lshlrev_b32 v17, 31, v13
v_lshrrev_b32 v18, 16, v17
v_or_b32 v17, v17, v18
v_lshrrev_b32 v18, 1, v2
v_lshlrev_b32 v19, 9, v18
v_add_u32 v162, v8, v19
v_cvt_f32_u32 v18, v18
v_mul_f32 v18, 0x42800000, v18
v_fma_f32 v18, v18, v15, v16""")
    for kk in (0, 1, 4):
        for p in range(4 if kk < 4 else 2):
            for h in range(2):
                e = 2*p+h
                c0 = 32*kk + (e if e < 4 else 12+e) if kk < 4 else 64+e
                k(f"v_fmamk_f32 v{t+h}, v15, {fl(float(c0))}, v{16 if kk < 4 else 18}")
            k(f"v_cos_f32 v{t+2}, v{t}\nv_cos_f32 v{t+3}, v{t+1}\nv_sin_f32 v{t}, v{t}\nv_sin_f32 v{t+1}, v{t+1}")
            k(f"v_cvt_pk_bf16_f32 v{FR+4*kk+p}, v{t+2}, v{t+3}\nv_cvt_pk_bf16_f32 v{FI+4*kk+p}, -v{t}, -v{t+1}")
            if kk < 4: k(f"v_xor_b32 v{FR+8+4*kk+p}, v17, v{FR+4*kk+p}\nv_xor_b32 v{FI+8+4*kk+p}, v17, v{FI+4*kk+p}")
    for q in range(1, 4):
        k(f"v_mul_f32 v{t}, {fl(q/576)}, v9\nv_cos_f32 v{TW+2*q-2}, v{t}\nv_sin_f32 v{TW+2*q-1}, v{t}")
    k(f"""
v_lshrrev_b32 v14, 1, v3
s_lshl_b32 s3, s{sW}, 3
v_add_u32 v14, s3, v14
v_lshl_add_u32 v15, v2, 6, s{sS2}
v_mul_u32_u24 v15, v14, v15
v_and_b32 v16, 1, v3
v_lshl_add_u32 v15, v16, 9, v15
v_cvt_f32_u32 v15, v15
v_mul_f32 v15, {fl(1/2048)}, v15
v_cvt_f32_u32 v14, v14
""")
    for kk in range(2):
        for tt in range(4):
            k(f"v_fmamk_f32 v{t}, v14, {fl((16*kk+4*tt)/32)}, v15\nv_cos_f32 v{t+1}, v{t}\nv_sin_f32 v{t}, v{t}\nv_cvt_pk_bf16_f32 v{MA+4*kk+tt}, v{t+1}, v{t}")
    k("v_mov_b32 v14, 0\nv_mov_b32 v15, 0\nv_mov_b32 v16, 0\nv_mov_b32 v17, 0\ns_mov_b32 s33, 0x3f803f80")
    k(f"v_lshlrev_b32 v18, 5, v2\nv_add_u32 v19, 128, v18")
    stamp(k, st, 1)
    if P1PRIO: k("s_setprio 1")
    for i in range(9): k(f"ds_write_b128 v7, {vr(X+4*i, 4)} offset:{i*128}")
    stamp(k, st, 2)
    rd = []
    for mu in range(2):
        for kk in range(5):
            for h in range(2 if kk < 4 else 1):
                d = AF+18*mu+4*kk+2*h
                rd.append(f"ds_read_b64_tr_b16 v[{d}:{d+1}], v{8 if kk < 4 else 162} offset:{mu*4*PITCH + [0, 256, 576, 832, 512][kk] + h*128}")
    dots = []
    for i in range(36):
        dots += [f"v_dot2_f32_bf16 v{14+(i&1)}, v{X+i}, s33, v{14+(i&1)}", f"v_dot2_f32_bf16 v{16+(i&1)}, v{X+i}, v{X+i}, v{16+(i&1)}"]
    for x in interleave(rd, dots[:36]): k(x)
    mf = []
    for mu in range(2):
        for kk in range(5):
            for c, Fb in enumerate((FR, FI)):
                a = AC+8*mu+4*c
                if kk < 4: mf.append(f"{MF32} {vr(a, 4)}, {vr(AF+18*mu+4*kk, 4)}, {vr(Fb+4*kk, 4)}, {'0' if kk == 0 else vr(a, 4)}")
                else: mf.append(f"{MF16} {vr(a, 4)}, {vr(AF+18*mu+16, 2)}, {vr(Fb+16, 2)}, {vr(a, 4)}")
    dpp = "row_mask:0xf bank_mask:0xf"
    stats = dots[36:] + f"""v_add_f32 v14, v14, v15
v_add_f32 v16, v16, v17
v_add_f32_dpp v14, v14, v14 quad_perm:[1,0,3,2] {dpp}
v_add_f32_dpp v16, v16, v16 quad_perm:[1,0,3,2] {dpp}
v_add_f32_dpp v14, v14, v14 quad_perm:[2,3,0,1] {dpp}
v_add_f32_dpp v16, v16, v16 quad_perm:[2,3,0,1] {dpp}
v_add_f32_dpp v14, v14, v14 row_half_mirror {dpp}
v_add_f32_dpp v16, v16, v16 row_half_mirror {dpp}
v_mul_f32 v14, {fl(1/576)}, v14
v_mul_f32 v14, v14, v14
v_fmamk_f32 v16, v16, {fl(1/576)}, v14
v_fma_f32 v16, -2.0, v14, v16
v_max_f32 v16, 0, v16
v_add_f32 v16, {fl(1e-5)}, v16
v_rsq_f32 v16, v16
ds_bpermute_b32 v14, v18, v16
ds_bpermute_b32 v15, v19, v16""".split("\n")
    for x in interleave(mf, stats): k(x)
    stamp(k, st, 3)
    E = X
    for mu in range(2):
        R, I = AC+8*mu, AC+8*mu+4
        T = AF
        for q in range(1, 4):
            c, s = TW+2*q-2, TW+2*q-1
            k(f"v_mul_f32 v{T+2*q}, v{c}, v{R+q}\nv_mul_f32 v{T+2*q+1}, v{c}, v{I+q}")
        for q in range(1, 4):
            c, s = TW+2*q-2, TW+2*q-1
            k(f"v_fmac_f32 v{T+2*q}, v{s}, v{I+q}\nv_fma_f32 v{T+2*q+1}, -v{s}, v{R+q}, v{T+2*q+1}")
        a, b, c, d = T+8, T+10, T+12, T+14
        k(f"""
v_add_f32 v{c}, v{T+2}, v{T+6}
v_add_f32 v{c+1}, v{T+3}, v{T+7}
v_sub_f32 v{d}, v{T+2}, v{T+6}
v_sub_f32 v{d+1}, v{T+3}, v{T+7}
v_add_f32 v{a}, v{R}, v{T+4}
v_add_f32 v{a+1}, v{I}, v{T+5}
v_sub_f32 v{b}, v{R}, v{T+4}
v_sub_f32 v{b+1}, v{I}, v{T+5}
v_mul_f32 v{c}, v{14+mu}, v{c}
v_mul_f32 v{c+1}, v{14+mu}, v{c+1}
v_mul_f32 v{d}, v{14+mu}, v{d}
v_mul_f32 v{d+1}, v{14+mu}, v{d+1}
v_fma_f32 v{T}, v{14+mu}, v{a}, v{c}
v_fma_f32 v{T+1}, v{14+mu}, v{a+1}, v{c+1}
v_fma_f32 v{T+2}, v{14+mu}, v{b}, v{d+1}
v_fma_f32 v{T+3}, v{14+mu}, v{b+1}, -v{d}
v_fma_f32 v{T+4}, v{14+mu}, v{a}, -v{c}
v_fma_f32 v{T+5}, v{14+mu}, v{a+1}, -v{c+1}
v_fma_f32 v{T+6}, v{14+mu}, v{b}, -v{d+1}
v_fma_f32 v{T+7}, v{14+mu}, v{b+1}, v{d}
""")
        for m in range(4): k(f"v_cvt_pk_bf16_f32 v{E+2*m+mu}, v{T+2*m}, v{T+2*m+1}")
    for m in range(4): k(f"ds_write_b64 v10, {vr(E+2*m, 2)} offset:{m*2048}")
    k.wait_lg(); k("s_barrier")
    stamp(k, st, 4)
    B = FR
    for m in range(4):
        for kk in range(2): k(f"ds_read_b128 {vr(B+8*m+4*kk, 4)}, v11 offset:{m*2048+kk*1024}")
    for kk in range(2):
        for m in range(4): k(f"{MF32} {vr(AC+4*m, 4)}, {vr(MA+4*kk, 4)}, {vr(B+8*m+4*kk, 4)}, {'0' if kk == 0 else vr(AC+4*m, 4)}")
    k(f"s_mov_b32 s3, {64*ROWB}")
    for a in range(2):
        for m in range(4): k(f"v_cvt_pk_bf16_f32 v{X+4*a+m}, v{AC+4*m+2*a}, v{AC+4*m+2*a+1}")
        k(f"buffer_store_dwordx4 {vr(X+4*a, 4)}, v12, s[12:15], {'s3' if a else '0'} offen sc1")
    stamp(k, st, 5)
    stamp_out(k, st, 1, f"s{sW}", 6)
    k("s_endpgm\np1_side:")
    RP = 608
    k(f"""
s_cmp_ge_u32 s2, 448
s_cbranch_scc1 p1_tab
s_sub_u32 s3, s2, 320
s_and_b32 s32, s3, 7
s_lshl_b32 s32, s32, 2
s_bfe_u32 s4, s3, 0x20003
s_add_u32 s32, s32, s4
s_lshr_b32 s31, s3, 5
s_lshl_b32 s3, s31, 9
s_add_u32 s33, s32, s3
s_and_b32 s3, s{sW}, 1
s_cmp_eq_u32 s3, 0
s_cselect_b32 s34, 1, -1
v_lshrrev_b32 v4, 5, v0
v_and_b32 v5, 31, v0
v_lshl_add_u32 v6, v4, 5, s33
v_mul_lo_u32 v6, v6, s34
s_lshl_b32 s35, s34, 6
s_mul_i32 s3, s{sW}, {16*RP}
v_mul_u32_u24 v7, {RP}, v4
v_lshl_add_u32 v7, v5, 4, v7
v_add_u32 v7, s3, v7
s_movk_i32 s36, 578
v_mov_b32 v12, {OOB}
v_cmp_gt_u32 vcc, 6, v5
v_lshlrev_b32 v5, 4, v5
v_cndmask_b32 v12, v12, v5, vcc
s_waitcnt lgkmcnt(0)
s_cmp_lt_u32 s{sW}, 2
s_cselect_b32 s8, s46, s48
s_cselect_b32 s9, s47, s49
s_mov_b32 s10, {N_WF}
s_mov_b32 s11, 0x20000
""")
    for i in range(8):
        k(f"""v_and_b32 v8, 2047, v6
v_mul_u32_u24 v8, s36, v8
v_and_b32 v8, -16, v8
v_add_u32 v9, v8, v5
v_add_u32 v8, v8, v12
buffer_load_dwordx4 {vr(20+8*i, 4)}, v9, s[8:11], 0 offen {FPOL}
buffer_load_dwordx4 {vr(24+8*i, 4)}, v8, s[8:11], 0 offen offset:512 {FPOL}
v_add_u32 v6, s35, v6""")
    stamp(k, st, 1)
    ws_srd(k, 16, O_WH, N_WH)
    k(f"""
v_lshrrev_b32 v4, 2, v3
s_lshl_b32 s3, s{sW}, 2
v_add_u32 v4, s3, v4
v_and_b32 v10, 3, v3
v_mul_u32_u24 v11, 144, v10
v_add_u32 v11, v11, v4
v_sub_u32 v13, 576, v11
v_cmp_gt_u32 vcc, 2, v10
v_cndmask_b32 v13, v13, v11, vcc
v_mov_b32 v14, 0xffffffe0
v_cndmask_b32 v14, v14, 32, vcc
v_bfrev_b32 v15, 1
v_cndmask_b32 v15, v15, 0, vcc
v_mov_b32 v16, {16*RP}
v_cndmask_b32 v16, v16, 0, vcc
v_lshl_add_u32 v16, v13, 1, v16
v_mul_u32_u24 v17, {4*RP}, v2
v_add_u32 v16, v16, v17
v_lshl_add_u32 v17, v2, 7, s33
v_cndmask_b32 v18, -1, 1, vcc
v_cmp_eq_u32 s[40:41], 0, v11
s_movk_i32 s3, 288
v_cmp_eq_u32 s[42:43], s3, v11
""")
    for r in range(4):
        k(f"""v_add_u32 v19, {32*r}, v17
v_mul_lo_u32 v{84+r}, v19, v18
v_lshlrev_b32 v{84+r}, 1, v{84+r}
v_and_b32 v{84+r}, 14, v{84+r}
v_add_u32 v{84+r}, v{84+r}, v16
v_lshlrev_b32 v19, 1, v19
v_and_b32 v19, 14, v19
v_mul_u32_u24 v{88+r}, {4*RP}, v2
v_add_u32 v{88+r}, v{88+r}, v19
v_add_u32 v{88+r}, 576, v{88+r}
v_cndmask_b32 v{88+r}, v{84+r}, v{88+r}, s[42:43]""")
    k(f"v_cndmask_b32 v92, v15, 0, s[42:43]")
    k("s_mov_b64 s[38:39], exec\ns_mov_b32 s3, 0x3f\ns_mov_b32 s4, 0x3f")
    stamp(k, st, 2)
    for i in range(8): k(f"ds_write_b128 v7, {vr(20+8*i, 4)} offset:{2*i*RP}")
    k("s_mov_b32 exec_lo, s3\ns_mov_b32 exec_hi, s4")
    for i in range(8): k(f"ds_write_b128 v7, {vr(24+8*i, 4)} offset:{2*i*RP+512}")
    k("s_mov_b64 exec, s[38:39]")
    k(f"s_mul_i32 s3, s32, 19\ns_add_u32 s3, s3, s{sW}\ns_lshl_b32 s3, s3, 12\ns_lshl_b32 s4, s31, 10\ns_add_u32 s37, s3, s4\nv_lshlrev_b32 v93, 4, v0")
    stamp(k, st, 3)
    k.wait_lg(); k("s_barrier")
    stamp(k, st, 4)
    for it in range(5):
        if it == 4: k(f"s_cmp_eq_u32 s{sW}, 3\ns_cbranch_scc1 p1_wend")
        A = 88 if it == 0 else 84
        D0 = 20 + 12*it
        if it:
            for r in range(4): k(f"v_add_u32 v{84+r}, v{84+r}, v14")
        for r in range(4): k(f"ds_read_u16 v{D0+r}, v{A+r} offset:{r*RP}\nds_read_u16 v{D0+4+r}, v{A+r} offset:{r*RP+32*RP}")
        for r in range(4): k(f"v_lshl_or_b32 v{D0+8+r}, v{D0+4+r}, 16, v{D0+r}\nv_xor_b32 v{D0+8+r}, v{92 if it == 0 else 15}, v{D0+8+r}")
        if it == 0:
            for r in range(4): k(f"v_cndmask_b32 v{D0+8+r}, v{D0+8+r}, 0, s[40:41]")
        if it == 4:
            k("v_cmp_lt_u32 vcc, 8, v4")
            for r in range(4): k(f"v_cndmask_b32 v{D0+8+r}, v{D0+8+r}, 0, vcc")
        k(f"buffer_store_dwordx4 {vr(D0+8, 4)}, v93, s[16:19], s37 offen sc1\ns_add_u32 s37, s37, 16384")
    k("p1_wend:")
    stamp(k, st, 5)
    stamp_out(k, st, 1, f"s{sW}", 6)
    k("s_endpgm\np1_tab:")
    sc = 1.0/(S*D)
    k(f"""
s_cmp_ge_u32 s2, 464
s_cbranch_scc1 p1_pf
s_sub_u32 s3, s2, 448
s_lshl_b32 s3, s3, 2
s_add_u32 s31, s3, s{sW}
s_cmp_ge_u32 s31, 61
s_cbranch_scc1 p1_end
s_lshr_b32 s32, s31, 2
s_and_b32 s33, s31, 3
s_mov_b32 s34, {fl(1/64)}
s_cmp_lt_u32 s31, 16
s_cbranch_scc1 p1_tabA
s_sub_u32 s3, s31, 16
s_mul_i32 s32, s3, 52
s_lshr_b32 s32, s32, 8
s_mul_i32 s4, s32, 5
s_sub_u32 s33, s3, s4
s_mov_b32 s34, {fl(1/144)}
p1_tabA:
s_lshl_b32 s32, s32, 4
s_lshl_b32 s33, s33, 4
v_add_u32 v4, s32, v3
v_lshl_add_u32 v5, v2, 2, s33
s_waitcnt lgkmcnt(0)
""")
    ws_srd(k, 8, O_TAB, N_TAB)
    for r in range(4):
        k(f"""
v_add_u32 v6, {r}, v5
v_mul_u32_u24 v7, v6, v4
v_cvt_f32_u32 v7, v7
v_mul_f32 v7, s34, v7
v_fract_f32 v7, v7
v_cos_f32 v8, v7
v_sin_f32 v9, v7
s_cmp_lt_u32 s31, 16
s_cbranch_scc1 p1_tabB{r}
v_mov_b32 v10, {fl(2*sc)}
v_mov_b32 v11, {fl(sc)}
v_cmp_eq_u32 vcc, 0, v6
v_cndmask_b32 v10, v10, v11, vcc
v_cmp_eq_u32 vcc, 72, v6
v_cndmask_b32 v10, v10, v11, vcc
v_cmp_gt_u32 vcc, 73, v6
v_cndmask_b32 v10, 0, v10, vcc
v_mul_f32 v8, v8, v10
v_mul_f32 v9, -v9, v10
p1_tabB{r}:
v_cvt_pk_bf16_f32 v{12+r}, v8, v9
""")
    k(f"v_lshlrev_b32 v4, 4, v0\ns_lshl_b32 s3, s31, 10\nbuffer_store_dwordx4 v[12:15], v4, s[8:11], s3 offen sc1\ns_endpgm\np1_pf:")
    k(f"""
s_cmp_ge_u32 s2, 480
s_cbranch_scc1 p1_end
s_getpc_b64 s[4:5]
p1_pc:
s_add_u32 s4, s4, p2_kernel-p1_pc
s_addc_u32 s5, s5, 0
s_lshl_b32 s3, s{sW}, 6
v_add_u32 v4, s3, v0
s_sub_u32 s3, s2, 464
s_lshr_b32 s3, s3, 3
s_lshl_b32 s3, s3, 15
v_lshl_add_u32 v5, v4, 7, s3
v_min_u32 v5, pf_code_end-p2_kernel-4, v5
global_load_dword v6, v5, s[4:5]
s_waitcnt lgkmcnt(0)
""")
    if TLB:
        k(f"""s_load_dwordx4 s[36:39], s[0:1], 32
s_load_dwordx4 s[40:43], s[0:1], 48
v_lshlrev_b32 v12, {TLB}, v4
s_waitcnt lgkmcnt(0)""")
        ws_srd(k, 8, 0, O_P + N_P)
        for i in range((O_P + N_P + (256 << TLB) - 1)//(256 << TLB)):
            k(f"s_mov_b32 s3, {i*(256 << TLB)}\nbuffer_load_dword v13, v12, s[8:11], s3 offen", tag="touch")
        for b, n in ((36, N_W), (38, N_W), (40, N_W), (42, N_H)):
            srd(k, 8, b, n)
            k("buffer_load_dword v13, v12, s[8:11], 0 offen", tag="touch")
    ws_srd(k, 8, O_FLG, N_ZERO)
    k(f"""
s_and_b32 s3, s2, 15
s_lshl_b32 s3, s3, 14
v_lshlrev_b32 v4, 4, v4
v_mov_b32 v8, 0
v_mov_b32 v9, 0
v_mov_b32 v10, 0
v_mov_b32 v11, 0
""")
    for i in range(4): k(f"buffer_store_dwordx4 v[8:11], v4, s[8:11], s3 offen sc1\ns_add_u32 s3, s3, 4096")
    k(f"""p1_end:""")
    return k

def build_p2(st=False):
    k = K("p2", 608, 64, vgpr=160)
    stamp(k, st, 0)
    k(f"""
s_load_dwordx2 s[6:7], s[0:1], 72
s_cmp_ge_u32 s2, 608
s_cbranch_scc1 p2_end
s_lshr_b32 s3, s2, 3
s_mul_i32 s4, s3, 27
s_lshr_b32 s4, s4, 9
s_mul_i32 s5, s4, 19
s_sub_u32 s31, s3, s5
s_and_b32 s3, s2, 7
s_lshl_b32 s3, s3, 2
s_add_u32 s32, s3, s4
v_lshrrev_b32 v2, 4, v0
v_and_b32 v3, 15, v0
v_mul_u32_u24 v4, {4*ROWB}, v2
v_lshl_add_u32 v4, v3, 2, v4
v_lshlrev_b32 v5, 4, v0
s_mul_i32 s33, s32, {64*ROWB}
s_lshl_b32 s3, s31, 6
s_add_u32 s33, s33, s3
s_waitcnt lgkmcnt(0)
""")
    ws_srd(k, 8, O_U, N_U)
    B, B2, A, WH, XR, XI = 8, 24, 40, 104, 120, 136
    for T in range(4):
        if T: k(f"s_add_u32 s33, s33, {16*ROWB}")
        for r in range(4): k(f"buffer_load_dword v{B+4*T+r}, v4, s[8:11], s33 offen offset:{r*ROWB}")
    ws_srd(k, 12, O_TAB, N_TAB)
    for f in range(16):
        if f % 4 == 0: k(f"s_movk_i32 s3, {f*1024}")
        k(f"buffer_load_dwordx4 {vr(A+4*f, 4)}, v5, s[12:15], s3 offen offset:{(f % 4)*1024}")
    ws_srd(k, 16, O_WH, N_WH)
    k("s_mul_i32 s34, s32, 19\ns_add_u32 s34, s34, s31\ns_lshl_b32 s34, s34, 12")
    for T in range(4): k(f"buffer_load_dwordx4 {vr(WH+4*T, 4)}, v5, s[16:19], s34 offen offset:{T*1024}")
    k(f"""
v_mul_u32_u24 v6, {ROWB}, v3
v_lshl_add_u32 v6, v2, 4, v6
s_mul_i32 s35, s32, {64*ROWB}
s_lshl_b32 s3, s31, 6
s_add_u32 s35, s35, s3
s_brev_b32 s36, 1
s_mov_b32 s37, 0xffff0000
""")
    stamp(k, st, 1)
    for i in range(16): k(f"v_alignbit_b32 v{B2+i}, v{B+i}, v{B+i}, 16\nv_xor_b32 v{B2+i}, s36, v{B2+i}")
    stamp(k, st, 2)
    def fwd(Tp): return [f"{MF32} {vr(o+4*Tp, 4)}, {vr(A+16*Tp+4*T, 4)}, {vr(b+4*T, 4)}, {'0' if T == 0 else vr(o+4*Tp, 4)}" for T in range(4) for o, b in ((XR, B), (XI, B2))]
    D1, D2 = 152, B
    def filt(T):
        out = []
        for r in range(4):
            w = WH+4*T+r; xr, xi = XR+4*T+r, XI+4*T+r
            out += [f"v_lshlrev_b32 v152, 16, v{w}", f"v_and_b32 v153, s37, v{w}",
                    f"v_mul_f32 v154, v{xr}, v152", f"v_mul_f32 v155, v{xr}, v153",
                    f"v_fma_f32 v154, -v{xi}, v153, v154", f"v_fmac_f32 v155, v{xi}, v152",
                    f"v_cvt_pk_bf16_f32 v{w}, v154, -v155", f"v_cvt_pk_bf16_f32 v{xr}, v155, v154"]
        return out
    for x in fwd(0): k(x)
    for Tp in range(1, 4):
        for x in interleave(fwd(Tp), filt(Tp-1)): k(x)
    for x in filt(3): k(x)
    stamp(k, st, 3)
    VR, VI = B, B2
    def inv(Tp): return [f"{MF32} {vr(o+4*Tp, 4)}, {vr(d+4*T, 4)}, {vr(A+16*Tp+4*T, 4)}, {'0' if T == 0 else vr(o+4*Tp, 4)}" for T in range(4) for o, d in ((VR, WH), (VI, XR))]
    def outp(Tp):
        return [f"v_cvt_pk_bf16_f32 v{XI+4*Tp+r}, v{VR+4*Tp+r}, v{VI+4*Tp+r}" for r in range(4)] + \
               [f"buffer_store_dwordx4 {vr(XI+4*Tp, 4)}, v6, s[8:11], s35 offen sc1\ns_add_u32 s35, s35, {16*ROWB}"]
    for x in inv(0): k(x)
    for Tp in range(1, 4):
        m = inv(Tp)
        for x in m[:3] + interleave(m[3:], outp(Tp-1)): k(x)
    for x in outp(3): k(x)
    stamp(k, st, 4)
    stamp_out(k, st, 2, "0", 5)
    k("p2_end:")
    return k
```

```python
S, D, F = 2048, 576, 4608
MB = 1 << 20
ROWB = 1280
O_U   = 0
O_V   = 0
O_WH  = 8*MB
O_XF  = 12*MB
O_H   = 16*MB
O_STAMP = 30*MB
O_FLG = 20*MB
O_P   = 32*MB
N_U = 2048*ROWB
N_WH = 32*19*4096
N_XF = 16*18*8*1024
N_H = S*D*2
N_P = 16*16*9*16384
N_W = D*F*2
LOG2E = 1.4426950408889634
LN2 = 0.6931471805599453
O_TAB = 11*MB
N_TAB = 61*1024
N_WF = 2048*289*2
OOB = 0x40000000
F_X = 0
F_2 = 32768
F_E = 163840
F_1 = 196608
N_ZERO = 327680
N_FLG = N_ZERO

F_R = 196608
```

```python
from asmlib import *
from layout import *
import struct
def fl(x): return "0x%08x" % struct.unpack("<I", struct.pack("<f", x))[0]
MF = "v_mfma_f32_16x16x32_bf16"
def ws_srd(k, d, off, nbytes, ws=6):
    k(f"s_add_u32 s{d}, s{ws}, {off}\ns_addc_u32 s{d+1}, s{ws+1}, 0\ns_mov_b32 s{d+2}, {nbytes}\ns_mov_b32 s{d+3}, 0x20000")
def srd_tail(k, d, nbytes): k(f"s_mov_b32 s{d+2}, {nbytes}\ns_mov_b32 s{d+3}, 0x20000")
S4 = lambda d: f"s[{d}:{d+3}]"

SLOT_A = [0, 45056, 90112]
RING_B = [0, 36864, 90112, 126976]
HH = 90112

def build_pf(look=3, nd=2, spread=4, stamp=False, abl="", name="pf", OUTPOL="sc1", WPOL="", DPOL="", TPOL="", dstage=11, safe=0, XPOL="sc1", TPOLD="", ahead=7,
             phases="258", lag=2, ntouch=1, prio="", fuse=0, pk=1, W2=1):
    PH = [int(c) for c in str(phases)]
    k = K(name, 256, 512, lds=163840, vgpr=256, sgpr=102)
    sG, sU, sD, sX, sP, sF, sS, sH, sO, sV, sI, sT = 8, 12, 16, 20, 24, 28, 32, 36, 40, 44, 48, 52
    sW, sMT, sSL, sRG = 56, 57, 58, 59
    sA, sKW, sKX, sM0a, sM0x, sM0s, sKD, sM0d, sPO, sCG, sRD, sLN, sLoc, sS1 = range(80, 94)
    sF1 = 96; sB = 97; sXC = 98
    vL, vDX, vD0, vD1, vD2, vT0, vT1, vT2 = range(8)
    vXr = [8, 9, 10]; vWA = [11, 12, 13]; vWB = [14, 15, 16]
    vDD, vPO, vHW = 17, 18, 19
    vWD = [20, 21, 22, 23]
    vHR, vHW2, vZ, vQ = 24, 25, 26, 27
    def stb(i):
        if stamp and "bst" in abl: k(f"s_memrealtime s[{60+2*i}:{61+2*i}]")
    def st(i):
        if stamp and "bst" not in abl: k(f"s_memrealtime s[{60+2*i}:{61+2*i}]")
    def put(items):
        for x in items:
            t = x[0] if isinstance(x, tuple) else x
            if "nodma" in abl and " lds" in t and x[1] not in ("A0", "A1"): continue
            if "nop2" in abl and "buffer_store" in t and isinstance(x, tuple) and x[1].startswith("P"): continue
            if "nomfma" in abl and "v_mfma" in t: continue
            if isinstance(x, tuple): k(x[0], tag=x[1])
            else: k(x)
    def spin(lab, load, cond):
        bound = f"s_sub_u32 s100, s100, 1\ns_cbranch_scc1 {lab}_ok\n" if safe else ""
        k(f"{cond}\ns_cbranch_vccz {lab}_ok\n{f's_mov_b32 s100, {20000 if safe == 1 else 4000000}' if safe else ''}\n{lab}_spin:\n{'s_add_u32 s99, s99, 1' if 'cnt' in abl else ''}\n{bound}{load}\ns_waitcnt vmcnt(0)\n{cond}\ns_cbranch_vccnz {lab}_spin\n{lab}_ok:")
        k.saved.pop(lab + "_spin", None)
    st(0)
    k(f"""
s_load_dwordx2 s[6:7], s[0:1], 72
s_load_dwordx2 s[{sG}:{sG+1}], s[0:1], 32
s_load_dwordx2 s[{sU}:{sU+1}], s[0:1], 40
s_load_dwordx2 s[{sI}:{sI+1}], s[0:1], 0
s_load_dwordx2 s[{sD}:{sD+1}], s[0:1], 48
s_load_dwordx2 s[{sO}:{sO+1}], s[0:1], 56
s_cmp_ge_u32 s2, 256
s_cbranch_scc1 {name}_end
v_lshrrev_b32 v{vT0}, 6, v0
v_and_b32 v{vL}, 63, v0
v_readfirstlane_b32 s{sW}, v{vT0}
s_lshr_b32 s3, s2, 3
s_and_b32 s{sMT}, s3, 15
s_lshr_b32 s{sB}, s3, 4
s_and_b32 s{sXC}, s2, 7
s_lshl_b32 s4, s{sXC}, 1
s_add_u32 s{sSL}, s4, s{sB}
v_lshlrev_b32 v{vDX}, 4, v{vL}
v_mov_b32 v{vZ}, 0
v_mov_b32 v37, 0
v_mov_b32 v39, 0
""")
    o = 32
    R = lambda n: n + o
    sS2, sNT, sVB, sXO, sSO = 99, sB, 100, 101, sRD
    L, MB_, AC, TW, G, XX = R(16), R(48), R(64), R(96), R(120), R(160)
    EZ = 90112; ES = EZ + 20480
    g_, n_, vVA, vHS, vRow, vXo, vEW, vSW, vSR = R(2), R(3), R(4), R(5), R(6), R(7), R(9), R(14), R(15)
    t0, t1, t2, t3 = R(10), R(11), R(12), R(13)
    k(f"""
s_lshr_b32 s3, s{sXC}, 2
s_and_b32 s4, s{sMT}, 1
s_cmp_lg_u32 s3, s4
s_cbranch_scc1 {name}_idle
s_and_b32 s3, s{sXC}, 3
s_lshl_b32 s{sS2}, s{sMT}, 2
s_add_u32 s{sS2}, s{sS2}, s3
v_lshrrev_b32 v{g_}, 4, v{vL}
v_and_b32 v{n_}, 15, v{vL}
s_lshl_b32 s3, s{sW}, 4
v_add_u32 v{vVA}, s3, v{n_}
v_lshlrev_b32 v{vVA}, 4, v{vVA}
v_mul_u32_u24 v{t0}, {4*64*ROWB}, v{g_}
v_add_u32 v{vVA}, v{vVA}, v{t0}
s_mul_i32 s{sVB}, s{sS2}, {ROWB}
s_lshl_b32 s3, s{sNT}, 4
v_add_u32 v{vRow}, s3, v{n_}
v_lshl_add_u32 v{vRow}, v{vRow}, 6, s{sS2}
v_mul_u32_u24 v{vXo}, 1152, v{vRow}
v_lshl_add_u32 v{vXo}, v{g_}, 5, v{vXo}
s_lshl_b32 s{sXO}, s{sW}, 7
s_waitcnt lgkmcnt(0)
""")
    ws_srd(k, sV, O_V, N_U)
    k(f"s_cmp_ge_u32 s{sW}, 5\ns_cbranch_scc1 {name}_nov")
    for kk in range(2):
        for t in range(4): k(f"s_add_u32 s3, s{sVB}, {(16*kk+t)*64*ROWB}\nbuffer_load_dwordx4 {vr(L+16*kk+4*t, 4)}, v{vVA}, {S4(sV)}, s3 offen", tag="V")
    k(f"{name}_nov:")
    srd_tail(k, sI, N_H); ws_srd(k, sT, O_TAB, N_TAB)
    k(f"s_branch {name}_common\n{name}_idle:\ns_mov_b32 s{sS2}, -1\ns_waitcnt lgkmcnt(0)")
    ws_srd(k, sV, O_V, N_U); srd_tail(k, sI, N_H); ws_srd(k, sT, O_TAB, N_TAB)
    k(f"{name}_common:")

    ws_srd(k, sX, O_XF, N_XF); ws_srd(k, sH, O_H, N_H)
    st(1)
    k(f"s_cmp_eq_u32 s{sS2}, -1\ns_cbranch_scc1 {name}_fin")
    def mlp_setup():
        def pattern(vd):
            k(f"""
s_lshl_b32 s4, s3, 6
v_add_u32 v{vT0}, s4, v{vL}
v_mul_u32_u24 v{vT1}, 1821, v{vT0}
v_lshrrev_b32 v{vT1}, 16, v{vT1}
v_mul_u32_u24 v{vT2}, 36, v{vT1}
v_sub_u32 v{vT0}, v{vT0}, v{vT2}
v_lshrrev_b32 v{vT2}, 2, v{vT1}
v_and_b32 v{vT2}, 2, v{vT2}
v_xor_b32 v{vT0}, v{vT0}, v{vT2}
v_lshlrev_b32 v{vT0}, 4, v{vT0}
v_and_b32 v{vT2}, 24, v{vT1}
v_add_u32 v{vT1}, v{vT1}, v{vT2}
v_mul_u32_u24 v{vT1}, 9216, v{vT1}
v_add_u32 v{vd}, v{vT0}, v{vT1}
""")
        k(f"s_and_b32 s{sRG}, s{sW}, 1\ns_bfe_u32 s{sA}, s{sW}, 0x10001\ns_lshr_b32 s{sCG}, s{sW}, 1")
        k(f"s_lshl_b32 s3, s{sW}, 1"); pattern(vD0)
        k(f"s_add_u32 s3, s3, 1"); pattern(vD1)
        k(f"s_add_u32 s3, s{sRG}, 16"); pattern(vD2)
        k(f"""
s_mul_i32 s{sKW}, s{sSL}, 576
s_lshl_b32 s3, s{sMT}, 3
s_add_u32 s3, s3, s{sW}
s_mul_i32 s{sKX}, s3, 18432
s_lshl_b32 s{sM0x}, s{sW}, 10
s_lshl_b32 s{sM0a}, s{sW}, 11
s_add_u32 s{sM0a}, s{sM0a}, 8192
s_mul_i32 s3, s{sA}, 18432
s_lshl_b32 s4, s{sRG}, 10
s_add_u32 s3, s3, s4
s_add_u32 s{sM0s}, s3, {8192+16*1024}
s_cmp_eq_u32 s{sA}, 0
s_cselect_b32 s{sS}, s{sG}, s{sU}
s_cselect_b32 s{sS+1}, s{sG+1}, s{sU+1}
""")
        for d in (sG, sU, sD, sS): srd_tail(k, d, N_W)
        srd_tail(k, sO, N_H)
        ws_srd(k, sP, O_P, N_P); ws_srd(k, sF, O_FLG, N_FLG)
    def rest_loads(lab):
        k(f"buffer_load_dwordx4 {vr(XX, 4)}, v{vXo}, {S4(sI)}, s{sXO} offen\nbuffer_load_dwordx4 {vr(XX+4, 4)}, v{vXo}, {S4(sI)}, s{sXO} offen offset:16")
        k(f"s_mul_i32 s3, s{sW}, 5120\ns_add_u32 s3, s3, 16384\ns_add_u32 s4, s3, 4096")
        for f in range(5): k(f"buffer_load_dwordx4 {vr(G+4*f, 4)}, v{vDX}, {S4(sT)}, s{3+f//4} offen offset:{(f % 4)*1024}")
        k(f"s_cmp_lg_u32 s{sW}, {W2}\ns_cbranch_scc1 {lab}")
        k(f"buffer_load_dwordx4 {vr(XX+8, 4)}, v{vXo}, {S4(sI)}, 0 offen offset:1024\nbuffer_load_dwordx4 {vr(XX+12, 4)}, v{vXo}, {S4(sI)}, 0 offen offset:1040")
        k(f"s_mov_b32 s3, {(16+40)*1024}\ns_mov_b32 s4, {(16+44)*1024}")
        for f in range(5): k(f"buffer_load_dwordx4 {vr(G+20+4*f, 4)}, v{vDX}, {S4(sT)}, s{3+f//4} offen offset:{(f % 4)*1024}")
        k(f"{lab}:")
    k(f"s_cmp_lt_u32 s{sW}, 5\ns_cbranch_scc1 {name}_doA")
    mlp_setup()
    rest_loads(f"{name}_rl1")
    k(f"s_branch {name}_noA\n{name}_doA:")
    k(f"""
v_cvt_f32_u32 v{t0}, v{vRow}
v_mul_f32 v{t0}, {fl(1/2048)}, v{t0}
v_cvt_f32_u32 v{t1}, v{g_}
v_mul_f32 v{t1}, 4.0, v{t1}
v_mul_f32 v{vEW}, v{t0}, v{t1}
""")
    for kk in range(2):
        for t in range(4):
            k(f"""v_fmamk_f32 v{t2}, v{t0}, {fl(float(16*kk+t))}, v{vEW}
v_cos_f32 v{t3}, v{t2}
v_sin_f32 v{t2}, v{t2}
v_cvt_pk_bf16_f32 v{MB_+4*kk+t}, v{t3}, -v{t2}
v_cvt_pk_bf16_f32 v{MB_+8+4*kk+t}, v{t2}, v{t3}""")
    tw = [f"s_lshl_b32 s3, s{sW}, 4", f"v_cvt_f32_u32 v{t0}, s3", f"v_add_f32 v{t1}, v{t1}, v{t0}"]
    for r in range(4):
        if r: tw.append(f"v_add_f32 v{t1}, 1.0, v{t1}")
        for q in range(1, 4):
            tw += [f"v_mul_f32 v{t2}, {fl(q/576)}, v{t1}", f"v_cos_f32 v{TW+6*r+2*q-2}, v{t2}", f"v_sin_f32 v{TW+6*r+2*q-1}, v{t2}"]
    put(tw[:22])
    st(2)
    for kk in range(2):
        for a in range(4):
            for b in range(a+1, 4): k(f"v_swap_b32 v{L+16*kk+4*a+b}, v{L+16*kk+4*b+a}")
    mf = []
    for m in (0, 2, 1, 3):
        for kk in range(2):
            for c in range(2):
                a = AC+8*m+4*c
                mf.append(f"{MF} {vr(a, 4)}, {vr(L+16*kk+4*m, 4)}, {vr(MB_+8*c+4*kk, 4)}, {'0' if kk == 0 else vr(a, 4)}")
    put(interleave(mf, tw[22:]))
    rest_loads(f"{name}_rl2")
    Z = L; T = L+16
    for r in range(4):
        Rr = lambda m: AC+8*m+r
        I = lambda m: AC+8*m+4+r
        a, b, c, d, u = T, T+2, T+4, T+6, T+8
        k(f"""
v_add_f32 v{a}, v{Rr(0)}, v{Rr(2)}
v_add_f32 v{a+1}, v{I(0)}, v{I(2)}
v_sub_f32 v{b}, v{Rr(0)}, v{Rr(2)}
v_sub_f32 v{b+1}, v{I(0)}, v{I(2)}
v_add_f32 v{c}, v{Rr(1)}, v{Rr(3)}
v_add_f32 v{c+1}, v{I(1)}, v{I(3)}
v_sub_f32 v{d}, v{Rr(1)}, v{Rr(3)}
v_sub_f32 v{d+1}, v{I(1)}, v{I(3)}
v_add_f32 v{u}, v{a}, v{c}
v_add_f32 v{u+1}, v{a+1}, v{c+1}
v_sub_f32 v{u+2}, v{b}, v{d+1}
v_add_f32 v{u+3}, v{b+1}, v{d}
v_sub_f32 v{u+4}, v{a}, v{c}
v_sub_f32 v{u+5}, v{a+1}, v{c+1}
v_add_f32 v{u+6}, v{b}, v{d+1}
v_sub_f32 v{u+7}, v{b+1}, v{d}
v_cvt_pk_bf16_f32 v{Z+r}, v{u}, v{u+1}
""")
        for q in range(1, 4):
            cc = TW+6*r+2*q-2
            k(f"v_mul_f32 v{T+2*q}, v{cc}, v{u+2*q}\nv_mul_f32 v{T+2*q+1}, v{cc}, v{u+2*q+1}")
        for q in range(1, 4):
            ss = TW+6*r+2*q-1
            k(f"v_fma_f32 v{T+2*q}, -v{ss}, v{u+2*q+1}, v{T+2*q}\nv_fmac_f32 v{T+2*q+1}, v{ss}, v{u+2*q}")
        for q in range(1, 4): k(f"v_cvt_pk_bf16_f32 v{Z+4*q+r}, v{T+2*q}, v{T+2*q+1}")
    k(f"s_lshl_b32 s3, s{sW}, 10\ns_add_u32 s3, s3, {EZ}\nv_add_u32 v{vEW}, s3, v{vDX}")
    for q in range(4): k(f"ds_write_b128 v{vEW}, {vr(Z+4*q, 4)} offset:{q*5120}")
    k(f"{name}_noA:")
    k(f"""
v_lshlrev_b32 v{vSR}, 6, v{n_}
v_add_u32 v{vSR}, {ES}, v{vSR}
v_lshrrev_b32 v{vSW}, 1, v{g_}
v_lshl_add_u32 v{vSW}, v{vSW}, 2, v{vSR}
s_lshl_b32 s3, s{sW}, 3
v_add_u32 v{vSW}, s3, v{vSW}
v_lshrrev_b32 v{vHS}, 1, v{n_}
v_lshlrev_b32 v{vHS}, 7, v{vHS}
v_and_b32 v{t0}, 1, v{n_}
v_lshl_add_u32 v{vHS}, v{t0}, 6, v{vHS}
v_lshl_add_u32 v{vHS}, v{g_}, 4, v{vHS}
v_add_u32 v{vEW}, {EZ}, v{vDX}
s_lshl_b32 s3, s{sS2}, 1
s_add_u32 s3, s3, s{sNT}
s_mul_i32 s4, s3, 18432
s_lshl_b32 s5, s{sW}, 11
s_add_u32 s{sSO}, s4, s5
s_add_u32 s{sVB}, s4, 16384
s_and_b32 s3, s3, 7
s_lshl_b32 s3, s3, 2
s_lshl_b32 s4, s{sMT}, 11
s_add_u32 s{sXO}, s3, s4
s_mov_b32 s5, 0xffff0000
""")
    A2 = AC; ZR = L
    def final(nmt):
        so = [sSO, sVB]
        for mt in range(nmt):
            for r in range(4):
                for q in range(4):
                    src = XX+8*mt+2*r+(q >> 1); dst = A2+16*mt+4*q+r
                    k(f"v_and_b32 v{dst}, s5, v{src}" if q & 1 else f"v_lshlrev_b32 v{dst}, 16, v{src}")
        k.wait_lg(); k("s_barrier")
        st(3)
        idx = [(jt, q) for jt in range(5) for q in range(4)]
        rd = lambda i: f"ds_read_b128 {vr(ZR+4*(i % 8), 4)}, v{vEW} offset:{idx[i][1]*5120+idx[i][0]*1024}"
        for i in range(7): k(rd(i))
        for i, (jt, q) in enumerate(idx):
            for mt in range(nmt):
                a = A2+16*mt+4*q
                k(f"{MF} {vr(a, 4)}, {vr(G+20*mt+4*jt, 4)}, {vr(ZR+4*(i % 8), 4)}, {vr(a, 4)}")
            if i+7 < 20: k(rd(i+7))
        if "p3st" in abl: k("s_memrealtime s[62:63]")
        first = True
        for mt in range(nmt):
            for q in range(4):
                for p in range(2):
                    a = A2+16*mt+4*q+2*p
                    if first: k(f"v_mov_b64 {vr(t0, 2)}, {vr(a, 2)}\nv_pk_mul_f32 {vr(t2, 2)}, {vr(a, 2)}, {vr(a, 2)}"); first = False
                    else: k(f"v_pk_add_f32 {vr(t0, 2)}, {vr(t0, 2)}, {vr(a, 2)}\nv_pk_fma_f32 {vr(t2, 2)}, {vr(a, 2)}, {vr(a, 2)}, {vr(t2, 2)}")
        k(f"""
v_add_f32 v{t0}, v{t0}, v{t1}
v_add_f32 v{t2}, v{t2}, v{t3}
v_permlane32_swap_b32 v{t0}, v{t2}
v_add_f32 v{t0}, v{t0}, v{t2}
v_mov_b32 v{t1}, v{t0}
v_permlane16_swap_b32 v{t0}, v{t1}
v_add_f32 v{t0}, v{t0}, v{t1}
ds_write_b32 v{vSW}, v{t0}
""")
        def pack(dst, mt, h):
            for p in range(4):
                r, q = 2*h+(p >> 1), 2*(p & 1)
                k(f"v_cvt_pk_bf16_f32 v{dst+p}, v{A2+16*mt+4*q+r}, v{A2+16*mt+4*(q+1)+r}")
        for mt in range(nmt):
            for h in range(2): pack(XX+8*mt+4*h, mt, h)
        k.wait_lg(); k("s_barrier")
        if "p3st" in abl: k("s_memrealtime s[64:65]")
        for w in range(4): k(f"ds_read_b128 {vr(L+4*w, 4)}, v{vSR} offset:{16*w}")
        for a, b in ((0, 2), (4, 6), (8, 10), (12, 14), (0, 4), (8, 12), (0, 8)):
            k(f"v_pk_add_f32 {vr(L+a, 2)}, {vr(L+a, 2)}, {vr(L+b, 2)}")
        k(f"""
v_mul_f32 v{t0}, {fl(1/576)}, v{L}
v_mul_f32 v{t1}, v{t0}, v{t0}
v_fmamk_f32 v{t2}, v{L+1}, {fl(1/576)}, v{t1}
v_fma_f32 v{t2}, -2.0, v{t1}, v{t2}
v_max_f32 v{t2}, 0, v{t2}
v_add_f32 v{t2}, {fl(1e-5)}, v{t2}
v_rsq_f32 v{t2}, v{t2}
v_mul_f32 v{t2}, {fl(LOG2E)}, v{t2}
v_mul_f32 v{t0}, -v{t0}, v{t2}
v_mov_b32 v{t3}, v{t2}
v_mov_b32 v{t1}, v{t0}
""")
        for mt in range(nmt):
            for q in range(4):
                for p in range(2):
                    a = A2+16*mt+4*q+2*p
                    k(f"v_pk_fma_f32 {vr(a, 2)}, {vr(a, 2)}, {vr(t2, 2)}, {vr(t0, 2)}")
            for h in range(2):
                pack(L+8*mt+4*h, mt, h)
                k(f"buffer_store_dwordx4 {vr(L+8*mt+4*h, 4)}, v{vDX}, {S4(sX)}, s{so[mt]} offen offset:{h*1024} sc1", tag="XF")
    def hstores(lab):
        for mt in range(2):
            if mt: k(f"s_cmp_lg_u32 s{sW}, {W2}\ns_cbranch_scc1 {lab}")
            for h in range(2): k(f"buffer_store_dwordx4 {vr(XX+8*mt+4*h, 4)}, v{vHS}, {S4(sH)}, s{[sSO, sVB][mt]} offen offset:{h*1024} sc1", tag="H")
        k(f"{lab}:")
    k(f"s_cmp_eq_u32 s{sW}, {W2}\ns_cbranch_scc1 {name}_fin2")
    final(1)
    k(f"s_branch {name}_fin\n{name}_fin2:")
    final(2)
    k(f"{name}_fin:")
    if "p3st" in abl: k("s_memrealtime s[60:61]")
    k(f"s_cmp_eq_u32 s{sS2}, -1\ns_cbranch_scc1 {name}_su\ns_cmp_ge_u32 s{sW}, 5\ns_cbranch_scc1 {name}_sudone\n{name}_su:")
    mlp_setup()
    k(f"{name}_sudone:")
    def dmaX(s):
        return [(f"s_add_u32 m0, s{sM0x}, {SLOT_A[s % 3]}\ns_add_u32 s94, s{sKX}, {s*1024}\nbuffer_load_dwordx4 v{vDX}, {S4(sX)}, s94 offen {XPOL} lds", f"A{s}")]
    def dmaW(s, six):
        o = SLOT_A[s % 3]
        g = [f"s_add_u32 m0, s{sM0a}, {o}\ns_add_u32 s95, s{sKW}, {((s >> 1)*64 + (s & 1)*8)*9216}\nbuffer_load_dwordx4 v{vD0}, {S4(sG)}, s95 offen {WPOL} lds",
             f"s_add_u32 m0, s{sM0a}, {o+1024}\nbuffer_load_dwordx4 v{vD1}, {S4(sG)}, s95 offen {WPOL} lds",
             f"s_add_u32 m0, s{sM0a}, {o+18432}\nbuffer_load_dwordx4 v{vD0}, {S4(sU)}, s95 offen {WPOL} lds",
             f"s_add_u32 m0, s{sM0a}, {o+18432+1024}\nbuffer_load_dwordx4 v{vD1}, {S4(sU)}, s95 offen {WPOL} lds"]
        if six: g.append(f"s_add_u32 m0, s{sM0s}, {o}\nbuffer_load_dwordx4 v{vD2}, {S4(sS)}, s95 offen {WPOL} lds")
        return [(x, f"A{s}") for x in g]
    def dmaB(u, five):
        o = RING_B[u % 4]
        return [(f"s_add_u32 m0, s{sM0d}, {o+i*1024}\ns_add_u32 s94, s{sKD}, {i*8*1152+u*128}\nbuffer_load_dwordx4 v{vDD}, {S4(sD)}, s94 offen {DPOL} lds", f"B{u}") for i in range(4 if five else 5)]
    for s in (0, 1):
        put(dmaW(s, False))
        k(f"s_cmp_lt_u32 s{sW}, 4\ns_cbranch_scc1 {name}_w{s}")
        put(dmaW(s, True)[4:])
        k(f"{name}_w{s}:")
    def touch(mats, lab, dst):
        k(f"""
s_lshr_b32 s3, s2, 3
s_lshl_b32 s3, s3, 3
s_add_u32 s3, s3, s{sW}
s_cmp_ge_u32 s3, {81*len(mats)}
s_cbranch_scc1 {lab}_x
s_cmp_ge_u32 s3, 81
s_cselect_b32 s4, 81, 0
s_sub_u32 s4, s3, s4
v_lshl_add_u32 v{vT0}, s4, 6, v{vL}
v_mul_u32_u24 v{vT1}, 7282, v{vT0}
v_lshrrev_b32 v{vT1}, 16, v{vT1}
v_mul_u32_u24 v{vT2}, 9, v{vT1}
v_sub_u32 v{vT2}, v{vT0}, v{vT2}
v_mul_u32_u24 v{vT1}, {9216 if mats[0] != sD else 1152}, v{vT1}
v_lshl_add_u32 v{vT1}, v{vT2}, 7, v{vT1}
s_mul_i32 s4, s{sXC}, {1152 if mats[0] != sD else 576*1152}
""")
        if len(mats) == 2: k(f"s_cmp_ge_u32 s3, 81\ns_cbranch_scc1 {lab}_u")
        k(f"buffer_load_dword v{dst}, v{vT1}, {S4(mats[0])}, s4 offen {TPOL if len(mats) == 2 else TPOLD}", tag="touch")
        if len(mats) == 2: k(f"s_branch {lab}_x\n{lab}_u:\nbuffer_load_dword v{dst}, v{vT1}, {S4(mats[1])}, s4 offen {TPOL}")
        k(f"{lab}_x:")
    vTW = 31
    k(f"""
s_cmp_eq_u32 s{sB}, 0
s_cselect_b32 s{sV}, s{sG}, s{sU}
s_cselect_b32 s{sV+1}, s{sG+1}, s{sU+1}
s_mov_b32 s{sV+2}, {N_W}
s_mov_b32 s{sV+3}, 0x20000
s_and_b32 s3, s{sW}, 3
s_mul_i32 s3, s3, 5
v_add_u32 v{vTW}, s3, v{vL}
v_cmp_lt_u32 vcc, 8, v{vTW}
v_cndmask_b32 v{vT0}, 0, 1, vcc
v_mul_u32_u24 v{vT1}, 9, v{vT0}
v_sub_u32 v{vT1}, v{vTW}, v{vT1}
s_lshl_b32 s3, s{sMT}, 1
v_add_u32 v{vT0}, s3, v{vT0}
v_and_b32 v{vT2}, 24, v{vT0}
v_add_u32 v{vT0}, v{vT0}, v{vT2}
v_mul_u32_u24 v{vT0}, 9216, v{vT0}
v_lshl_add_u32 v{vT0}, v{vT1}, 7, v{vT0}
s_mul_i32 s3, s{sXC}, 1152
v_add_u32 v{vT0}, s3, v{vT0}
v_mov_b32 v{vT1}, {OOB}
v_cmp_gt_u32 vcc, 18, v{vTW}
v_cndmask_b32 v{vT0}, v{vT1}, v{vT0}, vcc
v_cmp_gt_u32 vcc, 5, v{vL}
v_cndmask_b32 v{vTW}, v{vT1}, v{vT0}, vcc
""")
    def roll(s):
        if "notouch" in abl or "noroll" in abl or s >= 18: return []
        return [(f"s_mov_b32 s94, {((s >> 1)*64 + (s & 1)*8)*9216}\nbuffer_load_dword v28, v{vTW}, {S4(sV)}, s94 offen {TPOL}", "touch")]
    k(f"""s_cmp_eq_u32 s{sS2}, -1
s_cbranch_scc1 {name}_p3done
v_lshl_add_u32 v{t0}, v{vL}, 7, s{sXO}
v_mov_b32 v{t1}, {OOB}
v_cmp_gt_u32 vcc, 16, v{vL}
v_cndmask_b32 v{t0}, v{t1}, v{t0}, vcc
v_mov_b32 v{t1}, 1
""")
    k.wait_vm("XF")
    k(f"""s_barrier
s_cmp_lg_u32 s{sW}, 0
s_cbranch_scc1 {name}_p3sig
buffer_store_dword v{t1}, v{t0}, {S4(sF)}, 0 offen sc1
{name}_p3sig:
""")
    hstores(f"{name}_hs")
    k(f"{name}_p3done:")
    st(4)

    def path(five):
        nt5 = 5 if five else 4
        nf = 2*nt5
        P = "a" if five else "b"
        k(f"""
s_lshl_b32 s3, s{sMT}, 4
s_add_u32 s3, s3, s{sSL}
s_lshl_b32 s3, s3, 7
s_lshl_b32 s4, s{sW}, 2
s_add_u32 s{sLN}, s3, s4
buffer_load_dword v{vQ}, v{vZ}, {S4(sF)}, s{sLN} offen sc1
v_lshrrev_b32 v{vT0}, 4, v{vL}
v_bfe_u32 v{vT1}, v{vL}, 2, 2
v_lshl_add_u32 v{vT2}, v{vT0}, 3, v{vT1}
v_mul_u32_u24 v{vT2}, 576, v{vT2}
v_and_b32 v{vWB[0]}, 3, v{vL}
v_lshl_add_u32 v{vT2}, v{vWB[0]}, 3, v{vT2}
s_mul_i32 s3, s{sA}, 9
s_add_u32 s3, s3, {0 if five else 5}
s_lshl_b32 s4, s3, 5
s_add_u32 s4, s4, 8192
v_add_u32 v{vT2}, s4, v{vT2}
s_and_b32 s3, s3, 1
s_cmp_eq_u32 s3, 0
s_cselect_b32 s3, 32, -32
v_and_b32 v{vWB[0]}, 1, v{vT0}
v_mul_i32_i24 v{vWB[0]}, s3, v{vWB[0]}
v_add_u32 v{vWA[0]}, v{vT2}, v{vWB[0]}
v_sub_u32 v{vWB[0]}, v{vT2}, v{vWB[0]}
s_lshl_b32 s3, s{sRG}, 12
v_add_u32 v{vXr[0]}, s3, v{vDX}
""")
        for i in (1, 2):
            k(f"v_add_u32 v{vXr[i]}, {SLOT_A[i]}, v{vXr[0]}\nv_add_u32 v{vWA[i]}, {SLOT_A[i]}, v{vWA[0]}\nv_add_u32 v{vWB[i]}, {SLOT_A[i]}, v{vWB[0]}")
        k(f"""
v_lshrrev_b32 v{vDD}, 3, v{vL}
v_mul_u32_u24 v{vDD}, 1152, v{vDD}
v_bfe_u32 v{vT2}, v{vL}, 1, 2
v_xor_b32 v{vT2}, v{vT2}, v{vT0}
v_lshl_add_u32 v{vDD}, v{vT2}, 5, v{vDD}
v_and_b32 v{vT2}, 1, v{vL}
v_lshl_add_u32 v{vDD}, v{vT2}, 4, v{vDD}
s_mul_i32 s3, s{sW}, {4 if five else 5}
s_sub_u32 s3, s3, {0 if five else 4}
s_lshl_b32 s{sM0d}, s3, 10
s_mul_i32 s3, s3, {8*1152}
s_mul_i32 s{sKD}, s{sSL}, {288*1152}
s_add_u32 s{sKD}, s{sKD}, s3
v_lshl_add_u32 v{vWD[0]}, v{vT0}, 2, v{vT1}
v_bfe_u32 v{vT2}, v{vWD[0]}, 1, 2
v_xor_b32 v{vT2}, s{sCG}, v{vT2}
v_lshlrev_b32 v{vT2}, 5, v{vT2}
v_lshl_add_u32 v{vWD[0]}, v{vWD[0]}, 7, v{vT2}
v_and_b32 v{vT2}, 3, v{vL}
v_lshl_add_u32 v{vWD[0]}, v{vT2}, 3, v{vWD[0]}
v_add_u32 v{vWD[1]}, {RING_B[1]}, v{vWD[0]}
v_add_u32 v{vWD[2]}, {RING_B[2]}, v{vWD[0]}
v_add_u32 v{vWD[3]}, {RING_B[3]}, v{vWD[0]}
s_mul_i32 s3, s{sRG}, {4*9*1024}
s_add_u32 s3, s3, {HH}
v_add_u32 v{vHR}, s3, v{vDX}
s_mul_i32 s4, s{sA}, 9
s_add_u32 s4, s4, {0 if five else 5}
s_lshr_b32 s5, s4, 1
s_lshl_b32 s5, s5, 10
s_add_u32 s3, s3, s5
s_and_b32 s4, s4, 1
s_lshl_b32 s5, s4, 3
s_add_u32 s5, s5, s3
v_add_u32 v{vHW}, s5, v{vDX}
s_mul_i32 s5, s4, 1024
s_add_u32 s5, s5, s3
s_xor_b32 s4, s4, 1
s_lshl_b32 s4, s4, 3
s_add_u32 s5, s5, s4
v_add_u32 v{vHW2}, s5, v{vDX}
v_bfe_u32 v{vT2}, v{vL}, 1, 3
v_lshlrev_b32 v{vPO}, 10, v{vT2}
v_and_b32 v{vT2}, 1, v{vL}
v_lshl_add_u32 v{vPO}, v{vT2}, 6, v{vPO}
v_lshl_add_u32 v{vPO}, v{vT0}, 4, v{vPO}
s_mul_i32 s{sRD}, s{sMT}, {16*9*16384}
s_mul_i32 s3, s{sSL}, {9*16384}
s_add_u32 s{sPO}, s{sRD}, s3
s_lshl_b32 s4, s{sRG}, 13
s_add_u32 s{sPO}, s{sPO}, s4
s_lshl_b32 s4, s{sCG}, 8
s_add_u32 s{sPO}, s{sPO}, s4
""")
        if not five:
            for q in range(2, ahead): put(roll(q))
        spin(f"{name}_{P}x", f"buffer_load_dword v{vQ}, v{vZ}, {S4(sF)}, s{sLN} offen sc1", f"v_cmp_eq_u32 vcc, 0, v{vQ}")
        put(dmaX(0)); put(dmaX(1))
        st(5)
        ACC = 256-nf*16; XB = [64, 80]; WR = 32
        def acc(f, nt): return ACC + f*16 + nt*4
        def wreg(s, f): return WR + 4*((s*nf+f) % 8)
        def wread(s, f):
            i, u = f >> 1, f & 1
            va = (vWA if i % 2 == 0 else vWB)[s % 3]; d = wreg(s, f)
            return [f"ds_read_b64_tr_b16 v[{d+2*h}:{d+2*h+1}], v{va} offset:{h*4*576 + i*32 + u*18432}" for h in range(2)]
        def mfa(s, f):
            w = wreg(s, f)
            return [f"{MF} {vr(acc(f, nt), 4)}, {vr(w, 4)}, {vr(XB[s % 2]+4*nt, 4)}, {'0' if s == 0 else vr(acc(f, nt), 4)}" for nt in range(4)]
        vRD, vHO, vOO, vFL, vFS, SEL, vFV, vTR, vHT = 2, 3, 4, 8, 27, 12, 5, 31, 11
        late = f"""v_mov_b32 v{vFS}, {OOB}
v_lshrrev_b32 v5, 4, v{vL}
v_and_b32 v6, 3, v{vL}
v_bfe_u32 v7, v{vL}, 3, 1
v_mul_u32_u24 v{vRD}, {9*16384}, v5
v_lshl_add_u32 v{vRD}, v7, 8, v{vRD}
v_and_b32 v{vHO}, 7, v{vL}
v_lshl_add_u32 v{vRD}, v{vHO}, 4, v{vRD}
s_lshl_b32 s4, s{sRG}, 1
v_add_u32 v7, s4, v7
s_lshr_b32 s3, s{sSL}, 3
s_lshl_b32 s4, s{sSL}, 10
s_add_u32 s{sRD}, s{sRD}, s4
s_and_b32 s5, s{sSL}, 7
s_lshl_b32 s5, s5, 7
v_lshrrev_b32 v{vTR}, 3, v{vL}
s_lshl_b32 s4, s{sRG}, 3
v_add_u32 v{vTR}, s4, v{vTR}
v_mul_u32_u24 v{vTR}, {9*16384}, v{vTR}
v_and_b32 v14, 7, v{vL}
v_lshl_add_u32 v{vTR}, v14, 7, v{vTR}
v_add_u32 v{vTR}, s{sRD}, v{vTR}
s_lshl_b32 s4, s{sA}, 7
s_add_u32 s{sRD}, s{sRD}, s4
s_lshl_b32 s4, s{sRG}, 9
s_add_u32 s{sRD}, s{sRD}, s4
s_lshl_b32 s{sLN}, s{sMT}, 2
s_lshl_b32 s3, s3, 1
s_add_u32 s{sLN}, s{sLN}, s3
s_lshl_b32 s3, s{sLN}, 1
s_and_b32 s4, s{sW}, 3
s_add_u32 s3, s3, s4
s_mul_i32 s3, s3, 18432
s_add_u32 s3, s3, s5
v_lshl_add_u32 v{vHT}, v{vL}, 10, s3
v_cmp_gt_u32 vcc, 18, v{vL}
v_cndmask_b32 v{vHT}, v{vFS}, v{vHT}, vcc
s_add_u32 s{sLN}, s{sLN}, s{sA}
s_lshl_b32 s3, s{sLN}, 1
v_add_u32 v{vHO}, s3, v5
v_mul_u32_u24 v{vHO}, 18432, v{vHO}
v_lshrrev_b32 v14, 1, v6
v_lshl_add_u32 v{vHO}, v14, 10, v{vHO}
v_lshl_add_u32 v{vHO}, v7, 4, v{vHO}
v_and_b32 v14, 1, v6
v_lshl_add_u32 v{vHO}, v14, 3, v{vHO}
v_add_u32 v{vHO}, s5, v{vHO}
v_bfe_u32 v14, v{vL}, 2, 1
v_lshl_add_u32 v{vHO}, v14, 6, v{vHO}
s_lshr_b32 s4, s5, 6
v_lshl_add_u32 v{vOO}, v5, 4, s4
v_add_u32 v{vOO}, v{vOO}, v14
v_lshl_add_u32 v{vOO}, v{vOO}, 6, s{sLN}
v_mul_u32_u24 v{vOO}, 1152, v{vOO}
v_lshl_add_u32 v{vOO}, v7, 5, v{vOO}
v_lshl_add_u32 v{vOO}, v6, 3, v{vOO}
v_cmp_gt_u32 vcc, 32, v{vL}
v_cndmask_b32 v{vHO}, v{vFS}, v{vHO}, vcc
v_cndmask_b32 v{vOO}, v{vFS}, v{vOO}, vcc
s_lshl_b32 s4, s{sMT}, 11
s_add_u32 s4, s4, {F_2}
s_lshl_b32 s5, s{sSL}, 2
s_add_u32 s5, s5, s4
v_lshl_add_u32 v5, v{vL}, 7, s5
v_cmp_gt_u32 vcc, 16, v{vL}
v_cndmask_b32 v{vFS}, v{vFS}, v5, vcc
s_lshl_b32 s5, s{sSL}, 7
s_add_u32 s5, s5, s4
v_and_b32 v5, 15, v{vL}
v_lshl_add_u32 v{vFL}, v5, 2, s5
s_mov_b32 s{sLN}, {LN2!r}""".split("\n")
        sel = f"""v_and_b32 v5, 1, v{vL}
v_lshlrev_b32 v5, 4, v5
s_movk_i32 s3, 0x3f80
v_lshlrev_b32 v5, v5, s3
v_bfe_u32 v6, v{vL}, 1, 3""".split("\n")
        for i in range(4): sel += [f"v_cmp_eq_u32 vcc, {i}, v6", f"v_cndmask_b32 v{SEL+i}, 0, v5, vcc"]
        sel += [f"v_mov_b32 v{vFV}, 1"]
        def split_m0(d):
            out = []
            for t, tag in d:
                ls = t.split("\n")
                out += ["\n".join(ls[:-1]), (ls[-1], tag)]
            return out
        def spread_in(seq, dma, every):
            items = split_m0(dma); out = []; n = 0; j = 0
            for x in seq:
                out.append(x)
                if isinstance(x, str) and x.startswith("v_mfma"):
                    n += 1
                    if j < len(items) and (j % 2 == 1 or n % every == every-1): out.append(items[j]); j += 1
            return out + items[j:]
        k.wait_lg(); k.wait_vm("A0"); k("s_barrier")
        st(6)
        if prio == ("lo" if five else "hi"): k("s_setprio 1")
        def glu(i):
            out = []
            for np_ in range(2):
                g, u = acc(2*i, 2*np_), acc(2*i+1, 2*np_)
                out += [f"v_exp_f32 v{g+r}, -v{g+r}" for r in range(8)]
                out += [f"v_pk_add_f32 {vr(g+r, 2)}, {vr(g+r, 2)}, 1.0 op_sel_hi:[1,0]" for r in range(0, 8, 2)] if pk else [f"v_add_f32 v{g+r}, 1.0, v{g+r}" for r in range(8)]
                out += [f"v_rcp_f32 v{g+r}, v{g+r}" for r in range(8)]
                out += [f"v_pk_mul_f32 {vr(g+r, 2)}, {vr(g+r, 2)}, {vr(u+r, 2)}" for r in range(0, 8, 2)] if pk else [f"v_mul_f32 v{g+r}, v{g+r}, v{u+r}" for r in range(8)]
                for q in range(2): out += [f"v_cvt_pk_bf16_f32 v{u+4*q}, v{g+4*q}, v{g+4*q+1}", f"v_cvt_pk_bf16_f32 v{u+4*q+1}, v{g+4*q+2}, v{g+4*q+3}"]
            return out
        hwrite = lambda i: [f"ds_write_b64 v{vHW if i % 2 == 0 else vHW2}, {vr(acc(2*i+1, nt), 2)} offset:{nt*9*1024 + (i >> 1)*1024}" for nt in range(4)]
        xread = lambda s: [f"ds_read_b128 {vr(XB[s % 2]+4*nt, 4)}, v{vXr[s % 3]} offset:{nt*1024}" for nt in range(4)]
        NS = 16 if fuse else 18
        for s in range(NS):
            put(xread(s))
            for f in range(look): put(wread(s, f))
            dma = dmaX(s+2) + dmaW(s+2, not five) if s+2 < 18 else dmaB(s-16, five)
            if not five: dma = dma + roll(s+ahead)
            seq = sum((mfa(s-1, f) for f in range(nf-nd, nf)), []) if s > 0 else []
            for f in range(nf-nd):
                extra = late[f*len(late)//(nf-nd):(f+1)*len(late)//(nf-nd)] if s == 17 else []
                seq += interleave(mfa(s, f), (wread(s, f+look) if f+look < nf else []) + extra)
            put(spread_in(seq, dma, spread))
            if s == dstage and "notouch" not in abl: touch([sD], f"{name}_{P}td", 29)
            k.wait_lg(); k.wait_vm(f"A{s+1}", "A17" if fuse and s == 15 else "-"); k("s_barrier")
        if fuse:
            n0 = 16*nf
            wj = lambda j: WR + 4*((n0+j) % 8)
            def rd(j):
                f, s = j >> 1, 16 + (j & 1); i, u = f >> 1, f & 1
                va = (vWA if i % 2 == 0 else vWB)[s % 3]; d = wj(j)
                return [f"ds_read_b64_tr_b16 v[{d+2*h}:{d+2*h+1}], v{va} offset:{h*4*576 + i*32 + u*18432}" for h in range(2)]
            def mm(f): return [f"{MF} {vr(acc(f, nt), 4)}, {vr(wj(2*f+c), 4)}, {vr(XB[c]+4*nt, 4)}, {vr(acc(f, nt), 4)}" for nt in range(4) for c in range(2)]
            put(xread(16))
            for j in range(4): put(rd(j))
            put(spread_in(sum((mfa(15, f) for f in range(nf-nd, nf)), []), dmaB(0, five), 2))
            put(xread(17))
            for f in range(nf):
                fill = (rd(2*f+4) + rd(2*f+5)) if f+2 < nf else []
                if f < 2: fill = fill + late[f*len(late)//2:(f+1)*len(late)//2]
                else:
                    gl = glu(f//2 - 1); fill = fill + gl[(f % 2)*len(gl)//2:(f % 2 + 1)*len(gl)//2]
                put(interleave(mm(f), fill))
            k.wait_lg(); k("s_barrier")
            st(7)
            put(dmaB(1, five))
            for i in range(nt5-1): put(hwrite(i))
            put(sel)
            put(glu(nt5-1)); put(hwrite(nt5-1))
        else:
            put(sum((mfa(17, f) for f in range(nf-nd, nf)), []))
            st(7)
            for i in range(nt5): put(glu(i)); put(hwrite(i))
            put(sel)
        if prio: k("s_setprio 0")
        k.wait_lg(); k.wait_vm("B0"); k("s_barrier")
        st(8); stb(0)
        if "cnt" in abl: k("s_mov_b32 s99, 0")
        HB = 112; AB = [80, 96]; WG = [28, 40, 52]; SD = 64
        def hreg(kp, nt): return HB + (kp*4+nt)*4
        def wgreg(gi, c): return WG[gi] + 4*c
        def wdread(u, gi):
            out = []
            for c in range(3):
                d = wgreg(gi, c); kp = gi*3+c
                out += [f"ds_read_b64_tr_b16 v[{d+2*h}:{d+2*h+1}], v{vWD[u % 4]} offset:{kp*4096 + h*2048}" for h in range(2)]
            return out
        def mfb(u, gi):
            out = []
            for nt in range(4):
                a = AB[u % 2]+4*nt
                for c in range(3):
                    out.append(f"{MF} {vr(a, 4)}, {vr(wgreg(gi, c), 4)}, {vr(hreg(gi*3+c, nt), 4)}, {'0' if gi == 0 and c == 0 else vr(a, 4)}")
            return out
        cvt = lambda u, h: [f"v_cvt_pk_bf16_f32 v{AB[u % 2]+8*h+q}, v{AB[u % 2]+8*h+2*q}, v{AB[u % 2]+8*h+2*q+1}" for q in range(4)]
        hread = lambda kp: [f"ds_read_b128 {vr(hreg(kp, nt), 4)}, v{vHR} offset:{(nt*9+kp)*1024}" for nt in range(4)]
        dmat = lambda t: (dmaB(2, five) + dmaB(3, five)) if t == 1 else (dmaB(t+2, five) if 2 <= t <= 6 else [])
        pst = lambda u, h: (f"s_add_u32 s3, s{sPO}, {u*16384}\nbuffer_store_dwordx4 {vr(AB[u % 2]+8*h, 4)}, v{vPO}, {S4(sP)}, s3 offen offset:{h*128} sc1", f"P{u}")
        epib = lambda u: cvt(u, 0) + [pst(u, 0)] + cvt(u, 1) + [pst(u, 1)]
        def signal(ph):
            if five: k(f"s_cmp_lg_u32 s{sW}, 0\ns_cbranch_scc1 {name}_sig{ph}\ns_mov_b32 s3, {ph*32768}\nbuffer_store_dword v{vFV}, v{vFS}, {S4(sF)}, s3 offen sc1\n{name}_sig{ph}:")
        poll = lambda ph, tv: f"s_mov_b32 s3, {ph*32768}\nbuffer_load_dword v{tv}, v{vFL}, {S4(sF)}, s3 offen sc1"
        def check(ph, tv): spin(f"{name}_{P}c{ph}", poll(ph, tv).split("\n")[1], f"s_mov_b32 s3, {ph*32768}\nv_cmp_eq_u32 vcc, 0, v{tv}")
        rounds = lambda ph: list(range(PH[ph-1]+1 if ph else 0, PH[ph]+1))
        sig_at = {c+lag+1: ph for ph, c in enumerate(PH) if c+lag+1 <= 8}
        tch_at = {u+1: ph for u, ph in sig_at.items() if u+1 <= 8 and ph < ntouch}
        for u in range(9):
            put(wdread(u, 0))
            if u in sig_at: signal(sig_at[u])
            if u == 0:
                for kp in range(3): put(hread(kp))
                put(interleave(mfb(0, 0), wdread(0, 1) + hread(3)+hread(4)+hread(5)))
                put(interleave(mfb(0, 1), wdread(0, 2) + hread(6)+hread(7)+hread(8)))
            else:
                put(spread_in(mfb(u-1, 2), dmat(u), 2 if u > 1 else 1))
                if u in tch_at and not five:
                    ph = tch_at[u]; check(ph, 64)
                    rr = rounds(ph)
                    if ph == 0: k(f"buffer_load_dword v65, v{vHT}, {S4(sH)}, 0 offen sc1", tag="touch")
                    for j in range(0, len(rr), 2):
                        r2 = rr[j+1] if j+1 < len(rr) else None
                        k(f"s_mul_i32 s3, s{sA}, {16384 if r2 is not None else OOB}\ns_add_u32 s3, s3, {rr[j]*16384}\nbuffer_load_dword v65, v{vTR}, {S4(sP)}, s3 offen sc1", tag="touch")
                put(interleave(mfb(u, 0), wdread(u, 1) + epib(u-1)))
                pl = []
                if u+1 in tch_at and not five: pl = [poll(tch_at[u+1], 64)]
                if u == 8: pl = [poll(ph, 64+ph) for ph in sig_at.values() if five or ph not in tch_at.values()]
                put(interleave(mfb(u, 1), wdread(u, 2) + [""]*4 + pl + [""]))
            if u < 8:
                k.wait_lg(); k.wait_vm(f"B{u+1}", f"P{PH[sig_at[u+1]]}" if u+1 in sig_at else "-"); k("s_barrier")
            if u < 9: stb(u+1)
        put(mfb(8, 2))
        st(9)
        put(epib(8))
        mine = [r for r in range(9) if (r % 2 == 0) == five]
        home = lambda r: (HB+24*(r >> 1), HB+24*(r >> 1)+16, HB+24*(r >> 1)+20)
        def rloads(r):
            RB, HV, DA = home(r)
            for pg in range(4): k(f"s_add_u32 s3, s{sRD}, {r*16384 + pg*4*9*16384}\nbuffer_load_dwordx4 {vr(RB+4*pg, 4)}, v{vRD}, {S4(sP)}, s3 offen sc1")
            k(f"s_movk_i32 s3, {r*2048}\nbuffer_load_dwordx2 {vr(HV, 2)}, v{vHO}, {S4(sH)}, s3 offen sc1")
        def rsum(r):
            RB, HV, DA = home(r)
            for pg in range(4): k(f"{MF} {vr(DA, 4)}, {vr(SEL, 4)}, {vr(RB+4*pg, 4)}, {'0' if pg == 0 else vr(DA, 4)}")
            k(f"v_lshlrev_b32 v{RB}, 16, v{HV}\nv_and_b32 v{RB+1}, 0xffff0000, v{HV}\nv_lshlrev_b32 v{RB+2}, 16, v{HV+1}\nv_and_b32 v{RB+3}, 0xffff0000, v{HV+1}")
        def rfin(r):
            RB, HV, DA = home(r)
            for q in range(4): k(f"v_fma_f32 v{RB+q}, v{DA+q}, s{sLN}, v{RB+q}")
            k(f"v_cvt_pk_bf16_f32 v{HV}, v{RB}, v{RB+1}\nv_cvt_pk_bf16_f32 v{HV+1}, v{RB+2}, v{RB+3}")
        rout = lambda r: k(f"buffer_store_dwordx2 {vr(home(r)[1], 2)}, v{vOO}, {S4(sO)}, 0 offen offset:{r*128} {OUTPOL}")
        pend = []
        for ph in sig_at.values():
            if five or ph not in tch_at.values(): check(ph, 64+ph)
            for r in rounds(ph):
                if r in mine: rloads(r); pend.append(r)
        for ph in range(len(sig_at), len(PH)):
            k.wait_vm(f"P{PH[ph]}"); k("s_barrier")
            signal(ph)
            k(poll(ph, 64))
            done = pend[:1] if ph == len(PH)-1 else []
            for r in done: rsum(r); rfin(r)
            check(ph, 64)
            for r in rounds(ph):
                if r in mine: rloads(r); pend.append(r)
            for r in done: rout(r); pend.remove(r)
        for r in pend: rsum(r); rfin(r); rout(r)
        if stamp:
            k("s_waitcnt vmcnt(0) lgkmcnt(0)\ns_memrealtime s[4:5]\ns_waitcnt lgkmcnt(0)")
            for i in range(10): k(f"v_mov_b32 v{28+i}, s{60+2*i}")
            k(f"""v_mov_b32 v38, s4
v_mov_b32 v39, s99
s_lshl_b32 s3, s2, 3
s_add_u32 s3, s3, s{sW}
s_lshl_b32 s3, s3, 6
s_add_u32 s3, s3, {O_STAMP}
v_mov_b32 v40, s3
global_store_dwordx4 v40, v[28:31], s[6:7]
global_store_dwordx4 v40, v[32:35], s[6:7] offset:16
global_store_dwordx4 v40, v[36:39], s[6:7] offset:32""")
            if "orc" in abl and not five:
                X = int(abl.split("orc")[1][:2]); which = abl.split("orc")[1][2:3] or "a"
                k(f"""s_cmp_lg_u32 s2, 0
s_cbranch_scc1 {name}_noorc
s_cmp_lg_u32 s{sW}, 4
s_cbranch_scc1 {name}_noorc
v_mov_b32 v41, {O_STAMP + 262144}
global_load_dword v44, v41, s[6:7]
s_waitcnt vmcnt(0)
v_readfirstlane_b32 s3, v44
s_sub_u32 s3, s{4 if which == 'a' else 60+2*int(which)}, s3
s_cmp_lt_u32 s3, {X*100}
s_cbranch_scc1 {name}_noorc
s_movk_i32 s3, 60
{name}_orcl:
s_sleep 64
s_sub_u32 s3, s3, 1
s_cbranch_scc0 {name}_orcl
{name}_noorc:""")
                k.saved.pop(f"{name}_orcl", None)
            if "until" in abl and not five:
                k(f"""s_cmp_lg_u32 s2, 0
s_cbranch_scc1 {name}_nount
s_cmp_lg_u32 s{sW}, 4
s_cbranch_scc1 {name}_nount
v_mov_b32 v41, {O_STAMP + 262144}
global_load_dword v44, v41, s[6:7]
s_waitcnt vmcnt(0)
v_readfirstlane_b32 s3, v44
{name}_untl:
s_memrealtime s[4:5]
s_waitcnt lgkmcnt(0)
s_sub_u32 s4, s4, s3
s_cmp_lt_u32 s4, 8000
s_cbranch_scc1 {name}_untl
{name}_nount:""")
                k.saved.pop(f"{name}_untl", None)
            if "dbg" in abl and not five:
                k(f"""s_cmp_lg_u32 s2, 0
s_cbranch_scc1 {name}_nodbg
s_cmp_lg_u32 s{sW}, 4
s_cbranch_scc1 {name}_nodbg
s_load_dwordx2 s[8:9], s[0:1], 64
v_mov_b32 v41, {O_STAMP + 262144}
global_load_dwordx4 v[44:47], v41, s[6:7]
global_load_dwordx4 v[48:51], v41, s[6:7] offset:16
v_mov_b32 v41, {O_STAMP + 2*262144}
global_load_dwordx4 v[52:55], v41, s[6:7]
global_load_dwordx4 v[56:59], v41, s[6:7] offset:16
s_waitcnt vmcnt(0) lgkmcnt(0)
s_sub_u32 s8, s8, {int(abl.split('dbg')[1][0])*512}
s_subb_u32 s9, s9, 0
v_sub_u32 v60, v46, v44
v_sub_u32 v61, v50, v44
v_sub_u32 v62, v52, v44
v_sub_u32 v63, v57, v44""")
                for i in range(11): k(f"v_sub_u32 v{64+i}, v{28+i}, v44")
                k(f"""v_mov_b32 v75, 12345
v_mov_b32 v41, 0
global_store_dwordx4 v41, v[60:63], s[8:9]
global_store_dwordx4 v41, v[64:67], s[8:9] offset:16
global_store_dwordx4 v41, v[68:71], s[8:9] offset:32
global_store_dwordx4 v41, v[72:75], s[8:9] offset:48
{name}_nodbg:""")
    k(f"s_cmp_ge_u32 s{sW}, 4\ns_cbranch_scc1 {name}_p4")
    path(True)
    k(f"s_endpgm\n{name}_p4:")
    path(False)
    k(f"{name}_end:")
    return k
```

```python
import sys
from asmlib import *
from pf import *
from fft import *
st = "stamp" in sys.argv
HEADER = open("sequential_preLN__spectral_gfnet__glu_gated_glu__prompt.s.ref").read().split("; Override launch")[0].rstrip()
opt = dict(a.split("=") for a in sys.argv[1:] if "=" in a)
P1O = ("FPOL", "P1PRIO", "SELFPF", "SIDEFIRST", "TLB", "XNT", "NST", "NPOL", "NZ", "CPF", "MAPOS", "GRAM")
p1o = {q: (int(v) if v.isdigit() else v) for q, v in opt.items() if q in P1O}
pfo = {q: (int(v) if v.lstrip("-").isdigit() else v) for q, v in opt.items() if q not in P1O}
if 'p1v3' in sys.argv:
    from fft_v3 import build_p1
mg = int(opt.get('merge', 1))
assert len(str(opt.get('phases', '1478'))) <= 3 or int(opt.get('NZ', 3)) >= 3
assert not int(opt.get('nl', 0)) or (int(opt.get('NZ', 2)) >= 5 and int(opt.get('depi', 17)) == 0)
if int(opt.get('mono', 0)): ks = [build_pf(stamp=st, p1o=p1o, **pfo)]
else: ks = [build_p1(st, MERGE=mg, **p1o)] + ([] if mg else [build_p2(st)]) + [build_pf(stamp=st, **pfo)]
order = list(ks)
if "dummyfirst" in sys.argv or "dummylast" in sys.argv:
    d = K("dummy", 1, 64, vgpr=8); ks.append(d)
    order = [d] + order if "dummyfirst" in sys.argv else order + [d]
DOC = """;
; All 256 workgroups of pf are resident together (one per CU); every hand-off uses write-through stores and sc1 loads."""
print(emit(order, ks, header=HEADER + "\n" + DOC))
print("; " + " ".join(sys.argv[1:]))
for k in ks: print(k.name, k.count, "nops", k.nops, "maxv", k.maxv, file=sys.stderr)
```

```python
import re, copy

_REG = re.compile(r"^(-|abs\(|\|)?([vsa])(?:(\d+)|\[(\d+):(\d+)\])\)?\|?$")
def regs_of(op):
    op = op.strip()
    if op in ("vcc",): return {("s", "vcc")}
    if op in ("exec", "exec_lo", "exec_hi"): return {("s", "exec")}
    if op == "m0": return {("s", "m0")}
    m = _REG.match(op)
    if not m: return set()
    f = m.group(2)
    if m.group(3) is not None: return {(f, int(m.group(3)))}
    return {(f, i) for i in range(int(m.group(4)), int(m.group(5))+1)}

TRANS = ("v_exp_f32", "v_log_f32", "v_rcp_f32", "v_rsq_f32", "v_sqrt_f32", "v_sin_f32", "v_cos_f32")
class Ins:
    __slots__ = ("text", "mn", "kind", "w", "r", "rc", "rab", "data", "passes", "dpp", "trans", "sdwa_dst", "states", "wide", "lds_dma")
    def __init__(s, text):
        s.text = text
        t = text.split(";")[0].strip()
        parts = t.split(None, 1)
        s.mn = mn = parts[0]
        rest = parts[1] if len(parts) > 1 else ""
        ops = []
        depth = 0; cur = ""
        for ch in rest:
            if ch in "[(": depth += 1
            if ch in "])": depth -= 1
            if ch == "," and depth == 0: ops.append(cur.strip()); cur = ""
            else: cur += ch
        if cur.strip(): ops.append(cur.strip())
        mods = ""
        if ops:
            last = ops[-1].split(None, 1)
            ops[-1] = last[0]
            mods = last[1] if len(last) > 1 else ""
        R = [regs_of(o) for o in ops]
        U = lambda l: set().union(*l) if l else set()
        s.w = set(); s.r = set(); s.rc = set(); s.rab = set(); s.data = set(); s.passes = 0
        s.dpp = "_dpp" in mn or "row_" in mods or "quad_perm" in mods
        s.trans = mn.replace("_e32", "").replace("_e64", "") in TRANS
        s.sdwa_dst = ("_sdwa" in mn and "dst_sel:DWORD" not in mods) or ("op_sel" in mods and not mn.startswith("v_pk") and not mn.startswith("v_mfma"))
        s.states = 1; s.wide = False; s.lds_dma = False
        if mn.startswith("v_mfma"):
            s.kind = "mfma"; s.w = R[0]; s.rab = R[1] | R[2]; s.rc = R[3]; s.r = s.rab | s.rc
            s.passes = 8 if "32x32" in mn else 4
        elif mn.startswith("v_cmpx"):
            s.kind = "valu"; s.w = R[0] | {("s", "exec")}; s.r = U(R[1:])
        elif mn.startswith("v_"):
            s.kind = "valu"
            if mn.startswith(("v_permlane", "v_swap")): s.w = R[0] | R[1]; s.r = R[0] | R[1]
            elif "_co_" in mn or mn.startswith(("v_div_scale", "v_mad_u64")): s.w = R[0] | R[1]; s.r = U(R[2:])
            elif mn == "v_nop": pass
            else:
                s.w = R[0]; s.r = U(R[1:])
                if mn.startswith("v_dot"): s.rab = R[1] | R[2]
                if mn.startswith(("v_fmac", "v_dot2c", "v_writelane", "v_pk_fmac")) or s.dpp or s.sdwa_dst: s.r |= R[0]
        elif mn.startswith("ds_"):
            s.kind = "ds"
            if mn.startswith(("ds_read", "ds_bpermute", "ds_permute", "ds_swizzle")) or "_rtn" in mn: s.w = R[0]; s.r = U(R[1:])
            else: s.r = U(R); s.data = U(R[1:])
        elif mn.startswith("buffer_") or mn.startswith("global_"):
            s.kind = "vmem"
            lds = re.search(r"\blds\b", mods) is not None or "load_lds" in mn
            if mn.startswith(("buffer_wbl2", "buffer_inv")): pass
            elif lds: s.r = U(R) | {("s", "m0")}; s.lds_dma = True
            elif "_load" in mn:
                s.w = R[0]; s.r = U(R[1:])
                if "d16" in mn: s.r |= R[0]
            elif "atomic" in mn:
                ret = "sc0" in mods
                if mn.startswith("global_"):
                    if ret: s.w = R[0]; s.r = U(R[1:])
                    else: s.r = U(R)
                else:
                    s.r = U(R); s.w = R[0] if ret else set()
            else:
                s.r = U(R); s.data = R[0] if mn.startswith("buffer_") else R[1]
                s.wide = "x3" in mn or "x4" in mn
        elif mn.startswith(("s_load", "s_buffer_load", "s_memtime", "s_memrealtime")):
            s.kind = "smem"; s.w = R[0]; s.r = U(R[1:])
        elif mn.startswith("s_"):
            s.kind = "salu"
            if mn == "s_nop": s.states = int(ops[0], 0)+1
            elif mn.startswith(("s_cmp", "s_bitcmp", "s_setpc")): s.r = U(R)
            elif mn.startswith(("s_waitcnt", "s_barrier", "s_branch", "s_cbranch", "s_setprio", "s_sleep", "s_endpgm")): pass
            elif "saveexec" in mn: s.w = R[0] | {("s", "exec")}; s.r = U(R[1:])
            else:
                s.w = R[0]; s.r = U(R[1:])
                if mn.startswith(("s_addk", "s_mulk", "s_cmov", "s_bitset")): s.r |= R[0]
        else:
            raise ValueError("unknown instr: " + text)

def isv(x): return x[0] in "va"
def need_states(p, c):
    n = 0
    if p.kind == "valu":
        pv = {x for x in p.w if isv(x)}; ps = p.w - pv
        if p.mn.startswith("v_dot") and (pv & (c.r | c.w)):
            chain = c.mn == p.mn and not (pv & c.rab)
            if not chain: n = max(n, 3)
        if c.kind == "mfma":
            if pv & c.r: n = max(n, 2)
            if ("s", "exec") in ps: n = max(n, 4)
        if c.kind == "valu":
            if c.mn.startswith("v_permlane"):
                if pv & c.r: n = max(n, 2)
                if ("s", "exec") in ps: n = max(n, 4)
            if c.dpp:
                if pv & c.r: n = max(n, 2)
                if ("s", "exec") in ps: n = max(n, 5)
            if c.mn.startswith(("v_readlane", "v_readfirstlane", "v_writelane")):
                if pv & c.r: n = max(n, 1)
                if ps & c.r: n = max(n, 4)
                if ("s", "exec") in ps: n = max(n, 4)
            if ps & c.r: n = max(n, 2)
            if c.mn.startswith("v_div_fmas") and ("s", "vcc") in ps: n = max(n, 4)
            if p.trans and not c.trans and (pv & c.r): n = max(n, 1)
            if p.sdwa_dst and (pv & (c.r | c.w)): n = max(n, 1)
        if c.kind in ("vmem", "ds") and (ps & c.r): n = max(n, 5)
        if c.kind in ("vmem", "ds") and p.trans and (pv & c.r): n = max(n, 1)
        if c.kind in ("salu", "smem") and (ps & c.r): n = max(n, 1)
    elif p.kind == "mfma":
        big = {4: 8, 8: 12}[p.passes]
        if c.kind == "mfma":
            if p.w & c.rab: n = max(n, big)
            if p.w & c.rc:
                if not (p.w == c.rc and p.passes == c.passes): n = max(n, {4: 6, 8: 10}[p.passes])
            elif p.w & c.w: n = max(n, big)
        elif c.kind in ("valu", "ds", "vmem"):
            if p.w & (c.r | c.w): n = max(n, big)
            if c.kind == "valu" and (p.rc & c.w): n = max(n, {4: 3, 8: 7}[p.passes])
            if c.kind != "valu" and (p.rc & c.w): n = max(n, big)
    elif p.kind == "vmem":
        if p.wide and c.kind in ("valu", "mfma") and (p.data & c.w): n = max(n, 2)
        elif p.wide and (p.data & c.w): n = max(n, 1)
    elif p.kind == "ds":
        if len(p.data) >= 3 and c.kind in ("valu", "mfma") and (p.data & c.w): n = max(n, 2)
    elif p.kind == "salu":
        if ("s", "m0") in p.w and (c.lds_dma or "addtid" in c.mn): n = max(n, 1)
    return n

class Q:
    def __init__(s): s.e = []; s.done = 0
    def clone(s):
        o = Q(); o.e = list(s.e); o.done = s.done; return o
    def younger(s, q): return sum(1 for x in s.e[q+1:] if not x[3])
    def wait(s, n, now):
        if n == 0: s.e = []; s.done = now; return
        for q in range(len(s.e)-1, -1, -1):
            if s.younger(q) >= n:
                s.done = max(s.done, s.e[q][0]); s.e = s.e[q+1:]; return
    @staticmethod
    def merge(a, b):
        A = {x[0]: x for x in a.e}; B = {x[0]: x for x in b.e}
        o = Q(); o.done = min(a.done, b.done)
        for sq in sorted(set(A) | set(B)):
            if sq in A and sq in B: o.e.append((sq, A[sq][1], A[sq][2], A[sq][3] or B[sq][3]))
            else:
                x, other = (A[sq], b) if sq in A else (B[sq], a)
                o.e.append((sq, x[1], x[2], x[3] or sq > other.done))
        return o

class State:
    def __init__(s):
        s.hists = [[]]; s.vm = Q(); s.lg = Q(); s.sm = set()
    def clone(s):
        o = State(); o.hists = [list(h) for h in s.hists]; o.vm = s.vm.clone(); o.lg = s.lg.clone(); o.sm = set(s.sm); return o
    @staticmethod
    def merge(a, b):
        o = State(); o.vm = Q.merge(a.vm, b.vm); o.lg = Q.merge(a.lg, b.lg); o.sm = a.sm | b.sm
        seen = {}
        for h in a.hists + b.hists: seen.setdefault(tuple(id(i) for i in h), h)
        o.hists = [list(h) for h in seen.values()]
        return o

class K:
    def __init__(self, name, grid, block, lds=0, vgpr=128, agpr=0, sgpr=96, auto=True):
        self.name, self.grid, self.block, self.lds = name, grid, block, lds
        self.vgpr, self.agpr, self.sgpr = vgpr, agpr, sgpr
        self.lines = []; self.data = []
        self.auto = auto
        self.st = State()
        self.saved = {}
        self.seq = 0
        self.nops = 0
        self.maxv = 0
        self.count = {}
    def __call__(self, s, tag=None):
        for l in s.strip("\n").split("\n"):
            l = l.strip()
            if not l: continue
            if l.startswith(";"): self.lines.append(l); continue
            if l.endswith(":"): self._label(l[:-1]); continue
            if l.startswith("."): self.lines.append(l); continue
            if not self.auto: self.lines.append(l); continue
            self._ins(l, tag)
    def _label(self, lab):
        self.lines.append(lab + ":")
        for o in self.saved.pop(lab, []):
            self.st = o if self.st is None else State.merge(self.st, o)
        if self.st is None: self.st = State()
    def _emit(self, i):
        self.lines.append(i.text)
        self.count[i.kind] = self.count.get(i.kind, 0) + 1
        seen = {}
        for h in self.st.hists:
            h.append(i)
            d = 0; n = len(h)
            while n > 0 and d < 14: n -= 1; d += h[n].states
            del h[:n]
            seen.setdefault(tuple(id(x) for x in h), h)
        self.st.hists = list(seen.values())
        assert len(self.st.hists) < 256
    def _wait(self, vm=None, lg=None):
        t = "s_waitcnt"
        if vm is not None: t += f" vmcnt({vm})"
        if lg is not None: t += f" lgkmcnt({lg})"
        self._apply_wait(vm, lg)
        self._emit(Ins(t))
    def _apply_wait(self, vm, lg):
        st = self.st
        if vm is not None: st.vm.wait(vm, self.seq)
        if lg is not None:
            if lg == 0: st.lg.wait(0, self.seq); st.sm = set()
            elif not st.sm: st.lg.wait(lg, self.seq)
    def _need(self, q, pred, cap):
        n = None
        for j, x in enumerate(q.e):
            if pred(x):
                m = min(cap, q.younger(j)); n = m if n is None else min(n, m)
        return n
    def _ins(self, text, tag):
        i = Ins(text)
        if tag == "touch": i.w = set()
        if self.st is None: self.st = State()
        st = self.st
        for f, n in (i.w | i.r):
            if f == "v": self.maxv = max(self.maxv, n)
        if i.mn == "s_waitcnt":
            vm = re.search(r"vmcnt\((\d+)\)", text); lg = re.search(r"lgkmcnt\((\d+)\)", text)
            self._apply_wait(int(vm.group(1)) if vm else None, int(lg.group(1)) if lg else None)
            self._emit(i); return
        touch = i.r | i.w
        vm = self._need(st.vm, lambda x: x[2] & touch, 63)
        lg = self._need(st.lg, lambda x: x[2] & touch, 15)
        if (lg is not None and st.sm) or (st.sm & touch): lg = 0
        if vm is not None or lg is not None: self._wait(vm, lg)
        need = 0
        for h in st.hists:
            dist = 0
            for p in reversed(h):
                n = need_states(p, i)
                if n > dist: need = max(need, n-dist)
                dist += p.states
        if need:
            self.nops += need
            self._emit(Ins(f"s_nop {need-1}"))
        self._emit(i)
        self.seq += 1
        if i.kind == "vmem": st.vm.e.append((self.seq, tag, i.w, False))
        elif i.kind == "ds": st.lg.e.append((self.seq, tag, i.w, False))
        elif i.kind == "smem": st.sm |= (i.w or {("s", -1)})
        if i.mn.startswith(("s_cbranch", "s_branch")):
            lab = text.split()[1]
            self.saved.setdefault(lab, []).append(st.clone())
            if i.mn == "s_branch": self.st = None
        if i.mn == "s_endpgm": self.st = None
    def wait_vm(self, *tags):
        n = self._need(self.st.vm, lambda x: x[1] in tags, 63)
        if n is not None: self._wait(vm=n)
    def wait_lg(self, *tags):
        n = self._need(self.st.lg, lambda x: not tags or x[1] in tags, 15)
        if n is not None: self._wait(lg=0 if self.st.sm else n)
    def launch_line(self):
        g = self.grid if isinstance(self.grid, tuple) else (self.grid, 1, 1)
        return f"; @launch kernel={self.name}_kernel grid=({g[0]},{g[1]},{g[2]}) block=({self.block},1,1) lds={self.lds}"
    def text(self):
        assert self.maxv < self.vgpr, (self.name, self.maxv, self.vgpr)
        acc = (self.vgpr + 3)//4*4
        nfv = acc + self.agpr if self.agpr else self.vgpr
        body = "\n".join(self.lines)
        return f""".text
.globl {self.name}_kernel
.p2align 8
.type {self.name}_kernel,@function
{self.name}_kernel:
{body}
s_endpgm
{self.name}_code_end:
{chr(10).join(self.data)}
.section .rodata,"a"
.p2align 6
.amdhsa_kernel {self.name}_kernel
  .amdhsa_next_free_vgpr {nfv}
  .amdhsa_next_free_sgpr {self.sgpr}
  .amdhsa_accum_offset {acc}
  .amdhsa_group_segment_fixed_size 0
  .amdhsa_kernarg_size 80
  .amdhsa_user_sgpr_count 2
  .amdhsa_user_sgpr_kernarg_segment_ptr 1
  .amdhsa_system_sgpr_workgroup_id_x 1
  .amdhsa_float_denorm_mode_32 3
.end_amdhsa_kernel
"""
def emit(launch_order, kernels, header="", tail=""):
    out = [k.launch_line() for k in launch_order]
    if header: out.append(header)
    out.append('.amdgcn_target "amdgcn-amd-amdhsa--gfx950"')
    for k in kernels: out.append(k.text())
    if tail: out.append(tail)
    return "\n".join(out) + "\n"
def vr(a, n=1): return f"v{a}" if n == 1 else f"v[{a}:{a+n-1}]"
def sr(a, n=1): return f"s{a}" if n == 1 else f"s[{a}:{a+n-1}]"
def srd(k, d, base, nbytes):
    k(f"s_mov_b32 s{d}, s{base}\ns_mov_b32 s{d+1}, s{base+1}\ns_mov_b32 s{d+2}, {nbytes}\ns_mov_b32 s{d+3}, 0x20000")
def interleave(main, fill):
    out = []; n, m = len(main), len(fill); j = 0
    for i, x in enumerate(main):
        out.append(x)
        hi = (i+1)*m//n
        out += fill[j:hi]; j = hi
    return out
```

```python
from asmlib import *
from layout import *
from pf import ws_srd
import struct
def fl(x): return "0x%08x" % struct.unpack("<I", struct.pack("<f", x))[0]
MF32 = "v_mfma_f32_16x16x32_bf16"
MF16 = "v_mfma_f32_16x16x16_bf16"

def stamp(k, on, i):
    if on: k(f"s_memrealtime s[{60+2*i}:{61+2*i}]")
def stamp_out(k, on, slot, wavereg, n):
    if not on: return
    k("s_waitcnt vmcnt(0)"); stamp(k, on, n)
    k("s_waitcnt lgkmcnt(0)")
    for i in range(8): k(f"v_mov_b32 v{8+i}, s{60+2*i}" if i <= n else f"v_mov_b32 v{8+i}, 0")
    k(f"""
s_lshl_b32 s3, s2, 3
s_add_u32 s3, s3, {wavereg}
s_lshl_b32 s3, s3, 5
s_add_u32 s3, s3, {O_STAMP + 262144*slot}
v_mov_b32 v16, s3
global_store_dwordx4 v16, v[8:11], s[6:7]
global_store_dwordx4 v16, v[12:15], s[6:7] offset:16
""")

def build_p1(st=False, FPOL="nt", P1PRIO=0, SELFPF=0, SIDEFIRST=0, TLB=0, XNT="nt"):
    XL = 9216
    EX = 4*XL
    k = K("p1", 480, 256, lds=EX+8192+6144, vgpr=136)
    sW, sS2, sJT = 30, 31, 32
    stamp(k, st, 0)
    if SELFPF:
        k(f"""s_getpc_b64 s[4:5]
p1_pc0:
v_lshlrev_b32 v1, 7, v0
v_min_u32 v1, p1_code_end-p1_pc0-4, v1""")
        k("global_load_dword v19, v1, s[4:5]", tag="touch")
    if SIDEFIRST: k("s_add_u32 s3, s2, 320\ns_sub_u32 s4, s2, 128\ns_cmp_lt_u32 s2, 128\ns_cselect_b32 s3, s3, s4\ns_cmp_lt_u32 s2, 448\ns_cselect_b32 s2, s3, s2")
    k(f"""
s_setprio 3
s_load_dwordx4 s[44:47], s[0:1], 0
s_load_dwordx2 s[48:49], s[0:1], 16
s_load_dwordx2 s[6:7], s[0:1], 72
v_lshrrev_b32 v1, 6, v0
v_and_b32 v0, 63, v0
v_readfirstlane_b32 s{sW}, v1
v_lshrrev_b32 v2, 4, v0
v_and_b32 v3, 15, v0
s_cmp_ge_u32 s2, 320
s_cbranch_scc1 p1_side
s_lshr_b32 s{sJT}, s2, 6
s_and_b32 s{sS2}, s2, 63
v_lshrrev_b32 v4, 3, v0
v_and_b32 v5, 7, v0
s_lshl_b32 s3, s{sW}, 9
s_add_u32 s3, s3, s{sS2}
v_lshl_add_u32 v6, v4, 6, s3
v_mul_u32_u24 v6, 1152, v6
v_lshlrev_b32 v4, 1, v4
v_and_b32 v4, 4, v4
v_xor_b32 v5, v5, v4
v_lshl_add_u32 v6, v5, 4, v6
s_mul_i32 s34, s{sW}, {XL}
s_waitcnt lgkmcnt(0)
""")
    srd(k, 8, 44, N_H)
    X, FR, FI, AF, AC, MA, TW, ON, SM = 20, 28, 46, 64, 100, 116, 124, 20, 28+0
    for i in range(9): k(f"s_add_u32 m0, s34, {i*896}\nbuffer_load_dwordx4 v6, s[8:11], 0 offen offset:{i*128} {XNT} lds", tag="X")
    k("s_setprio 0")
    ws_srd(k, 12, O_U, N_U)
    k(f"""
v_and_b32 v7, 3, v0
v_lshrrev_b32 v9, 2, v0
v_lshlrev_b32 v9, 3, v9
v_lshlrev_b32 v4, 5, v7
v_and_b32 v4, 64, v4
v_lshl_add_u32 v7, v7, 7, s34
v_xor_b32 v8, v9, v4
v_add_u32 v8, v8, v7
v_xor_b32 v5, 64, v8
v_lshrrev_b32 v4, 1, v2
v_lshl_add_u32 v5, v4, 10, v5
v_lshl_add_u32 v7, v4, 12, v8
s_lshl_b32 s3, s{sJT}, 4
v_add_u32 v13, s3, v3
v_cvt_f32_u32 v9, v13
v_lshlrev_b32 v11, 4, v0
v_add_u32 v11, {EX}, v11
s_lshr_b32 s3, s{sW}, 1
s_lshl_b32 s3, s3, 10
s_and_b32 s4, s{sW}, 1
s_lshl_b32 s4, s4, 3
s_add_u32 s3, s3, s4
v_add_u32 v10, s3, v11
s_lshl_b32 s3, s{sW}, 9
s_add_u32 s3, s3, s{sS2}
v_lshl_add_u32 v12, v2, 7, s3
v_mul_u32_u24 v12, {ROWB}, v12
v_lshl_add_u32 v12, v13, 4, v12
v_cvt_f32_u32 v14, v2
v_mul_f32 v15, {fl(1/144)}, v9
v_mul_f32 v14, 4.0, v14
v_mul_f32 v16, v14, v15
""")
    t = 132
    k(f"""v_lshlrev_b32 v17, 31, v13
v_lshrrev_b32 v18, 16, v17
v_or_b32 v17, v17, v18
v_lshrrev_b32 v18, 1, v2
v_cvt_f32_u32 v18, v18
v_mul_f32 v18, 0x42800000, v18
v_fma_f32 v18, v18, v15, v16""")
    FL = 8192
    k(f"""s_lshl_b32 s3, s{sW}, 1
s_cmp_ge_u32 s{sW}, 2
s_cselect_b32 s4, 12, 0
s_add_u32 s4, s4, s3
v_cvt_f32_u32 v19, s4
v_fma_f32 v16, v19, v15, v16
s_and_b32 s3, s3, 2
v_cvt_f32_u32 v19, s3
v_fma_f32 v18, v19, v15, v18
s_lshl_b32 s4, s{sW}, 2
v_add_u32 v19, s4, v11
s_lshl_b32 s3, s3, 1
v_add_u32 v1, s3, v11""")
    for i, (c0, base) in enumerate(((0, 16), (32, 16), (64, 18))):
        k(f"v_fmamk_f32 v{t}, v15, {fl(float(c0))}, v{base}\nv_add_f32 v{t+1}, v{t}, v15")
        k(f"v_cos_f32 v{t+2}, v{t}\nv_cos_f32 v{t+3}, v{t+1}\nv_sin_f32 v{t}, v{t}\nv_sin_f32 v{t+1}, v{t+1}")
        k(f"v_cvt_pk_bf16_f32 v{FR+i}, v{t+2}, v{t+3}\nv_cvt_pk_bf16_f32 v{FI+i}, -v{t}, -v{t+1}")
        k(f"ds_write_b32 v{19 if i < 2 else 1}, v{FR+i} offset:{FL+i*2048}\nds_write_b32 v{19 if i < 2 else 1}, v{FI+i} offset:{FL+i*2048+1024}")
    k(f"v_mov_b32 v{TW}, 1.0\nv_mov_b32 v{TW+4}, 0")
    for q in range(1, 4):
        k(f"v_mul_f32 v{t}, {fl(q/576)}, v9\nv_cos_f32 v{TW+q}, v{t}\nv_sin_f32 v{TW+4+q}, v{t}")
    k(f"""
v_lshrrev_b32 v14, 1, v3
s_lshl_b32 s3, s{sW}, 3
v_add_u32 v14, s3, v14
v_lshl_add_u32 v15, v2, 6, s{sS2}
v_mul_u32_u24 v15, v14, v15
v_and_b32 v16, 1, v3
v_lshl_add_u32 v15, v16, 9, v15
v_cvt_f32_u32 v15, v15
v_mul_f32 v15, {fl(1/2048)}, v15
v_cvt_f32_u32 v14, v14
""")
    for kk in range(2):
        for tt in range(4):
            k(f"v_fmamk_f32 v{t}, v14, {fl((16*kk+4*tt)/32)}, v15\nv_cos_f32 v{t+1}, v{t}\nv_sin_f32 v{t}, v{t}\nv_cvt_pk_bf16_f32 v{MA+4*kk+tt}, v{t+1}, v{t}")
    k.wait_lg(); k("s_barrier")
    for c, Fb in enumerate((FR, FI)):
        for kk in range(2): k(f"ds_read_b128 {vr(Fb+4*kk, 4)}, v11 offset:{FL+kk*2048+c*1024}")
        k(f"ds_read_b64 {vr(Fb+16, 2)}, v11 offset:{FL+4096+c*1024}")
    for Fb in (FR, FI):
        for i in range(8): k(f"v_xor_b32 v{Fb+8+i}, v17, v{Fb+i}")
    k("v_mov_b32 v16, 0\nv_mov_b32 v17, 0")
    for i in range(4): k(f"v_mov_b32 v{ON+i}, 0x3f803f80")
    k(f"v_lshlrev_b32 v18, 4, v2")
    stamp(k, st, 1)
    if P1PRIO: k("s_setprio 1")
    k.wait_vm("X")
    stamp(k, st, 2)
    for mu in range(2):
        for kk in range(5):
            for h in range(2 if kk < 4 else 1):
                d = AF+18*mu+4*kk+2*h
                va, blk = [(8, h), (8, 2+h), (5, 4+h), (5, 6+h), (7, 4)][kk]
                k(f"ds_read_b64_tr_b16 v[{d}:{d+1}], v{va} offset:{mu*512 + blk*1024}")
    mf = []; dots = []
    SX = 24
    for mu in range(2):
        for kk in range(5):
            for a, Fb in ((AC+8*mu, FR+4*kk), (AC+8*mu+4, FI+4*kk), ([24, 132][mu], ON)):
                if kk < 4: mf.append(f"{MF32} {vr(a, 4)}, {vr(AF+18*mu+4*kk, 4)}, {vr(Fb, 4)}, {'0' if kk == 0 else vr(a, 4)}")
                else: mf.append(f"{MF16} {vr(a, 4)}, {vr(AF+18*mu+16, 2)}, {vr(Fb, 2)}, {vr(a, 4)}")
        dots += [f"v_dot2_f32_bf16 v{16+mu}, v{AF+18*mu+i}, v{AF+18*mu+i}, v{16+mu}" for i in range(18)]
    dpp = "row_mask:0xf bank_mask:0xf"
    red = f"""v_permlane32_swap_b32 v16, v17
v_add_f32 v16, v16, v17
v_add_f32_dpp v16, v16, v16 quad_perm:[1,0,3,2] {dpp}
v_add_f32_dpp v16, v16, v16 quad_perm:[2,3,0,1] {dpp}
v_mov_b32 v17, v16
v_permlane16_swap_b32 v16, v17
v_add_f32 v16, v16, v17
ds_bpermute_b32 v14, v18, v16
ds_bpermute_b32 v15, v18, v16 offset:128""".split("\n")
    for x in interleave(mf[:24], dots) + interleave(mf[24:], red): k(x)
    stamp(k, st, 3)
    E = X
    p2 = lambda x: vr(x, 2)
    NEG = "neg_lo:[0,1] neg_hi:[0,1]"
    for mu in range(2):
        R, I = AC+8*mu, AC+8*mu+4
        T = AF+16*mu
        rr = f"v[14:15] op_sel:[0,{mu}] op_sel_hi:[1,{mu}]"
        k(f"""
v_pk_mul_f32 {p2(T)}, {p2(TW)}, {p2(R)}
v_pk_mul_f32 {p2(T+2)}, {p2(TW+2)}, {p2(R+2)}
v_pk_mul_f32 {p2(T+4)}, {p2(TW)}, {p2(I)}
v_pk_mul_f32 {p2(T+6)}, {p2(TW+2)}, {p2(I+2)}
v_pk_fma_f32 {p2(T)}, {p2(TW+4)}, {p2(I)}, {p2(T)}
v_pk_fma_f32 {p2(T+2)}, {p2(TW+6)}, {p2(I+2)}, {p2(T+2)}
v_pk_fma_f32 {p2(T+4)}, {p2(TW+4)}, {p2(R)}, {p2(T+4)} neg_lo:[1,0,0] neg_hi:[1,0,0]
v_pk_fma_f32 {p2(T+6)}, {p2(TW+6)}, {p2(R+2)}, {p2(T+6)} neg_lo:[1,0,0] neg_hi:[1,0,0]
v_pk_add_f32 {p2(T+8)}, {p2(T)}, {p2(T+2)}
v_pk_add_f32 {p2(T+10)}, {p2(T+4)}, {p2(T+6)}
v_pk_add_f32 {p2(T+12)}, {p2(T)}, {p2(T+2)} {NEG}
v_pk_add_f32 {p2(T+14)}, {p2(T+4)}, {p2(T+6)} {NEG}""")
    k(f"""v_pk_add_f32 v[24:25], v[24:25], v[26:27]
v_pk_add_f32 v[132:133], v[132:133], v[134:135]
v_add_f32 v24, v24, v25
v_add_f32 v25, v132, v133
s_mov_b32 s3, {fl(1/576)}
v_pk_mul_f32 v[24:25], v[24:25], s[2:3] op_sel:[0,1] op_sel_hi:[1,1]
v_pk_mul_f32 v[24:25], v[24:25], v[24:25]
v_pk_fma_f32 v[14:15], v[14:15], s[2:3], v[24:25] op_sel:[0,1,0] op_sel_hi:[1,1,1] neg_lo:[0,0,1] neg_hi:[0,0,1]
v_max_f32 v14, 0, v14
v_max_f32 v15, 0, v15
v_add_f32 v14, {fl(1e-5)}, v14
v_add_f32 v15, {fl(1e-5)}, v15
v_rsq_f32 v14, v14
v_rsq_f32 v15, v15""")
    for mu in range(2):
        T = AF+16*mu
        rr = f"v[14:15] op_sel:[0,{mu}] op_sel_hi:[1,{mu}]"
        k(f"""
v_pk_mul_f32 {p2(T+8)}, {p2(T+8)}, {rr}
v_pk_mul_f32 {p2(T+10)}, {p2(T+10)}, {rr}
v_pk_mul_f32 {p2(T+12)}, {p2(T+12)}, {rr}
v_pk_mul_f32 {p2(T+14)}, {p2(T+14)}, {rr}
v_add_f32 v{T}, v{T+8}, v{T+9}
v_add_f32 v{T+1}, v{T+10}, v{T+11}
v_add_f32 v{T+2}, v{T+12}, v{T+15}
v_sub_f32 v{T+3}, v{T+14}, v{T+13}
v_sub_f32 v{T+4}, v{T+8}, v{T+9}
v_sub_f32 v{T+5}, v{T+10}, v{T+11}
v_sub_f32 v{T+6}, v{T+12}, v{T+15}
v_add_f32 v{T+7}, v{T+14}, v{T+13}
""")
        for m in range(4): k(f"v_cvt_pk_bf16_f32 v{E+2*m+mu}, v{T+2*m}, v{T+2*m+1}")
    for m in range(4): k(f"ds_write_b64 v10, {vr(E+2*m, 2)} offset:{m*2048}")
    k.wait_lg(); k("s_barrier")
    stamp(k, st, 4)
    B = FR
    for m in range(4):
        for kk in range(2): k(f"ds_read_b128 {vr(B+8*m+4*kk, 4)}, v11 offset:{m*2048+kk*1024}")
    for kk in range(2):
        for m in range(4): k(f"{MF32} {vr(AC+4*m, 4)}, {vr(MA+4*kk, 4)}, {vr(B+8*m+4*kk, 4)}, {'0' if kk == 0 else vr(AC+4*m, 4)}")
    k(f"s_mov_b32 s3, {64*ROWB}")
    for a in range(2):
        for m in range(4): k(f"v_cvt_pk_bf16_f32 v{X+4*a+m}, v{AC+4*m+2*a}, v{AC+4*m+2*a+1}")
        k(f"buffer_store_dwordx4 {vr(X+4*a, 4)}, v12, s[12:15], {'s3' if a else '0'} offen sc1")
    stamp(k, st, 5)
    stamp_out(k, st, 1, f"s{sW}", 6)
    k("s_endpgm\np1_side:")
    k(f"""
s_cmp_ge_u32 s2, 448
s_cbranch_scc1 p1_tab
s_sub_u32 s3, s2, 320
s_and_b32 s32, s3, 7
s_lshl_b32 s32, s32, 2
s_bfe_u32 s4, s3, 0x20003
s_add_u32 s32, s32, s4
s_lshr_b32 s31, s3, 5
s_lshl_b32 s3, s31, 9
s_add_u32 s33, s32, s3
s_and_b32 s3, s{sW}, 1
s_mul_i32 s4, s3, 138
s_cmp_eq_u32 s3, 0
s_cselect_b32 s34, 1, -1
v_lshrrev_b32 v4, 5, v0
v_lshl_add_u32 v6, v4, 5, s33
v_mul_lo_u32 v6, v6, s34
s_lshl_b32 s35, s34, 6
v_and_b32 v5, 1, v2
v_mul_u32_u24 v5, 288, v5
v_add_u32 v5, s4, v5
v_mov_b32 v12, {OOB}
v_lshlrev_b32 v7, 2, v2
v_and_b32 v7, 4, v7
v_sub_u32 v7, v3, v7
v_cmp_gt_u32 vcc, 11, v7
v_lshlrev_b32 v7, 4, v7
v_cndmask_b32 v12, v12, v7, vcc
s_movk_i32 s36, 578
s_mul_i32 s38, s{sW}, 8336
s_waitcnt lgkmcnt(0)
s_cmp_lt_u32 s{sW}, 2
s_cselect_b32 s8, s46, s48
s_cselect_b32 s9, s47, s49
s_mov_b32 s10, {N_WF}
s_mov_b32 s11, 0x20000
""")
    for i in range(8):
        k(f"""v_and_b32 v8, 2047, v6
v_mad_u32_u24 v8, v8, s36, v5
v_and_b32 v8, -16, v8
s_add_u32 m0, s38, {i*1040}
v_add_u32 v8, v8, v12
buffer_load_dwordx4 v8, s[8:11], 0 offen {FPOL} lds
v_add_u32 v6, s35, v6""", tag="W")
    stamp(k, st, 1)
    ws_srd(k, 16, O_WH, N_WH)
    k(f"""
v_lshrrev_b32 v4, 2, v3
s_lshl_b32 s3, s{sW}, 2
v_add_u32 v4, s3, v4
v_and_b32 v10, 3, v3
v_sub_u32 v13, 75, v4
v_cmp_gt_u32 vcc, 2, v10
v_cndmask_b32 v13, v13, v4, vcc
v_mov_b32 v14, 0xffffffe0
v_cndmask_b32 v14, v14, 32, vcc
v_bfrev_b32 v15, 1
v_cndmask_b32 v15, v15, 0, vcc
v_mov_b32 v16, 8336
v_cndmask_b32 v16, v16, 0, vcc
v_lshl_add_u32 v16, v13, 1, v16
v_mul_u32_u24 v17, 2080, v2
v_add_u32 v16, v16, v17
v_lshrrev_b32 v17, 1, v10
v_xor_b32 v17, v17, v10
v_and_b32 v17, 1, v17
v_mul_u32_u24 v17, 320, v17
v_add_u32 v16, v16, v17
v_sub_u32 v17, 5, s33
v_mov_b32 v18, s33
v_cndmask_b32 v17, v17, v18, vcc
v_lshlrev_b32 v17, 1, v17
v_and_b32 v17, 14, v17
v_add_u32 v84, v16, v17
v_or_b32 v11, v10, v4
v_cmp_eq_u32 s[40:41], 0, v11
s_mul_i32 s3, s32, 19
s_add_u32 s3, s3, s{sW}
s_lshl_b32 s3, s3, 12
s_lshl_b32 s4, s31, 10
s_add_u32 s37, s3, s4
v_lshlrev_b32 v93, 4, v0
""")
    stamp(k, st, 2)
    k.wait_vm("W")
    stamp(k, st, 3)
    k("s_barrier")
    stamp(k, st, 4)
    for it in range(5):
        D0 = 20 + 12*it
        if it: k(f"v_add_u32 v84, v84, v14")
        for r in range(4): k(f"ds_read_u16 v{D0+r}, v84 offset:{(r >> 1)*1040 + (r & 1)*512}\nds_read_u16 v{D0+4+r}, v84 offset:{(r >> 1)*1040 + (r & 1)*512 + 16672}")
    k("v_cmp_lt_u32 vcc, 8, v4")
    for it in range(5):
        if it == 4: k(f"s_cmp_eq_u32 s{sW}, 3\ns_cbranch_scc1 p1_wend")
        D0 = 20 + 12*it
        for r in range(4): k(f"v_lshl_or_b32 v{D0+8+r}, v{D0+4+r}, 16, v{D0+r}\nv_xor_b32 v{D0+8+r}, v15, v{D0+8+r}")
        if it == 0:
            for r in range(4): k(f"v_cndmask_b32 v{D0+8+r}, v{D0+8+r}, 0, s[40:41]")
        if it == 4:
            for r in range(4): k(f"v_cndmask_b32 v{D0+8+r}, v{D0+8+r}, 0, vcc")
        k(f"buffer_store_dwordx4 {vr(D0+8, 4)}, v93, s[16:19], s37 offen sc1\ns_add_u32 s37, s37, 16384")
    k("p1_wend:")
    stamp(k, st, 5)
    stamp_out(k, st, 1, f"s{sW}", 6)
    k("s_endpgm\np1_tab:")
    sc = 1.0/(S*D)
    k(f"""
s_cmp_ge_u32 s2, 464
s_cbranch_scc1 p1_pf
s_sub_u32 s3, s2, 448
s_lshl_b32 s3, s3, 2
s_add_u32 s31, s3, s{sW}
s_cmp_ge_u32 s31, 61
s_cbranch_scc1 p1_end
s_lshr_b32 s32, s31, 2
s_and_b32 s33, s31, 3
s_mov_b32 s34, {fl(1/64)}
s_cmp_lt_u32 s31, 16
s_cbranch_scc1 p1_tabA
s_sub_u32 s3, s31, 16
s_mul_i32 s32, s3, 52
s_lshr_b32 s32, s32, 8
s_mul_i32 s4, s32, 5
s_sub_u32 s33, s3, s4
s_mov_b32 s34, {fl(1/144)}
p1_tabA:
s_lshl_b32 s32, s32, 4
s_lshl_b32 s33, s33, 4
v_add_u32 v4, s32, v3
v_lshl_add_u32 v5, v2, 2, s33
s_waitcnt lgkmcnt(0)
""")
    ws_srd(k, 8, O_TAB, N_TAB)
    for r in range(4):
        k(f"""
v_add_u32 v6, {r}, v5
v_mul_u32_u24 v7, v6, v4
v_cvt_f32_u32 v7, v7
v_mul_f32 v7, s34, v7
v_fract_f32 v7, v7
v_cos_f32 v8, v7
v_sin_f32 v9, v7
s_cmp_lt_u32 s31, 16
s_cbranch_scc1 p1_tabB{r}
v_mov_b32 v10, {fl(2*sc)}
v_mov_b32 v11, {fl(sc)}
v_cmp_eq_u32 vcc, 0, v6
v_cndmask_b32 v10, v10, v11, vcc
v_cmp_eq_u32 vcc, 72, v6
v_cndmask_b32 v10, v10, v11, vcc
v_cmp_gt_u32 vcc, 73, v6
v_cndmask_b32 v10, 0, v10, vcc
v_mul_f32 v8, v8, v10
v_mul_f32 v9, -v9, v10
p1_tabB{r}:
v_cvt_pk_bf16_f32 v{12+r}, v8, v9
""")
    k(f"v_lshlrev_b32 v4, 4, v0\ns_lshl_b32 s3, s31, 10\nbuffer_store_dwordx4 v[12:15], v4, s[8:11], s3 offen sc1\ns_endpgm\np1_pf:")
    k(f"""
s_cmp_ge_u32 s2, 480
s_cbranch_scc1 p1_end
s_getpc_b64 s[4:5]
p1_pc:
s_add_u32 s4, s4, p2_kernel-p1_pc
s_addc_u32 s5, s5, 0
s_lshl_b32 s3, s{sW}, 6
v_add_u32 v4, s3, v0
s_sub_u32 s3, s2, 464
s_lshr_b32 s3, s3, 3
s_lshl_b32 s3, s3, 15
v_lshl_add_u32 v5, v4, 7, s3
v_min_u32 v5, pf_code_end-p2_kernel-4, v5
global_load_dword v6, v5, s[4:5]
s_waitcnt lgkmcnt(0)
""")
    if TLB:
        k(f"""s_load_dwordx4 s[36:39], s[0:1], 32
s_load_dwordx4 s[40:43], s[0:1], 48
v_lshlrev_b32 v12, {TLB}, v4
s_waitcnt lgkmcnt(0)""")
        ws_srd(k, 8, 0, O_P + N_P)
        for i in range((O_P + N_P + (256 << TLB) - 1)//(256 << TLB)):
            k(f"s_mov_b32 s3, {i*(256 << TLB)}\nbuffer_load_dword v13, v12, s[8:11], s3 offen", tag="touch")
        for b, n in ((36, N_W), (38, N_W), (40, N_W), (42, N_H)):
            srd(k, 8, b, n)
            k("buffer_load_dword v13, v12, s[8:11], 0 offen", tag="touch")
    ws_srd(k, 8, O_FLG, N_ZERO)
    k(f"""
s_and_b32 s3, s2, 15
s_mul_i32 s3, s3, 20480
v_lshlrev_b32 v4, 4, v4
v_mov_b32 v8, 0
v_mov_b32 v9, 0
v_mov_b32 v10, 0
v_mov_b32 v11, 0
""")
    for i in range(5): k(f"buffer_store_dwordx4 v[8:11], v4, s[8:11], s3 offen sc1\ns_add_u32 s3, s3, 4096")
    k(f"""p1_end:""")
    return k

def build_p2(st=False):
    k = K("p2", 608, 64, vgpr=160)
    stamp(k, st, 0)
    k(f"""
s_load_dwordx2 s[6:7], s[0:1], 72
s_cmp_ge_u32 s2, 608
s_cbranch_scc1 p2_end
s_lshr_b32 s3, s2, 3
s_mul_i32 s4, s3, 27
s_lshr_b32 s4, s4, 9
s_mul_i32 s5, s4, 19
s_sub_u32 s31, s3, s5
s_and_b32 s3, s2, 7
s_lshl_b32 s3, s3, 2
s_add_u32 s32, s3, s4
v_lshrrev_b32 v2, 4, v0
v_and_b32 v3, 15, v0
v_mul_u32_u24 v4, {4*ROWB}, v2
v_lshl_add_u32 v4, v3, 2, v4
v_lshlrev_b32 v5, 4, v0
s_mul_i32 s33, s32, {64*ROWB}
s_lshl_b32 s3, s31, 6
s_add_u32 s33, s33, s3
s_waitcnt lgkmcnt(0)
""")
    ws_srd(k, 8, O_U, N_U)
    B, B2, A, WH, XR, XI = 8, 24, 40, 104, 120, 136
    for T in range(4):
        if T: k(f"s_add_u32 s33, s33, {16*ROWB}")
        for r in range(4): k(f"buffer_load_dword v{B+4*T+r}, v4, s[8:11], s33 offen offset:{r*ROWB}")
    ws_srd(k, 12, O_TAB, N_TAB)
    for f in range(16):
        if f % 4 == 0: k(f"s_movk_i32 s3, {f*1024}")
        k(f"buffer_load_dwordx4 {vr(A+4*f, 4)}, v5, s[12:15], s3 offen offset:{(f % 4)*1024}")
    ws_srd(k, 16, O_WH, N_WH)
    k("s_mul_i32 s34, s32, 19\ns_add_u32 s34, s34, s31\ns_lshl_b32 s34, s34, 12")
    for T in range(4): k(f"buffer_load_dwordx4 {vr(WH+4*T, 4)}, v5, s[16:19], s34 offen offset:{T*1024}")
    k(f"""
v_mul_u32_u24 v6, {ROWB}, v3
v_lshl_add_u32 v6, v2, 4, v6
s_mul_i32 s35, s32, {64*ROWB}
s_lshl_b32 s3, s31, 6
s_add_u32 s35, s35, s3
s_brev_b32 s36, 1
s_mov_b32 s37, 0xffff0000
""")
    stamp(k, st, 1)
    for i in range(16): k(f"v_alignbit_b32 v{B2+i}, v{B+i}, v{B+i}, 16\nv_xor_b32 v{B2+i}, s36, v{B2+i}")
    stamp(k, st, 2)
    def fwd(Tp): return [f"{MF32} {vr(o+4*Tp, 4)}, {vr(A+16*Tp+4*T, 4)}, {vr(b+4*T, 4)}, {'0' if T == 0 else vr(o+4*Tp, 4)}" for T in range(4) for o, b in ((XR, B), (XI, B2))]
    D1, D2 = 152, B
    def filt(T):
        out = []
        for r in (0, 2):
            w = WH+4*T+r; xr, xi = XR+4*T+r, XI+4*T+r
            out += [f"v_lshlrev_b32 v152, 16, v{w}", f"v_lshlrev_b32 v153, 16, v{w+1}", f"v_and_b32 v154, s37, v{w}", f"v_and_b32 v155, s37, v{w+1}",
                    f"v_pk_mul_f32 v[156:157], {vr(xr, 2)}, v[152:153]", f"v_pk_mul_f32 v[158:159], {vr(xr, 2)}, v[154:155]",
                    f"v_pk_fma_f32 v[156:157], {vr(xi, 2)}, v[154:155], v[156:157] neg_lo:[1,0,0] neg_hi:[1,0,0]", f"v_pk_fma_f32 v[158:159], {vr(xi, 2)}, v[152:153], v[158:159]",
                    f"v_cvt_pk_bf16_f32 v{w}, v156, -v158", f"v_cvt_pk_bf16_f32 v{w+1}, v157, -v159", f"v_cvt_pk_bf16_f32 v{xr}, v158, v156", f"v_cvt_pk_bf16_f32 v{xr+1}, v159, v157"]
        return out
    for x in fwd(0): k(x)
    for Tp in range(1, 4):
        for x in interleave(fwd(Tp), filt(Tp-1)): k(x)
    for x in filt(3): k(x)
    stamp(k, st, 3)
    VR, VI = B, B2
    def inv(Tp): return [f"{MF32} {vr(o+4*Tp, 4)}, {vr(d+4*T, 4)}, {vr(A+16*Tp+4*T, 4)}, {'0' if T == 0 else vr(o+4*Tp, 4)}" for T in range(4) for o, d in ((VR, WH), (VI, XR))]
    def outp(Tp):
        return [f"v_cvt_pk_bf16_f32 v{XI+4*Tp+r}, v{VR+4*Tp+r}, v{VI+4*Tp+r}" for r in range(4)] + \
               [f"buffer_store_dwordx4 {vr(XI+4*Tp, 4)}, v6, s[8:11], s35 offen sc1\ns_add_u32 s35, s35, {16*ROWB}"]
    for x in inv(0): k(x)
    for Tp in range(1, 4):
        m = inv(Tp)
        for x in m[:3] + interleave(m[3:], outp(Tp-1)): k(x)
    for x in outp(3): k(x)
    stamp(k, st, 4)
    stamp_out(k, st, 2, "0", 5)
    k("p2_end:")
    return k
```

```python
from asmlib import *
from layout import *
import struct
def fl(x): return "0x%08x" % struct.unpack("<I", struct.pack("<f", x))[0]
MF = "v_mfma_f32_16x16x32_bf16"
def ws_srd(k, d, off, nbytes, ws=6):
    k(f"s_add_u32 s{d}, s{ws}, {off}\ns_addc_u32 s{d+1}, s{ws+1}, 0\ns_mov_b32 s{d+2}, {nbytes}\ns_mov_b32 s{d+3}, 0x20000")
def srd_tail(k, d, nbytes): k(f"s_mov_b32 s{d+2}, {nbytes}\ns_mov_b32 s{d+3}, 0x20000")
S4 = lambda d: f"s[{d}:{d+3}]"

SLOT_A = [0, 45056, 90112]
RING_B = [0, 36864, 90112, 126976]
HH = 90112

def build_pf(look=3, nd=2, spread=4, stamp=False, abl="", name="pf", OUTPOL="", WPOL="", DPOL="", TPOL="", dstage=11, safe=0, XPOL="sc1", TPOLD="", ahead=7,
             phases="48", lag=2, ntouch=0, prio="", fuse=0, pk=1, W2=1, mode="S", early=0, su3=0, w4p=0, late1=0, idlepf=1, inl=0, skip=1, lph="1358", istage=1, tstage=7):
    LP = mode == "L"
    PH = [int(c) for c in str(lph if LP else phases)]
    k = K(name, 256, 512, lds=163840, vgpr=256, sgpr=102)
    sG, sU, sD, sX, sP, sF, sS, sH, sO, sV, sI, sT = 8, 12, 16, 20, 24, 28, 32, 36, 40, 44, 48, 52
    sW, sMT, sSL, sRG = 56, 57, 58, 59
    sA, sKW, sKX, sM0a, sM0x, sM0s, sKD, sM0d, sPO, sCG, sRD, sLN, sLoc, sS1 = range(80, 94)
    sF1 = 96; sB = 97; sXC = 98
    vL, vDX, vD0, vD1, vD2, vT0, vT1, vT2 = range(8)
    vXr = [8, 9, 10]; vWA = [11, 12, 13]; vWB = [14, 15, 16]
    vDD, vPO, vHW = 17, 18, 19
    vWD = [20, 21, 22, 23]
    vHR, vHW2, vZ, vQ = 24, 25, 26, 27
    def stb(i):
        if stamp and "bst" in abl: k(f"s_memrealtime s[{60+2*i}:{61+2*i}]")
    def st(i):
        if stamp and "bst" not in abl: k(f"s_memrealtime s[{60+2*i}:{61+2*i}]")
    def put(items):
        for x in items:
            t = x[0] if isinstance(x, tuple) else x
            if "nodma" in abl and " lds" in t and x[1] not in ("A0", "A1"): continue
            if "nop2" in abl and "buffer_store" in t and isinstance(x, tuple) and x[1].startswith("P"): continue
            if "nomfma" in abl and "v_mfma" in t: continue
            if isinstance(x, tuple): k(x[0], tag=x[1])
            else: k(x)
    def spin(lab, load, cond):
        bound = f"s_sub_u32 s5, s5, 1\ns_cbranch_scc1 {lab}_ok\n" if safe else ""
        k(f"{cond}\ns_cbranch_vccz {lab}_ok\n{f's_mov_b32 s5, {20000 if safe == 1 else 4000000}' if safe else ''}\n{lab}_spin:\n{'s_add_u32 s99, s99, 1' if 'cnt' in abl else ''}\n{bound}{load}\ns_waitcnt vmcnt(0)\n{cond}\ns_cbranch_vccnz {lab}_spin\n{lab}_ok:")
        k.saved.pop(lab + "_spin", None)
    st(0)
    k(f"""
s_load_dwordx2 s[6:7], s[0:1], 72
s_load_dwordx2 s[{sG}:{sG+1}], s[0:1], 32
s_load_dwordx2 s[{sU}:{sU+1}], s[0:1], 40
s_load_dwordx2 s[{sI}:{sI+1}], s[0:1], 0
s_load_dwordx2 s[{sD}:{sD+1}], s[0:1], 48
s_load_dwordx2 s[{sO}:{sO+1}], s[0:1], 56
s_cmp_ge_u32 s2, 256
s_cbranch_scc1 {name}_end
v_lshrrev_b32 v{vT0}, 6, v0
v_and_b32 v{vL}, 63, v0
v_readfirstlane_b32 s{sW}, v{vT0}
s_lshr_b32 s3, s2, 3
s_and_b32 s{sMT}, s3, 15
s_lshr_b32 s{sB}, s3, 4
s_and_b32 s{sXC}, s2, 7
s_lshl_b32 s4, s{sXC}, 1
s_add_u32 s{sSL}, s4, s{sB}
v_lshlrev_b32 v{vDX}, 4, v{vL}
v_mov_b32 v{vZ}, 0
v_mov_b32 v37, 0
v_mov_b32 v47, 0
v_mov_b32 v39, 0
""")
    o = 32
    R = lambda n: n + o
    sS2, sNT, sVB, sXO, sSO = 99, sB, 100, 101, (96 if early else sRD)
    assert not (early and LP)
    L, MB_, AC, TW, G, XX = R(16), R(48), R(64), R(96), R(120), R(160)
    EZ = 90112; ES = EZ + 20480
    g_, n_, vVA, vHS, vRow, vXo, vEW, vSW, vSR = R(2), R(3), R(4), R(5), R(6), R(7), R(9), R(14), R(15)
    t0, t1, t2, t3 = R(10), R(11), R(12), R(13)
    k(f"""
s_lshr_b32 s3, s{sXC}, 2
s_and_b32 s4, s{sMT}, 1
s_cmp_lg_u32 s3, s4
s_cbranch_scc1 {name}_idle
s_and_b32 s3, s{sXC}, 3
s_lshl_b32 s{sS2}, s{sMT}, 2
s_add_u32 s{sS2}, s{sS2}, s3
v_lshrrev_b32 v{g_}, 4, v{vL}
v_and_b32 v{n_}, 15, v{vL}
s_lshl_b32 s3, s{sW}, 4
v_add_u32 v{vVA}, s3, v{n_}
v_lshlrev_b32 v{vVA}, 4, v{vVA}
v_mul_u32_u24 v{t0}, {4*64*ROWB}, v{g_}
v_add_u32 v{vVA}, v{vVA}, v{t0}
s_mul_i32 s{sVB}, s{sS2}, {ROWB}
s_lshl_b32 s3, s{sNT}, 4
v_add_u32 v{vRow}, s3, v{n_}
v_lshl_add_u32 v{vRow}, v{vRow}, 6, s{sS2}
v_mul_u32_u24 v{vXo}, 1152, v{vRow}
v_lshl_add_u32 v{vXo}, v{g_}, 5, v{vXo}
s_lshl_b32 s{sXO}, s{sW}, 7
s_waitcnt lgkmcnt(0)
""")
    ws_srd(k, sV, O_V, N_U)
    k(f"s_cmp_ge_u32 s{sW}, 5\ns_cbranch_scc1 {name}_nov")
    for kk in range(2):
        for t in range(4): k(f"s_add_u32 s3, s{sVB}, {(16*kk+t)*64*ROWB}\nbuffer_load_dwordx4 {vr(L+16*kk+4*t, 4)}, v{vVA}, {S4(sV)}, s3 offen", tag="V")
    k(f"{name}_nov:")
    srd_tail(k, sI, N_H); ws_srd(k, sT, O_TAB, N_TAB)
    k(f"s_branch {name}_common\n{name}_idle:\ns_mov_b32 s{sS2}, -1\ns_waitcnt lgkmcnt(0)")
    ws_srd(k, sV, O_V, N_U); srd_tail(k, sI, N_H); ws_srd(k, sT, O_TAB, N_TAB)
    k(f"{name}_common:")

    ws_srd(k, sX, O_XF, N_XF); ws_srd(k, sH, O_H, N_H); ws_srd(k, sF, O_FLG, N_FLG)
    st(1)
    k(f"s_cmp_eq_u32 s{sS2}, -1\ns_cbranch_scc1 {name}_fin")
    def mlp_setup():
        def pattern(vd):
            k(f"""
s_lshl_b32 s4, s3, 6
v_add_u32 v{vT0}, s4, v{vL}
v_mul_u32_u24 v{vT1}, 1821, v{vT0}
v_lshrrev_b32 v{vT1}, 16, v{vT1}
v_mul_u32_u24 v{vT2}, 36, v{vT1}
v_sub_u32 v{vT0}, v{vT0}, v{vT2}
v_lshrrev_b32 v{vT2}, 2, v{vT1}
v_and_b32 v{vT2}, 2, v{vT2}
v_xor_b32 v{vT0}, v{vT0}, v{vT2}
v_lshlrev_b32 v{vT0}, 4, v{vT0}
v_and_b32 v{vT2}, 24, v{vT1}
v_add_u32 v{vT1}, v{vT1}, v{vT2}
v_mul_u32_u24 v{vT1}, 9216, v{vT1}
v_add_u32 v{vd}, v{vT0}, v{vT1}
""")
        k(f"s_and_b32 s{sRG}, s{sW}, 1\ns_bfe_u32 s{sA}, s{sW}, 0x10001\n{'s_and_b32' if LP else 's_lshr_b32'} s{sCG}, s{sW}, {3 if LP else 1}")
        k(f"s_lshl_b32 s3, s{sW}, 1"); pattern(vD0)
        k(f"s_add_u32 s3, s3, 1"); pattern(vD1)
        k(f"s_add_u32 s3, s{sRG}, 16"); pattern(vD2)
        k(f"""
s_mul_i32 s{sKW}, s{sSL}, 576
s_lshl_b32 s3, s{sMT}, 3
s_add_u32 s3, s3, s{sW}
s_mul_i32 s{sKX}, s3, 18432
s_lshl_b32 s{sM0x}, s{sW}, 10
s_lshl_b32 s{sM0a}, s{sW}, 11
s_add_u32 s{sM0a}, s{sM0a}, 8192
s_mul_i32 s3, s{sA}, 18432
s_lshl_b32 s4, s{sRG}, 10
s_add_u32 s3, s3, s4
s_add_u32 s{sM0s}, s3, {8192+16*1024}
s_cmp_eq_u32 s{sA}, 0
s_cselect_b32 s{sS}, s{sG}, s{sU}
s_cselect_b32 s{sS+1}, s{sG+1}, s{sU+1}
""")
        for d in (sG, sU, sD, sS): srd_tail(k, d, N_W)
        srd_tail(k, sO, N_H)
        ws_srd(k, sP, O_P, N_P)
    def dmaX(s):
        return [(f"s_add_u32 m0, s{sM0x}, {SLOT_A[s % 3]}\ns_add_u32 s94, s{sKX}, {s*1024}\nbuffer_load_dwordx4 v{vDX}, {S4(sX)}, s94 offen {XPOL} lds", f"A{s}")]
    def dmaW(s, six):
        o = SLOT_A[s % 3]
        g = [f"s_add_u32 m0, s{sM0a}, {o}\ns_add_u32 s95, s{sKW}, {((s >> 1)*64 + (s & 1)*8)*9216}\nbuffer_load_dwordx4 v{vD0}, {S4(sG)}, s95 offen {WPOL} lds",
             f"s_add_u32 m0, s{sM0a}, {o+1024}\nbuffer_load_dwordx4 v{vD1}, {S4(sG)}, s95 offen {WPOL} lds",
             f"s_add_u32 m0, s{sM0a}, {o+18432}\nbuffer_load_dwordx4 v{vD0}, {S4(sU)}, s95 offen {WPOL} lds",
             f"s_add_u32 m0, s{sM0a}, {o+18432+1024}\nbuffer_load_dwordx4 v{vD1}, {S4(sU)}, s95 offen {WPOL} lds"]
        if six: g.append(f"s_add_u32 m0, s{sM0s}, {o}\nbuffer_load_dwordx4 v{vD2}, {S4(sS)}, s95 offen {WPOL} lds")
        return [(x, f"A{s}") for x in g]
    def dmaB(u, five):
        o = RING_B[u % 4]
        if LP and five: return []
        if "dbl" in abl:
            return [(f"s_add_u32 m0, s{sM0d}, {o+i*1024}\ns_add_u32 s94, s{sKD}, {i*8*1152+u*128}\n{'s_xor_b32 s94, s94, 0' if q == 0 else 's_add_u32 s94, s94, s101'}\nbuffer_load_dwordx4 v{vDD}, {S4(sD)}, s94 offen {DPOL} lds", f"B{u}") for q in range(2) for i in range(4 if five else 5)]
        return [(f"s_add_u32 m0, s{sM0d}, {o+i*1024}\ns_add_u32 s94, s{sKD}, {i*8*1152+u*128}\nbuffer_load_dwordx4 v{vDD}, {S4(sD)}, s94 offen {DPOL} lds", f"B{u}") for i in range(9 if LP else 4 if five else 5)]
    def first_w(lab):
        for s in ((0,) if late1 else (0, 1)):
            put(dmaW(s, False))
            k(f"s_cmp_lt_u32 s{sW}, 4\ns_cbranch_scc1 {lab}{s}")
            put(dmaW(s, True)[4:])
            k(f"{lab}{s}:")
    def rest_loads(lab):
        k(f"buffer_load_dwordx4 {vr(XX, 4)}, v{vXo}, {S4(sI)}, s{sXO} offen\nbuffer_load_dwordx4 {vr(XX+4, 4)}, v{vXo}, {S4(sI)}, s{sXO} offen offset:16")
        k(f"s_mul_i32 s3, s{sW}, 5120\ns_add_u32 s3, s3, 16384\ns_add_u32 s4, s3, 4096")
        for f in range(5): k(f"buffer_load_dwordx4 {vr(G+4*f, 4)}, v{vDX}, {S4(sT)}, s{3+f//4} offen offset:{(f % 4)*1024}")
        k(f"s_cmp_lg_u32 s{sW}, {W2}\ns_cbranch_scc1 {lab}")
        k(f"buffer_load_dwordx4 {vr(XX+8, 4)}, v{vXo}, {S4(sI)}, 0 offen offset:1024\nbuffer_load_dwordx4 {vr(XX+12, 4)}, v{vXo}, {S4(sI)}, 0 offen offset:1040")
        k(f"s_mov_b32 s3, {(16+40)*1024}\ns_mov_b32 s4, {(16+44)*1024}")
        for f in range(5): k(f"buffer_load_dwordx4 {vr(G+20+4*f, 4)}, v{vDX}, {S4(sT)}, s{3+f//4} offen offset:{(f % 4)*1024}")
        k(f"{lab}:")
    k(f"s_cmp_lt_u32 s{sW}, 5\ns_cbranch_scc1 {name}_doA")
    mlp_setup()
    rest_loads(f"{name}_rl1")
    k(f"s_branch {name}_noA\n{name}_doA:\ns_cmp_lg_u32 s{sW}, 4\ns_cbranch_scc1 {name}_lp\ns_setprio {w4p}\n{name}_lp:")
    k(f"""
v_cvt_f32_u32 v{t0}, v{vRow}
v_mul_f32 v{t0}, {fl(1/2048)}, v{t0}
v_cvt_f32_u32 v{t1}, v{g_}
v_mul_f32 v{t1}, 4.0, v{t1}
v_mul_f32 v{vEW}, v{t0}, v{t1}
""")
    for kk in range(2):
        for t in range(4):
            k(f"""v_fmamk_f32 v{t2}, v{t0}, {fl(float(16*kk+t))}, v{vEW}
v_cos_f32 v{t3}, v{t2}
v_sin_f32 v{t2}, v{t2}
v_cvt_pk_bf16_f32 v{MB_+4*kk+t}, v{t3}, -v{t2}
v_cvt_pk_bf16_f32 v{MB_+8+4*kk+t}, v{t2}, v{t3}""")
    tw = [f"s_lshl_b32 s3, s{sW}, 4", f"v_cvt_f32_u32 v{t0}, s3", f"v_add_f32 v{t1}, v{t1}, v{t0}"]
    for r in range(4):
        if r: tw.append(f"v_add_f32 v{t1}, 1.0, v{t1}")
        for q in range(1, 4):
            tw += [f"v_mul_f32 v{t2}, {fl(q/576)}, v{t1}", f"v_cos_f32 v{TW+8*(q-1)+r}, v{t2}", f"v_sin_f32 v{TW+8*(q-1)+4+r}, v{t2}"]
    put(tw[:22])
    st(2)
    for kk in range(2):
        for a in range(4):
            for b in range(a+1, 4): k(f"v_swap_b32 v{L+16*kk+4*a+b}, v{L+16*kk+4*b+a}")
    mf = []
    for m in (0, 2, 1, 3):
        for kk in range(2):
            for c in range(2):
                a = AC+8*m+4*c
                mf.append(f"{MF} {vr(a, 4)}, {vr(L+16*kk+4*m, 4)}, {vr(MB_+8*c+4*kk, 4)}, {'0' if kk == 0 else vr(a, 4)}")
    put(interleave(mf, tw[22:]))
    rest_loads(f"{name}_rl2")
    Z = L; T = L+16
    p2 = lambda x: vr(x, 2)
    NEG = "neg_lo:[0,1] neg_hi:[0,1]"
    for r in (0, 2):
        Rr = lambda m: AC+8*m+r
        I = lambda m: AC+8*m+4+r
        ar, ai, br, bi, cr, ci, dr, di = (T+2*i for i in range(8))
        k(f"""
v_pk_add_f32 {p2(ar)}, {p2(Rr(0))}, {p2(Rr(2))}
v_pk_add_f32 {p2(ai)}, {p2(I(0))}, {p2(I(2))}
v_pk_add_f32 {p2(cr)}, {p2(Rr(1))}, {p2(Rr(3))}
v_pk_add_f32 {p2(ci)}, {p2(I(1))}, {p2(I(3))}
v_pk_add_f32 {p2(br)}, {p2(Rr(0))}, {p2(Rr(2))} {NEG}
v_pk_add_f32 {p2(bi)}, {p2(I(0))}, {p2(I(2))} {NEG}
v_pk_add_f32 {p2(dr)}, {p2(Rr(1))}, {p2(Rr(3))} {NEG}
v_pk_add_f32 {p2(di)}, {p2(I(1))}, {p2(I(3))} {NEG}
v_pk_add_f32 {p2(Rr(0))}, {p2(ar)}, {p2(cr)}
v_pk_add_f32 {p2(I(0))}, {p2(ai)}, {p2(ci)}
v_pk_add_f32 {p2(Rr(1))}, {p2(br)}, {p2(di)} {NEG}
v_pk_add_f32 {p2(I(1))}, {p2(bi)}, {p2(dr)}
v_pk_add_f32 {p2(Rr(2))}, {p2(ar)}, {p2(cr)} {NEG}
v_pk_add_f32 {p2(I(2))}, {p2(ai)}, {p2(ci)} {NEG}
v_pk_add_f32 {p2(Rr(3))}, {p2(br)}, {p2(di)}
v_pk_add_f32 {p2(I(3))}, {p2(bi)}, {p2(dr)} {NEG}
v_cvt_pk_bf16_f32 v{Z+r}, v{Rr(0)}, v{I(0)}
v_cvt_pk_bf16_f32 v{Z+r+1}, v{Rr(0)+1}, v{I(0)+1}
""")
        for q in range(1, 4):
            cc = TW+8*(q-1)+r
            k(f"v_pk_mul_f32 {p2(T+4*q)}, {p2(cc)}, {p2(Rr(q))}\nv_pk_mul_f32 {p2(T+4*q+2)}, {p2(cc)}, {p2(I(q))}")
        for q in range(1, 4):
            ss = TW+8*(q-1)+4+r
            k(f"v_pk_fma_f32 {p2(T+4*q)}, {p2(ss)}, {p2(I(q))}, {p2(T+4*q)} neg_lo:[1,0,0] neg_hi:[1,0,0]\nv_pk_fma_f32 {p2(T+4*q+2)}, {p2(ss)}, {p2(Rr(q))}, {p2(T+4*q+2)}")
        for q in range(1, 4):
            k(f"v_cvt_pk_bf16_f32 v{Z+4*q+r}, v{T+4*q}, v{T+4*q+2}\nv_cvt_pk_bf16_f32 v{Z+4*q+r+1}, v{T+4*q+1}, v{T+4*q+3}")
    k(f"s_lshl_b32 s3, s{sW}, 10\ns_add_u32 s3, s3, {EZ}\nv_add_u32 v{vEW}, s3, v{vDX}")
    for q in range(4): k(f"ds_write_b128 v{vEW}, {vr(Z+4*q, 4)} offset:{q*5120}")
    k(f"s_setprio 0\ns_cmp_eq_u32 s{sW}, 4\ns_cbranch_scc1 {name}_noA")
    if su3: mlp_setup()
    k(f"{name}_noA:")
    k(f"""
v_lshlrev_b32 v{vSR}, 6, v{n_}
v_add_u32 v{vSR}, {ES}, v{vSR}
v_lshrrev_b32 v{vSW}, 1, v{g_}
v_lshl_add_u32 v{vSW}, v{vSW}, 2, v{vSR}
s_lshl_b32 s3, s{sW}, 3
v_add_u32 v{vSW}, s3, v{vSW}
v_lshrrev_b32 v{vHS}, 1, v{n_}
v_lshlrev_b32 v{vHS}, 7, v{vHS}
v_and_b32 v{t0}, 1, v{n_}
v_lshl_add_u32 v{vHS}, v{t0}, 6, v{vHS}
v_lshl_add_u32 v{vHS}, v{g_}, 4, v{vHS}
v_add_u32 v{vEW}, {EZ}, v{vDX}
s_lshl_b32 s3, s{sS2}, 1
s_add_u32 s3, s3, s{sNT}
s_mul_i32 s4, s3, 18432
s_lshl_b32 s5, s{sW}, 11
s_add_u32 s{sSO}, s4, s5
s_add_u32 s{sVB}, s4, 16384
s_and_b32 s3, s3, 7
s_lshl_b32 s3, s3, 2
s_lshl_b32 s4, s{sMT}, 11
s_add_u32 s{sXO}, s3, s4
s_mov_b32 s5, 0xffff0000
""")
    A2 = AC; ZR = L
    def final(nmt):
        so = [sSO, sVB]
        for mt in range(nmt):
            for r in range(4):
                for q in range(4):
                    src = XX+8*mt+2*r+(q >> 1); dst = A2+16*mt+4*q+r
                    k(f"v_and_b32 v{dst}, s5, v{src}" if q & 1 else f"v_lshlrev_b32 v{dst}, 16, v{src}")
        k.wait_lg(); k("s_barrier")
        st(3)
        idx = [(jt, q) for jt in range(5) for q in range(4)]
        rd = lambda i: f"ds_read_b128 {vr(ZR+4*(i % 8), 4)}, v{vEW} offset:{idx[i][1]*5120+idx[i][0]*1024}"
        for i in range(7): k(rd(i))
        for i, (jt, q) in enumerate(idx):
            for mt in range(nmt):
                a = A2+16*mt+4*q
                k(f"{MF} {vr(a, 4)}, {vr(G+20*mt+4*jt, 4)}, {vr(ZR+4*(i % 8), 4)}, {vr(a, 4)}")
            if i+7 < 20: k(rd(i+7))
        if "p3st" in abl: k("s_memrealtime s[62:63]")
        first = True
        for mt in range(nmt):
            for q in range(4):
                for p in range(2):
                    a = A2+16*mt+4*q+2*p
                    if first: k(f"v_mov_b64 {vr(t0, 2)}, {vr(a, 2)}\nv_pk_mul_f32 {vr(t2, 2)}, {vr(a, 2)}, {vr(a, 2)}"); first = False
                    else: k(f"v_pk_add_f32 {vr(t0, 2)}, {vr(t0, 2)}, {vr(a, 2)}\nv_pk_fma_f32 {vr(t2, 2)}, {vr(a, 2)}, {vr(a, 2)}, {vr(t2, 2)}")
        k(f"""
v_add_f32 v{t0}, v{t0}, v{t1}
v_add_f32 v{t2}, v{t2}, v{t3}
v_permlane32_swap_b32 v{t0}, v{t2}
v_add_f32 v{t0}, v{t0}, v{t2}
v_mov_b32 v{t1}, v{t0}
v_permlane16_swap_b32 v{t0}, v{t1}
v_add_f32 v{t0}, v{t0}, v{t1}
ds_write_b32 v{vSW}, v{t0}
""")
        def pack(dst, mt, h):
            for p in range(4):
                r, q = 2*h+(p >> 1), 2*(p & 1)
                k(f"v_cvt_pk_bf16_f32 v{dst+p}, v{A2+16*mt+4*q+r}, v{A2+16*mt+4*(q+1)+r}")
        for mt in range(nmt):
            for h in range(2): pack(XX+8*mt+4*h, mt, h)
        k.wait_lg(); k("s_barrier")
        if "p3st" in abl: k("s_memrealtime s[64:65]")
        for w in range(4): k(f"ds_read_b128 {vr(L+4*w, 4)}, v{vSR} offset:{16*w}")
        k(f"""v_lshl_add_u32 v{vSW}, v{vL}, 7, s{sXO}
v_mov_b32 v{vSR}, {OOB}
v_cmp_gt_u32 vcc, 16, v{vL}
v_cndmask_b32 v{vSR}, v{vSR}, v{vSW}, vcc
v_mov_b32 v{vSW}, 1""")
        for a, b in ((0, 2), (4, 6), (8, 10), (12, 14), (0, 4), (8, 12), (0, 8)):
            k(f"v_pk_add_f32 {vr(L+a, 2)}, {vr(L+a, 2)}, {vr(L+b, 2)}")
        k(f"""
v_mul_f32 v{t0}, {fl(1/576)}, v{L}
v_mul_f32 v{t1}, v{t0}, v{t0}
v_fmamk_f32 v{t2}, v{L+1}, {fl(1/576)}, v{t1}
v_fma_f32 v{t2}, -2.0, v{t1}, v{t2}
v_max_f32 v{t2}, 0, v{t2}
v_add_f32 v{t2}, {fl(1e-5)}, v{t2}
v_rsq_f32 v{t2}, v{t2}
v_mul_f32 v{t2}, {fl(LOG2E)}, v{t2}
v_mul_f32 v{t0}, -v{t0}, v{t2}
v_mov_b32 v{t3}, v{t2}
v_mov_b32 v{t1}, v{t0}
s_cmp_eq_u32 s{sW}, 0
s_cselect_b32 s4, 0x10001, 0
""")
        for mt in range(nmt):
            for q in range(4):
                for p in range(2):
                    a = A2+16*mt+4*q+2*p
                    k(f"v_pk_fma_f32 {vr(a, 2)}, {vr(a, 2)}, {vr(t2, 2)}, {vr(t0, 2)}")
            for h in range(2):
                pack(L+8*mt+4*h, mt, h)
                if early and nmt == 1: k(f"v_or_b32 v{L+4*h}, s4, v{L+4*h}")
                k(f"buffer_store_dwordx4 {vr(L+8*mt+4*h, 4)}, v{vDX}, {S4(sX)}, s{so[mt]} offen offset:{h*1024} sc1", tag="XF")
    def hstores(lab):
        for mt in range(2):
            if mt: k(f"s_cmp_lg_u32 s{sW}, {W2}\ns_cbranch_scc1 {lab}")
            for h in range(2): k(f"buffer_store_dwordx4 {vr(XX+8*mt+4*h, 4)}, v{vHS}, {S4(sH)}, s{[sSO, sVB][mt]} offen offset:{h*1024} sc1", tag="H")
        k(f"{lab}:")
    k(f"s_cmp_eq_u32 s{sW}, {W2}\ns_cbranch_scc1 {name}_fin2")
    final(1)
    if early:
        k(f"""s_cmp_lg_u32 s{sW}, 0
s_cbranch_scc1 {name}_fin
s_mov_b32 s3, {F_E}
buffer_store_dword v{vSW}, v{vSR}, {S4(sF)}, s3 offen sc1""")
    k(f"s_branch {name}_fin\n{name}_fin2:")
    final(2)
    k(f"{name}_fin:")
    if "p3st" in abl: k("s_memrealtime s[60:61]")
    k(f"s_cmp_eq_u32 s{sS2}, -1\ns_cbranch_scc1 {name}_su\n{'s_cmp_lg_u32' if su3 else 's_cmp_gt_u32'} s{sW}, 4\ns_cbranch_scc1 {name}_sudone\n{name}_su:")
    mlp_setup()
    k(f"{name}_sudone:")
    first_w(f"{name}_wc")
    def touch(mats, lab, dst):
        k(f"""
s_lshr_b32 s3, s2, 3
s_lshl_b32 s3, s3, 3
s_add_u32 s3, s3, s{sW}
s_cmp_ge_u32 s3, {81*len(mats)}
s_cbranch_scc1 {lab}_x
s_cmp_ge_u32 s3, 81
s_cselect_b32 s4, 81, 0
s_sub_u32 s4, s3, s4
v_lshl_add_u32 v{vT0}, s4, 6, v{vL}
v_mul_u32_u24 v{vT1}, 7282, v{vT0}
v_lshrrev_b32 v{vT1}, 16, v{vT1}
v_mul_u32_u24 v{vT2}, 9, v{vT1}
v_sub_u32 v{vT2}, v{vT0}, v{vT2}
v_mul_u32_u24 v{vT1}, {9216 if mats[0] != sD else 1152}, v{vT1}
v_lshl_add_u32 v{vT1}, v{vT2}, 7, v{vT1}
s_mul_i32 s4, s{sXC}, {1152 if mats[0] != sD else 576*1152}
""")
        if len(mats) == 2: k(f"s_cmp_ge_u32 s3, 81\ns_cbranch_scc1 {lab}_u")
        k(f"buffer_load_dword v{dst}, v{vT1}, {S4(mats[0])}, s4 offen {TPOL if len(mats) == 2 else TPOLD}", tag="touch")
        if len(mats) == 2: k(f"s_branch {lab}_x\n{lab}_u:\nbuffer_load_dword v{dst}, v{vT1}, {S4(mats[1])}, s4 offen {TPOL}")
        k(f"{lab}_x:")
    vTW = 31
    k(f"""
s_cmp_eq_u32 s{sB}, 0
s_cselect_b32 s{sV}, s{sG}, s{sU}
s_cselect_b32 s{sV+1}, s{sG+1}, s{sU+1}
s_mov_b32 s{sV+2}, {N_W}
s_mov_b32 s{sV+3}, 0x20000
s_and_b32 s3, s{sW}, 3
s_mul_i32 s3, s3, 5
v_add_u32 v{vTW}, s3, v{vL}
v_cmp_lt_u32 vcc, 8, v{vTW}
v_cndmask_b32 v{vT0}, 0, 1, vcc
v_mul_u32_u24 v{vT1}, 9, v{vT0}
v_sub_u32 v{vT1}, v{vTW}, v{vT1}
s_lshr_b32 s3, s{sW}, 2
s_xor_b32 s3, s3, 1
s_xor_b32 s3, s3, s{sMT}
s_lshl_b32 s3, s3, 1
v_add_u32 v{vT0}, s3, v{vT0}
v_and_b32 v{vT2}, 24, v{vT0}
v_add_u32 v{vT0}, v{vT0}, v{vT2}
v_mul_u32_u24 v{vT0}, 9216, v{vT0}
v_lshl_add_u32 v{vT0}, v{vT1}, 7, v{vT0}
s_mul_i32 s3, s{sXC}, 1152
v_add_u32 v{vT0}, s3, v{vT0}
v_mov_b32 v{vT1}, {OOB}
v_cmp_gt_u32 vcc, 18, v{vTW}
v_cndmask_b32 v{vT0}, v{vT1}, v{vT0}, vcc
v_cmp_gt_u32 vcc, 5, v{vL}
v_cndmask_b32 v{vTW}, v{vT1}, v{vT0}, vcc
""")
    def roll(s):
        if "notouch" in abl or "noroll" in abl or s >= 18: return []
        return [(f"s_mov_b32 s94, {((s >> 1)*64 + (s & 1)*8)*9216}\nbuffer_load_dword v28, v{vTW}, {S4(sV)}, s94 offen {TPOL}", "touch")]
    if not early:
        k(f"""s_cmp_eq_u32 s{sS2}, -1
s_cbranch_scc1 {name}_p3done
""")
        k.wait_vm("XF")
        k(f"""s_barrier
s_cmp_lg_u32 s{sW}, 0
s_cbranch_scc1 {name}_p3sig
buffer_store_dword v{vSW}, v{vSR}, {S4(sF)}, 0 offen sc1
{name}_p3sig:
""")
        hstores(f"{name}_hs")
        k(f"{name}_p3done:")
    st(4)

    def path(five):
        nt5 = 5 if five else 4
        nf = 2*nt5
        P = "a" if five else "b"
        k(f"""
s_lshl_b32 s3, s{sMT}, 4
s_add_u32 s3, s3, s{sSL}
s_lshl_b32 s3, s3, 7
s_lshl_b32 s4, s{sW}, 2
s_add_u32 s{sLN}, s3, s4
s_add_u32 s{sS1}, s{sLN}, {F_E if early else 0}
buffer_load_dword v{vQ}, v{vZ}, {S4(sF)}, s{sS1} offen sc1
v_lshrrev_b32 v{vT0}, 4, v{vL}
v_bfe_u32 v{vT1}, v{vL}, 2, 2
v_lshl_add_u32 v{vT2}, v{vT0}, 3, v{vT1}
v_mul_u32_u24 v{vT2}, 576, v{vT2}
v_and_b32 v{vWB[0]}, 3, v{vL}
v_lshl_add_u32 v{vT2}, v{vWB[0]}, 3, v{vT2}
s_mul_i32 s3, s{sA}, 9
s_add_u32 s3, s3, {0 if five else 5}
s_lshl_b32 s4, s3, 5
s_add_u32 s4, s4, 8192
v_add_u32 v{vT2}, s4, v{vT2}
s_and_b32 s3, s3, 1
s_cmp_eq_u32 s3, 0
s_cselect_b32 s3, 32, -32
v_and_b32 v{vWB[0]}, 1, v{vT0}
v_mul_i32_i24 v{vWB[0]}, s3, v{vWB[0]}
v_add_u32 v{vWA[0]}, v{vT2}, v{vWB[0]}
v_sub_u32 v{vWB[0]}, v{vT2}, v{vWB[0]}
s_lshl_b32 s3, s{sRG}, 12
v_add_u32 v{vXr[0]}, s3, v{vDX}
""")
        for i in (1, 2):
            k(f"v_add_u32 v{vXr[i]}, {SLOT_A[i]}, v{vXr[0]}\nv_add_u32 v{vWA[i]}, {SLOT_A[i]}, v{vWA[0]}\nv_add_u32 v{vWB[i]}, {SLOT_A[i]}, v{vWB[0]}")
        k(f"""
v_lshrrev_b32 v{vDD}, 3, v{vL}
v_mul_u32_u24 v{vDD}, 1152, v{vDD}
v_bfe_u32 v{vT2}, v{vL}, 1, 2
v_xor_b32 v{vT2}, v{vT2}, v{vT0}
v_lshl_add_u32 v{vDD}, v{vT2}, 5, v{vDD}
v_and_b32 v{vT2}, 1, v{vL}
v_lshl_add_u32 v{vDD}, v{vT2}, 4, v{vDD}
s_mul_i32 s3, s{sCG if LP else sW}, {9 if LP else 4 if five else 5}
s_sub_u32 s3, s3, {0 if five or LP else 4}
s_lshl_b32 s{sM0d}, s3, 10
s_mul_i32 s3, s3, {8*1152}
s_mul_i32 s{sKD}, s{sSL}, {288*1152}
s_add_u32 s{sKD}, s{sKD}, s3
v_lshl_add_u32 v{vWD[0]}, v{vT0}, 2, v{vT1}
v_bfe_u32 v{vT2}, v{vWD[0]}, 1, 2
v_xor_b32 v{vT2}, s{sCG}, v{vT2}
v_lshlrev_b32 v{vT2}, 5, v{vT2}
v_lshl_add_u32 v{vWD[0]}, v{vWD[0]}, 7, v{vT2}
v_and_b32 v{vT2}, 3, v{vL}
v_lshl_add_u32 v{vWD[0]}, v{vT2}, 3, v{vWD[0]}
v_add_u32 v{vWD[1]}, {RING_B[1]}, v{vWD[0]}
v_add_u32 v{vWD[2]}, {RING_B[2]}, v{vWD[0]}
v_add_u32 v{vWD[3]}, {RING_B[3]}, v{vWD[0]}
s_xor_b32 s3, s{sB if LP else sRG}, {1 if LP and not five else 0}
s_mul_i32 s3, s3, {4*9*1024}
s_add_u32 s3, s3, {HH}
v_add_u32 v{vHR}, s3, v{vDX}
s_mul_i32 s3, s{sRG}, {4*9*1024}
s_add_u32 s3, s3, {HH}
s_mul_i32 s4, s{sA}, 9
s_add_u32 s4, s4, {0 if five else 5}
s_lshr_b32 s5, s4, 1
s_lshl_b32 s5, s5, 10
s_add_u32 s3, s3, s5
s_and_b32 s4, s4, 1
s_lshl_b32 s5, s4, 3
s_add_u32 s5, s5, s3
v_add_u32 v{vHW}, s5, v{vDX}
s_mul_i32 s5, s4, 1024
s_add_u32 s5, s5, s3
s_xor_b32 s4, s4, 1
s_lshl_b32 s4, s4, 3
s_add_u32 s5, s5, s4
v_add_u32 v{vHW2}, s5, v{vDX}
v_bfe_u32 v{vT2}, v{vL}, 1, 3
v_lshlrev_b32 v{vPO}, 10, v{vT2}
v_and_b32 v{vT2}, 1, v{vL}
v_lshl_add_u32 v{vPO}, v{vT2}, 6, v{vPO}
v_lshl_add_u32 v{vPO}, v{vT0}, 4, v{vPO}
""")
        if LP:
            k(f"""s_lshl_b32 s3, s{sMT}, 1
s_add_u32 s4, s3, s{sB}
s_mul_i32 s{sRD}, s4, {8*9*8192}
s_xor_b32 s4, s4, {0 if five else 1}
s_lshl_b32 s4, s4, 3
s_add_u32 s4, s4, s{sXC}
s_mul_i32 s{sPO}, s4, {9*8192}
s_lshl_b32 s4, s{sCG}, 8
s_add_u32 s{sPO}, s{sPO}, s4
s_xor_b32 s3, s2, {0 if five else 128}
s_lshl_b32 s3, s3, 9
s_lshl_b32 s4, s{sCG}, 7
s_add_u32 s3, s3, s4
s_add_u32 s{sF1}, s3, {F_1}
s_getreg_b32 s{sLoc}, hwreg(HW_REG_XCC_ID, 0, 4)
s_add_u32 s{sLoc}, s{sLoc}, 1""")
            if five:
                for i in range(4): k(f"v_mov_b32 v{28+i}, 0")
        else:
            k(f"""s_mul_i32 s{sRD}, s{sMT}, {16*9*16384}
s_mul_i32 s3, s{sSL}, {9*16384}
s_add_u32 s{sPO}, s{sRD}, s3
s_lshl_b32 s4, s{sRG}, 13
s_add_u32 s{sPO}, s{sPO}, s4
s_lshl_b32 s4, s{sCG}, 8
s_add_u32 s{sPO}, s{sPO}, s4""")
        if idlepf:
            k(f"s_cmp_lg_u32 s{sS2}, -1\ns_cbranch_scc1 {name}_{P}ip")
            if late1: put(dmaW(1, not five))
            for q in range(2, ahead): put(roll(q))
            k(f"{name}_{P}ip:")
        elif not five and not early:
            for q in range(2, ahead): put(roll(q))
        xflag = lambda so: f"buffer_load_dword v{vQ}, v{vZ}, {S4(sF)}, s{so} offen sc1"
        spin(f"{name}_{P}x", xflag(sS1), f"v_cmp_eq_u32 vcc, 0, v{vQ}")
        if early:
            ld = f"buffer_load_dwordx4 v[64:67], v{vDX}, {S4(sX)}, s{sKX} offen sc1\nbuffer_load_dwordx4 v[68:71], v{vDX}, {S4(sX)}, s{sKX} offen offset:1024 sc1"
            k(ld)
            k(f"v_add_u32 v{vT0}, s{sM0x}, v{vDX}\ns_mov_b32 s4, 0x10001")
            spin(f"{name}_{P}t", ld, f"v_and_b32 v{vT1}, v64, v68\nv_and_b32 v{vT1}, s4, v{vT1}\nv_cmp_ne_u32 vcc, s4, v{vT1}")
            k(f"s_cmp_eq_u32 s{sS2}, -1\ns_cbranch_scc1 {name}_{P}hs")
            hstores(f"{name}_{P}hs")
            if not five and not idlepf:
                for q in range(2, ahead): put(roll(q))
            k(f"ds_write_b128 v{vT0}, v[64:67] offset:{SLOT_A[0]}\nds_write_b128 v{vT0}, v[68:71] offset:{SLOT_A[1]}")
        else:
            put(dmaX(0)); put(dmaX(1))
        if late1 == 1:
            if idlepf: k(f"s_cmp_eq_u32 s{sS2}, -1\ns_cbranch_scc1 {name}_{P}l1")
            put(dmaW(1, not five))
            if idlepf: k(f"{name}_{P}l1:")
        st(5)
        ACC = 256-nf*16; XB = [64, 80]; WR = 32
        def acc(f, nt): return ACC + f*16 + nt*4
        def wreg(s, f): return WR + 4*((s*nf+f) % 8)
        def wread(s, f):
            i, u = f >> 1, f & 1
            va = (vWA if i % 2 == 0 else vWB)[s % 3]; d = wreg(s, f)
            return [f"ds_read_b64_tr_b16 v[{d+2*h}:{d+2*h+1}], v{va} offset:{h*4*576 + i*32 + u*18432}" for h in range(2)]
        def mfa(s, f):
            w = wreg(s, f)
            return [f"{MF} {vr(acc(f, nt), 4)}, {vr(w, 4)}, {vr(XB[s % 2]+4*nt, 4)}, {'0' if s == 0 else vr(acc(f, nt), 4)}" for nt in range(4)]
        vRD, vHO, vOO, vFL, vFS, SEL, vFV, vTR, vHT = 2, 3, 4, 8, 9, 12, 5, 10, 11
        assert not fuse
        sRP, sEX = 44, 48
        late = f"""v_mov_b32 v{vFS}, {OOB}
v_lshrrev_b32 v5, 4, v{vL}
v_and_b32 v6, 3, v{vL}
v_bfe_u32 v7, v{vL}, 3, 1
s_and_b32 s4, s{sSL}, 3
v_xor_b32 v14, s4, v5
v_mul_u32_u24 v{vRD}, {9*16384}, v14
v_lshlrev_b32 v{vHT}, 8, v7
v_and_b32 v14, 7, v{vL}
v_lshl_add_u32 v{vHT}, v14, 4, v{vHT}
v_add_u32 v{vRD}, v{vRD}, v{vHT}
s_lshl_b32 s4, s{sRG}, 1
v_add_u32 v7, s4, v7
s_lshl_b32 s4, s{sA}, 7
s_lshl_b32 s5, s{sRG}, 9
s_add_u32 s4, s4, s5
s_add_u32 s5, s4, 73728
v_add_u32 v{vHT}, s5, v{vHT}
s_add_u32 s{sRD}, s{sRD}, s4
s_lshl_b32 s4, s{sSL}, 10
s_add_u32 s{sRD}, s{sRD}, s4
s_and_b32 s4, s{sSL}, 12
s_mul_i32 s{sRP}, s4, {9*16384}
s_add_u32 s{sRP}, s{sRP}, s{sRD}
s_xor_b32 s5, s4, 4
s_mul_i32 s{sRP+1}, s5, {9*16384}
s_add_u32 s{sRP+1}, s{sRP+1}, s{sRD}
s_xor_b32 s5, s4, 8
s_mul_i32 s{sRP+2}, s5, {9*16384}
s_add_u32 s{sRP+2}, s{sRP+2}, s{sRD}
s_xor_b32 s5, s4, 12
s_mul_i32 s{sRP+3}, s5, {9*16384}
s_add_u32 s{sRP+3}, s{sRP+3}, s{sRD}
v_and_b32 v{vTR}, 1023, v{vPO}
s_lshl_b32 s4, s{sCG}, 8
s_add_u32 s4, s4, 73728
v_add_u32 v{vTR}, s4, v{vTR}
s_lshr_b32 s3, s{sSL}, 3
s_and_b32 s5, s{sSL}, 7
v_lshrrev_b32 v14, 10, v{vPO}
v_cmp_eq_u32 s[{sEX}:{sEX+1}], s5, v14
s_cmp_eq_u32 s3, s{sRG}|s_cselect_b64 s[{sEX}:{sEX+1}], s[{sEX}:{sEX+1}], 0
{f"v_cndmask_b32 v{vPO}, v{vPO}, v{vFS}, s[{sEX}:{sEX+1}]" if skip else ""}
s_lshl_b32 s5, s5, 7
s_lshl_b32 s{sLN}, s{sMT}, 2
s_lshl_b32 s3, s3, 1
s_add_u32 s{sLN}, s{sLN}, s3
s_add_u32 s{sLN}, s{sLN}, s{sA}
s_lshl_b32 s3, s{sLN}, 1
v_add_u32 v{vHO}, s3, v5
v_mul_u32_u24 v{vHO}, 18432, v{vHO}
v_lshrrev_b32 v14, 1, v6
v_lshl_add_u32 v{vHO}, v14, 10, v{vHO}
v_lshl_add_u32 v{vHO}, v7, 4, v{vHO}
v_and_b32 v14, 1, v6
v_lshl_add_u32 v{vHO}, v14, 3, v{vHO}
v_add_u32 v{vHO}, s5, v{vHO}
v_bfe_u32 v14, v{vL}, 2, 1
v_lshl_add_u32 v{vHO}, v14, 6, v{vHO}
s_lshr_b32 s4, s5, 6
v_lshl_add_u32 v{vOO}, v5, 4, s4
v_add_u32 v{vOO}, v{vOO}, v14
v_lshl_add_u32 v{vOO}, v{vOO}, 6, s{sLN}
v_mul_u32_u24 v{vOO}, 1152, v{vOO}
v_lshl_add_u32 v{vOO}, v7, 5, v{vOO}
v_lshl_add_u32 v{vOO}, v6, 3, v{vOO}
v_cmp_gt_u32 vcc, 32, v{vL}
v_cndmask_b32 v{vHO}, v{vFS}, v{vHO}, vcc
v_cndmask_b32 v{vOO}, v{vFS}, v{vOO}, vcc
s_lshl_b32 s4, s{sMT}, 11
s_add_u32 s4, s4, {F_2}
s_lshl_b32 s5, s{sSL}, 2
s_add_u32 s5, s5, s4
v_lshl_add_u32 v5, v{vL}, 7, s5
v_cmp_gt_u32 vcc, 16, v{vL}
v_cndmask_b32 v{vFS}, v{vFS}, v5, vcc
s_lshl_b32 s5, s{sSL}, 7
s_add_u32 s5, s5, s4
v_and_b32 v5, 15, v{vL}
v_lshl_add_u32 v{vFL}, v5, 2, s5
s_mov_b32 s{sLN}, {LN2!r}""".split("\n")
        late = [x.replace('|', '\n') for x in late]
        CNT = 73728; SK = 72; vMK = 16
        if LP and five:
            late = f"""v_mov_b32 v{vFS}, {OOB}
s_lshl_b32 s4, s{sMT}, 11
s_lshl_b32 s5, s{sB}, 7
s_add_u32 s4, s4, s5
s_add_u32 s4, s4, {F_2}
s_lshl_b32 s5, s{sXC}, 2
s_add_u32 s5, s5, s4
v_lshl_add_u32 v5, v{vL}, 8, s5
v_cmp_gt_u32 vcc, 8, v{vL}
v_cndmask_b32 v{vFS}, v{vFS}, v5, vcc
v_mov_b32 v{vFL}, {CNT}""".split("\n")
        elif LP:
            late = f"""v_mov_b32 v{vFS}, {OOB}
s_lshl_b32 s4, s{sMT}, 11
s_lshl_b32 s5, s{sSL}, 7
s_add_u32 s4, s4, s5
s_add_u32 s4, s4, {F_2}
v_and_b32 v5, 7, v{vL}
v_lshl_add_u32 v{vFL}, v5, 2, s4
s_lshl_b32 s5, s{sXC}, 10
s_add_u32 s{sRD}, s{sRD}, s5
v_lshrrev_b32 v{vTR}, 3, v{vL}
v_mul_u32_u24 v{vTR}, {9*8192}, v{vTR}
v_lshl_add_u32 v{vTR}, v5, 7, v{vTR}
v_add_u32 v{vTR}, s{sRD}, v{vTR}
v_lshlrev_b32 v{vRD}, 4, v5
v_lshrrev_b32 v5, 4, v{vL}
v_and_b32 v6, 3, v{vL}
v_bfe_u32 v7, v{vL}, 3, 1
v_mul_u32_u24 v14, {9*8192}, v5
v_add_u32 v{vRD}, v{vRD}, v14
v_lshl_add_u32 v{vRD}, v7, 8, v{vRD}
s_lshl_b32 s4, s{sRG}, 1
v_add_u32 v7, s4, v7
s_lshl_b32 s4, s{sA}, 7
s_add_u32 s{sRD}, s{sRD}, s4
s_lshl_b32 s4, s{sRG}, 9
s_add_u32 s{sRD}, s{sRD}, s4
s_lshl_b32 s5, s{sXC}, 7
s_lshl_b32 s{sLN}, s{sMT}, 2
s_lshl_b32 s3, s{sB}, 1
s_add_u32 s{sLN}, s{sLN}, s3
s_lshl_b32 s3, s{sLN}, 1
s_add_u32 s3, s3, s{sCG}
s_mul_i32 s3, s3, 18432
s_add_u32 s3, s3, s5
v_lshl_add_u32 v{vHT}, v{vL}, 10, s3
v_cmp_gt_u32 vcc, 18, v{vL}
v_cndmask_b32 v{vHT}, v{vFS}, v{vHT}, vcc
s_add_u32 s{sLN}, s{sLN}, s{sA}
s_lshl_b32 s3, s{sLN}, 1
v_add_u32 v{vHO}, s3, v5
v_mul_u32_u24 v{vHO}, 18432, v{vHO}
v_lshrrev_b32 v14, 1, v6
v_lshl_add_u32 v{vHO}, v14, 10, v{vHO}
v_lshl_add_u32 v{vHO}, v7, 4, v{vHO}
v_and_b32 v14, 1, v6
v_lshl_add_u32 v{vHO}, v14, 3, v{vHO}
v_add_u32 v{vHO}, s5, v{vHO}
v_bfe_u32 v14, v{vL}, 2, 1
v_lshl_add_u32 v{vHO}, v14, 6, v{vHO}
s_lshl_b32 s4, s{sXC}, 1
v_lshl_add_u32 v{vOO}, v5, 4, s4
v_add_u32 v{vOO}, v{vOO}, v14
v_lshl_add_u32 v{vOO}, v{vOO}, 6, s{sLN}
v_mul_u32_u24 v{vOO}, 1152, v{vOO}
v_lshl_add_u32 v{vOO}, v7, 5, v{vOO}
v_lshl_add_u32 v{vOO}, v6, 3, v{vOO}
v_cmp_gt_u32 vcc, 32, v{vL}
v_cndmask_b32 v{vHO}, v{vFS}, v{vHO}, vcc
v_cndmask_b32 v{vOO}, v{vFS}, v{vOO}, vcc
s_mov_b32 s{sLN}, {LN2!r}""".split("\n")
        sel = f"""v_and_b32 v5, 1, v{vL}
v_lshlrev_b32 v5, 4, v5
s_movk_i32 s3, 0x3f80
v_lshlrev_b32 v5, v5, s3
v_bfe_u32 v6, v{vL}, 1, 3""".split("\n")
        if LP and five:
            sel += [f"v_lshrrev_b32 v7, 3, v{vL}", f"v_and_b32 v7, 6, v7", f"v_sub_u32 v6, v6, v7"]
            for i in range(2): sel += [f"v_cmp_eq_u32 vcc, {i}, v6", f"v_cndmask_b32 v{SK+2+i}, 0, v5, vcc"]
            sel += [f"v_mov_b32 v{SK+i}, 0" for i in (0, 1, 4, 5)]
            sel += [f"ds_write_b64 v{vFL}, v[{SK}:{SK+1}] offset:{8*i}" for i in range(3)]
        else:
            for i in range(4): sel += [f"v_cmp_eq_u32 vcc, {i}, v6", f"v_cndmask_b32 v{SEL+i}, 0, v5, vcc"]
        sel += [f"v_mov_b32 v{vFV}, 1", f"v_mov_b32 v{vMK}, 0x10001"]
        def split_m0(d):
            out = []
            for t, tag in d:
                ls = t.split("\n")
                out += ["\n".join(ls[:-1]), (ls[-1], tag)]
            return out
        def spread_in(seq, dma, every):
            items = split_m0(dma); out = []; n = 0; j = 0
            for x in seq:
                out.append(x)
                if isinstance(x, str) and x.startswith("v_mfma"):
                    n += 1
                    if j < len(items) and (j % 2 == 1 or n % every == every-1): out.append(items[j]); j += 1
            return out + items[j:]
        k.wait_lg(); k.wait_vm("A0", "XF"); k("s_barrier")
        if early and five:
            k(f"s_cmp_eq_u32 s{sS2}, -1\ns_cbranch_scc1 {name}_xsig\ns_cmp_lg_u32 s{sW}, 0\ns_cbranch_scc1 {name}_xsig\nbuffer_store_dword v{vSW}, v{vSR}, {S4(sF)}, 0 offen sc1\n{name}_xsig:")
        st(6)
        if prio == ("lo" if five else "hi"): k("s_setprio 1")
        def glu(i):
            out = []
            for np_ in range(2):
                g, u = acc(2*i, 2*np_), acc(2*i+1, 2*np_)
                out += [f"v_exp_f32 v{g+r}, -v{g+r}" for r in range(8)]
                out += [f"v_pk_add_f32 {vr(g+r, 2)}, {vr(g+r, 2)}, s[4:5]" for r in range(0, 8, 2)] if pk else [f"v_add_f32 v{g+r}, 1.0, v{g+r}" for r in range(8)]
                out += [f"v_rcp_f32 v{g+r}, v{g+r}" for r in range(8)]
                out += [f"v_pk_mul_f32 {vr(g+r, 2)}, {vr(g+r, 2)}, {vr(u+r, 2)}" for r in range(0, 8, 2)] if pk else [f"v_mul_f32 v{g+r}, v{g+r}, v{u+r}" for r in range(8)]
                for q in range(2): out += [f"v_cvt_pk_bf16_f32 v{u+4*q}, v{g+4*q}, v{g+4*q+1}", f"v_cvt_pk_bf16_f32 v{u+4*q+1}, v{g+4*q+2}, v{g+4*q+3}"]
            return out
        hwrite = lambda i: [f"ds_write_b64 v{vHW if i % 2 == 0 else vHW2}, {vr(acc(2*i+1, nt), 2)} offset:{nt*9*1024 + (i >> 1)*1024}" for nt in range(4)]
        xread = lambda s: [f"ds_read_b128 {vr(XB[s % 2]+4*nt, 4)}, v{vXr[s % 3]} offset:{nt*1024}" for nt in range(4)]
        NS = 16 if fuse else 18
        for s in range(NS):
            put(xread(s))
            for f in range(look): put(wread(s, f))
            dma = dmaX(s+2) + dmaW(s+2, not five) if s+2 < 18 else dmaB(s-16, five)
            if early and s == 0: dma = dmaW(2, not five) + [("s_nop 0\n" + xflag(sLN), "XQ")]
            if late1 == 2 and s == 0: dma = dmaW(1, not five) + dma
            if early and s == 1:
                spin(f"{name}_{P}y", xflag(sLN), f"v_cmp_eq_u32 vcc, 0, v{vQ}")
                dma = dmaX(2) + dma
            if not five: dma = dma + roll(s+ahead)
            if LP and five and istage <= s < istage+4:
                dma = dma + [(f"s_add_u32 s94, s{sPO}, {(5+s-istage)*8192}\nbuffer_store_dwordx4 v[28:31], v{vPO}, {S4(sP)}, s94 offen offset:{h*128} sc1", "I") for h in range(2)]
            seq = sum((mfa(s-1, f) for f in range(nf-nd, nf)), []) if s > 0 else []
            for f in range(nf-nd):
                extra = late[f*len(late)//(nf-nd):(f+1)*len(late)//(nf-nd)] if s == 17 else []
                seq += interleave(mfa(s, f), (wread(s, f+look) if f+look < nf else []) + extra)
            put(spread_in(seq, dma, spread if len(dma) < 8 else 2))
            if s == dstage and "notouch" not in abl: touch([sD], f"{name}_{P}td", 27)
            xl = f"buffer_load_dword v{vQ}, v{vZ}, {S4(sF)}, s{sF1} offen sc1"
            if LP and five and s == tstage:
                k.wait_vm("I")
                k(f"""v_lshrrev_b32 v{vT0}, 4, v{vL}
v_lshlrev_b32 v{vT0}, 13, v{vT0}
v_bfe_u32 v{vT1}, v{vL}, 1, 3
v_lshl_add_u32 v{vT0}, v{vT1}, 10, v{vT0}
v_and_b32 v{vT1}, 1, v{vL}
v_lshl_add_u32 v{vT0}, v{vT1}, 7, v{vT0}
s_add_u32 s3, s{sPO}, {5*8192}
v_mov_b32 v{vT1}, s{sLoc}""")
                k(f"buffer_load_dword v28, v{vT0}, {S4(sP)}, s3 offen", tag="touch")
                k(f"buffer_store_dword v{vT1}, v{vZ}, {S4(sF)}, s{sF1} offen sc1")
            if LP and not five and s == 13: k(xl)
            if LP and not five and s == 15:
                spin(f"{name}_xid", xl, f"v_cmp_eq_u32 vcc, 0, v{vQ}")
                k(f"v_readfirstlane_b32 s3, v{vQ}\ns_cmp_eq_u32 s3, s{sLoc}\ns_cselect_b32 s{sLoc}, {0 if 'remote' in abl else 1}, 0")
            k.wait_lg(); k.wait_vm(f"A{s+1}", "A17" if fuse and s == 15 else "-"); k("s_barrier")
        if fuse:
            n0 = 16*nf
            wj = lambda j: WR + 4*((n0+j) % 8)
            def rd(j):
                f, s = j >> 1, 16 + (j & 1); i, u = f >> 1, f & 1
                va = (vWA if i % 2 == 0 else vWB)[s % 3]; d = wj(j)
                return [f"ds_read_b64_tr_b16 v[{d+2*h}:{d+2*h+1}], v{va} offset:{h*4*576 + i*32 + u*18432}" for h in range(2)]
            def mm(f): return [f"{MF} {vr(acc(f, nt), 4)}, {vr(wj(2*f+c), 4)}, {vr(XB[c]+4*nt, 4)}, {vr(acc(f, nt), 4)}" for nt in range(4) for c in range(2)]
            put(xread(16))
            for j in range(4): put(rd(j))
            put(spread_in(sum((mfa(15, f) for f in range(nf-nd, nf)), []), dmaB(0, five), 2))
            put(xread(17))
            for f in range(nf):
                fill = (rd(2*f+4) + rd(2*f+5)) if f+2 < nf else []
                if f < 2: fill = fill + late[f*len(late)//2:(f+1)*len(late)//2]
                else:
                    gl = glu(f//2 - 1); fill = fill + gl[(f % 2)*len(gl)//2:(f % 2 + 1)*len(gl)//2]
                put(interleave(mm(f), fill))
            k.wait_lg(); k("s_barrier")
            st(7)
            put(dmaB(1, five))
            for i in range(nt5-1): put(hwrite(i))
            put(sel)
            put(glu(nt5-1)); put(hwrite(nt5-1))
        else:
            put(sum((mfa(17, f) for f in range(nf-nd, nf)), []))
            st(7)
            k("s_mov_b32 s4, 1.0\ns_mov_b32 s5, 1.0")
            for i in range(nt5): put(glu(i)); put(hwrite(i))
            put(sel)
        if prio: k("s_setprio 0")
        k.wait_lg(); k.wait_vm("B0"); k("s_barrier")
        st(8); stb(0)
        if "dbl" in abl: k(f"s_cmp_eq_u32 s{sB}, 0\ns_mov_b32 s101, {288*1152}\ns_cselect_b32 s101, s101, {-288*1152}")
        if "cnt" in abl: k("s_mov_b32 s99, 0")
        HB = 112; AB = [80, 96]; WG = [28, 40, 52]; SD = 64
        def hreg(kp, nt): return HB + (kp*4+nt)*4
        def wgreg(gi, c): return WG[gi] + 4*c
        def wdread(u, gi):
            out = []
            for c in range(3):
                d = wgreg(gi, c); kp = gi*3+c
                out += [f"ds_read_b64_tr_b16 v[{d+2*h}:{d+2*h+1}], v{vWD[u % 4]} offset:{kp*4096 + h*2048}" for h in range(2)]
            return out
        def mfb(u, gi):
            out = []
            for nt in range(4):
                a = AB[u % 2]+4*nt
                for c in range(3):
                    out.append(f"{MF} {vr(a, 4)}, {vr(wgreg(gi, c), 4)}, {vr(hreg(gi*3+c, nt), 4)}, {'0' if gi == 0 and c == 0 else vr(a, 4)}")
            return out
        cvt = lambda u, h: [f"v_cvt_pk_bf16_f32 v{AB[u % 2]+8*h+q}, v{AB[u % 2]+8*h+2*q}, v{AB[u % 2]+8*h+2*q+1}" for q in range(4)]
        hread = lambda kp: [f"ds_read_b128 {vr(hreg(kp, nt), 4)}, v{vHR} offset:{(nt*9+kp)*1024}" for nt in range(4)]
        dmat = lambda t: (dmaB(2, five) + dmaB(3, five)) if t == 1 else (dmaB(t+2, five) if 2 <= t <= 6 else [])
        def phaseB_L():
            rounds = lambda ph: list(range(PH[ph-1]+1 if ph else 0, PH[ph]+1))
            TAG = lambda u: [0x1, 0x10000, 0x10001][(u+3)//4]
            alias = lambda u: 5 + (u-5) % 4
            def endslot(t):
                if t <= 7: k.wait_lg(); k.wait_vm(f"B{t+1}"); k("s_barrier")
                if t < 9: stb(t+1)
            arr_at = {c+4: ph for ph, c in enumerate(PH) if c+4 <= 9}
            tch_at = {t+1: ph for t, ph in arr_at.items() if t+1 <= 8 and ph < ntouch}
            if not five:
                def send(u):
                    lab = f"{name}_s{u}"
                    txt = f"s_add_u32 s3, s{sPO}, {alias(u)*8192}\n" + "\n".join(f"buffer_store_dwordx4 {vr(AB[u % 2]+8*h, 4)}, v{vPO}, {S4(sP)}, s3 offen offset:{h*128} POL" for h in range(2))
                    k(f"s_cmp_eq_u32 s{sLoc}, 0\ns_cbranch_scc1 {lab}_r")
                    q0 = k.seq
                    k(txt.replace("POL", ""))
                    k(f"s_branch {lab}_d\n{lab}_r:")
                    k.seq = q0
                    k(txt.replace("POL", "sc1"))
                    k.seq += 1
                    k(f"{lab}_d:")
                tag = lambda u, h: [f"s_mov_b32 s4, {TAG(u)}\nv_bfi_b32 v{AB[u % 2]+8*h}, v{vMK}, s4, v{AB[u % 2]+8*h}"]
                poll = lambda ph, tv: f"s_mov_b32 s3, {ph*32768}\nbuffer_load_dword v{tv}, v{vFL}, {S4(sF)}, s3 offen sc1"
                def check(ph, tv): spin(f"{name}_c{ph}", poll(ph, tv).split("\n")[1], f"s_mov_b32 s3, {ph*32768}\nv_cmp_eq_u32 vcc, 0, v{tv}")
                for t in range(9):
                    put(wdread(t, 0))
                    if t == 0:
                        for kp in range(3): put(hread(kp))
                        put(interleave(mfb(0, 0), wdread(0, 1) + hread(3)+hread(4)+hread(5)))
                        put(interleave(mfb(0, 1), wdread(0, 2) + hread(6)+hread(7)+hread(8)))
                    else:
                        d = mfb(t-1, 2)
                        put(d[:9]); put(interleave(d[9:], cvt(t-1, 0) + tag(t-1, 0)))
                        g0 = mfb(t, 0); g1 = mfb(t, 1)
                        put(interleave(g0[:3], wdread(t, 1)[:2] + cvt(t-1, 1) + tag(t-1, 1)))
                        send(t-1)
                        dm = dmat(t); h = (len(dm)+1)//2
                        put(spread_in(interleave(g0[3:], wdread(t, 1)[2:] + [""]*5), dm[:h], 2 if h <= 5 else 1))
                        put(spread_in(interleave(g1, wdread(t, 2) + [""]*6), dm[h:], 2 if h <= 5 else 1))
                        if t in tch_at:
                            ph = tch_at[t]; check(ph, 64)
                            if ph == 0: k(f"buffer_load_dword v65, v{vHT}, {S4(sH)}, 0 offen sc1", tag="touch")
                            rr = rounds(ph); assert len(rr) <= 4
                            k(f"s_cmp_lt_u32 s{sCG}, {len(rr)}\ns_cselect_b32 s3, s{sCG}, {OOB >> 13}\ns_add_u32 s3, s3, {rr[0]}\ns_lshl_b32 s3, s3, 13\nbuffer_load_dword v65, v{vTR}, {S4(sP)}, s3 offen sc1", tag="touch")
                    endslot(t)
                    if t+1 in tch_at: k(poll(tch_at[t+1], 64))
                first = len(tch_at)
                put(mfb(8, 2)); put(cvt(8, 0) + tag(8, 0) + cvt(8, 1) + tag(8, 1)); send(8)
                st(9)
                home = lambda r: (HB+16*r, HB+16*r+8, HB+16*r+12)
                def rloads(r):
                    RB, HV, DA = home(r)
                    for pg in range(2): k(f"s_add_u32 s3, s{sRD}, {r*8192 + pg*4*9*8192}\nbuffer_load_dwordx4 {vr(RB+4*pg, 4)}, v{vRD}, {S4(sP)}, s3 offen sc1")
                    k(f"s_movk_i32 s3, {r*2048}\nbuffer_load_dwordx2 {vr(HV, 2)}, v{vHO}, {S4(sH)}, s3 offen sc1")
                def rsum(r):
                    RB, HV, DA = home(r)
                    for pg in range(2): k(f"{MF} {vr(DA, 4)}, {vr(SEL, 4)}, {vr(RB+4*pg, 4)}, {'0' if pg == 0 else vr(DA, 4)}")
                    k(f"v_lshlrev_b32 v{RB}, 16, v{HV}\nv_and_b32 v{RB+1}, 0xffff0000, v{HV}\nv_lshlrev_b32 v{RB+2}, 16, v{HV+1}\nv_and_b32 v{RB+3}, 0xffff0000, v{HV+1}")
                def rfin(r):
                    RB, HV, DA = home(r)
                    for q in range(4): k(f"v_fma_f32 v{RB+q}, v{DA+q}, s{sLN}, v{RB+q}")
                    k(f"v_cvt_pk_bf16_f32 v{HV}, v{RB}, v{RB+1}\nv_cvt_pk_bf16_f32 v{HV+1}, v{RB+2}, v{RB+3}")
                rout = lambda r: k(f"buffer_store_dwordx2 {vr(home(r)[1], 2)}, v{vOO}, {S4(sO)}, 0 offen offset:{r*128} {OUTPOL}")
                pend = [r for ph in range(first) for r in rounds(ph)]
                for r in pend: rloads(r)
                for ph in range(first, len(PH)):
                    k(poll(ph, 64))
                    for r in pend: rsum(r)
                    for r in pend: rfin(r)
                    check(ph, 64)
                    for r in rounds(ph): rloads(r)
                    for r in pend: rout(r)
                    pend = rounds(ph)
                for r in pend: rsum(r)
                for r in pend: rfin(r); rout(r)
            else:
                sld = lambda u: f"s_add_u32 s3, s{sPO}, {alias(u)*8192}\n" + "\n".join(f"buffer_load_dwordx4 {vr(SD+4*h, 4)}, v{vPO}, {S4(sP)}, s3 offen offset:{h*128} sc1" for h in range(2))
                def add(u):
                    if "nol1chk" not in abl:
                        spin(f"{name}_k{u}", sld(u), f"s_mov_b32 s4, {TAG(u)}\nv_and_b32 v78, v{vMK}, v{SD}\nv_and_b32 v79, v{vMK}, v{SD+4}\nv_xor_b32 v78, s4, v78\nv_xor_b32 v79, s4, v79\nv_or_b32 v78, v78, v79\nv_cmp_ne_u32 vcc, 0, v78")
                    put([f"{MF} {vr(AB[u % 2]+8*h+4*q, 4)}, {vr(SK+2-2*q, 4)}, {vr(SD+4*h, 4)}, {vr(AB[u % 2]+8*h+4*q, 4)}" for h in range(2) for q in range(2)])
                pst = lambda u: [(f"s_add_u32 s3, s{sPO}, {u*8192}\nbuffer_store_dwordx4 {vr(AB[u % 2]+8*h, 4)}, v{vPO}, {S4(sP)}, s3 offen offset:{h*128} sc1", f"P{u}") for h in range(2)]
                def arrive1(ph):
                    k.wait_vm(f"P{PH[ph]}")
                    k(f"s_mov_b64 exec, 1\nds_add_rtn_u32 v7, v{vFL}, v{vFV} offset:{ph*4}\ns_mov_b64 exec, -1")
                def arrive2(ph):
                    k(f"v_readfirstlane_b32 s3, v7\ns_cmp_lg_u32 s3, 3\ns_cbranch_scc1 {name}_ar{ph}\ns_mov_b32 s3, {ph*32768}\nbuffer_store_dword v{vFV}, v{vFS}, {S4(sF)}, s3 offen sc1\n{name}_ar{ph}:")
                for kp in range(9): put(hread(kp))
                endslot(0)
                for t in range(1, 10):
                    u = t-1
                    put(wdread(u, 0))
                    if u >= 1: k(sld(u-1))
                    if u >= 2: put(pst(u-2))
                    if u >= 1: put(mfb(u-1, 2))
                    put(interleave(mfb(u, 0), wdread(u, 1) + [""]*6))
                    g1 = mfb(u, 1)
                    put(interleave(g1[:6], wdread(u, 2)))
                    if u >= 1:
                        add(u-1)
                        if t == 9: k(sld(8))
                        if t in arr_at: arrive1(arr_at[t])
                        put(g1[6:9])
                        put(interleave(g1[9:], cvt(u-1, 0) + cvt(u-1, 1)))
                        if t in arr_at: arrive2(arr_at[t])
                    else: put(g1[6:])
                    endslot(t)
                put(pst(7))
                put(mfb(8, 2)); add(8)
                st(9)
                p8 = pst(8)
                put(cvt(8, 0) + p8[:1] + cvt(8, 1) + p8[1:])
                for ph in range(len(arr_at), len(PH)): arrive1(ph); arrive2(ph)
        def phaseB_S():
            OWN = 73728
            pst = lambda u, h: (f"s_add_u32 s3, s{sPO}, {u*16384}\nbuffer_store_dwordx4 {vr(AB[u % 2]+8*h, 4)}, v{vPO}, {S4(sP)}, s3 offen offset:{h*128} sc1", f"P{u}")
            own = lambda u: [f"s_mov_b64 exec, s[{sEX}:{sEX+1}]\n" + "\n".join(f"ds_write_b128 v{vTR}, {vr(AB[u % 2]+8*h, 4)} offset:{u*1024+h*128}" for h in range(2)) + "\ns_mov_b64 exec, -1"] if skip else []
            epib = lambda u: cvt(u, 0) + [pst(u, 0)] + cvt(u, 1) + ([] if "half" in abl else [pst(u, 1)]) + own(u)
            def signal(ph):
                if five: k(f"s_cmp_lg_u32 s{sW}, 0\ns_cbranch_scc1 {name}_sig{ph}\ns_mov_b32 s3, {ph*32768}\nbuffer_store_dword v{vFV}, v{vFS}, {S4(sF)}, s3 offen sc1\n{name}_sig{ph}:")
            poll = lambda ph, tv: f"s_mov_b32 s3, {ph*32768}\nbuffer_load_dword v{tv}, v{vFL}, {S4(sF)}, s3 offen sc1"
            def check(ph, tv): spin(f"{name}_{P}c{ph}", poll(ph, tv).split("\n")[1], f"s_mov_b32 s3, {ph*32768}\nv_cmp_eq_u32 vcc, 0, v{tv}")
            rounds = lambda ph: list(range(PH[ph-1]+1 if ph else 0, PH[ph]+1))
            mine = lambda rr: [r for r in rr if (r % 2 == 0) == five]
            sig_at = {c+lag+1: ph for ph, c in enumerate(PH) if c+lag+1 <= 8}
            rd_at = {u+1: ph for u, ph in sig_at.items() if u+1 <= 8 and ph < inl}
            inloop = [r for ph in rd_at.values() for r in rounds(ph)]
            home = lambda r: (64, 6, 24) if r in inloop else (HB+24*(r >> 1), HB+24*(r >> 1)+16, HB+24*(r >> 1)+20)
            def rloads(r):
                RB, HV, DA = home(r); out = []
                for pg in range(2 if "half" in abl else 4):
                    ld = f"buffer_load_dwordx4 {vr(RB+4*pg, 4)}, v{vRD}, {S4(sP)}, s3 offen sc1"
                    if skip and pg == 0: ld = f"s_mov_b64 exec, 0xffff\nds_read_b128 {vr(RB, 4)}, v{vHT} offset:{r*1024}\ns_mov_b32 exec_hi, -1\ns_mov_b32 exec_lo, 0xffff0000\n{ld}\ns_mov_b64 exec, -1"
                    out.append(f"s_add_u32 s3, s{sRP+pg}, {r*16384}\n{ld}")
                out.append(f"s_movk_i32 s3, {r*2048}\nbuffer_load_dwordx2 {vr(HV, 2)}, v{vHO}, {S4(sH)}, s3 offen sc1")
                return out
            def rsum(r):
                RB, HV, DA = home(r)
                return [f"{MF} {vr(DA, 4)}, {vr(SEL, 4)}, {vr(RB+4*pg, 4)}, {'0' if pg == 3 else vr(DA, 4)}" for pg in (3, 2, 1, 0)]
            def rfin(r):
                RB, HV, DA = home(r)
                return [f"v_lshlrev_b32 v{RB}, 16, v{HV}", f"v_and_b32 v{RB+1}, 0xffff0000, v{HV}", f"v_lshlrev_b32 v{RB+2}, 16, v{HV+1}", f"v_and_b32 v{RB+3}, 0xffff0000, v{HV+1}"] + \
                       [f"v_fma_f32 v{RB+q}, v{DA+q}, s{sLN}, v{RB+q}" for q in range(4)] + \
                       [f"v_cvt_pk_bf16_f32 v{HV}, v{RB}, v{RB+1}", f"v_cvt_pk_bf16_f32 v{HV+1}, v{RB+2}, v{RB+3}"]
            rout = lambda r: [f"buffer_store_dwordx2 {vr(home(r)[1], 2)}, v{vOO}, {S4(sO)}, 0 offen offset:{r*128} {OUTPOL}"]
            pend = []
            for u in range(9):
                put(wdread(u, 0))
                if u in sig_at: signal(sig_at[u])
                if u == 0:
                    for kp in range(3): put(hread(kp))
                    put(interleave(mfb(0, 0), wdread(0, 1) + hread(3)+hread(4)+hread(5)))
                    put(interleave(mfb(0, 1), wdread(0, 2) + hread(6)+hread(7)+hread(8)))
                else:
                    put(spread_in(mfb(u-1, 2), dmat(u), 2 if u > 1 and 'dbl' not in abl else 1))
                    put(interleave(mfb(u, 0), wdread(u, 1) + epib(u-1)))
                    g1 = mfb(u, 1); fill = []
                    if pend and u not in rd_at:
                        r = pend.pop(); g1 = g1[:6] + rsum(r) + g1[6:]; fill = [""]*8 + rfin(r) + rout(r)
                    elif u in rd_at and mine(rounds(rd_at[u])):
                        assert not pend and len(mine(rounds(rd_at[u]))) == 1
                        check(rd_at[u], 19); pend = mine(rounds(rd_at[u])); fill = rloads(pend[0])
                    put(interleave(g1[:6], wdread(u, 2))); put(interleave(g1[6:], fill) if fill else g1[6:])
                    if u == 8:
                        for ph in sig_at.values():
                            if ph not in rd_at.values(): k(poll(ph, 28+ph))
                if u < 8:
                    k.wait_lg(); k.wait_vm(f"B{u+1}", f"P{PH[sig_at[u+1]]}" if u+1 in sig_at else "-"); k("s_barrier")
                if u+1 in rd_at and mine(rounds(rd_at[u+1])): k(poll(rd_at[u+1], 19))
                if u < 9: stb(u+1)
            put(mfb(8, 2))
            st(9)
            put(epib(8))
            for ph in sig_at.values():
                if ph in rd_at.values(): continue
                check(ph, 28+ph)
                for r in mine(rounds(ph)): put(rloads(r)); pend.append(r)
            for ph in range(len(sig_at), len(PH)):
                k.wait_lg(); k.wait_vm(f"P{PH[ph]}"); k("s_barrier")
                signal(ph)
                k(poll(ph, 19))
                done = pend[:1] if ph == len(PH)-1 else []
                for r in done: put(rsum(r)); put(rfin(r))
                check(ph, 19)
                for r in mine(rounds(ph)): put(rloads(r)); pend.append(r)
                for r in done: put(rout(r)); pend.remove(r)
            for r in pend: put(rsum(r)); put(rfin(r)); put(rout(r))
        phaseB_L() if LP else phaseB_S()
        if stamp:
            k("s_waitcnt vmcnt(0) lgkmcnt(0)\ns_memrealtime s[4:5]\ns_waitcnt lgkmcnt(0)")
            for i in range(10): k(f"v_mov_b32 v{28+i}, s{60+2*i}")
            k(f"""v_mov_b32 v38, s4
v_mov_b32 v39, s{99 if 'cnt' in abl else sLoc}
s_lshl_b32 s3, s2, 3
s_add_u32 s3, s3, s{sW}
s_lshl_b32 s3, s3, 6
s_add_u32 s3, s3, {O_STAMP}
v_mov_b32 v40, s3
global_store_dwordx4 v40, v[28:31], s[6:7]
global_store_dwordx4 v40, v[32:35], s[6:7] offset:16
global_store_dwordx4 v40, v[36:39], s[6:7] offset:32""")
            if "orc" in abl and not five:
                X = int(abl.split("orc")[1][:2]); which = abl.split("orc")[1][2:3] or "a"
                k(f"""s_cmp_lg_u32 s2, 0
s_cbranch_scc1 {name}_noorc
s_cmp_lg_u32 s{sW}, 4
s_cbranch_scc1 {name}_noorc
v_mov_b32 v41, {O_STAMP + 262144}
global_load_dword v44, v41, s[6:7]
s_waitcnt vmcnt(0)
v_readfirstlane_b32 s3, v44
s_sub_u32 s3, s{4 if which == 'a' else 60+2*int(which)}, s3
s_cmp_lt_u32 s3, {X*100}
s_cbranch_scc1 {name}_noorc
s_movk_i32 s3, 60
{name}_orcl:
s_sleep 64
s_sub_u32 s3, s3, 1
s_cbranch_scc0 {name}_orcl
{name}_noorc:""")
                k.saved.pop(f"{name}_orcl", None)
            if "until" in abl and not five:
                k(f"""s_cmp_lg_u32 s2, 0
s_cbranch_scc1 {name}_nount
s_cmp_lg_u32 s{sW}, 4
s_cbranch_scc1 {name}_nount
v_mov_b32 v41, {O_STAMP + 262144}
global_load_dword v44, v41, s[6:7]
s_waitcnt vmcnt(0)
v_readfirstlane_b32 s3, v44
{name}_untl:
s_memrealtime s[4:5]
s_waitcnt lgkmcnt(0)
s_sub_u32 s4, s4, s3
s_cmp_lt_u32 s4, 8000
s_cbranch_scc1 {name}_untl
{name}_nount:""")
                k.saved.pop(f"{name}_untl", None)
            if "dbg" in abl and not five:
                k(f"""s_cmp_lg_u32 s2, 0
s_cbranch_scc1 {name}_nodbg
s_cmp_lg_u32 s{sW}, 4
s_cbranch_scc1 {name}_nodbg
s_load_dwordx2 s[8:9], s[0:1], 64
v_mov_b32 v41, {O_STAMP + 262144}
global_load_dwordx4 v[44:47], v41, s[6:7]
global_load_dwordx4 v[48:51], v41, s[6:7] offset:16
v_mov_b32 v41, {O_STAMP + 2*262144}
global_load_dwordx4 v[52:55], v41, s[6:7]
global_load_dwordx4 v[56:59], v41, s[6:7] offset:16
s_waitcnt vmcnt(0) lgkmcnt(0)
s_sub_u32 s8, s8, {int(abl.split('dbg')[1][0])*512}
s_subb_u32 s9, s9, 0
v_sub_u32 v60, v46, v44
v_sub_u32 v61, v50, v44
v_sub_u32 v62, v52, v44
v_sub_u32 v63, v57, v44""")
                for i in range(11): k(f"v_sub_u32 v{64+i}, v{28+i}, v44")
                k(f"""v_mov_b32 v75, 12345
v_mov_b32 v41, 0
global_store_dwordx4 v41, v[60:63], s[8:9]
global_store_dwordx4 v41, v[64:67], s[8:9] offset:16
global_store_dwordx4 v41, v[68:71], s[8:9] offset:32
global_store_dwordx4 v41, v[72:75], s[8:9] offset:48
{name}_nodbg:""")
    k(f"s_cmp_ge_u32 s{sW}, 4\ns_cbranch_scc1 {name}_p4")
    path(True)
    k(f"s_endpgm\n{name}_p4:")
    path(False)
    k(f"{name}_end:")
    return k
```

```python
import re, copy

_REG = re.compile(r"^(-|abs\(|\|)?([vsa])(?:(\d+)|\[(\d+):(\d+)\])\)?\|?$")
def regs_of(op):
    op = op.strip()
    if op in ("vcc",): return {("s", "vcc")}
    if op in ("exec", "exec_lo", "exec_hi"): return {("s", "exec")}
    if op == "m0": return {("s", "m0")}
    m = _REG.match(op)
    if not m: return set()
    f = m.group(2)
    if m.group(3) is not None: return {(f, int(m.group(3)))}
    return {(f, i) for i in range(int(m.group(4)), int(m.group(5))+1)}

import os
TRANS_PK = int(os.environ.get('TRANS_PK', 1))
PK_PK = int(os.environ.get('PK_PK', 0))
PK_V = int(os.environ.get('PK_V', 0))
TRANS = ("v_exp_f32", "v_log_f32", "v_rcp_f32", "v_rsq_f32", "v_sqrt_f32", "v_sin_f32", "v_cos_f32")
class Ins:
    __slots__ = ("text", "mn", "kind", "w", "r", "rc", "rab", "data", "passes", "dpp", "trans", "sdwa_dst", "states", "wide", "lds_dma")
    def __init__(s, text):
        s.text = text
        t = text.split(";")[0].strip()
        parts = t.split(None, 1)
        s.mn = mn = parts[0]
        rest = parts[1] if len(parts) > 1 else ""
        ops = []
        depth = 0; cur = ""
        for ch in rest:
            if ch in "[(": depth += 1
            if ch in "])": depth -= 1
            if ch == "," and depth == 0: ops.append(cur.strip()); cur = ""
            else: cur += ch
        if cur.strip(): ops.append(cur.strip())
        mods = ""
        if ops:
            last = ops[-1].split(None, 1)
            ops[-1] = last[0]
            mods = last[1] if len(last) > 1 else ""
        R = [regs_of(o) for o in ops]
        U = lambda l: set().union(*l) if l else set()
        s.w = set(); s.r = set(); s.rc = set(); s.rab = set(); s.data = set(); s.passes = 0
        s.dpp = "_dpp" in mn or "row_" in mods or "quad_perm" in mods
        s.trans = mn.replace("_e32", "").replace("_e64", "") in TRANS
        s.sdwa_dst = ("_sdwa" in mn and "dst_sel:DWORD" not in mods) or ("op_sel" in mods and not mn.startswith("v_pk") and not mn.startswith("v_mfma"))
        s.states = 1; s.wide = False; s.lds_dma = False
        if mn.startswith("v_mfma"):
            s.kind = "mfma"; s.w = R[0]; s.rab = R[1] | R[2]; s.rc = R[3]; s.r = s.rab | s.rc
            s.passes = 8 if "32x32" in mn else 4
        elif mn.startswith("v_cmpx"):
            s.kind = "valu"; s.w = R[0] | {("s", "exec")}; s.r = U(R[1:])
        elif mn.startswith("v_"):
            s.kind = "valu"
            if mn.startswith(("v_permlane", "v_swap")): s.w = R[0] | R[1]; s.r = R[0] | R[1]
            elif "_co_" in mn or mn.startswith(("v_div_scale", "v_mad_u64")): s.w = R[0] | R[1]; s.r = U(R[2:])
            elif mn == "v_nop": pass
            else:
                s.w = R[0]; s.r = U(R[1:])
                if mn.startswith("v_dot"): s.rab = R[1] | R[2]
                if mn.startswith(("v_fmac", "v_dot2c", "v_writelane", "v_pk_fmac")) or s.dpp or s.sdwa_dst: s.r |= R[0]
        elif mn.startswith("ds_"):
            s.kind = "ds"
            if mn.startswith(("ds_read", "ds_bpermute", "ds_permute", "ds_swizzle")) or "_rtn" in mn: s.w = R[0]; s.r = U(R[1:])
            else: s.r = U(R); s.data = U(R[1:])
        elif mn.startswith("buffer_") or mn.startswith("global_"):
            s.kind = "vmem"
            lds = re.search(r"\blds\b", mods) is not None or "load_lds" in mn
            if mn.startswith(("buffer_wbl2", "buffer_inv")): pass
            elif lds: s.r = U(R) | {("s", "m0")}; s.lds_dma = True
            elif "_load" in mn:
                s.w = R[0]; s.r = U(R[1:])
                if "d16" in mn: s.r |= R[0]
            elif "atomic" in mn:
                ret = "sc0" in mods
                if mn.startswith("global_"):
                    if ret: s.w = R[0]; s.r = U(R[1:])
                    else: s.r = U(R)
                else:
                    s.r = U(R); s.w = R[0] if ret else set()
            else:
                s.r = U(R); s.data = R[0] if mn.startswith("buffer_") else R[1]
                s.wide = "x3" in mn or "x4" in mn
        elif mn.startswith(("s_load", "s_buffer_load", "s_memtime", "s_memrealtime")):
            s.kind = "smem"; s.w = R[0]; s.r = U(R[1:])
        elif mn.startswith("s_"):
            s.kind = "salu"
            if mn == "s_nop": s.states = int(ops[0], 0)+1
            elif mn.startswith(("s_cmp", "s_bitcmp", "s_setpc")): s.r = U(R)
            elif mn.startswith(("s_waitcnt", "s_barrier", "s_branch", "s_cbranch", "s_setprio", "s_sleep", "s_endpgm")): pass
            elif "saveexec" in mn: s.w = R[0] | {("s", "exec")}; s.r = U(R[1:])
            else:
                s.w = R[0]; s.r = U(R[1:])
                if mn.startswith(("s_addk", "s_mulk", "s_cmov", "s_bitset")): s.r |= R[0]
        else:
            raise ValueError("unknown instr: " + text)

def isv(x): return x[0] in "va"
def need_states(p, c):
    n = 0
    if p.kind == "valu":
        pv = {x for x in p.w if isv(x)}; ps = p.w - pv
        if p.mn.startswith("v_dot") and (pv & (c.r | c.w)):
            chain = c.mn == p.mn and not (pv & c.rab)
            if not chain: n = max(n, 3)
        if c.kind == "mfma":
            if pv & c.r: n = max(n, 2)
            if ("s", "exec") in ps: n = max(n, 4)
        if c.kind == "valu":
            if c.mn.startswith("v_permlane"):
                if pv & c.r: n = max(n, 2)
                if ("s", "exec") in ps: n = max(n, 4)
            if c.dpp:
                if pv & c.r: n = max(n, 2)
                if ("s", "exec") in ps: n = max(n, 5)
            if c.mn.startswith(("v_readlane", "v_readfirstlane", "v_writelane")):
                if pv & c.r: n = max(n, 1)
                if ps & c.r: n = max(n, 4)
                if ("s", "exec") in ps: n = max(n, 4)
            if ps & c.r: n = max(n, 2)
            if c.mn.startswith("v_div_fmas") and ("s", "vcc") in ps: n = max(n, 4)
            if p.trans and not c.trans and (pv & c.r): n = max(n, TRANS_PK if c.mn.startswith("v_pk") else 1)
            if p.mn.startswith("v_pk") and (pv & c.r): n = max(n, PK_PK if c.mn.startswith("v_pk") else PK_V)
            if p.sdwa_dst and (pv & (c.r | c.w)): n = max(n, 1)
        if c.kind in ("vmem", "ds") and (ps & c.r): n = max(n, 5)
        if c.kind in ("vmem", "ds") and p.trans and (pv & c.r): n = max(n, 1)
        if c.kind in ("salu", "smem") and (ps & c.r): n = max(n, 1)
    elif p.kind == "mfma":
        big = {4: 8, 8: 12}[p.passes]
        if c.kind == "mfma":
            if p.w & c.rab: n = max(n, big)
            if p.w & c.rc:
                if not (p.w == c.rc and p.mn == c.mn): n = max(n, {4: 6, 8: 10}[p.passes])
            elif p.w & c.w: n = max(n, big)
        elif c.kind in ("valu", "ds", "vmem"):
            if p.w & (c.r | c.w): n = max(n, big)
            if c.kind == "valu" and (p.rc & c.w): n = max(n, {4: 3, 8: 7}[p.passes])
            if c.kind != "valu" and (p.rc & c.w): n = max(n, big)
    elif p.kind == "vmem":
        if p.wide and c.kind in ("valu", "mfma") and (p.data & c.w): n = max(n, 2)
        elif p.wide and (p.data & c.w): n = max(n, 1)
    elif p.kind == "ds":
        if len(p.data) >= 3 and c.kind in ("valu", "mfma") and (p.data & c.w): n = max(n, 2)
    elif p.kind == "salu":
        if ("s", "m0") in p.w and (c.lds_dma or "addtid" in c.mn): n = max(n, 1)
    return n

class Q:
    def __init__(s): s.e = []; s.done = 0
    def clone(s):
        o = Q(); o.e = list(s.e); o.done = s.done; return o
    def younger(s, q): return sum(1 for x in s.e[q+1:] if not x[3])
    def wait(s, n, now):
        if n == 0: s.e = []; s.done = now; return
        for q in range(len(s.e)-1, -1, -1):
            if s.younger(q) >= n:
                s.done = max(s.done, s.e[q][0]); s.e = s.e[q+1:]; return
    @staticmethod
    def merge(a, b):
        A = {x[0]: x for x in a.e}; B = {x[0]: x for x in b.e}
        o = Q(); o.done = min(a.done, b.done)
        for sq in sorted(set(A) | set(B)):
            if sq in A and sq in B: o.e.append((sq, A[sq][1], A[sq][2], A[sq][3] or B[sq][3]))
            else:
                x, other = (A[sq], b) if sq in A else (B[sq], a)
                o.e.append((sq, x[1], x[2], x[3] or sq > other.done))
        return o

class State:
    def __init__(s):
        s.hists = [[]]; s.vm = Q(); s.lg = Q(); s.sm = set()
    def clone(s):
        o = State(); o.hists = [list(h) for h in s.hists]; o.vm = s.vm.clone(); o.lg = s.lg.clone(); o.sm = set(s.sm); return o
    @staticmethod
    def merge(a, b):
        o = State(); o.vm = Q.merge(a.vm, b.vm); o.lg = Q.merge(a.lg, b.lg); o.sm = a.sm | b.sm
        seen = {}
        for h in a.hists + b.hists: seen.setdefault(tuple(id(i) for i in h), h)
        o.hists = [list(h) for h in seen.values()]
        return o

class K:
    def __init__(self, name, grid, block, lds=0, vgpr=128, agpr=0, sgpr=96, auto=True):
        self.name, self.grid, self.block, self.lds = name, grid, block, lds
        self.vgpr, self.agpr, self.sgpr = vgpr, agpr, sgpr
        self.lines = []; self.data = []
        self.auto = auto
        self.st = State()
        self.saved = {}
        self.seq = 0
        self.nops = 0
        self.maxv = 0
        self.count = {}
    def __call__(self, s, tag=None):
        for l in s.strip("\n").split("\n"):
            l = l.strip()
            if not l: continue
            if l.startswith(";"): self.lines.append(l); continue
            if l.endswith(":"): self._label(l[:-1]); continue
            if l.startswith("."): self.lines.append(l); continue
            if not self.auto: self.lines.append(l); continue
            self._ins(l, tag)
    def _label(self, lab):
        self.lines.append(lab + ":")
        for o in self.saved.pop(lab, []):
            self.st = o if self.st is None else State.merge(self.st, o)
        if self.st is None: self.st = State()
    def _emit(self, i):
        self.lines.append(i.text)
        self.count[i.kind] = self.count.get(i.kind, 0) + 1
        seen = {}
        for h in self.st.hists:
            h.append(i)
            d = 0; n = len(h)
            while n > 0 and d < 14: n -= 1; d += h[n].states
            del h[:n]
            seen.setdefault(tuple(id(x) for x in h), h)
        self.st.hists = list(seen.values())
        assert len(self.st.hists) < 256
    def _wait(self, vm=None, lg=None):
        t = "s_waitcnt"
        if vm is not None: t += f" vmcnt({vm})"
        if lg is not None: t += f" lgkmcnt({lg})"
        self._apply_wait(vm, lg)
        self._emit(Ins(t))
    def _apply_wait(self, vm, lg):
        st = self.st
        if vm is not None: st.vm.wait(vm, self.seq)
        if lg is not None:
            if lg == 0: st.lg.wait(0, self.seq); st.sm = set()
            elif not st.sm: st.lg.wait(lg, self.seq)
    def _need(self, q, pred, cap):
        n = None
        for j, x in enumerate(q.e):
            if pred(x):
                m = min(cap, q.younger(j)); n = m if n is None else min(n, m)
        return n
    def _ins(self, text, tag):
        i = Ins(text)

        if self.st is None: self.st = State()
        st = self.st
        for f, n in (i.w | i.r):
            if f == "v": self.maxv = max(self.maxv, n)
        if i.mn == "s_waitcnt":
            vm = re.search(r"vmcnt\((\d+)\)", text); lg = re.search(r"lgkmcnt\((\d+)\)", text)
            self._apply_wait(int(vm.group(1)) if vm else None, int(lg.group(1)) if lg else None)
            self._emit(i); return
        touch = i.r | i.w
        vm = self._need(st.vm, lambda x: x[2] & (i.r if tag == "touch" and x[1] == "touch" and i.kind == "vmem" else touch), 63)
        lg = self._need(st.lg, lambda x: x[2] & touch, 15)
        if (lg is not None and st.sm) or (st.sm & touch): lg = 0
        if vm is not None or lg is not None: self._wait(vm, lg)
        need = 0
        for h in st.hists:
            dist = 0
            for p in reversed(h):
                n = need_states(p, i)
                if n > dist: need = max(need, n-dist)
                dist += p.states
        if need:
            self.nops += need
            self._emit(Ins(f"s_nop {need-1}"))
        self._emit(i)
        self.seq += 1
        if i.kind == "vmem": st.vm.e.append((self.seq, tag, i.w, False))
        elif i.kind == "ds": st.lg.e.append((self.seq, tag, i.w, False))
        elif i.kind == "smem": st.sm |= (i.w or {("s", -1)})
        if i.mn.startswith(("s_cbranch", "s_branch")):
            lab = text.split()[1]
            self.saved.setdefault(lab, []).append(st.clone())
            if i.mn == "s_branch": self.st = None
        if i.mn == "s_endpgm": self.st = None
    def wait_vm(self, *tags):
        n = self._need(self.st.vm, lambda x: x[1] in tags, 63)
        if n is not None: self._wait(vm=n)
    def wait_lg(self, *tags):
        n = self._need(self.st.lg, lambda x: not tags or x[1] in tags, 15)
        if n is not None: self._wait(lg=0 if self.st.sm else n)
    def launch_line(self):
        g = self.grid if isinstance(self.grid, tuple) else (self.grid, 1, 1)
        return f"; @launch kernel={self.name}_kernel grid=({g[0]},{g[1]},{g[2]}) block=({self.block},1,1) lds={self.lds}"
    def text(self):
        assert self.maxv < self.vgpr, (self.name, self.maxv, self.vgpr)
        acc = (self.vgpr + 3)//4*4
        nfv = acc + self.agpr if self.agpr else self.vgpr
        body = "\n".join(self.lines)
        return f""".text
.globl {self.name}_kernel
.p2align 8
.type {self.name}_kernel,@function
{self.name}_kernel:
{body}
s_endpgm
{self.name}_code_end:
{chr(10).join(self.data)}
.section .rodata,"a"
.p2align 6
.amdhsa_kernel {self.name}_kernel
  .amdhsa_next_free_vgpr {nfv}
  .amdhsa_next_free_sgpr {self.sgpr}
  .amdhsa_accum_offset {acc}
  .amdhsa_group_segment_fixed_size 0
  .amdhsa_kernarg_size 80
  .amdhsa_user_sgpr_count 2
  .amdhsa_user_sgpr_kernarg_segment_ptr 1
  .amdhsa_system_sgpr_workgroup_id_x 1
  .amdhsa_float_denorm_mode_32 3
.end_amdhsa_kernel
"""
def emit(launch_order, kernels, header="", tail=""):
    out = [k.launch_line() for k in launch_order]
    if header: out.append(header)
    out.append('.amdgcn_target "amdgcn-amd-amdhsa--gfx950"')
    for k in kernels: out.append(k.text())
    if tail: out.append(tail)
    return "\n".join(out) + "\n"
def vr(a, n=1): return f"v{a}" if n == 1 else f"v[{a}:{a+n-1}]"
def sr(a, n=1): return f"s{a}" if n == 1 else f"s[{a}:{a+n-1}]"
def srd(k, d, base, nbytes):
    k(f"s_mov_b32 s{d}, s{base}\ns_mov_b32 s{d+1}, s{base+1}\ns_mov_b32 s{d+2}, {nbytes}\ns_mov_b32 s{d+3}, 0x20000")
def interleave(main, fill):
    out = []; n, m = len(main), len(fill); j = 0
    for i, x in enumerate(main):
        out.append(x)
        hi = (i+1)*m//n
        out += fill[j:hi]; j = hi
    return out
```

```python
from asmlib import *
from layout import *
from pf import ws_srd
import struct
def fl(x): return "0x%08x" % struct.unpack("<I", struct.pack("<f", x))[0]
MF32 = "v_mfma_f32_16x16x32_bf16"
MF16 = "v_mfma_f32_16x16x16_bf16"

def stamp(k, on, i):
    if on: k(f"s_memrealtime s[{60+2*i}:{61+2*i}]")
def stamp_out(k, on, slot, wavereg, n):
    if not on: return
    k("s_waitcnt vmcnt(0)"); stamp(k, on, n)
    k("s_waitcnt lgkmcnt(0)")
    for i in range(8): k(f"v_mov_b32 v{8+i}, s{60+2*i}" if i <= n else f"v_mov_b32 v{8+i}, 0")
    k(f"""
s_lshl_b32 s3, s2, 3
s_add_u32 s3, s3, {wavereg}
s_lshl_b32 s3, s3, 5
s_add_u32 s3, s3, {O_STAMP + 262144*slot}
v_mov_b32 v16, s3
global_store_dwordx4 v16, v[8:11], s[6:7]
global_store_dwordx4 v16, v[12:15], s[6:7] offset:16
""")

def build_p1(st=False, FPOL="nt", P1PRIO=0, SELFPF=0, SIDEFIRST=0, TLB=0, XNT="nt"):
    XL = 9216
    EX = 4*XL
    k = K("p1", 480, 256, lds=EX+8192+6144, vgpr=136)
    sW, sS2, sJT = 30, 31, 32
    stamp(k, st, 0)
    if SELFPF:
        k(f"""s_getpc_b64 s[4:5]
p1_pc0:
v_lshlrev_b32 v1, 7, v0
v_min_u32 v1, p1_code_end-p1_pc0-4, v1""")
        k("global_load_dword v19, v1, s[4:5]", tag="touch")
    if SIDEFIRST: k("s_add_u32 s3, s2, 320\ns_sub_u32 s4, s2, 128\ns_cmp_lt_u32 s2, 128\ns_cselect_b32 s3, s3, s4\ns_cmp_lt_u32 s2, 448\ns_cselect_b32 s2, s3, s2")
    k(f"""
s_setprio 3
s_load_dwordx4 s[44:47], s[0:1], 0
s_load_dwordx2 s[48:49], s[0:1], 16
s_load_dwordx2 s[6:7], s[0:1], 72
v_lshrrev_b32 v1, 6, v0
v_and_b32 v0, 63, v0
v_readfirstlane_b32 s{sW}, v1
v_lshrrev_b32 v2, 4, v0
v_and_b32 v3, 15, v0
s_cmp_ge_u32 s2, 320
s_cbranch_scc1 p1_side
s_lshr_b32 s{sJT}, s2, 6
s_and_b32 s{sS2}, s2, 63
v_lshrrev_b32 v4, 3, v0
v_and_b32 v5, 7, v0
s_lshl_b32 s3, s{sW}, 9
s_add_u32 s3, s3, s{sS2}
v_lshl_add_u32 v6, v4, 6, s3
v_mul_u32_u24 v6, 1152, v6
v_lshlrev_b32 v4, 1, v4
v_and_b32 v4, 4, v4
v_xor_b32 v5, v5, v4
v_lshl_add_u32 v6, v5, 4, v6
s_mul_i32 s34, s{sW}, {XL}
s_waitcnt lgkmcnt(0)
""")
    srd(k, 8, 44, N_H)
    X, FR, FI, AF, AC, MA, TW, ON, SM = 20, 28, 46, 64, 100, 116, 124, 20, 28+0
    for i in range(9): k(f"s_add_u32 m0, s34, {i*896}\nbuffer_load_dwordx4 v6, s[8:11], 0 offen offset:{i*128} {XNT} lds", tag="X")
    k("s_setprio 0")
    ws_srd(k, 12, O_U, N_U)
    k(f"""
v_and_b32 v7, 3, v0
v_lshrrev_b32 v9, 2, v0
v_lshlrev_b32 v9, 3, v9
v_lshlrev_b32 v4, 5, v7
v_and_b32 v4, 64, v4
v_lshl_add_u32 v7, v7, 7, s34
v_xor_b32 v8, v9, v4
v_add_u32 v8, v8, v7
v_xor_b32 v5, 64, v8
v_lshrrev_b32 v4, 1, v2
v_lshl_add_u32 v5, v4, 10, v5
v_lshl_add_u32 v7, v4, 12, v8
s_lshl_b32 s3, s{sJT}, 4
v_add_u32 v13, s3, v3
v_cvt_f32_u32 v9, v13
v_lshlrev_b32 v11, 4, v0
v_add_u32 v11, {EX}, v11
s_lshr_b32 s3, s{sW}, 1
s_lshl_b32 s3, s3, 10
s_and_b32 s4, s{sW}, 1
s_lshl_b32 s4, s4, 3
s_add_u32 s3, s3, s4
v_add_u32 v10, s3, v11
s_lshl_b32 s3, s{sW}, 9
s_add_u32 s3, s3, s{sS2}
v_lshl_add_u32 v12, v2, 7, s3
v_mul_u32_u24 v12, {ROWB}, v12
v_lshl_add_u32 v12, v13, 4, v12
v_cvt_f32_u32 v14, v2
v_mul_f32 v15, {fl(1/144)}, v9
v_mul_f32 v14, 4.0, v14
v_mul_f32 v16, v14, v15
""")
    t = 132
    k(f"""v_lshlrev_b32 v17, 31, v13
v_lshrrev_b32 v18, 16, v17
v_or_b32 v17, v17, v18
v_lshrrev_b32 v18, 1, v2
v_cvt_f32_u32 v18, v18
v_mul_f32 v18, 0x42800000, v18
v_fma_f32 v18, v18, v15, v16""")
    FL = 8192
    k(f"""s_lshl_b32 s3, s{sW}, 1
s_cmp_ge_u32 s{sW}, 2
s_cselect_b32 s4, 12, 0
s_add_u32 s4, s4, s3
v_cvt_f32_u32 v19, s4
v_fma_f32 v16, v19, v15, v16
s_and_b32 s3, s3, 2
v_cvt_f32_u32 v19, s3
v_fma_f32 v18, v19, v15, v18
s_lshl_b32 s4, s{sW}, 2
v_add_u32 v19, s4, v11
s_lshl_b32 s3, s3, 1
v_add_u32 v1, s3, v11""")
    for i, (c0, base) in enumerate(((0, 16), (32, 16), (64, 18))):
        k(f"v_fmamk_f32 v{t}, v15, {fl(float(c0))}, v{base}\nv_add_f32 v{t+1}, v{t}, v15")
        k(f"v_cos_f32 v{t+2}, v{t}\nv_cos_f32 v{t+3}, v{t+1}\nv_sin_f32 v{t}, v{t}\nv_sin_f32 v{t+1}, v{t+1}")
        k(f"v_cvt_pk_bf16_f32 v{FR+i}, v{t+2}, v{t+3}\nv_cvt_pk_bf16_f32 v{FI+i}, -v{t}, -v{t+1}")
        k(f"ds_write_b32 v{19 if i < 2 else 1}, v{FR+i} offset:{FL+i*2048}\nds_write_b32 v{19 if i < 2 else 1}, v{FI+i} offset:{FL+i*2048+1024}")
    k(f"v_mov_b32 v{TW}, 1.0\nv_mov_b32 v{TW+4}, 0")
    for q in range(1, 4):
        k(f"v_mul_f32 v{t}, {fl(q/576)}, v9\nv_cos_f32 v{TW+q}, v{t}\nv_sin_f32 v{TW+4+q}, v{t}")
    k(f"""
v_lshrrev_b32 v14, 1, v3
s_lshl_b32 s3, s{sW}, 3
v_add_u32 v14, s3, v14
v_lshl_add_u32 v15, v2, 6, s{sS2}
v_mul_u32_u24 v15, v14, v15
v_and_b32 v16, 1, v3
v_lshl_add_u32 v15, v16, 9, v15
v_cvt_f32_u32 v15, v15
v_mul_f32 v15, {fl(1/2048)}, v15
v_cvt_f32_u32 v14, v14
""")
    for kk in range(2):
        for tt in range(4):
            k(f"v_fmamk_f32 v{t}, v14, {fl((16*kk+4*tt)/32)}, v15\nv_cos_f32 v{t+1}, v{t}\nv_sin_f32 v{t}, v{t}\nv_cvt_pk_bf16_f32 v{MA+4*kk+tt}, v{t+1}, v{t}")
    k.wait_lg(); k("s_barrier")
    for c, Fb in enumerate((FR, FI)):
        for kk in range(2): k(f"ds_read_b128 {vr(Fb+4*kk, 4)}, v11 offset:{FL+kk*2048+c*1024}")
        k(f"ds_read_b64 {vr(Fb+16, 2)}, v11 offset:{FL+4096+c*1024}")
    for Fb in (FR, FI):
        for i in range(8): k(f"v_xor_b32 v{Fb+8+i}, v17, v{Fb+i}")
    k("v_mov_b32 v16, 0\nv_mov_b32 v17, 0")
    for i in range(4): k(f"v_mov_b32 v{ON+i}, 0x3f803f80")
    k(f"v_lshlrev_b32 v18, 4, v2")
    stamp(k, st, 1)
    if P1PRIO: k("s_setprio 1")
    k.wait_vm("X")
    stamp(k, st, 2)
    for mu in range(2):
        for kk in range(5):
            for h in range(2 if kk < 4 else 1):
                d = AF+18*mu+4*kk+2*h
                va, blk = [(8, h), (8, 2+h), (5, 4+h), (5, 6+h), (7, 4)][kk]
                k(f"ds_read_b64_tr_b16 v[{d}:{d+1}], v{va} offset:{mu*512 + blk*1024}")
    mf = []; dots = []
    SX = 24
    for mu in range(2):
        for kk in range(5):
            for a, Fb in ((AC+8*mu, FR+4*kk), (AC+8*mu+4, FI+4*kk), ([24, 132][mu], ON)):
                if kk < 4: mf.append(f"{MF32} {vr(a, 4)}, {vr(AF+18*mu+4*kk, 4)}, {vr(Fb, 4)}, {'0' if kk == 0 else vr(a, 4)}")
                else: mf.append(f"{MF16} {vr(a, 4)}, {vr(AF+18*mu+16, 2)}, {vr(Fb, 2)}, {vr(a, 4)}")
        dots += [f"v_dot2_f32_bf16 v{16+mu}, v{AF+18*mu+i}, v{AF+18*mu+i}, v{16+mu}" for i in range(18)]
    dpp = "row_mask:0xf bank_mask:0xf"
    red = f"""v_permlane32_swap_b32 v16, v17
v_add_f32 v16, v16, v17
v_add_f32_dpp v16, v16, v16 quad_perm:[1,0,3,2] {dpp}
v_add_f32_dpp v16, v16, v16 quad_perm:[2,3,0,1] {dpp}
v_mov_b32 v17, v16
v_permlane16_swap_b32 v16, v17
v_add_f32 v16, v16, v17
ds_bpermute_b32 v14, v18, v16
ds_bpermute_b32 v15, v18, v16 offset:128""".split("\n")
    for x in interleave(mf[:24], dots) + interleave(mf[24:], red): k(x)
    stamp(k, st, 3)
    E = X
    p2 = lambda x: vr(x, 2)
    NEG = "neg_lo:[0,1] neg_hi:[0,1]"
    for mu in range(2):
        R, I = AC+8*mu, AC+8*mu+4
        T = AF+16*mu
        rr = f"v[{14+2*mu}:{15+2*mu}]"
        k(f"""
v_pk_mul_f32 {p2(T)}, {p2(TW)}, {p2(R)}
v_pk_mul_f32 {p2(T+2)}, {p2(TW+2)}, {p2(R+2)}
v_pk_mul_f32 {p2(T+4)}, {p2(TW)}, {p2(I)}
v_pk_mul_f32 {p2(T+6)}, {p2(TW+2)}, {p2(I+2)}
v_pk_fma_f32 {p2(T)}, {p2(TW+4)}, {p2(I)}, {p2(T)}
v_pk_fma_f32 {p2(T+2)}, {p2(TW+6)}, {p2(I+2)}, {p2(T+2)}
v_pk_fma_f32 {p2(T+4)}, {p2(TW+4)}, {p2(R)}, {p2(T+4)} neg_lo:[1,0,0] neg_hi:[1,0,0]
v_pk_fma_f32 {p2(T+6)}, {p2(TW+6)}, {p2(R+2)}, {p2(T+6)} neg_lo:[1,0,0] neg_hi:[1,0,0]
v_pk_add_f32 {p2(T+8)}, {p2(T)}, {p2(T+2)}
v_pk_add_f32 {p2(T+10)}, {p2(T+4)}, {p2(T+6)}
v_pk_add_f32 {p2(T+12)}, {p2(T)}, {p2(T+2)} {NEG}
v_pk_add_f32 {p2(T+14)}, {p2(T+4)}, {p2(T+6)} {NEG}""")
    k(f"""v_pk_add_f32 v[24:25], v[24:25], v[26:27]
v_pk_add_f32 v[132:133], v[132:133], v[134:135]
v_add_f32 v24, v24, v25
v_add_f32 v25, v132, v133
s_mov_b32 s4, {fl(1/576)}
s_mov_b32 s5, s4
v_pk_mul_f32 v[24:25], v[24:25], s[4:5]
v_pk_mul_f32 v[24:25], v[24:25], v[24:25]
v_pk_fma_f32 v[14:15], v[14:15], s[4:5], v[24:25] neg_lo:[0,0,1] neg_hi:[0,0,1]
v_max_f32 v14, 0, v14
v_max_f32 v15, 0, v15
v_add_f32 v14, {fl(1e-5)}, v14
v_add_f32 v15, {fl(1e-5)}, v15
v_rsq_f32 v16, v15
v_rsq_f32 v17, v15
v_rsq_f32 v15, v14
v_rsq_f32 v14, v14""")
    for mu in range(2):
        T = AF+16*mu
        rr = f"v[{14+2*mu}:{15+2*mu}]"
        k(f"""
v_pk_mul_f32 {p2(T+8)}, {p2(T+8)}, {rr}
v_pk_mul_f32 {p2(T+10)}, {p2(T+10)}, {rr}
v_pk_mul_f32 {p2(T+12)}, {p2(T+12)}, {rr}
v_pk_mul_f32 {p2(T+14)}, {p2(T+14)}, {rr}
v_add_f32 v{T}, v{T+8}, v{T+9}
v_add_f32 v{T+1}, v{T+10}, v{T+11}
v_add_f32 v{T+2}, v{T+12}, v{T+15}
v_sub_f32 v{T+3}, v{T+14}, v{T+13}
v_sub_f32 v{T+4}, v{T+8}, v{T+9}
v_sub_f32 v{T+5}, v{T+10}, v{T+11}
v_sub_f32 v{T+6}, v{T+12}, v{T+15}
v_add_f32 v{T+7}, v{T+14}, v{T+13}
""")
        for m in range(4): k(f"v_cvt_pk_bf16_f32 v{E+2*m+mu}, v{T+2*m}, v{T+2*m+1}")
    for m in range(4): k(f"ds_write_b64 v10, {vr(E+2*m, 2)} offset:{m*2048}")
    k.wait_lg(); k("s_barrier")
    stamp(k, st, 4)
    B = FR
    for m in range(4):
        for kk in range(2): k(f"ds_read_b128 {vr(B+8*m+4*kk, 4)}, v11 offset:{m*2048+kk*1024}")
    for kk in range(2):
        for m in range(4): k(f"{MF32} {vr(AC+4*m, 4)}, {vr(MA+4*kk, 4)}, {vr(B+8*m+4*kk, 4)}, {'0' if kk == 0 else vr(AC+4*m, 4)}")
    k(f"s_mov_b32 s3, {64*ROWB}")
    for a in range(2):
        for m in range(4): k(f"v_cvt_pk_bf16_f32 v{X+4*a+m}, v{AC+4*m+2*a}, v{AC+4*m+2*a+1}")
        k(f"buffer_store_dwordx4 {vr(X+4*a, 4)}, v12, s[12:15], {'s3' if a else '0'} offen sc1")
    stamp(k, st, 5)
    stamp_out(k, st, 1, f"s{sW}", 6)
    k("s_endpgm\np1_side:")
    k(f"""
s_cmp_ge_u32 s2, 448
s_cbranch_scc1 p1_tab
s_sub_u32 s3, s2, 320
s_and_b32 s32, s3, 7
s_lshl_b32 s32, s32, 2
s_bfe_u32 s4, s3, 0x20003
s_add_u32 s32, s32, s4
s_lshr_b32 s31, s3, 5
s_lshl_b32 s3, s31, 9
s_add_u32 s33, s32, s3
s_and_b32 s3, s{sW}, 1
s_mul_i32 s4, s3, 138
s_cmp_eq_u32 s3, 0
s_cselect_b32 s34, 1, -1
v_lshrrev_b32 v4, 5, v0
v_lshl_add_u32 v6, v4, 5, s33
v_mul_lo_u32 v6, v6, s34
s_lshl_b32 s35, s34, 6
v_and_b32 v5, 1, v2
v_mul_u32_u24 v5, 288, v5
v_add_u32 v5, s4, v5
v_mov_b32 v12, {OOB}
v_lshlrev_b32 v7, 2, v2
v_and_b32 v7, 4, v7
v_sub_u32 v7, v3, v7
v_cmp_gt_u32 vcc, 11, v7
v_lshlrev_b32 v7, 4, v7
v_cndmask_b32 v12, v12, v7, vcc
s_movk_i32 s36, 578
s_mul_i32 s38, s{sW}, 8336
s_waitcnt lgkmcnt(0)
s_cmp_lt_u32 s{sW}, 2
s_cselect_b32 s8, s46, s48
s_cselect_b32 s9, s47, s49
s_mov_b32 s10, {N_WF}
s_mov_b32 s11, 0x20000
""")
    for i in range(8):
        k(f"""v_and_b32 v8, 2047, v6
v_mad_u32_u24 v8, v8, s36, v5
v_and_b32 v8, -16, v8
s_add_u32 m0, s38, {i*1040}
v_add_u32 v8, v8, v12
buffer_load_dwordx4 v8, s[8:11], 0 offen {FPOL} lds
v_add_u32 v6, s35, v6""", tag="W")
    stamp(k, st, 1)
    ws_srd(k, 16, O_WH, N_WH)
    k(f"""
v_lshrrev_b32 v4, 2, v3
s_lshl_b32 s3, s{sW}, 2
v_add_u32 v4, s3, v4
v_and_b32 v10, 3, v3
v_sub_u32 v13, 75, v4
v_cmp_gt_u32 vcc, 2, v10
v_cndmask_b32 v13, v13, v4, vcc
v_mov_b32 v14, 0xffffffe0
v_cndmask_b32 v14, v14, 32, vcc
v_bfrev_b32 v15, 1
v_cndmask_b32 v15, v15, 0, vcc
v_mov_b32 v16, 8336
v_cndmask_b32 v16, v16, 0, vcc
v_lshl_add_u32 v16, v13, 1, v16
v_mul_u32_u24 v17, 2080, v2
v_add_u32 v16, v16, v17
v_lshrrev_b32 v17, 1, v10
v_xor_b32 v17, v17, v10
v_and_b32 v17, 1, v17
v_mul_u32_u24 v17, 320, v17
v_add_u32 v16, v16, v17
v_sub_u32 v17, 5, s33
v_mov_b32 v18, s33
v_cndmask_b32 v17, v17, v18, vcc
v_lshlrev_b32 v17, 1, v17
v_and_b32 v17, 14, v17
v_add_u32 v84, v16, v17
v_or_b32 v11, v10, v4
v_cmp_eq_u32 s[40:41], 0, v11
s_mul_i32 s3, s32, 19
s_add_u32 s3, s3, s{sW}
s_lshl_b32 s3, s3, 12
s_lshl_b32 s4, s31, 10
s_add_u32 s37, s3, s4
v_lshlrev_b32 v93, 4, v0
""")
    stamp(k, st, 2)
    k.wait_vm("W")
    stamp(k, st, 3)
    k("s_barrier")
    stamp(k, st, 4)
    for it in range(5):
        D0 = 20 + 12*it
        if it: k(f"v_add_u32 v84, v84, v14")
        for r in range(4): k(f"ds_read_u16 v{D0+r}, v84 offset:{(r >> 1)*1040 + (r & 1)*512}\nds_read_u16 v{D0+4+r}, v84 offset:{(r >> 1)*1040 + (r & 1)*512 + 16672}")
    k("v_cmp_lt_u32 vcc, 8, v4")
    for it in range(5):
        if it == 4: k(f"s_cmp_eq_u32 s{sW}, 3\ns_cbranch_scc1 p1_wend")
        D0 = 20 + 12*it
        for r in range(4): k(f"v_lshl_or_b32 v{D0+8+r}, v{D0+4+r}, 16, v{D0+r}\nv_xor_b32 v{D0+8+r}, v15, v{D0+8+r}")
        if it == 0:
            for r in range(4): k(f"v_cndmask_b32 v{D0+8+r}, v{D0+8+r}, 0, s[40:41]")
        if it == 4:
            for r in range(4): k(f"v_cndmask_b32 v{D0+8+r}, v{D0+8+r}, 0, vcc")
        k(f"buffer_store_dwordx4 {vr(D0+8, 4)}, v93, s[16:19], s37 offen sc1\ns_add_u32 s37, s37, 16384")
    k("p1_wend:")
    stamp(k, st, 5)
    stamp_out(k, st, 1, f"s{sW}", 6)
    k("s_endpgm\np1_tab:")
    sc = 1.0/(S*D)
    k(f"""
s_cmp_ge_u32 s2, 464
s_cbranch_scc1 p1_pf
s_sub_u32 s3, s2, 448
s_lshl_b32 s3, s3, 2
s_add_u32 s31, s3, s{sW}
s_cmp_ge_u32 s31, 61
s_cbranch_scc1 p1_end
s_lshr_b32 s32, s31, 2
s_and_b32 s33, s31, 3
s_mov_b32 s34, {fl(1/64)}
s_cmp_lt_u32 s31, 16
s_cbranch_scc1 p1_tabA
s_sub_u32 s3, s31, 16
s_mul_i32 s32, s3, 52
s_lshr_b32 s32, s32, 8
s_mul_i32 s4, s32, 5
s_sub_u32 s33, s3, s4
s_mov_b32 s34, {fl(1/144)}
p1_tabA:
s_lshl_b32 s32, s32, 4
s_lshl_b32 s33, s33, 4
v_add_u32 v4, s32, v3
v_lshl_add_u32 v5, v2, 2, s33
s_waitcnt lgkmcnt(0)
""")
    ws_srd(k, 8, O_TAB, N_TAB)
    for r in range(4):
        k(f"""
v_add_u32 v6, {r}, v5
v_mul_u32_u24 v7, v6, v4
v_cvt_f32_u32 v7, v7
v_mul_f32 v7, s34, v7
v_fract_f32 v7, v7
v_cos_f32 v8, v7
v_sin_f32 v9, v7
s_cmp_lt_u32 s31, 16
s_cbranch_scc1 p1_tabB{r}
v_mov_b32 v10, {fl(2*sc)}
v_mov_b32 v11, {fl(sc)}
v_cmp_eq_u32 vcc, 0, v6
v_cndmask_b32 v10, v10, v11, vcc
v_cmp_eq_u32 vcc, 72, v6
v_cndmask_b32 v10, v10, v11, vcc
v_cmp_gt_u32 vcc, 73, v6
v_cndmask_b32 v10, 0, v10, vcc
v_mul_f32 v8, v8, v10
v_mul_f32 v9, -v9, v10
p1_tabB{r}:
v_cvt_pk_bf16_f32 v{12+r}, v8, v9
""")
    k(f"v_lshlrev_b32 v4, 4, v0\ns_lshl_b32 s3, s31, 10\nbuffer_store_dwordx4 v[12:15], v4, s[8:11], s3 offen sc1\ns_endpgm\np1_pf:")
    k(f"""
s_cmp_ge_u32 s2, 480
s_cbranch_scc1 p1_end
s_getpc_b64 s[4:5]
p1_pc:
s_add_u32 s4, s4, p2_kernel-p1_pc
s_addc_u32 s5, s5, 0
s_lshl_b32 s3, s{sW}, 6
v_add_u32 v4, s3, v0
s_sub_u32 s3, s2, 464
s_lshr_b32 s3, s3, 3
s_lshl_b32 s3, s3, 15
v_lshl_add_u32 v5, v4, 7, s3
v_min_u32 v5, pf_code_end-p2_kernel-4, v5
global_load_dword v6, v5, s[4:5]
s_waitcnt lgkmcnt(0)
""")
    if TLB:
        k(f"""s_load_dwordx4 s[36:39], s[0:1], 32
s_load_dwordx4 s[40:43], s[0:1], 48
v_lshlrev_b32 v12, {TLB}, v4
s_waitcnt lgkmcnt(0)""")
        ws_srd(k, 8, 0, O_P + N_P)
        for i in range((O_P + N_P + (256 << TLB) - 1)//(256 << TLB)):
            k(f"s_mov_b32 s3, {i*(256 << TLB)}\nbuffer_load_dword v13, v12, s[8:11], s3 offen", tag="touch")
        for b, n in ((36, N_W), (38, N_W), (40, N_W), (42, N_H)):
            srd(k, 8, b, n)
            k("buffer_load_dword v13, v12, s[8:11], 0 offen", tag="touch")
    ws_srd(k, 8, O_FLG, N_ZERO)
    k(f"""
s_and_b32 s3, s2, 15
s_mul_i32 s3, s3, 20480
v_lshlrev_b32 v4, 4, v4
v_mov_b32 v8, 0
v_mov_b32 v9, 0
v_mov_b32 v10, 0
v_mov_b32 v11, 0
""")
    for i in range(5): k(f"buffer_store_dwordx4 v[8:11], v4, s[8:11], s3 offen sc1\ns_add_u32 s3, s3, 4096")
    k(f"""p1_end:""")
    return k

def build_p2(st=False):
    k = K("p2", 608, 64, vgpr=160)
    stamp(k, st, 0)
    k(f"""
s_load_dwordx2 s[6:7], s[0:1], 72
s_cmp_ge_u32 s2, 608
s_cbranch_scc1 p2_end
s_lshr_b32 s3, s2, 3
s_mul_i32 s4, s3, 27
s_lshr_b32 s4, s4, 9
s_mul_i32 s5, s4, 19
s_sub_u32 s31, s3, s5
s_and_b32 s3, s2, 7
s_lshl_b32 s3, s3, 2
s_add_u32 s32, s3, s4
v_lshrrev_b32 v2, 4, v0
v_and_b32 v3, 15, v0
v_mul_u32_u24 v4, {4*ROWB}, v2
v_lshl_add_u32 v4, v3, 2, v4
v_lshlrev_b32 v5, 4, v0
s_mul_i32 s33, s32, {64*ROWB}
s_lshl_b32 s3, s31, 6
s_add_u32 s33, s33, s3
s_waitcnt lgkmcnt(0)
""")
    ws_srd(k, 8, O_U, N_U)
    B, B2, A, WH, XR, XI = 8, 24, 40, 104, 120, 136
    for T in range(4):
        if T: k(f"s_add_u32 s33, s33, {16*ROWB}")
        for r in range(4): k(f"buffer_load_dword v{B+4*T+r}, v4, s[8:11], s33 offen offset:{r*ROWB}")
    ws_srd(k, 12, O_TAB, N_TAB)
    for f in range(16):
        if f % 4 == 0: k(f"s_movk_i32 s3, {f*1024}")
        k(f"buffer_load_dwordx4 {vr(A+4*f, 4)}, v5, s[12:15], s3 offen offset:{(f % 4)*1024}")
    ws_srd(k, 16, O_WH, N_WH)
    k("s_mul_i32 s34, s32, 19\ns_add_u32 s34, s34, s31\ns_lshl_b32 s34, s34, 12")
    for T in range(4): k(f"buffer_load_dwordx4 {vr(WH+4*T, 4)}, v5, s[16:19], s34 offen offset:{T*1024}")
    k(f"""
v_mul_u32_u24 v6, {ROWB}, v3
v_lshl_add_u32 v6, v2, 4, v6
s_mul_i32 s35, s32, {64*ROWB}
s_lshl_b32 s3, s31, 6
s_add_u32 s35, s35, s3
s_brev_b32 s36, 1
s_mov_b32 s37, 0xffff0000
""")
    stamp(k, st, 1)
    for i in range(16): k(f"v_alignbit_b32 v{B2+i}, v{B+i}, v{B+i}, 16\nv_xor_b32 v{B2+i}, s36, v{B2+i}")
    stamp(k, st, 2)
    def fwd(Tp): return [f"{MF32} {vr(o+4*Tp, 4)}, {vr(A+16*Tp+4*T, 4)}, {vr(b+4*T, 4)}, {'0' if T == 0 else vr(o+4*Tp, 4)}" for T in range(4) for o, b in ((XR, B), (XI, B2))]
    D1, D2 = 152, B
    def filt(T):
        out = []
        for r in (0, 2):
            w = WH+4*T+r; xr, xi = XR+4*T+r, XI+4*T+r
            out += [f"v_lshlrev_b32 v152, 16, v{w}", f"v_lshlrev_b32 v153, 16, v{w+1}", f"v_and_b32 v154, s37, v{w}", f"v_and_b32 v155, s37, v{w+1}",
                    f"v_pk_mul_f32 v[156:157], {vr(xr, 2)}, v[152:153]", f"v_pk_mul_f32 v[158:159], {vr(xr, 2)}, v[154:155]",
                    f"v_pk_fma_f32 v[156:157], {vr(xi, 2)}, v[154:155], v[156:157] neg_lo:[1,0,0] neg_hi:[1,0,0]", f"v_pk_fma_f32 v[158:159], {vr(xi, 2)}, v[152:153], v[158:159]",
                    f"v_cvt_pk_bf16_f32 v{w}, v156, -v158", f"v_cvt_pk_bf16_f32 v{w+1}, v157, -v159", f"v_cvt_pk_bf16_f32 v{xr}, v158, v156", f"v_cvt_pk_bf16_f32 v{xr+1}, v159, v157"]
        return out
    for x in fwd(0): k(x)
    for Tp in range(1, 4):
        for x in interleave(fwd(Tp), filt(Tp-1)): k(x)
    for x in filt(3): k(x)
    stamp(k, st, 3)
    VR, VI = B, B2
    def inv(Tp): return [f"{MF32} {vr(o+4*Tp, 4)}, {vr(d+4*T, 4)}, {vr(A+16*Tp+4*T, 4)}, {'0' if T == 0 else vr(o+4*Tp, 4)}" for T in range(4) for o, d in ((VR, WH), (VI, XR))]
    def outp(Tp):
        return [f"v_cvt_pk_bf16_f32 v{XI+4*Tp+r}, v{VR+4*Tp+r}, v{VI+4*Tp+r}" for r in range(4)] + \
               [f"buffer_store_dwordx4 {vr(XI+4*Tp, 4)}, v6, s[8:11], s35 offen sc1\ns_add_u32 s35, s35, {16*ROWB}"]
    for x in inv(0): k(x)
    for Tp in range(1, 4):
        m = inv(Tp)
        for x in m[:3] + interleave(m[3:], outp(Tp-1)): k(x)
    for x in outp(3): k(x)
    stamp(k, st, 4)
    stamp_out(k, st, 2, "0", 5)
    k("p2_end:")
    return k
```

```python
from asmlib import *
from layout import *
from pf import ws_srd
import struct
def fl(x): return "0x%08x" % struct.unpack("<I", struct.pack("<f", x))[0]
MF32 = "v_mfma_f32_16x16x32_bf16"
MF16 = "v_mfma_f32_16x16x16_bf16"

def stamp(k, on, i):
    if on: k(f"s_memrealtime s[{60+2*i}:{61+2*i}]")
def stamp_out(k, on, slot, wavereg, n):
    if not on: return
    k("s_waitcnt vmcnt(0)"); stamp(k, on, n)
    k("s_waitcnt lgkmcnt(0)")
    for i in range(8): k(f"v_mov_b32 v{8+i}, s{60+2*i}" if i <= n else f"v_mov_b32 v{8+i}, 0")
    k(f"""
s_lshl_b32 s3, s2, 3
s_add_u32 s3, s3, {wavereg}
s_lshl_b32 s3, s3, 5
s_add_u32 s3, s3, {O_STAMP + 262144*slot}
v_mov_b32 v16, s3
global_store_dwordx4 v16, v[8:11], s[6:7]
global_store_dwordx4 v16, v[12:15], s[6:7] offset:16
""")

def build_p1(st=False, FPOL="nt", P1PRIO=0, SELFPF=0, SIDEFIRST=0, TLB=0, XNT="nt", MERGE=0):
    NEXT = "pf" if MERGE else "p2"
    XL = 9216
    EX = 4*XL
    k = K("p1", 480, 256, lds=EX+8192+6144, vgpr=136)
    sW, sS2, sJT = 30, 31, 32
    stamp(k, st, 0)
    if SELFPF:
        k(f"""s_getpc_b64 s[4:5]
p1_pc0:
v_lshlrev_b32 v1, 7, v0
v_min_u32 v1, p1_code_end-p1_pc0-4, v1""")
        k("global_load_dword v19, v1, s[4:5]", tag="touch")
    if SIDEFIRST: k("s_add_u32 s3, s2, 320\ns_sub_u32 s4, s2, 128\ns_cmp_lt_u32 s2, 128\ns_cselect_b32 s3, s3, s4\ns_cmp_lt_u32 s2, 448\ns_cselect_b32 s2, s3, s2")
    k(f"""
s_setprio 3
s_load_dwordx4 s[44:47], s[0:1], 0
s_load_dwordx2 s[48:49], s[0:1], 16
s_load_dwordx2 s[6:7], s[0:1], 72
v_lshrrev_b32 v1, 6, v0
v_and_b32 v0, 63, v0
v_readfirstlane_b32 s{sW}, v1
v_lshrrev_b32 v2, 4, v0
v_and_b32 v3, 15, v0
s_cmp_ge_u32 s2, 320
s_cbranch_scc1 p1_side
s_lshr_b32 s{sJT}, s2, 6
s_and_b32 s{sS2}, s2, 63
v_lshrrev_b32 v4, 3, v0
v_and_b32 v5, 7, v0
s_lshl_b32 s3, s{sW}, 9
s_add_u32 s3, s3, s{sS2}
v_lshl_add_u32 v6, v4, 6, s3
v_mul_u32_u24 v6, 1152, v6
v_lshlrev_b32 v4, 1, v4
v_and_b32 v4, 4, v4
v_xor_b32 v5, v5, v4
v_lshl_add_u32 v6, v5, 4, v6
s_mul_i32 s34, s{sW}, {XL}
s_waitcnt lgkmcnt(0)
""")
    srd(k, 8, 44, N_H)
    X, FR, FI, AF, AC, MA, TW, ON, SM = 20, 28, 46, 64, 100, 116, 124, 20, 28+0
    for i in range(9): k(f"s_add_u32 m0, s34, {i*896}\nbuffer_load_dwordx4 v6, s[8:11], 0 offen offset:{i*128} {XNT} lds", tag="X")
    k("s_setprio 0")
    ws_srd(k, 12, O_U, N_U)
    k(f"""
v_and_b32 v7, 3, v0
v_lshrrev_b32 v9, 2, v0
v_lshlrev_b32 v9, 3, v9
v_lshlrev_b32 v4, 5, v7
v_and_b32 v4, 64, v4
v_lshl_add_u32 v7, v7, 7, s34
v_xor_b32 v8, v9, v4
v_add_u32 v8, v8, v7
v_xor_b32 v5, 64, v8
v_lshrrev_b32 v4, 1, v2
v_lshl_add_u32 v5, v4, 10, v5
v_lshl_add_u32 v7, v4, 12, v8
s_lshl_b32 s3, s{sJT}, 4
v_add_u32 v13, s3, v3
v_cvt_f32_u32 v9, v13
v_lshlrev_b32 v11, 4, v0
v_add_u32 v11, {EX}, v11
s_lshr_b32 s3, s{sW}, 1
s_lshl_b32 s3, s3, 10
s_and_b32 s4, s{sW}, 1
s_lshl_b32 s4, s4, 3
s_add_u32 s3, s3, s4
v_add_u32 v10, s3, v11
s_lshl_b32 s3, s{sW}, 9
s_add_u32 s3, s3, s{sS2}
v_lshl_add_u32 v12, v2, 7, s3
v_mul_u32_u24 v12, {ROWB}, v12
v_lshl_add_u32 v12, v13, 4, v12
v_cvt_f32_u32 v14, v2
v_mul_f32 v15, {fl(1/144)}, v9
v_mul_f32 v14, 4.0, v14
v_mul_f32 v16, v14, v15
""")
    t = 132
    k(f"""v_lshlrev_b32 v17, 31, v13
v_lshrrev_b32 v18, 16, v17
v_or_b32 v17, v17, v18
v_lshrrev_b32 v18, 1, v2
v_cvt_f32_u32 v18, v18
v_mul_f32 v18, 0x42800000, v18
v_fma_f32 v18, v18, v15, v16""")
    FL = 8192
    k(f"""s_lshl_b32 s3, s{sW}, 1
s_cmp_ge_u32 s{sW}, 2
s_cselect_b32 s4, 12, 0
s_add_u32 s4, s4, s3
v_cvt_f32_u32 v19, s4
v_fma_f32 v16, v19, v15, v16
s_and_b32 s3, s3, 2
v_cvt_f32_u32 v19, s3
v_fma_f32 v18, v19, v15, v18
s_lshl_b32 s4, s{sW}, 2
v_add_u32 v19, s4, v11
s_lshl_b32 s3, s3, 1
v_add_u32 v1, s3, v11""")
    for i, (c0, base) in enumerate(((0, 16), (32, 16), (64, 18))):
        k(f"v_fmamk_f32 v{t}, v15, {fl(float(c0))}, v{base}\nv_add_f32 v{t+1}, v{t}, v15")
        k(f"v_cos_f32 v{t+2}, v{t}\nv_cos_f32 v{t+3}, v{t+1}\nv_sin_f32 v{t}, v{t}\nv_sin_f32 v{t+1}, v{t+1}")
        k(f"v_cvt_pk_bf16_f32 v{FR+i}, v{t+2}, v{t+3}\nv_cvt_pk_bf16_f32 v{FI+i}, -v{t}, -v{t+1}")
        k(f"ds_write_b32 v{19 if i < 2 else 1}, v{FR+i} offset:{FL+i*2048}\nds_write_b32 v{19 if i < 2 else 1}, v{FI+i} offset:{FL+i*2048+1024}")
    k(f"v_mov_b32 v{TW}, 1.0\nv_mov_b32 v{TW+4}, 0")
    for q in range(1, 4):
        k(f"v_mul_f32 v{t}, {fl(q/576)}, v9\nv_cos_f32 v{TW+q}, v{t}\nv_sin_f32 v{TW+4+q}, v{t}")
    k(f"""
v_lshrrev_b32 v14, 1, v3
s_lshl_b32 s3, s{sW}, 3
v_add_u32 v14, s3, v14
v_lshl_add_u32 v15, v2, 6, s{sS2}
v_mul_u32_u24 v15, v14, v15
v_and_b32 v16, 1, v3
v_lshl_add_u32 v15, v16, 9, v15
v_cvt_f32_u32 v15, v15
v_mul_f32 v15, {fl(1/2048)}, v15
v_cvt_f32_u32 v14, v14
""")
    for kk in range(2):
        for tt in range(4):
            k(f"v_fmamk_f32 v{t}, v14, {fl((16*kk+4*tt)/32)}, v15\nv_cos_f32 v{t+1}, v{t}\nv_sin_f32 v{t}, v{t}\nv_cvt_pk_bf16_f32 v{MA+4*kk+tt}, v{t+1}, v{t}")
    k.wait_lg(); k("s_barrier")
    for c, Fb in enumerate((FR, FI)):
        for kk in range(2): k(f"ds_read_b128 {vr(Fb+4*kk, 4)}, v11 offset:{FL+kk*2048+c*1024}")
        k(f"ds_read_b64 {vr(Fb+16, 2)}, v11 offset:{FL+4096+c*1024}")
    for Fb in (FR, FI):
        for i in range(8): k(f"v_xor_b32 v{Fb+8+i}, v17, v{Fb+i}")
    k("v_mov_b32 v16, 0\nv_mov_b32 v17, 0")
    for i in range(4): k(f"v_mov_b32 v{ON+i}, 0x3f803f80")
    k(f"v_lshlrev_b32 v18, 4, v2")
    stamp(k, st, 1)
    if P1PRIO: k("s_setprio 1")
    k.wait_vm("X")
    stamp(k, st, 2)
    for mu in range(2):
        for kk in range(5):
            for h in range(2 if kk < 4 else 1):
                d = AF+18*mu+4*kk+2*h
                va, blk = [(8, h), (8, 2+h), (5, 4+h), (5, 6+h), (7, 4)][kk]
                k(f"ds_read_b64_tr_b16 v[{d}:{d+1}], v{va} offset:{mu*512 + blk*1024}")
    mf = []; dots = []
    SX = 24
    for mu in range(2):
        for kk in range(5):
            for a, Fb in ((AC+8*mu, FR+4*kk), (AC+8*mu+4, FI+4*kk), ([24, 132][mu], ON)):
                if kk < 4: mf.append(f"{MF32} {vr(a, 4)}, {vr(AF+18*mu+4*kk, 4)}, {vr(Fb, 4)}, {'0' if kk == 0 else vr(a, 4)}")
                else: mf.append(f"{MF16} {vr(a, 4)}, {vr(AF+18*mu+16, 2)}, {vr(Fb, 2)}, {vr(a, 4)}")
        dots += [f"v_dot2_f32_bf16 v{16+mu}, v{AF+18*mu+i}, v{AF+18*mu+i}, v{16+mu}" for i in range(18)]
    dpp = "row_mask:0xf bank_mask:0xf"
    red = f"""v_permlane32_swap_b32 v16, v17
v_add_f32 v16, v16, v17
v_add_f32_dpp v16, v16, v16 quad_perm:[1,0,3,2] {dpp}
v_add_f32_dpp v16, v16, v16 quad_perm:[2,3,0,1] {dpp}
v_mov_b32 v17, v16
v_permlane16_swap_b32 v16, v17
v_add_f32 v16, v16, v17
ds_bpermute_b32 v14, v18, v16
ds_bpermute_b32 v15, v18, v16 offset:128""".split("\n")
    for x in interleave(mf[:24], dots) + interleave(mf[24:], red): k(x)
    stamp(k, st, 3)
    E = X
    p2 = lambda x: vr(x, 2)
    NEG = "neg_lo:[0,1] neg_hi:[0,1]"
    for mu in range(2):
        R, I = AC+8*mu, AC+8*mu+4
        T = AF+16*mu
        rr = f"v[{14+2*mu}:{15+2*mu}]"
        k(f"""
v_pk_mul_f32 {p2(T)}, {p2(TW)}, {p2(R)}
v_pk_mul_f32 {p2(T+2)}, {p2(TW+2)}, {p2(R+2)}
v_pk_mul_f32 {p2(T+4)}, {p2(TW)}, {p2(I)}
v_pk_mul_f32 {p2(T+6)}, {p2(TW+2)}, {p2(I+2)}
v_pk_fma_f32 {p2(T)}, {p2(TW+4)}, {p2(I)}, {p2(T)}
v_pk_fma_f32 {p2(T+2)}, {p2(TW+6)}, {p2(I+2)}, {p2(T+2)}
v_pk_fma_f32 {p2(T+4)}, {p2(TW+4)}, {p2(R)}, {p2(T+4)} neg_lo:[1,0,0] neg_hi:[1,0,0]
v_pk_fma_f32 {p2(T+6)}, {p2(TW+6)}, {p2(R+2)}, {p2(T+6)} neg_lo:[1,0,0] neg_hi:[1,0,0]
v_pk_add_f32 {p2(T+8)}, {p2(T)}, {p2(T+2)}
v_pk_add_f32 {p2(T+10)}, {p2(T+4)}, {p2(T+6)}
v_pk_add_f32 {p2(T+12)}, {p2(T)}, {p2(T+2)} {NEG}
v_pk_add_f32 {p2(T+14)}, {p2(T+4)}, {p2(T+6)} {NEG}""")
    k(f"""v_pk_add_f32 v[24:25], v[24:25], v[26:27]
v_pk_add_f32 v[132:133], v[132:133], v[134:135]
v_add_f32 v24, v24, v25
v_add_f32 v25, v132, v133
s_mov_b32 s4, {fl(1/576)}
s_mov_b32 s5, s4
v_pk_mul_f32 v[24:25], v[24:25], s[4:5]
v_pk_mul_f32 v[24:25], v[24:25], v[24:25]
v_pk_fma_f32 v[14:15], v[14:15], s[4:5], v[24:25] neg_lo:[0,0,1] neg_hi:[0,0,1]
v_max_f32 v14, 0, v14
v_max_f32 v15, 0, v15
v_add_f32 v14, {fl(1e-5)}, v14
v_add_f32 v15, {fl(1e-5)}, v15
v_rsq_f32 v16, v15
v_rsq_f32 v17, v15
v_rsq_f32 v15, v14
v_rsq_f32 v14, v14""")
    for mu in range(2):
        T = AF+16*mu
        rr = f"v[{14+2*mu}:{15+2*mu}]"
        k(f"""
v_pk_mul_f32 {p2(T+8)}, {p2(T+8)}, {rr}
v_pk_mul_f32 {p2(T+10)}, {p2(T+10)}, {rr}
v_pk_mul_f32 {p2(T+12)}, {p2(T+12)}, {rr}
v_pk_mul_f32 {p2(T+14)}, {p2(T+14)}, {rr}
v_add_f32 v{T}, v{T+8}, v{T+9}
v_add_f32 v{T+1}, v{T+10}, v{T+11}
v_add_f32 v{T+2}, v{T+12}, v{T+15}
v_sub_f32 v{T+3}, v{T+14}, v{T+13}
v_sub_f32 v{T+4}, v{T+8}, v{T+9}
v_sub_f32 v{T+5}, v{T+10}, v{T+11}
v_sub_f32 v{T+6}, v{T+12}, v{T+15}
v_add_f32 v{T+7}, v{T+14}, v{T+13}
""")
        for m in range(4): k(f"v_cvt_pk_bf16_f32 v{E+2*m+mu}, v{T+2*m}, v{T+2*m+1}")
    for m in range(4): k(f"ds_write_b64 v10, {vr(E+2*m, 2)} offset:{m*2048}")
    k.wait_lg(); k("s_barrier")
    stamp(k, st, 4)
    B = FR
    for m in range(4):
        for kk in range(2): k(f"ds_read_b128 {vr(B+8*m+4*kk, 4)}, v11 offset:{m*2048+kk*1024}")
    for kk in range(2):
        for m in range(4): k(f"{MF32} {vr(AC+4*m, 4)}, {vr(MA+4*kk, 4)}, {vr(B+8*m+4*kk, 4)}, {'0' if kk == 0 else vr(AC+4*m, 4)}")
    k(f"s_mov_b32 s3, {64*ROWB}")
    for a in range(2):
        for m in range(4): k(f"v_cvt_pk_bf16_f32 v{X+4*a+m}, v{AC+4*m+2*a}, v{AC+4*m+2*a+1}")
        if MERGE: k(f"v_and_b32 v{X+4*a}, -2, v{X+4*a}")
        k(f"buffer_store_dwordx4 {vr(X+4*a, 4)}, v12, s[12:15], {'s3' if a else '0'} offen sc1")
    stamp(k, st, 5)
    stamp_out(k, st, 1, f"s{sW}", 6)
    k("s_endpgm\np1_side:")
    k(f"""
s_cmp_ge_u32 s2, 448
s_cbranch_scc1 p1_tab
s_sub_u32 s3, s2, 320
s_and_b32 s32, s3, 7
s_lshl_b32 s32, s32, 2
s_bfe_u32 s4, s3, 0x20003
s_add_u32 s32, s32, s4
s_lshr_b32 s31, s3, 5
s_lshl_b32 s3, s31, 9
s_add_u32 s33, s32, s3
s_and_b32 s3, s{sW}, 1
s_mul_i32 s4, s3, 138
s_cmp_eq_u32 s3, 0
s_cselect_b32 s34, 1, -1
v_lshrrev_b32 v4, 5, v0
v_lshl_add_u32 v6, v4, 5, s33
v_mul_lo_u32 v6, v6, s34
s_lshl_b32 s35, s34, 6
v_and_b32 v5, 1, v2
v_mul_u32_u24 v5, 288, v5
v_add_u32 v5, s4, v5
v_mov_b32 v12, {OOB}
v_lshlrev_b32 v7, 2, v2
v_and_b32 v7, 4, v7
v_sub_u32 v7, v3, v7
v_cmp_gt_u32 vcc, 11, v7
v_lshlrev_b32 v7, 4, v7
v_cndmask_b32 v12, v12, v7, vcc
s_movk_i32 s36, 578
s_mul_i32 s38, s{sW}, 8336
s_waitcnt lgkmcnt(0)
s_cmp_lt_u32 s{sW}, 2
s_cselect_b32 s8, s46, s48
s_cselect_b32 s9, s47, s49
s_mov_b32 s10, {N_WF}
s_mov_b32 s11, 0x20000
""")
    for i in range(8):
        k(f"""v_and_b32 v8, 2047, v6
v_mad_u32_u24 v8, v8, s36, v5
v_and_b32 v8, -16, v8
s_add_u32 m0, s38, {i*1040}
v_add_u32 v8, v8, v12
buffer_load_dwordx4 v8, s[8:11], 0 offen {FPOL} lds
v_add_u32 v6, s35, v6""", tag="W")
    stamp(k, st, 1)
    ws_srd(k, 16, O_WH, N_WH)
    k(f"""
v_lshrrev_b32 v4, 2, v3
s_lshl_b32 s3, s{sW}, 2
v_add_u32 v4, s3, v4
v_and_b32 v10, 3, v3
v_sub_u32 v13, 75, v4
v_cmp_gt_u32 vcc, 2, v10
v_cndmask_b32 v13, v13, v4, vcc
v_mov_b32 v14, 0xffffffe0
v_cndmask_b32 v14, v14, 32, vcc
v_bfrev_b32 v15, 1
v_cndmask_b32 v15, v15, 0, vcc
v_mov_b32 v16, 8336
v_cndmask_b32 v16, v16, 0, vcc
v_lshl_add_u32 v16, v13, 1, v16
v_mul_u32_u24 v17, 2080, v2
v_add_u32 v16, v16, v17
v_lshrrev_b32 v17, 1, v10
v_xor_b32 v17, v17, v10
v_and_b32 v17, 1, v17
v_mul_u32_u24 v17, 320, v17
v_add_u32 v16, v16, v17
v_sub_u32 v17, 5, s33
v_mov_b32 v18, s33
v_cndmask_b32 v17, v17, v18, vcc
v_lshlrev_b32 v17, 1, v17
v_and_b32 v17, 14, v17
v_add_u32 v84, v16, v17
v_or_b32 v11, v10, v4
v_cmp_eq_u32 s[40:41], 0, v11
s_mul_i32 s3, s32, 19
s_add_u32 s3, s3, s{sW}
s_lshl_b32 s3, s3, 12
s_lshl_b32 s4, s31, 10
s_add_u32 s37, s3, s4
v_lshlrev_b32 v93, 4, v0
""")
    stamp(k, st, 2)
    k.wait_vm("W")
    stamp(k, st, 3)
    k("s_barrier")
    stamp(k, st, 4)
    for it in range(5):
        D0 = 20 + 12*it
        if it: k(f"v_add_u32 v84, v84, v14")
        for r in range(4): k(f"ds_read_u16 v{D0+r}, v84 offset:{(r >> 1)*1040 + (r & 1)*512}\nds_read_u16 v{D0+4+r}, v84 offset:{(r >> 1)*1040 + (r & 1)*512 + 16672}")
    k("v_cmp_lt_u32 vcc, 8, v4")
    for it in range(5):
        if it == 4: k(f"s_cmp_eq_u32 s{sW}, 3\ns_cbranch_scc1 p1_wend")
        D0 = 20 + 12*it
        for r in range(4): k(f"v_lshl_or_b32 v{D0+8+r}, v{D0+4+r}, 16, v{D0+r}\nv_xor_b32 v{D0+8+r}, v15, v{D0+8+r}")
        if it == 0:
            for r in range(4): k(f"v_cndmask_b32 v{D0+8+r}, v{D0+8+r}, 0, s[40:41]")
        if it == 4:
            for r in range(4): k(f"v_cndmask_b32 v{D0+8+r}, v{D0+8+r}, 0, vcc")
        k(f"buffer_store_dwordx4 {vr(D0+8, 4)}, v93, s[16:19], s37 offen sc1\ns_add_u32 s37, s37, 16384")
    k("p1_wend:")
    stamp(k, st, 5)
    stamp_out(k, st, 1, f"s{sW}", 6)
    k("s_endpgm\np1_tab:")
    sc = 1.0/(S*D)
    k(f"""
s_cmp_ge_u32 s2, 464
s_cbranch_scc1 p1_pf
s_sub_u32 s3, s2, 448
s_lshl_b32 s3, s3, 2
s_add_u32 s31, s3, s{sW}
s_cmp_ge_u32 s31, 61
s_cbranch_scc1 p1_end
s_lshr_b32 s32, s31, 2
s_and_b32 s33, s31, 3
s_mov_b32 s34, {fl(1/64)}
s_cmp_lt_u32 s31, 16
s_cbranch_scc1 p1_tabA
s_sub_u32 s3, s31, 16
s_mul_i32 s32, s3, 52
s_lshr_b32 s32, s32, 8
s_mul_i32 s4, s32, 5
s_sub_u32 s33, s3, s4
s_mov_b32 s34, {fl(1/144)}
p1_tabA:
s_lshl_b32 s32, s32, 4
s_lshl_b32 s33, s33, 4
v_add_u32 v4, s32, v3
v_lshl_add_u32 v5, v2, 2, s33
s_waitcnt lgkmcnt(0)
""")
    ws_srd(k, 8, O_TAB, N_TAB)
    for r in range(4):
        k(f"""
v_add_u32 v6, {r}, v5
v_mul_u32_u24 v7, v6, v4
v_cvt_f32_u32 v7, v7
v_mul_f32 v7, s34, v7
v_fract_f32 v7, v7
v_cos_f32 v8, v7
v_sin_f32 v9, v7
s_cmp_lt_u32 s31, 16
s_cbranch_scc1 p1_tabB{r}
v_mov_b32 v10, {fl(2*sc)}
v_mov_b32 v11, {fl(sc)}
v_cmp_eq_u32 vcc, 0, v6
v_cndmask_b32 v10, v10, v11, vcc
v_cmp_eq_u32 vcc, 72, v6
v_cndmask_b32 v10, v10, v11, vcc
v_cmp_gt_u32 vcc, 73, v6
v_cndmask_b32 v10, 0, v10, vcc
v_mul_f32 v8, v8, v10
v_mul_f32 v9, -v9, v10
p1_tabB{r}:
v_cvt_pk_bf16_f32 v{12+r}, v8, v9
""")
    k(f"v_lshlrev_b32 v4, 4, v0\ns_lshl_b32 s3, s31, 10\nbuffer_store_dwordx4 v[12:15], v4, s[8:11], s3 offen sc1\ns_endpgm\np1_pf:")
    k(f"""
s_cmp_ge_u32 s2, 480
s_cbranch_scc1 p1_end
s_getpc_b64 s[4:5]
p1_pc:
s_add_u32 s4, s4, {NEXT}_kernel-p1_pc
s_addc_u32 s5, s5, 0
s_lshl_b32 s3, s{sW}, 6
v_add_u32 v4, s3, v0
s_sub_u32 s3, s2, 464
s_lshr_b32 s3, s3, 3
s_lshl_b32 s3, s3, 15
v_lshl_add_u32 v5, v4, 7, s3
v_min_u32 v5, pf_code_end-{NEXT}_kernel-4, v5
global_load_dword v6, v5, s[4:5]
s_waitcnt lgkmcnt(0)
""")
    if TLB:
        k(f"""s_load_dwordx4 s[36:39], s[0:1], 32
s_load_dwordx4 s[40:43], s[0:1], 48
v_lshlrev_b32 v12, {TLB}, v4
s_waitcnt lgkmcnt(0)""")
        ws_srd(k, 8, 0, O_P + N_P)
        for i in range((O_P + N_P + (256 << TLB) - 1)//(256 << TLB)):
            k(f"s_mov_b32 s3, {i*(256 << TLB)}\nbuffer_load_dword v13, v12, s[8:11], s3 offen", tag="touch")
        for b, n in ((36, N_W), (38, N_W), (40, N_W), (42, N_H)):
            srd(k, 8, b, n)
            k("buffer_load_dword v13, v12, s[8:11], 0 offen", tag="touch")
    ws_srd(k, 8, O_FLG, N_ZERO)
    k(f"""
s_and_b32 s3, s2, 15
s_mul_i32 s3, s3, 20480
v_lshlrev_b32 v4, 4, v4
v_mov_b32 v8, 0
v_mov_b32 v9, 0
v_mov_b32 v10, 0
v_mov_b32 v11, 0
""")
    for i in range(5): k(f"buffer_store_dwordx4 v[8:11], v4, s[8:11], s3 offen sc1\ns_add_u32 s3, s3, 4096")
    k(f"""p1_end:""")
    return k

def build_p2(st=False):
    k = K("p2", 608, 64, vgpr=160)
    stamp(k, st, 0)
    k(f"""
s_load_dwordx2 s[6:7], s[0:1], 72
s_cmp_ge_u32 s2, 608
s_cbranch_scc1 p2_end
s_lshr_b32 s3, s2, 3
s_mul_i32 s4, s3, 27
s_lshr_b32 s4, s4, 9
s_mul_i32 s5, s4, 19
s_sub_u32 s31, s3, s5
s_and_b32 s3, s2, 7
s_lshl_b32 s3, s3, 2
s_add_u32 s32, s3, s4
v_lshrrev_b32 v2, 4, v0
v_and_b32 v3, 15, v0
v_mul_u32_u24 v4, {4*ROWB}, v2
v_lshl_add_u32 v4, v3, 2, v4
v_lshlrev_b32 v5, 4, v0
s_mul_i32 s33, s32, {64*ROWB}
s_lshl_b32 s3, s31, 6
s_add_u32 s33, s33, s3
s_waitcnt lgkmcnt(0)
""")
    ws_srd(k, 8, O_U, N_U)
    B, B2, A, WH, XR, XI = 8, 24, 40, 104, 120, 136
    for T in range(4):
        if T: k(f"s_add_u32 s33, s33, {16*ROWB}")
        for r in range(4): k(f"buffer_load_dword v{B+4*T+r}, v4, s[8:11], s33 offen offset:{r*ROWB}")
    ws_srd(k, 12, O_TAB, N_TAB)
    for f in range(16):
        if f % 4 == 0: k(f"s_movk_i32 s3, {f*1024}")
        k(f"buffer_load_dwordx4 {vr(A+4*f, 4)}, v5, s[12:15], s3 offen offset:{(f % 4)*1024}")
    ws_srd(k, 16, O_WH, N_WH)
    k("s_mul_i32 s34, s32, 19\ns_add_u32 s34, s34, s31\ns_lshl_b32 s34, s34, 12")
    for T in range(4): k(f"buffer_load_dwordx4 {vr(WH+4*T, 4)}, v5, s[16:19], s34 offen offset:{T*1024}")
    k(f"""
v_mul_u32_u24 v6, {ROWB}, v3
v_lshl_add_u32 v6, v2, 4, v6
s_mul_i32 s35, s32, {64*ROWB}
s_lshl_b32 s3, s31, 6
s_add_u32 s35, s35, s3
s_brev_b32 s36, 1
s_mov_b32 s37, 0xffff0000
""")
    stamp(k, st, 1)
    for i in range(16): k(f"v_alignbit_b32 v{B2+i}, v{B+i}, v{B+i}, 16\nv_xor_b32 v{B2+i}, s36, v{B2+i}")
    stamp(k, st, 2)
    def fwd(Tp): return [f"{MF32} {vr(o+4*Tp, 4)}, {vr(A+16*Tp+4*T, 4)}, {vr(b+4*T, 4)}, {'0' if T == 0 else vr(o+4*Tp, 4)}" for T in range(4) for o, b in ((XR, B), (XI, B2))]
    D1, D2 = 152, B
    def filt(T):
        out = []
        for r in (0, 2):
            w = WH+4*T+r; xr, xi = XR+4*T+r, XI+4*T+r
            out += [f"v_lshlrev_b32 v152, 16, v{w}", f"v_lshlrev_b32 v153, 16, v{w+1}", f"v_and_b32 v154, s37, v{w}", f"v_and_b32 v155, s37, v{w+1}",
                    f"v_pk_mul_f32 v[156:157], {vr(xr, 2)}, v[152:153]", f"v_pk_mul_f32 v[158:159], {vr(xr, 2)}, v[154:155]",
                    f"v_pk_fma_f32 v[156:157], {vr(xi, 2)}, v[154:155], v[156:157] neg_lo:[1,0,0] neg_hi:[1,0,0]", f"v_pk_fma_f32 v[158:159], {vr(xi, 2)}, v[152:153], v[158:159]",
                    f"v_cvt_pk_bf16_f32 v{w}, v156, -v158", f"v_cvt_pk_bf16_f32 v{w+1}, v157, -v159", f"v_cvt_pk_bf16_f32 v{xr}, v158, v156", f"v_cvt_pk_bf16_f32 v{xr+1}, v159, v157"]
        return out
    for x in fwd(0): k(x)
    for Tp in range(1, 4):
        for x in interleave(fwd(Tp), filt(Tp-1)): k(x)
    for x in filt(3): k(x)
    stamp(k, st, 3)
    VR, VI = B, B2
    def inv(Tp): return [f"{MF32} {vr(o+4*Tp, 4)}, {vr(d+4*T, 4)}, {vr(A+16*Tp+4*T, 4)}, {'0' if T == 0 else vr(o+4*Tp, 4)}" for T in range(4) for o, d in ((VR, WH), (VI, XR))]
    def outp(Tp):
        return [f"v_cvt_pk_bf16_f32 v{XI+4*Tp+r}, v{VR+4*Tp+r}, v{VI+4*Tp+r}" for r in range(4)] + \
               [f"buffer_store_dwordx4 {vr(XI+4*Tp, 4)}, v6, s[8:11], s35 offen sc1\ns_add_u32 s35, s35, {16*ROWB}"]
    for x in inv(0): k(x)
    for Tp in range(1, 4):
        m = inv(Tp)
        for x in m[:3] + interleave(m[3:], outp(Tp-1)): k(x)
    for x in outp(3): k(x)
    stamp(k, st, 4)
    stamp_out(k, st, 2, "0", 5)
    k("p2_end:")
    return k


def column_task(k, o, sTile, sK1, sB, srd, vlane16, vL, shadow, between):
    D = f"s[{srd}:{srd+3}]"
    B, B2, A, WH, XR, XI, TP = (x+o for x in (8, 24, 40, 104, 120, 136, 152))
    k(f"""
v_lshrrev_b32 v2, 4, v{vL}
v_and_b32 v3, 15, v{vL}
v_mul_u32_u24 v4, {4*ROWB}, v2
v_lshl_add_u32 v4, v3, 2, v4
s_mul_i32 s{sB}, s{sK1}, {64*ROWB}
s_lshl_b32 s3, s{sTile}, 6
s_add_u32 s{sB}, s{sB}, s3
s_mov_b32 s{sB+1}, s{sB}
""")
    for T in range(4):
        if T: k(f"s_add_u32 s{sB}, s{sB}, {16*ROWB}")
        for r in range(4): k(f"buffer_load_dword v{B+4*T+r}, v4, {D}, s{sB} offen offset:{r*ROWB}")
    for f in range(16):
        if f % 4 == 0: k(f"s_mov_b32 s3, {O_TAB + f*1024}")
        k(f"buffer_load_dwordx4 {vr(A+4*f, 4)}, v{vlane16}, {D}, s3 offen offset:{(f % 4)*1024}")
    k(f"s_mul_i32 s3, s{sK1}, 19\ns_add_u32 s3, s3, s{sTile}\ns_lshl_b32 s3, s3, 12\ns_add_u32 s3, s3, {O_WH}")
    for T in range(4): k(f"buffer_load_dwordx4 {vr(WH+4*T, 4)}, v{vlane16}, {D}, s3 offen offset:{T*1024}")
    k(f"""
v_mul_u32_u24 v6, {ROWB}, v3
v_lshl_add_u32 v6, v2, 4, v6
s_brev_b32 s{sB+2}, 1
s_mov_b32 s{sB+3}, 0xffff0000
""")
    shadow()
    for i in range(16): k(f"v_alignbit_b32 v{B2+i}, v{B+i}, v{B+i}, 16\nv_xor_b32 v{B2+i}, s{sB+2}, v{B2+i}")
    between()
    def fwd(Tp): return [f"{MF32} {vr(q+4*Tp, 4)}, {vr(A+16*Tp+4*T, 4)}, {vr(b+4*T, 4)}, {'0' if T == 0 else vr(q+4*Tp, 4)}" for T in range(4) for q, b in ((XR, B), (XI, B2))]
    def filt(T):
        out = []; t = TP
        for r in (0, 2):
            w = WH+4*T+r; xr, xi = XR+4*T+r, XI+4*T+r
            out += [f"v_lshlrev_b32 v{t}, 16, v{w}", f"v_lshlrev_b32 v{t+1}, 16, v{w+1}", f"v_and_b32 v{t+2}, s{sB+3}, v{w}", f"v_and_b32 v{t+3}, s{sB+3}, v{w+1}",
                    f"v_pk_mul_f32 {vr(t+4, 2)}, {vr(xr, 2)}, {vr(t, 2)}", f"v_pk_mul_f32 {vr(t+6, 2)}, {vr(xr, 2)}, {vr(t+2, 2)}",
                    f"v_pk_fma_f32 {vr(t+4, 2)}, {vr(xi, 2)}, {vr(t+2, 2)}, {vr(t+4, 2)} neg_lo:[1,0,0] neg_hi:[1,0,0]", f"v_pk_fma_f32 {vr(t+6, 2)}, {vr(xi, 2)}, {vr(t, 2)}, {vr(t+6, 2)}",
                    f"v_cvt_pk_bf16_f32 v{w}, v{t+4}, -v{t+6}", f"v_cvt_pk_bf16_f32 v{w+1}, v{t+5}, -v{t+7}", f"v_cvt_pk_bf16_f32 v{xr}, v{t+6}, v{t+4}", f"v_cvt_pk_bf16_f32 v{xr+1}, v{t+7}, v{t+5}"]
        return out
    for x in fwd(0): k(x)
    for Tp in range(1, 4):
        for x in interleave(fwd(Tp), filt(Tp-1)): k(x)
    for x in filt(3): k(x)
    def inv(Tp): return [f"{MF32} {vr(q+4*Tp, 4)}, {vr(d+4*T, 4)}, {vr(A+16*Tp+4*T, 4)}, {'0' if T == 0 else vr(q+4*Tp, 4)}" for T in range(4) for q, d in ((B, WH), (B2, XR))]
    def outp(Tp):
        return [f"v_cvt_pk_bf16_f32 v{XI+4*Tp+r}, v{B+4*Tp+r}, v{B2+4*Tp+r}" for r in range(4)] + [f"v_or_b32 v{XI+4*Tp}, 1, v{XI+4*Tp}"] + \
               [f"buffer_store_dwordx4 {vr(XI+4*Tp, 4)}, v6, {D}, s{sB+1} offen sc1\ns_add_u32 s{sB+1}, s{sB+1}, {16*ROWB}"]
    for x in inv(0): k(x)
    for Tp in range(1, 4):
        m = inv(Tp)
        for x in m[:3] + interleave(m[3:], outp(Tp-1)): k(x)
    for x in outp(3): k(x)
```

```python
from asmlib import *
from layout import *
import struct
def fl(x): return "0x%08x" % struct.unpack("<I", struct.pack("<f", x))[0]
MF = "v_mfma_f32_16x16x32_bf16"
def ws_srd(k, d, off, nbytes, ws=6):
    k(f"s_add_u32 s{d}, s{ws}, {off}\ns_addc_u32 s{d+1}, s{ws+1}, 0\ns_mov_b32 s{d+2}, {nbytes}\ns_mov_b32 s{d+3}, 0x20000")
def srd_tail(k, d, nbytes): k(f"s_mov_b32 s{d+2}, {nbytes}\ns_mov_b32 s{d+3}, 0x20000")
S4 = lambda d: f"s[{d}:{d+3}]"

SLOT_A = [0, 45056, 90112]
RING_B = [0, 36864, 90112, 126976]
HH = 90112

def build_pf(look=3, nd=2, spread=4, stamp=False, abl="", name="pf", OUTPOL="", WPOL="", DPOL="", TPOL="", dstage=11, safe=0, XPOL="sc1", TPOLD="", ahead=7,
             phases="48", lag=2, ntouch=0, prio="", fuse=0, pk=1, W2=1, mode="S", merge=1, bulk=0, vprio=1, cprio=0, drain=1, ib2=1, nap=0, early=0, su3=0, w4p=0, late1=0, idlepf=1, inl=0, skip=1, lph="1358", istage=1, tstage=7):
    LP = mode == "L"
    PH = [int(c) for c in str(lph if LP else phases)]
    k = K(name, 256, 512, lds=163840, vgpr=256, sgpr=102)
    sG, sU, sD, sX, sP, sF, sS, sH, sO, sV, sI, sT = 8, 12, 16, 20, 24, 28, 32, 36, 40, 44, 48, 52
    sW, sMT, sSL, sRG = 56, 57, 58, 59
    sA, sKW, sKX, sM0a, sM0x, sM0s, sKD, sM0d, sPO, sCG, sRD, sLN, sLoc, sS1 = range(80, 94)
    sF1 = 96; sB = 97; sXC = 98
    vL, vDX, vD0, vD1, vD2, vT0, vT1, vT2 = range(8)
    vXr = [8, 9, 10]; vWA = [11, 12, 13]; vWB = [14, 15, 16]
    vDD, vPO, vHW = 17, 18, 19
    vWD = [20, 21, 22, 23]
    vHR, vHW2, vZ, vQ = 24, 25, 26, 27
    def stb(i):
        if stamp and "bst" in abl: k(f"s_memrealtime s[{60+2*i}:{61+2*i}]")
    def st(i):
        if stamp and "bst" not in abl: k(f"s_memrealtime s[{60+2*i}:{61+2*i}]")
    def put(items):
        for x in items:
            t = x[0] if isinstance(x, tuple) else x
            if "nodma" in abl and " lds" in t and x[1] not in ("A0", "A1"): continue
            if "nop2" in abl and "buffer_store" in t and isinstance(x, tuple) and x[1].startswith("P"): continue
            if "nomfma" in abl and "v_mfma" in t: continue
            if isinstance(x, tuple): k(x[0], tag=x[1])
            else: k(x)
    def spin(lab, load, cond, nap=0):
        bound = f"s_sub_u32 s5, s5, 1\ns_cbranch_scc1 {lab}_ok\n" if safe else ""
        k(f"{cond}\ns_cbranch_vccz {lab}_ok\n{f's_mov_b32 s5, {20000 if safe == 1 else 4000000}' if safe else ''}\n{lab}_spin:\n{'s_add_u32 s99, s99, 1' if 'cnt' in abl else ''}\n{bound}{f's_sleep {nap}' if nap else ''}\n{load}\ns_waitcnt vmcnt(0)\n{cond}\ns_cbranch_vccnz {lab}_spin\n{lab}_ok:")
        k.saved.pop(lab + "_spin", None)
    st(0)
    k(f"""
s_load_dwordx2 s[6:7], s[0:1], 72
s_load_dwordx2 s[{sG}:{sG+1}], s[0:1], 32
s_load_dwordx2 s[{sU}:{sU+1}], s[0:1], 40
s_load_dwordx2 s[{sI}:{sI+1}], s[0:1], 0
s_load_dwordx2 s[{sD}:{sD+1}], s[0:1], 48
s_load_dwordx2 s[{sO}:{sO+1}], s[0:1], 56
s_cmp_ge_u32 s2, 256
s_cbranch_scc1 {name}_end
v_lshrrev_b32 v{vT0}, 6, v0
v_and_b32 v{vL}, 63, v0
v_readfirstlane_b32 s{sW}, v{vT0}
s_lshr_b32 s3, s2, 3
s_and_b32 s{sMT}, s3, 15
s_lshr_b32 s{sB}, s3, 4
s_and_b32 s{sXC}, s2, 7
s_lshl_b32 s4, s{sXC}, 1
s_add_u32 s{sSL}, s4, s{sB}
v_lshlrev_b32 v{vDX}, 4, v{vL}
v_mov_b32 v{vZ}, 0
v_mov_b32 v37, 0
v_mov_b32 v2, 0
v_mov_b32 v3, 0
v_mov_b32 v4, 0
v_mov_b32 v47, 0
""")
    o = 32
    R = lambda n: n + o
    sS2, sNT, sVB, sXO, sSO = 99, sB, 100, 101, (96 if early else sRD)
    assert not (early and LP)
    sAct = 92
    L, MB_, AC, TW, G, XX = R(16), R(48), R(64), R(96), R(120), R(160)
    EZ = 90112; ES = EZ + 20480
    g_, n_, vVA, vHS, vRow, vXo, vEW, vSW, vSR = R(2), R(3), R(4), R(5), R(6), R(7), R(9), R(14), R(15)
    t0, t1, t2, t3 = R(10), R(11), R(12), R(13)
    assert merge
    NV = O_TAB + N_TAB
    vloads = "\n".join(f"s_add_u32 s3, s{sVB}, {(16*kk+t)*64*ROWB}\nbuffer_load_dwordx4 {vr(L+16*kk+4*t, 4)}, v{vVA}, {S4(sV)}, s3 offen sc1" for kk in range(2) for t in range(4))
    k(f"""
s_and_b32 s3, s{sXC}, 3
s_lshl_b32 s{sS2}, s{sMT}, 2
s_add_u32 s{sS2}, s{sS2}, s3
s_lshr_b32 s3, s{sXC}, 2
s_and_b32 s4, s{sMT}, 1
s_cmp_eq_u32 s3, s4
s_cselect_b32 s{sAct}, 1, 0
s_lshl_b32 s3, s{sB}, 3
s_lshr_b32 s4, s{sMT}, 1
s_add_u32 s81, s3, s4
s_waitcnt lgkmcnt(0)
""")
    ws_srd(k, sV, O_V, NV)
    def common_setup():
        k(f"""
v_lshrrev_b32 v{g_}, 4, v{vL}
v_and_b32 v{n_}, 15, v{vL}
s_lshl_b32 s3, s{sW}, 4
v_add_u32 v{vVA}, s3, v{n_}
v_lshlrev_b32 v{vVA}, 4, v{vVA}
v_mul_u32_u24 v{t0}, {4*64*ROWB}, v{g_}
v_add_u32 v{vVA}, v{vVA}, v{t0}
s_mul_i32 s{sVB}, s{sS2}, {ROWB}
s_lshl_b32 s3, s{sNT}, 4
v_add_u32 v{vRow}, s3, v{n_}
v_lshl_add_u32 v{vRow}, v{vRow}, 6, s{sS2}
v_mul_u32_u24 v{vXo}, 1152, v{vRow}
v_lshl_add_u32 v{vXo}, v{g_}, 5, v{vXo}
s_lshl_b32 s{sXO}, s{sW}, 7
""")
        srd_tail(k, sI, N_H); ws_srd(k, sT, O_TAB, N_TAB)
        ws_srd(k, sX, O_XF, N_XF); ws_srd(k, sH, O_H, N_H); ws_srd(k, sF, O_FLG, N_FLG)
        for d in (sG, sU, sD): srd_tail(k, d, N_W)
        srd_tail(k, sO, N_H)
        ws_srd(k, sP, O_P, N_P)
        k(f"s_bitcmp0_b32 s{sW}, 1\ns_cselect_b32 s{sS}, s{sG}, s{sU}\ns_cselect_b32 s{sS+1}, s{sG+1}, s{sU+1}")
        srd_tail(k, sS, N_W)
    def pattern(vd):
        k(f"""
s_lshl_b32 s4, s3, 6
v_add_u32 v{vT0}, s4, v{vL}
v_mul_u32_u24 v{vT1}, 1821, v{vT0}
v_lshrrev_b32 v{vT1}, 16, v{vT1}
v_mul_u32_u24 v{vT2}, 36, v{vT1}
v_sub_u32 v{vT0}, v{vT0}, v{vT2}
v_lshrrev_b32 v{vT2}, 2, v{vT1}
v_and_b32 v{vT2}, 2, v{vT2}
v_xor_b32 v{vT0}, v{vT0}, v{vT2}
v_lshlrev_b32 v{vT0}, 4, v{vT0}
v_and_b32 v{vT2}, 24, v{vT1}
v_add_u32 v{vT1}, v{vT1}, v{vT2}
v_mul_u32_u24 v{vT1}, 9216, v{vT1}
v_add_u32 v{vd}, v{vT0}, v{vT1}
""")
    def mlp_setup():
        k(f"s_and_b32 s{sRG}, s{sW}, 1\ns_bfe_u32 s{sA}, s{sW}, 0x10001\n{'s_and_b32' if LP else 's_lshr_b32'} s{sCG}, s{sW}, {3 if LP else 1}")
        k(f"s_lshl_b32 s3, s{sW}, 1"); pattern(vD0)
        k(f"s_add_u32 s3, s3, 1"); pattern(vD1)
        k(f"s_add_u32 s3, s{sRG}, 16"); pattern(vD2)
        k(f"""
s_mul_i32 s{sKW}, s{sSL}, 576
s_lshl_b32 s3, s{sMT}, 3
s_add_u32 s3, s3, s{sW}
s_mul_i32 s{sKX}, s3, 18432
s_lshl_b32 s{sM0x}, s{sW}, 10
s_lshl_b32 s{sM0a}, s{sW}, 11
s_add_u32 s{sM0a}, s{sM0a}, 8192
s_mul_i32 s3, s{sA}, 18432
s_lshl_b32 s4, s{sRG}, 10
s_add_u32 s3, s3, s4
s_add_u32 s{sM0s}, s3, {8192+16*1024}
""")
    def dmaX(s):
        return [(f"s_add_u32 m0, s{sM0x}, {SLOT_A[s % 3]}\ns_add_u32 s94, s{sKX}, {s*1024}\nbuffer_load_dwordx4 v{vDX}, {S4(sX)}, s94 offen {XPOL} lds", f"A{s}")]
    def dmaW(s, six):
        o = SLOT_A[s % 3]
        g = [f"s_add_u32 m0, s{sM0a}, {o}\ns_add_u32 s95, s{sKW}, {((s >> 1)*64 + (s & 1)*8)*9216}\nbuffer_load_dwordx4 v{vD0}, {S4(sG)}, s95 offen {WPOL} lds",
             f"s_add_u32 m0, s{sM0a}, {o+1024}\nbuffer_load_dwordx4 v{vD1}, {S4(sG)}, s95 offen {WPOL} lds",
             f"s_add_u32 m0, s{sM0a}, {o+18432}\nbuffer_load_dwordx4 v{vD0}, {S4(sU)}, s95 offen {WPOL} lds",
             f"s_add_u32 m0, s{sM0a}, {o+18432+1024}\nbuffer_load_dwordx4 v{vD1}, {S4(sU)}, s95 offen {WPOL} lds"]
        if six: g.append(f"s_add_u32 m0, s{sM0s}, {o}\nbuffer_load_dwordx4 v{vD2}, {S4(sS)}, s95 offen {WPOL} lds")
        return [(x, f"A{s}") for x in g]
    def dmaB(u, five):
        o = RING_B[u % 4]
        if LP and five: return []
        if "dbl" in abl:
            return [(f"s_add_u32 m0, s{sM0d}, {o+i*1024}\ns_add_u32 s94, s{sKD}, {i*8*1152+u*128}\n{'s_xor_b32 s94, s94, 0' if q == 0 else 's_add_u32 s94, s94, s101'}\nbuffer_load_dwordx4 v{vDD}, {S4(sD)}, s94 offen {DPOL} lds", f"B{u}") for q in range(2) for i in range(4 if five else 5)]
        return [(f"s_add_u32 m0, s{sM0d}, {o+i*1024}\ns_add_u32 s94, s{sKD}, {i*8*1152+u*128}\nbuffer_load_dwordx4 v{vDD}, {S4(sD)}, s94 offen {DPOL} lds", f"B{u}") for i in range(9 if LP else 4 if five else 5)]
    def first_w(lab):
        for s in ((0,) if late1 else (0, 1)):
            put(dmaW(s, False))
            k(f"s_cmp_lt_u32 s{sW}, 4\ns_cbranch_scc1 {lab}{s}")
            put(dmaW(s, True)[4:])
            k(f"{lab}{s}:")
    def bulk_w():
        k(f"s_sub_u32 s3, s{sW}, 5\ns_mul_i32 s3, s3, 6\ns_lshl_b32 s5, s3, 10\ns_add_u32 s5, s5, 8192\ns_add_u32 s95, s{sKW}, {8*9216}")
        for i in range(6):
            pattern(t0)
            for s_, so in ((0, sKW), (1, 95)):
                for m, d in enumerate((sG, sU)):
                    k(f"s_add_u32 m0, s5, {SLOT_A[s_] + m*18432 + i*1024}\nbuffer_load_dwordx4 v{t0}, {S4(d)}, s{so} offen {WPOL} lds", tag="A0")
            k("s_add_u32 s3, s3, 1")
    def rest_loads(lab):
        k(f"buffer_load_dwordx4 {vr(XX, 4)}, v{vXo}, {S4(sI)}, s{sXO} offen\nbuffer_load_dwordx4 {vr(XX+4, 4)}, v{vXo}, {S4(sI)}, s{sXO} offen offset:16")
        k(f"s_mul_i32 s3, s{sW}, 5120\ns_add_u32 s3, s3, 16384\ns_add_u32 s4, s3, 4096")
        for f in range(5): k(f"buffer_load_dwordx4 {vr(G+4*f, 4)}, v{vDX}, {S4(sT)}, s{3+f//4} offen offset:{(f % 4)*1024}")
        k(f"s_cmp_lg_u32 s{sW}, {W2}\ns_cbranch_scc1 {lab}")
        k(f"buffer_load_dwordx4 {vr(XX+8, 4)}, v{vXo}, {S4(sI)}, 0 offen offset:1024\nbuffer_load_dwordx4 {vr(XX+12, 4)}, v{vXo}, {S4(sI)}, 0 offen offset:1040")
        k(f"s_mov_b32 s3, {(16+40)*1024}\ns_mov_b32 s4, {(16+44)*1024}")
        for f in range(5): k(f"buffer_load_dwordx4 {vr(G+20+4*f, 4)}, v{vDX}, {S4(sT)}, s{3+f//4} offen offset:{(f % 4)*1024}")
        k(f"{lab}:")
    def matrices():
        k(f"""
v_cvt_f32_u32 v{t0}, v{vRow}
v_mul_f32 v{t0}, {fl(1/2048)}, v{t0}
v_cvt_f32_u32 v{t1}, v{g_}
v_mul_f32 v{t1}, 4.0, v{t1}
v_mul_f32 v{vEW}, v{t0}, v{t1}
""")
        for kk in range(2):
            for t in range(4):
                k(f"""v_fmamk_f32 v{t2}, v{t0}, {fl(float(16*kk+t))}, v{vEW}
v_cos_f32 v{t3}, v{t2}
v_sin_f32 v{t2}, v{t2}
v_cvt_pk_bf16_f32 v{MB_+4*kk+t}, v{t3}, -v{t2}
v_cvt_pk_bf16_f32 v{MB_+8+4*kk+t}, v{t2}, v{t3}""")
        tw = [f"s_lshl_b32 s3, s{sW}, 4", f"v_cvt_f32_u32 v{t0}, s3", f"v_add_f32 v{t1}, v{t1}, v{t0}"]
        for r in range(4):
            if r: tw.append(f"v_add_f32 v{t1}, 1.0, v{t1}")
            for q in range(1, 4):
                tw += [f"v_mul_f32 v{t2}, {fl(q/576)}, v{t1}", f"v_cos_f32 v{TW+8*(q-1)+r}, v{t2}", f"v_sin_f32 v{TW+8*(q-1)+4+r}, v{t2}"]
        return tw
    sSU = 96
    if merge:
        from fft import column_task
        k(f"""s_mov_b32 s{sSU}, 0
s_cmp_eq_u32 s{sAct}, 0
s_cbranch_scc1 {name}_qi
s_lshl_b32 s3, s81, 1
s_sub_u32 s4, s{sW}, 5
s_add_u32 s3, s3, s4
s_cmp_lt_u32 s4, 2
s_cbranch_scc1 {name}_col
s_cmp_lt_u32 s{sW}, 5
s_cbranch_scc0 {name}_nocol""")
        common_setup()
        put(matrices())
        k(f"""v_cmp_le_u32 vcc, 12, v{n_}
s_cmp_eq_u32 s{sW}, 4
s_cselect_b64 vcc, vcc, 0
v_cndmask_b32 v{vHS}, 0, 1, vcc
s_barrier""")
        rest_loads(f"{name}_rl3")
        k(f"s_barrier")
        st(1)
        if vprio: k(f"s_and_b32 s3, s{sW}, 3\ns_cmp_lg_u32 s3, 0\ns_cbranch_scc1 {name}_vp\ns_setprio 2\n{name}_vp:")
        k(vloads)
        chk = "\n".join([f"v_and_b32 v{t0}, v{L}, v{L+4}"] + [f"v_and_b32 v{t0}, v{t0}, v{L+4*i}" for i in range(2, 8)] + [f"v_or_b32 v{t0}, v{t0}, v{vHS}", f"v_and_b32 v{t0}, 1, v{t0}", f"v_cmp_eq_u32 vcc, 0, v{t0}"])
        spin(f"{name}_v", vloads, chk, nap)
        k(f"""s_branch {name}_doA
{name}_qi:
s_mul_i32 s3, s81, 3
s_add_u32 s3, s3, s{sW}
s_add_u32 s3, s3, 32
s_cmp_ge_u32 s{sW}, 3
s_cbranch_scc1 {name}_nocol
s_cmp_ge_u32 s3, 76
s_cbranch_scc1 {name}_nocol
{name}_col:
s_mul_i32 s4, s3, 27
s_lshr_b32 s4, s4, 9
s_mul_i32 s5, s4, 19
s_sub_u32 s81, s3, s5
s_lshl_b32 s3, s{sXC}, 2
s_add_u32 s82, s3, s4""")
        if cprio: k(f"s_setprio {cprio}")
        column_task(k, 48, 81, 82, 83, sV, vDX, vL, common_setup, lambda: (st(1), k("s_barrier")))
        st(2)
        if cprio: k("s_setprio 0")
        if drain: k("s_waitcnt vmcnt(0)")
        if ib2: k(f"s_barrier\ns_cmp_eq_u32 s{sAct}, 0\ns_cbranch_scc1 {name}_fin")
        else: k(f"s_cmp_eq_u32 s{sAct}, 0\ns_cbranch_scc1 {name}_fin\ns_barrier")
        mlp_setup()
        k(f"s_mov_b32 s{sSU}, 1")
        rest_loads(f"{name}_rl4")
        k(f"s_branch {name}_bulk\n{name}_nocol:")
        common_setup()
        mlp_setup()
        k(f"s_mov_b32 s{sSU}, 1\ns_barrier\ns_cmp_eq_u32 s{sAct}, 0\ns_cbranch_scc1 {name}_ib")
        rest_loads(f"{name}_rl1")
        k(f"s_barrier\n{name}_bulk:")
        if bulk: bulk_w()
        k(f"s_branch {name}_noA\n{name}_ib:\n{'s_barrier' if ib2 else ''}\ns_branch {name}_fin\n{name}_doA:")
        tw = [""]*22
    else:
        k(f"s_cmp_lt_u32 s{sW}, 5\ns_cbranch_scc1 {name}_doA")
        mlp_setup()
        rest_loads(f"{name}_rl1")
        k(f"s_branch {name}_noA\n{name}_doA:")
        tw = matrices()
        put(tw[:22])
    st(2)
    for kk in range(2):
        for a in range(4):
            for b in range(a+1, 4): k(f"v_swap_b32 v{L+16*kk+4*a+b}, v{L+16*kk+4*b+a}")
    mf = []
    for m in (0, 2, 1, 3):
        for kk in range(2):
            for c in range(2):
                a = AC+8*m+4*c
                mf.append(f"{MF} {vr(a, 4)}, {vr(L+16*kk+4*m, 4)}, {vr(MB_+8*c+4*kk, 4)}, {'0' if kk == 0 else vr(a, 4)}")
    put(interleave(mf, tw[22:]) if tw[22:] else mf)
    if not merge: rest_loads(f"{name}_rl2")
    Z = L; T = L+16
    p2 = lambda x: vr(x, 2)
    NEG = "neg_lo:[0,1] neg_hi:[0,1]"
    for r in (0, 2):
        Rr = lambda m: AC+8*m+r
        I = lambda m: AC+8*m+4+r
        ar, ai, br, bi, cr, ci, dr, di = (T+2*i for i in range(8))
        k(f"""
v_pk_add_f32 {p2(ar)}, {p2(Rr(0))}, {p2(Rr(2))}
v_pk_add_f32 {p2(ai)}, {p2(I(0))}, {p2(I(2))}
v_pk_add_f32 {p2(cr)}, {p2(Rr(1))}, {p2(Rr(3))}
v_pk_add_f32 {p2(ci)}, {p2(I(1))}, {p2(I(3))}
v_pk_add_f32 {p2(br)}, {p2(Rr(0))}, {p2(Rr(2))} {NEG}
v_pk_add_f32 {p2(bi)}, {p2(I(0))}, {p2(I(2))} {NEG}
v_pk_add_f32 {p2(dr)}, {p2(Rr(1))}, {p2(Rr(3))} {NEG}
v_pk_add_f32 {p2(di)}, {p2(I(1))}, {p2(I(3))} {NEG}
v_pk_add_f32 {p2(Rr(0))}, {p2(ar)}, {p2(cr)}
v_pk_add_f32 {p2(I(0))}, {p2(ai)}, {p2(ci)}
v_pk_add_f32 {p2(Rr(1))}, {p2(br)}, {p2(di)} {NEG}
v_pk_add_f32 {p2(I(1))}, {p2(bi)}, {p2(dr)}
v_pk_add_f32 {p2(Rr(2))}, {p2(ar)}, {p2(cr)} {NEG}
v_pk_add_f32 {p2(I(2))}, {p2(ai)}, {p2(ci)} {NEG}
v_pk_add_f32 {p2(Rr(3))}, {p2(br)}, {p2(di)}
v_pk_add_f32 {p2(I(3))}, {p2(bi)}, {p2(dr)} {NEG}
v_cvt_pk_bf16_f32 v{Z+r}, v{Rr(0)}, v{I(0)}
v_cvt_pk_bf16_f32 v{Z+r+1}, v{Rr(0)+1}, v{I(0)+1}
""")
        for q in range(1, 4):
            cc = TW+8*(q-1)+r
            k(f"v_pk_mul_f32 {p2(T+4*q)}, {p2(cc)}, {p2(Rr(q))}\nv_pk_mul_f32 {p2(T+4*q+2)}, {p2(cc)}, {p2(I(q))}")
        for q in range(1, 4):
            ss = TW+8*(q-1)+4+r
            k(f"v_pk_fma_f32 {p2(T+4*q)}, {p2(ss)}, {p2(I(q))}, {p2(T+4*q)} neg_lo:[1,0,0] neg_hi:[1,0,0]\nv_pk_fma_f32 {p2(T+4*q+2)}, {p2(ss)}, {p2(Rr(q))}, {p2(T+4*q+2)}")
        for q in range(1, 4):
            k(f"v_cvt_pk_bf16_f32 v{Z+4*q+r}, v{T+4*q}, v{T+4*q+2}\nv_cvt_pk_bf16_f32 v{Z+4*q+r+1}, v{T+4*q+1}, v{T+4*q+3}")
    k(f"s_lshl_b32 s3, s{sW}, 10\ns_add_u32 s3, s3, {EZ}\nv_add_u32 v{vEW}, s3, v{vDX}")
    for q in range(4): k(f"ds_write_b128 v{vEW}, {vr(Z+4*q, 4)} offset:{q*5120}")
    k(f"s_setprio 0\ns_cmp_eq_u32 s{sW}, 4\ns_cbranch_scc1 {name}_noA")
    if su3: mlp_setup()
    k(f"{name}_noA:")
    k(f"""
v_lshlrev_b32 v{vSR}, 6, v{n_}
v_add_u32 v{vSR}, {ES}, v{vSR}
v_lshrrev_b32 v{vSW}, 1, v{g_}
v_lshl_add_u32 v{vSW}, v{vSW}, 2, v{vSR}
s_lshl_b32 s3, s{sW}, 3
v_add_u32 v{vSW}, s3, v{vSW}
v_lshrrev_b32 v{vHS}, 1, v{n_}
v_lshlrev_b32 v{vHS}, 7, v{vHS}
v_and_b32 v{t0}, 1, v{n_}
v_lshl_add_u32 v{vHS}, v{t0}, 6, v{vHS}
v_lshl_add_u32 v{vHS}, v{g_}, 4, v{vHS}
v_add_u32 v{vEW}, {EZ}, v{vDX}
s_lshl_b32 s3, s{sS2}, 1
s_add_u32 s3, s3, s{sNT}
s_mul_i32 s4, s3, 18432
s_lshl_b32 s5, s{sW}, 11
s_add_u32 s{sSO}, s4, s5
s_add_u32 s{sVB}, s4, 16384
s_and_b32 s3, s3, 7
s_lshl_b32 s3, s3, 2
s_lshl_b32 s4, s{sMT}, 11
s_add_u32 s{sXO}, s3, s4
s_mov_b32 s5, 0xffff0000
""")
    A2 = AC; ZR = L
    def final(nmt):
        so = [sSO, sVB]
        for mt in range(nmt):
            for r in range(4):
                for q in range(4):
                    src = XX+8*mt+2*r+(q >> 1); dst = A2+16*mt+4*q+r
                    k(f"v_and_b32 v{dst}, s5, v{src}" if q & 1 else f"v_lshlrev_b32 v{dst}, 16, v{src}")
        k.wait_lg(); k("s_barrier")
        st(3)
        idx = [(jt, q) for jt in range(5) for q in range(4)]
        rd = lambda i: f"ds_read_b128 {vr(ZR+4*(i % 8), 4)}, v{vEW} offset:{idx[i][1]*5120+idx[i][0]*1024}"
        for i in range(7): k(rd(i))
        for i, (jt, q) in enumerate(idx):
            for mt in range(nmt):
                a = A2+16*mt+4*q
                k(f"{MF} {vr(a, 4)}, {vr(G+20*mt+4*jt, 4)}, {vr(ZR+4*(i % 8), 4)}, {vr(a, 4)}")
            if i+7 < 20: k(rd(i+7))
        if "p3st" in abl: k("s_memrealtime s[62:63]")
        first = True
        for mt in range(nmt):
            for q in range(4):
                for p in range(2):
                    a = A2+16*mt+4*q+2*p
                    if first: k(f"v_mov_b64 {vr(t0, 2)}, {vr(a, 2)}\nv_pk_mul_f32 {vr(t2, 2)}, {vr(a, 2)}, {vr(a, 2)}"); first = False
                    else: k(f"v_pk_add_f32 {vr(t0, 2)}, {vr(t0, 2)}, {vr(a, 2)}\nv_pk_fma_f32 {vr(t2, 2)}, {vr(a, 2)}, {vr(a, 2)}, {vr(t2, 2)}")
        k(f"""
v_add_f32 v{t0}, v{t0}, v{t1}
v_add_f32 v{t2}, v{t2}, v{t3}
v_permlane32_swap_b32 v{t0}, v{t2}
v_add_f32 v{t0}, v{t0}, v{t2}
v_mov_b32 v{t1}, v{t0}
v_permlane16_swap_b32 v{t0}, v{t1}
v_add_f32 v{t0}, v{t0}, v{t1}
ds_write_b32 v{vSW}, v{t0}
""")
        def pack(dst, mt, h):
            for p in range(4):
                r, q = 2*h+(p >> 1), 2*(p & 1)
                k(f"v_cvt_pk_bf16_f32 v{dst+p}, v{A2+16*mt+4*q+r}, v{A2+16*mt+4*(q+1)+r}")
        for mt in range(nmt):
            for h in range(2): pack(XX+8*mt+4*h, mt, h)
        k.wait_lg(); k("s_barrier")
        if "p3st" in abl: k("s_memrealtime s[64:65]")
        for w in range(4): k(f"ds_read_b128 {vr(L+4*w, 4)}, v{vSR} offset:{16*w}")
        k(f"""v_lshl_add_u32 v{vSW}, v{vL}, 7, s{sXO}
v_mov_b32 v{vSR}, {OOB}
v_cmp_gt_u32 vcc, 16, v{vL}
v_cndmask_b32 v{vSR}, v{vSR}, v{vSW}, vcc
v_mov_b32 v{vSW}, 1""")
        for a, b in ((0, 2), (4, 6), (8, 10), (12, 14), (0, 4), (8, 12), (0, 8)):
            k(f"v_pk_add_f32 {vr(L+a, 2)}, {vr(L+a, 2)}, {vr(L+b, 2)}")
        k(f"""
v_mul_f32 v{t0}, {fl(1/576)}, v{L}
v_mul_f32 v{t1}, v{t0}, v{t0}
v_fmamk_f32 v{t2}, v{L+1}, {fl(1/576)}, v{t1}
v_fma_f32 v{t2}, -2.0, v{t1}, v{t2}
v_max_f32 v{t2}, 0, v{t2}
v_add_f32 v{t2}, {fl(1e-5)}, v{t2}
v_rsq_f32 v{t2}, v{t2}
v_mul_f32 v{t2}, {fl(LOG2E)}, v{t2}
v_mul_f32 v{t0}, -v{t0}, v{t2}
v_mov_b32 v{t3}, v{t2}
v_mov_b32 v{t1}, v{t0}
s_cmp_eq_u32 s{sW}, 0
s_cselect_b32 s4, 0x10001, 0
""")
        for mt in range(nmt):
            for q in range(4):
                for p in range(2):
                    a = A2+16*mt+4*q+2*p
                    k(f"v_pk_fma_f32 {vr(a, 2)}, {vr(a, 2)}, {vr(t2, 2)}, {vr(t0, 2)}")
            for h in range(2):
                pack(L+8*mt+4*h, mt, h)
                if early and nmt == 1: k(f"v_or_b32 v{L+4*h}, s4, v{L+4*h}")
                k(f"buffer_store_dwordx4 {vr(L+8*mt+4*h, 4)}, v{vDX}, {S4(sX)}, s{so[mt]} offen offset:{h*1024} sc1", tag="XF")
    def hstores(lab):
        for mt in range(2):
            if mt: k(f"s_cmp_lg_u32 s{sW}, {W2}\ns_cbranch_scc1 {lab}")
            for h in range(2): k(f"buffer_store_dwordx4 {vr(XX+8*mt+4*h, 4)}, v{vHS}, {S4(sH)}, s{[sSO, sVB][mt]} offen offset:{h*1024} sc1", tag="H")
        k(f"{lab}:")
    k(f"s_cmp_eq_u32 s{sW}, {W2}\ns_cbranch_scc1 {name}_fin2")
    final(1)
    if early:
        k(f"""s_cmp_lg_u32 s{sW}, 0
s_cbranch_scc1 {name}_fin
s_mov_b32 s3, {F_E}
buffer_store_dword v{vSW}, v{vSR}, {S4(sF)}, s3 offen sc1""")
    k(f"s_branch {name}_fin\n{name}_fin2:")
    final(2)
    k(f"{name}_fin:")
    if "p3st" in abl: k("s_memrealtime s[60:61]")
    if merge: k(f"s_cmp_eq_u32 s{sSU}, 1\ns_cbranch_scc1 {name}_sudone")
    else: k(f"s_cmp_eq_u32 s{sAct}, 0\ns_cbranch_scc1 {name}_su\n{'s_cmp_lg_u32' if su3 else 's_cmp_gt_u32'} s{sW}, 4\ns_cbranch_scc1 {name}_sudone\n{name}_su:")
    mlp_setup()
    k(f"{name}_sudone:")
    if bulk: k(f"s_cmp_lg_u32 s{sAct}, 0\ns_cbranch_scc1 {name}_wdone")
    first_w(f"{name}_wc")
    if bulk: k(f"{name}_wdone:")
    def touch(mats, lab, dst):
        k(f"""
s_lshr_b32 s3, s2, 3
s_lshl_b32 s3, s3, 3
s_add_u32 s3, s3, s{sW}
s_cmp_ge_u32 s3, {81*len(mats)}
s_cbranch_scc1 {lab}_x
s_cmp_ge_u32 s3, 81
s_cselect_b32 s4, 81, 0
s_sub_u32 s4, s3, s4
v_lshl_add_u32 v{vT0}, s4, 6, v{vL}
v_mul_u32_u24 v{vT1}, 7282, v{vT0}
v_lshrrev_b32 v{vT1}, 16, v{vT1}
v_mul_u32_u24 v{vT2}, 9, v{vT1}
v_sub_u32 v{vT2}, v{vT0}, v{vT2}
v_mul_u32_u24 v{vT1}, {9216 if mats[0] != sD else 1152}, v{vT1}
v_lshl_add_u32 v{vT1}, v{vT2}, 7, v{vT1}
s_mul_i32 s4, s{sXC}, {1152 if mats[0] != sD else 576*1152}
""")
        if len(mats) == 2: k(f"s_cmp_ge_u32 s3, 81\ns_cbranch_scc1 {lab}_u")
        k(f"buffer_load_dword v{dst}, v{vT1}, {S4(mats[0])}, s4 offen {TPOL if len(mats) == 2 else TPOLD}", tag="touch")
        if len(mats) == 2: k(f"s_branch {lab}_x\n{lab}_u:\nbuffer_load_dword v{dst}, v{vT1}, {S4(mats[1])}, s4 offen {TPOL}")
        k(f"{lab}_x:")
    vTW = 31
    k(f"""
s_cmp_eq_u32 s{sB}, 0
s_cselect_b32 s{sV}, s{sG}, s{sU}
s_cselect_b32 s{sV+1}, s{sG+1}, s{sU+1}
s_mov_b32 s{sV+2}, {N_W}
s_mov_b32 s{sV+3}, 0x20000
s_and_b32 s3, s{sW}, 3
s_mul_i32 s3, s3, 5
v_add_u32 v{vTW}, s3, v{vL}
v_cmp_lt_u32 vcc, 8, v{vTW}
v_cndmask_b32 v{vT0}, 0, 1, vcc
v_mul_u32_u24 v{vT1}, 9, v{vT0}
v_sub_u32 v{vT1}, v{vTW}, v{vT1}
s_lshr_b32 s3, s{sW}, 2
s_xor_b32 s3, s3, 1
s_xor_b32 s3, s3, s{sMT}
s_lshl_b32 s3, s3, 1
v_add_u32 v{vT0}, s3, v{vT0}
v_and_b32 v{vT2}, 24, v{vT0}
v_add_u32 v{vT0}, v{vT0}, v{vT2}
v_mul_u32_u24 v{vT0}, 9216, v{vT0}
v_lshl_add_u32 v{vT0}, v{vT1}, 7, v{vT0}
s_mul_i32 s3, s{sXC}, 1152
v_add_u32 v{vT0}, s3, v{vT0}
v_mov_b32 v{vT1}, {OOB}
v_cmp_gt_u32 vcc, 18, v{vTW}
v_cndmask_b32 v{vT0}, v{vT1}, v{vT0}, vcc
v_cmp_gt_u32 vcc, 5, v{vL}
v_cndmask_b32 v{vTW}, v{vT1}, v{vT0}, vcc
""")
    def roll(s):
        if "notouch" in abl or "noroll" in abl or s >= 18: return []
        return [(f"s_mov_b32 s94, {((s >> 1)*64 + (s & 1)*8)*9216}\nbuffer_load_dword v28, v{vTW}, {S4(sV)}, s94 offen {TPOL}", "touch")]
    if not early:
        k(f"""s_cmp_eq_u32 s{sAct}, 0
s_cbranch_scc1 {name}_p3done
""")
        k.wait_vm("XF")
        k(f"""s_barrier
s_cmp_lg_u32 s{sW}, 0
s_cbranch_scc1 {name}_p3sig
buffer_store_dword v{vSW}, v{vSR}, {S4(sF)}, 0 offen sc1
{name}_p3sig:
""")
        hstores(f"{name}_hs")
        k(f"{name}_p3done:")
    st(4)

    def path(five):
        nt5 = 5 if five else 4
        nf = 2*nt5
        P = "a" if five else "b"
        k(f"""
s_lshl_b32 s3, s{sMT}, 4
s_add_u32 s3, s3, s{sSL}
s_lshl_b32 s3, s3, 7
s_lshl_b32 s4, s{sW}, 2
s_add_u32 s{sLN}, s3, s4
s_add_u32 s{sS1}, s{sLN}, {F_E if early else 0}
buffer_load_dword v{vQ}, v{vZ}, {S4(sF)}, s{sS1} offen sc1
v_lshrrev_b32 v{vT0}, 4, v{vL}
v_bfe_u32 v{vT1}, v{vL}, 2, 2
v_lshl_add_u32 v{vT2}, v{vT0}, 3, v{vT1}
v_mul_u32_u24 v{vT2}, 576, v{vT2}
v_and_b32 v{vWB[0]}, 3, v{vL}
v_lshl_add_u32 v{vT2}, v{vWB[0]}, 3, v{vT2}
s_mul_i32 s3, s{sA}, 9
s_add_u32 s3, s3, {0 if five else 5}
s_lshl_b32 s4, s3, 5
s_add_u32 s4, s4, 8192
v_add_u32 v{vT2}, s4, v{vT2}
s_and_b32 s3, s3, 1
s_cmp_eq_u32 s3, 0
s_cselect_b32 s3, 32, -32
v_and_b32 v{vWB[0]}, 1, v{vT0}
v_mul_i32_i24 v{vWB[0]}, s3, v{vWB[0]}
v_add_u32 v{vWA[0]}, v{vT2}, v{vWB[0]}
v_sub_u32 v{vWB[0]}, v{vT2}, v{vWB[0]}
s_lshl_b32 s3, s{sRG}, 12
v_add_u32 v{vXr[0]}, s3, v{vDX}
""")
        for i in (1, 2):
            k(f"v_add_u32 v{vXr[i]}, {SLOT_A[i]}, v{vXr[0]}\nv_add_u32 v{vWA[i]}, {SLOT_A[i]}, v{vWA[0]}\nv_add_u32 v{vWB[i]}, {SLOT_A[i]}, v{vWB[0]}")
        k(f"""
v_lshrrev_b32 v{vDD}, 3, v{vL}
v_mul_u32_u24 v{vDD}, 1152, v{vDD}
v_bfe_u32 v{vT2}, v{vL}, 1, 2
v_xor_b32 v{vT2}, v{vT2}, v{vT0}
v_lshl_add_u32 v{vDD}, v{vT2}, 5, v{vDD}
v_and_b32 v{vT2}, 1, v{vL}
v_lshl_add_u32 v{vDD}, v{vT2}, 4, v{vDD}
s_mul_i32 s3, s{sCG if LP else sW}, {9 if LP else 4 if five else 5}
s_sub_u32 s3, s3, {0 if five or LP else 4}
s_lshl_b32 s{sM0d}, s3, 10
s_mul_i32 s3, s3, {8*1152}
s_mul_i32 s{sKD}, s{sSL}, {288*1152}
s_add_u32 s{sKD}, s{sKD}, s3
v_lshl_add_u32 v{vWD[0]}, v{vT0}, 2, v{vT1}
v_bfe_u32 v{vT2}, v{vWD[0]}, 1, 2
v_xor_b32 v{vT2}, s{sCG}, v{vT2}
v_lshlrev_b32 v{vT2}, 5, v{vT2}
v_lshl_add_u32 v{vWD[0]}, v{vWD[0]}, 7, v{vT2}
v_and_b32 v{vT2}, 3, v{vL}
v_lshl_add_u32 v{vWD[0]}, v{vT2}, 3, v{vWD[0]}
v_add_u32 v{vWD[1]}, {RING_B[1]}, v{vWD[0]}
v_add_u32 v{vWD[2]}, {RING_B[2]}, v{vWD[0]}
v_add_u32 v{vWD[3]}, {RING_B[3]}, v{vWD[0]}
s_xor_b32 s3, s{sB if LP else sRG}, {1 if LP and not five else 0}
s_mul_i32 s3, s3, {4*9*1024}
s_add_u32 s3, s3, {HH}
v_add_u32 v{vHR}, s3, v{vDX}
s_mul_i32 s3, s{sRG}, {4*9*1024}
s_add_u32 s3, s3, {HH}
s_mul_i32 s4, s{sA}, 9
s_add_u32 s4, s4, {0 if five else 5}
s_lshr_b32 s5, s4, 1
s_lshl_b32 s5, s5, 10
s_add_u32 s3, s3, s5
s_and_b32 s4, s4, 1
s_lshl_b32 s5, s4, 3
s_add_u32 s5, s5, s3
v_add_u32 v{vHW}, s5, v{vDX}
s_mul_i32 s5, s4, 1024
s_add_u32 s5, s5, s3
s_xor_b32 s4, s4, 1
s_lshl_b32 s4, s4, 3
s_add_u32 s5, s5, s4
v_add_u32 v{vHW2}, s5, v{vDX}
v_bfe_u32 v{vT2}, v{vL}, 1, 3
v_lshlrev_b32 v{vPO}, 10, v{vT2}
v_and_b32 v{vT2}, 1, v{vL}
v_lshl_add_u32 v{vPO}, v{vT2}, 6, v{vPO}
v_lshl_add_u32 v{vPO}, v{vT0}, 4, v{vPO}
""")
        if LP:
            k(f"""s_lshl_b32 s3, s{sMT}, 1
s_add_u32 s4, s3, s{sB}
s_mul_i32 s{sRD}, s4, {8*9*8192}
s_xor_b32 s4, s4, {0 if five else 1}
s_lshl_b32 s4, s4, 3
s_add_u32 s4, s4, s{sXC}
s_mul_i32 s{sPO}, s4, {9*8192}
s_lshl_b32 s4, s{sCG}, 8
s_add_u32 s{sPO}, s{sPO}, s4
s_xor_b32 s3, s2, {0 if five else 128}
s_lshl_b32 s3, s3, 9
s_lshl_b32 s4, s{sCG}, 7
s_add_u32 s3, s3, s4
s_add_u32 s{sF1}, s3, {F_1}
s_getreg_b32 s{sLoc}, hwreg(HW_REG_XCC_ID, 0, 4)
s_add_u32 s{sLoc}, s{sLoc}, 1""")
            if five:
                for i in range(4): k(f"v_mov_b32 v{28+i}, 0")
        else:
            k(f"""s_mul_i32 s{sRD}, s{sMT}, {16*9*16384}
s_mul_i32 s3, s{sSL}, {9*16384}
s_add_u32 s{sPO}, s{sRD}, s3
s_lshl_b32 s4, s{sRG}, 13
s_add_u32 s{sPO}, s{sPO}, s4
s_lshl_b32 s4, s{sCG}, 8
s_add_u32 s{sPO}, s{sPO}, s4""")
        if idlepf:
            k(f"s_cmp_lg_u32 s{sAct}, 0\ns_cbranch_scc1 {name}_{P}ip")
            if late1: put(dmaW(1, not five))
            for q in range(2, ahead): put(roll(q))
            k(f"{name}_{P}ip:")
        elif not five and not early:
            for q in range(2, ahead): put(roll(q))
        xflag = lambda so: f"buffer_load_dword v{vQ}, v{vZ}, {S4(sF)}, s{so} offen sc1"
        spin(f"{name}_{P}x", xflag(sS1), f"v_cmp_eq_u32 vcc, 0, v{vQ}")
        if early:
            ld = f"buffer_load_dwordx4 v[64:67], v{vDX}, {S4(sX)}, s{sKX} offen sc1\nbuffer_load_dwordx4 v[68:71], v{vDX}, {S4(sX)}, s{sKX} offen offset:1024 sc1"
            k(ld)
            k(f"v_add_u32 v{vT0}, s{sM0x}, v{vDX}\ns_mov_b32 s4, 0x10001")
            spin(f"{name}_{P}t", ld, f"v_and_b32 v{vT1}, v64, v68\nv_and_b32 v{vT1}, s4, v{vT1}\nv_cmp_ne_u32 vcc, s4, v{vT1}")
            k(f"s_cmp_eq_u32 s{sAct}, 0\ns_cbranch_scc1 {name}_{P}hs")
            hstores(f"{name}_{P}hs")
            if not five and not idlepf:
                for q in range(2, ahead): put(roll(q))
            k(f"ds_write_b128 v{vT0}, v[64:67] offset:{SLOT_A[0]}\nds_write_b128 v{vT0}, v[68:71] offset:{SLOT_A[1]}")
        else:
            put(dmaX(0)); put(dmaX(1))
        if late1 == 1:
            if idlepf: k(f"s_cmp_eq_u32 s{sAct}, 0\ns_cbranch_scc1 {name}_{P}l1")
            put(dmaW(1, not five))
            if idlepf: k(f"{name}_{P}l1:")
        st(5)
        ACC = 256-nf*16; XB = [64, 80]; WR = 32
        def acc(f, nt): return ACC + f*16 + nt*4
        def wreg(s, f): return WR + 4*((s*nf+f) % 8)
        def wread(s, f):
            i, u = f >> 1, f & 1
            va = (vWA if i % 2 == 0 else vWB)[s % 3]; d = wreg(s, f)
            return [f"ds_read_b64_tr_b16 v[{d+2*h}:{d+2*h+1}], v{va} offset:{h*4*576 + i*32 + u*18432}" for h in range(2)]
        def mfa(s, f):
            w = wreg(s, f)
            return [f"{MF} {vr(acc(f, nt), 4)}, {vr(w, 4)}, {vr(XB[s % 2]+4*nt, 4)}, {'0' if s == 0 else vr(acc(f, nt), 4)}" for nt in range(4)]
        vRD, vHO, vOO, vFL, vFS, SEL, vFV, vTR, vHT = 2, 3, 4, 8, 9, 12, 5, 10, 11
        assert not fuse
        sRP, sEX = 44, 48
        late = f"""v_mov_b32 v{vFS}, {OOB}
v_lshrrev_b32 v5, 4, v{vL}
v_and_b32 v6, 3, v{vL}
v_bfe_u32 v7, v{vL}, 3, 1
s_and_b32 s4, s{sSL}, 3
v_xor_b32 v14, s4, v5
v_mul_u32_u24 v{vRD}, {9*16384}, v14
v_lshlrev_b32 v{vHT}, 8, v7
v_and_b32 v14, 7, v{vL}
v_lshl_add_u32 v{vHT}, v14, 4, v{vHT}
v_add_u32 v{vRD}, v{vRD}, v{vHT}
s_lshl_b32 s4, s{sRG}, 1
v_add_u32 v7, s4, v7
s_lshl_b32 s4, s{sA}, 7
s_lshl_b32 s5, s{sRG}, 9
s_add_u32 s4, s4, s5
s_add_u32 s5, s4, 73728
v_add_u32 v{vHT}, s5, v{vHT}
s_add_u32 s{sRD}, s{sRD}, s4
s_lshl_b32 s4, s{sSL}, 10
s_add_u32 s{sRD}, s{sRD}, s4
s_and_b32 s4, s{sSL}, 12
s_mul_i32 s{sRP}, s4, {9*16384}
s_add_u32 s{sRP}, s{sRP}, s{sRD}
s_xor_b32 s5, s4, 4
s_mul_i32 s{sRP+1}, s5, {9*16384}
s_add_u32 s{sRP+1}, s{sRP+1}, s{sRD}
s_xor_b32 s5, s4, 8
s_mul_i32 s{sRP+2}, s5, {9*16384}
s_add_u32 s{sRP+2}, s{sRP+2}, s{sRD}
s_xor_b32 s5, s4, 12
s_mul_i32 s{sRP+3}, s5, {9*16384}
s_add_u32 s{sRP+3}, s{sRP+3}, s{sRD}
v_and_b32 v{vTR}, 1023, v{vPO}
s_lshl_b32 s4, s{sCG}, 8
s_add_u32 s4, s4, 73728
v_add_u32 v{vTR}, s4, v{vTR}
s_lshr_b32 s3, s{sSL}, 3
s_and_b32 s5, s{sSL}, 7
v_lshrrev_b32 v14, 10, v{vPO}
v_cmp_eq_u32 s[{sEX}:{sEX+1}], s5, v14
s_cmp_eq_u32 s3, s{sRG}|s_cselect_b64 s[{sEX}:{sEX+1}], s[{sEX}:{sEX+1}], 0
{f"v_cndmask_b32 v{vPO}, v{vPO}, v{vFS}, s[{sEX}:{sEX+1}]" if skip else ""}
s_lshl_b32 s5, s5, 7
s_lshl_b32 s{sLN}, s{sMT}, 2
s_lshl_b32 s3, s3, 1
s_add_u32 s{sLN}, s{sLN}, s3
s_add_u32 s{sLN}, s{sLN}, s{sA}
s_lshl_b32 s3, s{sLN}, 1
v_add_u32 v{vHO}, s3, v5
v_mul_u32_u24 v{vHO}, 18432, v{vHO}
v_lshrrev_b32 v14, 1, v6
v_lshl_add_u32 v{vHO}, v14, 10, v{vHO}
v_lshl_add_u32 v{vHO}, v7, 4, v{vHO}
v_and_b32 v14, 1, v6
v_lshl_add_u32 v{vHO}, v14, 3, v{vHO}
v_add_u32 v{vHO}, s5, v{vHO}
v_bfe_u32 v14, v{vL}, 2, 1
v_lshl_add_u32 v{vHO}, v14, 6, v{vHO}
s_lshr_b32 s4, s5, 6
v_lshl_add_u32 v{vOO}, v5, 4, s4
v_add_u32 v{vOO}, v{vOO}, v14
v_lshl_add_u32 v{vOO}, v{vOO}, 6, s{sLN}
v_mul_u32_u24 v{vOO}, 1152, v{vOO}
v_lshl_add_u32 v{vOO}, v7, 5, v{vOO}
v_lshl_add_u32 v{vOO}, v6, 3, v{vOO}
v_cmp_gt_u32 vcc, 32, v{vL}
v_cndmask_b32 v{vHO}, v{vFS}, v{vHO}, vcc
v_cndmask_b32 v{vOO}, v{vFS}, v{vOO}, vcc
s_lshl_b32 s4, s{sMT}, 11
s_add_u32 s4, s4, {F_2}
s_lshl_b32 s5, s{sSL}, 2
s_add_u32 s5, s5, s4
v_lshl_add_u32 v5, v{vL}, 7, s5
v_cmp_gt_u32 vcc, 16, v{vL}
v_cndmask_b32 v{vFS}, v{vFS}, v5, vcc
s_lshl_b32 s5, s{sSL}, 7
s_add_u32 s5, s5, s4
v_and_b32 v5, 15, v{vL}
v_lshl_add_u32 v{vFL}, v5, 2, s5
s_mov_b32 s{sLN}, {LN2!r}""".split("\n")
        late = [x.replace('|', '\n') for x in late]
        CNT = 73728; SK = 72; vMK = 16
        if LP and five:
            late = f"""v_mov_b32 v{vFS}, {OOB}
s_lshl_b32 s4, s{sMT}, 11
s_lshl_b32 s5, s{sB}, 7
s_add_u32 s4, s4, s5
s_add_u32 s4, s4, {F_2}
s_lshl_b32 s5, s{sXC}, 2
s_add_u32 s5, s5, s4
v_lshl_add_u32 v5, v{vL}, 8, s5
v_cmp_gt_u32 vcc, 8, v{vL}
v_cndmask_b32 v{vFS}, v{vFS}, v5, vcc
v_mov_b32 v{vFL}, {CNT}""".split("\n")
        elif LP:
            late = f"""v_mov_b32 v{vFS}, {OOB}
s_lshl_b32 s4, s{sMT}, 11
s_lshl_b32 s5, s{sSL}, 7
s_add_u32 s4, s4, s5
s_add_u32 s4, s4, {F_2}
v_and_b32 v5, 7, v{vL}
v_lshl_add_u32 v{vFL}, v5, 2, s4
s_lshl_b32 s5, s{sXC}, 10
s_add_u32 s{sRD}, s{sRD}, s5
v_lshrrev_b32 v{vTR}, 3, v{vL}
v_mul_u32_u24 v{vTR}, {9*8192}, v{vTR}
v_lshl_add_u32 v{vTR}, v5, 7, v{vTR}
v_add_u32 v{vTR}, s{sRD}, v{vTR}
v_lshlrev_b32 v{vRD}, 4, v5
v_lshrrev_b32 v5, 4, v{vL}
v_and_b32 v6, 3, v{vL}
v_bfe_u32 v7, v{vL}, 3, 1
v_mul_u32_u24 v14, {9*8192}, v5
v_add_u32 v{vRD}, v{vRD}, v14
v_lshl_add_u32 v{vRD}, v7, 8, v{vRD}
s_lshl_b32 s4, s{sRG}, 1
v_add_u32 v7, s4, v7
s_lshl_b32 s4, s{sA}, 7
s_add_u32 s{sRD}, s{sRD}, s4
s_lshl_b32 s4, s{sRG}, 9
s_add_u32 s{sRD}, s{sRD}, s4
s_lshl_b32 s5, s{sXC}, 7
s_lshl_b32 s{sLN}, s{sMT}, 2
s_lshl_b32 s3, s{sB}, 1
s_add_u32 s{sLN}, s{sLN}, s3
s_lshl_b32 s3, s{sLN}, 1
s_add_u32 s3, s3, s{sCG}
s_mul_i32 s3, s3, 18432
s_add_u32 s3, s3, s5
v_lshl_add_u32 v{vHT}, v{vL}, 10, s3
v_cmp_gt_u32 vcc, 18, v{vL}
v_cndmask_b32 v{vHT}, v{vFS}, v{vHT}, vcc
s_add_u32 s{sLN}, s{sLN}, s{sA}
s_lshl_b32 s3, s{sLN}, 1
v_add_u32 v{vHO}, s3, v5
v_mul_u32_u24 v{vHO}, 18432, v{vHO}
v_lshrrev_b32 v14, 1, v6
v_lshl_add_u32 v{vHO}, v14, 10, v{vHO}
v_lshl_add_u32 v{vHO}, v7, 4, v{vHO}
v_and_b32 v14, 1, v6
v_lshl_add_u32 v{vHO}, v14, 3, v{vHO}
v_add_u32 v{vHO}, s5, v{vHO}
v_bfe_u32 v14, v{vL}, 2, 1
v_lshl_add_u32 v{vHO}, v14, 6, v{vHO}
s_lshl_b32 s4, s{sXC}, 1
v_lshl_add_u32 v{vOO}, v5, 4, s4
v_add_u32 v{vOO}, v{vOO}, v14
v_lshl_add_u32 v{vOO}, v{vOO}, 6, s{sLN}
v_mul_u32_u24 v{vOO}, 1152, v{vOO}
v_lshl_add_u32 v{vOO}, v7, 5, v{vOO}
v_lshl_add_u32 v{vOO}, v6, 3, v{vOO}
v_cmp_gt_u32 vcc, 32, v{vL}
v_cndmask_b32 v{vHO}, v{vFS}, v{vHO}, vcc
v_cndmask_b32 v{vOO}, v{vFS}, v{vOO}, vcc
s_mov_b32 s{sLN}, {LN2!r}""".split("\n")
        sel = f"""v_and_b32 v5, 1, v{vL}
v_lshlrev_b32 v5, 4, v5
s_movk_i32 s3, 0x3f80
v_lshlrev_b32 v5, v5, s3
v_bfe_u32 v6, v{vL}, 1, 3""".split("\n")
        if LP and five:
            sel += [f"v_lshrrev_b32 v7, 3, v{vL}", f"v_and_b32 v7, 6, v7", f"v_sub_u32 v6, v6, v7"]
            for i in range(2): sel += [f"v_cmp_eq_u32 vcc, {i}, v6", f"v_cndmask_b32 v{SK+2+i}, 0, v5, vcc"]
            sel += [f"v_mov_b32 v{SK+i}, 0" for i in (0, 1, 4, 5)]
            sel += [f"ds_write_b64 v{vFL}, v[{SK}:{SK+1}] offset:{8*i}" for i in range(3)]
        else:
            for i in range(4): sel += [f"v_cmp_eq_u32 vcc, {i}, v6", f"v_cndmask_b32 v{SEL+i}, 0, v5, vcc"]
        sel += [f"v_mov_b32 v{vFV}, 1", f"v_mov_b32 v{vMK}, 0x10001"]
        def split_m0(d):
            out = []
            for t, tag in d:
                ls = t.split("\n")
                out += ["\n".join(ls[:-1]), (ls[-1], tag)]
            return out
        def spread_in(seq, dma, every):
            items = split_m0(dma); out = []; n = 0; j = 0
            for x in seq:
                out.append(x)
                if isinstance(x, str) and x.startswith("v_mfma"):
                    n += 1
                    if j < len(items) and (j % 2 == 1 or n % every == every-1): out.append(items[j]); j += 1
            return out + items[j:]
        k.wait_lg(); k.wait_vm("A0", "XF"); k("s_barrier")
        if early and five:
            k(f"s_cmp_eq_u32 s{sAct}, 0\ns_cbranch_scc1 {name}_xsig\ns_cmp_lg_u32 s{sW}, 0\ns_cbranch_scc1 {name}_xsig\nbuffer_store_dword v{vSW}, v{vSR}, {S4(sF)}, 0 offen sc1\n{name}_xsig:")
        st(6)
        if prio == ("lo" if five else "hi"): k("s_setprio 1")
        def glu(i):
            out = []
            for np_ in range(2):
                g, u = acc(2*i, 2*np_), acc(2*i+1, 2*np_)
                out += [f"v_exp_f32 v{g+r}, -v{g+r}" for r in range(8)]
                out += [f"v_pk_add_f32 {vr(g+r, 2)}, {vr(g+r, 2)}, s[4:5]" for r in range(0, 8, 2)] if pk else [f"v_add_f32 v{g+r}, 1.0, v{g+r}" for r in range(8)]
                out += [f"v_rcp_f32 v{g+r}, v{g+r}" for r in range(8)]
                out += [f"v_pk_mul_f32 {vr(g+r, 2)}, {vr(g+r, 2)}, {vr(u+r, 2)}" for r in range(0, 8, 2)] if pk else [f"v_mul_f32 v{g+r}, v{g+r}, v{u+r}" for r in range(8)]
                for q in range(2): out += [f"v_cvt_pk_bf16_f32 v{u+4*q}, v{g+4*q}, v{g+4*q+1}", f"v_cvt_pk_bf16_f32 v{u+4*q+1}, v{g+4*q+2}, v{g+4*q+3}"]
            return out
        hwrite = lambda i: [f"ds_write_b64 v{vHW if i % 2 == 0 else vHW2}, {vr(acc(2*i+1, nt), 2)} offset:{nt*9*1024 + (i >> 1)*1024}" for nt in range(4)]
        xread = lambda s: [f"ds_read_b128 {vr(XB[s % 2]+4*nt, 4)}, v{vXr[s % 3]} offset:{nt*1024}" for nt in range(4)]
        NS = 16 if fuse else 18
        for s in range(NS):
            put(xread(s))
            for f in range(look): put(wread(s, f))
            dma = dmaX(s+2) + dmaW(s+2, not five) if s+2 < 18 else dmaB(s-16, five)
            if early and s == 0: dma = dmaW(2, not five) + [("s_nop 0\n" + xflag(sLN), "XQ")]
            if late1 == 2 and s == 0: dma = dmaW(1, not five) + dma
            if early and s == 1:
                spin(f"{name}_{P}y", xflag(sLN), f"v_cmp_eq_u32 vcc, 0, v{vQ}")
                dma = dmaX(2) + dma
            if not five: dma = dma + roll(s+ahead)
            if LP and five and istage <= s < istage+4:
                dma = dma + [(f"s_add_u32 s94, s{sPO}, {(5+s-istage)*8192}\nbuffer_store_dwordx4 v[28:31], v{vPO}, {S4(sP)}, s94 offen offset:{h*128} sc1", "I") for h in range(2)]
            seq = sum((mfa(s-1, f) for f in range(nf-nd, nf)), []) if s > 0 else []
            for f in range(nf-nd):
                extra = late[f*len(late)//(nf-nd):(f+1)*len(late)//(nf-nd)] if s == 17 else []
                seq += interleave(mfa(s, f), (wread(s, f+look) if f+look < nf else []) + extra)
            put(spread_in(seq, dma, spread if len(dma) < 8 else 2))
            if s == dstage and "notouch" not in abl: touch([sD], f"{name}_{P}td", 27)
            xl = f"buffer_load_dword v{vQ}, v{vZ}, {S4(sF)}, s{sF1} offen sc1"
            if LP and five and s == tstage:
                k.wait_vm("I")
                k(f"""v_lshrrev_b32 v{vT0}, 4, v{vL}
v_lshlrev_b32 v{vT0}, 13, v{vT0}
v_bfe_u32 v{vT1}, v{vL}, 1, 3
v_lshl_add_u32 v{vT0}, v{vT1}, 10, v{vT0}
v_and_b32 v{vT1}, 1, v{vL}
v_lshl_add_u32 v{vT0}, v{vT1}, 7, v{vT0}
s_add_u32 s3, s{sPO}, {5*8192}
v_mov_b32 v{vT1}, s{sLoc}""")
                k(f"buffer_load_dword v28, v{vT0}, {S4(sP)}, s3 offen", tag="touch")
                k(f"buffer_store_dword v{vT1}, v{vZ}, {S4(sF)}, s{sF1} offen sc1")
            if LP and not five and s == 13: k(xl)
            if LP and not five and s == 15:
                spin(f"{name}_xid", xl, f"v_cmp_eq_u32 vcc, 0, v{vQ}")
                k(f"v_readfirstlane_b32 s3, v{vQ}\ns_cmp_eq_u32 s3, s{sLoc}\ns_cselect_b32 s{sLoc}, {0 if 'remote' in abl else 1}, 0")
            k.wait_lg(); k.wait_vm(f"A{s+1}", "A17" if fuse and s == 15 else "-"); k("s_barrier")
        if fuse:
            n0 = 16*nf
            wj = lambda j: WR + 4*((n0+j) % 8)
            def rd(j):
                f, s = j >> 1, 16 + (j & 1); i, u = f >> 1, f & 1
                va = (vWA if i % 2 == 0 else vWB)[s % 3]; d = wj(j)
                return [f"ds_read_b64_tr_b16 v[{d+2*h}:{d+2*h+1}], v{va} offset:{h*4*576 + i*32 + u*18432}" for h in range(2)]
            def mm(f): return [f"{MF} {vr(acc(f, nt), 4)}, {vr(wj(2*f+c), 4)}, {vr(XB[c]+4*nt, 4)}, {vr(acc(f, nt), 4)}" for nt in range(4) for c in range(2)]
            put(xread(16))
            for j in range(4): put(rd(j))
            put(spread_in(sum((mfa(15, f) for f in range(nf-nd, nf)), []), dmaB(0, five), 2))
            put(xread(17))
            for f in range(nf):
                fill = (rd(2*f+4) + rd(2*f+5)) if f+2 < nf else []
                if f < 2: fill = fill + late[f*len(late)//2:(f+1)*len(late)//2]
                else:
                    gl = glu(f//2 - 1); fill = fill + gl[(f % 2)*len(gl)//2:(f % 2 + 1)*len(gl)//2]
                put(interleave(mm(f), fill))
            k.wait_lg(); k("s_barrier")
            st(7)
            put(dmaB(1, five))
            for i in range(nt5-1): put(hwrite(i))
            put(sel)
            put(glu(nt5-1)); put(hwrite(nt5-1))
        else:
            put(sum((mfa(17, f) for f in range(nf-nd, nf)), []))
            st(7)
            k("s_mov_b32 s4, 1.0\ns_mov_b32 s5, 1.0")
            for i in range(nt5): put(glu(i)); put(hwrite(i))
            put(sel)
        if prio: k("s_setprio 0")
        k.wait_lg(); k.wait_vm("B0"); k("s_barrier")
        st(8); stb(0)
        if "dbl" in abl: k(f"s_cmp_eq_u32 s{sB}, 0\ns_mov_b32 s101, {288*1152}\ns_cselect_b32 s101, s101, {-288*1152}")
        if "cnt" in abl: k("s_mov_b32 s99, 0")
        HB = 112; AB = [80, 96]; WG = [28, 40, 52]; SD = 64
        def hreg(kp, nt): return HB + (kp*4+nt)*4
        def wgreg(gi, c): return WG[gi] + 4*c
        def wdread(u, gi):
            out = []
            for c in range(3):
                d = wgreg(gi, c); kp = gi*3+c
                out += [f"ds_read_b64_tr_b16 v[{d+2*h}:{d+2*h+1}], v{vWD[u % 4]} offset:{kp*4096 + h*2048}" for h in range(2)]
            return out
        def mfb(u, gi):
            out = []
            for nt in range(4):
                a = AB[u % 2]+4*nt
                for c in range(3):
                    out.append(f"{MF} {vr(a, 4)}, {vr(wgreg(gi, c), 4)}, {vr(hreg(gi*3+c, nt), 4)}, {'0' if gi == 0 and c == 0 else vr(a, 4)}")
            return out
        cvt = lambda u, h: [f"v_cvt_pk_bf16_f32 v{AB[u % 2]+8*h+q}, v{AB[u % 2]+8*h+2*q}, v{AB[u % 2]+8*h+2*q+1}" for q in range(4)]
        hread = lambda kp: [f"ds_read_b128 {vr(hreg(kp, nt), 4)}, v{vHR} offset:{(nt*9+kp)*1024}" for nt in range(4)]
        dmat = lambda t: (dmaB(2, five) + dmaB(3, five)) if t == 1 else (dmaB(t+2, five) if 2 <= t <= 6 else [])
        def phaseB_L():
            rounds = lambda ph: list(range(PH[ph-1]+1 if ph else 0, PH[ph]+1))
            TAG = lambda u: [0x1, 0x10000, 0x10001][(u+3)//4]
            alias = lambda u: 5 + (u-5) % 4
            def endslot(t):
                if t <= 7: k.wait_lg(); k.wait_vm(f"B{t+1}"); k("s_barrier")
                if t < 9: stb(t+1)
            arr_at = {c+4: ph for ph, c in enumerate(PH) if c+4 <= 9}
            tch_at = {t+1: ph for t, ph in arr_at.items() if t+1 <= 8 and ph < ntouch}
            if not five:
                def send(u):
                    lab = f"{name}_s{u}"
                    txt = f"s_add_u32 s3, s{sPO}, {alias(u)*8192}\n" + "\n".join(f"buffer_store_dwordx4 {vr(AB[u % 2]+8*h, 4)}, v{vPO}, {S4(sP)}, s3 offen offset:{h*128} POL" for h in range(2))
                    k(f"s_cmp_eq_u32 s{sLoc}, 0\ns_cbranch_scc1 {lab}_r")
                    q0 = k.seq
                    k(txt.replace("POL", ""))
                    k(f"s_branch {lab}_d\n{lab}_r:")
                    k.seq = q0
                    k(txt.replace("POL", "sc1"))
                    k.seq += 1
                    k(f"{lab}_d:")
                tag = lambda u, h: [f"s_mov_b32 s4, {TAG(u)}\nv_bfi_b32 v{AB[u % 2]+8*h}, v{vMK}, s4, v{AB[u % 2]+8*h}"]
                poll = lambda ph, tv: f"s_mov_b32 s3, {ph*32768}\nbuffer_load_dword v{tv}, v{vFL}, {S4(sF)}, s3 offen sc1"
                def check(ph, tv): spin(f"{name}_c{ph}", poll(ph, tv).split("\n")[1], f"s_mov_b32 s3, {ph*32768}\nv_cmp_eq_u32 vcc, 0, v{tv}")
                for t in range(9):
                    put(wdread(t, 0))
                    if t == 0:
                        for kp in range(3): put(hread(kp))
                        put(interleave(mfb(0, 0), wdread(0, 1) + hread(3)+hread(4)+hread(5)))
                        put(interleave(mfb(0, 1), wdread(0, 2) + hread(6)+hread(7)+hread(8)))
                    else:
                        d = mfb(t-1, 2)
                        put(d[:9]); put(interleave(d[9:], cvt(t-1, 0) + tag(t-1, 0)))
                        g0 = mfb(t, 0); g1 = mfb(t, 1)
                        put(interleave(g0[:3], wdread(t, 1)[:2] + cvt(t-1, 1) + tag(t-1, 1)))
                        send(t-1)
                        dm = dmat(t); h = (len(dm)+1)//2
                        put(spread_in(interleave(g0[3:], wdread(t, 1)[2:] + [""]*5), dm[:h], 2 if h <= 5 else 1))
                        put(spread_in(interleave(g1, wdread(t, 2) + [""]*6), dm[h:], 2 if h <= 5 else 1))
                        if t in tch_at:
                            ph = tch_at[t]; check(ph, 64)
                            if ph == 0: k(f"buffer_load_dword v65, v{vHT}, {S4(sH)}, 0 offen sc1", tag="touch")
                            rr = rounds(ph); assert len(rr) <= 4
                            k(f"s_cmp_lt_u32 s{sCG}, {len(rr)}\ns_cselect_b32 s3, s{sCG}, {OOB >> 13}\ns_add_u32 s3, s3, {rr[0]}\ns_lshl_b32 s3, s3, 13\nbuffer_load_dword v65, v{vTR}, {S4(sP)}, s3 offen sc1", tag="touch")
                    endslot(t)
                    if t+1 in tch_at: k(poll(tch_at[t+1], 64))
                first = len(tch_at)
                put(mfb(8, 2)); put(cvt(8, 0) + tag(8, 0) + cvt(8, 1) + tag(8, 1)); send(8)
                st(9)
                home = lambda r: (HB+16*r, HB+16*r+8, HB+16*r+12)
                def rloads(r):
                    RB, HV, DA = home(r)
                    for pg in range(2): k(f"s_add_u32 s3, s{sRD}, {r*8192 + pg*4*9*8192}\nbuffer_load_dwordx4 {vr(RB+4*pg, 4)}, v{vRD}, {S4(sP)}, s3 offen sc1")
                    k(f"s_movk_i32 s3, {r*2048}\nbuffer_load_dwordx2 {vr(HV, 2)}, v{vHO}, {S4(sH)}, s3 offen sc1")
                def rsum(r):
                    RB, HV, DA = home(r)
                    for pg in range(2): k(f"{MF} {vr(DA, 4)}, {vr(SEL, 4)}, {vr(RB+4*pg, 4)}, {'0' if pg == 0 else vr(DA, 4)}")
                    k(f"v_lshlrev_b32 v{RB}, 16, v{HV}\nv_and_b32 v{RB+1}, 0xffff0000, v{HV}\nv_lshlrev_b32 v{RB+2}, 16, v{HV+1}\nv_and_b32 v{RB+3}, 0xffff0000, v{HV+1}")
                def rfin(r):
                    RB, HV, DA = home(r)
                    for q in range(4): k(f"v_fma_f32 v{RB+q}, v{DA+q}, s{sLN}, v{RB+q}")
                    k(f"v_cvt_pk_bf16_f32 v{HV}, v{RB}, v{RB+1}\nv_cvt_pk_bf16_f32 v{HV+1}, v{RB+2}, v{RB+3}")
                rout = lambda r: k(f"buffer_store_dwordx2 {vr(home(r)[1], 2)}, v{vOO}, {S4(sO)}, 0 offen offset:{r*128} {OUTPOL}")
                pend = [r for ph in range(first) for r in rounds(ph)]
                for r in pend: rloads(r)
                for ph in range(first, len(PH)):
                    k(poll(ph, 64))
                    for r in pend: rsum(r)
                    for r in pend: rfin(r)
                    check(ph, 64)
                    for r in rounds(ph): rloads(r)
                    for r in pend: rout(r)
                    pend = rounds(ph)
                for r in pend: rsum(r)
                for r in pend: rfin(r); rout(r)
            else:
                sld = lambda u: f"s_add_u32 s3, s{sPO}, {alias(u)*8192}\n" + "\n".join(f"buffer_load_dwordx4 {vr(SD+4*h, 4)}, v{vPO}, {S4(sP)}, s3 offen offset:{h*128} sc1" for h in range(2))
                def add(u):
                    if "nol1chk" not in abl:
                        spin(f"{name}_k{u}", sld(u), f"s_mov_b32 s4, {TAG(u)}\nv_and_b32 v78, v{vMK}, v{SD}\nv_and_b32 v79, v{vMK}, v{SD+4}\nv_xor_b32 v78, s4, v78\nv_xor_b32 v79, s4, v79\nv_or_b32 v78, v78, v79\nv_cmp_ne_u32 vcc, 0, v78")
                    put([f"{MF} {vr(AB[u % 2]+8*h+4*q, 4)}, {vr(SK+2-2*q, 4)}, {vr(SD+4*h, 4)}, {vr(AB[u % 2]+8*h+4*q, 4)}" for h in range(2) for q in range(2)])
                pst = lambda u: [(f"s_add_u32 s3, s{sPO}, {u*8192}\nbuffer_store_dwordx4 {vr(AB[u % 2]+8*h, 4)}, v{vPO}, {S4(sP)}, s3 offen offset:{h*128} sc1", f"P{u}") for h in range(2)]
                def arrive1(ph):
                    k.wait_vm(f"P{PH[ph]}")
                    k(f"s_mov_b64 exec, 1\nds_add_rtn_u32 v7, v{vFL}, v{vFV} offset:{ph*4}\ns_mov_b64 exec, -1")
                def arrive2(ph):
                    k(f"v_readfirstlane_b32 s3, v7\ns_cmp_lg_u32 s3, 3\ns_cbranch_scc1 {name}_ar{ph}\ns_mov_b32 s3, {ph*32768}\nbuffer_store_dword v{vFV}, v{vFS}, {S4(sF)}, s3 offen sc1\n{name}_ar{ph}:")
                for kp in range(9): put(hread(kp))
                endslot(0)
                for t in range(1, 10):
                    u = t-1
                    put(wdread(u, 0))
                    if u >= 1: k(sld(u-1))
                    if u >= 2: put(pst(u-2))
                    if u >= 1: put(mfb(u-1, 2))
                    put(interleave(mfb(u, 0), wdread(u, 1) + [""]*6))
                    g1 = mfb(u, 1)
                    put(interleave(g1[:6], wdread(u, 2)))
                    if u >= 1:
                        add(u-1)
                        if t == 9: k(sld(8))
                        if t in arr_at: arrive1(arr_at[t])
                        put(g1[6:9])
                        put(interleave(g1[9:], cvt(u-1, 0) + cvt(u-1, 1)))
                        if t in arr_at: arrive2(arr_at[t])
                    else: put(g1[6:])
                    endslot(t)
                put(pst(7))
                put(mfb(8, 2)); add(8)
                st(9)
                p8 = pst(8)
                put(cvt(8, 0) + p8[:1] + cvt(8, 1) + p8[1:])
                for ph in range(len(arr_at), len(PH)): arrive1(ph); arrive2(ph)
        def phaseB_S():
            OWN = 73728
            pst = lambda u, h: (f"s_add_u32 s3, s{sPO}, {u*16384}\nbuffer_store_dwordx4 {vr(AB[u % 2]+8*h, 4)}, v{vPO}, {S4(sP)}, s3 offen offset:{h*128} sc1", f"P{u}")
            own = lambda u: [f"s_mov_b64 exec, s[{sEX}:{sEX+1}]\n" + "\n".join(f"ds_write_b128 v{vTR}, {vr(AB[u % 2]+8*h, 4)} offset:{u*1024+h*128}" for h in range(2)) + "\ns_mov_b64 exec, -1"] if skip else []
            epib = lambda u: cvt(u, 0) + [pst(u, 0)] + cvt(u, 1) + ([] if "half" in abl else [pst(u, 1)]) + own(u)
            def signal(ph):
                if five: k(f"s_cmp_lg_u32 s{sW}, 0\ns_cbranch_scc1 {name}_sig{ph}\ns_mov_b32 s3, {ph*32768}\nbuffer_store_dword v{vFV}, v{vFS}, {S4(sF)}, s3 offen sc1\n{name}_sig{ph}:")
            poll = lambda ph, tv: f"s_mov_b32 s3, {ph*32768}\nbuffer_load_dword v{tv}, v{vFL}, {S4(sF)}, s3 offen sc1"
            def check(ph, tv): spin(f"{name}_{P}c{ph}", poll(ph, tv).split("\n")[1], f"s_mov_b32 s3, {ph*32768}\nv_cmp_eq_u32 vcc, 0, v{tv}")
            rounds = lambda ph: list(range(PH[ph-1]+1 if ph else 0, PH[ph]+1))
            mine = lambda rr: [r for r in rr if (r % 2 == 0) == five]
            sig_at = {c+lag+1: ph for ph, c in enumerate(PH) if c+lag+1 <= 8}
            rd_at = {u+1: ph for u, ph in sig_at.items() if u+1 <= 8 and ph < inl}
            inloop = [r for ph in rd_at.values() for r in rounds(ph)]
            home = lambda r: (64, 6, 24) if r in inloop else (HB+24*(r >> 1), HB+24*(r >> 1)+16, HB+24*(r >> 1)+20)
            def rloads(r):
                RB, HV, DA = home(r); out = []
                for pg in range(2 if "half" in abl else 4):
                    ld = f"buffer_load_dwordx4 {vr(RB+4*pg, 4)}, v{vRD}, {S4(sP)}, s3 offen sc1"
                    if skip and pg == 0: ld = f"s_mov_b64 exec, 0xffff\nds_read_b128 {vr(RB, 4)}, v{vHT} offset:{r*1024}\ns_mov_b32 exec_hi, -1\ns_mov_b32 exec_lo, 0xffff0000\n{ld}\ns_mov_b64 exec, -1"
                    out.append(f"s_add_u32 s3, s{sRP+pg}, {r*16384}\n{ld}")
                out.append(f"s_movk_i32 s3, {r*2048}\nbuffer_load_dwordx2 {vr(HV, 2)}, v{vHO}, {S4(sH)}, s3 offen sc1")
                return out
            def rsum(r):
                RB, HV, DA = home(r)
                return [f"{MF} {vr(DA, 4)}, {vr(SEL, 4)}, {vr(RB+4*pg, 4)}, {'0' if pg == 3 else vr(DA, 4)}" for pg in (3, 2, 1, 0)]
            def rfin(r):
                RB, HV, DA = home(r)
                return [f"v_lshlrev_b32 v{RB}, 16, v{HV}", f"v_and_b32 v{RB+1}, 0xffff0000, v{HV}", f"v_lshlrev_b32 v{RB+2}, 16, v{HV+1}", f"v_and_b32 v{RB+3}, 0xffff0000, v{HV+1}"] + \
                       [f"v_fma_f32 v{RB+q}, v{DA+q}, s{sLN}, v{RB+q}" for q in range(4)] + \
                       [f"v_cvt_pk_bf16_f32 v{HV}, v{RB}, v{RB+1}", f"v_cvt_pk_bf16_f32 v{HV+1}, v{RB+2}, v{RB+3}"]
            rout = lambda r: [f"buffer_store_dwordx2 {vr(home(r)[1], 2)}, v{vOO}, {S4(sO)}, 0 offen offset:{r*128} {OUTPOL}"]
            pend = []
            for u in range(9):
                put(wdread(u, 0))
                if u in sig_at: signal(sig_at[u])
                if u == 0:
                    for kp in range(3): put(hread(kp))
                    put(interleave(mfb(0, 0), wdread(0, 1) + hread(3)+hread(4)+hread(5)))
                    put(interleave(mfb(0, 1), wdread(0, 2) + hread(6)+hread(7)+hread(8)))
                else:
                    put(spread_in(mfb(u-1, 2), dmat(u), 2 if u > 1 and 'dbl' not in abl else 1))
                    put(interleave(mfb(u, 0), wdread(u, 1) + epib(u-1)))
                    g1 = mfb(u, 1); fill = []
                    if pend and u not in rd_at:
                        r = pend.pop(); g1 = g1[:6] + rsum(r) + g1[6:]; fill = [""]*8 + rfin(r) + rout(r)
                    elif u in rd_at and mine(rounds(rd_at[u])):
                        assert not pend and len(mine(rounds(rd_at[u]))) == 1
                        check(rd_at[u], 19); pend = mine(rounds(rd_at[u])); fill = rloads(pend[0])
                    put(interleave(g1[:6], wdread(u, 2))); put(interleave(g1[6:], fill) if fill else g1[6:])
                    if u == 8:
                        for ph in sig_at.values():
                            if ph not in rd_at.values(): k(poll(ph, 28+ph))
                if u < 8:
                    k.wait_lg(); k.wait_vm(f"B{u+1}", f"P{PH[sig_at[u+1]]}" if u+1 in sig_at else "-"); k("s_barrier")
                if u+1 in rd_at and mine(rounds(rd_at[u+1])): k(poll(rd_at[u+1], 19))
                if u < 9: stb(u+1)
            put(mfb(8, 2))
            st(9)
            put(epib(8))
            for ph in sig_at.values():
                if ph in rd_at.values(): continue
                check(ph, 28+ph)
                for r in mine(rounds(ph)): put(rloads(r)); pend.append(r)
            for ph in range(len(sig_at), len(PH)):
                k.wait_lg(); k.wait_vm(f"P{PH[ph]}"); k("s_barrier")
                signal(ph)
                k(poll(ph, 19))
                done = pend[:1] if ph == len(PH)-1 else []
                for r in done: put(rsum(r)); put(rfin(r))
                check(ph, 19)
                for r in mine(rounds(ph)): put(rloads(r)); pend.append(r)
                for r in done: put(rout(r)); pend.remove(r)
            for r in pend: put(rsum(r)); put(rfin(r)); put(rout(r))
        phaseB_L() if LP else phaseB_S()
        if stamp:
            k("s_waitcnt vmcnt(0) lgkmcnt(0)\ns_memrealtime s[4:5]\ns_waitcnt lgkmcnt(0)")
            for i in range(10): k(f"v_mov_b32 v{28+i}, s{60+2*i}")
            k(f"""v_mov_b32 v38, s4
v_mov_b32 v39, s99
s_lshl_b32 s3, s2, 3
s_add_u32 s3, s3, s{sW}
s_lshl_b32 s3, s3, 6
s_add_u32 s3, s3, {O_STAMP}
v_mov_b32 v40, s3
global_store_dwordx4 v40, v[28:31], s[6:7]
global_store_dwordx4 v40, v[32:35], s[6:7] offset:16
global_store_dwordx4 v40, v[36:39], s[6:7] offset:32""")
            if "orc" in abl and not five:
                X = int(abl.split("orc")[1][:2]); which = abl.split("orc")[1][2:3] or "a"
                k(f"""s_cmp_lg_u32 s2, 0
s_cbranch_scc1 {name}_noorc
s_cmp_lg_u32 s{sW}, 4
s_cbranch_scc1 {name}_noorc
v_mov_b32 v41, {O_STAMP + 262144}
global_load_dword v44, v41, s[6:7]
s_waitcnt vmcnt(0)
v_readfirstlane_b32 s3, v44
s_sub_u32 s3, s{4 if which == 'a' else 60+2*int(which)}, s3
s_cmp_lt_u32 s3, {X*100}
s_cbranch_scc1 {name}_noorc
s_movk_i32 s3, 60
{name}_orcl:
s_sleep 64
s_sub_u32 s3, s3, 1
s_cbranch_scc0 {name}_orcl
{name}_noorc:""")
                k.saved.pop(f"{name}_orcl", None)
            if "until" in abl and not five:
                k(f"""s_cmp_lg_u32 s2, 0
s_cbranch_scc1 {name}_nount
s_cmp_lg_u32 s{sW}, 4
s_cbranch_scc1 {name}_nount
v_mov_b32 v41, {O_STAMP + 262144}
global_load_dword v44, v41, s[6:7]
s_waitcnt vmcnt(0)
v_readfirstlane_b32 s3, v44
{name}_untl:
s_memrealtime s[4:5]
s_waitcnt lgkmcnt(0)
s_sub_u32 s4, s4, s3
s_cmp_lt_u32 s4, 8000
s_cbranch_scc1 {name}_untl
{name}_nount:""")
                k.saved.pop(f"{name}_untl", None)
            if "dbg" in abl and not five:
                k(f"""s_cmp_lg_u32 s2, 0
s_cbranch_scc1 {name}_nodbg
s_cmp_lg_u32 s{sW}, 4
s_cbranch_scc1 {name}_nodbg
s_load_dwordx2 s[8:9], s[0:1], 64
v_mov_b32 v41, {O_STAMP + 262144}
global_load_dwordx4 v[44:47], v41, s[6:7]
global_load_dwordx4 v[48:51], v41, s[6:7] offset:16
v_mov_b32 v41, {O_STAMP + 2*262144}
global_load_dwordx4 v[52:55], v41, s[6:7]
global_load_dwordx4 v[56:59], v41, s[6:7] offset:16
s_waitcnt vmcnt(0) lgkmcnt(0)
s_sub_u32 s8, s8, {int(abl.split('dbg')[1][0])*512}
s_subb_u32 s9, s9, 0
v_sub_u32 v60, v46, v44
v_sub_u32 v61, v50, v44
v_sub_u32 v62, v52, v44
v_sub_u32 v63, v57, v44""")
                for i in range(11): k(f"v_sub_u32 v{64+i}, v{28+i}, v44")
                k(f"""v_mov_b32 v75, 12345
v_mov_b32 v41, 0
global_store_dwordx4 v41, v[60:63], s[8:9]
global_store_dwordx4 v41, v[64:67], s[8:9] offset:16
global_store_dwordx4 v41, v[68:71], s[8:9] offset:32
global_store_dwordx4 v41, v[72:75], s[8:9] offset:48
{name}_nodbg:""")
    k(f"s_cmp_ge_u32 s{sW}, 4\ns_cbranch_scc1 {name}_p4")
    path(True)
    k(f"s_endpgm\n{name}_p4:")
    path(False)
    k(f"{name}_end:")
    return k
```

```python
from asmlib import *
from layout import *
from pf import ws_srd
import struct
def fl(x): return "0x%08x" % struct.unpack("<I", struct.pack("<f", x))[0]
MF32 = "v_mfma_f32_16x16x32_bf16"
MF16 = "v_mfma_f32_16x16x16_bf16"

def stamp(k, on, i):
    if on: k(f"s_memrealtime s[{60+2*i}:{61+2*i}]")
def stamp_out(k, on, slot, wavereg, n):
    if not on: return
    k("s_waitcnt vmcnt(0)"); stamp(k, on, n)
    k("s_waitcnt lgkmcnt(0)")
    for i in range(8): k(f"v_mov_b32 v{8+i}, s{60+2*i}" if i <= n else f"v_mov_b32 v{8+i}, 0")
    k(f"""
s_lshl_b32 s3, s2, 3
s_add_u32 s3, s3, {wavereg}
s_lshl_b32 s3, s3, 5
s_add_u32 s3, s3, {O_STAMP + 262144*slot}
v_mov_b32 v16, s3
global_store_dwordx4 v16, v[8:11], s[6:7]
global_store_dwordx4 v16, v[12:15], s[6:7] offset:16
""")

def build_p1(st=False, FPOL="nt", P1PRIO=0, SELFPF=0, SIDEFIRST=0, TLB=0, XNT="nt", MERGE=0, NST=0, NPOL=""):
    NEXT = "pf" if MERGE else "p2"
    XL = 9216
    EX = 4*XL
    HB = 8192+6144
    WL = EX + HB
    k = K("p1", 256, 512, lds=WL+33344, vgpr=136)
    sW, sS2, sJT, sHF, sTY = 30, 31, 32, 50, 51
    stamp(k, st, 0)
    if SELFPF:
        k(f"""s_getpc_b64 s[4:5]
p1_pc0:
v_lshlrev_b32 v1, 7, v0
v_min_u32 v1, p1_code_end-p1_pc0-4, v1""")
        k("global_load_dword v19, v1, s[4:5]", tag="touch")
    k(f"""
s_setprio 3
s_load_dwordx4 s[44:47], s[0:1], 0
s_load_dwordx2 s[48:49], s[0:1], 16
s_load_dwordx2 s[6:7], s[0:1], 72
s_cmp_ge_u32 s2, 256
s_cbranch_scc1 p1_end
v_lshrrev_b32 v1, 6, v0
v_and_b32 v0, 63, v0
v_readfirstlane_b32 s3, v1
v_lshrrev_b32 v2, 4, v0
v_and_b32 v3, 15, v0
s_and_b32 s{sW}, s3, 3
s_lshr_b32 s{sHF}, s3, 2
s_lshr_b32 s{sTY}, s2, 6
s_and_b32 s{sS2}, s2, 63
s_lshl_b32 s{sJT}, s{sTY}, 1
s_add_u32 s{sJT}, s{sJT}, s{sHF}
s_lshl_b32 s2, s{sJT}, 6
s_add_u32 s2, s2, s{sS2}
s_cmp_ge_u32 s{sJT}, 5
s_cbranch_scc1 p1_side
v_lshrrev_b32 v4, 3, v0
v_and_b32 v5, 7, v0
s_lshl_b32 s3, s{sW}, 9
s_add_u32 s3, s3, s{sS2}
v_lshl_add_u32 v6, v4, 6, s3
v_mul_u32_u24 v6, 1152, v6
v_lshlrev_b32 v4, 1, v4
v_and_b32 v4, 4, v4
v_xor_b32 v5, v5, v4
v_lshl_add_u32 v6, v5, 4, v6
s_mul_i32 s34, s{sW}, {XL}
s_waitcnt lgkmcnt(0)
""")
    srd(k, 8, 44, N_H)
    X, FR, FI, AF, AC, MA, TW, ON, SM = 20, 28, 46, 64, 100, 116, 124, 20, 28+0
    xl = lambda i: k(f"s_add_u32 m0, s34, {i*896}\nbuffer_load_dwordx4 v6, s[8:11], 0 offen offset:{i*128} {XNT} lds", tag="X")
    k(f"s_cmp_lg_u32 s{sHF}, 0\ns_cbranch_scc1 p1_x2")
    for i in range(5): xl(i)
    k(f"s_cmp_lg_u32 s{sTY}, 2\ns_cbranch_scc1 p1_x3\np1_x2:")
    for i in range(5, 9): xl(i)
    k("p1_x3:")
    k("s_setprio 0")
    ws_srd(k, 12, O_U, N_U)
    k(f"""
v_and_b32 v7, 3, v0
v_lshrrev_b32 v9, 2, v0
v_lshlrev_b32 v9, 3, v9
v_lshlrev_b32 v4, 5, v7
v_and_b32 v4, 64, v4
v_lshl_add_u32 v7, v7, 7, s34
v_xor_b32 v8, v9, v4
v_add_u32 v8, v8, v7
v_xor_b32 v5, 64, v8
v_lshrrev_b32 v4, 1, v2
v_lshl_add_u32 v5, v4, 10, v5
v_lshl_add_u32 v7, v4, 12, v8
s_lshl_b32 s3, s{sJT}, 4
v_add_u32 v13, s3, v3
v_cvt_f32_u32 v9, v13
v_lshlrev_b32 v11, 4, v0
s_mul_i32 s3, s{sHF}, {HB}
s_add_u32 s3, s3, {EX}
v_add_u32 v11, s3, v11
s_lshr_b32 s3, s{sW}, 1
s_lshl_b32 s3, s3, 10
s_and_b32 s4, s{sW}, 1
s_lshl_b32 s4, s4, 3
s_add_u32 s3, s3, s4
v_add_u32 v10, s3, v11
s_lshl_b32 s3, s{sW}, 9
s_add_u32 s3, s3, s{sS2}
v_lshl_add_u32 v12, v2, 7, s3
v_mul_u32_u24 v12, {ROWB}, v12
v_lshl_add_u32 v12, v13, 4, v12
v_cvt_f32_u32 v14, v2
v_mul_f32 v15, {fl(1/144)}, v9
v_mul_f32 v14, 4.0, v14
v_mul_f32 v16, v14, v15
""")
    t = 132
    k(f"""v_lshlrev_b32 v17, 31, v13
v_lshrrev_b32 v18, 16, v17
v_or_b32 v17, v17, v18
v_lshrrev_b32 v18, 1, v2
v_cvt_f32_u32 v18, v18
v_mul_f32 v18, 0x42800000, v18
v_fma_f32 v18, v18, v15, v16""")
    FL = 8192
    k(f"""s_lshl_b32 s3, s{sW}, 1
s_cmp_ge_u32 s{sW}, 2
s_cselect_b32 s4, 12, 0
s_add_u32 s4, s4, s3
v_cvt_f32_u32 v19, s4
v_fma_f32 v16, v19, v15, v16
s_and_b32 s3, s3, 2
v_cvt_f32_u32 v19, s3
v_fma_f32 v18, v19, v15, v18
s_lshl_b32 s4, s{sW}, 2
v_add_u32 v19, s4, v11
s_lshl_b32 s3, s3, 1
v_add_u32 v1, s3, v11""")
    for i, (c0, base) in enumerate(((0, 16), (32, 16), (64, 18))):
        k(f"v_fmamk_f32 v{t}, v15, {fl(float(c0))}, v{base}\nv_add_f32 v{t+1}, v{t}, v15")
        k(f"v_cos_f32 v{t+2}, v{t}\nv_cos_f32 v{t+3}, v{t+1}\nv_sin_f32 v{t}, v{t}\nv_sin_f32 v{t+1}, v{t+1}")
        k(f"v_cvt_pk_bf16_f32 v{FR+i}, v{t+2}, v{t+3}\nv_cvt_pk_bf16_f32 v{FI+i}, -v{t}, -v{t+1}")
        k(f"ds_write_b32 v{19 if i < 2 else 1}, v{FR+i} offset:{FL+i*2048}\nds_write_b32 v{19 if i < 2 else 1}, v{FI+i} offset:{FL+i*2048+1024}")
    k(f"v_mov_b32 v{TW}, 1.0\nv_mov_b32 v{TW+4}, 0")
    for q in range(1, 4):
        k(f"v_mul_f32 v{t}, {fl(q/576)}, v9\nv_cos_f32 v{TW+q}, v{t}\nv_sin_f32 v{TW+4+q}, v{t}")
    k(f"""
v_lshrrev_b32 v14, 1, v3
s_lshl_b32 s3, s{sW}, 3
v_add_u32 v14, s3, v14
v_lshl_add_u32 v15, v2, 6, s{sS2}
v_mul_u32_u24 v15, v14, v15
v_and_b32 v16, 1, v3
v_lshl_add_u32 v15, v16, 9, v15
v_cvt_f32_u32 v15, v15
v_mul_f32 v15, {fl(1/2048)}, v15
v_cvt_f32_u32 v14, v14
""")
    for kk in range(2):
        for tt in range(4):
            k(f"v_fmamk_f32 v{t}, v14, {fl((16*kk+4*tt)/32)}, v15\nv_cos_f32 v{t+1}, v{t}\nv_sin_f32 v{t}, v{t}\nv_cvt_pk_bf16_f32 v{MA+4*kk+tt}, v{t+1}, v{t}")
    k.wait_lg(); k("s_barrier")
    for c, Fb in enumerate((FR, FI)):
        for kk in range(2): k(f"ds_read_b128 {vr(Fb+4*kk, 4)}, v11 offset:{FL+kk*2048+c*1024}")
        k(f"ds_read_b64 {vr(Fb+16, 2)}, v11 offset:{FL+4096+c*1024}")
    for Fb in (FR, FI):
        for i in range(8): k(f"v_xor_b32 v{Fb+8+i}, v17, v{Fb+i}")
    k("v_mov_b32 v16, 0\nv_mov_b32 v17, 0")
    for i in range(4): k(f"v_mov_b32 v{ON+i}, 0x3f803f80")
    k(f"v_lshlrev_b32 v18, 4, v2")
    stamp(k, st, 1)
    if P1PRIO: k("s_setprio 1")
    k.wait_vm("X"); k("s_barrier")
    stamp(k, st, 2)
    for mu in range(2):
        for kk in range(5):
            for h in range(2 if kk < 4 else 1):
                d = AF+18*mu+4*kk+2*h
                va, blk = [(8, h), (8, 2+h), (5, 4+h), (5, 6+h), (7, 4)][kk]
                k(f"ds_read_b64_tr_b16 v[{d}:{d+1}], v{va} offset:{mu*512 + blk*1024}")
    mf = []; dots = []
    SX = 24
    for mu in range(2):
        for kk in range(5):
            for a, Fb in ((AC+8*mu, FR+4*kk), (AC+8*mu+4, FI+4*kk), ([24, 132][mu], ON)):
                if kk < 4: mf.append(f"{MF32} {vr(a, 4)}, {vr(AF+18*mu+4*kk, 4)}, {vr(Fb, 4)}, {'0' if kk == 0 else vr(a, 4)}")
                else: mf.append(f"{MF16} {vr(a, 4)}, {vr(AF+18*mu+16, 2)}, {vr(Fb, 2)}, {vr(a, 4)}")
        dots += [f"v_dot2_f32_bf16 v{16+mu}, v{AF+18*mu+i}, v{AF+18*mu+i}, v{16+mu}" for i in range(18)]
    dpp = "row_mask:0xf bank_mask:0xf"
    red = f"""v_permlane32_swap_b32 v16, v17
v_add_f32 v16, v16, v17
v_add_f32_dpp v16, v16, v16 quad_perm:[1,0,3,2] {dpp}
v_add_f32_dpp v16, v16, v16 quad_perm:[2,3,0,1] {dpp}
v_mov_b32 v17, v16
v_permlane16_swap_b32 v16, v17
v_add_f32 v16, v16, v17
ds_bpermute_b32 v14, v18, v16
ds_bpermute_b32 v15, v18, v16 offset:128""".split("\n")
    for x in interleave(mf[:24], dots) + interleave(mf[24:], red): k(x)
    stamp(k, st, 3)
    E = X
    p2 = lambda x: vr(x, 2)
    NEG = "neg_lo:[0,1] neg_hi:[0,1]"
    for mu in range(2):
        R, I = AC+8*mu, AC+8*mu+4
        T = AF+16*mu
        rr = f"v[{14+2*mu}:{15+2*mu}]"
        k(f"""
v_pk_mul_f32 {p2(T)}, {p2(TW)}, {p2(R)}
v_pk_mul_f32 {p2(T+2)}, {p2(TW+2)}, {p2(R+2)}
v_pk_mul_f32 {p2(T+4)}, {p2(TW)}, {p2(I)}
v_pk_mul_f32 {p2(T+6)}, {p2(TW+2)}, {p2(I+2)}
v_pk_fma_f32 {p2(T)}, {p2(TW+4)}, {p2(I)}, {p2(T)}
v_pk_fma_f32 {p2(T+2)}, {p2(TW+6)}, {p2(I+2)}, {p2(T+2)}
v_pk_fma_f32 {p2(T+4)}, {p2(TW+4)}, {p2(R)}, {p2(T+4)} neg_lo:[1,0,0] neg_hi:[1,0,0]
v_pk_fma_f32 {p2(T+6)}, {p2(TW+6)}, {p2(R+2)}, {p2(T+6)} neg_lo:[1,0,0] neg_hi:[1,0,0]
v_pk_add_f32 {p2(T+8)}, {p2(T)}, {p2(T+2)}
v_pk_add_f32 {p2(T+10)}, {p2(T+4)}, {p2(T+6)}
v_pk_add_f32 {p2(T+12)}, {p2(T)}, {p2(T+2)} {NEG}
v_pk_add_f32 {p2(T+14)}, {p2(T+4)}, {p2(T+6)} {NEG}""")
    k(f"""v_pk_add_f32 v[24:25], v[24:25], v[26:27]
v_pk_add_f32 v[132:133], v[132:133], v[134:135]
v_add_f32 v24, v24, v25
v_add_f32 v25, v132, v133
s_mov_b32 s4, {fl(1/576)}
s_mov_b32 s5, s4
v_pk_mul_f32 v[24:25], v[24:25], s[4:5]
v_pk_mul_f32 v[24:25], v[24:25], v[24:25]
v_pk_fma_f32 v[14:15], v[14:15], s[4:5], v[24:25] neg_lo:[0,0,1] neg_hi:[0,0,1]
v_max_f32 v14, 0, v14
v_max_f32 v15, 0, v15
v_add_f32 v14, {fl(1e-5)}, v14
v_add_f32 v15, {fl(1e-5)}, v15
v_rsq_f32 v16, v15
v_rsq_f32 v17, v15
v_rsq_f32 v15, v14
v_rsq_f32 v14, v14""")
    for mu in range(2):
        T = AF+16*mu
        rr = f"v[{14+2*mu}:{15+2*mu}]"
        k(f"""
v_pk_mul_f32 {p2(T+8)}, {p2(T+8)}, {rr}
v_pk_mul_f32 {p2(T+10)}, {p2(T+10)}, {rr}
v_pk_mul_f32 {p2(T+12)}, {p2(T+12)}, {rr}
v_pk_mul_f32 {p2(T+14)}, {p2(T+14)}, {rr}
v_add_f32 v{T}, v{T+8}, v{T+9}
v_add_f32 v{T+1}, v{T+10}, v{T+11}
v_add_f32 v{T+2}, v{T+12}, v{T+15}
v_sub_f32 v{T+3}, v{T+14}, v{T+13}
v_sub_f32 v{T+4}, v{T+8}, v{T+9}
v_sub_f32 v{T+5}, v{T+10}, v{T+11}
v_sub_f32 v{T+6}, v{T+12}, v{T+15}
v_add_f32 v{T+7}, v{T+14}, v{T+13}
""")
        for m in range(4): k(f"v_cvt_pk_bf16_f32 v{E+2*m+mu}, v{T+2*m}, v{T+2*m+1}")
    for m in range(4): k(f"ds_write_b64 v10, {vr(E+2*m, 2)} offset:{m*2048}")
    k.wait_lg(); k("s_barrier")
    stamp(k, st, 4)
    B = FR
    for m in range(4):
        for kk in range(2): k(f"ds_read_b128 {vr(B+8*m+4*kk, 4)}, v11 offset:{m*2048+kk*1024}")
    for kk in range(2):
        for m in range(4): k(f"{MF32} {vr(AC+4*m, 4)}, {vr(MA+4*kk, 4)}, {vr(B+8*m+4*kk, 4)}, {'0' if kk == 0 else vr(AC+4*m, 4)}")
    k(f"s_mov_b32 s3, {64*ROWB}")
    for a in range(2):
        for m in range(4): k(f"v_cvt_pk_bf16_f32 v{X+4*a+m}, v{AC+4*m+2*a}, v{AC+4*m+2*a+1}")
        if MERGE: k(f"v_and_b32 v{X+4*a}, -2, v{X+4*a}")
        k(f"buffer_store_dwordx4 {vr(X+4*a, 4)}, v12, s[12:15], {'s3' if a else '0'} offen sc1")
    stamp(k, st, 5)
    stamp_out(k, st, 1, f"s{sW}", 6)
    k("s_endpgm\np1_side:")
    k(f"""
s_cmp_ge_u32 s2, 448
s_cbranch_scc1 p1_tab
s_sub_u32 s3, s2, 320
s_and_b32 s32, s3, 7
s_lshl_b32 s32, s32, 2
s_bfe_u32 s4, s3, 0x20003
s_add_u32 s32, s32, s4
s_lshr_b32 s31, s3, 5
s_lshl_b32 s3, s31, 9
s_add_u32 s33, s32, s3
s_and_b32 s3, s{sW}, 1
s_mul_i32 s4, s3, 138
s_cmp_eq_u32 s3, 0
s_cselect_b32 s34, 1, -1
v_lshrrev_b32 v4, 5, v0
v_lshl_add_u32 v6, v4, 5, s33
v_mul_lo_u32 v6, v6, s34
s_lshl_b32 s35, s34, 6
v_and_b32 v5, 1, v2
v_mul_u32_u24 v5, 288, v5
v_add_u32 v5, s4, v5
v_mov_b32 v12, {OOB}
v_lshlrev_b32 v7, 2, v2
v_and_b32 v7, 4, v7
v_sub_u32 v7, v3, v7
v_cmp_gt_u32 vcc, 11, v7
v_lshlrev_b32 v7, 4, v7
v_cndmask_b32 v12, v12, v7, vcc
s_movk_i32 s36, 578
s_mul_i32 s38, s{sW}, 8336
s_add_u32 s38, s38, {WL}
s_waitcnt lgkmcnt(0)
s_cmp_lt_u32 s{sW}, 2
s_cselect_b32 s8, s46, s48
s_cselect_b32 s9, s47, s49
s_mov_b32 s10, {N_WF}
s_mov_b32 s11, 0x20000
""")
    for i in range(8):
        k(f"""v_and_b32 v8, 2047, v6
v_mad_u32_u24 v8, v8, s36, v5
v_and_b32 v8, -16, v8
s_add_u32 m0, s38, {i*1040}
v_add_u32 v8, v8, v12
buffer_load_dwordx4 v8, s[8:11], 0 offen {FPOL} lds
v_add_u32 v6, s35, v6""", tag="W")
    stamp(k, st, 1)
    ws_srd(k, 16, O_WH, N_WH)
    k(f"""
v_lshrrev_b32 v4, 2, v3
s_lshl_b32 s3, s{sW}, 2
v_add_u32 v4, s3, v4
v_and_b32 v10, 3, v3
v_sub_u32 v13, 75, v4
v_cmp_gt_u32 vcc, 2, v10
v_cndmask_b32 v13, v13, v4, vcc
v_mov_b32 v14, 0xffffffe0
v_cndmask_b32 v14, v14, 32, vcc
v_bfrev_b32 v15, 1
v_cndmask_b32 v15, v15, 0, vcc
v_mov_b32 v16, 8336
v_cndmask_b32 v16, v16, 0, vcc
v_lshl_add_u32 v16, v13, 1, v16
v_mul_u32_u24 v17, 2080, v2
v_add_u32 v16, v16, v17
v_lshrrev_b32 v17, 1, v10
v_xor_b32 v17, v17, v10
v_and_b32 v17, 1, v17
v_mul_u32_u24 v17, 320, v17
v_add_u32 v16, v16, v17
v_sub_u32 v17, 5, s33
v_mov_b32 v18, s33
v_cndmask_b32 v17, v17, v18, vcc
v_lshlrev_b32 v17, 1, v17
v_and_b32 v17, 14, v17
v_add_u32 v84, v16, v17
v_add_u32 v84, {WL}, v84
v_or_b32 v11, v10, v4
v_cmp_eq_u32 s[40:41], 0, v11
s_mul_i32 s3, s32, 19
s_add_u32 s3, s3, s{sW}
s_lshl_b32 s3, s3, 12
s_lshl_b32 s4, s31, 10
s_add_u32 s37, s3, s4
v_lshlrev_b32 v93, 4, v0
""")
    k("s_barrier\ns_barrier")
    stamp(k, st, 2)
    k.wait_vm("W")
    stamp(k, st, 3)
    k("s_barrier")
    stamp(k, st, 4)
    for it in range(5):
        D0 = 20 + 12*it
        if it: k(f"v_add_u32 v84, v84, v14")
        for r in range(4): k(f"ds_read_u16 v{D0+r}, v84 offset:{(r >> 1)*1040 + (r & 1)*512}\nds_read_u16 v{D0+4+r}, v84 offset:{(r >> 1)*1040 + (r & 1)*512 + 16672}")
    k("v_cmp_lt_u32 vcc, 8, v4")
    for it in range(5):
        if it == 4: k(f"s_cmp_eq_u32 s{sW}, 3\ns_cbranch_scc1 p1_wend")
        D0 = 20 + 12*it
        for r in range(4): k(f"v_lshl_or_b32 v{D0+8+r}, v{D0+4+r}, 16, v{D0+r}\nv_xor_b32 v{D0+8+r}, v15, v{D0+8+r}")
        if it == 0:
            for r in range(4): k(f"v_cndmask_b32 v{D0+8+r}, v{D0+8+r}, 0, s[40:41]")
        if it == 4:
            for r in range(4): k(f"v_cndmask_b32 v{D0+8+r}, v{D0+8+r}, 0, vcc")
        k(f"buffer_store_dwordx4 {vr(D0+8, 4)}, v93, s[16:19], s37 offen sc1\ns_add_u32 s37, s37, 16384")
    k("p1_wend:")
    stamp(k, st, 5)
    stamp_out(k, st, 1, f"s{sW}", 6)
    k("s_endpgm\np1_tab:")
    sc = 1.0/(S*D)
    k(f"""
s_cmp_ge_u32 s2, 464
s_cbranch_scc1 p1_pf
s_sub_u32 s3, s2, 448
s_lshl_b32 s3, s3, 2
s_add_u32 s31, s3, s{sW}
s_cmp_ge_u32 s31, 61
s_cbranch_scc1 p1_end
s_lshr_b32 s32, s31, 2
s_and_b32 s33, s31, 3
s_mov_b32 s34, {fl(1/64)}
s_cmp_lt_u32 s31, 16
s_cbranch_scc1 p1_tabA
s_sub_u32 s3, s31, 16
s_mul_i32 s32, s3, 52
s_lshr_b32 s32, s32, 8
s_mul_i32 s4, s32, 5
s_sub_u32 s33, s3, s4
s_mov_b32 s34, {fl(1/144)}
p1_tabA:
s_lshl_b32 s32, s32, 4
s_lshl_b32 s33, s33, 4
v_add_u32 v4, s32, v3
v_lshl_add_u32 v5, v2, 2, s33
s_waitcnt lgkmcnt(0)
""")
    ws_srd(k, 8, O_TAB, N_TAB)
    for r in range(4):
        k(f"""
v_add_u32 v6, {r}, v5
v_mul_u32_u24 v7, v6, v4
v_cvt_f32_u32 v7, v7
v_mul_f32 v7, s34, v7
v_fract_f32 v7, v7
v_cos_f32 v8, v7
v_sin_f32 v9, v7
s_cmp_lt_u32 s31, 16
s_cbranch_scc1 p1_tabB{r}
v_mov_b32 v10, {fl(2*sc)}
v_mov_b32 v11, {fl(sc)}
v_cmp_eq_u32 vcc, 0, v6
v_cndmask_b32 v10, v10, v11, vcc
v_cmp_eq_u32 vcc, 72, v6
v_cndmask_b32 v10, v10, v11, vcc
v_cmp_gt_u32 vcc, 73, v6
v_cndmask_b32 v10, 0, v10, vcc
v_mul_f32 v8, v8, v10
v_mul_f32 v9, -v9, v10
p1_tabB{r}:
v_cvt_pk_bf16_f32 v{12+r}, v8, v9
""")
    k(f"v_lshlrev_b32 v4, 4, v0\ns_lshl_b32 s3, s31, 10\nbuffer_store_dwordx4 v[12:15], v4, s[8:11], s3 offen sc1\ns_endpgm\np1_pf:")
    k(f"""
s_cmp_ge_u32 s2, 480
s_cbranch_scc1 {'p1_wpf' if NST else 'p1_end'}
s_getpc_b64 s[4:5]
p1_pc:
s_add_u32 s4, s4, {NEXT}_kernel-p1_pc
s_addc_u32 s5, s5, 0
s_lshl_b32 s3, s{sW}, 6
v_add_u32 v4, s3, v0
s_sub_u32 s3, s2, 464
s_lshr_b32 s3, s3, 3
s_lshl_b32 s3, s3, 15
v_lshl_add_u32 v5, v4, 7, s3
v_min_u32 v5, pf_code_end-{NEXT}_kernel-4, v5
global_load_dword v6, v5, s[4:5]
s_waitcnt lgkmcnt(0)
""")
    if TLB:
        k(f"""s_load_dwordx4 s[36:39], s[0:1], 32
s_load_dwordx4 s[40:43], s[0:1], 48
v_lshlrev_b32 v12, {TLB}, v4
s_waitcnt lgkmcnt(0)""")
        ws_srd(k, 8, 0, O_P + N_P)
        for i in range((O_P + N_P + (256 << TLB) - 1)//(256 << TLB)):
            k(f"s_mov_b32 s3, {i*(256 << TLB)}\nbuffer_load_dword v13, v12, s[8:11], s3 offen", tag="touch")
        for b, n in ((36, N_W), (38, N_W), (40, N_W), (42, N_H)):
            srd(k, 8, b, n)
            k("buffer_load_dword v13, v12, s[8:11], 0 offen", tag="touch")
    ws_srd(k, 8, O_FLG, N_ZERO)
    k(f"""
s_and_b32 s3, s2, 15
s_mul_i32 s3, s3, 20480
v_lshlrev_b32 v4, 4, v4
v_mov_b32 v8, 0
v_mov_b32 v9, 0
v_mov_b32 v10, 0
v_mov_b32 v11, 0
""")
    for i in range(5): k(f"buffer_store_dwordx4 v[8:11], v4, s[8:11], s3 offen sc1\ns_add_u32 s3, s3, 4096")
    if NST:
        per = 36*NST; n = (per + 63)//64; ln = per//n
        assert ln*n == per
        k(f"""s_endpgm
p1_wpf:
s_load_dwordx4 s[36:39], s[0:1], 32
s_sub_u32 s3, s2, 480
s_lshr_b32 s4, s3, 3
s_and_b32 s5, s4, 1
s_lshl_b32 s5, s5, 2
s_add_u32 s5, s5, s{sW}
s_mul_i32 s5, s5, {per}
v_add_u32 v4, s5, v0
s_and_b32 s3, s3, 7
s_mul_i32 s33, s3, 1152
v_mov_b32 v7, {OOB}
v_cmp_gt_u32 vcc, {ln}, v0
s_waitcnt lgkmcnt(0)
s_cmp_lt_u32 s4, 2
s_cselect_b32 s8, s36, s38
s_cselect_b32 s9, s37, s39
s_mov_b32 s10, {N_W}
s_mov_b32 s11, 0x20000
s_barrier
s_barrier
s_barrier""")
        for i in range(n):
            k(f"""v_mul_u32_u24 v5, 7282, v4
v_lshrrev_b32 v5, 16, v5
v_mul_u32_u24 v6, 9, v5
v_sub_u32 v6, v4, v6
v_mul_u32_u24 v5, 9216, v5
v_lshl_add_u32 v5, v6, 7, v5
v_cndmask_b32 v5, v7, v5, vcc""")
            k(f"buffer_load_dword v8, v5, s[8:11], s33 offen {NPOL}", tag="touch")
            k(f"v_add_u32 v4, {ln}, v4")
    k(f"""p1_end:""")
    return k

def build_p2(st=False):
    k = K("p2", 608, 64, vgpr=160)
    stamp(k, st, 0)
    k(f"""
s_load_dwordx2 s[6:7], s[0:1], 72
s_cmp_ge_u32 s2, 608
s_cbranch_scc1 p2_end
s_lshr_b32 s3, s2, 3
s_mul_i32 s4, s3, 27
s_lshr_b32 s4, s4, 9
s_mul_i32 s5, s4, 19
s_sub_u32 s31, s3, s5
s_and_b32 s3, s2, 7
s_lshl_b32 s3, s3, 2
s_add_u32 s32, s3, s4
v_lshrrev_b32 v2, 4, v0
v_and_b32 v3, 15, v0
v_mul_u32_u24 v4, {4*ROWB}, v2
v_lshl_add_u32 v4, v3, 2, v4
v_lshlrev_b32 v5, 4, v0
s_mul_i32 s33, s32, {64*ROWB}
s_lshl_b32 s3, s31, 6
s_add_u32 s33, s33, s3
s_waitcnt lgkmcnt(0)
""")
    ws_srd(k, 8, O_U, N_U)
    B, B2, A, WH, XR, XI = 8, 24, 40, 104, 120, 136
    for T in range(4):
        if T: k(f"s_add_u32 s33, s33, {16*ROWB}")
        for r in range(4): k(f"buffer_load_dword v{B+4*T+r}, v4, s[8:11], s33 offen offset:{r*ROWB}")
    ws_srd(k, 12, O_TAB, N_TAB)
    for f in range(16):
        if f % 4 == 0: k(f"s_movk_i32 s3, {f*1024}")
        k(f"buffer_load_dwordx4 {vr(A+4*f, 4)}, v5, s[12:15], s3 offen offset:{(f % 4)*1024}")
    ws_srd(k, 16, O_WH, N_WH)
    k("s_mul_i32 s34, s32, 19\ns_add_u32 s34, s34, s31\ns_lshl_b32 s34, s34, 12")
    for T in range(4): k(f"buffer_load_dwordx4 {vr(WH+4*T, 4)}, v5, s[16:19], s34 offen offset:{T*1024}")
    k(f"""
v_mul_u32_u24 v6, {ROWB}, v3
v_lshl_add_u32 v6, v2, 4, v6
s_mul_i32 s35, s32, {64*ROWB}
s_lshl_b32 s3, s31, 6
s_add_u32 s35, s35, s3
s_brev_b32 s36, 1
s_mov_b32 s37, 0xffff0000
""")
    stamp(k, st, 1)
    for i in range(16): k(f"v_alignbit_b32 v{B2+i}, v{B+i}, v{B+i}, 16\nv_xor_b32 v{B2+i}, s36, v{B2+i}")
    stamp(k, st, 2)
    def fwd(Tp): return [f"{MF32} {vr(o+4*Tp, 4)}, {vr(A+16*Tp+4*T, 4)}, {vr(b+4*T, 4)}, {'0' if T == 0 else vr(o+4*Tp, 4)}" for T in range(4) for o, b in ((XR, B), (XI, B2))]
    D1, D2 = 152, B
    def filt(T):
        out = []
        for r in (0, 2):
            w = WH+4*T+r; xr, xi = XR+4*T+r, XI+4*T+r
            out += [f"v_lshlrev_b32 v152, 16, v{w}", f"v_lshlrev_b32 v153, 16, v{w+1}", f"v_and_b32 v154, s37, v{w}", f"v_and_b32 v155, s37, v{w+1}",
                    f"v_pk_mul_f32 v[156:157], {vr(xr, 2)}, v[152:153]", f"v_pk_mul_f32 v[158:159], {vr(xr, 2)}, v[154:155]",
                    f"v_pk_fma_f32 v[156:157], {vr(xi, 2)}, v[154:155], v[156:157] neg_lo:[1,0,0] neg_hi:[1,0,0]", f"v_pk_fma_f32 v[158:159], {vr(xi, 2)}, v[152:153], v[158:159]",
                    f"v_cvt_pk_bf16_f32 v{w}, v156, -v158", f"v_cvt_pk_bf16_f32 v{w+1}, v157, -v159", f"v_cvt_pk_bf16_f32 v{xr}, v158, v156", f"v_cvt_pk_bf16_f32 v{xr+1}, v159, v157"]
        return out
    for x in fwd(0): k(x)
    for Tp in range(1, 4):
        for x in interleave(fwd(Tp), filt(Tp-1)): k(x)
    for x in filt(3): k(x)
    stamp(k, st, 3)
    VR, VI = B, B2
    def inv(Tp): return [f"{MF32} {vr(o+4*Tp, 4)}, {vr(d+4*T, 4)}, {vr(A+16*Tp+4*T, 4)}, {'0' if T == 0 else vr(o+4*Tp, 4)}" for T in range(4) for o, d in ((VR, WH), (VI, XR))]
    def outp(Tp):
        return [f"v_cvt_pk_bf16_f32 v{XI+4*Tp+r}, v{VR+4*Tp+r}, v{VI+4*Tp+r}" for r in range(4)] + \
               [f"buffer_store_dwordx4 {vr(XI+4*Tp, 4)}, v6, s[8:11], s35 offen sc1\ns_add_u32 s35, s35, {16*ROWB}"]
    for x in inv(0): k(x)
    for Tp in range(1, 4):
        m = inv(Tp)
        for x in m[:3] + interleave(m[3:], outp(Tp-1)): k(x)
    for x in outp(3): k(x)
    stamp(k, st, 4)
    stamp_out(k, st, 2, "0", 5)
    k("p2_end:")
    return k


def column_task(k, o, sTile, sK1, sB, srd, vlane16, vL, shadow, between):
    D = f"s[{srd}:{srd+3}]"
    B, B2, A, WH, XR, XI, TP = (x+o for x in (8, 24, 40, 104, 120, 136, 152))
    k(f"""
v_lshrrev_b32 v2, 4, v{vL}
v_and_b32 v3, 15, v{vL}
v_mul_u32_u24 v4, {4*ROWB}, v2
v_lshl_add_u32 v4, v3, 2, v4
s_mul_i32 s{sB}, s{sK1}, {64*ROWB}
s_lshl_b32 s3, s{sTile}, 6
s_add_u32 s{sB}, s{sB}, s3
s_mov_b32 s{sB+1}, s{sB}
""")
    for T in range(4):
        if T: k(f"s_add_u32 s{sB}, s{sB}, {16*ROWB}")
        for r in range(4): k(f"buffer_load_dword v{B+4*T+r}, v4, {D}, s{sB} offen offset:{r*ROWB}")
    for f in range(16):
        if f % 4 == 0: k(f"s_mov_b32 s3, {O_TAB + f*1024}")
        k(f"buffer_load_dwordx4 {vr(A+4*f, 4)}, v{vlane16}, {D}, s3 offen offset:{(f % 4)*1024}")
    k(f"s_mul_i32 s3, s{sK1}, 19\ns_add_u32 s3, s3, s{sTile}\ns_lshl_b32 s3, s3, 12\ns_add_u32 s3, s3, {O_WH}")
    for T in range(4): k(f"buffer_load_dwordx4 {vr(WH+4*T, 4)}, v{vlane16}, {D}, s3 offen offset:{T*1024}")
    k(f"""
v_mul_u32_u24 v6, {ROWB}, v3
v_lshl_add_u32 v6, v2, 4, v6
s_brev_b32 s{sB+2}, 1
s_mov_b32 s{sB+3}, 0xffff0000
""")
    shadow()
    for i in range(16): k(f"v_alignbit_b32 v{B2+i}, v{B+i}, v{B+i}, 16\nv_xor_b32 v{B2+i}, s{sB+2}, v{B2+i}")
    between()
    def fwd(Tp): return [f"{MF32} {vr(q+4*Tp, 4)}, {vr(A+16*Tp+4*T, 4)}, {vr(b+4*T, 4)}, {'0' if T == 0 else vr(q+4*Tp, 4)}" for T in range(4) for q, b in ((XR, B), (XI, B2))]
    def filt(T):
        out = []; t = TP
        for r in (0, 2):
            w = WH+4*T+r; xr, xi = XR+4*T+r, XI+4*T+r
            out += [f"v_lshlrev_b32 v{t}, 16, v{w}", f"v_lshlrev_b32 v{t+1}, 16, v{w+1}", f"v_and_b32 v{t+2}, s{sB+3}, v{w}", f"v_and_b32 v{t+3}, s{sB+3}, v{w+1}",
                    f"v_pk_mul_f32 {vr(t+4, 2)}, {vr(xr, 2)}, {vr(t, 2)}", f"v_pk_mul_f32 {vr(t+6, 2)}, {vr(xr, 2)}, {vr(t+2, 2)}",
                    f"v_pk_fma_f32 {vr(t+4, 2)}, {vr(xi, 2)}, {vr(t+2, 2)}, {vr(t+4, 2)} neg_lo:[1,0,0] neg_hi:[1,0,0]", f"v_pk_fma_f32 {vr(t+6, 2)}, {vr(xi, 2)}, {vr(t, 2)}, {vr(t+6, 2)}",
                    f"v_cvt_pk_bf16_f32 v{w}, v{t+4}, -v{t+6}", f"v_cvt_pk_bf16_f32 v{w+1}, v{t+5}, -v{t+7}", f"v_cvt_pk_bf16_f32 v{xr}, v{t+6}, v{t+4}", f"v_cvt_pk_bf16_f32 v{xr+1}, v{t+7}, v{t+5}"]
        return out
    for x in fwd(0): k(x)
    for Tp in range(1, 4):
        for x in interleave(fwd(Tp), filt(Tp-1)): k(x)
    for x in filt(3): k(x)
    def inv(Tp): return [f"{MF32} {vr(q+4*Tp, 4)}, {vr(d+4*T, 4)}, {vr(A+16*Tp+4*T, 4)}, {'0' if T == 0 else vr(q+4*Tp, 4)}" for T in range(4) for q, d in ((B, WH), (B2, XR))]
    def outp(Tp):
        return [f"v_cvt_pk_bf16_f32 v{XI+4*Tp+r}, v{B+4*Tp+r}, v{B2+4*Tp+r}" for r in range(4)] + [f"v_or_b32 v{XI+4*Tp}, 1, v{XI+4*Tp}"] + \
               [f"buffer_store_dwordx4 {vr(XI+4*Tp, 4)}, v6, {D}, s{sB+1} offen sc1\ns_add_u32 s{sB+1}, s{sB+1}, {16*ROWB}"]
    for x in inv(0): k(x)
    for Tp in range(1, 4):
        m = inv(Tp)
        for x in m[:3] + interleave(m[3:], outp(Tp-1)): k(x)
    for x in outp(3): k(x)
```

```python
from asmlib import *
from layout import *
import struct
def fl(x): return "0x%08x" % struct.unpack("<I", struct.pack("<f", x))[0]
MF = "v_mfma_f32_16x16x32_bf16"
def ws_srd(k, d, off, nbytes, ws=6):
    k(f"s_add_u32 s{d}, s{ws}, {off}\ns_addc_u32 s{d+1}, s{ws+1}, 0\ns_mov_b32 s{d+2}, {nbytes}\ns_mov_b32 s{d+3}, 0x20000")
def srd_tail(k, d, nbytes): k(f"s_mov_b32 s{d+2}, {nbytes}\ns_mov_b32 s{d+3}, 0x20000")
S4 = lambda d: f"s[{d}:{d+3}]"

SLOT_A = [0, 45056, 90112]
RING_B = [0, 36864, 90112, 126976]
HH = 90112

def build_pf(look=3, nd=2, spread=4, stamp=False, abl="", name="pf", OUTPOL="", WPOL="", DPOL="", TPOL="", dstage=11, safe=0, XPOL="sc1", TPOLD="", ahead=7,
             phases="478", lag=2, ntouch=0, prio="", fuse=0, pk=1, W2=1, mode="S", merge=1, sigfirst=1, order=0, ptouch=0, otouch=0, bulk=0, vprio=1, cprio=0, drain=1, ib2=1, nap=0, early=0, su3=0, w4p=0, late1=0, idlepf=1, inl=0, skip=1, lph="1358", istage=1, tstage=7):
    LP = mode == "L"
    PH = [int(c) for c in str(lph if LP else phases)]
    k = K(name, 256, 512, lds=163840, vgpr=256, sgpr=102)
    sG, sU, sD, sX, sP, sF, sS, sH, sO, sV, sI, sT = 8, 12, 16, 20, 24, 28, 32, 36, 40, 44, 48, 52
    sW, sMT, sSL, sRG = 56, 57, 58, 59
    sA, sKW, sKX, sM0a, sM0x, sM0s, sKD, sM0d, sPO, sCG, sRD, sLN, sLoc, sS1 = range(80, 94)
    sF1 = 96; sB = 97; sXC = 98
    vL, vDX, vD0, vD1, vD2, vT0, vT1, vT2 = range(8)
    vXr = [8, 9, 10]; vWA = [11, 12, 13]; vWB = [14, 15, 16]
    vDD, vPO, vHW = 17, 18, 19
    vWD = [20, 21, 22, 23]
    vHR, vHW2, vZ, vQ = 24, 25, 26, 27
    def stb(i):
        if stamp and "bst" in abl: k(f"s_memrealtime s[{60+2*i}:{61+2*i}]")
    def st(i):
        if stamp and "bst" not in abl: k(f"s_memrealtime s[{60+2*i}:{61+2*i}]")
    def put(items):
        for x in items:
            t = x[0] if isinstance(x, tuple) else x
            if "nodma" in abl and " lds" in t and x[1] not in ("A0", "A1"): continue
            if "nop2" in abl and "buffer_store" in t and isinstance(x, tuple) and x[1].startswith("P"): continue
            if "nomfma" in abl and "v_mfma" in t: continue
            if isinstance(x, tuple): k(x[0], tag=x[1])
            else: k(x)
    def spin(lab, load, cond, nap=0):
        bound = f"s_sub_u32 s5, s5, 1\ns_cbranch_scc1 {lab}_ok\n" if safe else ""
        k(f"{cond}\ns_cbranch_vccz {lab}_ok\n{f's_mov_b32 s5, {20000 if safe == 1 else 4000000}' if safe else ''}\n{lab}_spin:\n{'s_add_u32 s99, s99, 1' if 'cnt' in abl else ''}\n{bound}{f's_sleep {nap}' if nap else ''}\n{load}\ns_waitcnt vmcnt(0)\n{cond}\ns_cbranch_vccnz {lab}_spin\n{lab}_ok:")
        k.saved.pop(lab + "_spin", None)
    st(0)
    k(f"""
s_load_dwordx2 s[6:7], s[0:1], 72
s_load_dwordx2 s[{sG}:{sG+1}], s[0:1], 32
s_load_dwordx2 s[{sU}:{sU+1}], s[0:1], 40
s_load_dwordx2 s[{sI}:{sI+1}], s[0:1], 0
s_load_dwordx2 s[{sD}:{sD+1}], s[0:1], 48
s_load_dwordx2 s[{sO}:{sO+1}], s[0:1], 56
s_cmp_ge_u32 s2, 256
s_cbranch_scc1 {name}_end
v_lshrrev_b32 v{vT0}, 6, v0
v_and_b32 v{vL}, 63, v0
v_readfirstlane_b32 s{sW}, v{vT0}
s_lshr_b32 s3, s2, 3
s_and_b32 s{sMT}, s3, 15
s_lshr_b32 s{sB}, s3, 4
s_and_b32 s{sXC}, s2, 7
s_lshl_b32 s4, s{sXC}, 1
s_add_u32 s{sSL}, s4, s{sB}
v_lshlrev_b32 v{vDX}, 4, v{vL}
v_mov_b32 v{vZ}, 0
v_mov_b32 v37, 0
v_mov_b32 v2, 0
v_mov_b32 v3, 0
v_mov_b32 v4, 0
v_mov_b32 v47, 0
""")
    o = 32
    R = lambda n: n + o
    sS2, sNT, sVB, sXO, sSO = 99, sB, 100, 101, (96 if early else sRD)
    assert not (early and LP)
    sAct = 92
    L, MB_, AC, TW, G, XX = R(16), R(48), R(64), R(96), R(120), R(160)
    EZ = 90112; ES = EZ + 20480
    g_, n_, vVA, vHS, vRow, vXo, vEW, vSW, vSR = R(2), R(3), R(4), R(5), R(6), R(7), R(9), R(14), R(15)
    t0, t1, t2, t3 = R(10), R(11), R(12), R(13)
    assert merge
    NV = O_TAB + N_TAB
    vloads = "\n".join(f"s_add_u32 s3, s{sVB}, {(16*kk+t)*64*ROWB}\nbuffer_load_dwordx4 {vr(L+16*kk+4*t, 4)}, v{vVA}, {S4(sV)}, s3 offen sc1" for kk in range(2) for t in range(4))
    k(f"""
s_and_b32 s3, s{sXC}, 3
s_lshl_b32 s{sS2}, s{sMT}, 2
s_add_u32 s{sS2}, s{sS2}, s3
s_lshr_b32 s3, s{sXC}, 2
s_and_b32 s4, s{sMT}, 1
s_cmp_eq_u32 s3, s4
s_cselect_b32 s{sAct}, 1, 0
s_lshl_b32 s3, s{sB}, 3
s_lshr_b32 s4, s{sMT}, 1
s_add_u32 s81, s3, s4
s_waitcnt lgkmcnt(0)
""")
    ws_srd(k, sV, O_V, NV)
    def common_setup():
        k(f"""
v_lshrrev_b32 v{g_}, 4, v{vL}
v_and_b32 v{n_}, 15, v{vL}
s_lshl_b32 s3, s{sW}, 4
v_add_u32 v{vVA}, s3, v{n_}
v_lshlrev_b32 v{vVA}, 4, v{vVA}
v_mul_u32_u24 v{t0}, {4*64*ROWB}, v{g_}
v_add_u32 v{vVA}, v{vVA}, v{t0}
s_mul_i32 s{sVB}, s{sS2}, {ROWB}
s_lshl_b32 s3, s{sNT}, 4
v_add_u32 v{vRow}, s3, v{n_}
v_lshl_add_u32 v{vRow}, v{vRow}, 6, s{sS2}
v_mul_u32_u24 v{vXo}, 1152, v{vRow}
v_lshl_add_u32 v{vXo}, v{g_}, 5, v{vXo}
s_lshl_b32 s{sXO}, s{sW}, 7
""")
        srd_tail(k, sI, N_H); ws_srd(k, sT, O_TAB, N_TAB)
        ws_srd(k, sX, O_XF, N_XF); ws_srd(k, sH, O_H, N_H); ws_srd(k, sF, O_FLG, N_FLG)
        for d in (sG, sU, sD): srd_tail(k, d, N_W)
        srd_tail(k, sO, N_H)
        ws_srd(k, sP, O_P, N_P)
        k(f"s_bitcmp0_b32 s{sW}, 1\ns_cselect_b32 s{sS}, s{sG}, s{sU}\ns_cselect_b32 s{sS+1}, s{sG+1}, s{sU+1}")
        srd_tail(k, sS, N_W)
    def pattern(vd):
        k(f"""
s_lshl_b32 s4, s3, 6
v_add_u32 v{vT0}, s4, v{vL}
v_mul_u32_u24 v{vT1}, 1821, v{vT0}
v_lshrrev_b32 v{vT1}, 16, v{vT1}
v_mul_u32_u24 v{vT2}, 36, v{vT1}
v_sub_u32 v{vT0}, v{vT0}, v{vT2}
v_lshrrev_b32 v{vT2}, 2, v{vT1}
v_and_b32 v{vT2}, 2, v{vT2}
v_xor_b32 v{vT0}, v{vT0}, v{vT2}
v_lshlrev_b32 v{vT0}, 4, v{vT0}
v_and_b32 v{vT2}, 24, v{vT1}
v_add_u32 v{vT1}, v{vT1}, v{vT2}
v_mul_u32_u24 v{vT1}, 9216, v{vT1}
v_add_u32 v{vd}, v{vT0}, v{vT1}
""")
    def mlp_setup():
        k(f"s_and_b32 s{sRG}, s{sW}, 1\ns_bfe_u32 s{sA}, s{sW}, 0x10001\n{'s_and_b32' if LP else 's_lshr_b32'} s{sCG}, s{sW}, {3 if LP else 1}")
        k(f"s_lshl_b32 s3, s{sW}, 1"); pattern(vD0)
        k(f"s_add_u32 s3, s3, 1"); pattern(vD1)
        k(f"s_add_u32 s3, s{sRG}, 16"); pattern(vD2)
        k(f"""
s_mul_i32 s{sKW}, s{sSL}, 576
s_lshl_b32 s3, s{sMT}, 3
s_add_u32 s3, s3, s{sW}
s_mul_i32 s{sKX}, s3, 18432
s_lshl_b32 s{sM0x}, s{sW}, 10
s_lshl_b32 s{sM0a}, s{sW}, 11
s_add_u32 s{sM0a}, s{sM0a}, 8192
s_mul_i32 s3, s{sA}, 18432
s_lshl_b32 s4, s{sRG}, 10
s_add_u32 s3, s3, s4
s_add_u32 s{sM0s}, s3, {8192+16*1024}
""")
    def dmaX(s):
        return [(f"s_add_u32 m0, s{sM0x}, {SLOT_A[s % 3]}\ns_add_u32 s94, s{sKX}, {s*1024}\nbuffer_load_dwordx4 v{vDX}, {S4(sX)}, s94 offen {XPOL} lds", f"A{s}")]
    def dmaW(s, six):
        o = SLOT_A[s % 3]
        g = [f"s_add_u32 m0, s{sM0a}, {o}\ns_add_u32 s95, s{sKW}, {((s >> 1)*64 + (s & 1)*8)*9216}\nbuffer_load_dwordx4 v{vD0}, {S4(sG)}, s95 offen {WPOL} lds",
             f"s_add_u32 m0, s{sM0a}, {o+1024}\nbuffer_load_dwordx4 v{vD1}, {S4(sG)}, s95 offen {WPOL} lds",
             f"s_add_u32 m0, s{sM0a}, {o+18432}\nbuffer_load_dwordx4 v{vD0}, {S4(sU)}, s95 offen {WPOL} lds",
             f"s_add_u32 m0, s{sM0a}, {o+18432+1024}\nbuffer_load_dwordx4 v{vD1}, {S4(sU)}, s95 offen {WPOL} lds"]
        if six: g.append(f"s_add_u32 m0, s{sM0s}, {o}\nbuffer_load_dwordx4 v{vD2}, {S4(sS)}, s95 offen {WPOL} lds")
        return [(x, f"A{s}") for x in g]
    def dmaB(u, five):
        o = RING_B[u % 4]
        if LP and five: return []
        if "dbl" in abl:
            return [(f"s_add_u32 m0, s{sM0d}, {o+i*1024}\ns_add_u32 s94, s{sKD}, {i*8*1152+u*128}\n{'s_xor_b32 s94, s94, 0' if q == 0 else 's_add_u32 s94, s94, s101'}\nbuffer_load_dwordx4 v{vDD}, {S4(sD)}, s94 offen {DPOL} lds", f"B{u}") for q in range(2) for i in range(4 if five else 5)]
        return [(f"s_add_u32 m0, s{sM0d}, {o+i*1024}\ns_add_u32 s94, s{sKD}, {i*8*1152+u*128}\nbuffer_load_dwordx4 v{vDD}, {S4(sD)}, s94 offen {DPOL} lds", f"B{u}") for i in range(9 if LP else 4 if five else 5)]
    def first_w(lab):
        for s in ((0,) if late1 else (0, 1)):
            put(dmaW(s, False))
            k(f"s_cmp_lt_u32 s{sW}, 4\ns_cbranch_scc1 {lab}{s}")
            put(dmaW(s, True)[4:])
            k(f"{lab}{s}:")
    def bulk_w():
        k(f"s_sub_u32 s3, s{sW}, 5\ns_mul_i32 s3, s3, 6\ns_lshl_b32 s5, s3, 10\ns_add_u32 s5, s5, 8192\ns_add_u32 s95, s{sKW}, {8*9216}")
        for i in range(6):
            pattern(t0)
            for s_, so in ((0, sKW), (1, 95)):
                for m, d in enumerate((sG, sU)):
                    k(f"s_add_u32 m0, s5, {SLOT_A[s_] + m*18432 + i*1024}\nbuffer_load_dwordx4 v{t0}, {S4(d)}, s{so} offen {WPOL} lds", tag="A0")
            k("s_add_u32 s3, s3, 1")
    def rest_loads(lab):
        k(f"buffer_load_dwordx4 {vr(XX, 4)}, v{vXo}, {S4(sI)}, s{sXO} offen\nbuffer_load_dwordx4 {vr(XX+4, 4)}, v{vXo}, {S4(sI)}, s{sXO} offen offset:16")
        k(f"s_mul_i32 s3, s{sW}, 5120\ns_add_u32 s3, s3, 16384\ns_add_u32 s4, s3, 4096")
        for f in range(5): k(f"buffer_load_dwordx4 {vr(G+4*f, 4)}, v{vDX}, {S4(sT)}, s{3+f//4} offen offset:{(f % 4)*1024}")
        k(f"s_cmp_lg_u32 s{sW}, {W2}\ns_cbranch_scc1 {lab}")
        k(f"buffer_load_dwordx4 {vr(XX+8, 4)}, v{vXo}, {S4(sI)}, 0 offen offset:1024\nbuffer_load_dwordx4 {vr(XX+12, 4)}, v{vXo}, {S4(sI)}, 0 offen offset:1040")
        k(f"s_mov_b32 s3, {(16+40)*1024}\ns_mov_b32 s4, {(16+44)*1024}")
        for f in range(5): k(f"buffer_load_dwordx4 {vr(G+20+4*f, 4)}, v{vDX}, {S4(sT)}, s{3+f//4} offen offset:{(f % 4)*1024}")
        k(f"{lab}:")
    def matrices():
        k(f"""
v_cvt_f32_u32 v{t0}, v{vRow}
v_mul_f32 v{t0}, {fl(1/2048)}, v{t0}
v_cvt_f32_u32 v{t1}, v{g_}
v_mul_f32 v{t1}, 4.0, v{t1}
v_mul_f32 v{vEW}, v{t0}, v{t1}
""")
        for kk in range(2):
            for t in range(4):
                k(f"""v_fmamk_f32 v{t2}, v{t0}, {fl(float(16*kk+t))}, v{vEW}
v_cos_f32 v{t3}, v{t2}
v_sin_f32 v{t2}, v{t2}
v_cvt_pk_bf16_f32 v{MB_+4*kk+t}, v{t3}, -v{t2}
v_cvt_pk_bf16_f32 v{MB_+8+4*kk+t}, v{t2}, v{t3}""")
        tw = [f"s_lshl_b32 s3, s{sW}, 4", f"v_cvt_f32_u32 v{t0}, s3", f"v_add_f32 v{t1}, v{t1}, v{t0}"]
        for r in range(4):
            if r: tw.append(f"v_add_f32 v{t1}, 1.0, v{t1}")
            for q in range(1, 4):
                tw += [f"v_mul_f32 v{t2}, {fl(q/576)}, v{t1}", f"v_cos_f32 v{TW+8*(q-1)+r}, v{t2}", f"v_sin_f32 v{TW+8*(q-1)+4+r}, v{t2}"]
        return tw
    sSU = 96
    if merge:
        from fft import column_task
        k(f"""s_mov_b32 s{sSU}, 0
s_cmp_eq_u32 s{sAct}, 0
s_cbranch_scc1 {name}_qi
s_lshl_b32 s3, s81, 1
s_sub_u32 s4, s{sW}, 5
s_add_u32 s3, s3, s4
s_cmp_lt_u32 s4, 2
s_cbranch_scc1 {name}_col
s_cmp_lt_u32 s{sW}, 5
s_cbranch_scc0 {name}_nocol""")
        common_setup()
        put(matrices())
        k(f"""v_cmp_le_u32 vcc, 12, v{n_}
s_cmp_eq_u32 s{sW}, 4
s_cselect_b64 vcc, vcc, 0
v_cndmask_b32 v{vHS}, 0, 1, vcc
s_barrier""")
        rest_loads(f"{name}_rl3")
        k(f"s_barrier")
        st(1)
        if vprio: k(f"s_and_b32 s3, s{sW}, 3\ns_cmp_lg_u32 s3, 0\ns_cbranch_scc1 {name}_vp\ns_setprio 2\n{name}_vp:")
        k(vloads)
        chk = "\n".join([f"v_and_b32 v{t0}, v{L}, v{L+4}"] + [f"v_and_b32 v{t0}, v{t0}, v{L+4*i}" for i in range(2, 8)] + [f"v_or_b32 v{t0}, v{t0}, v{vHS}", f"v_and_b32 v{t0}, 1, v{t0}", f"v_cmp_eq_u32 vcc, 0, v{t0}"])
        spin(f"{name}_v", vloads, chk, nap)
        k(f"""s_branch {name}_doA
{name}_qi:
s_mul_i32 s3, s81, 3
s_add_u32 s3, s3, s{sW}
s_add_u32 s3, s3, 32
s_cmp_ge_u32 s{sW}, 3
s_cbranch_scc1 {name}_nocol
s_cmp_ge_u32 s3, 76
s_cbranch_scc1 {name}_nocol
{name}_col:
s_mul_i32 s4, s3, 27
s_lshr_b32 s4, s4, 9
s_mul_i32 s5, s4, 19
s_sub_u32 s81, s3, s5
s_lshl_b32 s3, s{sXC}, 2
s_add_u32 s82, s3, s4""")
        if cprio: k(f"s_setprio {cprio}")
        column_task(k, 48, 81, 82, 83, sV, vDX, vL, common_setup, lambda: (st(1), k("s_barrier")))
        st(2)
        if cprio: k("s_setprio 0")
        if drain: k("s_waitcnt vmcnt(0)")
        if ib2: k(f"s_barrier\ns_cmp_eq_u32 s{sAct}, 0\ns_cbranch_scc1 {name}_fin")
        else: k(f"s_cmp_eq_u32 s{sAct}, 0\ns_cbranch_scc1 {name}_fin\ns_barrier")
        mlp_setup()
        k(f"s_mov_b32 s{sSU}, 1")
        rest_loads(f"{name}_rl4")
        k(f"s_branch {name}_bulk\n{name}_nocol:")
        common_setup()
        mlp_setup()
        k(f"s_mov_b32 s{sSU}, 1\ns_barrier\ns_cmp_eq_u32 s{sAct}, 0\ns_cbranch_scc1 {name}_ib")
        rest_loads(f"{name}_rl1")
        k(f"s_barrier\n{name}_bulk:")
        if bulk: bulk_w()
        k(f"s_branch {name}_noA\n{name}_ib:\n{'s_barrier' if ib2 else ''}\ns_branch {name}_fin\n{name}_doA:")
        tw = [""]*22
    else:
        k(f"s_cmp_lt_u32 s{sW}, 5\ns_cbranch_scc1 {name}_doA")
        mlp_setup()
        rest_loads(f"{name}_rl1")
        k(f"s_branch {name}_noA\n{name}_doA:")
        tw = matrices()
        put(tw[:22])
    st(2)
    for kk in range(2):
        for a in range(4):
            for b in range(a+1, 4): k(f"v_swap_b32 v{L+16*kk+4*a+b}, v{L+16*kk+4*b+a}")
    mf = []
    for m in (0, 2, 1, 3):
        for kk in range(2):
            for c in range(2):
                a = AC+8*m+4*c
                mf.append(f"{MF} {vr(a, 4)}, {vr(L+16*kk+4*m, 4)}, {vr(MB_+8*c+4*kk, 4)}, {'0' if kk == 0 else vr(a, 4)}")
    put(interleave(mf, tw[22:]) if tw[22:] else mf)
    if not merge: rest_loads(f"{name}_rl2")
    Z = L; T = L+16
    p2 = lambda x: vr(x, 2)
    NEG = "neg_lo:[0,1] neg_hi:[0,1]"
    for r in (0, 2):
        Rr = lambda m: AC+8*m+r
        I = lambda m: AC+8*m+4+r
        ar, ai, br, bi, cr, ci, dr, di = (T+2*i for i in range(8))
        k(f"""
v_pk_add_f32 {p2(ar)}, {p2(Rr(0))}, {p2(Rr(2))}
v_pk_add_f32 {p2(ai)}, {p2(I(0))}, {p2(I(2))}
v_pk_add_f32 {p2(cr)}, {p2(Rr(1))}, {p2(Rr(3))}
v_pk_add_f32 {p2(ci)}, {p2(I(1))}, {p2(I(3))}
v_pk_add_f32 {p2(br)}, {p2(Rr(0))}, {p2(Rr(2))} {NEG}
v_pk_add_f32 {p2(bi)}, {p2(I(0))}, {p2(I(2))} {NEG}
v_pk_add_f32 {p2(dr)}, {p2(Rr(1))}, {p2(Rr(3))} {NEG}
v_pk_add_f32 {p2(di)}, {p2(I(1))}, {p2(I(3))} {NEG}
v_pk_add_f32 {p2(Rr(0))}, {p2(ar)}, {p2(cr)}
v_pk_add_f32 {p2(I(0))}, {p2(ai)}, {p2(ci)}
v_pk_add_f32 {p2(Rr(1))}, {p2(br)}, {p2(di)} {NEG}
v_pk_add_f32 {p2(I(1))}, {p2(bi)}, {p2(dr)}
v_pk_add_f32 {p2(Rr(2))}, {p2(ar)}, {p2(cr)} {NEG}
v_pk_add_f32 {p2(I(2))}, {p2(ai)}, {p2(ci)} {NEG}
v_pk_add_f32 {p2(Rr(3))}, {p2(br)}, {p2(di)}
v_pk_add_f32 {p2(I(3))}, {p2(bi)}, {p2(dr)} {NEG}
v_cvt_pk_bf16_f32 v{Z+r}, v{Rr(0)}, v{I(0)}
v_cvt_pk_bf16_f32 v{Z+r+1}, v{Rr(0)+1}, v{I(0)+1}
""")
        for q in range(1, 4):
            cc = TW+8*(q-1)+r
            k(f"v_pk_mul_f32 {p2(T+4*q)}, {p2(cc)}, {p2(Rr(q))}\nv_pk_mul_f32 {p2(T+4*q+2)}, {p2(cc)}, {p2(I(q))}")
        for q in range(1, 4):
            ss = TW+8*(q-1)+4+r
            k(f"v_pk_fma_f32 {p2(T+4*q)}, {p2(ss)}, {p2(I(q))}, {p2(T+4*q)} neg_lo:[1,0,0] neg_hi:[1,0,0]\nv_pk_fma_f32 {p2(T+4*q+2)}, {p2(ss)}, {p2(Rr(q))}, {p2(T+4*q+2)}")
        for q in range(1, 4):
            k(f"v_cvt_pk_bf16_f32 v{Z+4*q+r}, v{T+4*q}, v{T+4*q+2}\nv_cvt_pk_bf16_f32 v{Z+4*q+r+1}, v{T+4*q+1}, v{T+4*q+3}")
    k(f"s_lshl_b32 s3, s{sW}, 10\ns_add_u32 s3, s3, {EZ}\nv_add_u32 v{vEW}, s3, v{vDX}")
    for q in range(4): k(f"ds_write_b128 v{vEW}, {vr(Z+4*q, 4)} offset:{q*5120}")
    k(f"s_setprio 0\ns_cmp_eq_u32 s{sW}, 4\ns_cbranch_scc1 {name}_noA")
    if su3: mlp_setup()
    k(f"{name}_noA:")
    k(f"""
v_lshlrev_b32 v{vSR}, 6, v{n_}
v_add_u32 v{vSR}, {ES}, v{vSR}
v_lshrrev_b32 v{vSW}, 1, v{g_}
v_lshl_add_u32 v{vSW}, v{vSW}, 2, v{vSR}
s_lshl_b32 s3, s{sW}, 3
v_add_u32 v{vSW}, s3, v{vSW}
v_lshrrev_b32 v{vHS}, 1, v{n_}
v_lshlrev_b32 v{vHS}, 7, v{vHS}
v_and_b32 v{t0}, 1, v{n_}
v_lshl_add_u32 v{vHS}, v{t0}, 6, v{vHS}
v_lshl_add_u32 v{vHS}, v{g_}, 4, v{vHS}
v_add_u32 v{vEW}, {EZ}, v{vDX}
s_lshl_b32 s3, s{sS2}, 1
s_add_u32 s3, s3, s{sNT}
s_mul_i32 s4, s3, 18432
s_lshl_b32 s5, s{sW}, 11
s_add_u32 s{sSO}, s4, s5
s_add_u32 s{sVB}, s4, 16384
s_and_b32 s3, s3, 7
s_lshl_b32 s3, s3, 2
s_lshl_b32 s4, s{sMT}, 11
s_add_u32 s{sXO}, s3, s4
s_mov_b32 s5, 0xffff0000
""")
    A2 = AC; ZR = L
    def final(nmt):
        so = [sSO, sVB]
        for mt in range(nmt):
            for r in range(4):
                for q in range(4):
                    src = XX+8*mt+2*r+(q >> 1); dst = A2+16*mt+4*q+r
                    k(f"v_and_b32 v{dst}, s5, v{src}" if q & 1 else f"v_lshlrev_b32 v{dst}, 16, v{src}")
        k.wait_lg(); k("s_barrier")
        st(3)
        idx = [(jt, q) for jt in range(5) for q in range(4)]
        rd = lambda i: f"ds_read_b128 {vr(ZR+4*(i % 8), 4)}, v{vEW} offset:{idx[i][1]*5120+idx[i][0]*1024}"
        for i in range(7): k(rd(i))
        for i, (jt, q) in enumerate(idx):
            for mt in range(nmt):
                a = A2+16*mt+4*q
                k(f"{MF} {vr(a, 4)}, {vr(G+20*mt+4*jt, 4)}, {vr(ZR+4*(i % 8), 4)}, {vr(a, 4)}")
            if i+7 < 20: k(rd(i+7))
        if "p3st" in abl: k("s_memrealtime s[62:63]")
        first = True
        for mt in range(nmt):
            for q in range(4):
                for p in range(2):
                    a = A2+16*mt+4*q+2*p
                    if first: k(f"v_mov_b64 {vr(t0, 2)}, {vr(a, 2)}\nv_pk_mul_f32 {vr(t2, 2)}, {vr(a, 2)}, {vr(a, 2)}"); first = False
                    else: k(f"v_pk_add_f32 {vr(t0, 2)}, {vr(t0, 2)}, {vr(a, 2)}\nv_pk_fma_f32 {vr(t2, 2)}, {vr(a, 2)}, {vr(a, 2)}, {vr(t2, 2)}")
        k(f"""
v_add_f32 v{t0}, v{t0}, v{t1}
v_add_f32 v{t2}, v{t2}, v{t3}
v_permlane32_swap_b32 v{t0}, v{t2}
v_add_f32 v{t0}, v{t0}, v{t2}
v_mov_b32 v{t1}, v{t0}
v_permlane16_swap_b32 v{t0}, v{t1}
v_add_f32 v{t0}, v{t0}, v{t1}
ds_write_b32 v{vSW}, v{t0}
""")
        def pack(dst, mt, h):
            for p in range(4):
                r, q = 2*h+(p >> 1), 2*(p & 1)
                k(f"v_cvt_pk_bf16_f32 v{dst+p}, v{A2+16*mt+4*q+r}, v{A2+16*mt+4*(q+1)+r}")
        for mt in range(nmt):
            for h in range(2): pack(XX+8*mt+4*h, mt, h)
        k.wait_lg(); k("s_barrier")
        if "p3st" in abl: k("s_memrealtime s[64:65]")
        for w in range(4): k(f"ds_read_b128 {vr(L+4*w, 4)}, v{vSR} offset:{16*w}")
        k(f"""v_lshl_add_u32 v{vSW}, v{vL}, 7, s{sXO}
v_mov_b32 v{vSR}, {OOB}
v_cmp_gt_u32 vcc, 16, v{vL}
v_cndmask_b32 v{vSR}, v{vSR}, v{vSW}, vcc
v_mov_b32 v{vSW}, 1""")
        for a, b in ((0, 2), (4, 6), (8, 10), (12, 14), (0, 4), (8, 12), (0, 8)):
            k(f"v_pk_add_f32 {vr(L+a, 2)}, {vr(L+a, 2)}, {vr(L+b, 2)}")
        k(f"""
v_mul_f32 v{t0}, {fl(1/576)}, v{L}
v_mul_f32 v{t1}, v{t0}, v{t0}
v_fmamk_f32 v{t2}, v{L+1}, {fl(1/576)}, v{t1}
v_fma_f32 v{t2}, -2.0, v{t1}, v{t2}
v_max_f32 v{t2}, 0, v{t2}
v_add_f32 v{t2}, {fl(1e-5)}, v{t2}
v_rsq_f32 v{t2}, v{t2}
v_mul_f32 v{t2}, {fl(LOG2E)}, v{t2}
v_mul_f32 v{t0}, -v{t0}, v{t2}
v_mov_b32 v{t3}, v{t2}
v_mov_b32 v{t1}, v{t0}
s_cmp_eq_u32 s{sW}, 0
s_cselect_b32 s4, 0x10001, 0
""")
        for mt in range(nmt):
            for q in range(4):
                for p in range(2):
                    a = A2+16*mt+4*q+2*p
                    k(f"v_pk_fma_f32 {vr(a, 2)}, {vr(a, 2)}, {vr(t2, 2)}, {vr(t0, 2)}")
            for h in range(2):
                pack(L+8*mt+4*h, mt, h)
                if early and nmt == 1: k(f"v_or_b32 v{L+4*h}, s4, v{L+4*h}")
                k(f"buffer_store_dwordx4 {vr(L+8*mt+4*h, 4)}, v{vDX}, {S4(sX)}, s{so[mt]} offen offset:{h*1024} sc1", tag="XF")
    def hstores(lab):
        for mt in range(2):
            if mt: k(f"s_cmp_lg_u32 s{sW}, {W2}\ns_cbranch_scc1 {lab}")
            for h in range(2): k(f"buffer_store_dwordx4 {vr(XX+8*mt+4*h, 4)}, v{vHS}, {S4(sH)}, s{[sSO, sVB][mt]} offen offset:{h*1024} sc1", tag="H")
        k(f"{lab}:")
    k(f"s_cmp_eq_u32 s{sW}, {W2}\ns_cbranch_scc1 {name}_fin2")
    final(1)
    if early:
        k(f"""s_cmp_lg_u32 s{sW}, 0
s_cbranch_scc1 {name}_fin
s_mov_b32 s3, {F_E}
buffer_store_dword v{vSW}, v{vSR}, {S4(sF)}, s3 offen sc1""")
    k(f"s_branch {name}_fin\n{name}_fin2:")
    final(2)
    k(f"{name}_fin:")
    if "p3st" in abl: k("s_memrealtime s[60:61]")
    if merge: k(f"s_cmp_eq_u32 s{sSU}, 1\ns_cbranch_scc1 {name}_sudone")
    else: k(f"s_cmp_eq_u32 s{sAct}, 0\ns_cbranch_scc1 {name}_su\n{'s_cmp_lg_u32' if su3 else 's_cmp_gt_u32'} s{sW}, 4\ns_cbranch_scc1 {name}_sudone\n{name}_su:")
    mlp_setup()
    k(f"{name}_sudone:")
    if bulk: k(f"s_cmp_lg_u32 s{sAct}, 0\ns_cbranch_scc1 {name}_wdone")
    first_w(f"{name}_wc")
    if bulk: k(f"{name}_wdone:")
    def touch(mats, lab, dst):
        k(f"""
s_lshr_b32 s3, s2, 3
s_lshl_b32 s3, s3, 3
s_add_u32 s3, s3, s{sW}
s_cmp_ge_u32 s3, {81*len(mats)}
s_cbranch_scc1 {lab}_x
s_cmp_ge_u32 s3, 81
s_cselect_b32 s4, 81, 0
s_sub_u32 s4, s3, s4
v_lshl_add_u32 v{vT0}, s4, 6, v{vL}
v_mul_u32_u24 v{vT1}, 7282, v{vT0}
v_lshrrev_b32 v{vT1}, 16, v{vT1}
v_mul_u32_u24 v{vT2}, 9, v{vT1}
v_sub_u32 v{vT2}, v{vT0}, v{vT2}
v_mul_u32_u24 v{vT1}, {9216 if mats[0] != sD else 1152}, v{vT1}
v_lshl_add_u32 v{vT1}, v{vT2}, 7, v{vT1}
s_mul_i32 s4, s{sXC}, {1152 if mats[0] != sD else 576*1152}
""")
        if len(mats) == 2: k(f"s_cmp_ge_u32 s3, 81\ns_cbranch_scc1 {lab}_u")
        k(f"buffer_load_dword v{dst}, v{vT1}, {S4(mats[0])}, s4 offen {TPOL if len(mats) == 2 else TPOLD}", tag="touch")
        if len(mats) == 2: k(f"s_branch {lab}_x\n{lab}_u:\nbuffer_load_dword v{dst}, v{vT1}, {S4(mats[1])}, s4 offen {TPOL}")
        k(f"{lab}_x:")
    vTW = 31
    k(f"""
s_cmp_eq_u32 s{sB}, 0
s_cselect_b32 s{sV}, s{sG}, s{sU}
s_cselect_b32 s{sV+1}, s{sG+1}, s{sU+1}
s_mov_b32 s{sV+2}, {N_W}
s_mov_b32 s{sV+3}, 0x20000
s_and_b32 s3, s{sW}, 3
s_mul_i32 s3, s3, 5
v_add_u32 v{vTW}, s3, v{vL}
v_cmp_lt_u32 vcc, 8, v{vTW}
v_cndmask_b32 v{vT0}, 0, 1, vcc
v_mul_u32_u24 v{vT1}, 9, v{vT0}
v_sub_u32 v{vT1}, v{vTW}, v{vT1}
s_lshr_b32 s3, s{sW}, 2
s_xor_b32 s3, s3, 1
s_xor_b32 s3, s3, s{sMT}
s_lshl_b32 s3, s3, 1
v_add_u32 v{vT0}, s3, v{vT0}
v_and_b32 v{vT2}, 24, v{vT0}
v_add_u32 v{vT0}, v{vT0}, v{vT2}
v_mul_u32_u24 v{vT0}, 9216, v{vT0}
v_lshl_add_u32 v{vT0}, v{vT1}, 7, v{vT0}
s_mul_i32 s3, s{sXC}, 1152
v_add_u32 v{vT0}, s3, v{vT0}
v_mov_b32 v{vT1}, {OOB}
v_cmp_gt_u32 vcc, 18, v{vTW}
v_cndmask_b32 v{vT0}, v{vT1}, v{vT0}, vcc
v_cmp_gt_u32 vcc, 5, v{vL}
v_cndmask_b32 v{vTW}, v{vT1}, v{vT0}, vcc
""")
    def roll(s):
        if "notouch" in abl or "noroll" in abl or s >= 18: return []
        return [(f"s_mov_b32 s94, {((s >> 1)*64 + (s & 1)*8)*9216}\nbuffer_load_dword v28, v{vTW}, {S4(sV)}, s94 offen {TPOL}", "touch")]
    if not early:
        k(f"""s_cmp_eq_u32 s{sAct}, 0
s_cbranch_scc1 {name}_p3done
""")
        k.wait_vm("XF")
        k(f"""s_barrier
s_cmp_lg_u32 s{sW}, 0
s_cbranch_scc1 {name}_p3sig
buffer_store_dword v{vSW}, v{vSR}, {S4(sF)}, 0 offen sc1
{name}_p3sig:
""")
        hstores(f"{name}_hs")
        k(f"{name}_p3done:")
    st(4)

    def path(five):
        nt5 = 5 if five else 4
        nf = 2*nt5
        P = "a" if five else "b"
        k(f"""
s_lshl_b32 s3, s{sMT}, 4
s_add_u32 s3, s3, s{sSL}
s_lshl_b32 s3, s3, 7
s_lshl_b32 s4, s{sW}, 2
s_add_u32 s{sLN}, s3, s4
s_add_u32 s{sS1}, s{sLN}, {F_E if early else 0}
buffer_load_dword v{vQ}, v{vZ}, {S4(sF)}, s{sS1} offen sc1
v_lshrrev_b32 v{vT0}, 4, v{vL}
v_bfe_u32 v{vT1}, v{vL}, 2, 2
v_lshl_add_u32 v{vT2}, v{vT0}, 3, v{vT1}
v_mul_u32_u24 v{vT2}, 576, v{vT2}
v_and_b32 v{vWB[0]}, 3, v{vL}
v_lshl_add_u32 v{vT2}, v{vWB[0]}, 3, v{vT2}
s_mul_i32 s3, s{sA}, 9
s_add_u32 s3, s3, {0 if five else 5}
s_lshl_b32 s4, s3, 5
s_add_u32 s4, s4, 8192
v_add_u32 v{vT2}, s4, v{vT2}
s_and_b32 s3, s3, 1
s_cmp_eq_u32 s3, 0
s_cselect_b32 s3, 32, -32
v_and_b32 v{vWB[0]}, 1, v{vT0}
v_mul_i32_i24 v{vWB[0]}, s3, v{vWB[0]}
v_add_u32 v{vWA[0]}, v{vT2}, v{vWB[0]}
v_sub_u32 v{vWB[0]}, v{vT2}, v{vWB[0]}
s_lshl_b32 s3, s{sRG}, 12
v_add_u32 v{vXr[0]}, s3, v{vDX}
""")
        for i in (1, 2):
            k(f"v_add_u32 v{vXr[i]}, {SLOT_A[i]}, v{vXr[0]}\nv_add_u32 v{vWA[i]}, {SLOT_A[i]}, v{vWA[0]}\nv_add_u32 v{vWB[i]}, {SLOT_A[i]}, v{vWB[0]}")
        k(f"""
v_lshrrev_b32 v{vDD}, 3, v{vL}
v_mul_u32_u24 v{vDD}, 1152, v{vDD}
v_bfe_u32 v{vT2}, v{vL}, 1, 2
v_xor_b32 v{vT2}, v{vT2}, v{vT0}
v_lshl_add_u32 v{vDD}, v{vT2}, 5, v{vDD}
v_and_b32 v{vT2}, 1, v{vL}
v_lshl_add_u32 v{vDD}, v{vT2}, 4, v{vDD}
s_mul_i32 s3, s{sCG if LP else sW}, {9 if LP else 4 if five else 5}
s_sub_u32 s3, s3, {0 if five or LP else 4}
s_lshl_b32 s{sM0d}, s3, 10
s_mul_i32 s3, s3, {8*1152}
s_mul_i32 s{sKD}, s{sSL}, {288*1152}
s_add_u32 s{sKD}, s{sKD}, s3
v_lshl_add_u32 v{vWD[0]}, v{vT0}, 2, v{vT1}
v_bfe_u32 v{vT2}, v{vWD[0]}, 1, 2
v_xor_b32 v{vT2}, s{sCG}, v{vT2}
v_lshlrev_b32 v{vT2}, 5, v{vT2}
v_lshl_add_u32 v{vWD[0]}, v{vWD[0]}, 7, v{vT2}
v_and_b32 v{vT2}, 3, v{vL}
v_lshl_add_u32 v{vWD[0]}, v{vT2}, 3, v{vWD[0]}
v_add_u32 v{vWD[1]}, {RING_B[1]}, v{vWD[0]}
v_add_u32 v{vWD[2]}, {RING_B[2]}, v{vWD[0]}
v_add_u32 v{vWD[3]}, {RING_B[3]}, v{vWD[0]}
s_xor_b32 s3, s{sB if LP else sRG}, {1 if LP and not five else 0}
s_mul_i32 s3, s3, {4*9*1024}
s_add_u32 s3, s3, {HH}
v_add_u32 v{vHR}, s3, v{vDX}
s_mul_i32 s3, s{sRG}, {4*9*1024}
s_add_u32 s3, s3, {HH}
s_mul_i32 s4, s{sA}, 9
s_add_u32 s4, s4, {0 if five else 5}
s_lshr_b32 s5, s4, 1
s_lshl_b32 s5, s5, 10
s_add_u32 s3, s3, s5
s_and_b32 s4, s4, 1
s_lshl_b32 s5, s4, 3
s_add_u32 s5, s5, s3
v_add_u32 v{vHW}, s5, v{vDX}
s_mul_i32 s5, s4, 1024
s_add_u32 s5, s5, s3
s_xor_b32 s4, s4, 1
s_lshl_b32 s4, s4, 3
s_add_u32 s5, s5, s4
v_add_u32 v{vHW2}, s5, v{vDX}
v_bfe_u32 v{vT2}, v{vL}, 1, 3
v_lshlrev_b32 v{vPO}, 10, v{vT2}
v_and_b32 v{vT2}, 1, v{vL}
v_lshl_add_u32 v{vPO}, v{vT2}, 6, v{vPO}
v_lshl_add_u32 v{vPO}, v{vT0}, 4, v{vPO}
""")
        if LP:
            k(f"""s_lshl_b32 s3, s{sMT}, 1
s_add_u32 s4, s3, s{sB}
s_mul_i32 s{sRD}, s4, {8*9*8192}
s_xor_b32 s4, s4, {0 if five else 1}
s_lshl_b32 s4, s4, 3
s_add_u32 s4, s4, s{sXC}
s_mul_i32 s{sPO}, s4, {9*8192}
s_lshl_b32 s4, s{sCG}, 8
s_add_u32 s{sPO}, s{sPO}, s4
s_xor_b32 s3, s2, {0 if five else 128}
s_lshl_b32 s3, s3, 9
s_lshl_b32 s4, s{sCG}, 7
s_add_u32 s3, s3, s4
s_add_u32 s{sF1}, s3, {F_1}
s_getreg_b32 s{sLoc}, hwreg(HW_REG_XCC_ID, 0, 4)
s_add_u32 s{sLoc}, s{sLoc}, 1""")
            if five:
                for i in range(4): k(f"v_mov_b32 v{28+i}, 0")
        else:
            k(f"""s_mul_i32 s{sRD}, s{sMT}, {16*9*16384}
s_mul_i32 s3, s{sSL}, {9*16384}
s_add_u32 s{sPO}, s{sRD}, s3
s_lshl_b32 s4, s{sRG}, 13
s_add_u32 s{sPO}, s{sPO}, s4
s_lshl_b32 s4, s{sCG}, 8
s_add_u32 s{sPO}, s{sPO}, s4""")
        if idlepf:
            k(f"s_cmp_lg_u32 s{sAct}, 0\ns_cbranch_scc1 {name}_{P}ip")
            if late1: put(dmaW(1, not five))
            for q in range(2, ahead): put(roll(q))
            k(f"{name}_{P}ip:")
        elif not five and not early:
            for q in range(2, ahead): put(roll(q))
        xflag = lambda so: f"buffer_load_dword v{vQ}, v{vZ}, {S4(sF)}, s{so} offen sc1"
        spin(f"{name}_{P}x", xflag(sS1), f"v_cmp_eq_u32 vcc, 0, v{vQ}")
        if early:
            ld = f"buffer_load_dwordx4 v[64:67], v{vDX}, {S4(sX)}, s{sKX} offen sc1\nbuffer_load_dwordx4 v[68:71], v{vDX}, {S4(sX)}, s{sKX} offen offset:1024 sc1"
            k(ld)
            k(f"v_add_u32 v{vT0}, s{sM0x}, v{vDX}\ns_mov_b32 s4, 0x10001")
            spin(f"{name}_{P}t", ld, f"v_and_b32 v{vT1}, v64, v68\nv_and_b32 v{vT1}, s4, v{vT1}\nv_cmp_ne_u32 vcc, s4, v{vT1}")
            k(f"s_cmp_eq_u32 s{sAct}, 0\ns_cbranch_scc1 {name}_{P}hs")
            hstores(f"{name}_{P}hs")
            if not five and not idlepf:
                for q in range(2, ahead): put(roll(q))
            k(f"ds_write_b128 v{vT0}, v[64:67] offset:{SLOT_A[0]}\nds_write_b128 v{vT0}, v[68:71] offset:{SLOT_A[1]}")
        else:
            put(dmaX(0)); put(dmaX(1))
        if late1 == 1:
            if idlepf: k(f"s_cmp_eq_u32 s{sAct}, 0\ns_cbranch_scc1 {name}_{P}l1")
            put(dmaW(1, not five))
            if idlepf: k(f"{name}_{P}l1:")
        st(5)
        ACC = 256-nf*16; XB = [64, 80]; WR = 32
        def acc(f, nt): return ACC + f*16 + nt*4
        def wreg(s, f): return WR + 4*((s*nf+f) % 8)
        def wread(s, f):
            i, u = f >> 1, f & 1
            va = (vWA if i % 2 == 0 else vWB)[s % 3]; d = wreg(s, f)
            return [f"ds_read_b64_tr_b16 v[{d+2*h}:{d+2*h+1}], v{va} offset:{h*4*576 + i*32 + u*18432}" for h in range(2)]
        def mfa(s, f):
            w = wreg(s, f)
            return [f"{MF} {vr(acc(f, nt), 4)}, {vr(w, 4)}, {vr(XB[s % 2]+4*nt, 4)}, {'0' if s == 0 else vr(acc(f, nt), 4)}" for nt in range(4)]
        vRD, vHO, vOO, vFL, vFS, SEL, vFV, vTR, vHT = 2, 3, 4, 8, 9, 12, 5, 10, 11
        assert not fuse
        sRP, sEX = 44, 48
        late = f"""v_mov_b32 v{vFS}, {OOB}
v_lshrrev_b32 v5, 4, v{vL}
v_and_b32 v6, 3, v{vL}
v_bfe_u32 v7, v{vL}, 3, 1
s_and_b32 s4, s{sSL}, 3
v_xor_b32 v14, s4, v5
v_mul_u32_u24 v{vRD}, {9*16384}, v14
v_lshlrev_b32 v{vHT}, 8, v7
v_and_b32 v14, 7, v{vL}
v_lshl_add_u32 v{vHT}, v14, 4, v{vHT}
v_add_u32 v{vRD}, v{vRD}, v{vHT}
s_lshl_b32 s4, s{sRG}, 1
v_add_u32 v7, s4, v7
s_lshl_b32 s4, s{sA}, 7
s_lshl_b32 s5, s{sRG}, 9
s_add_u32 s4, s4, s5
s_add_u32 s5, s4, 73728
v_add_u32 v{vHT}, s5, v{vHT}
s_add_u32 s{sRD}, s{sRD}, s4
s_lshl_b32 s4, s{sSL}, 10
s_add_u32 s{sRD}, s{sRD}, s4
s_and_b32 s4, s{sSL}, 12
s_mul_i32 s{sRP}, s4, {9*16384}
s_add_u32 s{sRP}, s{sRP}, s{sRD}
s_xor_b32 s5, s4, 4
s_mul_i32 s{sRP+1}, s5, {9*16384}
s_add_u32 s{sRP+1}, s{sRP+1}, s{sRD}
s_xor_b32 s5, s4, 8
s_mul_i32 s{sRP+2}, s5, {9*16384}
s_add_u32 s{sRP+2}, s{sRP+2}, s{sRD}
s_xor_b32 s5, s4, 12
s_mul_i32 s{sRP+3}, s5, {9*16384}
s_add_u32 s{sRP+3}, s{sRP+3}, s{sRD}
v_and_b32 v{vTR}, 1023, v{vPO}
s_lshl_b32 s4, s{sCG}, 8
s_add_u32 s4, s4, 73728
v_add_u32 v{vTR}, s4, v{vTR}
s_lshr_b32 s3, s{sSL}, 3
s_and_b32 s5, s{sSL}, 7
v_lshrrev_b32 v14, 10, v{vPO}
v_cmp_eq_u32 s[{sEX}:{sEX+1}], s5, v14
s_cmp_eq_u32 s3, s{sRG}|s_cselect_b64 s[{sEX}:{sEX+1}], s[{sEX}:{sEX+1}], 0
{f"v_cndmask_b32 v{vPO}, v{vPO}, v{vFS}, s[{sEX}:{sEX+1}]" if skip else ""}
s_lshl_b32 s5, s5, 7
s_lshl_b32 s{sLN}, s{sMT}, 2
s_lshl_b32 s3, s3, 1
s_add_u32 s{sLN}, s{sLN}, s3
s_add_u32 s{sLN}, s{sLN}, s{sA}
s_lshl_b32 s3, s{sLN}, 1
v_add_u32 v{vHO}, s3, v5
v_mul_u32_u24 v{vHO}, 18432, v{vHO}
v_lshrrev_b32 v14, 1, v6
v_lshl_add_u32 v{vHO}, v14, 10, v{vHO}
v_lshl_add_u32 v{vHO}, v7, 4, v{vHO}
v_and_b32 v14, 1, v6
v_lshl_add_u32 v{vHO}, v14, 3, v{vHO}
v_add_u32 v{vHO}, s5, v{vHO}
v_bfe_u32 v14, v{vL}, 2, 1
v_lshl_add_u32 v{vHO}, v14, 6, v{vHO}
s_lshr_b32 s4, s5, 6
v_lshl_add_u32 v{vOO}, v5, 4, s4
v_add_u32 v{vOO}, v{vOO}, v14
v_lshl_add_u32 v{vOO}, v{vOO}, 6, s{sLN}
v_mul_u32_u24 v{vOO}, 1152, v{vOO}
v_lshl_add_u32 v{vOO}, v7, 5, v{vOO}
v_lshl_add_u32 v{vOO}, v6, 3, v{vOO}
v_cmp_gt_u32 vcc, 32, v{vL}
v_cndmask_b32 v{vHO}, v{vFS}, v{vHO}, vcc
v_cndmask_b32 v{vOO}, v{vFS}, v{vOO}, vcc
s_lshl_b32 s4, s{sMT}, 11
s_add_u32 s4, s4, {F_2}
s_lshl_b32 s5, s{sSL}, 2
s_add_u32 s5, s5, s4
v_lshl_add_u32 v5, v{vL}, 7, s5
v_cmp_gt_u32 vcc, 16, v{vL}
v_cndmask_b32 v{vFS}, v{vFS}, v5, vcc
s_lshl_b32 s5, s{sSL}, 7
s_add_u32 s5, s5, s4
v_and_b32 v5, 15, v{vL}
v_lshl_add_u32 v{vFL}, v5, 2, s5
s_mov_b32 s{sLN}, {LN2!r}""".split("\n")
        late = [x.replace('|', '\n') for x in late]
        CNT = 73728; SK = 72; vMK = 16
        if LP and five:
            late = f"""v_mov_b32 v{vFS}, {OOB}
s_lshl_b32 s4, s{sMT}, 11
s_lshl_b32 s5, s{sB}, 7
s_add_u32 s4, s4, s5
s_add_u32 s4, s4, {F_2}
s_lshl_b32 s5, s{sXC}, 2
s_add_u32 s5, s5, s4
v_lshl_add_u32 v5, v{vL}, 8, s5
v_cmp_gt_u32 vcc, 8, v{vL}
v_cndmask_b32 v{vFS}, v{vFS}, v5, vcc
v_mov_b32 v{vFL}, {CNT}""".split("\n")
        elif LP:
            late = f"""v_mov_b32 v{vFS}, {OOB}
s_lshl_b32 s4, s{sMT}, 11
s_lshl_b32 s5, s{sSL}, 7
s_add_u32 s4, s4, s5
s_add_u32 s4, s4, {F_2}
v_and_b32 v5, 7, v{vL}
v_lshl_add_u32 v{vFL}, v5, 2, s4
s_lshl_b32 s5, s{sXC}, 10
s_add_u32 s{sRD}, s{sRD}, s5
v_lshrrev_b32 v{vTR}, 3, v{vL}
v_mul_u32_u24 v{vTR}, {9*8192}, v{vTR}
v_lshl_add_u32 v{vTR}, v5, 7, v{vTR}
v_add_u32 v{vTR}, s{sRD}, v{vTR}
v_lshlrev_b32 v{vRD}, 4, v5
v_lshrrev_b32 v5, 4, v{vL}
v_and_b32 v6, 3, v{vL}
v_bfe_u32 v7, v{vL}, 3, 1
v_mul_u32_u24 v14, {9*8192}, v5
v_add_u32 v{vRD}, v{vRD}, v14
v_lshl_add_u32 v{vRD}, v7, 8, v{vRD}
s_lshl_b32 s4, s{sRG}, 1
v_add_u32 v7, s4, v7
s_lshl_b32 s4, s{sA}, 7
s_add_u32 s{sRD}, s{sRD}, s4
s_lshl_b32 s4, s{sRG}, 9
s_add_u32 s{sRD}, s{sRD}, s4
s_lshl_b32 s5, s{sXC}, 7
s_lshl_b32 s{sLN}, s{sMT}, 2
s_lshl_b32 s3, s{sB}, 1
s_add_u32 s{sLN}, s{sLN}, s3
s_lshl_b32 s3, s{sLN}, 1
s_add_u32 s3, s3, s{sCG}
s_mul_i32 s3, s3, 18432
s_add_u32 s3, s3, s5
v_lshl_add_u32 v{vHT}, v{vL}, 10, s3
v_cmp_gt_u32 vcc, 18, v{vL}
v_cndmask_b32 v{vHT}, v{vFS}, v{vHT}, vcc
s_add_u32 s{sLN}, s{sLN}, s{sA}
s_lshl_b32 s3, s{sLN}, 1
v_add_u32 v{vHO}, s3, v5
v_mul_u32_u24 v{vHO}, 18432, v{vHO}
v_lshrrev_b32 v14, 1, v6
v_lshl_add_u32 v{vHO}, v14, 10, v{vHO}
v_lshl_add_u32 v{vHO}, v7, 4, v{vHO}
v_and_b32 v14, 1, v6
v_lshl_add_u32 v{vHO}, v14, 3, v{vHO}
v_add_u32 v{vHO}, s5, v{vHO}
v_bfe_u32 v14, v{vL}, 2, 1
v_lshl_add_u32 v{vHO}, v14, 6, v{vHO}
s_lshl_b32 s4, s{sXC}, 1
v_lshl_add_u32 v{vOO}, v5, 4, s4
v_add_u32 v{vOO}, v{vOO}, v14
v_lshl_add_u32 v{vOO}, v{vOO}, 6, s{sLN}
v_mul_u32_u24 v{vOO}, 1152, v{vOO}
v_lshl_add_u32 v{vOO}, v7, 5, v{vOO}
v_lshl_add_u32 v{vOO}, v6, 3, v{vOO}
v_cmp_gt_u32 vcc, 32, v{vL}
v_cndmask_b32 v{vHO}, v{vFS}, v{vHO}, vcc
v_cndmask_b32 v{vOO}, v{vFS}, v{vOO}, vcc
s_mov_b32 s{sLN}, {LN2!r}""".split("\n")
        sel = f"""v_and_b32 v5, 1, v{vL}
v_lshlrev_b32 v5, 4, v5
s_movk_i32 s3, 0x3f80
v_lshlrev_b32 v5, v5, s3
v_bfe_u32 v6, v{vL}, 1, 3""".split("\n")
        if LP and five:
            sel += [f"v_lshrrev_b32 v7, 3, v{vL}", f"v_and_b32 v7, 6, v7", f"v_sub_u32 v6, v6, v7"]
            for i in range(2): sel += [f"v_cmp_eq_u32 vcc, {i}, v6", f"v_cndmask_b32 v{SK+2+i}, 0, v5, vcc"]
            sel += [f"v_mov_b32 v{SK+i}, 0" for i in (0, 1, 4, 5)]
            sel += [f"ds_write_b64 v{vFL}, v[{SK}:{SK+1}] offset:{8*i}" for i in range(3)]
        else:
            for i in range(4): sel += [f"v_cmp_eq_u32 vcc, {i}, v6", f"v_cndmask_b32 v{SEL+i}, 0, v5, vcc"]
        sel += [f"v_mov_b32 v{vFV}, 1", f"v_mov_b32 v{vMK}, 0x10001"]
        def split_m0(d):
            out = []
            for t, tag in d:
                ls = t.split("\n")
                out += ["\n".join(ls[:-1]), (ls[-1], tag)]
            return out
        def spread_in(seq, dma, every):
            items = split_m0(dma); out = []; n = 0; j = 0
            for x in seq:
                out.append(x)
                if isinstance(x, str) and x.startswith("v_mfma"):
                    n += 1
                    if j < len(items) and (j % 2 == 1 or n % every == every-1): out.append(items[j]); j += 1
            return out + items[j:]
        k.wait_lg(); k.wait_vm("A0", "XF"); k("s_barrier")
        if early and five:
            k(f"s_cmp_eq_u32 s{sAct}, 0\ns_cbranch_scc1 {name}_xsig\ns_cmp_lg_u32 s{sW}, 0\ns_cbranch_scc1 {name}_xsig\nbuffer_store_dword v{vSW}, v{vSR}, {S4(sF)}, 0 offen sc1\n{name}_xsig:")
        st(6)
        if prio == ("lo" if five else "hi"): k("s_setprio 1")
        def glu(i):
            out = []
            for np_ in range(2):
                g, u = acc(2*i, 2*np_), acc(2*i+1, 2*np_)
                out += [f"v_exp_f32 v{g+r}, -v{g+r}" for r in range(8)]
                out += [f"v_pk_add_f32 {vr(g+r, 2)}, {vr(g+r, 2)}, s[4:5]" for r in range(0, 8, 2)] if pk else [f"v_add_f32 v{g+r}, 1.0, v{g+r}" for r in range(8)]
                out += [f"v_rcp_f32 v{g+r}, v{g+r}" for r in range(8)]
                out += [f"v_pk_mul_f32 {vr(g+r, 2)}, {vr(g+r, 2)}, {vr(u+r, 2)}" for r in range(0, 8, 2)] if pk else [f"v_mul_f32 v{g+r}, v{g+r}, v{u+r}" for r in range(8)]
                for q in range(2): out += [f"v_cvt_pk_bf16_f32 v{u+4*q}, v{g+4*q}, v{g+4*q+1}", f"v_cvt_pk_bf16_f32 v{u+4*q+1}, v{g+4*q+2}, v{g+4*q+3}"]
            return out
        hwrite = lambda i: [f"ds_write_b64 v{vHW if i % 2 == 0 else vHW2}, {vr(acc(2*i+1, nt), 2)} offset:{nt*9*1024 + (i >> 1)*1024}" for nt in range(4)]
        xread = lambda s: [f"ds_read_b128 {vr(XB[s % 2]+4*nt, 4)}, v{vXr[s % 3]} offset:{nt*1024}" for nt in range(4)]
        NS = 16 if fuse else 18
        for s in range(NS):
            put(xread(s))
            for f in range(look): put(wread(s, f))
            dma = dmaX(s+2) + dmaW(s+2, not five) if s+2 < 18 else dmaB(s-16, five)
            if early and s == 0: dma = dmaW(2, not five) + [("s_nop 0\n" + xflag(sLN), "XQ")]
            if late1 == 2 and s == 0: dma = dmaW(1, not five) + dma
            if early and s == 1:
                spin(f"{name}_{P}y", xflag(sLN), f"v_cmp_eq_u32 vcc, 0, v{vQ}")
                dma = dmaX(2) + dma
            if not five: dma = dma + roll(s+ahead)
            if LP and five and istage <= s < istage+4:
                dma = dma + [(f"s_add_u32 s94, s{sPO}, {(5+s-istage)*8192}\nbuffer_store_dwordx4 v[28:31], v{vPO}, {S4(sP)}, s94 offen offset:{h*128} sc1", "I") for h in range(2)]
            seq = sum((mfa(s-1, f) for f in range(nf-nd, nf)), []) if s > 0 else []
            for f in range(nf-nd):
                extra = late[f*len(late)//(nf-nd):(f+1)*len(late)//(nf-nd)] if s == 17 else []
                seq += interleave(mfa(s, f), (wread(s, f+look) if f+look < nf else []) + extra)
            put(spread_in(seq, dma, spread if len(dma) < 8 else 2))
            if s == dstage and "notouch" not in abl: touch([sD], f"{name}_{P}td", 27)
            if ptouch and five and s == ptouch:
                k(f"""v_lshrrev_b32 v{vT0}, 2, v{vL}
s_lshl_b32 s3, s{sW}, 2
v_add_u32 v{vT0}, s3, v{vT0}
v_mul_u32_u24 v{vT0}, {9*16384 + 1024}, v{vT0}
v_and_b32 v{vT1}, 3, v{vL}
v_min_u32 v{vT1}, 2, v{vT1}
v_lshl_add_u32 v{vT0}, v{vT1}, 16, v{vT0}
v_mov_b32 v{vT1}, {OOB}
v_cmp_gt_u32 vcc, 16, v{vL}
v_cndmask_b32 v{vT0}, v{vT1}, v{vT0}, vcc""")
                k(f"buffer_load_dword v28, v{vT0}, {S4(sP)}, s{sRD} offen", tag="touch")
            xl = f"buffer_load_dword v{vQ}, v{vZ}, {S4(sF)}, s{sF1} offen sc1"
            if LP and five and s == tstage:
                k.wait_vm("I")
                k(f"""v_lshrrev_b32 v{vT0}, 4, v{vL}
v_lshlrev_b32 v{vT0}, 13, v{vT0}
v_bfe_u32 v{vT1}, v{vL}, 1, 3
v_lshl_add_u32 v{vT0}, v{vT1}, 10, v{vT0}
v_and_b32 v{vT1}, 1, v{vL}
v_lshl_add_u32 v{vT0}, v{vT1}, 7, v{vT0}
s_add_u32 s3, s{sPO}, {5*8192}
v_mov_b32 v{vT1}, s{sLoc}""")
                k(f"buffer_load_dword v28, v{vT0}, {S4(sP)}, s3 offen", tag="touch")
                k(f"buffer_store_dword v{vT1}, v{vZ}, {S4(sF)}, s{sF1} offen sc1")
            if LP and not five and s == 13: k(xl)
            if LP and not five and s == 15:
                spin(f"{name}_xid", xl, f"v_cmp_eq_u32 vcc, 0, v{vQ}")
                k(f"v_readfirstlane_b32 s3, v{vQ}\ns_cmp_eq_u32 s3, s{sLoc}\ns_cselect_b32 s{sLoc}, {0 if 'remote' in abl else 1}, 0")
            k.wait_lg(); k.wait_vm(f"A{s+1}", "A17" if fuse and s == 15 else "-"); k("s_barrier")
        if fuse:
            n0 = 16*nf
            wj = lambda j: WR + 4*((n0+j) % 8)
            def rd(j):
                f, s = j >> 1, 16 + (j & 1); i, u = f >> 1, f & 1
                va = (vWA if i % 2 == 0 else vWB)[s % 3]; d = wj(j)
                return [f"ds_read_b64_tr_b16 v[{d+2*h}:{d+2*h+1}], v{va} offset:{h*4*576 + i*32 + u*18432}" for h in range(2)]
            def mm(f): return [f"{MF} {vr(acc(f, nt), 4)}, {vr(wj(2*f+c), 4)}, {vr(XB[c]+4*nt, 4)}, {vr(acc(f, nt), 4)}" for nt in range(4) for c in range(2)]
            put(xread(16))
            for j in range(4): put(rd(j))
            put(spread_in(sum((mfa(15, f) for f in range(nf-nd, nf)), []), dmaB(0, five), 2))
            put(xread(17))
            for f in range(nf):
                fill = (rd(2*f+4) + rd(2*f+5)) if f+2 < nf else []
                if f < 2: fill = fill + late[f*len(late)//2:(f+1)*len(late)//2]
                else:
                    gl = glu(f//2 - 1); fill = fill + gl[(f % 2)*len(gl)//2:(f % 2 + 1)*len(gl)//2]
                put(interleave(mm(f), fill))
            k.wait_lg(); k("s_barrier")
            st(7)
            put(dmaB(1, five))
            for i in range(nt5-1): put(hwrite(i))
            put(sel)
            put(glu(nt5-1)); put(hwrite(nt5-1))
        else:
            put(sum((mfa(17, f) for f in range(nf-nd, nf)), []))
            st(7)
            k("s_mov_b32 s4, 1.0\ns_mov_b32 s5, 1.0")
            for i in range(nt5): put(glu(i)); put(hwrite(i))
            put(sel)
        if prio: k("s_setprio 0")
        k.wait_lg(); k.wait_vm("B0"); k("s_barrier")
        st(8); stb(0)
        if "dbl" in abl: k(f"s_cmp_eq_u32 s{sB}, 0\ns_mov_b32 s101, {288*1152}\ns_cselect_b32 s101, s101, {-288*1152}")
        if "cnt" in abl: k("s_mov_b32 s99, 0")
        HB = 112; AB = [80, 96]; WG = [28, 40, 52]; SD = 64
        def hreg(kp, nt): return HB + (kp*4+nt)*4
        def wgreg(gi, c): return WG[gi] + 4*c
        def wdread(u, gi):
            out = []
            for c in range(3):
                d = wgreg(gi, c); kp = gi*3+c
                out += [f"ds_read_b64_tr_b16 v[{d+2*h}:{d+2*h+1}], v{vWD[u % 4]} offset:{kp*4096 + h*2048}" for h in range(2)]
            return out
        def mfb(u, gi):
            out = []
            for nt in range(4):
                a = AB[u % 2]+4*nt
                for c in range(3):
                    out.append(f"{MF} {vr(a, 4)}, {vr(wgreg(gi, c), 4)}, {vr(hreg(gi*3+c, nt), 4)}, {'0' if gi == 0 and c == 0 else vr(a, 4)}")
            return out
        cvt = lambda u, h: [f"v_cvt_pk_bf16_f32 v{AB[u % 2]+8*h+q}, v{AB[u % 2]+8*h+2*q}, v{AB[u % 2]+8*h+2*q+1}" for q in range(4)]
        hread = lambda kp: [f"ds_read_b128 {vr(hreg(kp, nt), 4)}, v{vHR} offset:{(nt*9+kp)*1024}" for nt in range(4)]
        dmat = lambda t: (dmaB(2, five) + dmaB(3, five)) if t == 1 else (dmaB(t+2, five) if 2 <= t <= 6 else [])
        def phaseB_L():
            rounds = lambda ph: list(range(PH[ph-1]+1 if ph else 0, PH[ph]+1))
            TAG = lambda u: [0x1, 0x10000, 0x10001][(u+3)//4]
            alias = lambda u: 5 + (u-5) % 4
            def endslot(t):
                if t <= 7: k.wait_lg(); k.wait_vm(f"B{t+1}"); k("s_barrier")
                if t < 9: stb(t+1)
            arr_at = {c+4: ph for ph, c in enumerate(PH) if c+4 <= 9}
            tch_at = {t+1: ph for t, ph in arr_at.items() if t+1 <= 8 and ph < ntouch}
            if not five:
                def send(u):
                    lab = f"{name}_s{u}"
                    txt = f"s_add_u32 s3, s{sPO}, {alias(u)*8192}\n" + "\n".join(f"buffer_store_dwordx4 {vr(AB[u % 2]+8*h, 4)}, v{vPO}, {S4(sP)}, s3 offen offset:{h*128} POL" for h in range(2))
                    k(f"s_cmp_eq_u32 s{sLoc}, 0\ns_cbranch_scc1 {lab}_r")
                    q0 = k.seq
                    k(txt.replace("POL", ""))
                    k(f"s_branch {lab}_d\n{lab}_r:")
                    k.seq = q0
                    k(txt.replace("POL", "sc1"))
                    k.seq += 1
                    k(f"{lab}_d:")
                tag = lambda u, h: [f"s_mov_b32 s4, {TAG(u)}\nv_bfi_b32 v{AB[u % 2]+8*h}, v{vMK}, s4, v{AB[u % 2]+8*h}"]
                poll = lambda ph, tv: f"s_mov_b32 s3, {ph*32768}\nbuffer_load_dword v{tv}, v{vFL}, {S4(sF)}, s3 offen sc1"
                def check(ph, tv): spin(f"{name}_c{ph}", poll(ph, tv).split("\n")[1], f"s_mov_b32 s3, {ph*32768}\nv_cmp_eq_u32 vcc, 0, v{tv}")
                for t in range(9):
                    put(wdread(t, 0))
                    if t == 0:
                        for kp in range(3): put(hread(kp))
                        put(interleave(mfb(0, 0), wdread(0, 1) + hread(3)+hread(4)+hread(5)))
                        put(interleave(mfb(0, 1), wdread(0, 2) + hread(6)+hread(7)+hread(8)))
                    else:
                        d = mfb(t-1, 2)
                        put(d[:9]); put(interleave(d[9:], cvt(t-1, 0) + tag(t-1, 0)))
                        g0 = mfb(t, 0); g1 = mfb(t, 1)
                        put(interleave(g0[:3], wdread(t, 1)[:2] + cvt(t-1, 1) + tag(t-1, 1)))
                        send(t-1)
                        dm = dmat(t); h = (len(dm)+1)//2
                        put(spread_in(interleave(g0[3:], wdread(t, 1)[2:] + [""]*5), dm[:h], 2 if h <= 5 else 1))
                        put(spread_in(interleave(g1, wdread(t, 2) + [""]*6), dm[h:], 2 if h <= 5 else 1))
                        if t in tch_at:
                            ph = tch_at[t]; check(ph, 64)
                            if ph == 0: k(f"buffer_load_dword v65, v{vHT}, {S4(sH)}, 0 offen sc1", tag="touch")
                            rr = rounds(ph); assert len(rr) <= 4
                            k(f"s_cmp_lt_u32 s{sCG}, {len(rr)}\ns_cselect_b32 s3, s{sCG}, {OOB >> 13}\ns_add_u32 s3, s3, {rr[0]}\ns_lshl_b32 s3, s3, 13\nbuffer_load_dword v65, v{vTR}, {S4(sP)}, s3 offen sc1", tag="touch")
                    endslot(t)
                    if t+1 in tch_at: k(poll(tch_at[t+1], 64))
                first = len(tch_at)
                put(mfb(8, 2)); put(cvt(8, 0) + tag(8, 0) + cvt(8, 1) + tag(8, 1)); send(8)
                st(9)
                home = lambda r: (HB+16*r, HB+16*r+8, HB+16*r+12)
                def rloads(r):
                    RB, HV, DA = home(r)
                    for pg in range(2): k(f"s_add_u32 s3, s{sRD}, {r*8192 + pg*4*9*8192}\nbuffer_load_dwordx4 {vr(RB+4*pg, 4)}, v{vRD}, {S4(sP)}, s3 offen sc1")
                    k(f"s_movk_i32 s3, {r*2048}\nbuffer_load_dwordx2 {vr(HV, 2)}, v{vHO}, {S4(sH)}, s3 offen sc1")
                def rsum(r):
                    RB, HV, DA = home(r)
                    for pg in range(2): k(f"{MF} {vr(DA, 4)}, {vr(SEL, 4)}, {vr(RB+4*pg, 4)}, {'0' if pg == 0 else vr(DA, 4)}")
                    k(f"v_lshlrev_b32 v{RB}, 16, v{HV}\nv_and_b32 v{RB+1}, 0xffff0000, v{HV}\nv_lshlrev_b32 v{RB+2}, 16, v{HV+1}\nv_and_b32 v{RB+3}, 0xffff0000, v{HV+1}")
                def rfin(r):
                    RB, HV, DA = home(r)
                    for q in range(4): k(f"v_fma_f32 v{RB+q}, v{DA+q}, s{sLN}, v{RB+q}")
                    k(f"v_cvt_pk_bf16_f32 v{HV}, v{RB}, v{RB+1}\nv_cvt_pk_bf16_f32 v{HV+1}, v{RB+2}, v{RB+3}")
                rout = lambda r: k(f"buffer_store_dwordx2 {vr(home(r)[1], 2)}, v{vOO}, {S4(sO)}, 0 offen offset:{r*128} {OUTPOL}")
                pend = [r for ph in range(first) for r in rounds(ph)]
                for r in pend: rloads(r)
                for ph in range(first, len(PH)):
                    k(poll(ph, 64))
                    for r in pend: rsum(r)
                    for r in pend: rfin(r)
                    check(ph, 64)
                    for r in rounds(ph): rloads(r)
                    for r in pend: rout(r)
                    pend = rounds(ph)
                for r in pend: rsum(r)
                for r in pend: rfin(r); rout(r)
            else:
                sld = lambda u: f"s_add_u32 s3, s{sPO}, {alias(u)*8192}\n" + "\n".join(f"buffer_load_dwordx4 {vr(SD+4*h, 4)}, v{vPO}, {S4(sP)}, s3 offen offset:{h*128} sc1" for h in range(2))
                def add(u):
                    if "nol1chk" not in abl:
                        spin(f"{name}_k{u}", sld(u), f"s_mov_b32 s4, {TAG(u)}\nv_and_b32 v78, v{vMK}, v{SD}\nv_and_b32 v79, v{vMK}, v{SD+4}\nv_xor_b32 v78, s4, v78\nv_xor_b32 v79, s4, v79\nv_or_b32 v78, v78, v79\nv_cmp_ne_u32 vcc, 0, v78")
                    put([f"{MF} {vr(AB[u % 2]+8*h+4*q, 4)}, {vr(SK+2-2*q, 4)}, {vr(SD+4*h, 4)}, {vr(AB[u % 2]+8*h+4*q, 4)}" for h in range(2) for q in range(2)])
                pst = lambda u: [(f"s_add_u32 s3, s{sPO}, {u*8192}\nbuffer_store_dwordx4 {vr(AB[u % 2]+8*h, 4)}, v{vPO}, {S4(sP)}, s3 offen offset:{h*128} sc1", f"P{u}") for h in range(2)]
                def arrive1(ph):
                    k.wait_vm(f"P{PH[ph]}")
                    k(f"s_mov_b64 exec, 1\nds_add_rtn_u32 v7, v{vFL}, v{vFV} offset:{ph*4}\ns_mov_b64 exec, -1")
                def arrive2(ph):
                    k(f"v_readfirstlane_b32 s3, v7\ns_cmp_lg_u32 s3, 3\ns_cbranch_scc1 {name}_ar{ph}\ns_mov_b32 s3, {ph*32768}\nbuffer_store_dword v{vFV}, v{vFS}, {S4(sF)}, s3 offen sc1\n{name}_ar{ph}:")
                for kp in range(9): put(hread(kp))
                endslot(0)
                for t in range(1, 10):
                    u = t-1
                    put(wdread(u, 0))
                    if u >= 1: k(sld(u-1))
                    if u >= 2: put(pst(u-2))
                    if u >= 1: put(mfb(u-1, 2))
                    put(interleave(mfb(u, 0), wdread(u, 1) + [""]*6))
                    g1 = mfb(u, 1)
                    put(interleave(g1[:6], wdread(u, 2)))
                    if u >= 1:
                        add(u-1)
                        if t == 9: k(sld(8))
                        if t in arr_at: arrive1(arr_at[t])
                        put(g1[6:9])
                        put(interleave(g1[9:], cvt(u-1, 0) + cvt(u-1, 1)))
                        if t in arr_at: arrive2(arr_at[t])
                    else: put(g1[6:])
                    endslot(t)
                put(pst(7))
                put(mfb(8, 2)); add(8)
                st(9)
                p8 = pst(8)
                put(cvt(8, 0) + p8[:1] + cvt(8, 1) + p8[1:])
                for ph in range(len(arr_at), len(PH)): arrive1(ph); arrive2(ph)
        def phaseB_S():
            OWN = 73728
            pst = lambda u, h: (f"s_add_u32 s3, s{sPO}, {u*16384}\nbuffer_store_dwordx4 {vr(AB[u % 2]+8*h, 4)}, v{vPO}, {S4(sP)}, s3 offen offset:{h*128} sc1", f"P{u}")
            own = lambda u: [f"s_mov_b64 exec, s[{sEX}:{sEX+1}]\n" + "\n".join(f"ds_write_b128 v{vTR}, {vr(AB[u % 2]+8*h, 4)} offset:{u*1024+h*128}" for h in range(2)) + "\ns_mov_b64 exec, -1"] if skip else []
            epib = lambda u: cvt(u, 0) + [pst(u, 0)] + cvt(u, 1) + ([] if "half" in abl else [pst(u, 1)]) + own(u)
            def signal(ph):
                if five: k(f"s_cmp_lg_u32 s{sW}, 0\ns_cbranch_scc1 {name}_sig{ph}\ns_mov_b32 s3, {ph*32768}\nbuffer_store_dword v{vFV}, v{vFS}, {S4(sF)}, s3 offen sc1\n{name}_sig{ph}:")
            poll = lambda ph, tv: f"s_mov_b32 s3, {ph*32768}\nbuffer_load_dword v{tv}, v{vFL}, {S4(sF)}, s3 offen sc1"
            def check(ph, tv): spin(f"{name}_{P}c{ph}", poll(ph, tv).split("\n")[1], f"s_mov_b32 s3, {ph*32768}\nv_cmp_eq_u32 vcc, 0, v{tv}")
            rounds = lambda ph: list(range(PH[ph-1]+1 if ph else 0, PH[ph]+1))
            mine = lambda rr: [r for r in rr if (r % 2 == 0) == five]
            sig_at = {c+lag+1: ph for ph, c in enumerate(PH) if c+lag+1 <= 8}
            rd_at = {u+1: ph for u, ph in sig_at.items() if u+1 <= 8 and ph < inl}
            inloop = [r for ph in rd_at.values() for r in rounds(ph)]
            home = lambda r: (64, 6, 24) if r in inloop else (HB+24*(r >> 1), HB+24*(r >> 1)+16, HB+24*(r >> 1)+20)
            def rloads(r):
                RB, HV, DA = home(r); out = []
                for pg in range(2 if "half" in abl else 4):
                    ld = f"buffer_load_dwordx4 {vr(RB+4*pg, 4)}, v{vRD}, {S4(sP)}, s3 offen sc1"
                    if skip and pg == 0: ld = f"s_mov_b64 exec, 0xffff\nds_read_b128 {vr(RB, 4)}, v{vHT} offset:{r*1024}\ns_mov_b32 exec_hi, -1\ns_mov_b32 exec_lo, 0xffff0000\n{ld}\ns_mov_b64 exec, -1"
                    out.append(f"s_add_u32 s3, s{sRP+pg}, {r*16384}\n{ld}")
                out.append(f"s_movk_i32 s3, {r*2048}\nbuffer_load_dwordx2 {vr(HV, 2)}, v{vHO}, {S4(sH)}, s3 offen sc1")
                return out
            def rsum(r):
                RB, HV, DA = home(r)
                return [f"{MF} {vr(DA, 4)}, {vr(SEL, 4)}, {vr(RB+4*pg, 4)}, {'0' if pg == 3 else vr(DA, 4)}" for pg in (3, 2, 1, 0)]
            def rfin(r):
                RB, HV, DA = home(r)
                return [f"v_lshlrev_b32 v{RB}, 16, v{HV}", f"v_and_b32 v{RB+1}, 0xffff0000, v{HV}", f"v_lshlrev_b32 v{RB+2}, 16, v{HV+1}", f"v_and_b32 v{RB+3}, 0xffff0000, v{HV+1}"] + \
                       [f"v_fma_f32 v{RB+q}, v{DA+q}, s{sLN}, v{RB+q}" for q in range(4)] + \
                       [f"v_cvt_pk_bf16_f32 v{HV}, v{RB}, v{RB+1}", f"v_cvt_pk_bf16_f32 v{HV+1}, v{RB+2}, v{RB+3}"]
            rout = lambda r: [f"buffer_store_dwordx2 {vr(home(r)[1], 2)}, v{vOO}, {S4(sO)}, 0 offen offset:{r*128} {OUTPOL}"]
            pend = []
            for u in range(9):
                put(wdread(u, 0))
                if u in sig_at: signal(sig_at[u])
                if u == 0:
                    for kp in range(3): put(hread(kp))
                    put(interleave(mfb(0, 0), wdread(0, 1) + hread(3)+hread(4)+hread(5)))
                    put(interleave(mfb(0, 1), wdread(0, 2) + hread(6)+hread(7)+hread(8)))
                    if otouch: k(f"buffer_load_dword v19, v{vOO}, {S4(sO)}, 0 offen", tag="touch")
                else:
                    put(spread_in(mfb(u-1, 2), dmat(u), 2 if u > 1 and 'dbl' not in abl else 1))
                    put(interleave(mfb(u, 0), wdread(u, 1) + epib(u-1)))
                    g1 = mfb(u, 1); fill = []
                    if pend and u not in rd_at:
                        r = pend.pop(); g1 = g1[:6] + rsum(r) + g1[6:]; fill = [""]*8 + rfin(r) + rout(r)
                    elif u in rd_at and mine(rounds(rd_at[u])):
                        assert not pend and len(mine(rounds(rd_at[u]))) == 1
                        check(rd_at[u], 19); pend = mine(rounds(rd_at[u])); fill = rloads(pend[0])
                    put(interleave(g1[:6], wdread(u, 2))); put(interleave(g1[6:], fill) if fill else g1[6:])
                    if u == 8:
                        for ph in sig_at.values():
                            if ph not in rd_at.values(): k(poll(ph, 28+ph))
                if u < 8:
                    k.wait_lg(); k.wait_vm(f"B{u+1}", f"P{PH[sig_at[u+1]]}" if u+1 in sig_at else "-"); k("s_barrier")
                if u+1 in rd_at and mine(rounds(rd_at[u+1])): k(poll(rd_at[u+1], 19))
                if u < 9: stb(u+1)
            put(mfb(8, 2))
            st(9)
            put(epib(8))
            tailph = list(range(len(sig_at), len(PH)))
            if sigfirst and len(tailph) > 1 and order == 0:
                for ph in tailph[:-1]:
                    k.wait_vm(f"P{PH[ph]}"); k("s_barrier"); signal(ph)
            for ph in sig_at.values():
                if ph in rd_at.values(): continue
                check(ph, 28+ph)
                if "tail" in abl: k("s_memrealtime s[62:63]")
                for r in mine(rounds(ph)): put(rloads(r)); pend.append(r)
            if sigfirst:
                for ph in (tailph if order else tailph[-1:]):
                    k.wait_lg(); k.wait_vm(f"P{PH[ph]}")
                    if "tail" in abl: k("s_memrealtime s[64:65]")
                    k("s_barrier")
                    if "tail" in abl: k("s_memrealtime s[66:67]")
                    signal(ph)
            for ph in tailph:
                if not sigfirst:
                    k.wait_lg(); k.wait_vm(f"P{PH[ph]}"); k("s_barrier"); signal(ph)
                if not mine(rounds(ph)): continue
                k(poll(ph, 19))
                done = list(pend) if sigfirst and ph == len(PH)-1 else pend[:1]
                for r in done: put(rsum(r)); put(rfin(r))
                check(ph, 19)
                if "tail" in abl: k("s_memrealtime s[68:69]")
                for r in mine(rounds(ph)): put(rloads(r)); pend.append(r)
                for r in done: put(rout(r)); pend.remove(r)
            for r in pend: put(rsum(r)); put(rfin(r)); put(rout(r))
        phaseB_L() if LP else phaseB_S()
        if stamp:
            k("s_waitcnt vmcnt(0) lgkmcnt(0)\ns_memrealtime s[4:5]\ns_waitcnt lgkmcnt(0)")
            for i in range(10): k(f"v_mov_b32 v{28+i}, s{60+2*i}")
            k(f"""v_mov_b32 v38, s4
v_mov_b32 v39, s99
s_lshl_b32 s3, s2, 3
s_add_u32 s3, s3, s{sW}
s_lshl_b32 s3, s3, 6
s_add_u32 s3, s3, {O_STAMP}
v_mov_b32 v40, s3
global_store_dwordx4 v40, v[28:31], s[6:7]
global_store_dwordx4 v40, v[32:35], s[6:7] offset:16
global_store_dwordx4 v40, v[36:39], s[6:7] offset:32""")
            if "orc" in abl and not five:
                X = int(abl.split("orc")[1][:2]); which = abl.split("orc")[1][2:3] or "a"
                k(f"""s_cmp_lg_u32 s2, 0
s_cbranch_scc1 {name}_noorc
s_cmp_lg_u32 s{sW}, 4
s_cbranch_scc1 {name}_noorc
v_mov_b32 v41, {O_STAMP + 262144}
global_load_dword v44, v41, s[6:7]
s_waitcnt vmcnt(0)
v_readfirstlane_b32 s3, v44
s_sub_u32 s3, s{4 if which == 'a' else 60+2*int(which)}, s3
s_cmp_lt_u32 s3, {X*100}
s_cbranch_scc1 {name}_noorc
s_movk_i32 s3, 60
{name}_orcl:
s_sleep 64
s_sub_u32 s3, s3, 1
s_cbranch_scc0 {name}_orcl
{name}_noorc:""")
                k.saved.pop(f"{name}_orcl", None)
            if "until" in abl and not five:
                k(f"""s_cmp_lg_u32 s2, 0
s_cbranch_scc1 {name}_nount
s_cmp_lg_u32 s{sW}, 4
s_cbranch_scc1 {name}_nount
v_mov_b32 v41, {O_STAMP + 262144}
global_load_dword v44, v41, s[6:7]
s_waitcnt vmcnt(0)
v_readfirstlane_b32 s3, v44
{name}_untl:
s_memrealtime s[4:5]
s_waitcnt lgkmcnt(0)
s_sub_u32 s4, s4, s3
s_cmp_lt_u32 s4, 8000
s_cbranch_scc1 {name}_untl
{name}_nount:""")
                k.saved.pop(f"{name}_untl", None)
            if "dbg" in abl and not five:
                k(f"""s_cmp_lg_u32 s2, 0
s_cbranch_scc1 {name}_nodbg
s_cmp_lg_u32 s{sW}, 4
s_cbranch_scc1 {name}_nodbg
s_load_dwordx2 s[8:9], s[0:1], 64
v_mov_b32 v41, {O_STAMP + 262144}
global_load_dwordx4 v[44:47], v41, s[6:7]
global_load_dwordx4 v[48:51], v41, s[6:7] offset:16
v_mov_b32 v41, {O_STAMP + 2*262144}
global_load_dwordx4 v[52:55], v41, s[6:7]
global_load_dwordx4 v[56:59], v41, s[6:7] offset:16
s_waitcnt vmcnt(0) lgkmcnt(0)
s_sub_u32 s8, s8, {int(abl.split('dbg')[1][0])*512}
s_subb_u32 s9, s9, 0
v_sub_u32 v60, v46, v44
v_sub_u32 v61, v50, v44
v_sub_u32 v62, v52, v44
v_sub_u32 v63, v57, v44""")
                for i in range(11): k(f"v_sub_u32 v{64+i}, v{28+i}, v44")
                k(f"""v_mov_b32 v75, 12345
v_mov_b32 v41, 0
global_store_dwordx4 v41, v[60:63], s[8:9]
global_store_dwordx4 v41, v[64:67], s[8:9] offset:16
global_store_dwordx4 v41, v[68:71], s[8:9] offset:32
global_store_dwordx4 v41, v[72:75], s[8:9] offset:48
{name}_nodbg:""")
    k(f"s_cmp_ge_u32 s{sW}, 4\ns_cbranch_scc1 {name}_p4")
    path(True)
    k(f"s_endpgm\n{name}_p4:")
    path(False)
    k(f"{name}_end:")
    return k
```

```python
from asmlib import *
from layout import *
import struct
def fl(x): return "0x%08x" % struct.unpack("<I", struct.pack("<f", x))[0]
MF = "v_mfma_f32_16x16x32_bf16"
def ws_srd(k, d, off, nbytes, ws=6):
    k(f"s_add_u32 s{d}, s{ws}, {off}\ns_addc_u32 s{d+1}, s{ws+1}, 0\ns_mov_b32 s{d+2}, {nbytes}\ns_mov_b32 s{d+3}, 0x20000")
def srd_tail(k, d, nbytes): k(f"s_mov_b32 s{d+2}, {nbytes}\ns_mov_b32 s{d+3}, 0x20000")
S4 = lambda d: f"s[{d}:{d+3}]"

SLOT_A = [0, 45056, 90112]
RING_B = [0, 36864, 90112, 126976]
HH = 90112

def build_pf(look=3, nd=2, spread=4, stamp=False, abl="", name="pf", OUTPOL="", WPOL="", DPOL="", TPOL="", dstage=11, safe=0, XPOL="sc1", TPOLD="", ahead=7,
             phases="478", lag=2, ntouch=0, prio="", fuse=0, pk=1, W2=1, mode="S", merge=1, depi=17, droll=0, nl=0, wlate=1, sigfirst=1, order=0, ptouch=0, otouch=0, bulk=0, vprio=1, cprio=0, drain=1, ib2=1, nap=0, early=0, su3=0, w4p=0, late1=0, idlepf=1, inl=0, skip=1, lph="1358", istage=1, tstage=7):
    LP = mode == "L"
    PH = [int(c) for c in str(lph if LP else phases)]
    k = K(name, 256, 512, lds=163840, vgpr=256, sgpr=102)
    sG, sU, sD, sX, sP, sF, sS, sH, sO, sV, sI, sT = 8, 12, 16, 20, 24, 28, 32, 36, 40, 44, 48, 52
    sW, sMT, sSL, sRG = 56, 57, 58, 59
    sA, sKW, sKX, sM0a, sM0x, sM0s, sKD, sM0d, sPO, sCG, sRD, sLN, sLoc, sS1 = range(80, 94)
    sF1 = 96; sB = 97; sXC = 98
    vL, vDX, vD0, vD1, vD2, vT0, vT1, vT2 = range(8)
    vXr = [8, 9, 10]; vWA = [11, 12, 13]; vWB = [14, 15, 16]
    vDD, vPO, vHW = 17, 18, 19
    vWD = [20, 21, 22, 23]
    vHR, vHW2, vZ, vQ = 24, 25, 26, 27
    def stb(i):
        if stamp and "bst" in abl: k(f"s_memrealtime s[{60+2*i}:{61+2*i}]")
    def st(i):
        if stamp and "bst" not in abl: k(f"s_memrealtime s[{60+2*i}:{61+2*i}]")
    def put(items):
        for x in items:
            t = x[0] if isinstance(x, tuple) else x
            if "nodma" in abl and " lds" in t and x[1] not in ("A0", "A1"): continue
            if "nop2" in abl and "buffer_store" in t and isinstance(x, tuple) and x[1].startswith("P"): continue
            if "nomfma" in abl and "v_mfma" in t: continue
            if isinstance(x, tuple): k(x[0], tag=x[1])
            else: k(x)
    def spin(lab, load, cond, nap=0):
        bound = f"s_sub_u32 s5, s5, 1\ns_cbranch_scc1 {lab}_ok\n" if safe else ""
        k(f"{cond}\ns_cbranch_vccz {lab}_ok\n{f's_mov_b32 s5, {20000 if safe == 1 else 4000000}' if safe else ''}\n{lab}_spin:\n{'s_add_u32 s99, s99, 1' if 'cnt' in abl else ''}\n{bound}{f's_sleep {nap}' if nap else ''}\n{load}\ns_waitcnt vmcnt(0)\n{cond}\ns_cbranch_vccnz {lab}_spin\n{lab}_ok:")
        k.saved.pop(lab + "_spin", None)
    st(0)
    k(f"""
s_load_dwordx2 s[6:7], s[0:1], 72
s_load_dwordx2 s[{sG}:{sG+1}], s[0:1], 32
s_load_dwordx2 s[{sU}:{sU+1}], s[0:1], 40
s_load_dwordx2 s[{sI}:{sI+1}], s[0:1], 0
s_load_dwordx2 s[{sD}:{sD+1}], s[0:1], 48
s_load_dwordx2 s[{sO}:{sO+1}], s[0:1], 56
s_cmp_ge_u32 s2, 256
s_cbranch_scc1 {name}_end
v_lshrrev_b32 v{vT0}, 6, v0
v_and_b32 v{vL}, 63, v0
v_readfirstlane_b32 s{sW}, v{vT0}
s_lshr_b32 s3, s2, 3
s_and_b32 s{sMT}, s3, 15
s_lshr_b32 s{sB}, s3, 4
s_and_b32 s{sXC}, s2, 7
s_lshl_b32 s4, s{sXC}, 1
s_add_u32 s{sSL}, s4, s{sB}
v_lshlrev_b32 v{vDX}, 4, v{vL}
v_mov_b32 v{vZ}, 0
v_mov_b32 v37, 0
v_mov_b32 v2, 0
v_mov_b32 v3, 0
v_mov_b32 v4, 0
v_mov_b32 v47, 0
v_mov_b32 v30, 0
""")
    o = 32
    R = lambda n: n + o
    sS2, sNT, sVB, sXO, sSO = 99, sB, 100, 101, (96 if early else sRD)
    assert not (early and LP)
    sAct = 92
    L, MB_, AC, TW, G, XX = R(16), R(48), R(64), R(96), R(120), R(160)
    EZ = 90112; ES = EZ + 20480
    g_, n_, vVA, vHS, vRow, vXo, vEW, vSW, vSR = R(2), R(3), R(4), R(5), R(6), R(7), R(9), R(14), R(15)
    t0, t1, t2, t3 = R(10), R(11), R(12), R(13)
    assert merge
    NV = O_TAB - O_U + N_TAB
    vloads = "\n".join(f"s_add_u32 s3, s{sVB}, {(16*kk+t)*64*ROWB}\nbuffer_load_dwordx4 {vr(L+16*kk+4*t, 4)}, v{vVA}, {S4(sV)}, s3 offen sc1" for kk in range(2) for t in range(4))
    k(f"""
s_and_b32 s3, s{sXC}, 3
s_lshl_b32 s{sS2}, s{sMT}, 2
s_add_u32 s{sS2}, s{sS2}, s3
s_lshr_b32 s3, s{sXC}, 2
s_and_b32 s4, s{sMT}, 1
s_cmp_eq_u32 s3, s4
s_cselect_b32 s{sAct}, 1, 0
s_lshl_b32 s3, s{sB}, 3
s_lshr_b32 s4, s{sMT}, 1
s_add_u32 s81, s3, s4
s_waitcnt lgkmcnt(0)
""")
    ws_srd(k, sV, O_V, NV)
    def common_setup():
        k(f"""
v_lshrrev_b32 v{g_}, 4, v{vL}
v_and_b32 v{n_}, 15, v{vL}
s_lshl_b32 s3, s{sW}, 4
v_add_u32 v{vVA}, s3, v{n_}
v_lshlrev_b32 v{vVA}, 4, v{vVA}
v_mul_u32_u24 v{t0}, {4*64*ROWB}, v{g_}
v_add_u32 v{vVA}, v{vVA}, v{t0}
s_mul_i32 s{sVB}, s{sS2}, {ROWB}
s_lshl_b32 s3, s{sNT}, 4
v_add_u32 v{vRow}, s3, v{n_}
v_lshl_add_u32 v{vRow}, v{vRow}, 6, s{sS2}
v_mul_u32_u24 v{vXo}, 1152, v{vRow}
v_lshl_add_u32 v{vXo}, v{g_}, 5, v{vXo}
s_lshl_b32 s{sXO}, s{sW}, 7
""")
        srd_tail(k, sI, N_H); ws_srd(k, sT, O_TAB, N_TAB)
        ws_srd(k, sX, O_XF, N_XF); ws_srd(k, sH, O_H, N_H); ws_srd(k, sF, O_FLG, N_FLG)
        for d in (sG, sU, sD): srd_tail(k, d, N_W)
        srd_tail(k, sO, N_H)
        ws_srd(k, sP, O_P, N_P)
        k(f"s_bitcmp0_b32 s{sW}, 1\ns_cselect_b32 s{sS}, s{sG}, s{sU}\ns_cselect_b32 s{sS+1}, s{sG+1}, s{sU+1}")
        srd_tail(k, sS, N_W)
    def pattern(vd):
        k(f"""
s_lshl_b32 s4, s3, 6
v_add_u32 v{vT0}, s4, v{vL}
v_mul_u32_u24 v{vT1}, 1821, v{vT0}
v_lshrrev_b32 v{vT1}, 16, v{vT1}
v_mul_u32_u24 v{vT2}, 36, v{vT1}
v_sub_u32 v{vT0}, v{vT0}, v{vT2}
v_lshrrev_b32 v{vT2}, 2, v{vT1}
v_and_b32 v{vT2}, 2, v{vT2}
v_xor_b32 v{vT0}, v{vT0}, v{vT2}
v_lshlrev_b32 v{vT0}, 4, v{vT0}
v_and_b32 v{vT2}, 24, v{vT1}
v_add_u32 v{vT1}, v{vT1}, v{vT2}
v_mul_u32_u24 v{vT1}, 9216, v{vT1}
v_add_u32 v{vd}, v{vT0}, v{vT1}
""")
    def mlp_setup():
        k(f"s_and_b32 s{sRG}, s{sW}, 1\ns_bfe_u32 s{sA}, s{sW}, 0x10001\n{'s_and_b32' if LP else 's_lshr_b32'} s{sCG}, s{sW}, {3 if LP else 1}")
        k(f"s_lshl_b32 s3, s{sW}, 1"); pattern(vD0)
        k(f"s_add_u32 s3, s3, 1"); pattern(vD1)
        k(f"s_add_u32 s3, s{sRG}, 16"); pattern(vD2)
        k(f"""
s_mul_i32 s{sKW}, s{sSL}, 576
s_lshl_b32 s3, s{sMT}, 3
s_add_u32 s3, s3, s{sW}
s_mul_i32 s{sKX}, s3, 18432
s_lshl_b32 s{sM0x}, s{sW}, 10
s_lshl_b32 s{sM0a}, s{sW}, 11
s_add_u32 s{sM0a}, s{sM0a}, 8192
s_mul_i32 s3, s{sA}, 18432
s_lshl_b32 s4, s{sRG}, 10
s_add_u32 s3, s3, s4
s_add_u32 s{sM0s}, s3, {8192+16*1024}
""")
    def dmaX(s):
        return [(f"s_add_u32 m0, s{sM0x}, {SLOT_A[s % 3]}\ns_add_u32 s94, s{sKX}, {s*1024}\nbuffer_load_dwordx4 v{vDX}, {S4(sX)}, s94 offen {XPOL} lds", f"A{s}")]
    def dmaW(s, six):
        o = SLOT_A[s % 3]
        g = [f"s_add_u32 m0, s{sM0a}, {o}\ns_add_u32 s95, s{sKW}, {((s >> 1)*64 + (s & 1)*8)*9216}\nbuffer_load_dwordx4 v{vD0}, {S4(sG)}, s95 offen {WPOL} lds",
             f"s_add_u32 m0, s{sM0a}, {o+1024}\nbuffer_load_dwordx4 v{vD1}, {S4(sG)}, s95 offen {WPOL} lds",
             f"s_add_u32 m0, s{sM0a}, {o+18432}\nbuffer_load_dwordx4 v{vD0}, {S4(sU)}, s95 offen {WPOL} lds",
             f"s_add_u32 m0, s{sM0a}, {o+18432+1024}\nbuffer_load_dwordx4 v{vD1}, {S4(sU)}, s95 offen {WPOL} lds"]
        if six: g.append(f"s_add_u32 m0, s{sM0s}, {o}\nbuffer_load_dwordx4 v{vD2}, {S4(sS)}, s95 offen {WPOL} lds")
        return [(x, f"A{s}") for x in g]
    def dmaB(u, five):
        o = RING_B[u % 4]
        if LP and five: return []
        if "dbl" in abl:
            return [(f"s_add_u32 m0, s{sM0d}, {o+i*1024}\ns_add_u32 s94, s{sKD}, {i*8*1152+u*128}\n{'s_xor_b32 s94, s94, 0' if q == 0 else 's_add_u32 s94, s94, s101'}\nbuffer_load_dwordx4 v{vDD}, {S4(sD)}, s94 offen {DPOL} lds", f"B{u}") for q in range(2) for i in range(4 if five else 5)]
        return [(f"s_add_u32 m0, s{sM0d}, {o+i*1024}\ns_add_u32 s94, s{sKD}, {i*8*1152+u*128}\nbuffer_load_dwordx4 v{vDD}, {S4(sD)}, s94 offen {DPOL} lds", f"B{u}") for i in range(9 if LP else 4 if five else 5)]
    def first_w(lab, only=None):
        for s in (only or ((0,) if late1 else (0, 1))):
            put(dmaW(s, False))
            k(f"s_cmp_lt_u32 s{sW}, 4\ns_cbranch_scc1 {lab}{s}")
            put(dmaW(s, True)[4:])
            k(f"{lab}{s}:")
    def bulk_w():
        k(f"s_sub_u32 s3, s{sW}, 5\ns_mul_i32 s3, s3, 6\ns_lshl_b32 s5, s3, 10\ns_add_u32 s5, s5, 8192\ns_add_u32 s95, s{sKW}, {8*9216}")
        for i in range(6):
            pattern(t0)
            for s_, so in ((0, sKW), (1, 95))[:1 if bulk == 2 else 2]:
                for m, d in enumerate((sG, sU)):
                    k(f"s_add_u32 m0, s5, {SLOT_A[s_] + m*18432 + i*1024}\nbuffer_load_dwordx4 v{t0}, {S4(d)}, s{so} offen {WPOL} lds", tag="A0")
            k("s_add_u32 s3, s3, 1")
    def rest_loads(lab):
        k(f"buffer_load_dwordx4 {vr(XX, 4)}, v{vXo}, {S4(sI)}, s{sXO} offen\nbuffer_load_dwordx4 {vr(XX+4, 4)}, v{vXo}, {S4(sI)}, s{sXO} offen offset:16")
        k(f"s_mul_i32 s3, s{sW}, 5120\ns_add_u32 s3, s3, 16384\ns_add_u32 s4, s3, 4096")
        for f in range(5): k(f"buffer_load_dwordx4 {vr(G+4*f, 4)}, v{vDX}, {S4(sT)}, s{3+f//4} offen offset:{(f % 4)*1024}")
        k(f"s_cmp_lg_u32 s{sW}, {W2}\ns_cbranch_scc1 {lab}")
        k(f"buffer_load_dwordx4 {vr(XX+8, 4)}, v{vXo}, {S4(sI)}, 0 offen offset:1024\nbuffer_load_dwordx4 {vr(XX+12, 4)}, v{vXo}, {S4(sI)}, 0 offen offset:1040")
        k(f"s_mov_b32 s3, {(16+40)*1024}\ns_mov_b32 s4, {(16+44)*1024}")
        for f in range(5): k(f"buffer_load_dwordx4 {vr(G+20+4*f, 4)}, v{vDX}, {S4(sT)}, s{3+f//4} offen offset:{(f % 4)*1024}")
        k(f"{lab}:")
    def matrices():
        k(f"""
v_cvt_f32_u32 v{t0}, v{vRow}
v_mul_f32 v{t0}, {fl(1/2048)}, v{t0}
v_cvt_f32_u32 v{t1}, v{g_}
v_mul_f32 v{t1}, 4.0, v{t1}
v_mul_f32 v{vEW}, v{t0}, v{t1}
""")
        for kk in range(2):
            for t in range(4):
                k(f"""v_fmamk_f32 v{t2}, v{t0}, {fl(float(16*kk+t))}, v{vEW}
v_cos_f32 v{t3}, v{t2}
v_sin_f32 v{t2}, v{t2}
v_cvt_pk_bf16_f32 v{MB_+4*kk+t}, v{t3}, -v{t2}
v_cvt_pk_bf16_f32 v{MB_+8+4*kk+t}, v{t2}, v{t3}""")
        tw = [f"s_lshl_b32 s3, s{sW}, 4", f"v_cvt_f32_u32 v{t0}, s3", f"v_add_f32 v{t1}, v{t1}, v{t0}"]
        for r in range(4):
            if r: tw.append(f"v_add_f32 v{t1}, 1.0, v{t1}")
            for q in range(1, 4):
                tw += [f"v_mul_f32 v{t2}, {fl(q/576)}, v{t1}", f"v_cos_f32 v{TW+8*(q-1)+r}, v{t2}", f"v_sin_f32 v{TW+8*(q-1)+4+r}, v{t2}"]
        return tw
    sSU = 96
    if merge:
        from fft import column_task
        k(f"""s_mov_b32 s{sSU}, 0
s_cmp_eq_u32 s{sAct}, 0
s_cbranch_scc1 {name}_qi
s_lshl_b32 s3, s81, 1
s_sub_u32 s4, s{sW}, 5
s_add_u32 s3, s3, s4
s_cmp_lt_u32 s4, 2
s_cbranch_scc1 {name}_col
s_cmp_lt_u32 s{sW}, 5
s_cbranch_scc0 {name}_nocol""")
        common_setup()
        put(matrices())
        k(f"""v_cmp_le_u32 vcc, 12, v{n_}
s_cmp_eq_u32 s{sW}, 4
s_cselect_b64 vcc, vcc, 0
v_cndmask_b32 v{vHS}, 0, 1, vcc
s_barrier""")
        rest_loads(f"{name}_rl3")
        k(f"s_barrier")
        st(1)
        if vprio: k(f"s_and_b32 s3, s{sW}, 3\ns_cmp_lg_u32 s3, 0\ns_cbranch_scc1 {name}_vp\ns_setprio 2\n{name}_vp:")
        k(vloads)
        chk = "\n".join([f"v_and_b32 v{t0}, v{L}, v{L+4}"] + [f"v_and_b32 v{t0}, v{t0}, v{L+4*i}" for i in range(2, 8)] + [f"v_or_b32 v{t0}, v{t0}, v{vHS}", f"v_and_b32 v{t0}, 1, v{t0}", f"v_cmp_eq_u32 vcc, 0, v{t0}"])
        spin(f"{name}_v", vloads, chk, nap)
        if bulk == 2: k("s_barrier")
        k(f"""s_branch {name}_doA
{name}_qi:
s_mul_i32 s3, s81, 3
s_add_u32 s3, s3, s{sW}
s_add_u32 s3, s3, 32
s_cmp_ge_u32 s{sW}, 3
s_cbranch_scc1 {name}_nocol
s_cmp_ge_u32 s3, 76
s_cbranch_scc1 {name}_nocol
{name}_col:
s_mul_i32 s4, s3, 27
s_lshr_b32 s4, s4, 9
s_mul_i32 s5, s4, 19
s_sub_u32 s81, s3, s5
s_lshl_b32 s3, s{sXC}, 2
s_add_u32 s82, s3, s4""")
        if cprio: k(f"s_setprio {cprio}")
        column_task(k, 48, 81, 82, 83, sV, vDX, vL, common_setup, lambda: (st(1), k("s_barrier")))
        st(2)
        if cprio: k("s_setprio 0")
        if drain: k("s_waitcnt vmcnt(0)")
        if ib2: k(f"s_barrier\ns_cmp_eq_u32 s{sAct}, 0\ns_cbranch_scc1 {name}_fin")
        else: k(f"s_cmp_eq_u32 s{sAct}, 0\ns_cbranch_scc1 {name}_fin\ns_barrier")
        mlp_setup()
        k(f"s_mov_b32 s{sSU}, 1")
        rest_loads(f"{name}_rl4")
        k(f"s_branch {name}_bulk\n{name}_nocol:")
        common_setup()
        mlp_setup()
        k(f"s_mov_b32 s{sSU}, 1\ns_barrier\ns_cmp_eq_u32 s{sAct}, 0\ns_cbranch_scc1 {name}_ib")
        rest_loads(f"{name}_rl1")
        k(f"s_barrier\n{name}_bulk:")
        if bulk == 2: k("s_barrier")
        if bulk: bulk_w()
        k(f"s_branch {name}_noA\n{name}_ib:\n{'s_barrier' if ib2 else ''}\ns_branch {name}_fin\n{name}_doA:")
        tw = [""]*22
    else:
        k(f"s_cmp_lt_u32 s{sW}, 5\ns_cbranch_scc1 {name}_doA")
        mlp_setup()
        rest_loads(f"{name}_rl1")
        k(f"s_branch {name}_noA\n{name}_doA:")
        tw = matrices()
        put(tw[:22])
    st(2)
    for kk in range(2):
        for a in range(4):
            for b in range(a+1, 4): k(f"v_swap_b32 v{L+16*kk+4*a+b}, v{L+16*kk+4*b+a}")
    mf = []
    for m in (0, 2, 1, 3):
        for kk in range(2):
            for c in range(2):
                a = AC+8*m+4*c
                mf.append(f"{MF} {vr(a, 4)}, {vr(L+16*kk+4*m, 4)}, {vr(MB_+8*c+4*kk, 4)}, {'0' if kk == 0 else vr(a, 4)}")
    put(interleave(mf, tw[22:]) if tw[22:] else mf)
    if not merge: rest_loads(f"{name}_rl2")
    Z = L; T = L+16
    p2 = lambda x: vr(x, 2)
    NEG = "neg_lo:[0,1] neg_hi:[0,1]"
    for r in (0, 2):
        Rr = lambda m: AC+8*m+r
        I = lambda m: AC+8*m+4+r
        ar, ai, br, bi, cr, ci, dr, di = (T+2*i for i in range(8))
        k(f"""
v_pk_add_f32 {p2(ar)}, {p2(Rr(0))}, {p2(Rr(2))}
v_pk_add_f32 {p2(ai)}, {p2(I(0))}, {p2(I(2))}
v_pk_add_f32 {p2(cr)}, {p2(Rr(1))}, {p2(Rr(3))}
v_pk_add_f32 {p2(ci)}, {p2(I(1))}, {p2(I(3))}
v_pk_add_f32 {p2(br)}, {p2(Rr(0))}, {p2(Rr(2))} {NEG}
v_pk_add_f32 {p2(bi)}, {p2(I(0))}, {p2(I(2))} {NEG}
v_pk_add_f32 {p2(dr)}, {p2(Rr(1))}, {p2(Rr(3))} {NEG}
v_pk_add_f32 {p2(di)}, {p2(I(1))}, {p2(I(3))} {NEG}
v_pk_add_f32 {p2(Rr(0))}, {p2(ar)}, {p2(cr)}
v_pk_add_f32 {p2(I(0))}, {p2(ai)}, {p2(ci)}
v_pk_add_f32 {p2(Rr(1))}, {p2(br)}, {p2(di)} {NEG}
v_pk_add_f32 {p2(I(1))}, {p2(bi)}, {p2(dr)}
v_pk_add_f32 {p2(Rr(2))}, {p2(ar)}, {p2(cr)} {NEG}
v_pk_add_f32 {p2(I(2))}, {p2(ai)}, {p2(ci)} {NEG}
v_pk_add_f32 {p2(Rr(3))}, {p2(br)}, {p2(di)}
v_pk_add_f32 {p2(I(3))}, {p2(bi)}, {p2(dr)} {NEG}
v_cvt_pk_bf16_f32 v{Z+r}, v{Rr(0)}, v{I(0)}
v_cvt_pk_bf16_f32 v{Z+r+1}, v{Rr(0)+1}, v{I(0)+1}
""")
        for q in range(1, 4):
            cc = TW+8*(q-1)+r
            k(f"v_pk_mul_f32 {p2(T+4*q)}, {p2(cc)}, {p2(Rr(q))}\nv_pk_mul_f32 {p2(T+4*q+2)}, {p2(cc)}, {p2(I(q))}")
        for q in range(1, 4):
            ss = TW+8*(q-1)+4+r
            k(f"v_pk_fma_f32 {p2(T+4*q)}, {p2(ss)}, {p2(I(q))}, {p2(T+4*q)} neg_lo:[1,0,0] neg_hi:[1,0,0]\nv_pk_fma_f32 {p2(T+4*q+2)}, {p2(ss)}, {p2(Rr(q))}, {p2(T+4*q+2)}")
        for q in range(1, 4):
            k(f"v_cvt_pk_bf16_f32 v{Z+4*q+r}, v{T+4*q}, v{T+4*q+2}\nv_cvt_pk_bf16_f32 v{Z+4*q+r+1}, v{T+4*q+1}, v{T+4*q+3}")
    k(f"s_lshl_b32 s3, s{sW}, 10\ns_add_u32 s3, s3, {EZ}\nv_add_u32 v{vEW}, s3, v{vDX}")
    for q in range(4): k(f"ds_write_b128 v{vEW}, {vr(Z+4*q, 4)} offset:{q*5120}")
    k(f"s_setprio 0\ns_cmp_eq_u32 s{sW}, 4\ns_cbranch_scc1 {name}_noA")
    if su3: mlp_setup()
    k(f"{name}_noA:")
    k(f"""
v_lshlrev_b32 v{vSR}, 6, v{n_}
v_add_u32 v{vSR}, {ES}, v{vSR}
v_lshrrev_b32 v{vSW}, {2 if nl else 1}, v{g_}
v_lshl_add_u32 v{vSW}, v{vSW}, 2, v{vSR}
s_lshl_b32 s3, s{sW}, 3
v_add_u32 v{vSW}, s3, v{vSW}
v_lshrrev_b32 v{vHS}, 1, v{n_}
v_lshlrev_b32 v{vHS}, 7, v{vHS}
v_and_b32 v{t0}, 1, v{n_}
v_lshl_add_u32 v{vHS}, v{t0}, 6, v{vHS}
v_lshl_add_u32 v{vHS}, v{g_}, 4, v{vHS}
v_add_u32 v{vEW}, {EZ}, v{vDX}
s_lshl_b32 s3, s{sS2}, 1
s_add_u32 s3, s3, s{sNT}
s_mul_i32 s4, s3, 18432
s_lshl_b32 s5, s{sW}, 11
s_add_u32 s{sSO}, s4, s5
s_add_u32 s{sVB}, s4, 16384
s_and_b32 s3, s3, 7
s_lshl_b32 s3, s3, 2
s_lshl_b32 s4, s{sMT}, 11
s_add_u32 s{sXO}, s3, s4
s_mov_b32 s5, 0xffff0000
""")
    A2 = AC; ZR = L
    def allsum(a, b):
        k(f"""v_add_f32 v{a}, v{a}, v{a+1}
v_mov_b32 v{b}, v{a}
v_permlane32_swap_b32 v{a}, v{b}
v_add_f32 v{a}, v{a}, v{b}
v_mov_b32 v{b}, v{a}
v_permlane16_swap_b32 v{a}, v{b}
v_add_f32 v{a}, v{a}, v{b}""")
    def final_nl(nmt):
        so = [sSO, sVB]
        prs = [A2+16*mt+4*q+2*p for mt in range(nmt) for q in range(4) for p in range(2)]
        for mt in range(nmt):
            for r in range(4):
                for q in range(4):
                    src = XX+8*mt+2*r+(q >> 1); dst = A2+16*mt+4*q+r
                    k(f"v_and_b32 v{dst}, s5, v{src}" if q & 1 else f"v_lshlrev_b32 v{dst}, 16, v{src}")
        k(f"v_pk_add_f32 {vr(t0, 2)}, {vr(prs[0], 2)}, {vr(prs[1], 2)}\nv_pk_add_f32 {vr(t2, 2)}, {vr(prs[2], 2)}, {vr(prs[3], 2)}")
        for i, a in enumerate(prs[4:]): k(f"v_pk_add_f32 {vr(t0+2*(i & 1), 2)}, {vr(t0+2*(i & 1), 2)}, {vr(a, 2)}")
        k(f"v_pk_add_f32 {vr(t0, 2)}, {vr(t0, 2)}, {vr(t2, 2)}")
        allsum(t0, t1)
        k(f"ds_write_b32 v{vSW}, v{t0}")
        k.wait_lg(); k("s_barrier")
        st(3)
        idx = [(jt, q) for jt in range(5) for q in range(4)]
        rd = lambda i: f"ds_read_b128 {vr(ZR+4*(i % 8), 4)}, v{vEW} offset:{idx[i][1]*5120+idx[i][0]*1024}"
        for i in range(7): k(rd(i))
        for w in range(4): k(f"ds_read_b128 {vr(MB_+4*w, 4)}, v{vSR} offset:{16*w}")
        mean = [f"v_add_f32 v{MB_+a}, v{MB_+a}, v{MB_+b}" for a, b in ((0, 2), (4, 6), (8, 10), (12, 14), (0, 4), (8, 12), (0, 8))] + \
               [f"v_mul_f32 v{t0}, {fl(-1/576)}, v{MB_}", f"v_mul_f32 v{t1}, {fl(-1/576)}, v{MB_}"]
        for i, (jt, q) in enumerate(idx):
            for mt in range(nmt):
                a = A2+16*mt+4*q
                k(f"{MF} {vr(a, 4)}, {vr(G+20*mt+4*jt, 4)}, {vr(ZR+4*(i % 8), 4)}, {vr(a, 4)}")
            if i+7 < 20: k(rd(i+7))
            if 8 <= i < 8+len(mean): k(mean[i-8])
        def pack(dst, src, h):
            for p in range(4):
                r, q = 2*h+(p >> 1), 2*(p & 1)
                k(f"v_cvt_pk_bf16_f32 v{dst+p}, v{src+4*q+r}, v{src+4*(q+1)+r}")
        HC = G
        for mt in range(nmt):
            for h in range(2):
                for q in range(4): k(f"v_pk_add_f32 {vr(HC+16*mt+4*q+2*h, 2)}, {vr(A2+16*mt+4*q+2*h, 2)}, {vr(t0, 2)}")
                pack(L+8*mt+4*h, HC+16*mt, h)
                k(f"buffer_store_dwordx4 {vr(L+8*mt+4*h, 4)}, v{vDX}, {S4(sX)}, s{so[mt]} offen offset:{h*1024} sc1", tag="XF")
        hp = [a - A2 + HC for a in prs]
        k(f"v_pk_mul_f32 {vr(t0, 2)}, {vr(hp[0], 2)}, {vr(hp[0], 2)}\nv_pk_mul_f32 {vr(t2, 2)}, {vr(hp[1], 2)}, {vr(hp[1], 2)}")
        for i, a in enumerate(hp[2:]): k(f"v_pk_fma_f32 {vr(t0+2*(i & 1), 2)}, {vr(a, 2)}, {vr(a, 2)}, {vr(t0+2*(i & 1), 2)}")
        k(f"v_pk_add_f32 {vr(t0, 2)}, {vr(t0, 2)}, {vr(t2, 2)}")
        allsum(t0, t1)
        k(f"ds_write_b32 v{vSW}, v{t0} offset:4")
        for mt in range(nmt):
            for h in range(2): pack(XX+8*mt+4*h, A2+16*mt, h)
        k(f"""v_mov_b32 v{vEW}, v{vSR}
v_lshl_add_u32 v30, v{vL}, 7, s{sXO}
v_mov_b32 v{vSR}, {OOB}
v_cmp_gt_u32 vcc, 16, v{vL}
v_cndmask_b32 v30, v{vSR}, v30, vcc
v_mov_b32 v{vSW}, 1""")
    def final(nmt):
        if nl: return final_nl(nmt)
        so = [sSO, sVB]
        for mt in range(nmt):
            for r in range(4):
                for q in range(4):
                    src = XX+8*mt+2*r+(q >> 1); dst = A2+16*mt+4*q+r
                    k(f"v_and_b32 v{dst}, s5, v{src}" if q & 1 else f"v_lshlrev_b32 v{dst}, 16, v{src}")
        k.wait_lg(); k("s_barrier")
        st(3)
        idx = [(jt, q) for jt in range(5) for q in range(4)]
        rd = lambda i: f"ds_read_b128 {vr(ZR+4*(i % 8), 4)}, v{vEW} offset:{idx[i][1]*5120+idx[i][0]*1024}"
        for i in range(7): k(rd(i))
        for i, (jt, q) in enumerate(idx):
            for mt in range(nmt):
                a = A2+16*mt+4*q
                k(f"{MF} {vr(a, 4)}, {vr(G+20*mt+4*jt, 4)}, {vr(ZR+4*(i % 8), 4)}, {vr(a, 4)}")
            if i+7 < 20: k(rd(i+7))
        if "p3st" in abl: k("s_memrealtime s[62:63]")
        first = True
        for mt in range(nmt):
            for q in range(4):
                for p in range(2):
                    a = A2+16*mt+4*q+2*p
                    if first: k(f"v_mov_b64 {vr(t0, 2)}, {vr(a, 2)}\nv_pk_mul_f32 {vr(t2, 2)}, {vr(a, 2)}, {vr(a, 2)}"); first = False
                    else: k(f"v_pk_add_f32 {vr(t0, 2)}, {vr(t0, 2)}, {vr(a, 2)}\nv_pk_fma_f32 {vr(t2, 2)}, {vr(a, 2)}, {vr(a, 2)}, {vr(t2, 2)}")
        k(f"""
v_add_f32 v{t0}, v{t0}, v{t1}
v_add_f32 v{t2}, v{t2}, v{t3}
v_permlane32_swap_b32 v{t0}, v{t2}
v_add_f32 v{t0}, v{t0}, v{t2}
v_mov_b32 v{t1}, v{t0}
v_permlane16_swap_b32 v{t0}, v{t1}
v_add_f32 v{t0}, v{t0}, v{t1}
ds_write_b32 v{vSW}, v{t0}
""")
        def pack(dst, mt, h):
            for p in range(4):
                r, q = 2*h+(p >> 1), 2*(p & 1)
                k(f"v_cvt_pk_bf16_f32 v{dst+p}, v{A2+16*mt+4*q+r}, v{A2+16*mt+4*(q+1)+r}")
        for mt in range(nmt):
            for h in range(2): pack(XX+8*mt+4*h, mt, h)
        k.wait_lg(); k("s_barrier")
        if "p3st" in abl: k("s_memrealtime s[64:65]")
        for w in range(4): k(f"ds_read_b128 {vr(L+4*w, 4)}, v{vSR} offset:{16*w}")
        k(f"""v_lshl_add_u32 v{vSW}, v{vL}, 7, s{sXO}
v_mov_b32 v{vSR}, {OOB}
v_cmp_gt_u32 vcc, 16, v{vL}
v_cndmask_b32 v{vSR}, v{vSR}, v{vSW}, vcc
v_mov_b32 v{vSW}, 1""")
        for a, b in ((0, 2), (4, 6), (8, 10), (12, 14), (0, 4), (8, 12), (0, 8)):
            k(f"v_pk_add_f32 {vr(L+a, 2)}, {vr(L+a, 2)}, {vr(L+b, 2)}")
        k(f"""
v_mul_f32 v{t0}, {fl(1/576)}, v{L}
v_mul_f32 v{t1}, v{t0}, v{t0}
v_fmamk_f32 v{t2}, v{L+1}, {fl(1/576)}, v{t1}
v_fma_f32 v{t2}, -2.0, v{t1}, v{t2}
v_max_f32 v{t2}, 0, v{t2}
v_add_f32 v{t2}, {fl(1e-5)}, v{t2}
v_rsq_f32 v{t2}, v{t2}
v_mul_f32 v{t2}, {fl(LOG2E)}, v{t2}
v_mul_f32 v{t0}, -v{t0}, v{t2}
v_mov_b32 v{t3}, v{t2}
v_mov_b32 v{t1}, v{t0}
s_cmp_eq_u32 s{sW}, 0
s_cselect_b32 s4, 0x10001, 0
""")
        for mt in range(nmt):
            for q in range(4):
                for p in range(2):
                    a = A2+16*mt+4*q+2*p
                    k(f"v_pk_fma_f32 {vr(a, 2)}, {vr(a, 2)}, {vr(t2, 2)}, {vr(t0, 2)}")
            for h in range(2):
                pack(L+8*mt+4*h, mt, h)
                if early and nmt == 1: k(f"v_or_b32 v{L+4*h}, s4, v{L+4*h}")
                k(f"buffer_store_dwordx4 {vr(L+8*mt+4*h, 4)}, v{vDX}, {S4(sX)}, s{so[mt]} offen offset:{h*1024} sc1", tag="XF")
    def hstores(lab):
        for mt in range(2):
            if mt: k(f"s_cmp_lg_u32 s{sW}, {W2}\ns_cbranch_scc1 {lab}")
            for h in range(2): k(f"buffer_store_dwordx4 {vr(XX+8*mt+4*h, 4)}, v{vHS}, {S4(sH)}, s{[sSO, sVB][mt]} offen offset:{h*1024} sc1", tag="H")
        k(f"{lab}:")
    k(f"s_cmp_eq_u32 s{sW}, {W2}\ns_cbranch_scc1 {name}_fin2")
    final(1)
    if early:
        k(f"""s_cmp_lg_u32 s{sW}, 0
s_cbranch_scc1 {name}_fin
s_mov_b32 s3, {F_E}
buffer_store_dword v{vSW}, v{vSR}, {S4(sF)}, s3 offen sc1""")
    k(f"s_branch {name}_fin\n{name}_fin2:")
    final(2)
    k(f"{name}_fin:")
    if "p3st" in abl: k("s_memrealtime s[60:61]")
    if merge: k(f"s_cmp_eq_u32 s{sSU}, 1\ns_cbranch_scc1 {name}_sudone")
    else: k(f"s_cmp_eq_u32 s{sAct}, 0\ns_cbranch_scc1 {name}_su\n{'s_cmp_lg_u32' if su3 else 's_cmp_gt_u32'} s{sW}, 4\ns_cbranch_scc1 {name}_sudone\n{name}_su:")
    mlp_setup()
    k(f"{name}_sudone:")
    if bulk or wlate: k(f"s_cmp_lg_u32 s{sAct}, 0\ns_cbranch_scc1 {name}_wdone")
    first_w(f"{name}_wc")
    if bulk or wlate: k(f"{name}_wdone:")
    def touch(mats, lab, dst):
        k(f"""
s_lshr_b32 s3, s2, 3
s_lshl_b32 s3, s3, 3
s_add_u32 s3, s3, s{sW}
s_cmp_ge_u32 s3, {81*len(mats)}
s_cbranch_scc1 {lab}_x
s_cmp_ge_u32 s3, 81
s_cselect_b32 s4, 81, 0
s_sub_u32 s4, s3, s4
v_lshl_add_u32 v{vT0}, s4, 6, v{vL}
v_mul_u32_u24 v{vT1}, 7282, v{vT0}
v_lshrrev_b32 v{vT1}, 16, v{vT1}
v_mul_u32_u24 v{vT2}, 9, v{vT1}
v_sub_u32 v{vT2}, v{vT0}, v{vT2}
v_mul_u32_u24 v{vT1}, {9216 if mats[0] != sD else 1152}, v{vT1}
v_lshl_add_u32 v{vT1}, v{vT2}, 7, v{vT1}
s_mul_i32 s4, s{sXC}, {1152 if mats[0] != sD else 576*1152}
""")
        if len(mats) == 2: k(f"s_cmp_ge_u32 s3, 81\ns_cbranch_scc1 {lab}_u")
        k(f"buffer_load_dword v{dst}, v{vT1}, {S4(mats[0])}, s4 offen {TPOL if len(mats) == 2 else TPOLD}", tag="touch")
        if len(mats) == 2: k(f"s_branch {lab}_x\n{lab}_u:\nbuffer_load_dword v{dst}, v{vT1}, {S4(mats[1])}, s4 offen {TPOL}")
        k(f"{lab}_x:")
    vTW = 31
    k(f"""
s_cmp_eq_u32 s{sB}, 0
s_cselect_b32 s{sV}, s{sG}, s{sU}
s_cselect_b32 s{sV+1}, s{sG+1}, s{sU+1}
s_mov_b32 s{sV+2}, {N_W}
s_mov_b32 s{sV+3}, 0x20000
s_and_b32 s3, s{sW}, 3
s_mul_i32 s3, s3, 5
v_add_u32 v{vTW}, s3, v{vL}
v_cmp_lt_u32 vcc, 8, v{vTW}
v_cndmask_b32 v{vT0}, 0, 1, vcc
v_mul_u32_u24 v{vT1}, 9, v{vT0}
v_sub_u32 v{vT1}, v{vTW}, v{vT1}
s_lshr_b32 s3, s{sW}, 2
s_xor_b32 s3, s3, 1
s_xor_b32 s3, s3, s{sMT}
s_lshl_b32 s3, s3, 1
v_add_u32 v{vT0}, s3, v{vT0}
v_and_b32 v{vT2}, 24, v{vT0}
v_add_u32 v{vT0}, v{vT0}, v{vT2}
v_mul_u32_u24 v{vT0}, 9216, v{vT0}
v_lshl_add_u32 v{vT0}, v{vT1}, 7, v{vT0}
s_mul_i32 s3, s{sXC}, 1152
v_add_u32 v{vT0}, s3, v{vT0}
v_mov_b32 v{vT1}, {OOB}
v_cmp_gt_u32 vcc, 18, v{vTW}
v_cndmask_b32 v{vT0}, v{vT1}, v{vT0}, vcc
v_cmp_gt_u32 vcc, 5, v{vL}
v_cndmask_b32 v{vTW}, v{vT1}, v{vT0}, vcc
""")
    def roll(s):
        if "notouch" in abl or "noroll" in abl or s >= 18: return []
        return [(f"s_mov_b32 s94, {((s >> 1)*64 + (s & 1)*8)*9216}\nbuffer_load_dword v28, v{vTW}, {S4(sV)}, s94 offen {TPOL}", "touch")]
    if not early:
        k(f"""s_cmp_eq_u32 s{sAct}, 0
s_cbranch_scc1 {name}_p3done
""")
        k.wait_lg(); k.wait_vm("XF")
        k(f"""s_barrier
s_cmp_lg_u32 s{sW}, 0
s_cbranch_scc1 {name}_p3sig
buffer_store_dword v{vSW}, v{30 if nl else vSR}, {S4(sF)}, 0 offen sc1""")
        if nl:
            for w in range(4): k(f"ds_read_b128 {vr(MB_+4*w, 4)}, v{vEW} offset:{16*w}")
            k(f"""s_lshl_b32 s3, s{sS2}, 1
s_add_u32 s3, s3, s{sNT}
s_bfe_u32 s4, s3, 0x10002
s_lshl_b32 s4, s4, 8
s_and_b32 s3, s3, 3
s_lshl_b32 s3, s3, 2
s_add_u32 s3, s3, s4
s_lshl_b32 s4, s{sMT}, 9
s_add_u32 s3, s3, s4
s_add_u32 s3, s3, {F_R}
v_lshl_add_u32 v{t1}, v{vL}, 4, s3
v_cmp_gt_u32 vcc, 16, v{vL}
v_cndmask_b32 v{t1}, v{vSR}, v{t1}, vcc""")
            for a, b in ((1, 3), (5, 7), (9, 11), (13, 15), (1, 5), (9, 13), (1, 9)): k(f"v_add_f32 v{MB_+a}, v{MB_+a}, v{MB_+b}")
            k(f"""v_mov_b32 v{t2}, {fl(1e-5)}
v_fmac_f32 v{t2}, {fl(1/576)}, v{MB_+1}
v_rsq_f32 v{t2}, v{t2}
v_mul_f32 v{t2}, {fl(LOG2E)}, v{t2}""")
            k(f"buffer_store_dword v{t2}, v{t1}, {S4(sF)}, 0 offen sc1", tag="R2")
        k(f"{name}_p3sig:")
        if bulk == 2 and not late1: first_w(f"{name}_wd", (1,))
        elif wlate == 1 and not bulk: first_w(f"{name}_wd")
        hstores(f"{name}_hs")
        if wlate == 2: first_w(f"{name}_wd")
        k(f"{name}_p3done:")
    st(4)

    def path(five):
        nt5 = 5 if five else 4
        nf = 2*nt5
        P = "a" if five else "b"
        k(f"""
s_lshl_b32 s3, s{sMT}, 4
s_add_u32 s3, s3, s{sSL}
s_lshl_b32 s3, s3, 7
s_lshl_b32 s4, s{sW}, 2
s_add_u32 s{sLN}, s3, s4
s_add_u32 s{sS1}, s{sLN}, {F_E if early else 0}
buffer_load_dword v{vQ}, v{vZ}, {S4(sF)}, s{sS1} offen sc1
v_lshrrev_b32 v{vT0}, 4, v{vL}
v_bfe_u32 v{vT1}, v{vL}, 2, 2
v_lshl_add_u32 v{vT2}, v{vT0}, 3, v{vT1}
v_mul_u32_u24 v{vT2}, 576, v{vT2}
v_and_b32 v{vWB[0]}, 3, v{vL}
v_lshl_add_u32 v{vT2}, v{vWB[0]}, 3, v{vT2}
s_mul_i32 s3, s{sA}, 9
s_add_u32 s3, s3, {0 if five else 5}
s_lshl_b32 s4, s3, 5
s_add_u32 s4, s4, 8192
v_add_u32 v{vT2}, s4, v{vT2}
s_and_b32 s3, s3, 1
s_cmp_eq_u32 s3, 0
s_cselect_b32 s3, 32, -32
v_and_b32 v{vWB[0]}, 1, v{vT0}
v_mul_i32_i24 v{vWB[0]}, s3, v{vWB[0]}
v_add_u32 v{vWA[0]}, v{vT2}, v{vWB[0]}
v_sub_u32 v{vWB[0]}, v{vT2}, v{vWB[0]}
s_lshl_b32 s3, s{sRG}, 12
v_add_u32 v{vXr[0]}, s3, v{vDX}
""")
        for i in (1, 2):
            k(f"v_add_u32 v{vXr[i]}, {SLOT_A[i]}, v{vXr[0]}\nv_add_u32 v{vWA[i]}, {SLOT_A[i]}, v{vWA[0]}\nv_add_u32 v{vWB[i]}, {SLOT_A[i]}, v{vWB[0]}")
        k(f"""
v_lshrrev_b32 v{vDD}, 3, v{vL}
v_mul_u32_u24 v{vDD}, 1152, v{vDD}
v_bfe_u32 v{vT2}, v{vL}, 1, 2
v_xor_b32 v{vT2}, v{vT2}, v{vT0}
v_lshl_add_u32 v{vDD}, v{vT2}, 5, v{vDD}
v_and_b32 v{vT2}, 1, v{vL}
v_lshl_add_u32 v{vDD}, v{vT2}, 4, v{vDD}
s_mul_i32 s3, s{sCG if LP else sW}, {9 if LP else 4 if five else 5}
s_sub_u32 s3, s3, {0 if five or LP else 4}
s_lshl_b32 s{sM0d}, s3, 10
s_mul_i32 s3, s3, {8*1152}
s_mul_i32 s{sKD}, s{sSL}, {288*1152}
s_add_u32 s{sKD}, s{sKD}, s3
v_lshl_add_u32 v{vWD[0]}, v{vT0}, 2, v{vT1}
v_bfe_u32 v{vT2}, v{vWD[0]}, 1, 2
v_xor_b32 v{vT2}, s{sCG}, v{vT2}
v_lshlrev_b32 v{vT2}, 5, v{vT2}
v_lshl_add_u32 v{vWD[0]}, v{vWD[0]}, 7, v{vT2}
v_and_b32 v{vT2}, 3, v{vL}
v_lshl_add_u32 v{vWD[0]}, v{vT2}, 3, v{vWD[0]}
v_add_u32 v{vWD[1]}, {RING_B[1]}, v{vWD[0]}
v_add_u32 v{vWD[2]}, {RING_B[2]}, v{vWD[0]}
v_add_u32 v{vWD[3]}, {RING_B[3]}, v{vWD[0]}
s_xor_b32 s3, s{sB if LP else sRG}, {1 if LP and not five else 0}
s_mul_i32 s3, s3, {4*9*1024}
s_add_u32 s3, s3, {HH}
v_add_u32 v{vHR}, s3, v{vDX}
s_mul_i32 s3, s{sRG}, {4*9*1024}
s_add_u32 s3, s3, {HH}
s_mul_i32 s4, s{sA}, 9
s_add_u32 s4, s4, {0 if five else 5}
s_lshr_b32 s5, s4, 1
s_lshl_b32 s5, s5, 10
s_add_u32 s3, s3, s5
s_and_b32 s4, s4, 1
s_lshl_b32 s5, s4, 3
s_add_u32 s5, s5, s3
v_add_u32 v{vHW}, s5, v{vDX}
s_mul_i32 s5, s4, 1024
s_add_u32 s5, s5, s3
s_xor_b32 s4, s4, 1
s_lshl_b32 s4, s4, 3
s_add_u32 s5, s5, s4
v_add_u32 v{vHW2}, s5, v{vDX}
v_bfe_u32 v{vT2}, v{vL}, 1, 3
v_lshlrev_b32 v{vPO}, 10, v{vT2}
v_and_b32 v{vT2}, 1, v{vL}
v_lshl_add_u32 v{vPO}, v{vT2}, 6, v{vPO}
v_lshl_add_u32 v{vPO}, v{vT0}, 4, v{vPO}
""")
        if LP:
            k(f"""s_lshl_b32 s3, s{sMT}, 1
s_add_u32 s4, s3, s{sB}
s_mul_i32 s{sRD}, s4, {8*9*8192}
s_xor_b32 s4, s4, {0 if five else 1}
s_lshl_b32 s4, s4, 3
s_add_u32 s4, s4, s{sXC}
s_mul_i32 s{sPO}, s4, {9*8192}
s_lshl_b32 s4, s{sCG}, 8
s_add_u32 s{sPO}, s{sPO}, s4
s_xor_b32 s3, s2, {0 if five else 128}
s_lshl_b32 s3, s3, 9
s_lshl_b32 s4, s{sCG}, 7
s_add_u32 s3, s3, s4
s_add_u32 s{sF1}, s3, {F_1}
s_getreg_b32 s{sLoc}, hwreg(HW_REG_XCC_ID, 0, 4)
s_add_u32 s{sLoc}, s{sLoc}, 1""")
            if five:
                for i in range(4): k(f"v_mov_b32 v{28+i}, 0")
        else:
            k(f"""s_mul_i32 s{sRD}, s{sMT}, {16*9*16384}
s_mul_i32 s3, s{sSL}, {9*16384}
s_add_u32 s{sPO}, s{sRD}, s3
s_lshl_b32 s4, s{sRG}, 13
s_add_u32 s{sPO}, s{sPO}, s4
s_lshl_b32 s4, s{sCG}, 8
s_add_u32 s{sPO}, s{sPO}, s4""")
        if idlepf:
            k(f"s_cmp_lg_u32 s{sAct}, 0\ns_cbranch_scc1 {name}_{P}ip")
            if late1: put(dmaW(1, not five))
            for q in range(2, ahead): put(roll(q))
            k(f"{name}_{P}ip:")
        elif not five and not early:
            for q in range(2, ahead): put(roll(q))
        if droll and five:
            n = -(-(5184//droll)//128)
            k(f"""s_lshr_b32 s3, s2, 3
s_lshl_b32 s3, s3, 2
s_add_u32 s3, s3, s{sW}
s_mul_i32 s3, s3, {n}
v_add_u32 v{vT0}, s3, v{vL}
v_mov_b32 v{vT1}, {OOB}
v_cmp_gt_u32 vcc, {5184//droll}, v{vT0}
v_lshlrev_b32 v{vT0}, 7, v{vT0}
v_cndmask_b32 v{vT0}, v{vT1}, v{vT0}, vcc
v_cmp_gt_u32 vcc, {n}, v{vL}
v_cndmask_b32 v{vT2}, v{vT1}, v{vT0}, vcc""")
        xflag = lambda so: f"buffer_load_dword v{vQ}, v{vZ}, {S4(sF)}, s{so} offen sc1"
        spin(f"{name}_{P}x", xflag(sS1), f"v_cmp_eq_u32 vcc, 0, v{vQ}")
        if early:
            ld = f"buffer_load_dwordx4 v[64:67], v{vDX}, {S4(sX)}, s{sKX} offen sc1\nbuffer_load_dwordx4 v[68:71], v{vDX}, {S4(sX)}, s{sKX} offen offset:1024 sc1"
            k(ld)
            k(f"v_add_u32 v{vT0}, s{sM0x}, v{vDX}\ns_mov_b32 s4, 0x10001")
            spin(f"{name}_{P}t", ld, f"v_and_b32 v{vT1}, v64, v68\nv_and_b32 v{vT1}, s4, v{vT1}\nv_cmp_ne_u32 vcc, s4, v{vT1}")
            k(f"s_cmp_eq_u32 s{sAct}, 0\ns_cbranch_scc1 {name}_{P}hs")
            hstores(f"{name}_{P}hs")
            if not five and not idlepf:
                for q in range(2, ahead): put(roll(q))
            k(f"ds_write_b128 v{vT0}, v[64:67] offset:{SLOT_A[0]}\nds_write_b128 v{vT0}, v[68:71] offset:{SLOT_A[1]}")
        else:
            put(dmaX(0)); put(dmaX(1))
        if late1 == 1:
            if idlepf: k(f"s_cmp_eq_u32 s{sAct}, 0\ns_cbranch_scc1 {name}_{P}l1")
            put(dmaW(1, not five))
            if idlepf: k(f"{name}_{P}l1:")
        if droll and five: k(f"v_mov_b32 v31, v{vT2}\ns_mul_i32 s{sS1}, s{sXC}, {576*1152}")
        st(5)
        ACC = 256-nf*16; XB = [64, 80]; WR = 32
        def acc(f, nt): return ACC + f*16 + nt*4
        def wreg(s, f): return WR + 4*((s*nf+f) % 8)
        def wread(s, f):
            i, u = f >> 1, f & 1
            va = (vWA if i % 2 == 0 else vWB)[s % 3]; d = wreg(s, f)
            return [f"ds_read_b64_tr_b16 v[{d+2*h}:{d+2*h+1}], v{va} offset:{h*4*576 + i*32 + u*18432}" for h in range(2)]
        def mfa(s, f):
            w = wreg(s, f)
            return [f"{MF} {vr(acc(f, nt), 4)}, {vr(w, 4)}, {vr(XB[s % 2]+4*nt, 4)}, {'0' if s == 0 else vr(acc(f, nt), 4)}" for nt in range(4)]
        vRD, vHO, vOO, vFL, vFS, SEL, vFV, vTR, vHT = 2, 3, 4, 8, 9, 12, 5, 10, 11
        assert not fuse
        vSC = 27
        sRP, sEX = 44, 48
        late = f"""v_mov_b32 v{vFS}, {OOB}
v_lshrrev_b32 v5, 4, v{vL}
v_and_b32 v6, 3, v{vL}
v_bfe_u32 v7, v{vL}, 3, 1
s_and_b32 s4, s{sSL}, 3
v_xor_b32 v14, s4, v5
v_mul_u32_u24 v{vRD}, {9*16384}, v14
v_lshlrev_b32 v{vHT}, 8, v7
v_and_b32 v14, 7, v{vL}
v_lshl_add_u32 v{vHT}, v14, 4, v{vHT}
v_add_u32 v{vRD}, v{vRD}, v{vHT}
s_lshl_b32 s4, s{sRG}, 1
v_add_u32 v7, s4, v7
s_lshl_b32 s4, s{sA}, 7
s_lshl_b32 s5, s{sRG}, 9
s_add_u32 s4, s4, s5
s_add_u32 s5, s4, 73728
v_add_u32 v{vHT}, s5, v{vHT}
s_add_u32 s{sRD}, s{sRD}, s4
s_lshl_b32 s4, s{sSL}, 10
s_add_u32 s{sRD}, s{sRD}, s4
s_and_b32 s4, s{sSL}, 12
s_mul_i32 s{sRP}, s4, {9*16384}
s_add_u32 s{sRP}, s{sRP}, s{sRD}
s_xor_b32 s5, s4, 4
s_mul_i32 s{sRP+1}, s5, {9*16384}
s_add_u32 s{sRP+1}, s{sRP+1}, s{sRD}
s_xor_b32 s5, s4, 8
s_mul_i32 s{sRP+2}, s5, {9*16384}
s_add_u32 s{sRP+2}, s{sRP+2}, s{sRD}
s_xor_b32 s5, s4, 12
s_mul_i32 s{sRP+3}, s5, {9*16384}
s_add_u32 s{sRP+3}, s{sRP+3}, s{sRD}
v_and_b32 v{vTR}, 1023, v{vPO}
s_lshl_b32 s4, s{sCG}, 8
s_add_u32 s4, s4, 73728
v_add_u32 v{vTR}, s4, v{vTR}
s_lshr_b32 s3, s{sSL}, 3
s_and_b32 s5, s{sSL}, 7
v_lshrrev_b32 v14, 10, v{vPO}
v_cmp_eq_u32 s[{sEX}:{sEX+1}], s5, v14
s_cmp_eq_u32 s3, s{sRG}|s_cselect_b64 s[{sEX}:{sEX+1}], s[{sEX}:{sEX+1}], 0
{f"v_cndmask_b32 v{vPO}, v{vPO}, v{vFS}, s[{sEX}:{sEX+1}]" if skip else ""}
s_lshl_b32 s5, s5, 7
s_lshl_b32 s{sLN}, s{sMT}, 2
s_lshl_b32 s3, s3, 1
s_add_u32 s{sLN}, s{sLN}, s3
s_add_u32 s{sLN}, s{sLN}, s{sA}
s_lshl_b32 s3, s{sLN}, 1
v_add_u32 v{vHO}, s3, v5
v_mul_u32_u24 v{vHO}, 18432, v{vHO}
v_lshrrev_b32 v14, 1, v6
v_lshl_add_u32 v{vHO}, v14, 10, v{vHO}
v_lshl_add_u32 v{vHO}, v7, 4, v{vHO}
v_and_b32 v14, 1, v6
v_lshl_add_u32 v{vHO}, v14, 3, v{vHO}
v_add_u32 v{vHO}, s5, v{vHO}
v_bfe_u32 v14, v{vL}, 2, 1
v_lshl_add_u32 v{vHO}, v14, 6, v{vHO}
s_lshr_b32 s4, s5, 6
v_lshl_add_u32 v{vOO}, v5, 4, s4
v_add_u32 v{vOO}, v{vOO}, v14
v_lshl_add_u32 v{vOO}, v{vOO}, 6, s{sLN}
v_mul_u32_u24 v{vOO}, 1152, v{vOO}
v_lshl_add_u32 v{vOO}, v7, 5, v{vOO}
v_lshl_add_u32 v{vOO}, v6, 3, v{vOO}
v_cmp_gt_u32 vcc, 32, v{vL}
v_cndmask_b32 v{vHO}, v{vFS}, v{vHO}, vcc
v_cndmask_b32 v{vOO}, v{vFS}, v{vOO}, vcc
v_lshlrev_b32 v14, 4, v14
v_lshl_add_u32 v14, v5, 2, v14
s_lshl_b32 s4, s{sSL}, 5
s_lshl_b32 s5, s{sA}, 3
s_add_u32 s4, s4, s5
s_lshl_b32 s5, s{sMT}, 9
s_add_u32 s4, s4, s5
s_add_u32 s4, s4, {F_R}
v_add_u32 v{vSC}, s4, v14
s_lshl_b32 s4, s{sMT}, 11
s_add_u32 s4, s4, {F_2}
s_lshl_b32 s5, s{sSL}, 2
s_add_u32 s5, s5, s4
v_lshl_add_u32 v5, v{vL}, 7, s5
v_cmp_gt_u32 vcc, 16, v{vL}
v_cndmask_b32 v{vFS}, v{vFS}, v5, vcc
s_lshl_b32 s5, s{sSL}, 7
s_add_u32 s5, s5, s4
v_and_b32 v5, 15, v{vL}
v_lshl_add_u32 v{vFL}, v5, 2, s5
s_mov_b32 s{sLN}, {LN2!r}""".split("\n")
        late = [x.replace('|', '\n') for x in late]
        CNT = 73728; SK = 72; vMK = 16
        if LP and five:
            late = f"""v_mov_b32 v{vFS}, {OOB}
s_lshl_b32 s4, s{sMT}, 11
s_lshl_b32 s5, s{sB}, 7
s_add_u32 s4, s4, s5
s_add_u32 s4, s4, {F_2}
s_lshl_b32 s5, s{sXC}, 2
s_add_u32 s5, s5, s4
v_lshl_add_u32 v5, v{vL}, 8, s5
v_cmp_gt_u32 vcc, 8, v{vL}
v_cndmask_b32 v{vFS}, v{vFS}, v5, vcc
v_mov_b32 v{vFL}, {CNT}""".split("\n")
        elif LP:
            late = f"""v_mov_b32 v{vFS}, {OOB}
s_lshl_b32 s4, s{sMT}, 11
s_lshl_b32 s5, s{sSL}, 7
s_add_u32 s4, s4, s5
s_add_u32 s4, s4, {F_2}
v_and_b32 v5, 7, v{vL}
v_lshl_add_u32 v{vFL}, v5, 2, s4
s_lshl_b32 s5, s{sXC}, 10
s_add_u32 s{sRD}, s{sRD}, s5
v_lshrrev_b32 v{vTR}, 3, v{vL}
v_mul_u32_u24 v{vTR}, {9*8192}, v{vTR}
v_lshl_add_u32 v{vTR}, v5, 7, v{vTR}
v_add_u32 v{vTR}, s{sRD}, v{vTR}
v_lshlrev_b32 v{vRD}, 4, v5
v_lshrrev_b32 v5, 4, v{vL}
v_and_b32 v6, 3, v{vL}
v_bfe_u32 v7, v{vL}, 3, 1
v_mul_u32_u24 v14, {9*8192}, v5
v_add_u32 v{vRD}, v{vRD}, v14
v_lshl_add_u32 v{vRD}, v7, 8, v{vRD}
s_lshl_b32 s4, s{sRG}, 1
v_add_u32 v7, s4, v7
s_lshl_b32 s4, s{sA}, 7
s_add_u32 s{sRD}, s{sRD}, s4
s_lshl_b32 s4, s{sRG}, 9
s_add_u32 s{sRD}, s{sRD}, s4
s_lshl_b32 s5, s{sXC}, 7
s_lshl_b32 s{sLN}, s{sMT}, 2
s_lshl_b32 s3, s{sB}, 1
s_add_u32 s{sLN}, s{sLN}, s3
s_lshl_b32 s3, s{sLN}, 1
s_add_u32 s3, s3, s{sCG}
s_mul_i32 s3, s3, 18432
s_add_u32 s3, s3, s5
v_lshl_add_u32 v{vHT}, v{vL}, 10, s3
v_cmp_gt_u32 vcc, 18, v{vL}
v_cndmask_b32 v{vHT}, v{vFS}, v{vHT}, vcc
s_add_u32 s{sLN}, s{sLN}, s{sA}
s_lshl_b32 s3, s{sLN}, 1
v_add_u32 v{vHO}, s3, v5
v_mul_u32_u24 v{vHO}, 18432, v{vHO}
v_lshrrev_b32 v14, 1, v6
v_lshl_add_u32 v{vHO}, v14, 10, v{vHO}
v_lshl_add_u32 v{vHO}, v7, 4, v{vHO}
v_and_b32 v14, 1, v6
v_lshl_add_u32 v{vHO}, v14, 3, v{vHO}
v_add_u32 v{vHO}, s5, v{vHO}
v_bfe_u32 v14, v{vL}, 2, 1
v_lshl_add_u32 v{vHO}, v14, 6, v{vHO}
s_lshl_b32 s4, s{sXC}, 1
v_lshl_add_u32 v{vOO}, v5, 4, s4
v_add_u32 v{vOO}, v{vOO}, v14
v_lshl_add_u32 v{vOO}, v{vOO}, 6, s{sLN}
v_mul_u32_u24 v{vOO}, 1152, v{vOO}
v_lshl_add_u32 v{vOO}, v7, 5, v{vOO}
v_lshl_add_u32 v{vOO}, v6, 3, v{vOO}
v_cmp_gt_u32 vcc, 32, v{vL}
v_cndmask_b32 v{vHO}, v{vFS}, v{vHO}, vcc
v_cndmask_b32 v{vOO}, v{vFS}, v{vOO}, vcc
s_mov_b32 s{sLN}, {LN2!r}""".split("\n")
        sel = f"""v_and_b32 v5, 1, v{vL}
v_lshlrev_b32 v5, 4, v5
s_movk_i32 s3, 0x3f80
v_lshlrev_b32 v5, v5, s3
v_bfe_u32 v6, v{vL}, 1, 3""".split("\n")
        if LP and five:
            sel += [f"v_lshrrev_b32 v7, 3, v{vL}", f"v_and_b32 v7, 6, v7", f"v_sub_u32 v6, v6, v7"]
            for i in range(2): sel += [f"v_cmp_eq_u32 vcc, {i}, v6", f"v_cndmask_b32 v{SK+2+i}, 0, v5, vcc"]
            sel += [f"v_mov_b32 v{SK+i}, 0" for i in (0, 1, 4, 5)]
            sel += [f"ds_write_b64 v{vFL}, v[{SK}:{SK+1}] offset:{8*i}" for i in range(3)]
        else:
            for i in range(4): sel += [f"v_cmp_eq_u32 vcc, {i}, v6", f"v_cndmask_b32 v{SEL+i}, 0, v5, vcc"]
        sel += [f"v_mov_b32 v{vFV}, 1", f"v_mov_b32 v{vMK}, 0x10001"]
        def split_m0(d):
            out = []
            for t, tag in d:
                ls = t.split("\n")
                out += ["\n".join(ls[:-1]), (ls[-1], tag)]
            return out
        def spread_in(seq, dma, every):
            items = split_m0(dma); out = []; n = 0; j = 0
            for x in seq:
                out.append(x)
                if isinstance(x, str) and x.startswith("v_mfma"):
                    n += 1
                    if j < len(items) and (j % 2 == 1 or n % every == every-1): out.append(items[j]); j += 1
            return out + items[j:]
        k.wait_lg(); k.wait_vm("A0", "XF"); k("s_barrier")
        if early and five:
            k(f"s_cmp_eq_u32 s{sAct}, 0\ns_cbranch_scc1 {name}_xsig\ns_cmp_lg_u32 s{sW}, 0\ns_cbranch_scc1 {name}_xsig\nbuffer_store_dword v{vSW}, v{vSR}, {S4(sF)}, 0 offen sc1\n{name}_xsig:")
        st(6)
        if prio == ("lo" if five else "hi"): k("s_setprio 1")
        def glu(i):
            out = []
            for np_ in range(2):
                g, u = acc(2*i, 2*np_), acc(2*i+1, 2*np_)
                if nl: out += [f"v_pk_mul_f32 {vr(g+r, 2)}, {vr(g+r, 2)}, {vr(64+4*np_+2*(r >> 2), 2)}" for r in range(0, 8, 2)]
                out += [f"v_exp_f32 v{g+r}, -v{g+r}" for r in range(8)]
                out += [f"v_pk_add_f32 {vr(g+r, 2)}, {vr(g+r, 2)}, s[4:5]" for r in range(0, 8, 2)] if pk else [f"v_add_f32 v{g+r}, 1.0, v{g+r}" for r in range(8)]
                out += [f"v_rcp_f32 v{g+r}, v{g+r}" for r in range(8)]
                out += [f"v_pk_mul_f32 {vr(g+r, 2)}, {vr(g+r, 2)}, {vr(u+r, 2)}" for r in range(0, 8, 2)] if pk else [f"v_mul_f32 v{g+r}, v{g+r}, v{u+r}" for r in range(8)]
                for q in range(2): out += [f"v_cvt_pk_bf16_f32 v{u+4*q}, v{g+4*q}, v{g+4*q+1}", f"v_cvt_pk_bf16_f32 v{u+4*q+1}, v{g+4*q+2}, v{g+4*q+3}"]
            return out
        hwrite = lambda i: [f"ds_write_b64 v{vHW if i % 2 == 0 else vHW2}, {vr(acc(2*i+1, nt), 2)} offset:{nt*9*1024 + (i >> 1)*1024}" for nt in range(4)]
        xread = lambda s: [f"ds_read_b128 {vr(XB[s % 2]+4*nt, 4)}, v{vXr[s % 3]} offset:{nt*1024}" for nt in range(4)]
        dtouch = [f"""s_lshr_b32 s3, s2, 3
s_mul_i32 s3, s3, 18
s_mul_i32 s4, s{sXC}, 576
s_add_u32 s3, s3, s4
v_add_u32 v28, s3, v{vL}
v_mul_u32_u24 v28, 1152, v28
v_mov_b32 v29, {OOB}
v_cmp_gt_u32 vcc, 18, v{vL}
v_cndmask_b32 v28, v29, v28, vcc
s_lshl_b32 s3, s{sW}, 7
s_add_u32 s3, s3, 256
s_cmp_eq_u32 s{sW}, 7
s_cselect_b32 s3, {OOB}, s3""", (f"buffer_load_dword v26, v28, {S4(sD)}, s3 offen {TPOLD}", "touch")]
        NS = 16 if fuse else 18
        for s in range(NS):
            put(xread(s))
            for f in range(look): put(wread(s, f))
            dma = dmaX(s+2) + dmaW(s+2, not five) if s+2 < 18 else dmaB(s-16, five)
            if early and s == 0: dma = dmaW(2, not five) + [("s_nop 0\n" + xflag(sLN), "XQ")]
            if late1 == 2 and s == 0: dma = dmaW(1, not five) + dma
            if early and s == 1:
                spin(f"{name}_{P}y", xflag(sLN), f"v_cmp_eq_u32 vcc, 0, v{vQ}")
                dma = dmaX(2) + dma
            if not five: dma = dma + roll(s+ahead)
            if droll and five and dstage <= s < dstage+droll:
                dma = dma + [(f"s_add_u32 s94, s{sS1}, {(s-dstage)*(5184//droll)*128}\nbuffer_load_dword v28, v31, {S4(sD)}, s94 offen {TPOLD}", "touch")]
            if LP and five and istage <= s < istage+4:
                dma = dma + [(f"s_add_u32 s94, s{sPO}, {(5+s-istage)*8192}\nbuffer_store_dwordx4 v[28:31], v{vPO}, {S4(sP)}, s94 offen offset:{h*128} sc1", "I") for h in range(2)]
            seq = sum((mfa(s-1, f) for f in range(nf-nd, nf)), []) if s > 0 else []
            for f in range(nf-nd):
                extra = late[f*len(late)//(nf-nd):(f+1)*len(late)//(nf-nd)] if s == 17 else []
                seq += interleave(mfa(s, f), (wread(s, f+look) if f+look < nf else []) + extra)
            put(spread_in(seq, dma, spread if len(dma) < 8 else 2))
            if s == dstage and "notouch" not in abl and not droll and not depi: touch([sD], f"{name}_{P}td", 27)
            if depi == s and s > 1: put(dtouch)
            if ptouch and five and s == ptouch:
                k(f"""v_lshrrev_b32 v{vT0}, 2, v{vL}
s_lshl_b32 s3, s{sW}, 2
v_add_u32 v{vT0}, s3, v{vT0}
v_mul_u32_u24 v{vT0}, {9*16384 + 1024}, v{vT0}
v_and_b32 v{vT1}, 3, v{vL}
v_min_u32 v{vT1}, 2, v{vT1}
v_lshl_add_u32 v{vT0}, v{vT1}, 16, v{vT0}
v_mov_b32 v{vT1}, {OOB}
v_cmp_gt_u32 vcc, 16, v{vL}
v_cndmask_b32 v{vT0}, v{vT1}, v{vT0}, vcc""")
                k(f"buffer_load_dword v28, v{vT0}, {S4(sP)}, s{sRD} offen", tag="touch")
            if nl:
                el = f"buffer_load_dword v29, v{vT2}, {S4(sF)}, 0 offen sc1"
                if s == 3 and five:
                    k(f"s_cmp_eq_u32 s{sAct}, 0\ns_cbranch_scc1 {name}_rsig\ns_cmp_lg_u32 s{sW}, 0\ns_cbranch_scc1 {name}_rsig")
                    k.wait_vm("R2")
                    k(f"v_mov_b32 v{vT0}, 1\ns_mov_b32 s3, {F_E}\nbuffer_store_dword v{vT0}, v30, {S4(sF)}, s3 offen sc1\n{name}_rsig:")
                if s == 12:
                    k(f"s_and_b32 s3, s{sLN}, -128\ns_lshl_b32 s4, s{sRG}, 4\ns_add_u32 s3, s3, s4\ns_add_u32 s3, s3, {F_E}\nv_and_b32 v{vT2}, 3, v{vL}\nv_lshl_add_u32 v{vT2}, v{vT2}, 2, s3")
                    k(el)
                if s == 14:
                    spin(f"{name}_{P}e", el, "v_cmp_eq_u32 vcc, 0, v29")
                    k(f"s_lshl_b32 s3, s{sMT}, 9\ns_lshl_b32 s4, s{sRG}, 8\ns_add_u32 s3, s3, s4\ns_add_u32 s3, s3, {F_R}\nv_and_b32 v{vT2}, 0xf0, v{vDX}\nbuffer_load_dwordx4 v[28:31], v{vT2}, {S4(sF)}, s3 offen sc1")
            xl = f"buffer_load_dword v{vQ}, v{vZ}, {S4(sF)}, s{sF1} offen sc1"
            if LP and five and s == tstage:
                k.wait_vm("I")
                k(f"""v_lshrrev_b32 v{vT0}, 4, v{vL}
v_lshlrev_b32 v{vT0}, 13, v{vT0}
v_bfe_u32 v{vT1}, v{vL}, 1, 3
v_lshl_add_u32 v{vT0}, v{vT1}, 10, v{vT0}
v_and_b32 v{vT1}, 1, v{vL}
v_lshl_add_u32 v{vT0}, v{vT1}, 7, v{vT0}
s_add_u32 s3, s{sPO}, {5*8192}
v_mov_b32 v{vT1}, s{sLoc}""")
                k(f"buffer_load_dword v28, v{vT0}, {S4(sP)}, s3 offen", tag="touch")
                k(f"buffer_store_dword v{vT1}, v{vZ}, {S4(sF)}, s{sF1} offen sc1")
            if LP and not five and s == 13: k(xl)
            if LP and not five and s == 15:
                spin(f"{name}_xid", xl, f"v_cmp_eq_u32 vcc, 0, v{vQ}")
                k(f"v_readfirstlane_b32 s3, v{vQ}\ns_cmp_eq_u32 s3, s{sLoc}\ns_cselect_b32 s{sLoc}, {0 if 'remote' in abl else 1}, 0")
            k.wait_lg(); k.wait_vm(f"A{s+1}", "A17" if fuse and s == 15 else "-"); k("s_barrier")
        if fuse:
            n0 = 16*nf
            wj = lambda j: WR + 4*((n0+j) % 8)
            def rd(j):
                f, s = j >> 1, 16 + (j & 1); i, u = f >> 1, f & 1
                va = (vWA if i % 2 == 0 else vWB)[s % 3]; d = wj(j)
                return [f"ds_read_b64_tr_b16 v[{d+2*h}:{d+2*h+1}], v{va} offset:{h*4*576 + i*32 + u*18432}" for h in range(2)]
            def mm(f): return [f"{MF} {vr(acc(f, nt), 4)}, {vr(wj(2*f+c), 4)}, {vr(XB[c]+4*nt, 4)}, {vr(acc(f, nt), 4)}" for nt in range(4) for c in range(2)]
            put(xread(16))
            for j in range(4): put(rd(j))
            put(spread_in(sum((mfa(15, f) for f in range(nf-nd, nf)), []), dmaB(0, five), 2))
            put(xread(17))
            for f in range(nf):
                fill = (rd(2*f+4) + rd(2*f+5)) if f+2 < nf else []
                if f < 2: fill = fill + late[f*len(late)//2:(f+1)*len(late)//2]
                else:
                    gl = glu(f//2 - 1); fill = fill + gl[(f % 2)*len(gl)//2:(f % 2 + 1)*len(gl)//2]
                put(interleave(mm(f), fill))
            k.wait_lg(); k("s_barrier")
            st(7)
            put(dmaB(1, five))
            for i in range(nt5-1): put(hwrite(i))
            put(sel)
            put(glu(nt5-1)); put(hwrite(nt5-1))
        else:
            put(sum((mfa(17, f) for f in range(nf-nd, nf)), []))
            st(7)
            if depi == 1: put(dtouch)
            k("s_mov_b32 s4, 1.0\ns_mov_b32 s5, 1.0")
            if nl:
                for i in range(8): k(f"v_mov_b32 v{64+i}, v{28+(i >> 1)}")
            for i in range(nt5): put(glu(i)); put(hwrite(i))
            put(sel)
        if prio: k("s_setprio 0")
        k.wait_lg(); k.wait_vm("B0"); k("s_barrier")
        st(8); stb(0)
        if "dbl" in abl: k(f"s_cmp_eq_u32 s{sB}, 0\ns_mov_b32 s101, {288*1152}\ns_cselect_b32 s101, s101, {-288*1152}")
        if "cnt" in abl: k("s_mov_b32 s99, 0")
        HB = 112; AB = [80, 96]; WG = [28, 40, 52]; SD = 64
        def hreg(kp, nt): return HB + (kp*4+nt)*4
        def wgreg(gi, c): return WG[gi] + 4*c
        def wdread(u, gi):
            out = []
            for c in range(3):
                d = wgreg(gi, c); kp = gi*3+c
                out += [f"ds_read_b64_tr_b16 v[{d+2*h}:{d+2*h+1}], v{vWD[u % 4]} offset:{kp*4096 + h*2048}" for h in range(2)]
            return out
        def mfb(u, gi):
            out = []
            for nt in range(4):
                a = AB[u % 2]+4*nt
                for c in range(3):
                    out.append(f"{MF} {vr(a, 4)}, {vr(wgreg(gi, c), 4)}, {vr(hreg(gi*3+c, nt), 4)}, {'0' if gi == 0 and c == 0 else vr(a, 4)}")
            return out
        cvt = lambda u, h: [f"v_cvt_pk_bf16_f32 v{AB[u % 2]+8*h+q}, v{AB[u % 2]+8*h+2*q}, v{AB[u % 2]+8*h+2*q+1}" for q in range(4)]
        hread = lambda kp: [f"ds_read_b128 {vr(hreg(kp, nt), 4)}, v{vHR} offset:{(nt*9+kp)*1024}" for nt in range(4)]
        dmat = lambda t: (dmaB(2, five) + dmaB(3, five)) if t == 1 else (dmaB(t+2, five) if 2 <= t <= 6 else [])
        def phaseB_L():
            rounds = lambda ph: list(range(PH[ph-1]+1 if ph else 0, PH[ph]+1))
            TAG = lambda u: [0x1, 0x10000, 0x10001][(u+3)//4]
            alias = lambda u: 5 + (u-5) % 4
            def endslot(t):
                if t <= 7: k.wait_lg(); k.wait_vm(f"B{t+1}"); k("s_barrier")
                if t < 9: stb(t+1)
            arr_at = {c+4: ph for ph, c in enumerate(PH) if c+4 <= 9}
            tch_at = {t+1: ph for t, ph in arr_at.items() if t+1 <= 8 and ph < ntouch}
            if not five:
                def send(u):
                    lab = f"{name}_s{u}"
                    txt = f"s_add_u32 s3, s{sPO}, {alias(u)*8192}\n" + "\n".join(f"buffer_store_dwordx4 {vr(AB[u % 2]+8*h, 4)}, v{vPO}, {S4(sP)}, s3 offen offset:{h*128} POL" for h in range(2))
                    k(f"s_cmp_eq_u32 s{sLoc}, 0\ns_cbranch_scc1 {lab}_r")
                    q0 = k.seq
                    k(txt.replace("POL", ""))
                    k(f"s_branch {lab}_d\n{lab}_r:")
                    k.seq = q0
                    k(txt.replace("POL", "sc1"))
                    k.seq += 1
                    k(f"{lab}_d:")
                tag = lambda u, h: [f"s_mov_b32 s4, {TAG(u)}\nv_bfi_b32 v{AB[u % 2]+8*h}, v{vMK}, s4, v{AB[u % 2]+8*h}"]
                poll = lambda ph, tv: f"s_mov_b32 s3, {ph*32768}\nbuffer_load_dword v{tv}, v{vFL}, {S4(sF)}, s3 offen sc1"
                def check(ph, tv): spin(f"{name}_c{ph}", poll(ph, tv).split("\n")[1], f"s_mov_b32 s3, {ph*32768}\nv_cmp_eq_u32 vcc, 0, v{tv}")
                for t in range(9):
                    put(wdread(t, 0))
                    if t == 0:
                        for kp in range(3): put(hread(kp))
                        put(interleave(mfb(0, 0), wdread(0, 1) + hread(3)+hread(4)+hread(5)))
                        put(interleave(mfb(0, 1), wdread(0, 2) + hread(6)+hread(7)+hread(8)))
                    else:
                        d = mfb(t-1, 2)
                        put(d[:9]); put(interleave(d[9:], cvt(t-1, 0) + tag(t-1, 0)))
                        g0 = mfb(t, 0); g1 = mfb(t, 1)
                        put(interleave(g0[:3], wdread(t, 1)[:2] + cvt(t-1, 1) + tag(t-1, 1)))
                        send(t-1)
                        dm = dmat(t); h = (len(dm)+1)//2
                        put(spread_in(interleave(g0[3:], wdread(t, 1)[2:] + [""]*5), dm[:h], 2 if h <= 5 else 1))
                        put(spread_in(interleave(g1, wdread(t, 2) + [""]*6), dm[h:], 2 if h <= 5 else 1))
                        if t in tch_at:
                            ph = tch_at[t]; check(ph, 64)
                            if ph == 0: k(f"buffer_load_dword v65, v{vHT}, {S4(sH)}, 0 offen sc1", tag="touch")
                            rr = rounds(ph); assert len(rr) <= 4
                            k(f"s_cmp_lt_u32 s{sCG}, {len(rr)}\ns_cselect_b32 s3, s{sCG}, {OOB >> 13}\ns_add_u32 s3, s3, {rr[0]}\ns_lshl_b32 s3, s3, 13\nbuffer_load_dword v65, v{vTR}, {S4(sP)}, s3 offen sc1", tag="touch")
                    endslot(t)
                    if t+1 in tch_at: k(poll(tch_at[t+1], 64))
                first = len(tch_at)
                put(mfb(8, 2)); put(cvt(8, 0) + tag(8, 0) + cvt(8, 1) + tag(8, 1)); send(8)
                st(9)
                home = lambda r: (HB+16*r, HB+16*r+8, HB+16*r+12)
                def rloads(r):
                    RB, HV, DA = home(r)
                    for pg in range(2): k(f"s_add_u32 s3, s{sRD}, {r*8192 + pg*4*9*8192}\nbuffer_load_dwordx4 {vr(RB+4*pg, 4)}, v{vRD}, {S4(sP)}, s3 offen sc1")
                    k(f"s_movk_i32 s3, {r*2048}\nbuffer_load_dwordx2 {vr(HV, 2)}, v{vHO}, {S4(sH)}, s3 offen sc1")
                def rsum(r):
                    RB, HV, DA = home(r)
                    for pg in range(2): k(f"{MF} {vr(DA, 4)}, {vr(SEL, 4)}, {vr(RB+4*pg, 4)}, {'0' if pg == 0 else vr(DA, 4)}")
                    k(f"v_lshlrev_b32 v{RB}, 16, v{HV}\nv_and_b32 v{RB+1}, 0xffff0000, v{HV}\nv_lshlrev_b32 v{RB+2}, 16, v{HV+1}\nv_and_b32 v{RB+3}, 0xffff0000, v{HV+1}")
                def rfin(r):
                    RB, HV, DA = home(r)
                    for q in range(4): k(f"v_fma_f32 v{RB+q}, v{DA+q}, s{sLN}, v{RB+q}")
                    k(f"v_cvt_pk_bf16_f32 v{HV}, v{RB}, v{RB+1}\nv_cvt_pk_bf16_f32 v{HV+1}, v{RB+2}, v{RB+3}")
                rout = lambda r: k(f"buffer_store_dwordx2 {vr(home(r)[1], 2)}, v{vOO}, {S4(sO)}, 0 offen offset:{r*128} {OUTPOL}")
                pend = [r for ph in range(first) for r in rounds(ph)]
                for r in pend: rloads(r)
                for ph in range(first, len(PH)):
                    k(poll(ph, 64))
                    for r in pend: rsum(r)
                    for r in pend: rfin(r)
                    check(ph, 64)
                    for r in rounds(ph): rloads(r)
                    for r in pend: rout(r)
                    pend = rounds(ph)
                for r in pend: rsum(r)
                for r in pend: rfin(r); rout(r)
            else:
                sld = lambda u: f"s_add_u32 s3, s{sPO}, {alias(u)*8192}\n" + "\n".join(f"buffer_load_dwordx4 {vr(SD+4*h, 4)}, v{vPO}, {S4(sP)}, s3 offen offset:{h*128} sc1" for h in range(2))
                def add(u):
                    if "nol1chk" not in abl:
                        spin(f"{name}_k{u}", sld(u), f"s_mov_b32 s4, {TAG(u)}\nv_and_b32 v78, v{vMK}, v{SD}\nv_and_b32 v79, v{vMK}, v{SD+4}\nv_xor_b32 v78, s4, v78\nv_xor_b32 v79, s4, v79\nv_or_b32 v78, v78, v79\nv_cmp_ne_u32 vcc, 0, v78")
                    put([f"{MF} {vr(AB[u % 2]+8*h+4*q, 4)}, {vr(SK+2-2*q, 4)}, {vr(SD+4*h, 4)}, {vr(AB[u % 2]+8*h+4*q, 4)}" for h in range(2) for q in range(2)])
                pst = lambda u: [(f"s_add_u32 s3, s{sPO}, {u*8192}\nbuffer_store_dwordx4 {vr(AB[u % 2]+8*h, 4)}, v{vPO}, {S4(sP)}, s3 offen offset:{h*128} sc1", f"P{u}") for h in range(2)]
                def arrive1(ph):
                    k.wait_vm(f"P{PH[ph]}")
                    k(f"s_mov_b64 exec, 1\nds_add_rtn_u32 v7, v{vFL}, v{vFV} offset:{ph*4}\ns_mov_b64 exec, -1")
                def arrive2(ph):
                    k(f"v_readfirstlane_b32 s3, v7\ns_cmp_lg_u32 s3, 3\ns_cbranch_scc1 {name}_ar{ph}\ns_mov_b32 s3, {ph*32768}\nbuffer_store_dword v{vFV}, v{vFS}, {S4(sF)}, s3 offen sc1\n{name}_ar{ph}:")
                for kp in range(9): put(hread(kp))
                endslot(0)
                for t in range(1, 10):
                    u = t-1
                    put(wdread(u, 0))
                    if u >= 1: k(sld(u-1))
                    if u >= 2: put(pst(u-2))
                    if u >= 1: put(mfb(u-1, 2))
                    put(interleave(mfb(u, 0), wdread(u, 1) + [""]*6))
                    g1 = mfb(u, 1)
                    put(interleave(g1[:6], wdread(u, 2)))
                    if u >= 1:
                        add(u-1)
                        if t == 9: k(sld(8))
                        if t in arr_at: arrive1(arr_at[t])
                        put(g1[6:9])
                        put(interleave(g1[9:], cvt(u-1, 0) + cvt(u-1, 1)))
                        if t in arr_at: arrive2(arr_at[t])
                    else: put(g1[6:])
                    endslot(t)
                put(pst(7))
                put(mfb(8, 2)); add(8)
                st(9)
                p8 = pst(8)
                put(cvt(8, 0) + p8[:1] + cvt(8, 1) + p8[1:])
                for ph in range(len(arr_at), len(PH)): arrive1(ph); arrive2(ph)
        def phaseB_S():
            OWN = 73728
            pst = lambda u, h: (f"s_add_u32 s3, s{sPO}, {u*16384}\nbuffer_store_dwordx4 {vr(AB[u % 2]+8*h, 4)}, v{vPO}, {S4(sP)}, s3 offen offset:{h*128} sc1", f"P{u}")
            own = lambda u: [f"s_mov_b64 exec, s[{sEX}:{sEX+1}]\n" + "\n".join(f"ds_write_b128 v{vTR}, {vr(AB[u % 2]+8*h, 4)} offset:{u*1024+h*128}" for h in range(2)) + "\ns_mov_b64 exec, -1"] if skip else []
            epib = lambda u: cvt(u, 0) + [pst(u, 0)] + cvt(u, 1) + ([] if "half" in abl else [pst(u, 1)]) + own(u)
            def signal(ph):
                if five: k(f"s_cmp_lg_u32 s{sW}, 0\ns_cbranch_scc1 {name}_sig{ph}\ns_mov_b32 s3, {ph*32768}\nbuffer_store_dword v{vFV}, v{vFS}, {S4(sF)}, s3 offen sc1\n{name}_sig{ph}:")
            poll = lambda ph, tv: f"s_mov_b32 s3, {ph*32768}\nbuffer_load_dword v{tv}, v{vFL}, {S4(sF)}, s3 offen sc1"
            def check(ph, tv): spin(f"{name}_{P}c{ph}", poll(ph, tv).split("\n")[1], f"s_mov_b32 s3, {ph*32768}\nv_cmp_eq_u32 vcc, 0, v{tv}")
            rounds = lambda ph: list(range(PH[ph-1]+1 if ph else 0, PH[ph]+1))
            mine = lambda rr: [r for r in rr if (r % 2 == 0) == five]
            sig_at = {c+lag+1: ph for ph, c in enumerate(PH) if c+lag+1 <= 8}
            rd_at = {u+1: ph for u, ph in sig_at.items() if u+1 <= 8 and ph < inl}
            inloop = [r for ph in rd_at.values() for r in rounds(ph)]
            assert not (nl and inloop)
            home = lambda r: (64, 6, 24) if r in inloop else (HB+24*(r >> 1), HB+24*(r >> 1)+16, HB+24*(r >> 1)+20)
            def rloads(r):
                RB, HV, DA = home(r); out = []
                for pg in range(2 if "half" in abl else 4):
                    ld = f"buffer_load_dwordx4 {vr(RB+4*pg, 4)}, v{vRD}, {S4(sP)}, s3 offen sc1"
                    if skip and pg == 0: ld = f"s_mov_b64 exec, 0xffff\nds_read_b128 {vr(RB, 4)}, v{vHT} offset:{r*1024}\ns_mov_b32 exec_hi, -1\ns_mov_b32 exec_lo, 0xffff0000\n{ld}\ns_mov_b64 exec, -1"
                    out.append(f"s_add_u32 s3, s{sRP+pg}, {r*16384}\n{ld}")
                out.append(f"s_movk_i32 s3, {r*2048}\nbuffer_load_dwordx2 {vr(HV, 2)}, v{vHO}, {S4(sH)}, s3 offen sc1")
                return out
            def rsum(r):
                RB, HV, DA = home(r)
                return [f"{MF} {vr(DA, 4)}, {vr(SEL, 4)}, {vr(RB+4*pg, 4)}, {'0' if pg == 3 else vr(DA, 4)}" for pg in (3, 2, 1, 0)]
            def rfin(r):
                RB, HV, DA = home(r)
                return [f"v_lshlrev_b32 v{RB}, 16, v{HV}", f"v_and_b32 v{RB+1}, 0xffff0000, v{HV}", f"v_lshlrev_b32 v{RB+2}, 16, v{HV+1}", f"v_and_b32 v{RB+3}, 0xffff0000, v{HV+1}"] + \
                       [f"v_fma_f32 v{RB+q}, v{DA+q}, {f'v{vSC}' if nl else f's{sLN}'}, v{RB+q}" for q in range(4)] + \
                       [f"v_cvt_pk_bf16_f32 v{HV}, v{RB}, v{RB+1}", f"v_cvt_pk_bf16_f32 v{HV+1}, v{RB+2}, v{RB+3}"]
            rout = lambda r: [f"buffer_store_dwordx2 {vr(home(r)[1], 2)}, v{vOO}, {S4(sO)}, 0 offen offset:{r*128} {OUTPOL}"]
            pend = []
            for u in range(9):
                put(wdread(u, 0))
                if u in sig_at: signal(sig_at[u])
                if u == 0:
                    for kp in range(3): put(hread(kp))
                    put(interleave(mfb(0, 0), wdread(0, 1) + hread(3)+hread(4)+hread(5)))
                    put(interleave(mfb(0, 1), wdread(0, 2) + hread(6)+hread(7)+hread(8)))
                    if nl: k(f"buffer_load_dword v{vSC}, v{vSC}, {S4(sF)}, 0 offen sc1")
                    if otouch: k(f"buffer_load_dword v19, v{vOO}, {S4(sO)}, 0 offen", tag="touch")
                else:
                    put(spread_in(mfb(u-1, 2), dmat(u), 2 if u > 1 and 'dbl' not in abl else 1))
                    put(interleave(mfb(u, 0), wdread(u, 1) + epib(u-1)))
                    g1 = mfb(u, 1); fill = []
                    if pend and u not in rd_at:
                        r = pend.pop(); g1 = g1[:6] + rsum(r) + g1[6:]; fill = [""]*8 + rfin(r) + rout(r)
                    elif u in rd_at and mine(rounds(rd_at[u])):
                        assert not pend and len(mine(rounds(rd_at[u]))) == 1
                        check(rd_at[u], 19); pend = mine(rounds(rd_at[u])); fill = rloads(pend[0])
                    put(interleave(g1[:6], wdread(u, 2))); put(interleave(g1[6:], fill) if fill else g1[6:])
                    if u == 8:
                        for ph in sig_at.values():
                            if ph not in rd_at.values(): k(poll(ph, 28+ph))
                if u < 8:
                    k.wait_lg(); k.wait_vm(f"B{u+1}", f"P{PH[sig_at[u+1]]}" if u+1 in sig_at else "-"); k("s_barrier")
                if u+1 in rd_at and mine(rounds(rd_at[u+1])): k(poll(rd_at[u+1], 19))
                if u < 9: stb(u+1)
            put(mfb(8, 2))
            st(9)
            put(epib(8))
            if nl: k(f"v_mul_f32 v{vSC}, s{sLN}, v{vSC}")
            tailph = list(range(len(sig_at), len(PH)))
            if sigfirst and len(tailph) > 1 and order == 0:
                for ph in tailph[:-1]:
                    k.wait_vm(f"P{PH[ph]}"); k("s_barrier"); signal(ph)
            for ph in sig_at.values():
                if ph in rd_at.values(): continue
                check(ph, 28+ph)
                if "tail" in abl: k("s_memrealtime s[62:63]")
                for r in mine(rounds(ph)): put(rloads(r)); pend.append(r)
            if sigfirst:
                for ph in (tailph if order else tailph[-1:]):
                    k.wait_lg(); k.wait_vm(f"P{PH[ph]}")
                    if "tail" in abl: k("s_memrealtime s[64:65]")
                    k("s_barrier")
                    if "tail" in abl: k("s_memrealtime s[66:67]")
                    signal(ph)
            for ph in tailph:
                if not sigfirst:
                    k.wait_lg(); k.wait_vm(f"P{PH[ph]}"); k("s_barrier"); signal(ph)
                if not mine(rounds(ph)): continue
                k(poll(ph, 19))
                done = list(pend) if sigfirst and ph == len(PH)-1 else pend[:1]
                for r in done: put(rsum(r)); put(rfin(r))
                check(ph, 19)
                if "tail" in abl: k("s_memrealtime s[68:69]")
                for r in mine(rounds(ph)): put(rloads(r)); pend.append(r)
                for r in done: put(rout(r)); pend.remove(r)
            for r in pend: put(rsum(r)); put(rfin(r)); put(rout(r))
        phaseB_L() if LP else phaseB_S()
        if stamp:
            k("s_waitcnt vmcnt(0) lgkmcnt(0)\ns_memrealtime s[4:5]\ns_waitcnt lgkmcnt(0)")
            for i in range(10): k(f"v_mov_b32 v{28+i}, s{60+2*i}")
            k(f"""v_mov_b32 v38, s4
v_mov_b32 v39, s99
s_lshl_b32 s3, s2, 3
s_add_u32 s3, s3, s{sW}
s_lshl_b32 s3, s3, 6
s_add_u32 s3, s3, {O_STAMP}
v_mov_b32 v40, s3
global_store_dwordx4 v40, v[28:31], s[6:7]
global_store_dwordx4 v40, v[32:35], s[6:7] offset:16
global_store_dwordx4 v40, v[36:39], s[6:7] offset:32""")
            if "orc" in abl and not five:
                X = int(abl.split("orc")[1][:2]); which = abl.split("orc")[1][2:3] or "a"
                k(f"""s_cmp_lg_u32 s2, 0
s_cbranch_scc1 {name}_noorc
s_cmp_lg_u32 s{sW}, 4
s_cbranch_scc1 {name}_noorc
v_mov_b32 v41, {O_STAMP + 262144}
global_load_dword v44, v41, s[6:7]
s_waitcnt vmcnt(0)
v_readfirstlane_b32 s3, v44
s_sub_u32 s3, s{4 if which == 'a' else 60+2*int(which)}, s3
s_cmp_lt_u32 s3, {X*100}
s_cbranch_scc1 {name}_noorc
s_movk_i32 s3, 60
{name}_orcl:
s_sleep 64
s_sub_u32 s3, s3, 1
s_cbranch_scc0 {name}_orcl
{name}_noorc:""")
                k.saved.pop(f"{name}_orcl", None)
            if "until" in abl and not five:
                k(f"""s_cmp_lg_u32 s2, 0
s_cbranch_scc1 {name}_nount
s_cmp_lg_u32 s{sW}, 4
s_cbranch_scc1 {name}_nount
v_mov_b32 v41, {O_STAMP + 262144}
global_load_dword v44, v41, s[6:7]
s_waitcnt vmcnt(0)
v_readfirstlane_b32 s3, v44
{name}_untl:
s_memrealtime s[4:5]
s_waitcnt lgkmcnt(0)
s_sub_u32 s4, s4, s3
s_cmp_lt_u32 s4, 8000
s_cbranch_scc1 {name}_untl
{name}_nount:""")
                k.saved.pop(f"{name}_untl", None)
            if "dbg" in abl and not five:
                k(f"""s_cmp_lg_u32 s2, 0
s_cbranch_scc1 {name}_nodbg
s_cmp_lg_u32 s{sW}, 4
s_cbranch_scc1 {name}_nodbg
s_load_dwordx2 s[8:9], s[0:1], 64
v_mov_b32 v41, {O_STAMP + 262144}
global_load_dwordx4 v[44:47], v41, s[6:7]
global_load_dwordx4 v[48:51], v41, s[6:7] offset:16
v_mov_b32 v41, {O_STAMP + 2*262144}
global_load_dwordx4 v[52:55], v41, s[6:7]
global_load_dwordx4 v[56:59], v41, s[6:7] offset:16
s_waitcnt vmcnt(0) lgkmcnt(0)
s_sub_u32 s8, s8, {int(abl.split('dbg')[1][0])*512}
s_subb_u32 s9, s9, 0
v_sub_u32 v60, v46, v44
v_sub_u32 v61, v50, v44
v_sub_u32 v62, v52, v44
v_sub_u32 v63, v57, v44""")
                for i in range(11): k(f"v_sub_u32 v{64+i}, v{28+i}, v44")
                k(f"""v_mov_b32 v75, 12345
v_mov_b32 v41, 0
global_store_dwordx4 v41, v[60:63], s[8:9]
global_store_dwordx4 v41, v[64:67], s[8:9] offset:16
global_store_dwordx4 v41, v[68:71], s[8:9] offset:32
global_store_dwordx4 v41, v[72:75], s[8:9] offset:48
{name}_nodbg:""")
    k(f"s_cmp_ge_u32 s{sW}, 4\ns_cbranch_scc1 {name}_p4")
    path(True)
    k(f"s_endpgm\n{name}_p4:")
    path(False)
    k(f"{name}_end:")
    return k
```

```python
from asmlib import *
from layout import *
from pf import ws_srd
import struct
def fl(x): return "0x%08x" % struct.unpack("<I", struct.pack("<f", x))[0]
MF32 = "v_mfma_f32_16x16x32_bf16"
MF16 = "v_mfma_f32_16x16x16_bf16"

def stamp(k, on, i):
    if on: k(f"s_memrealtime s[{60+2*i}:{61+2*i}]")
def stamp_out(k, on, slot, wavereg, n):
    if not on: return
    k("s_waitcnt vmcnt(0)"); stamp(k, on, n)
    k("s_waitcnt lgkmcnt(0)")
    for i in range(8): k(f"v_mov_b32 v{8+i}, s{60+2*i}" if i <= n else f"v_mov_b32 v{8+i}, 0")
    k(f"""
s_lshl_b32 s3, s2, 3
s_add_u32 s3, s3, {wavereg}
s_lshl_b32 s3, s3, 5
s_add_u32 s3, s3, {O_STAMP + 262144*slot}
v_mov_b32 v16, s3
global_store_dwordx4 v16, v[8:11], s[6:7]
global_store_dwordx4 v16, v[12:15], s[6:7] offset:16
""")

def build_p1(st=False, FPOL="nt", P1PRIO=0, SELFPF=0, SIDEFIRST=0, TLB=0, XNT="", MERGE=0, NST=0, NPOL=""):
    NEXT = "pf" if MERGE else "p2"
    XL = 9216
    EX = 4*XL
    HB = 8192+6144
    WL = EX + HB
    k = K("p1", 256, 512, lds=WL+33344, vgpr=136)
    sW, sS2, sJT, sHF, sTY = 30, 31, 32, 50, 51
    stamp(k, st, 0)
    if SELFPF:
        k(f"""s_getpc_b64 s[4:5]
p1_pc0:
v_lshlrev_b32 v1, 7, v0
v_min_u32 v1, p1_code_end-p1_pc0-4, v1""")
        k("global_load_dword v19, v1, s[4:5]", tag="touch")
    k(f"""
s_setprio 3
s_load_dwordx4 s[44:47], s[0:1], 0
s_load_dwordx2 s[48:49], s[0:1], 16
s_load_dwordx2 s[6:7], s[0:1], 72
s_cmp_ge_u32 s2, 256
s_cbranch_scc1 p1_end
v_lshrrev_b32 v1, 6, v0
v_and_b32 v0, 63, v0
v_readfirstlane_b32 s3, v1
v_lshrrev_b32 v2, 4, v0
v_and_b32 v3, 15, v0
s_and_b32 s{sW}, s3, 3
s_lshr_b32 s{sHF}, s3, 2
s_lshr_b32 s{sTY}, s2, 6
s_and_b32 s{sS2}, s2, 63
s_lshl_b32 s{sJT}, s{sTY}, 1
s_add_u32 s{sJT}, s{sJT}, s{sHF}
s_lshl_b32 s2, s{sJT}, 6
s_add_u32 s2, s2, s{sS2}
s_cmp_ge_u32 s{sJT}, 5
s_cbranch_scc1 p1_side
v_lshrrev_b32 v4, 3, v0
v_and_b32 v5, 7, v0
s_lshl_b32 s3, s{sW}, 9
s_add_u32 s3, s3, s{sS2}
v_lshl_add_u32 v6, v4, 6, s3
v_mul_u32_u24 v6, 1152, v6
v_lshlrev_b32 v4, 1, v4
v_and_b32 v4, 4, v4
v_xor_b32 v5, v5, v4
v_lshl_add_u32 v6, v5, 4, v6
s_mul_i32 s34, s{sW}, {XL}
s_waitcnt lgkmcnt(0)
""")
    srd(k, 8, 44, N_H)
    X, FR, FI, AF, AC, MA, TW, ON, SM = 20, 28, 46, 64, 100, 116, 124, 20, 28+0
    xl = lambda i: k(f"s_add_u32 m0, s34, {i*896}\nbuffer_load_dwordx4 v6, s[8:11], 0 offen offset:{i*128} {XNT} lds", tag="X")
    k(f"s_cmp_lg_u32 s{sHF}, 0\ns_cbranch_scc1 p1_x2")
    for i in range(5): xl(i)
    k(f"s_cmp_lg_u32 s{sTY}, 2\ns_cbranch_scc1 p1_x3\np1_x2:")
    for i in range(5, 9): xl(i)
    k("p1_x3:")
    k("s_setprio 0")
    ws_srd(k, 12, O_U, N_U)
    k(f"""
v_and_b32 v7, 3, v0
v_lshrrev_b32 v9, 2, v0
v_lshlrev_b32 v9, 3, v9
v_lshlrev_b32 v4, 5, v7
v_and_b32 v4, 64, v4
v_lshl_add_u32 v7, v7, 7, s34
v_xor_b32 v8, v9, v4
v_add_u32 v8, v8, v7
v_xor_b32 v5, 64, v8
v_lshrrev_b32 v4, 1, v2
v_lshl_add_u32 v5, v4, 10, v5
v_lshl_add_u32 v7, v4, 12, v8
s_lshl_b32 s3, s{sJT}, 4
v_add_u32 v13, s3, v3
v_cvt_f32_u32 v9, v13
v_lshlrev_b32 v11, 4, v0
s_mul_i32 s3, s{sHF}, {HB}
s_add_u32 s3, s3, {EX}
v_add_u32 v11, s3, v11
s_lshr_b32 s3, s{sW}, 1
s_lshl_b32 s3, s3, 10
s_and_b32 s4, s{sW}, 1
s_lshl_b32 s4, s4, 3
s_add_u32 s3, s3, s4
v_add_u32 v10, s3, v11
s_lshl_b32 s3, s{sW}, 9
s_add_u32 s3, s3, s{sS2}
v_lshl_add_u32 v12, v2, 7, s3
v_mul_u32_u24 v12, {ROWB}, v12
v_lshl_add_u32 v12, v13, 4, v12
v_cvt_f32_u32 v14, v2
v_mul_f32 v15, {fl(1/144)}, v9
v_mul_f32 v14, 4.0, v14
v_mul_f32 v16, v14, v15
""")
    t = 132
    k(f"""v_lshlrev_b32 v17, 31, v13
v_lshrrev_b32 v18, 16, v17
v_or_b32 v17, v17, v18
v_lshrrev_b32 v18, 1, v2
v_cvt_f32_u32 v18, v18
v_mul_f32 v18, 0x42800000, v18
v_fma_f32 v18, v18, v15, v16""")
    FL = 8192
    k(f"""s_lshl_b32 s3, s{sW}, 1
s_cmp_ge_u32 s{sW}, 2
s_cselect_b32 s4, 12, 0
s_add_u32 s4, s4, s3
v_cvt_f32_u32 v19, s4
v_fma_f32 v16, v19, v15, v16
s_and_b32 s3, s3, 2
v_cvt_f32_u32 v19, s3
v_fma_f32 v18, v19, v15, v18
s_lshl_b32 s4, s{sW}, 2
v_add_u32 v19, s4, v11
s_lshl_b32 s3, s3, 1
v_add_u32 v1, s3, v11""")
    for i, (c0, base) in enumerate(((0, 16), (32, 16), (64, 18))):
        k(f"v_fmamk_f32 v{t}, v15, {fl(float(c0))}, v{base}\nv_add_f32 v{t+1}, v{t}, v15")
        k(f"v_cos_f32 v{t+2}, v{t}\nv_cos_f32 v{t+3}, v{t+1}\nv_sin_f32 v{t}, v{t}\nv_sin_f32 v{t+1}, v{t+1}")
        k(f"v_cvt_pk_bf16_f32 v{FR+i}, v{t+2}, v{t+3}\nv_cvt_pk_bf16_f32 v{FI+i}, -v{t}, -v{t+1}")
        k(f"ds_write_b32 v{19 if i < 2 else 1}, v{FR+i} offset:{FL+i*2048}\nds_write_b32 v{19 if i < 2 else 1}, v{FI+i} offset:{FL+i*2048+1024}")
    k(f"v_mov_b32 v{TW}, 1.0\nv_mov_b32 v{TW+4}, 0")
    for q in range(1, 4):
        k(f"v_mul_f32 v{t}, {fl(q/576)}, v9\nv_cos_f32 v{TW+q}, v{t}\nv_sin_f32 v{TW+4+q}, v{t}")
    k(f"""
v_lshrrev_b32 v14, 1, v3
s_lshl_b32 s3, s{sW}, 3
v_add_u32 v14, s3, v14
v_lshl_add_u32 v15, v2, 6, s{sS2}
v_mul_u32_u24 v15, v14, v15
v_and_b32 v16, 1, v3
v_lshl_add_u32 v15, v16, 9, v15
v_cvt_f32_u32 v15, v15
v_mul_f32 v15, {fl(1/2048)}, v15
v_cvt_f32_u32 v14, v14
""")
    for kk in range(2):
        for tt in range(4):
            k(f"v_fmamk_f32 v{t}, v14, {fl((16*kk+4*tt)/32)}, v15\nv_cos_f32 v{t+1}, v{t}\nv_sin_f32 v{t}, v{t}\nv_cvt_pk_bf16_f32 v{MA+4*kk+tt}, v{t+1}, v{t}")
    k.wait_lg(); k("s_barrier")
    for c, Fb in enumerate((FR, FI)):
        for kk in range(2): k(f"ds_read_b128 {vr(Fb+4*kk, 4)}, v11 offset:{FL+kk*2048+c*1024}")
        k(f"ds_read_b64 {vr(Fb+16, 2)}, v11 offset:{FL+4096+c*1024}")
    for Fb in (FR, FI):
        for i in range(8): k(f"v_xor_b32 v{Fb+8+i}, v17, v{Fb+i}")
    k("v_mov_b32 v16, 0\nv_mov_b32 v17, 0")
    for i in range(4): k(f"v_mov_b32 v{ON+i}, 0x3f803f80")
    k(f"v_lshlrev_b32 v18, 4, v2")
    stamp(k, st, 1)
    if P1PRIO: k("s_setprio 1")
    k.wait_vm("X"); k("s_barrier")
    stamp(k, st, 2)
    for mu in range(2):
        for kk in range(5):
            for h in range(2 if kk < 4 else 1):
                d = AF+18*mu+4*kk+2*h
                va, blk = [(8, h), (8, 2+h), (5, 4+h), (5, 6+h), (7, 4)][kk]
                k(f"ds_read_b64_tr_b16 v[{d}:{d+1}], v{va} offset:{mu*512 + blk*1024}")
    mf = []; dots = []
    SX = 24
    for mu in range(2):
        for kk in range(5):
            for a, Fb in ((AC+8*mu, FR+4*kk), (AC+8*mu+4, FI+4*kk), ([24, 132][mu], ON)):
                if kk < 4: mf.append(f"{MF32} {vr(a, 4)}, {vr(AF+18*mu+4*kk, 4)}, {vr(Fb, 4)}, {'0' if kk == 0 else vr(a, 4)}")
                else: mf.append(f"{MF16} {vr(a, 4)}, {vr(AF+18*mu+16, 2)}, {vr(Fb, 2)}, {vr(a, 4)}")
        dots += [f"v_dot2_f32_bf16 v{16+mu}, v{AF+18*mu+i}, v{AF+18*mu+i}, v{16+mu}" for i in range(18)]
    dpp = "row_mask:0xf bank_mask:0xf"
    red = f"""v_permlane32_swap_b32 v16, v17
v_add_f32 v16, v16, v17
v_add_f32_dpp v16, v16, v16 quad_perm:[1,0,3,2] {dpp}
v_add_f32_dpp v16, v16, v16 quad_perm:[2,3,0,1] {dpp}
v_mov_b32 v17, v16
v_permlane16_swap_b32 v16, v17
v_add_f32 v16, v16, v17
ds_bpermute_b32 v14, v18, v16
ds_bpermute_b32 v15, v18, v16 offset:128""".split("\n")
    for x in interleave(mf[:24], dots) + interleave(mf[24:], red): k(x)
    stamp(k, st, 3)
    E = X
    p2 = lambda x: vr(x, 2)
    NEG = "neg_lo:[0,1] neg_hi:[0,1]"
    for mu in range(2):
        R, I = AC+8*mu, AC+8*mu+4
        T = AF+16*mu
        rr = f"v[{14+2*mu}:{15+2*mu}]"
        k(f"""
v_pk_mul_f32 {p2(T)}, {p2(TW)}, {p2(R)}
v_pk_mul_f32 {p2(T+2)}, {p2(TW+2)}, {p2(R+2)}
v_pk_mul_f32 {p2(T+4)}, {p2(TW)}, {p2(I)}
v_pk_mul_f32 {p2(T+6)}, {p2(TW+2)}, {p2(I+2)}
v_pk_fma_f32 {p2(T)}, {p2(TW+4)}, {p2(I)}, {p2(T)}
v_pk_fma_f32 {p2(T+2)}, {p2(TW+6)}, {p2(I+2)}, {p2(T+2)}
v_pk_fma_f32 {p2(T+4)}, {p2(TW+4)}, {p2(R)}, {p2(T+4)} neg_lo:[1,0,0] neg_hi:[1,0,0]
v_pk_fma_f32 {p2(T+6)}, {p2(TW+6)}, {p2(R+2)}, {p2(T+6)} neg_lo:[1,0,0] neg_hi:[1,0,0]
v_pk_add_f32 {p2(T+8)}, {p2(T)}, {p2(T+2)}
v_pk_add_f32 {p2(T+10)}, {p2(T+4)}, {p2(T+6)}
v_pk_add_f32 {p2(T+12)}, {p2(T)}, {p2(T+2)} {NEG}
v_pk_add_f32 {p2(T+14)}, {p2(T+4)}, {p2(T+6)} {NEG}""")
    k(f"""v_pk_add_f32 v[24:25], v[24:25], v[26:27]
v_pk_add_f32 v[132:133], v[132:133], v[134:135]
v_add_f32 v24, v24, v25
v_add_f32 v25, v132, v133
s_mov_b32 s4, {fl(1/576)}
s_mov_b32 s5, s4
v_pk_mul_f32 v[24:25], v[24:25], s[4:5]
v_pk_mul_f32 v[24:25], v[24:25], v[24:25]
v_pk_fma_f32 v[14:15], v[14:15], s[4:5], v[24:25] neg_lo:[0,0,1] neg_hi:[0,0,1]
v_max_f32 v14, 0, v14
v_max_f32 v15, 0, v15
v_add_f32 v14, {fl(1e-5)}, v14
v_add_f32 v15, {fl(1e-5)}, v15
v_rsq_f32 v16, v15
v_rsq_f32 v17, v15
v_rsq_f32 v15, v14
v_rsq_f32 v14, v14""")
    for mu in range(2):
        T = AF+16*mu
        rr = f"v[{14+2*mu}:{15+2*mu}]"
        k(f"""
v_pk_mul_f32 {p2(T+8)}, {p2(T+8)}, {rr}
v_pk_mul_f32 {p2(T+10)}, {p2(T+10)}, {rr}
v_pk_mul_f32 {p2(T+12)}, {p2(T+12)}, {rr}
v_pk_mul_f32 {p2(T+14)}, {p2(T+14)}, {rr}
v_add_f32 v{T}, v{T+8}, v{T+9}
v_add_f32 v{T+1}, v{T+10}, v{T+11}
v_add_f32 v{T+2}, v{T+12}, v{T+15}
v_sub_f32 v{T+3}, v{T+14}, v{T+13}
v_sub_f32 v{T+4}, v{T+8}, v{T+9}
v_sub_f32 v{T+5}, v{T+10}, v{T+11}
v_sub_f32 v{T+6}, v{T+12}, v{T+15}
v_add_f32 v{T+7}, v{T+14}, v{T+13}
""")
        for m in range(4): k(f"v_cvt_pk_bf16_f32 v{E+2*m+mu}, v{T+2*m}, v{T+2*m+1}")
    for m in range(4): k(f"ds_write_b64 v10, {vr(E+2*m, 2)} offset:{m*2048}")
    k.wait_lg(); k("s_barrier")
    stamp(k, st, 4)
    B = FR
    for m in range(4):
        for kk in range(2): k(f"ds_read_b128 {vr(B+8*m+4*kk, 4)}, v11 offset:{m*2048+kk*1024}")
    for kk in range(2):
        for m in range(4): k(f"{MF32} {vr(AC+4*m, 4)}, {vr(MA+4*kk, 4)}, {vr(B+8*m+4*kk, 4)}, {'0' if kk == 0 else vr(AC+4*m, 4)}")
    k(f"s_mov_b32 s3, {64*ROWB}")
    for a in range(2):
        for m in range(4): k(f"v_cvt_pk_bf16_f32 v{X+4*a+m}, v{AC+4*m+2*a}, v{AC+4*m+2*a+1}")
        if MERGE: k(f"v_and_b32 v{X+4*a}, -2, v{X+4*a}")
        k(f"buffer_store_dwordx4 {vr(X+4*a, 4)}, v12, s[12:15], {'s3' if a else '0'} offen sc1")
    stamp(k, st, 5)
    stamp_out(k, st, 1, f"s{sW}", 6)
    k("s_endpgm\np1_side:")
    k(f"""
s_cmp_ge_u32 s2, 448
s_cbranch_scc1 p1_tab
s_sub_u32 s3, s2, 320
s_and_b32 s32, s3, 7
s_lshl_b32 s32, s32, 2
s_bfe_u32 s4, s3, 0x20003
s_add_u32 s32, s32, s4
s_lshr_b32 s31, s3, 5
s_lshl_b32 s3, s31, 9
s_add_u32 s33, s32, s3
s_and_b32 s3, s{sW}, 1
s_mul_i32 s4, s3, 138
s_cmp_eq_u32 s3, 0
s_cselect_b32 s34, 1, -1
v_lshrrev_b32 v4, 5, v0
v_lshl_add_u32 v6, v4, 5, s33
v_mul_lo_u32 v6, v6, s34
s_lshl_b32 s35, s34, 6
v_and_b32 v5, 1, v2
v_mul_u32_u24 v5, 288, v5
v_add_u32 v5, s4, v5
v_mov_b32 v12, {OOB}
v_lshlrev_b32 v7, 2, v2
v_and_b32 v7, 4, v7
v_sub_u32 v7, v3, v7
v_cmp_gt_u32 vcc, 11, v7
v_lshlrev_b32 v7, 4, v7
v_cndmask_b32 v12, v12, v7, vcc
s_movk_i32 s36, 578
s_mul_i32 s38, s{sW}, 8336
s_add_u32 s38, s38, {WL}
s_waitcnt lgkmcnt(0)
s_cmp_lt_u32 s{sW}, 2
s_cselect_b32 s8, s46, s48
s_cselect_b32 s9, s47, s49
s_mov_b32 s10, {N_WF}
s_mov_b32 s11, 0x20000
""")
    for i in range(8):
        k(f"""v_and_b32 v8, 2047, v6
v_mad_u32_u24 v8, v8, s36, v5
v_and_b32 v8, -16, v8
s_add_u32 m0, s38, {i*1040}
v_add_u32 v8, v8, v12
buffer_load_dwordx4 v8, s[8:11], 0 offen {FPOL} lds
v_add_u32 v6, s35, v6""", tag="W")
    stamp(k, st, 1)
    ws_srd(k, 16, O_WH, N_WH)
    k(f"""
v_lshrrev_b32 v4, 2, v3
s_lshl_b32 s3, s{sW}, 2
v_add_u32 v4, s3, v4
v_and_b32 v10, 3, v3
v_sub_u32 v13, 75, v4
v_cmp_gt_u32 vcc, 2, v10
v_cndmask_b32 v13, v13, v4, vcc
v_mov_b32 v14, 0xffffffe0
v_cndmask_b32 v14, v14, 32, vcc
v_bfrev_b32 v15, 1
v_cndmask_b32 v15, v15, 0, vcc
v_mov_b32 v16, 8336
v_cndmask_b32 v16, v16, 0, vcc
v_lshl_add_u32 v16, v13, 1, v16
v_mul_u32_u24 v17, 2080, v2
v_add_u32 v16, v16, v17
v_lshrrev_b32 v17, 1, v10
v_xor_b32 v17, v17, v10
v_and_b32 v17, 1, v17
v_mul_u32_u24 v17, 320, v17
v_add_u32 v16, v16, v17
v_sub_u32 v17, 5, s33
v_mov_b32 v18, s33
v_cndmask_b32 v17, v17, v18, vcc
v_lshlrev_b32 v17, 1, v17
v_and_b32 v17, 14, v17
v_add_u32 v84, v16, v17
v_add_u32 v84, {WL}, v84
v_or_b32 v11, v10, v4
v_cmp_eq_u32 s[40:41], 0, v11
s_mul_i32 s3, s32, 19
s_add_u32 s3, s3, s{sW}
s_lshl_b32 s3, s3, 12
s_lshl_b32 s4, s31, 10
s_add_u32 s37, s3, s4
v_lshlrev_b32 v93, 4, v0
""")
    k("s_barrier\ns_barrier")
    stamp(k, st, 2)
    k.wait_vm("W")
    stamp(k, st, 3)
    k("s_barrier")
    stamp(k, st, 4)
    for it in range(5):
        D0 = 20 + 12*it
        if it: k(f"v_add_u32 v84, v84, v14")
        for r in range(4): k(f"ds_read_u16 v{D0+r}, v84 offset:{(r >> 1)*1040 + (r & 1)*512}\nds_read_u16 v{D0+4+r}, v84 offset:{(r >> 1)*1040 + (r & 1)*512 + 16672}")
    k("v_cmp_lt_u32 vcc, 8, v4")
    for it in range(5):
        if it == 4: k(f"s_cmp_eq_u32 s{sW}, 3\ns_cbranch_scc1 p1_wend")
        D0 = 20 + 12*it
        for r in range(4): k(f"v_lshl_or_b32 v{D0+8+r}, v{D0+4+r}, 16, v{D0+r}\nv_xor_b32 v{D0+8+r}, v15, v{D0+8+r}")
        if it == 0:
            for r in range(4): k(f"v_cndmask_b32 v{D0+8+r}, v{D0+8+r}, 0, s[40:41]")
        if it == 4:
            for r in range(4): k(f"v_cndmask_b32 v{D0+8+r}, v{D0+8+r}, 0, vcc")
        k(f"buffer_store_dwordx4 {vr(D0+8, 4)}, v93, s[16:19], s37 offen sc1\ns_add_u32 s37, s37, 16384")
    k("p1_wend:")
    stamp(k, st, 5)
    stamp_out(k, st, 1, f"s{sW}", 6)
    k("s_endpgm\np1_tab:")
    sc = 1.0/(S*D)
    k(f"""
s_cmp_ge_u32 s2, 464
s_cbranch_scc1 p1_pf
s_sub_u32 s3, s2, 448
s_lshl_b32 s3, s3, 2
s_add_u32 s31, s3, s{sW}
s_cmp_ge_u32 s31, 61
s_cbranch_scc1 p1_end
s_lshr_b32 s32, s31, 2
s_and_b32 s33, s31, 3
s_mov_b32 s34, {fl(1/64)}
s_cmp_lt_u32 s31, 16
s_cbranch_scc1 p1_tabA
s_sub_u32 s3, s31, 16
s_mul_i32 s32, s3, 52
s_lshr_b32 s32, s32, 8
s_mul_i32 s4, s32, 5
s_sub_u32 s33, s3, s4
s_mov_b32 s34, {fl(1/144)}
p1_tabA:
s_lshl_b32 s32, s32, 4
s_lshl_b32 s33, s33, 4
v_add_u32 v4, s32, v3
v_lshl_add_u32 v5, v2, 2, s33
s_waitcnt lgkmcnt(0)
""")
    ws_srd(k, 8, O_TAB, N_TAB)
    for r in range(4):
        k(f"""
v_add_u32 v6, {r}, v5
v_mul_u32_u24 v7, v6, v4
v_cvt_f32_u32 v7, v7
v_mul_f32 v7, s34, v7
v_fract_f32 v7, v7
v_cos_f32 v8, v7
v_sin_f32 v9, v7
s_cmp_lt_u32 s31, 16
s_cbranch_scc1 p1_tabB{r}
v_mov_b32 v10, {fl(2*sc)}
v_mov_b32 v11, {fl(sc)}
v_cmp_eq_u32 vcc, 0, v6
v_cndmask_b32 v10, v10, v11, vcc
v_cmp_eq_u32 vcc, 72, v6
v_cndmask_b32 v10, v10, v11, vcc
v_cmp_gt_u32 vcc, 73, v6
v_cndmask_b32 v10, 0, v10, vcc
v_mul_f32 v8, v8, v10
v_mul_f32 v9, -v9, v10
p1_tabB{r}:
v_cvt_pk_bf16_f32 v{12+r}, v8, v9
""")
    k(f"v_lshlrev_b32 v4, 4, v0\ns_lshl_b32 s3, s31, 10\nbuffer_store_dwordx4 v[12:15], v4, s[8:11], s3 offen sc1\ns_endpgm\np1_pf:")
    k(f"""
s_cmp_ge_u32 s2, 480
s_cbranch_scc1 {'p1_wpf' if NST else 'p1_end'}
s_getpc_b64 s[4:5]
p1_pc:
s_add_u32 s4, s4, {NEXT}_kernel-p1_pc
s_addc_u32 s5, s5, 0
s_lshl_b32 s3, s{sW}, 6
v_add_u32 v4, s3, v0
s_sub_u32 s3, s2, 464
s_lshr_b32 s3, s3, 3
s_lshl_b32 s3, s3, 15
v_lshl_add_u32 v5, v4, 7, s3
v_min_u32 v5, pf_code_end-{NEXT}_kernel-4, v5
global_load_dword v6, v5, s[4:5]
s_waitcnt lgkmcnt(0)
""")
    if TLB:
        k(f"""s_load_dwordx4 s[36:39], s[0:1], 32
s_load_dwordx4 s[40:43], s[0:1], 48
v_lshlrev_b32 v12, {TLB}, v4
s_waitcnt lgkmcnt(0)""")
        ws_srd(k, 8, 0, O_P + N_P)
        for i in range((O_P + N_P + (256 << TLB) - 1)//(256 << TLB)):
            k(f"s_mov_b32 s3, {i*(256 << TLB)}\nbuffer_load_dword v13, v12, s[8:11], s3 offen", tag="touch")
        for b, n in ((36, N_W), (38, N_W), (40, N_W), (42, N_H)):
            srd(k, 8, b, n)
            k("buffer_load_dword v13, v12, s[8:11], 0 offen", tag="touch")
    ws_srd(k, 8, O_FLG, N_ZERO)
    k(f"""
s_and_b32 s3, s2, 15
s_mul_i32 s3, s3, 20480
v_lshlrev_b32 v4, 4, v4
v_mov_b32 v8, 0
v_mov_b32 v9, 0
v_mov_b32 v10, 0
v_mov_b32 v11, 0
""")
    for i in range(5): k(f"buffer_store_dwordx4 v[8:11], v4, s[8:11], s3 offen sc1\ns_add_u32 s3, s3, 4096")
    if NST:
        per = 36*NST; n = (per + 63)//64; ln = per//n
        assert ln*n == per
        k(f"""s_endpgm
p1_wpf:
s_load_dwordx4 s[36:39], s[0:1], 32
s_sub_u32 s3, s2, 480
s_lshr_b32 s4, s3, 3
s_and_b32 s5, s4, 1
s_lshl_b32 s5, s5, 2
s_add_u32 s5, s5, s{sW}
s_mul_i32 s5, s5, {per}
v_add_u32 v4, s5, v0
s_and_b32 s3, s3, 7
s_mul_i32 s33, s3, 1152
v_mov_b32 v7, {OOB}
v_cmp_gt_u32 vcc, {ln}, v0
s_waitcnt lgkmcnt(0)
s_cmp_lt_u32 s4, 2
s_cselect_b32 s8, s36, s38
s_cselect_b32 s9, s37, s39
s_mov_b32 s10, {N_W}
s_mov_b32 s11, 0x20000
s_barrier
s_barrier
s_barrier""")
        for i in range(n):
            k(f"""v_mul_u32_u24 v5, 7282, v4
v_lshrrev_b32 v5, 16, v5
v_mul_u32_u24 v6, 9, v5
v_sub_u32 v6, v4, v6
v_mul_u32_u24 v5, 9216, v5
v_lshl_add_u32 v5, v6, 7, v5
v_cndmask_b32 v5, v7, v5, vcc""")
            k(f"buffer_load_dword v8, v5, s[8:11], s33 offen {NPOL}", tag="touch")
            k(f"v_add_u32 v4, {ln}, v4")
    k(f"""p1_end:""")
    return k

def build_p2(st=False):
    k = K("p2", 608, 64, vgpr=160)
    stamp(k, st, 0)
    k(f"""
s_load_dwordx2 s[6:7], s[0:1], 72
s_cmp_ge_u32 s2, 608
s_cbranch_scc1 p2_end
s_lshr_b32 s3, s2, 3
s_mul_i32 s4, s3, 27
s_lshr_b32 s4, s4, 9
s_mul_i32 s5, s4, 19
s_sub_u32 s31, s3, s5
s_and_b32 s3, s2, 7
s_lshl_b32 s3, s3, 2
s_add_u32 s32, s3, s4
v_lshrrev_b32 v2, 4, v0
v_and_b32 v3, 15, v0
v_mul_u32_u24 v4, {4*ROWB}, v2
v_lshl_add_u32 v4, v3, 2, v4
v_lshlrev_b32 v5, 4, v0
s_mul_i32 s33, s32, {64*ROWB}
s_lshl_b32 s3, s31, 6
s_add_u32 s33, s33, s3
s_waitcnt lgkmcnt(0)
""")
    ws_srd(k, 8, O_U, N_U)
    B, B2, A, WH, XR, XI = 8, 24, 40, 104, 120, 136
    for T in range(4):
        if T: k(f"s_add_u32 s33, s33, {16*ROWB}")
        for r in range(4): k(f"buffer_load_dword v{B+4*T+r}, v4, s[8:11], s33 offen offset:{r*ROWB}")
    ws_srd(k, 12, O_TAB, N_TAB)
    for f in range(16):
        if f % 4 == 0: k(f"s_movk_i32 s3, {f*1024}")
        k(f"buffer_load_dwordx4 {vr(A+4*f, 4)}, v5, s[12:15], s3 offen offset:{(f % 4)*1024}")
    ws_srd(k, 16, O_WH, N_WH)
    k("s_mul_i32 s34, s32, 19\ns_add_u32 s34, s34, s31\ns_lshl_b32 s34, s34, 12")
    for T in range(4): k(f"buffer_load_dwordx4 {vr(WH+4*T, 4)}, v5, s[16:19], s34 offen offset:{T*1024}")
    k(f"""
v_mul_u32_u24 v6, {ROWB}, v3
v_lshl_add_u32 v6, v2, 4, v6
s_mul_i32 s35, s32, {64*ROWB}
s_lshl_b32 s3, s31, 6
s_add_u32 s35, s35, s3
s_brev_b32 s36, 1
s_mov_b32 s37, 0xffff0000
""")
    stamp(k, st, 1)
    for i in range(16): k(f"v_alignbit_b32 v{B2+i}, v{B+i}, v{B+i}, 16\nv_xor_b32 v{B2+i}, s36, v{B2+i}")
    stamp(k, st, 2)
    def fwd(Tp): return [f"{MF32} {vr(o+4*Tp, 4)}, {vr(A+16*Tp+4*T, 4)}, {vr(b+4*T, 4)}, {'0' if T == 0 else vr(o+4*Tp, 4)}" for T in range(4) for o, b in ((XR, B), (XI, B2))]
    D1, D2 = 152, B
    def filt(T):
        out = []
        for r in (0, 2):
            w = WH+4*T+r; xr, xi = XR+4*T+r, XI+4*T+r
            out += [f"v_lshlrev_b32 v152, 16, v{w}", f"v_lshlrev_b32 v153, 16, v{w+1}", f"v_and_b32 v154, s37, v{w}", f"v_and_b32 v155, s37, v{w+1}",
                    f"v_pk_mul_f32 v[156:157], {vr(xr, 2)}, v[152:153]", f"v_pk_mul_f32 v[158:159], {vr(xr, 2)}, v[154:155]",
                    f"v_pk_fma_f32 v[156:157], {vr(xi, 2)}, v[154:155], v[156:157] neg_lo:[1,0,0] neg_hi:[1,0,0]", f"v_pk_fma_f32 v[158:159], {vr(xi, 2)}, v[152:153], v[158:159]",
                    f"v_cvt_pk_bf16_f32 v{w}, v156, -v158", f"v_cvt_pk_bf16_f32 v{w+1}, v157, -v159", f"v_cvt_pk_bf16_f32 v{xr}, v158, v156", f"v_cvt_pk_bf16_f32 v{xr+1}, v159, v157"]
        return out
    for x in fwd(0): k(x)
    for Tp in range(1, 4):
        for x in interleave(fwd(Tp), filt(Tp-1)): k(x)
    for x in filt(3): k(x)
    stamp(k, st, 3)
    VR, VI = B, B2
    def inv(Tp): return [f"{MF32} {vr(o+4*Tp, 4)}, {vr(d+4*T, 4)}, {vr(A+16*Tp+4*T, 4)}, {'0' if T == 0 else vr(o+4*Tp, 4)}" for T in range(4) for o, d in ((VR, WH), (VI, XR))]
    def outp(Tp):
        return [f"v_cvt_pk_bf16_f32 v{XI+4*Tp+r}, v{VR+4*Tp+r}, v{VI+4*Tp+r}" for r in range(4)] + \
               [f"buffer_store_dwordx4 {vr(XI+4*Tp, 4)}, v6, s[8:11], s35 offen sc1\ns_add_u32 s35, s35, {16*ROWB}"]
    for x in inv(0): k(x)
    for Tp in range(1, 4):
        m = inv(Tp)
        for x in m[:3] + interleave(m[3:], outp(Tp-1)): k(x)
    for x in outp(3): k(x)
    stamp(k, st, 4)
    stamp_out(k, st, 2, "0", 5)
    k("p2_end:")
    return k


def column_task(k, o, sTile, sK1, sB, srd, vlane16, vL, shadow, between):
    D = f"s[{srd}:{srd+3}]"
    B, B2, A, WH, XR, XI, TP = (x+o for x in (8, 24, 40, 104, 120, 136, 152))
    k(f"""
v_lshrrev_b32 v2, 4, v{vL}
v_and_b32 v3, 15, v{vL}
v_mul_u32_u24 v4, {4*ROWB}, v2
v_lshl_add_u32 v4, v3, 2, v4
s_mul_i32 s{sB}, s{sK1}, {64*ROWB}
s_lshl_b32 s3, s{sTile}, 6
s_add_u32 s{sB}, s{sB}, s3
s_mov_b32 s{sB+1}, s{sB}
""")
    for T in range(4):
        if T: k(f"s_add_u32 s{sB}, s{sB}, {16*ROWB}")
        for r in range(4): k(f"buffer_load_dword v{B+4*T+r}, v4, {D}, s{sB} offen offset:{r*ROWB}")
    for f in range(16):
        if f % 4 == 0: k(f"s_mov_b32 s3, {O_TAB - O_U + f*1024}")
        k(f"buffer_load_dwordx4 {vr(A+4*f, 4)}, v{vlane16}, {D}, s3 offen offset:{(f % 4)*1024}")
    k(f"s_mul_i32 s3, s{sK1}, 19\ns_add_u32 s3, s3, s{sTile}\ns_lshl_b32 s3, s3, 12\ns_add_u32 s3, s3, {O_WH - O_U}")
    for T in range(4): k(f"buffer_load_dwordx4 {vr(WH+4*T, 4)}, v{vlane16}, {D}, s3 offen offset:{T*1024}")
    k(f"""
v_mul_u32_u24 v6, {ROWB}, v3
v_lshl_add_u32 v6, v2, 4, v6
s_brev_b32 s{sB+2}, 1
s_mov_b32 s{sB+3}, 0xffff0000
""")
    shadow()
    for i in range(16): k(f"v_alignbit_b32 v{B2+i}, v{B+i}, v{B+i}, 16\nv_xor_b32 v{B2+i}, s{sB+2}, v{B2+i}")
    between()
    def fwd(Tp): return [f"{MF32} {vr(q+4*Tp, 4)}, {vr(A+16*Tp+4*T, 4)}, {vr(b+4*T, 4)}, {'0' if T == 0 else vr(q+4*Tp, 4)}" for T in range(4) for q, b in ((XR, B), (XI, B2))]
    def filt(T):
        out = []; t = TP
        for r in (0, 2):
            w = WH+4*T+r; xr, xi = XR+4*T+r, XI+4*T+r
            out += [f"v_lshlrev_b32 v{t}, 16, v{w}", f"v_lshlrev_b32 v{t+1}, 16, v{w+1}", f"v_and_b32 v{t+2}, s{sB+3}, v{w}", f"v_and_b32 v{t+3}, s{sB+3}, v{w+1}",
                    f"v_pk_mul_f32 {vr(t+4, 2)}, {vr(xr, 2)}, {vr(t, 2)}", f"v_pk_mul_f32 {vr(t+6, 2)}, {vr(xr, 2)}, {vr(t+2, 2)}",
                    f"v_pk_fma_f32 {vr(t+4, 2)}, {vr(xi, 2)}, {vr(t+2, 2)}, {vr(t+4, 2)} neg_lo:[1,0,0] neg_hi:[1,0,0]", f"v_pk_fma_f32 {vr(t+6, 2)}, {vr(xi, 2)}, {vr(t, 2)}, {vr(t+6, 2)}",
                    f"v_cvt_pk_bf16_f32 v{w}, v{t+4}, -v{t+6}", f"v_cvt_pk_bf16_f32 v{w+1}, v{t+5}, -v{t+7}", f"v_cvt_pk_bf16_f32 v{xr}, v{t+6}, v{t+4}", f"v_cvt_pk_bf16_f32 v{xr+1}, v{t+7}, v{t+5}"]
        return out
    for x in fwd(0): k(x)
    for Tp in range(1, 4):
        for x in interleave(fwd(Tp), filt(Tp-1)): k(x)
    for x in filt(3): k(x)
    def inv(Tp): return [f"{MF32} {vr(q+4*Tp, 4)}, {vr(d+4*T, 4)}, {vr(A+16*Tp+4*T, 4)}, {'0' if T == 0 else vr(q+4*Tp, 4)}" for T in range(4) for q, d in ((B, WH), (B2, XR))]
    def outp(Tp):
        return [f"v_cvt_pk_bf16_f32 v{XI+4*Tp+r}, v{B+4*Tp+r}, v{B2+4*Tp+r}" for r in range(4)] + [f"v_or_b32 v{XI+4*Tp}, 1, v{XI+4*Tp}"] + \
               [f"buffer_store_dwordx4 {vr(XI+4*Tp, 4)}, v6, {D}, s{sB+1} offen sc1\ns_add_u32 s{sB+1}, s{sB+1}, {16*ROWB}"]
    for x in inv(0): k(x)
    for Tp in range(1, 4):
        m = inv(Tp)
        for x in m[:3] + interleave(m[3:], outp(Tp-1)): k(x)
    for x in outp(3): k(x)
```

```python
S, D, F = 2048, 576, 4608
MB = 1 << 20
import os
BASE = int(os.environ.get('WSBASE', 0))*MB
ROWB = 1280
O_U   = BASE
O_V   = BASE
O_WH  = BASE + 3*MB
O_XF  = BASE + 6*MB
O_H   = BASE + 9*MB
O_STAMP = 100*MB
O_FLG = BASE + 12*MB
O_P   = BASE + 13*MB
N_U = 2048*ROWB
N_WH = 32*19*4096
N_XF = 16*18*8*1024
N_H = S*D*2
N_P = 16*16*9*16384
N_W = D*F*2
LOG2E = 1.4426950408889634
LN2 = 0.6931471805599453
O_TAB = BASE + 11*MB//2
N_TAB = 61*1024
N_WF = 2048*289*2
OOB = 0x40000000
F_X = 0
F_2 = 32768
F_E = 163840
F_1 = 196608
N_ZERO = 327680
N_FLG = N_ZERO

F_R = 196608
F_G = 229376
F_N = 262144
```

```python
from asmlib import *
from layout import *
from pf import ws_srd
import struct
def fl(x): return "0x%08x" % struct.unpack("<I", struct.pack("<f", x))[0]
MF32 = "v_mfma_f32_16x16x32_bf16"
MF16 = "v_mfma_f32_16x16x16_bf16"

def stamp(k, on, i):
    if on: k(f"s_memrealtime s[{60+2*i}:{61+2*i}]")
def stamp_out(k, on, slot, wavereg, n):
    if not on: return
    k("s_waitcnt vmcnt(0)"); stamp(k, on, n)
    k("s_waitcnt lgkmcnt(0)")
    for i in range(8): k(f"v_mov_b32 v{8+i}, s{60+2*i}" if i <= n else f"v_mov_b32 v{8+i}, 0")
    k(f"""
s_lshl_b32 s3, s2, 3
s_add_u32 s3, s3, {wavereg}
s_lshl_b32 s3, s3, 5
s_add_u32 s3, s3, {O_STAMP + 262144*slot}
v_mov_b32 v16, s3
global_store_dwordx4 v16, v[8:11], s[6:7]
global_store_dwordx4 v16, v[12:15], s[6:7] offset:16
""")

def build_p1(st=False, FPOL="", P1PRIO=0, SELFPF=0, SIDEFIRST=0, TLB=0, XNT="", MERGE=0, NST=0, NPOL="", mono=None, NZ=2):
    NEXT = "pf_join" if mono else "pf_kernel" if MERGE else "p2_kernel"
    XL = 9216
    EX = 4*XL
    HB = 8192+6144
    WL = EX + HB
    k = mono or K("p1", 256, 512, lds=WL+33344, vgpr=136)
    if mono: st = False; assert MERGE and not NST
    END = "s_branch pf_join" if mono else "s_endpgm"
    END3 = "s_branch p1_bar3" if mono else "s_endpgm"
    sW, sS2, sJT, sHF, sTY = 30, 31, 32, 50, 51
    def nonce():
        if mono: k(f"v_mov_b32 v201, {O_FLG + F_N}\nglobal_load_dword v200, v201, s[6:7] sc1")
    stamp(k, st, 0)
    if SELFPF:
        k(f"""s_getpc_b64 s[4:5]
p1_pc0:
v_lshlrev_b32 v1, 7, v0
v_min_u32 v1, p1_code_end-p1_pc0-4, v1""")
        k("global_load_dword v19, v1, s[4:5]", tag="touch")
    k(f"""
s_setprio 3
s_load_dwordx4 s[44:47], s[0:1], 0
s_load_dwordx2 s[48:49], s[0:1], 16
s_load_dwordx2 s[6:7], s[0:1], 72
s_cmp_ge_u32 s2, 256
s_cbranch_scc1 {'pf_end' if mono else 'p1_end'}
v_lshrrev_b32 v1, 6, v0
v_and_b32 v0, 63, v0
v_readfirstlane_b32 s3, v1
{'s_mov_b32 s100, s3' if mono else ''}
{'s_mov_b32 s101, s2' if mono else ''}
v_lshrrev_b32 v2, 4, v0
v_and_b32 v3, 15, v0
s_and_b32 s{sW}, s3, 3
s_lshr_b32 s{sHF}, s3, 2
s_lshr_b32 s{sTY}, s2, 6
s_and_b32 s{sS2}, s2, 63
s_lshl_b32 s{sJT}, s{sTY}, 1
s_add_u32 s{sJT}, s{sJT}, s{sHF}
s_lshl_b32 s2, s{sJT}, 6
s_add_u32 s2, s2, s{sS2}
s_cmp_ge_u32 s{sJT}, 5
s_cbranch_scc1 p1_side
v_lshrrev_b32 v4, 3, v0
v_and_b32 v5, 7, v0
s_lshl_b32 s3, s{sW}, 9
s_add_u32 s3, s3, s{sS2}
v_lshl_add_u32 v6, v4, 6, s3
v_mul_u32_u24 v6, 1152, v6
v_lshlrev_b32 v4, 1, v4
v_and_b32 v4, 4, v4
v_xor_b32 v5, v5, v4
v_lshl_add_u32 v6, v5, 4, v6
s_mul_i32 s34, s{sW}, {XL}
s_waitcnt lgkmcnt(0)
""")
    srd(k, 8, 44, N_H)
    X, FR, FI, AF, AC, MA, TW, ON, SM = 20, 28, 46, 64, 100, 116, 124, 20, 28+0
    xl = lambda i: k(f"s_add_u32 m0, s34, {i*896}\nbuffer_load_dwordx4 v6, s[8:11], 0 offen offset:{i*128} {XNT} lds", tag="X")
    k(f"s_cmp_lg_u32 s{sHF}, 0\ns_cbranch_scc1 p1_x2")
    for i in range(5): xl(i)
    k(f"s_cmp_lg_u32 s{sTY}, 2\ns_cbranch_scc1 p1_x3\np1_x2:")
    for i in range(5, 9): xl(i)
    k("p1_x3:")
    nonce()
    k("s_setprio 0")
    ws_srd(k, 12, O_U, N_U)
    k(f"""
v_and_b32 v7, 3, v0
v_lshrrev_b32 v9, 2, v0
v_lshlrev_b32 v9, 3, v9
v_lshlrev_b32 v4, 5, v7
v_and_b32 v4, 64, v4
v_lshl_add_u32 v7, v7, 7, s34
v_xor_b32 v8, v9, v4
v_add_u32 v8, v8, v7
v_xor_b32 v5, 64, v8
v_lshrrev_b32 v4, 1, v2
v_lshl_add_u32 v5, v4, 10, v5
v_lshl_add_u32 v7, v4, 12, v8
s_lshl_b32 s3, s{sJT}, 4
v_add_u32 v13, s3, v3
v_cvt_f32_u32 v9, v13
v_lshlrev_b32 v11, 4, v0
s_mul_i32 s3, s{sHF}, {HB}
s_add_u32 s3, s3, {EX}
v_add_u32 v11, s3, v11
s_lshr_b32 s3, s{sW}, 1
s_lshl_b32 s3, s3, 10
s_and_b32 s4, s{sW}, 1
s_lshl_b32 s4, s4, 3
s_add_u32 s3, s3, s4
v_add_u32 v10, s3, v11
s_lshl_b32 s3, s{sW}, 9
s_add_u32 s3, s3, s{sS2}
v_lshl_add_u32 v12, v2, 7, s3
v_mul_u32_u24 v12, {ROWB}, v12
v_lshl_add_u32 v12, v13, 4, v12
v_cvt_f32_u32 v14, v2
v_mul_f32 v15, {fl(1/144)}, v9
v_mul_f32 v14, 4.0, v14
v_mul_f32 v16, v14, v15
""")
    t = 132
    k(f"""v_lshlrev_b32 v17, 31, v13
v_lshrrev_b32 v18, 16, v17
v_or_b32 v17, v17, v18
v_lshrrev_b32 v18, 1, v2
v_cvt_f32_u32 v18, v18
v_mul_f32 v18, 0x42800000, v18
v_fma_f32 v18, v18, v15, v16""")
    FL = 8192
    k(f"""s_lshl_b32 s3, s{sW}, 1
s_cmp_ge_u32 s{sW}, 2
s_cselect_b32 s4, 12, 0
s_add_u32 s4, s4, s3
v_cvt_f32_u32 v19, s4
v_fma_f32 v16, v19, v15, v16
s_and_b32 s3, s3, 2
v_cvt_f32_u32 v19, s3
v_fma_f32 v18, v19, v15, v18
s_lshl_b32 s4, s{sW}, 2
v_add_u32 v19, s4, v11
s_lshl_b32 s3, s3, 1
v_add_u32 v1, s3, v11""")
    for i, (c0, base) in enumerate(((0, 16), (32, 16), (64, 18))):
        k(f"v_fmamk_f32 v{t}, v15, {fl(float(c0))}, v{base}\nv_add_f32 v{t+1}, v{t}, v15")
        k(f"v_cos_f32 v{t+2}, v{t}\nv_cos_f32 v{t+3}, v{t+1}\nv_sin_f32 v{t}, v{t}\nv_sin_f32 v{t+1}, v{t+1}")
        k(f"v_cvt_pk_bf16_f32 v{FR+i}, v{t+2}, v{t+3}\nv_cvt_pk_bf16_f32 v{FI+i}, -v{t}, -v{t+1}")
        k(f"ds_write_b32 v{19 if i < 2 else 1}, v{FR+i} offset:{FL+i*2048}\nds_write_b32 v{19 if i < 2 else 1}, v{FI+i} offset:{FL+i*2048+1024}")
    k(f"v_mov_b32 v{TW}, 1.0\nv_mov_b32 v{TW+4}, 0")
    for q in range(1, 4):
        k(f"v_mul_f32 v{t}, {fl(q/576)}, v9\nv_cos_f32 v{TW+q}, v{t}\nv_sin_f32 v{TW+4+q}, v{t}")
    k(f"""
v_lshrrev_b32 v14, 1, v3
s_lshl_b32 s3, s{sW}, 3
v_add_u32 v14, s3, v14
v_lshl_add_u32 v15, v2, 6, s{sS2}
v_mul_u32_u24 v15, v14, v15
v_and_b32 v16, 1, v3
v_lshl_add_u32 v15, v16, 9, v15
v_cvt_f32_u32 v15, v15
v_mul_f32 v15, {fl(1/2048)}, v15
v_cvt_f32_u32 v14, v14
""")
    for kk in range(2):
        for tt in range(4):
            k(f"v_fmamk_f32 v{t}, v14, {fl((16*kk+4*tt)/32)}, v15\nv_cos_f32 v{t+1}, v{t}\nv_sin_f32 v{t}, v{t}\nv_cvt_pk_bf16_f32 v{MA+4*kk+tt}, v{t+1}, v{t}")
    k.wait_lg(); k("s_barrier")
    for c, Fb in enumerate((FR, FI)):
        for kk in range(2): k(f"ds_read_b128 {vr(Fb+4*kk, 4)}, v11 offset:{FL+kk*2048+c*1024}")
        k(f"ds_read_b64 {vr(Fb+16, 2)}, v11 offset:{FL+4096+c*1024}")
    for Fb in (FR, FI):
        for i in range(8): k(f"v_xor_b32 v{Fb+8+i}, v17, v{Fb+i}")
    k("v_mov_b32 v16, 0\nv_mov_b32 v17, 0")
    for i in range(4): k(f"v_mov_b32 v{ON+i}, 0x3f803f80")
    k(f"v_lshlrev_b32 v18, 4, v2")
    stamp(k, st, 1)
    if P1PRIO: k("s_setprio 1")
    k.wait_vm("X"); k("s_barrier")
    stamp(k, st, 2)
    for mu in range(2):
        for kk in range(5):
            for h in range(2 if kk < 4 else 1):
                d = AF+18*mu+4*kk+2*h
                va, blk = [(8, h), (8, 2+h), (5, 4+h), (5, 6+h), (7, 4)][kk]
                k(f"ds_read_b64_tr_b16 v[{d}:{d+1}], v{va} offset:{mu*512 + blk*1024}")
    mf = []; dots = []
    SX = 24
    for mu in range(2):
        for kk in range(5):
            for a, Fb in ((AC+8*mu, FR+4*kk), (AC+8*mu+4, FI+4*kk), ([24, 132][mu], ON)):
                if kk < 4: mf.append(f"{MF32} {vr(a, 4)}, {vr(AF+18*mu+4*kk, 4)}, {vr(Fb, 4)}, {'0' if kk == 0 else vr(a, 4)}")
                else: mf.append(f"{MF16} {vr(a, 4)}, {vr(AF+18*mu+16, 2)}, {vr(Fb, 2)}, {vr(a, 4)}")
        dots += [f"v_dot2_f32_bf16 v{16+mu}, v{AF+18*mu+i}, v{AF+18*mu+i}, v{16+mu}" for i in range(18)]
    dpp = "row_mask:0xf bank_mask:0xf"
    red = f"""v_permlane32_swap_b32 v16, v17
v_add_f32 v16, v16, v17
v_add_f32_dpp v16, v16, v16 quad_perm:[1,0,3,2] {dpp}
v_add_f32_dpp v16, v16, v16 quad_perm:[2,3,0,1] {dpp}
v_mov_b32 v17, v16
v_permlane16_swap_b32 v16, v17
v_add_f32 v16, v16, v17
ds_bpermute_b32 v14, v18, v16
ds_bpermute_b32 v15, v18, v16 offset:128""".split("\n")
    for x in interleave(mf[:24], dots) + interleave(mf[24:], red): k(x)
    stamp(k, st, 3)
    E = X
    p2 = lambda x: vr(x, 2)
    NEG = "neg_lo:[0,1] neg_hi:[0,1]"
    for mu in range(2):
        R, I = AC+8*mu, AC+8*mu+4
        T = AF+16*mu
        rr = f"v[{14+2*mu}:{15+2*mu}]"
        k(f"""
v_pk_mul_f32 {p2(T)}, {p2(TW)}, {p2(R)}
v_pk_mul_f32 {p2(T+2)}, {p2(TW+2)}, {p2(R+2)}
v_pk_mul_f32 {p2(T+4)}, {p2(TW)}, {p2(I)}
v_pk_mul_f32 {p2(T+6)}, {p2(TW+2)}, {p2(I+2)}
v_pk_fma_f32 {p2(T)}, {p2(TW+4)}, {p2(I)}, {p2(T)}
v_pk_fma_f32 {p2(T+2)}, {p2(TW+6)}, {p2(I+2)}, {p2(T+2)}
v_pk_fma_f32 {p2(T+4)}, {p2(TW+4)}, {p2(R)}, {p2(T+4)} neg_lo:[1,0,0] neg_hi:[1,0,0]
v_pk_fma_f32 {p2(T+6)}, {p2(TW+6)}, {p2(R+2)}, {p2(T+6)} neg_lo:[1,0,0] neg_hi:[1,0,0]
v_pk_add_f32 {p2(T+8)}, {p2(T)}, {p2(T+2)}
v_pk_add_f32 {p2(T+10)}, {p2(T+4)}, {p2(T+6)}
v_pk_add_f32 {p2(T+12)}, {p2(T)}, {p2(T+2)} {NEG}
v_pk_add_f32 {p2(T+14)}, {p2(T+4)}, {p2(T+6)} {NEG}""")
    k(f"""v_pk_add_f32 v[24:25], v[24:25], v[26:27]
v_pk_add_f32 v[132:133], v[132:133], v[134:135]
v_add_f32 v24, v24, v25
v_add_f32 v25, v132, v133
s_mov_b32 s4, {fl(1/576)}
s_mov_b32 s5, s4
v_pk_mul_f32 v[24:25], v[24:25], s[4:5]
v_pk_mul_f32 v[24:25], v[24:25], v[24:25]
v_pk_fma_f32 v[14:15], v[14:15], s[4:5], v[24:25] neg_lo:[0,0,1] neg_hi:[0,0,1]
v_max_f32 v14, 0, v14
v_max_f32 v15, 0, v15
v_add_f32 v14, {fl(1e-5)}, v14
v_add_f32 v15, {fl(1e-5)}, v15
v_rsq_f32 v16, v15
v_rsq_f32 v17, v15
v_rsq_f32 v15, v14
v_rsq_f32 v14, v14""")
    for mu in range(2):
        T = AF+16*mu
        rr = f"v[{14+2*mu}:{15+2*mu}]"
        k(f"""
v_pk_mul_f32 {p2(T+8)}, {p2(T+8)}, {rr}
v_pk_mul_f32 {p2(T+10)}, {p2(T+10)}, {rr}
v_pk_mul_f32 {p2(T+12)}, {p2(T+12)}, {rr}
v_pk_mul_f32 {p2(T+14)}, {p2(T+14)}, {rr}
v_add_f32 v{T}, v{T+8}, v{T+9}
v_add_f32 v{T+1}, v{T+10}, v{T+11}
v_add_f32 v{T+2}, v{T+12}, v{T+15}
v_sub_f32 v{T+3}, v{T+14}, v{T+13}
v_sub_f32 v{T+4}, v{T+8}, v{T+9}
v_sub_f32 v{T+5}, v{T+10}, v{T+11}
v_sub_f32 v{T+6}, v{T+12}, v{T+15}
v_add_f32 v{T+7}, v{T+14}, v{T+13}
""")
        for m in range(4): k(f"v_cvt_pk_bf16_f32 v{E+2*m+mu}, v{T+2*m}, v{T+2*m+1}")
    for m in range(4): k(f"ds_write_b64 v10, {vr(E+2*m, 2)} offset:{m*2048}")
    k.wait_lg(); k("s_barrier")
    stamp(k, st, 4)
    B = FR
    for m in range(4):
        for kk in range(2): k(f"ds_read_b128 {vr(B+8*m+4*kk, 4)}, v11 offset:{m*2048+kk*1024}")
    for kk in range(2):
        for m in range(4): k(f"{MF32} {vr(AC+4*m, 4)}, {vr(MA+4*kk, 4)}, {vr(B+8*m+4*kk, 4)}, {'0' if kk == 0 else vr(AC+4*m, 4)}")
    k(f"s_mov_b32 s3, {64*ROWB}")
    for a in range(2):
        for m in range(4): k(f"v_cvt_pk_bf16_f32 v{X+4*a+m}, v{AC+4*m+2*a}, v{AC+4*m+2*a+1}")
        if MERGE: k(f"v_and_b32 v{X+4*a}, -2, v{X+4*a}")
        k(f"buffer_store_dwordx4 {vr(X+4*a, 4)}, v12, s[12:15], {'s3' if a else '0'} offen sc1")
    stamp(k, st, 5)
    stamp_out(k, st, 1, f"s{sW}", 6)
    k(f"{END}\np1_side:")
    k(f"""
s_cmp_ge_u32 s2, 448
s_cbranch_scc1 p1_tab
s_sub_u32 s3, s2, 320
s_and_b32 s32, s3, 7
s_lshl_b32 s32, s32, 2
s_bfe_u32 s4, s3, 0x20003
s_add_u32 s32, s32, s4
s_lshr_b32 s31, s3, 5
s_lshl_b32 s3, s31, 9
s_add_u32 s33, s32, s3
s_and_b32 s3, s{sW}, 1
s_mul_i32 s4, s3, 138
s_cmp_eq_u32 s3, 0
s_cselect_b32 s34, 1, -1
v_lshrrev_b32 v4, 5, v0
v_lshl_add_u32 v6, v4, 5, s33
v_mul_lo_u32 v6, v6, s34
s_lshl_b32 s35, s34, 6
v_and_b32 v5, 1, v2
v_mul_u32_u24 v5, 288, v5
v_add_u32 v5, s4, v5
v_mov_b32 v12, {OOB}
v_lshlrev_b32 v7, 2, v2
v_and_b32 v7, 4, v7
v_sub_u32 v7, v3, v7
v_cmp_gt_u32 vcc, 11, v7
v_lshlrev_b32 v7, 4, v7
v_cndmask_b32 v12, v12, v7, vcc
s_movk_i32 s36, 578
s_mul_i32 s38, s{sW}, 8336
s_add_u32 s38, s38, {WL}
s_waitcnt lgkmcnt(0)
s_cmp_lt_u32 s{sW}, 2
s_cselect_b32 s8, s46, s48
s_cselect_b32 s9, s47, s49
s_mov_b32 s10, {N_WF}
s_mov_b32 s11, 0x20000
""")
    for i in range(8):
        k(f"""v_and_b32 v8, 2047, v6
v_mad_u32_u24 v8, v8, s36, v5
v_and_b32 v8, -16, v8
s_add_u32 m0, s38, {i*1040}
v_add_u32 v8, v8, v12
buffer_load_dwordx4 v8, s[8:11], 0 offen {FPOL} lds
v_add_u32 v6, s35, v6""", tag="W")
    nonce()
    stamp(k, st, 1)
    ws_srd(k, 16, O_WH, N_WH)
    k(f"""
v_lshrrev_b32 v4, 2, v3
s_lshl_b32 s3, s{sW}, 2
v_add_u32 v4, s3, v4
v_and_b32 v10, 3, v3
v_sub_u32 v13, 75, v4
v_cmp_gt_u32 vcc, 2, v10
v_cndmask_b32 v13, v13, v4, vcc
v_mov_b32 v14, 0xffffffe0
v_cndmask_b32 v14, v14, 32, vcc
v_bfrev_b32 v15, 1
v_cndmask_b32 v15, v15, 0, vcc
v_mov_b32 v16, 8336
v_cndmask_b32 v16, v16, 0, vcc
v_lshl_add_u32 v16, v13, 1, v16
v_mul_u32_u24 v17, 2080, v2
v_add_u32 v16, v16, v17
v_lshrrev_b32 v17, 1, v10
v_xor_b32 v17, v17, v10
v_and_b32 v17, 1, v17
v_mul_u32_u24 v17, 320, v17
v_add_u32 v16, v16, v17
v_sub_u32 v17, 5, s33
v_mov_b32 v18, s33
v_cndmask_b32 v17, v17, v18, vcc
v_lshlrev_b32 v17, 1, v17
v_and_b32 v17, 14, v17
v_add_u32 v84, v16, v17
v_add_u32 v84, {WL}, v84
v_or_b32 v11, v10, v4
v_cmp_eq_u32 s[40:41], 0, v11
s_mul_i32 s3, s32, 19
s_add_u32 s3, s3, s{sW}
s_lshl_b32 s3, s3, 12
s_lshl_b32 s4, s31, 10
s_add_u32 s37, s3, s4
v_lshlrev_b32 v93, 4, v0
""")
    k("s_barrier\ns_barrier")
    stamp(k, st, 2)
    k.wait_vm("W")
    stamp(k, st, 3)
    k("s_barrier")
    stamp(k, st, 4)
    for it in range(5):
        D0 = 20 + 12*it
        if it: k(f"v_add_u32 v84, v84, v14")
        for r in range(4): k(f"ds_read_u16 v{D0+r}, v84 offset:{(r >> 1)*1040 + (r & 1)*512}\nds_read_u16 v{D0+4+r}, v84 offset:{(r >> 1)*1040 + (r & 1)*512 + 16672}")
    k("v_cmp_lt_u32 vcc, 8, v4")
    for it in range(5):
        if it == 4: k(f"s_cmp_eq_u32 s{sW}, 3\ns_cbranch_scc1 p1_wend")
        D0 = 20 + 12*it
        for r in range(4): k(f"v_lshl_or_b32 v{D0+8+r}, v{D0+4+r}, 16, v{D0+r}\nv_xor_b32 v{D0+8+r}, v15, v{D0+8+r}")
        if it == 0:
            for r in range(4): k(f"v_cndmask_b32 v{D0+8+r}, v{D0+8+r}, 0, s[40:41]")
        if it == 4:
            for r in range(4): k(f"v_cndmask_b32 v{D0+8+r}, v{D0+8+r}, 0, vcc")
        k(f"buffer_store_dwordx4 {vr(D0+8, 4)}, v93, s[16:19], s37 offen sc1\ns_add_u32 s37, s37, 16384")
    k("p1_wend:")
    stamp(k, st, 5)
    stamp_out(k, st, 1, f"s{sW}", 6)
    k(f"{END}\np1_tab:")
    sc = 1.0/(S*D)
    k(f"""
s_cmp_ge_u32 s2, 464
s_cbranch_scc1 p1_pf
s_sub_u32 s3, s2, 448
s_lshl_b32 s3, s3, 2
s_add_u32 s31, s3, s{sW}
s_cmp_ge_u32 s31, 61
s_cbranch_scc1 {'p1_bar3' if mono else 'p1_end'}
s_lshr_b32 s32, s31, 2
s_and_b32 s33, s31, 3
s_mov_b32 s34, {fl(1/64)}
s_cmp_lt_u32 s31, 16
s_cbranch_scc1 p1_tabA
s_sub_u32 s3, s31, 16
s_mul_i32 s32, s3, 52
s_lshr_b32 s32, s32, 8
s_mul_i32 s4, s32, 5
s_sub_u32 s33, s3, s4
s_mov_b32 s34, {fl(1/144)}
p1_tabA:
s_lshl_b32 s32, s32, 4
s_lshl_b32 s33, s33, 4
v_add_u32 v4, s32, v3
v_lshl_add_u32 v5, v2, 2, s33
s_waitcnt lgkmcnt(0)
""")
    ws_srd(k, 8, O_TAB, N_TAB)
    for r in range(4):
        k(f"""
v_add_u32 v6, {r}, v5
v_mul_u32_u24 v7, v6, v4
v_cvt_f32_u32 v7, v7
v_mul_f32 v7, s34, v7
v_fract_f32 v7, v7
v_cos_f32 v8, v7
v_sin_f32 v9, v7
s_cmp_lt_u32 s31, 16
s_cbranch_scc1 p1_tabB{r}
v_mov_b32 v10, {fl(2*sc)}
v_mov_b32 v11, {fl(sc)}
v_cmp_eq_u32 vcc, 0, v6
v_cndmask_b32 v10, v10, v11, vcc
v_cmp_eq_u32 vcc, 72, v6
v_cndmask_b32 v10, v10, v11, vcc
v_cmp_gt_u32 vcc, 73, v6
v_cndmask_b32 v10, 0, v10, vcc
v_mul_f32 v8, v8, v10
v_mul_f32 v9, -v9, v10
p1_tabB{r}:
v_cvt_pk_bf16_f32 v{12+r}, v8, v9
""")
    k(f"v_lshlrev_b32 v4, 4, v0\ns_lshl_b32 s3, s31, 10\nbuffer_store_dwordx4 v[12:15], v4, s[8:11], s3 offen sc1\n{END3}\np1_pf:")
    k(f"""
s_cmp_ge_u32 s2, 480
s_cbranch_scc1 {'p1_wpf' if NST else 'p1_bar3' if mono else 'p1_end'}
s_getpc_b64 s[4:5]
p1_pc:
s_add_u32 s4, s4, {NEXT}-p1_pc
s_addc_u32 s5, s5, 0
s_lshl_b32 s3, s{sW}, 6
v_add_u32 v4, s3, v0
s_sub_u32 s3, s2, 464
s_lshr_b32 s3, s3, 3
s_lshl_b32 s3, s3, 15
v_lshl_add_u32 v5, v4, 7, s3
v_min_u32 v5, pf_code_end-{NEXT}-4, v5
global_load_dword v6, v5, s[4:5]
s_waitcnt lgkmcnt(0)
""")
    if TLB:
        k(f"""s_load_dwordx4 s[36:39], s[0:1], 32
s_load_dwordx4 s[40:43], s[0:1], 48
v_lshlrev_b32 v12, {TLB}, v4
s_waitcnt lgkmcnt(0)""")
        ws_srd(k, 8, 0, O_P + N_P)
        for i in range((O_P + N_P + (256 << TLB) - 1)//(256 << TLB)):
            k(f"s_mov_b32 s3, {i*(256 << TLB)}\nbuffer_load_dword v13, v12, s[8:11], s3 offen", tag="touch")
        for b, n in ((36, N_W), (38, N_W), (40, N_W), (42, N_H)):
            srd(k, 8, b, n)
            k("buffer_load_dword v13, v12, s[8:11], 0 offen", tag="touch")
    if mono:
        k("p1_bar3:\ns_waitcnt lgkmcnt(0)")
        nonce()
        k("s_barrier\ns_barrier\ns_barrier")
        return k
    ws_srd(k, 8, O_FLG, N_ZERO)
    k(f"""
s_and_b32 s3, s2, 15
s_mul_i32 s3, s3, {NZ*4096}
v_lshlrev_b32 v4, 4, v4
v_mov_b32 v8, 0
v_mov_b32 v9, 0
v_mov_b32 v10, 0
v_mov_b32 v11, 0
""")
    for i in range(NZ): k(f"buffer_store_dwordx4 v[8:11], v4, s[8:11], s3 offen sc1\ns_add_u32 s3, s3, 4096")
    if NST:
        per = 36*NST; n = (per + 63)//64; ln = per//n
        assert ln*n == per
        k(f"""s_endpgm
p1_wpf:
s_load_dwordx4 s[36:39], s[0:1], 32
s_sub_u32 s3, s2, 480
s_lshr_b32 s4, s3, 3
s_and_b32 s5, s4, 1
s_lshl_b32 s5, s5, 2
s_add_u32 s5, s5, s{sW}
s_mul_i32 s5, s5, {per}
v_add_u32 v4, s5, v0
s_and_b32 s3, s3, 7
s_mul_i32 s33, s3, 1152
v_mov_b32 v7, {OOB}
v_cmp_gt_u32 vcc, {ln}, v0
s_waitcnt lgkmcnt(0)
s_cmp_lt_u32 s4, 2
s_cselect_b32 s8, s36, s38
s_cselect_b32 s9, s37, s39
s_mov_b32 s10, {N_W}
s_mov_b32 s11, 0x20000
s_barrier
s_barrier
s_barrier""")
        for i in range(n):
            k(f"""v_mul_u32_u24 v5, 7282, v4
v_lshrrev_b32 v5, 16, v5
v_mul_u32_u24 v6, 9, v5
v_sub_u32 v6, v4, v6
v_mul_u32_u24 v5, 9216, v5
v_lshl_add_u32 v5, v6, 7, v5
v_cndmask_b32 v5, v7, v5, vcc""")
            k(f"buffer_load_dword v8, v5, s[8:11], s33 offen {NPOL}", tag="touch")
            k(f"v_add_u32 v4, {ln}, v4")
    k(f"""p1_end:""")
    return k

def build_p2(st=False):
    k = K("p2", 608, 64, vgpr=160)
    stamp(k, st, 0)
    k(f"""
s_load_dwordx2 s[6:7], s[0:1], 72
s_cmp_ge_u32 s2, 608
s_cbranch_scc1 p2_end
s_lshr_b32 s3, s2, 3
s_mul_i32 s4, s3, 27
s_lshr_b32 s4, s4, 9
s_mul_i32 s5, s4, 19
s_sub_u32 s31, s3, s5
s_and_b32 s3, s2, 7
s_lshl_b32 s3, s3, 2
s_add_u32 s32, s3, s4
v_lshrrev_b32 v2, 4, v0
v_and_b32 v3, 15, v0
v_mul_u32_u24 v4, {4*ROWB}, v2
v_lshl_add_u32 v4, v3, 2, v4
v_lshlrev_b32 v5, 4, v0
s_mul_i32 s33, s32, {64*ROWB}
s_lshl_b32 s3, s31, 6
s_add_u32 s33, s33, s3
s_waitcnt lgkmcnt(0)
""")
    ws_srd(k, 8, O_U, N_U)
    B, B2, A, WH, XR, XI = 8, 24, 40, 104, 120, 136
    for T in range(4):
        if T: k(f"s_add_u32 s33, s33, {16*ROWB}")
        for r in range(4): k(f"buffer_load_dword v{B+4*T+r}, v4, s[8:11], s33 offen offset:{r*ROWB}")
    ws_srd(k, 12, O_TAB, N_TAB)
    for f in range(16):
        if f % 4 == 0: k(f"s_movk_i32 s3, {f*1024}")
        k(f"buffer_load_dwordx4 {vr(A+4*f, 4)}, v5, s[12:15], s3 offen offset:{(f % 4)*1024}")
    ws_srd(k, 16, O_WH, N_WH)
    k("s_mul_i32 s34, s32, 19\ns_add_u32 s34, s34, s31\ns_lshl_b32 s34, s34, 12")
    for T in range(4): k(f"buffer_load_dwordx4 {vr(WH+4*T, 4)}, v5, s[16:19], s34 offen offset:{T*1024}")
    k(f"""
v_mul_u32_u24 v6, {ROWB}, v3
v_lshl_add_u32 v6, v2, 4, v6
s_mul_i32 s35, s32, {64*ROWB}
s_lshl_b32 s3, s31, 6
s_add_u32 s35, s35, s3
s_brev_b32 s36, 1
s_mov_b32 s37, 0xffff0000
""")
    stamp(k, st, 1)
    for i in range(16): k(f"v_alignbit_b32 v{B2+i}, v{B+i}, v{B+i}, 16\nv_xor_b32 v{B2+i}, s36, v{B2+i}")
    stamp(k, st, 2)
    def fwd(Tp): return [f"{MF32} {vr(o+4*Tp, 4)}, {vr(A+16*Tp+4*T, 4)}, {vr(b+4*T, 4)}, {'0' if T == 0 else vr(o+4*Tp, 4)}" for T in range(4) for o, b in ((XR, B), (XI, B2))]
    D1, D2 = 152, B
    def filt(T):
        out = []
        for r in (0, 2):
            w = WH+4*T+r; xr, xi = XR+4*T+r, XI+4*T+r
            out += [f"v_lshlrev_b32 v152, 16, v{w}", f"v_lshlrev_b32 v153, 16, v{w+1}", f"v_and_b32 v154, s37, v{w}", f"v_and_b32 v155, s37, v{w+1}",
                    f"v_pk_mul_f32 v[156:157], {vr(xr, 2)}, v[152:153]", f"v_pk_mul_f32 v[158:159], {vr(xr, 2)}, v[154:155]",
                    f"v_pk_fma_f32 v[156:157], {vr(xi, 2)}, v[154:155], v[156:157] neg_lo:[1,0,0] neg_hi:[1,0,0]", f"v_pk_fma_f32 v[158:159], {vr(xi, 2)}, v[152:153], v[158:159]",
                    f"v_cvt_pk_bf16_f32 v{w}, v156, -v158", f"v_cvt_pk_bf16_f32 v{w+1}, v157, -v159", f"v_cvt_pk_bf16_f32 v{xr}, v158, v156", f"v_cvt_pk_bf16_f32 v{xr+1}, v159, v157"]
        return out
    for x in fwd(0): k(x)
    for Tp in range(1, 4):
        for x in interleave(fwd(Tp), filt(Tp-1)): k(x)
    for x in filt(3): k(x)
    stamp(k, st, 3)
    VR, VI = B, B2
    def inv(Tp): return [f"{MF32} {vr(o+4*Tp, 4)}, {vr(d+4*T, 4)}, {vr(A+16*Tp+4*T, 4)}, {'0' if T == 0 else vr(o+4*Tp, 4)}" for T in range(4) for o, d in ((VR, WH), (VI, XR))]
    def outp(Tp):
        return [f"v_cvt_pk_bf16_f32 v{XI+4*Tp+r}, v{VR+4*Tp+r}, v{VI+4*Tp+r}" for r in range(4)] + \
               [f"buffer_store_dwordx4 {vr(XI+4*Tp, 4)}, v6, s[8:11], s35 offen sc1\ns_add_u32 s35, s35, {16*ROWB}"]
    for x in inv(0): k(x)
    for Tp in range(1, 4):
        m = inv(Tp)
        for x in m[:3] + interleave(m[3:], outp(Tp-1)): k(x)
    for x in outp(3): k(x)
    stamp(k, st, 4)
    stamp_out(k, st, 2, "0", 5)
    k("p2_end:")
    return k


def column_task(k, o, sTile, sK1, sB, srd, vlane16, vL, shadow, between):
    D = f"s[{srd}:{srd+3}]"
    B, B2, A, WH, XR, XI, TP = (x+o for x in (8, 24, 40, 104, 120, 136, 152))
    k(f"""
v_lshrrev_b32 v2, 4, v{vL}
v_and_b32 v3, 15, v{vL}
v_mul_u32_u24 v4, {4*ROWB}, v2
v_lshl_add_u32 v4, v3, 2, v4
s_mul_i32 s{sB}, s{sK1}, {64*ROWB}
s_lshl_b32 s3, s{sTile}, 6
s_add_u32 s{sB}, s{sB}, s3
s_mov_b32 s{sB+1}, s{sB}
""")
    for T in range(4):
        if T: k(f"s_add_u32 s{sB}, s{sB}, {16*ROWB}")
        for r in range(4): k(f"buffer_load_dword v{B+4*T+r}, v4, {D}, s{sB} offen offset:{r*ROWB}")
    for f in range(16):
        if f % 4 == 0: k(f"s_mov_b32 s3, {O_TAB - O_U + f*1024}")
        k(f"buffer_load_dwordx4 {vr(A+4*f, 4)}, v{vlane16}, {D}, s3 offen offset:{(f % 4)*1024}")
    k(f"s_mul_i32 s3, s{sK1}, 19\ns_add_u32 s3, s3, s{sTile}\ns_lshl_b32 s3, s3, 12\ns_add_u32 s3, s3, {O_WH - O_U}")
    for T in range(4): k(f"buffer_load_dwordx4 {vr(WH+4*T, 4)}, v{vlane16}, {D}, s3 offen offset:{T*1024}")
    k(f"""
v_mul_u32_u24 v6, {ROWB}, v3
v_lshl_add_u32 v6, v2, 4, v6
s_brev_b32 s{sB+2}, 1
s_mov_b32 s{sB+3}, 0xffff0000
""")
    shadow()
    for i in range(16): k(f"v_alignbit_b32 v{B2+i}, v{B+i}, v{B+i}, 16\nv_xor_b32 v{B2+i}, s{sB+2}, v{B2+i}")
    between()
    def fwd(Tp): return [f"{MF32} {vr(q+4*Tp, 4)}, {vr(A+16*Tp+4*T, 4)}, {vr(b+4*T, 4)}, {'0' if T == 0 else vr(q+4*Tp, 4)}" for T in range(4) for q, b in ((XR, B), (XI, B2))]
    def filt(T):
        out = []; t = TP
        for r in (0, 2):
            w = WH+4*T+r; xr, xi = XR+4*T+r, XI+4*T+r
            out += [f"v_lshlrev_b32 v{t}, 16, v{w}", f"v_lshlrev_b32 v{t+1}, 16, v{w+1}", f"v_and_b32 v{t+2}, s{sB+3}, v{w}", f"v_and_b32 v{t+3}, s{sB+3}, v{w+1}",
                    f"v_pk_mul_f32 {vr(t+4, 2)}, {vr(xr, 2)}, {vr(t, 2)}", f"v_pk_mul_f32 {vr(t+6, 2)}, {vr(xr, 2)}, {vr(t+2, 2)}",
                    f"v_pk_fma_f32 {vr(t+4, 2)}, {vr(xi, 2)}, {vr(t+2, 2)}, {vr(t+4, 2)} neg_lo:[1,0,0] neg_hi:[1,0,0]", f"v_pk_fma_f32 {vr(t+6, 2)}, {vr(xi, 2)}, {vr(t, 2)}, {vr(t+6, 2)}",
                    f"v_cvt_pk_bf16_f32 v{w}, v{t+4}, -v{t+6}", f"v_cvt_pk_bf16_f32 v{w+1}, v{t+5}, -v{t+7}", f"v_cvt_pk_bf16_f32 v{xr}, v{t+6}, v{t+4}", f"v_cvt_pk_bf16_f32 v{xr+1}, v{t+7}, v{t+5}"]
        return out
    for x in fwd(0): k(x)
    for Tp in range(1, 4):
        for x in interleave(fwd(Tp), filt(Tp-1)): k(x)
    for x in filt(3): k(x)
    def inv(Tp): return [f"{MF32} {vr(q+4*Tp, 4)}, {vr(d+4*T, 4)}, {vr(A+16*Tp+4*T, 4)}, {'0' if T == 0 else vr(q+4*Tp, 4)}" for T in range(4) for q, d in ((B, WH), (B2, XR))]
    def outp(Tp):
        return [f"v_cvt_pk_bf16_f32 v{XI+4*Tp+r}, v{B+4*Tp+r}, v{B2+4*Tp+r}" for r in range(4)] + [f"v_or_b32 v{XI+4*Tp}, 1, v{XI+4*Tp}"] + \
               [f"buffer_store_dwordx4 {vr(XI+4*Tp, 4)}, v6, {D}, s{sB+1} offen sc1\ns_add_u32 s{sB+1}, s{sB+1}, {16*ROWB}"]
    for x in inv(0): k(x)
    for Tp in range(1, 4):
        m = inv(Tp)
        for x in m[:3] + interleave(m[3:], outp(Tp-1)): k(x)
    for x in outp(3): k(x)
```

```python
from asmlib import *
from layout import *
import struct
def fl(x): return "0x%08x" % struct.unpack("<I", struct.pack("<f", x))[0]
MF = "v_mfma_f32_16x16x32_bf16"
def ws_srd(k, d, off, nbytes, ws=6):
    k(f"s_add_u32 s{d}, s{ws}, {off}\ns_addc_u32 s{d+1}, s{ws+1}, 0\ns_mov_b32 s{d+2}, {nbytes}\ns_mov_b32 s{d+3}, 0x20000")
def srd_tail(k, d, nbytes): k(f"s_mov_b32 s{d+2}, {nbytes}\ns_mov_b32 s{d+3}, 0x20000")
S4 = lambda d: f"s[{d}:{d+3}]"

SLOT_A = [0, 45056, 90112]
RING_B = [0, 36864, 90112, 126976]
HH = 90112

def build_pf(look=3, nd=2, spread=3, stamp=False, abl="", name="pf", OUTPOL="", WPOL="", DPOL="", TPOL="", dstage=11, safe=0, XPOL="sc1", TPOLD="", ahead=4,
             phases="478", lag=2, ntouch=0, prio="", fuse=0, pk=1, W2=1, mode="S", merge=1, mono=0, gnap=0, p1o={}, NREPL=16, depi=17, droll=0, nl=0, wlate=1, sigfirst=1, order=0, ptouch=0, otouch=0, bulk=0, vprio=1, cprio=0, drain=1, ib2=1, nap=0, early=0, su3=0, w4p=0, late1=0, idlepf=1, inl=0, skip=1, lph="1358", istage=1, tstage=7):
    LP = mode == "L"
    PH = [int(c) for c in str(lph if LP else phases)]
    k = K(name, 256, 512, lds=163840, vgpr=256, sgpr=102)
    sG, sU, sD, sX, sP, sF, sS, sH, sO, sV, sI, sT = 8, 12, 16, 20, 24, 28, 32, 36, 40, 44, 48, 52
    sW, sMT, sSL, sRG = 56, 57, 58, 59
    sA, sKW, sKX, sM0a, sM0x, sM0s, sKD, sM0d, sPO, sCG, sRD, sLN, sLoc, sS1 = range(80, 94)
    sF1 = 96; sB = 97; sXC = 98
    vL, vDX, vD0, vD1, vD2, vT0, vT1, vT2 = range(8)
    vXr = [8, 9, 10]; vWA = [11, 12, 13]; vWB = [14, 15, 16]
    vDD, vPO, vHW = 17, 18, 19
    vWD = [20, 21, 22, 23]
    vHR, vHW2, vZ, vQ = 24, 25, 26, 27
    def stb(i):
        if stamp and "bst" in abl: k(f"s_memrealtime s[{60+2*i}:{61+2*i}]")
    def st(i):
        if stamp and "bst" not in abl: k(f"s_memrealtime s[{60+2*i}:{61+2*i}]")
    def put(items):
        for x in items:
            t = x[0] if isinstance(x, tuple) else x
            if "nodma" in abl and " lds" in t and x[1] not in ("A0", "A1"): continue
            if "nop2" in abl and "buffer_store" in t and isinstance(x, tuple) and x[1].startswith("P"): continue
            if "nomfma" in abl and "v_mfma" in t: continue
            if isinstance(x, tuple): k(x[0], tag=x[1])
            else: k(x)
    def spin(lab, load, cond, nap=0):
        bound = f"s_sub_u32 s5, s5, 1\ns_cbranch_scc1 {lab}_ok\n" if safe else ""
        k(f"{cond}\ns_cbranch_vccz {lab}_ok\n{f's_mov_b32 s5, {20000 if safe == 1 else 4000000}' if safe else ''}\n{lab}_spin:\n{'s_add_u32 s99, s99, 1' if 'cnt' in abl else ''}\n{bound}{f's_sleep {nap}' if nap else ''}\n{load}\ns_waitcnt vmcnt(0)\n{cond}\ns_cbranch_vccnz {lab}_spin\n{lab}_ok:")
        k.saved.pop(lab + "_spin", None)
    st(0)
    sNC = 0 if mono else None
    FV = f"s{sNC}" if mono else "1"
    notyet = lambda v: f"v_cmp_ne_u32 vcc, s{sNC}, v{v}" if mono else f"v_cmp_eq_u32 vcc, 0, v{v}"
    if mono:
        assert not (early or nl or droll or LP)
        from fft import build_p1
        build_p1(MERGE=1, mono=k, **p1o)
        k(f"""{name}_join:
s_setprio 0
s_mov_b32 s2, s101
s_mov_b32 s{sW}, s100""")
    k(f"""
{'' if mono else 's_load_dwordx2 s[6:7], s[0:1], 72'}
s_load_dwordx2 s[{sG}:{sG+1}], s[0:1], 32
s_load_dwordx2 s[{sU}:{sU+1}], s[0:1], 40
s_load_dwordx2 s[{sI}:{sI+1}], s[0:1], 0
s_load_dwordx2 s[{sD}:{sD+1}], s[0:1], 48
s_load_dwordx2 s[{sO}:{sO+1}], s[0:1], 56""")
    if not mono: k(f"""s_cmp_ge_u32 s2, 256
s_cbranch_scc1 {name}_end
v_lshrrev_b32 v{vT0}, 6, v0
v_and_b32 v{vL}, 63, v0
v_readfirstlane_b32 s{sW}, v{vT0}""")
    k(f"""
s_lshr_b32 s3, s2, 3
s_and_b32 s{sMT}, s3, 15
s_lshr_b32 s{sB}, s3, 4
s_and_b32 s{sXC}, s2, 7
s_lshl_b32 s4, s{sXC}, 1
s_add_u32 s{sSL}, s4, s{sB}
v_lshlrev_b32 v{vDX}, 4, v{vL}
v_mov_b32 v{vZ}, 0
v_mov_b32 v37, 0
v_mov_b32 v2, 0
v_mov_b32 v3, 0
v_mov_b32 v4, 0
v_mov_b32 v47, 0
v_mov_b32 v30, 0
""")
    o = 32
    R = lambda n: n + o
    sS2, sNT, sVB, sXO, sSO = 99, sB, 100, 101, (96 if early else sRD)
    assert not (early and LP)
    sAct = 92
    L, MB_, AC, TW, G, XX = R(16), R(48), R(64), R(96), R(120), R(160)
    EZ = 90112; ES = EZ + 20480
    g_, n_, vVA, vHS, vRow, vXo, vEW, vSW, vSR = R(2), R(3), R(4), R(5), R(6), R(7), R(9), R(14), R(15)
    t0, t1, t2, t3 = R(10), R(11), R(12), R(13)
    assert merge
    NV = O_TAB - O_U + N_TAB
    vloads = "\n".join(f"s_add_u32 s3, s{sVB}, {(16*kk+t)*64*ROWB}\nbuffer_load_dwordx4 {vr(L+16*kk+4*t, 4)}, v{vVA}, {S4(sV)}, s3 offen sc1" for kk in range(2) for t in range(4))
    k(f"""
s_and_b32 s3, s{sXC}, 3
s_lshl_b32 s{sS2}, s{sMT}, 2
s_add_u32 s{sS2}, s{sS2}, s3
s_lshr_b32 s3, s{sXC}, 2
s_and_b32 s4, s{sMT}, 1
s_cmp_eq_u32 s3, s4
s_cselect_b32 s{sAct}, 1, 0
s_lshl_b32 s3, s{sB}, 3
s_lshr_b32 s4, s{sMT}, 1
s_add_u32 s81, s3, s4
s_waitcnt lgkmcnt(0)
""")
    ws_srd(k, sV, O_V, NV)
    if mono:
        ws_srd(k, sF, O_FLG, N_FLG)
        gl = f"buffer_load_dwordx4 v[8:11], v{vDX}, {S4(sF)}, s94 offen sc1"
        k(f"""v_readfirstlane_b32 s{sNC}, v200
s_add_u32 s{sNC}, s{sNC}, 1
s_lshl_b32 s3, s2, 2
v_lshl_add_u32 v{vT0}, v{vL}, 10, s3
v_mov_b32 v{vT1}, {OOB}
v_cmp_gt_u32 vcc, {NREPL}, v{vL}
v_cndmask_b32 v{vT0}, v{vT1}, v{vT0}, vcc
v_mov_b32 v{vT1}, s{sNC}
s_lshr_b32 s3, s2, 3
s_and_b32 s3, s3, {NREPL-1}
s_lshl_b32 s3, s3, 10
s_add_u32 s94, s3, {F_G}
s_mov_b32 s3, {F_G}
s_waitcnt vmcnt(0)
s_barrier""")
        st(1)
        k(f"""s_cmp_lg_u32 s{sW}, 7
s_cbranch_scc1 {name}_j2
buffer_store_dword v{vT1}, v{vT0}, {S4(sF)}, s3 offen sc1
{gl}""")
        spin(f"{name}_g", gl, f"v_xor_b32 v8, s{sNC}, v8\nv_xor_b32 v9, s{sNC}, v9\nv_xor_b32 v10, s{sNC}, v10\nv_xor_b32 v11, s{sNC}, v11\nv_or3_b32 v8, v8, v9, v10\nv_or_b32 v8, v8, v11\nv_cmp_ne_u32 vcc, 0, v8", gnap)
        k(f"""s_cmp_lg_u32 s2, 0
s_cbranch_scc1 {name}_j2
s_mov_b32 s3, {F_N}
buffer_store_dword v{vT1}, v{vZ}, {S4(sF)}, s3 offen sc1
{name}_j2:
s_barrier""")
    def common_setup():
        k(f"""
v_lshrrev_b32 v{g_}, 4, v{vL}
v_and_b32 v{n_}, 15, v{vL}
s_lshl_b32 s3, s{sW}, 4
v_add_u32 v{vVA}, s3, v{n_}
v_lshlrev_b32 v{vVA}, 4, v{vVA}
v_mul_u32_u24 v{t0}, {4*64*ROWB}, v{g_}
v_add_u32 v{vVA}, v{vVA}, v{t0}
s_mul_i32 s{sVB}, s{sS2}, {ROWB}
s_lshl_b32 s3, s{sNT}, 4
v_add_u32 v{vRow}, s3, v{n_}
v_lshl_add_u32 v{vRow}, v{vRow}, 6, s{sS2}
v_mul_u32_u24 v{vXo}, 1152, v{vRow}
v_lshl_add_u32 v{vXo}, v{g_}, 5, v{vXo}
s_lshl_b32 s{sXO}, s{sW}, 7
""")
        srd_tail(k, sI, N_H); ws_srd(k, sT, O_TAB, N_TAB)
        ws_srd(k, sX, O_XF, N_XF); ws_srd(k, sH, O_H, N_H); ws_srd(k, sF, O_FLG, N_FLG)
        for d in (sG, sU, sD): srd_tail(k, d, N_W)
        srd_tail(k, sO, N_H)
        ws_srd(k, sP, O_P, N_P)
        k(f"s_bitcmp0_b32 s{sW}, 1\ns_cselect_b32 s{sS}, s{sG}, s{sU}\ns_cselect_b32 s{sS+1}, s{sG+1}, s{sU+1}")
        srd_tail(k, sS, N_W)
    def pattern(vd):
        k(f"""
s_lshl_b32 s4, s3, 6
v_add_u32 v{vT0}, s4, v{vL}
v_mul_u32_u24 v{vT1}, 1821, v{vT0}
v_lshrrev_b32 v{vT1}, 16, v{vT1}
v_mul_u32_u24 v{vT2}, 36, v{vT1}
v_sub_u32 v{vT0}, v{vT0}, v{vT2}
v_lshrrev_b32 v{vT2}, 2, v{vT1}
v_and_b32 v{vT2}, 2, v{vT2}
v_xor_b32 v{vT0}, v{vT0}, v{vT2}
v_lshlrev_b32 v{vT0}, 4, v{vT0}
v_and_b32 v{vT2}, 24, v{vT1}
v_add_u32 v{vT1}, v{vT1}, v{vT2}
v_mul_u32_u24 v{vT1}, 9216, v{vT1}
v_add_u32 v{vd}, v{vT0}, v{vT1}
""")
    def mlp_setup():
        k(f"s_and_b32 s{sRG}, s{sW}, 1\ns_bfe_u32 s{sA}, s{sW}, 0x10001\n{'s_and_b32' if LP else 's_lshr_b32'} s{sCG}, s{sW}, {3 if LP else 1}")
        k(f"s_lshl_b32 s3, s{sW}, 1"); pattern(vD0)
        k(f"s_add_u32 s3, s3, 1"); pattern(vD1)
        k(f"s_add_u32 s3, s{sRG}, 16"); pattern(vD2)
        k(f"""
s_mul_i32 s{sKW}, s{sSL}, 576
s_lshl_b32 s3, s{sMT}, 3
s_add_u32 s3, s3, s{sW}
s_mul_i32 s{sKX}, s3, 18432
s_lshl_b32 s{sM0x}, s{sW}, 10
s_lshl_b32 s{sM0a}, s{sW}, 11
s_add_u32 s{sM0a}, s{sM0a}, 8192
s_mul_i32 s3, s{sA}, 18432
s_lshl_b32 s4, s{sRG}, 10
s_add_u32 s3, s3, s4
s_add_u32 s{sM0s}, s3, {8192+16*1024}
""")
    def dmaX(s):
        return [(f"s_add_u32 m0, s{sM0x}, {SLOT_A[s % 3]}\ns_add_u32 s94, s{sKX}, {s*1024}\nbuffer_load_dwordx4 v{vDX}, {S4(sX)}, s94 offen {XPOL} lds", f"A{s}")]
    def dmaW(s, six):
        o = SLOT_A[s % 3]
        g = [f"s_add_u32 m0, s{sM0a}, {o}\ns_add_u32 s95, s{sKW}, {((s >> 1)*64 + (s & 1)*8)*9216}\nbuffer_load_dwordx4 v{vD0}, {S4(sG)}, s95 offen {WPOL} lds",
             f"s_add_u32 m0, s{sM0a}, {o+1024}\nbuffer_load_dwordx4 v{vD1}, {S4(sG)}, s95 offen {WPOL} lds",
             f"s_add_u32 m0, s{sM0a}, {o+18432}\nbuffer_load_dwordx4 v{vD0}, {S4(sU)}, s95 offen {WPOL} lds",
             f"s_add_u32 m0, s{sM0a}, {o+18432+1024}\nbuffer_load_dwordx4 v{vD1}, {S4(sU)}, s95 offen {WPOL} lds"]
        if six: g.append(f"s_add_u32 m0, s{sM0s}, {o}\nbuffer_load_dwordx4 v{vD2}, {S4(sS)}, s95 offen {WPOL} lds")
        return [(x, f"A{s}") for x in g]
    def dmaB(u, five):
        o = RING_B[u % 4]
        if LP and five: return []
        if "dbl" in abl:
            return [(f"s_add_u32 m0, s{sM0d}, {o+i*1024}\ns_add_u32 s94, s{sKD}, {i*8*1152+u*128}\n{'s_xor_b32 s94, s94, 0' if q == 0 else 's_add_u32 s94, s94, s101'}\nbuffer_load_dwordx4 v{vDD}, {S4(sD)}, s94 offen {DPOL} lds", f"B{u}") for q in range(2) for i in range(4 if five else 5)]
        return [(f"s_add_u32 m0, s{sM0d}, {o+i*1024}\ns_add_u32 s94, s{sKD}, {i*8*1152+u*128}\nbuffer_load_dwordx4 v{vDD}, {S4(sD)}, s94 offen {DPOL} lds", f"B{u}") for i in range(9 if LP else 4 if five else 5)]
    def first_w(lab, only=None):
        for s in (only or ((0,) if late1 else (0, 1))):
            put(dmaW(s, False))
            k(f"s_cmp_lt_u32 s{sW}, 4\ns_cbranch_scc1 {lab}{s}")
            put(dmaW(s, True)[4:])
            k(f"{lab}{s}:")
    def bulk_w():
        k(f"s_sub_u32 s3, s{sW}, 5\ns_mul_i32 s3, s3, 6\ns_lshl_b32 s5, s3, 10\ns_add_u32 s5, s5, 8192\ns_add_u32 s95, s{sKW}, {8*9216}")
        for i in range(6):
            pattern(t0)
            for s_, so in ((0, sKW), (1, 95))[:1 if bulk == 2 else 2]:
                for m, d in enumerate((sG, sU)):
                    k(f"s_add_u32 m0, s5, {SLOT_A[s_] + m*18432 + i*1024}\nbuffer_load_dwordx4 v{t0}, {S4(d)}, s{so} offen {WPOL} lds", tag="A0")
            k("s_add_u32 s3, s3, 1")
    def rest_loads(lab):
        k(f"buffer_load_dwordx4 {vr(XX, 4)}, v{vXo}, {S4(sI)}, s{sXO} offen\nbuffer_load_dwordx4 {vr(XX+4, 4)}, v{vXo}, {S4(sI)}, s{sXO} offen offset:16")
        k(f"s_mul_i32 s3, s{sW}, 5120\ns_add_u32 s3, s3, 16384\ns_add_u32 s4, s3, 4096")
        for f in range(5): k(f"buffer_load_dwordx4 {vr(G+4*f, 4)}, v{vDX}, {S4(sT)}, s{3+f//4} offen offset:{(f % 4)*1024}")
        k(f"s_cmp_lg_u32 s{sW}, {W2}\ns_cbranch_scc1 {lab}")
        k(f"buffer_load_dwordx4 {vr(XX+8, 4)}, v{vXo}, {S4(sI)}, 0 offen offset:1024\nbuffer_load_dwordx4 {vr(XX+12, 4)}, v{vXo}, {S4(sI)}, 0 offen offset:1040")
        k(f"s_mov_b32 s3, {(16+40)*1024}\ns_mov_b32 s4, {(16+44)*1024}")
        for f in range(5): k(f"buffer_load_dwordx4 {vr(G+20+4*f, 4)}, v{vDX}, {S4(sT)}, s{3+f//4} offen offset:{(f % 4)*1024}")
        k(f"{lab}:")
    def matrices():
        k(f"""
v_cvt_f32_u32 v{t0}, v{vRow}
v_mul_f32 v{t0}, {fl(1/2048)}, v{t0}
v_cvt_f32_u32 v{t1}, v{g_}
v_mul_f32 v{t1}, 4.0, v{t1}
v_mul_f32 v{vEW}, v{t0}, v{t1}
""")
        for kk in range(2):
            for t in range(4):
                k(f"""v_fmamk_f32 v{t2}, v{t0}, {fl(float(16*kk+t))}, v{vEW}
v_cos_f32 v{t3}, v{t2}
v_sin_f32 v{t2}, v{t2}
v_cvt_pk_bf16_f32 v{MB_+4*kk+t}, v{t3}, -v{t2}
v_cvt_pk_bf16_f32 v{MB_+8+4*kk+t}, v{t2}, v{t3}""")
        tw = [f"s_lshl_b32 s3, s{sW}, 4", f"v_cvt_f32_u32 v{t0}, s3", f"v_add_f32 v{t1}, v{t1}, v{t0}"]
        for r in range(4):
            if r: tw.append(f"v_add_f32 v{t1}, 1.0, v{t1}")
            for q in range(1, 4):
                tw += [f"v_mul_f32 v{t2}, {fl(q/576)}, v{t1}", f"v_cos_f32 v{TW+8*(q-1)+r}, v{t2}", f"v_sin_f32 v{TW+8*(q-1)+4+r}, v{t2}"]
        return tw
    sSU = 96
    if merge:
        from fft import column_task
        k(f"""s_mov_b32 s{sSU}, 0
s_cmp_eq_u32 s{sAct}, 0
s_cbranch_scc1 {name}_qi
s_lshl_b32 s3, s81, 1
s_sub_u32 s4, s{sW}, 5
s_add_u32 s3, s3, s4
s_cmp_lt_u32 s4, 2
s_cbranch_scc1 {name}_col
s_cmp_lt_u32 s{sW}, 5
s_cbranch_scc0 {name}_nocol""")
        common_setup()
        put(matrices())
        k(f"""v_cmp_le_u32 vcc, 12, v{n_}
s_cmp_eq_u32 s{sW}, 4
s_cselect_b64 vcc, vcc, 0
v_cndmask_b32 v{vHS}, 0, 1, vcc
s_barrier""")
        rest_loads(f"{name}_rl3")
        k(f"s_barrier")
        if not mono: st(1)
        if vprio: k(f"s_and_b32 s3, s{sW}, 3\ns_cmp_lg_u32 s3, 0\ns_cbranch_scc1 {name}_vp\ns_setprio 2\n{name}_vp:")
        k(vloads)
        chk = "\n".join([f"v_and_b32 v{t0}, v{L}, v{L+4}"] + [f"v_and_b32 v{t0}, v{t0}, v{L+4*i}" for i in range(2, 8)] + [f"v_or_b32 v{t0}, v{t0}, v{vHS}", f"v_and_b32 v{t0}, 1, v{t0}", f"v_cmp_eq_u32 vcc, 0, v{t0}"])
        spin(f"{name}_v", vloads, chk, nap)
        if bulk == 2: k("s_barrier")
        k(f"""s_branch {name}_doA
{name}_qi:
s_mul_i32 s3, s81, 3
s_add_u32 s3, s3, s{sW}
s_add_u32 s3, s3, 32
s_cmp_ge_u32 s{sW}, 3
s_cbranch_scc1 {name}_nocol
s_cmp_ge_u32 s3, 76
s_cbranch_scc1 {name}_nocol
{name}_col:
s_mul_i32 s4, s3, 27
s_lshr_b32 s4, s4, 9
s_mul_i32 s5, s4, 19
s_sub_u32 s81, s3, s5
s_lshl_b32 s3, s{sXC}, 2
s_add_u32 s82, s3, s4""")
        if cprio: k(f"s_setprio {cprio}")
        column_task(k, 48, 81, 82, 83, sV, vDX, vL, common_setup, lambda: (None if mono else st(1), k("s_barrier")))
        st(2)
        if cprio: k("s_setprio 0")
        if drain: k("s_waitcnt vmcnt(0)")
        if ib2: k(f"s_barrier\ns_cmp_eq_u32 s{sAct}, 0\ns_cbranch_scc1 {name}_fin")
        else: k(f"s_cmp_eq_u32 s{sAct}, 0\ns_cbranch_scc1 {name}_fin\ns_barrier")
        mlp_setup()
        k(f"s_mov_b32 s{sSU}, 1")
        rest_loads(f"{name}_rl4")
        k(f"s_branch {name}_bulk\n{name}_nocol:")
        common_setup()
        mlp_setup()
        k(f"s_mov_b32 s{sSU}, 1\ns_barrier\ns_cmp_eq_u32 s{sAct}, 0\ns_cbranch_scc1 {name}_ib")
        rest_loads(f"{name}_rl1")
        k(f"s_barrier\n{name}_bulk:")
        if bulk == 2: k("s_barrier")
        if bulk: bulk_w()
        k(f"s_branch {name}_noA\n{name}_ib:\n{'s_barrier' if ib2 else ''}\ns_branch {name}_fin\n{name}_doA:")
        tw = [""]*22
    else:
        k(f"s_cmp_lt_u32 s{sW}, 5\ns_cbranch_scc1 {name}_doA")
        mlp_setup()
        rest_loads(f"{name}_rl1")
        k(f"s_branch {name}_noA\n{name}_doA:")
        tw = matrices()
        put(tw[:22])
    st(2)
    for kk in range(2):
        for a in range(4):
            for b in range(a+1, 4): k(f"v_swap_b32 v{L+16*kk+4*a+b}, v{L+16*kk+4*b+a}")
    mf = []
    for m in (0, 2, 1, 3):
        for kk in range(2):
            for c in range(2):
                a = AC+8*m+4*c
                mf.append(f"{MF} {vr(a, 4)}, {vr(L+16*kk+4*m, 4)}, {vr(MB_+8*c+4*kk, 4)}, {'0' if kk == 0 else vr(a, 4)}")
    put(interleave(mf, tw[22:]) if tw[22:] else mf)
    if not merge: rest_loads(f"{name}_rl2")
    Z = L; T = L+16
    p2 = lambda x: vr(x, 2)
    NEG = "neg_lo:[0,1] neg_hi:[0,1]"
    for r in (0, 2):
        Rr = lambda m: AC+8*m+r
        I = lambda m: AC+8*m+4+r
        ar, ai, br, bi, cr, ci, dr, di = (T+2*i for i in range(8))
        k(f"""
v_pk_add_f32 {p2(ar)}, {p2(Rr(0))}, {p2(Rr(2))}
v_pk_add_f32 {p2(ai)}, {p2(I(0))}, {p2(I(2))}
v_pk_add_f32 {p2(cr)}, {p2(Rr(1))}, {p2(Rr(3))}
v_pk_add_f32 {p2(ci)}, {p2(I(1))}, {p2(I(3))}
v_pk_add_f32 {p2(br)}, {p2(Rr(0))}, {p2(Rr(2))} {NEG}
v_pk_add_f32 {p2(bi)}, {p2(I(0))}, {p2(I(2))} {NEG}
v_pk_add_f32 {p2(dr)}, {p2(Rr(1))}, {p2(Rr(3))} {NEG}
v_pk_add_f32 {p2(di)}, {p2(I(1))}, {p2(I(3))} {NEG}
v_pk_add_f32 {p2(Rr(0))}, {p2(ar)}, {p2(cr)}
v_pk_add_f32 {p2(I(0))}, {p2(ai)}, {p2(ci)}
v_pk_add_f32 {p2(Rr(1))}, {p2(br)}, {p2(di)} {NEG}
v_pk_add_f32 {p2(I(1))}, {p2(bi)}, {p2(dr)}
v_pk_add_f32 {p2(Rr(2))}, {p2(ar)}, {p2(cr)} {NEG}
v_pk_add_f32 {p2(I(2))}, {p2(ai)}, {p2(ci)} {NEG}
v_pk_add_f32 {p2(Rr(3))}, {p2(br)}, {p2(di)}
v_pk_add_f32 {p2(I(3))}, {p2(bi)}, {p2(dr)} {NEG}
v_cvt_pk_bf16_f32 v{Z+r}, v{Rr(0)}, v{I(0)}
v_cvt_pk_bf16_f32 v{Z+r+1}, v{Rr(0)+1}, v{I(0)+1}
""")
        for q in range(1, 4):
            cc = TW+8*(q-1)+r
            k(f"v_pk_mul_f32 {p2(T+4*q)}, {p2(cc)}, {p2(Rr(q))}\nv_pk_mul_f32 {p2(T+4*q+2)}, {p2(cc)}, {p2(I(q))}")
        for q in range(1, 4):
            ss = TW+8*(q-1)+4+r
            k(f"v_pk_fma_f32 {p2(T+4*q)}, {p2(ss)}, {p2(I(q))}, {p2(T+4*q)} neg_lo:[1,0,0] neg_hi:[1,0,0]\nv_pk_fma_f32 {p2(T+4*q+2)}, {p2(ss)}, {p2(Rr(q))}, {p2(T+4*q+2)}")
        for q in range(1, 4):
            k(f"v_cvt_pk_bf16_f32 v{Z+4*q+r}, v{T+4*q}, v{T+4*q+2}\nv_cvt_pk_bf16_f32 v{Z+4*q+r+1}, v{T+4*q+1}, v{T+4*q+3}")
    k(f"s_lshl_b32 s3, s{sW}, 10\ns_add_u32 s3, s3, {EZ}\nv_add_u32 v{vEW}, s3, v{vDX}")
    for q in range(4): k(f"ds_write_b128 v{vEW}, {vr(Z+4*q, 4)} offset:{q*5120}")
    k(f"s_setprio 0\ns_cmp_eq_u32 s{sW}, 4\ns_cbranch_scc1 {name}_noA")
    if su3: mlp_setup()
    k(f"{name}_noA:")
    k(f"""
v_lshlrev_b32 v{vSR}, 6, v{n_}
v_add_u32 v{vSR}, {ES}, v{vSR}
v_lshrrev_b32 v{vSW}, {2 if nl else 1}, v{g_}
v_lshl_add_u32 v{vSW}, v{vSW}, 2, v{vSR}
s_lshl_b32 s3, s{sW}, 3
v_add_u32 v{vSW}, s3, v{vSW}
v_lshrrev_b32 v{vHS}, 1, v{n_}
v_lshlrev_b32 v{vHS}, 7, v{vHS}
v_and_b32 v{t0}, 1, v{n_}
v_lshl_add_u32 v{vHS}, v{t0}, 6, v{vHS}
v_lshl_add_u32 v{vHS}, v{g_}, 4, v{vHS}
v_add_u32 v{vEW}, {EZ}, v{vDX}
s_lshl_b32 s3, s{sS2}, 1
s_add_u32 s3, s3, s{sNT}
s_mul_i32 s4, s3, 18432
s_lshl_b32 s5, s{sW}, 11
s_add_u32 s{sSO}, s4, s5
s_add_u32 s{sVB}, s4, 16384
s_and_b32 s3, s3, 7
s_lshl_b32 s3, s3, 2
s_lshl_b32 s4, s{sMT}, 11
s_add_u32 s{sXO}, s3, s4
s_mov_b32 s5, 0xffff0000
""")
    A2 = AC; ZR = L
    def allsum(a, b):
        k(f"""v_add_f32 v{a}, v{a}, v{a+1}
v_mov_b32 v{b}, v{a}
v_permlane32_swap_b32 v{a}, v{b}
v_add_f32 v{a}, v{a}, v{b}
v_mov_b32 v{b}, v{a}
v_permlane16_swap_b32 v{a}, v{b}
v_add_f32 v{a}, v{a}, v{b}""")
    def final_nl(nmt):
        so = [sSO, sVB]
        prs = [A2+16*mt+4*q+2*p for mt in range(nmt) for q in range(4) for p in range(2)]
        for mt in range(nmt):
            for r in range(4):
                for q in range(4):
                    src = XX+8*mt+2*r+(q >> 1); dst = A2+16*mt+4*q+r
                    k(f"v_and_b32 v{dst}, s5, v{src}" if q & 1 else f"v_lshlrev_b32 v{dst}, 16, v{src}")
        k(f"v_pk_add_f32 {vr(t0, 2)}, {vr(prs[0], 2)}, {vr(prs[1], 2)}\nv_pk_add_f32 {vr(t2, 2)}, {vr(prs[2], 2)}, {vr(prs[3], 2)}")
        for i, a in enumerate(prs[4:]): k(f"v_pk_add_f32 {vr(t0+2*(i & 1), 2)}, {vr(t0+2*(i & 1), 2)}, {vr(a, 2)}")
        k(f"v_pk_add_f32 {vr(t0, 2)}, {vr(t0, 2)}, {vr(t2, 2)}")
        allsum(t0, t1)
        k(f"ds_write_b32 v{vSW}, v{t0}")
        k.wait_lg(); k("s_barrier")
        st(3)
        idx = [(jt, q) for jt in range(5) for q in range(4)]
        rd = lambda i: f"ds_read_b128 {vr(ZR+4*(i % 8), 4)}, v{vEW} offset:{idx[i][1]*5120+idx[i][0]*1024}"
        for i in range(7): k(rd(i))
        for w in range(4): k(f"ds_read_b128 {vr(MB_+4*w, 4)}, v{vSR} offset:{16*w}")
        mean = [f"v_add_f32 v{MB_+a}, v{MB_+a}, v{MB_+b}" for a, b in ((0, 2), (4, 6), (8, 10), (12, 14), (0, 4), (8, 12), (0, 8))] + \
               [f"v_mul_f32 v{t0}, {fl(-1/576)}, v{MB_}", f"v_mul_f32 v{t1}, {fl(-1/576)}, v{MB_}"]
        for i, (jt, q) in enumerate(idx):
            for mt in range(nmt):
                a = A2+16*mt+4*q
                k(f"{MF} {vr(a, 4)}, {vr(G+20*mt+4*jt, 4)}, {vr(ZR+4*(i % 8), 4)}, {vr(a, 4)}")
            if i+7 < 20: k(rd(i+7))
            if 8 <= i < 8+len(mean): k(mean[i-8])
        def pack(dst, src, h):
            for p in range(4):
                r, q = 2*h+(p >> 1), 2*(p & 1)
                k(f"v_cvt_pk_bf16_f32 v{dst+p}, v{src+4*q+r}, v{src+4*(q+1)+r}")
        HC = G
        for mt in range(nmt):
            for h in range(2):
                for q in range(4): k(f"v_pk_add_f32 {vr(HC+16*mt+4*q+2*h, 2)}, {vr(A2+16*mt+4*q+2*h, 2)}, {vr(t0, 2)}")
                pack(L+8*mt+4*h, HC+16*mt, h)
                k(f"buffer_store_dwordx4 {vr(L+8*mt+4*h, 4)}, v{vDX}, {S4(sX)}, s{so[mt]} offen offset:{h*1024} sc1", tag="XF")
        hp = [a - A2 + HC for a in prs]
        k(f"v_pk_mul_f32 {vr(t0, 2)}, {vr(hp[0], 2)}, {vr(hp[0], 2)}\nv_pk_mul_f32 {vr(t2, 2)}, {vr(hp[1], 2)}, {vr(hp[1], 2)}")
        for i, a in enumerate(hp[2:]): k(f"v_pk_fma_f32 {vr(t0+2*(i & 1), 2)}, {vr(a, 2)}, {vr(a, 2)}, {vr(t0+2*(i & 1), 2)}")
        k(f"v_pk_add_f32 {vr(t0, 2)}, {vr(t0, 2)}, {vr(t2, 2)}")
        allsum(t0, t1)
        k(f"ds_write_b32 v{vSW}, v{t0} offset:4")
        for mt in range(nmt):
            for h in range(2): pack(XX+8*mt+4*h, A2+16*mt, h)
        k(f"""v_mov_b32 v{vEW}, v{vSR}
v_lshl_add_u32 v30, v{vL}, 7, s{sXO}
v_mov_b32 v{vSR}, {OOB}
v_cmp_gt_u32 vcc, 16, v{vL}
v_cndmask_b32 v30, v{vSR}, v30, vcc
v_mov_b32 v{vSW}, {FV}""")
    def final(nmt):
        if nl: return final_nl(nmt)
        so = [sSO, sVB]
        for mt in range(nmt):
            for r in range(4):
                for q in range(4):
                    src = XX+8*mt+2*r+(q >> 1); dst = A2+16*mt+4*q+r
                    k(f"v_and_b32 v{dst}, s5, v{src}" if q & 1 else f"v_lshlrev_b32 v{dst}, 16, v{src}")
        k.wait_lg(); k("s_barrier")
        st(3)
        idx = [(jt, q) for jt in range(5) for q in range(4)]
        rd = lambda i: f"ds_read_b128 {vr(ZR+4*(i % 8), 4)}, v{vEW} offset:{idx[i][1]*5120+idx[i][0]*1024}"
        for i in range(7): k(rd(i))
        for i, (jt, q) in enumerate(idx):
            for mt in range(nmt):
                a = A2+16*mt+4*q
                k(f"{MF} {vr(a, 4)}, {vr(G+20*mt+4*jt, 4)}, {vr(ZR+4*(i % 8), 4)}, {vr(a, 4)}")
            if i+7 < 20: k(rd(i+7))
        if "p3st" in abl: k("s_memrealtime s[62:63]")
        first = True
        for mt in range(nmt):
            for q in range(4):
                for p in range(2):
                    a = A2+16*mt+4*q+2*p
                    if first: k(f"v_mov_b64 {vr(t0, 2)}, {vr(a, 2)}\nv_pk_mul_f32 {vr(t2, 2)}, {vr(a, 2)}, {vr(a, 2)}"); first = False
                    else: k(f"v_pk_add_f32 {vr(t0, 2)}, {vr(t0, 2)}, {vr(a, 2)}\nv_pk_fma_f32 {vr(t2, 2)}, {vr(a, 2)}, {vr(a, 2)}, {vr(t2, 2)}")
        k(f"""
v_add_f32 v{t0}, v{t0}, v{t1}
v_add_f32 v{t2}, v{t2}, v{t3}
v_permlane32_swap_b32 v{t0}, v{t2}
v_add_f32 v{t0}, v{t0}, v{t2}
v_mov_b32 v{t1}, v{t0}
v_permlane16_swap_b32 v{t0}, v{t1}
v_add_f32 v{t0}, v{t0}, v{t1}
ds_write_b32 v{vSW}, v{t0}
""")
        def pack(dst, mt, h):
            for p in range(4):
                r, q = 2*h+(p >> 1), 2*(p & 1)
                k(f"v_cvt_pk_bf16_f32 v{dst+p}, v{A2+16*mt+4*q+r}, v{A2+16*mt+4*(q+1)+r}")
        for mt in range(nmt):
            for h in range(2): pack(XX+8*mt+4*h, mt, h)
        k.wait_lg(); k("s_barrier")
        if "p3st" in abl: k("s_memrealtime s[64:65]")
        for w in range(4): k(f"ds_read_b128 {vr(L+4*w, 4)}, v{vSR} offset:{16*w}")
        k(f"""v_lshl_add_u32 v{vSW}, v{vL}, 7, s{sXO}
v_mov_b32 v{vSR}, {OOB}
v_cmp_gt_u32 vcc, 16, v{vL}
v_cndmask_b32 v{vSR}, v{vSR}, v{vSW}, vcc
v_mov_b32 v{vSW}, {FV}""")
        for a, b in ((0, 2), (4, 6), (8, 10), (12, 14), (0, 4), (8, 12), (0, 8)):
            k(f"v_pk_add_f32 {vr(L+a, 2)}, {vr(L+a, 2)}, {vr(L+b, 2)}")
        k(f"""
v_mul_f32 v{t0}, {fl(1/576)}, v{L}
v_mul_f32 v{t1}, v{t0}, v{t0}
v_fmamk_f32 v{t2}, v{L+1}, {fl(1/576)}, v{t1}
v_fma_f32 v{t2}, -2.0, v{t1}, v{t2}
v_max_f32 v{t2}, 0, v{t2}
v_add_f32 v{t2}, {fl(1e-5)}, v{t2}
v_rsq_f32 v{t2}, v{t2}
v_mul_f32 v{t2}, {fl(LOG2E)}, v{t2}
v_mul_f32 v{t0}, -v{t0}, v{t2}
v_mov_b32 v{t3}, v{t2}
v_mov_b32 v{t1}, v{t0}
s_cmp_eq_u32 s{sW}, 0
s_cselect_b32 s4, 0x10001, 0
""")
        for mt in range(nmt):
            for q in range(4):
                for p in range(2):
                    a = A2+16*mt+4*q+2*p
                    k(f"v_pk_fma_f32 {vr(a, 2)}, {vr(a, 2)}, {vr(t2, 2)}, {vr(t0, 2)}")
            for h in range(2):
                pack(L+8*mt+4*h, mt, h)
                if early and nmt == 1: k(f"v_or_b32 v{L+4*h}, s4, v{L+4*h}")
                k(f"buffer_store_dwordx4 {vr(L+8*mt+4*h, 4)}, v{vDX}, {S4(sX)}, s{so[mt]} offen offset:{h*1024} sc1", tag="XF")
    def hstores(lab):
        for mt in range(2):
            if mt: k(f"s_cmp_lg_u32 s{sW}, {W2}\ns_cbranch_scc1 {lab}")
            for h in range(2): k(f"buffer_store_dwordx4 {vr(XX+8*mt+4*h, 4)}, v{vHS}, {S4(sH)}, s{[sSO, sVB][mt]} offen offset:{h*1024} sc1", tag="H")
        k(f"{lab}:")
    k(f"s_cmp_eq_u32 s{sW}, {W2}\ns_cbranch_scc1 {name}_fin2")
    final(1)
    if early:
        k(f"""s_cmp_lg_u32 s{sW}, 0
s_cbranch_scc1 {name}_fin
s_mov_b32 s3, {F_E}
buffer_store_dword v{vSW}, v{vSR}, {S4(sF)}, s3 offen sc1""")
    k(f"s_branch {name}_fin\n{name}_fin2:")
    final(2)
    k(f"{name}_fin:")
    if "p3st" in abl: k("s_memrealtime s[60:61]")
    if merge: k(f"s_cmp_eq_u32 s{sSU}, 1\ns_cbranch_scc1 {name}_sudone")
    else: k(f"s_cmp_eq_u32 s{sAct}, 0\ns_cbranch_scc1 {name}_su\n{'s_cmp_lg_u32' if su3 else 's_cmp_gt_u32'} s{sW}, 4\ns_cbranch_scc1 {name}_sudone\n{name}_su:")
    mlp_setup()
    k(f"{name}_sudone:")
    if bulk or wlate: k(f"s_cmp_lg_u32 s{sAct}, 0\ns_cbranch_scc1 {name}_wdone")
    first_w(f"{name}_wc")
    if bulk or wlate: k(f"{name}_wdone:")
    def touch(mats, lab, dst):
        k(f"""
s_lshr_b32 s3, s2, 3
s_lshl_b32 s3, s3, 3
s_add_u32 s3, s3, s{sW}
s_cmp_ge_u32 s3, {81*len(mats)}
s_cbranch_scc1 {lab}_x
s_cmp_ge_u32 s3, 81
s_cselect_b32 s4, 81, 0
s_sub_u32 s4, s3, s4
v_lshl_add_u32 v{vT0}, s4, 6, v{vL}
v_mul_u32_u24 v{vT1}, 7282, v{vT0}
v_lshrrev_b32 v{vT1}, 16, v{vT1}
v_mul_u32_u24 v{vT2}, 9, v{vT1}
v_sub_u32 v{vT2}, v{vT0}, v{vT2}
v_mul_u32_u24 v{vT1}, {9216 if mats[0] != sD else 1152}, v{vT1}
v_lshl_add_u32 v{vT1}, v{vT2}, 7, v{vT1}
s_mul_i32 s4, s{sXC}, {1152 if mats[0] != sD else 576*1152}
""")
        if len(mats) == 2: k(f"s_cmp_ge_u32 s3, 81\ns_cbranch_scc1 {lab}_u")
        k(f"buffer_load_dword v{dst}, v{vT1}, {S4(mats[0])}, s4 offen {TPOL if len(mats) == 2 else TPOLD}", tag="touch")
        if len(mats) == 2: k(f"s_branch {lab}_x\n{lab}_u:\nbuffer_load_dword v{dst}, v{vT1}, {S4(mats[1])}, s4 offen {TPOL}")
        k(f"{lab}_x:")
    vTW = 31
    k(f"""
s_cmp_eq_u32 s{sB}, 0
s_cselect_b32 s{sV}, s{sG}, s{sU}
s_cselect_b32 s{sV+1}, s{sG+1}, s{sU+1}
s_mov_b32 s{sV+2}, {N_W}
s_mov_b32 s{sV+3}, 0x20000
s_and_b32 s3, s{sW}, 3
s_mul_i32 s3, s3, 5
v_add_u32 v{vTW}, s3, v{vL}
v_cmp_lt_u32 vcc, 8, v{vTW}
v_cndmask_b32 v{vT0}, 0, 1, vcc
v_mul_u32_u24 v{vT1}, 9, v{vT0}
v_sub_u32 v{vT1}, v{vTW}, v{vT1}
s_lshr_b32 s3, s{sW}, 2
s_xor_b32 s3, s3, 1
s_xor_b32 s3, s3, s{sMT}
s_lshl_b32 s3, s3, 1
v_add_u32 v{vT0}, s3, v{vT0}
v_and_b32 v{vT2}, 24, v{vT0}
v_add_u32 v{vT0}, v{vT0}, v{vT2}
v_mul_u32_u24 v{vT0}, 9216, v{vT0}
v_lshl_add_u32 v{vT0}, v{vT1}, 7, v{vT0}
s_mul_i32 s3, s{sXC}, 1152
v_add_u32 v{vT0}, s3, v{vT0}
v_mov_b32 v{vT1}, {OOB}
v_cmp_gt_u32 vcc, 18, v{vTW}
v_cndmask_b32 v{vT0}, v{vT1}, v{vT0}, vcc
v_cmp_gt_u32 vcc, 5, v{vL}
v_cndmask_b32 v{vTW}, v{vT1}, v{vT0}, vcc
""")
    def roll(s):
        if "notouch" in abl or "noroll" in abl or s >= 18: return []
        return [(f"s_mov_b32 s94, {((s >> 1)*64 + (s & 1)*8)*9216}\nbuffer_load_dword v28, v{vTW}, {S4(sV)}, s94 offen {TPOL}", "touch")]
    if not early:
        k(f"""s_cmp_eq_u32 s{sAct}, 0
s_cbranch_scc1 {name}_p3done
""")
        k.wait_lg(); k.wait_vm("XF")
        k(f"""s_barrier
s_cmp_lg_u32 s{sW}, 0
s_cbranch_scc1 {name}_p3sig
buffer_store_dword v{vSW}, v{30 if nl else vSR}, {S4(sF)}, 0 offen sc1""")
        if nl:
            for w in range(4): k(f"ds_read_b128 {vr(MB_+4*w, 4)}, v{vEW} offset:{16*w}")
            k(f"""s_lshl_b32 s3, s{sS2}, 1
s_add_u32 s3, s3, s{sNT}
s_bfe_u32 s4, s3, 0x10002
s_lshl_b32 s4, s4, 8
s_and_b32 s3, s3, 3
s_lshl_b32 s3, s3, 2
s_add_u32 s3, s3, s4
s_lshl_b32 s4, s{sMT}, 9
s_add_u32 s3, s3, s4
s_add_u32 s3, s3, {F_R}
v_lshl_add_u32 v{t1}, v{vL}, 4, s3
v_cmp_gt_u32 vcc, 16, v{vL}
v_cndmask_b32 v{t1}, v{vSR}, v{t1}, vcc""")
            for a, b in ((1, 3), (5, 7), (9, 11), (13, 15), (1, 5), (9, 13), (1, 9)): k(f"v_add_f32 v{MB_+a}, v{MB_+a}, v{MB_+b}")
            k(f"""v_mov_b32 v{t2}, {fl(1e-5)}
v_fmac_f32 v{t2}, {fl(1/576)}, v{MB_+1}
v_rsq_f32 v{t2}, v{t2}
v_mul_f32 v{t2}, {fl(LOG2E)}, v{t2}""")
            k(f"buffer_store_dword v{t2}, v{t1}, {S4(sF)}, 0 offen sc1", tag="R2")
        k(f"{name}_p3sig:")
        if bulk == 2 and not late1: first_w(f"{name}_wd", (1,))
        elif wlate == 1 and not bulk: first_w(f"{name}_wd")
        hstores(f"{name}_hs")
        if wlate == 2: first_w(f"{name}_wd")
        k(f"{name}_p3done:")
    st(4)

    def path(five):
        nt5 = 5 if five else 4
        nf = 2*nt5
        P = "a" if five else "b"
        k(f"""
s_lshl_b32 s3, s{sMT}, 4
s_add_u32 s3, s3, s{sSL}
s_lshl_b32 s3, s3, 7
s_lshl_b32 s4, s{sW}, 2
s_add_u32 s{sLN}, s3, s4
s_add_u32 s{sS1}, s{sLN}, {F_E if early else 0}
buffer_load_dword v{vQ}, v{vZ}, {S4(sF)}, s{sS1} offen sc1
v_lshrrev_b32 v{vT0}, 4, v{vL}
v_bfe_u32 v{vT1}, v{vL}, 2, 2
v_lshl_add_u32 v{vT2}, v{vT0}, 3, v{vT1}
v_mul_u32_u24 v{vT2}, 576, v{vT2}
v_and_b32 v{vWB[0]}, 3, v{vL}
v_lshl_add_u32 v{vT2}, v{vWB[0]}, 3, v{vT2}
s_mul_i32 s3, s{sA}, 9
s_add_u32 s3, s3, {0 if five else 5}
s_lshl_b32 s4, s3, 5
s_add_u32 s4, s4, 8192
v_add_u32 v{vT2}, s4, v{vT2}
s_and_b32 s3, s3, 1
s_cmp_eq_u32 s3, 0
s_cselect_b32 s3, 32, -32
v_and_b32 v{vWB[0]}, 1, v{vT0}
v_mul_i32_i24 v{vWB[0]}, s3, v{vWB[0]}
v_add_u32 v{vWA[0]}, v{vT2}, v{vWB[0]}
v_sub_u32 v{vWB[0]}, v{vT2}, v{vWB[0]}
s_lshl_b32 s3, s{sRG}, 12
v_add_u32 v{vXr[0]}, s3, v{vDX}
""")
        for i in (1, 2):
            k(f"v_add_u32 v{vXr[i]}, {SLOT_A[i]}, v{vXr[0]}\nv_add_u32 v{vWA[i]}, {SLOT_A[i]}, v{vWA[0]}\nv_add_u32 v{vWB[i]}, {SLOT_A[i]}, v{vWB[0]}")
        k(f"""
v_lshrrev_b32 v{vDD}, 3, v{vL}
v_mul_u32_u24 v{vDD}, 1152, v{vDD}
v_bfe_u32 v{vT2}, v{vL}, 1, 2
v_xor_b32 v{vT2}, v{vT2}, v{vT0}
v_lshl_add_u32 v{vDD}, v{vT2}, 5, v{vDD}
v_and_b32 v{vT2}, 1, v{vL}
v_lshl_add_u32 v{vDD}, v{vT2}, 4, v{vDD}
s_mul_i32 s3, s{sCG if LP else sW}, {9 if LP else 4 if five else 5}
s_sub_u32 s3, s3, {0 if five or LP else 4}
s_lshl_b32 s{sM0d}, s3, 10
s_mul_i32 s3, s3, {8*1152}
s_mul_i32 s{sKD}, s{sSL}, {288*1152}
s_add_u32 s{sKD}, s{sKD}, s3
v_lshl_add_u32 v{vWD[0]}, v{vT0}, 2, v{vT1}
v_bfe_u32 v{vT2}, v{vWD[0]}, 1, 2
v_xor_b32 v{vT2}, s{sCG}, v{vT2}
v_lshlrev_b32 v{vT2}, 5, v{vT2}
v_lshl_add_u32 v{vWD[0]}, v{vWD[0]}, 7, v{vT2}
v_and_b32 v{vT2}, 3, v{vL}
v_lshl_add_u32 v{vWD[0]}, v{vT2}, 3, v{vWD[0]}
v_add_u32 v{vWD[1]}, {RING_B[1]}, v{vWD[0]}
v_add_u32 v{vWD[2]}, {RING_B[2]}, v{vWD[0]}
v_add_u32 v{vWD[3]}, {RING_B[3]}, v{vWD[0]}
s_xor_b32 s3, s{sB if LP else sRG}, {1 if LP and not five else 0}
s_mul_i32 s3, s3, {4*9*1024}
s_add_u32 s3, s3, {HH}
v_add_u32 v{vHR}, s3, v{vDX}
s_mul_i32 s3, s{sRG}, {4*9*1024}
s_add_u32 s3, s3, {HH}
s_mul_i32 s4, s{sA}, 9
s_add_u32 s4, s4, {0 if five else 5}
s_lshr_b32 s5, s4, 1
s_lshl_b32 s5, s5, 10
s_add_u32 s3, s3, s5
s_and_b32 s4, s4, 1
s_lshl_b32 s5, s4, 3
s_add_u32 s5, s5, s3
v_add_u32 v{vHW}, s5, v{vDX}
s_mul_i32 s5, s4, 1024
s_add_u32 s5, s5, s3
s_xor_b32 s4, s4, 1
s_lshl_b32 s4, s4, 3
s_add_u32 s5, s5, s4
v_add_u32 v{vHW2}, s5, v{vDX}
v_bfe_u32 v{vT2}, v{vL}, 1, 3
v_lshlrev_b32 v{vPO}, 10, v{vT2}
v_and_b32 v{vT2}, 1, v{vL}
v_lshl_add_u32 v{vPO}, v{vT2}, 6, v{vPO}
v_lshl_add_u32 v{vPO}, v{vT0}, 4, v{vPO}
""")
        if LP:
            k(f"""s_lshl_b32 s3, s{sMT}, 1
s_add_u32 s4, s3, s{sB}
s_mul_i32 s{sRD}, s4, {8*9*8192}
s_xor_b32 s4, s4, {0 if five else 1}
s_lshl_b32 s4, s4, 3
s_add_u32 s4, s4, s{sXC}
s_mul_i32 s{sPO}, s4, {9*8192}
s_lshl_b32 s4, s{sCG}, 8
s_add_u32 s{sPO}, s{sPO}, s4
s_xor_b32 s3, s2, {0 if five else 128}
s_lshl_b32 s3, s3, 9
s_lshl_b32 s4, s{sCG}, 7
s_add_u32 s3, s3, s4
s_add_u32 s{sF1}, s3, {F_1}
s_getreg_b32 s{sLoc}, hwreg(HW_REG_XCC_ID, 0, 4)
s_add_u32 s{sLoc}, s{sLoc}, 1""")
            if five:
                for i in range(4): k(f"v_mov_b32 v{28+i}, 0")
        else:
            k(f"""s_mul_i32 s{sRD}, s{sMT}, {16*9*16384}
s_mul_i32 s3, s{sSL}, {9*16384}
s_add_u32 s{sPO}, s{sRD}, s3
s_lshl_b32 s4, s{sRG}, 13
s_add_u32 s{sPO}, s{sPO}, s4
s_lshl_b32 s4, s{sCG}, 8
s_add_u32 s{sPO}, s{sPO}, s4""")
        if idlepf:
            k(f"s_cmp_lg_u32 s{sAct}, 0\ns_cbranch_scc1 {name}_{P}ip")
            if late1: put(dmaW(1, not five))
            for q in range(2, ahead): put(roll(q))
            k(f"{name}_{P}ip:")
        elif not five and not early:
            for q in range(2, ahead): put(roll(q))
        if droll and five:
            n = -(-(5184//droll)//128)
            k(f"""s_lshr_b32 s3, s2, 3
s_lshl_b32 s3, s3, 2
s_add_u32 s3, s3, s{sW}
s_mul_i32 s3, s3, {n}
v_add_u32 v{vT0}, s3, v{vL}
v_mov_b32 v{vT1}, {OOB}
v_cmp_gt_u32 vcc, {5184//droll}, v{vT0}
v_lshlrev_b32 v{vT0}, 7, v{vT0}
v_cndmask_b32 v{vT0}, v{vT1}, v{vT0}, vcc
v_cmp_gt_u32 vcc, {n}, v{vL}
v_cndmask_b32 v{vT2}, v{vT1}, v{vT0}, vcc""")
        xflag = lambda so: f"buffer_load_dword v{vQ}, v{vZ}, {S4(sF)}, s{so} offen sc1"
        spin(f"{name}_{P}x", xflag(sS1), notyet(vQ))
        if early:
            ld = f"buffer_load_dwordx4 v[64:67], v{vDX}, {S4(sX)}, s{sKX} offen sc1\nbuffer_load_dwordx4 v[68:71], v{vDX}, {S4(sX)}, s{sKX} offen offset:1024 sc1"
            k(ld)
            k(f"v_add_u32 v{vT0}, s{sM0x}, v{vDX}\ns_mov_b32 s4, 0x10001")
            spin(f"{name}_{P}t", ld, f"v_and_b32 v{vT1}, v64, v68\nv_and_b32 v{vT1}, s4, v{vT1}\nv_cmp_ne_u32 vcc, s4, v{vT1}")
            k(f"s_cmp_eq_u32 s{sAct}, 0\ns_cbranch_scc1 {name}_{P}hs")
            hstores(f"{name}_{P}hs")
            if not five and not idlepf:
                for q in range(2, ahead): put(roll(q))
            k(f"ds_write_b128 v{vT0}, v[64:67] offset:{SLOT_A[0]}\nds_write_b128 v{vT0}, v[68:71] offset:{SLOT_A[1]}")
        else:
            put(dmaX(0)); put(dmaX(1))
        if late1 == 1:
            if idlepf: k(f"s_cmp_eq_u32 s{sAct}, 0\ns_cbranch_scc1 {name}_{P}l1")
            put(dmaW(1, not five))
            if idlepf: k(f"{name}_{P}l1:")
        if droll and five: k(f"v_mov_b32 v31, v{vT2}\ns_mul_i32 s{sS1}, s{sXC}, {576*1152}")
        st(5)
        ACC = 256-nf*16; XB = [64, 80]; WR = 32
        def acc(f, nt): return ACC + f*16 + nt*4
        def wreg(s, f): return WR + 4*((s*nf+f) % 8)
        def wread(s, f):
            i, u = f >> 1, f & 1
            va = (vWA if i % 2 == 0 else vWB)[s % 3]; d = wreg(s, f)
            return [f"ds_read_b64_tr_b16 v[{d+2*h}:{d+2*h+1}], v{va} offset:{h*4*576 + i*32 + u*18432}" for h in range(2)]
        def mfa(s, f):
            w = wreg(s, f)
            return [f"{MF} {vr(acc(f, nt), 4)}, {vr(w, 4)}, {vr(XB[s % 2]+4*nt, 4)}, {'0' if s == 0 else vr(acc(f, nt), 4)}" for nt in range(4)]
        vRD, vHO, vOO, vFL, vFS, SEL, vFV, vTR, vHT = 2, 3, 4, 8, 9, 12, 5, 10, 11
        assert not fuse
        vSC = 27
        sRP, sEX = 44, 48
        late = f"""v_mov_b32 v{vFS}, {OOB}
v_lshrrev_b32 v5, 4, v{vL}
v_and_b32 v6, 3, v{vL}
v_bfe_u32 v7, v{vL}, 3, 1
s_and_b32 s4, s{sSL}, 3
v_xor_b32 v14, s4, v5
v_mul_u32_u24 v{vRD}, {9*16384}, v14
v_lshlrev_b32 v{vHT}, 8, v7
v_and_b32 v14, 7, v{vL}
v_lshl_add_u32 v{vHT}, v14, 4, v{vHT}
v_add_u32 v{vRD}, v{vRD}, v{vHT}
s_lshl_b32 s4, s{sRG}, 1
v_add_u32 v7, s4, v7
s_lshl_b32 s4, s{sA}, 7
s_lshl_b32 s5, s{sRG}, 9
s_add_u32 s4, s4, s5
s_add_u32 s5, s4, 73728
v_add_u32 v{vHT}, s5, v{vHT}
s_add_u32 s{sRD}, s{sRD}, s4
s_lshl_b32 s4, s{sSL}, 10
s_add_u32 s{sRD}, s{sRD}, s4
s_and_b32 s4, s{sSL}, 12
s_mul_i32 s{sRP}, s4, {9*16384}
s_add_u32 s{sRP}, s{sRP}, s{sRD}
s_xor_b32 s5, s4, 4
s_mul_i32 s{sRP+1}, s5, {9*16384}
s_add_u32 s{sRP+1}, s{sRP+1}, s{sRD}
s_xor_b32 s5, s4, 8
s_mul_i32 s{sRP+2}, s5, {9*16384}
s_add_u32 s{sRP+2}, s{sRP+2}, s{sRD}
s_xor_b32 s5, s4, 12
s_mul_i32 s{sRP+3}, s5, {9*16384}
s_add_u32 s{sRP+3}, s{sRP+3}, s{sRD}
v_and_b32 v{vTR}, 1023, v{vPO}
s_lshl_b32 s4, s{sCG}, 8
s_add_u32 s4, s4, 73728
v_add_u32 v{vTR}, s4, v{vTR}
s_lshr_b32 s3, s{sSL}, 3
s_and_b32 s5, s{sSL}, 7
v_lshrrev_b32 v14, 10, v{vPO}
v_cmp_eq_u32 s[{sEX}:{sEX+1}], s5, v14
s_cmp_eq_u32 s3, s{sRG}|s_cselect_b64 s[{sEX}:{sEX+1}], s[{sEX}:{sEX+1}], 0
{f"v_cndmask_b32 v{vPO}, v{vPO}, v{vFS}, s[{sEX}:{sEX+1}]" if skip else ""}
s_lshl_b32 s5, s5, 7
s_lshl_b32 s{sLN}, s{sMT}, 2
s_lshl_b32 s3, s3, 1
s_add_u32 s{sLN}, s{sLN}, s3
s_add_u32 s{sLN}, s{sLN}, s{sA}
s_lshl_b32 s3, s{sLN}, 1
v_add_u32 v{vHO}, s3, v5
v_mul_u32_u24 v{vHO}, 18432, v{vHO}
v_lshrrev_b32 v14, 1, v6
v_lshl_add_u32 v{vHO}, v14, 10, v{vHO}
v_lshl_add_u32 v{vHO}, v7, 4, v{vHO}
v_and_b32 v14, 1, v6
v_lshl_add_u32 v{vHO}, v14, 3, v{vHO}
v_add_u32 v{vHO}, s5, v{vHO}
v_bfe_u32 v14, v{vL}, 2, 1
v_lshl_add_u32 v{vHO}, v14, 6, v{vHO}
s_lshr_b32 s4, s5, 6
v_lshl_add_u32 v{vOO}, v5, 4, s4
v_add_u32 v{vOO}, v{vOO}, v14
v_lshl_add_u32 v{vOO}, v{vOO}, 6, s{sLN}
v_mul_u32_u24 v{vOO}, 1152, v{vOO}
v_lshl_add_u32 v{vOO}, v7, 5, v{vOO}
v_lshl_add_u32 v{vOO}, v6, 3, v{vOO}
v_cmp_gt_u32 vcc, 32, v{vL}
v_cndmask_b32 v{vHO}, v{vFS}, v{vHO}, vcc
v_cndmask_b32 v{vOO}, v{vFS}, v{vOO}, vcc
v_lshlrev_b32 v14, 4, v14
v_lshl_add_u32 v14, v5, 2, v14
s_lshl_b32 s4, s{sSL}, 5
s_lshl_b32 s5, s{sA}, 3
s_add_u32 s4, s4, s5
s_lshl_b32 s5, s{sMT}, 9
s_add_u32 s4, s4, s5
s_add_u32 s4, s4, {F_R}
v_add_u32 v{vSC}, s4, v14
s_lshl_b32 s4, s{sMT}, 11
s_add_u32 s4, s4, {F_2}
s_lshl_b32 s5, s{sSL}, 2
s_add_u32 s5, s5, s4
v_lshl_add_u32 v5, v{vL}, 7, s5
v_cmp_gt_u32 vcc, 16, v{vL}
v_cndmask_b32 v{vFS}, v{vFS}, v5, vcc
s_lshl_b32 s5, s{sSL}, 7
s_add_u32 s5, s5, s4
v_and_b32 v5, 15, v{vL}
v_lshl_add_u32 v{vFL}, v5, 2, s5
s_mov_b32 s{sLN}, {LN2!r}""".split("\n")
        late = [x.replace('|', '\n') for x in late]
        CNT = 73728; SK = 72; vMK = 16
        if LP and five:
            late = f"""v_mov_b32 v{vFS}, {OOB}
s_lshl_b32 s4, s{sMT}, 11
s_lshl_b32 s5, s{sB}, 7
s_add_u32 s4, s4, s5
s_add_u32 s4, s4, {F_2}
s_lshl_b32 s5, s{sXC}, 2
s_add_u32 s5, s5, s4
v_lshl_add_u32 v5, v{vL}, 8, s5
v_cmp_gt_u32 vcc, 8, v{vL}
v_cndmask_b32 v{vFS}, v{vFS}, v5, vcc
v_mov_b32 v{vFL}, {CNT}""".split("\n")
        elif LP:
            late = f"""v_mov_b32 v{vFS}, {OOB}
s_lshl_b32 s4, s{sMT}, 11
s_lshl_b32 s5, s{sSL}, 7
s_add_u32 s4, s4, s5
s_add_u32 s4, s4, {F_2}
v_and_b32 v5, 7, v{vL}
v_lshl_add_u32 v{vFL}, v5, 2, s4
s_lshl_b32 s5, s{sXC}, 10
s_add_u32 s{sRD}, s{sRD}, s5
v_lshrrev_b32 v{vTR}, 3, v{vL}
v_mul_u32_u24 v{vTR}, {9*8192}, v{vTR}
v_lshl_add_u32 v{vTR}, v5, 7, v{vTR}
v_add_u32 v{vTR}, s{sRD}, v{vTR}
v_lshlrev_b32 v{vRD}, 4, v5
v_lshrrev_b32 v5, 4, v{vL}
v_and_b32 v6, 3, v{vL}
v_bfe_u32 v7, v{vL}, 3, 1
v_mul_u32_u24 v14, {9*8192}, v5
v_add_u32 v{vRD}, v{vRD}, v14
v_lshl_add_u32 v{vRD}, v7, 8, v{vRD}
s_lshl_b32 s4, s{sRG}, 1
v_add_u32 v7, s4, v7
s_lshl_b32 s4, s{sA}, 7
s_add_u32 s{sRD}, s{sRD}, s4
s_lshl_b32 s4, s{sRG}, 9
s_add_u32 s{sRD}, s{sRD}, s4
s_lshl_b32 s5, s{sXC}, 7
s_lshl_b32 s{sLN}, s{sMT}, 2
s_lshl_b32 s3, s{sB}, 1
s_add_u32 s{sLN}, s{sLN}, s3
s_lshl_b32 s3, s{sLN}, 1
s_add_u32 s3, s3, s{sCG}
s_mul_i32 s3, s3, 18432
s_add_u32 s3, s3, s5
v_lshl_add_u32 v{vHT}, v{vL}, 10, s3
v_cmp_gt_u32 vcc, 18, v{vL}
v_cndmask_b32 v{vHT}, v{vFS}, v{vHT}, vcc
s_add_u32 s{sLN}, s{sLN}, s{sA}
s_lshl_b32 s3, s{sLN}, 1
v_add_u32 v{vHO}, s3, v5
v_mul_u32_u24 v{vHO}, 18432, v{vHO}
v_lshrrev_b32 v14, 1, v6
v_lshl_add_u32 v{vHO}, v14, 10, v{vHO}
v_lshl_add_u32 v{vHO}, v7, 4, v{vHO}
v_and_b32 v14, 1, v6
v_lshl_add_u32 v{vHO}, v14, 3, v{vHO}
v_add_u32 v{vHO}, s5, v{vHO}
v_bfe_u32 v14, v{vL}, 2, 1
v_lshl_add_u32 v{vHO}, v14, 6, v{vHO}
s_lshl_b32 s4, s{sXC}, 1
v_lshl_add_u32 v{vOO}, v5, 4, s4
v_add_u32 v{vOO}, v{vOO}, v14
v_lshl_add_u32 v{vOO}, v{vOO}, 6, s{sLN}
v_mul_u32_u24 v{vOO}, 1152, v{vOO}
v_lshl_add_u32 v{vOO}, v7, 5, v{vOO}
v_lshl_add_u32 v{vOO}, v6, 3, v{vOO}
v_cmp_gt_u32 vcc, 32, v{vL}
v_cndmask_b32 v{vHO}, v{vFS}, v{vHO}, vcc
v_cndmask_b32 v{vOO}, v{vFS}, v{vOO}, vcc
s_mov_b32 s{sLN}, {LN2!r}""".split("\n")
        sel = f"""v_and_b32 v5, 1, v{vL}
v_lshlrev_b32 v5, 4, v5
s_movk_i32 s3, 0x3f80
v_lshlrev_b32 v5, v5, s3
v_bfe_u32 v6, v{vL}, 1, 3""".split("\n")
        if LP and five:
            sel += [f"v_lshrrev_b32 v7, 3, v{vL}", f"v_and_b32 v7, 6, v7", f"v_sub_u32 v6, v6, v7"]
            for i in range(2): sel += [f"v_cmp_eq_u32 vcc, {i}, v6", f"v_cndmask_b32 v{SK+2+i}, 0, v5, vcc"]
            sel += [f"v_mov_b32 v{SK+i}, 0" for i in (0, 1, 4, 5)]
            sel += [f"ds_write_b64 v{vFL}, v[{SK}:{SK+1}] offset:{8*i}" for i in range(3)]
        else:
            for i in range(4): sel += [f"v_cmp_eq_u32 vcc, {i}, v6", f"v_cndmask_b32 v{SEL+i}, 0, v5, vcc"]
        sel += [f"v_mov_b32 v{vFV}, {FV}", f"v_mov_b32 v{vMK}, 0x10001"]
        def split_m0(d):
            out = []
            for t, tag in d:
                ls = t.split("\n")
                out += ["\n".join(ls[:-1]), (ls[-1], tag)]
            return out
        def spread_in(seq, dma, every):
            items = split_m0(dma); out = []; n = 0; j = 0
            for x in seq:
                out.append(x)
                if isinstance(x, str) and x.startswith("v_mfma"):
                    n += 1
                    if j < len(items) and (j % 2 == 1 or n % every == every-1): out.append(items[j]); j += 1
            return out + items[j:]
        k.wait_lg(); k.wait_vm("A0", "XF"); k("s_barrier")
        if early and five:
            k(f"s_cmp_eq_u32 s{sAct}, 0\ns_cbranch_scc1 {name}_xsig\ns_cmp_lg_u32 s{sW}, 0\ns_cbranch_scc1 {name}_xsig\nbuffer_store_dword v{vSW}, v{vSR}, {S4(sF)}, 0 offen sc1\n{name}_xsig:")
        st(6)
        if prio == ("lo" if five else "hi"): k("s_setprio 1")
        def glu(i):
            out = []
            for np_ in range(2):
                g, u = acc(2*i, 2*np_), acc(2*i+1, 2*np_)
                if nl: out += [f"v_pk_mul_f32 {vr(g+r, 2)}, {vr(g+r, 2)}, {vr(64+4*np_+2*(r >> 2), 2)}" for r in range(0, 8, 2)]
                out += [f"v_exp_f32 v{g+r}, -v{g+r}" for r in range(8)]
                out += [f"v_pk_add_f32 {vr(g+r, 2)}, {vr(g+r, 2)}, s[4:5]" for r in range(0, 8, 2)] if pk else [f"v_add_f32 v{g+r}, 1.0, v{g+r}" for r in range(8)]
                out += [f"v_rcp_f32 v{g+r}, v{g+r}" for r in range(8)]
                out += [f"v_pk_mul_f32 {vr(g+r, 2)}, {vr(g+r, 2)}, {vr(u+r, 2)}" for r in range(0, 8, 2)] if pk else [f"v_mul_f32 v{g+r}, v{g+r}, v{u+r}" for r in range(8)]
                for q in range(2): out += [f"v_cvt_pk_bf16_f32 v{u+4*q}, v{g+4*q}, v{g+4*q+1}", f"v_cvt_pk_bf16_f32 v{u+4*q+1}, v{g+4*q+2}, v{g+4*q+3}"]
            return out
        hwrite = lambda i: [f"ds_write_b64 v{vHW if i % 2 == 0 else vHW2}, {vr(acc(2*i+1, nt), 2)} offset:{nt*9*1024 + (i >> 1)*1024}" for nt in range(4)]
        xread = lambda s: [f"ds_read_b128 {vr(XB[s % 2]+4*nt, 4)}, v{vXr[s % 3]} offset:{nt*1024}" for nt in range(4)]
        dtouch = [f"""s_lshr_b32 s3, s2, 3
s_mul_i32 s3, s3, 18
s_mul_i32 s4, s{sXC}, 576
s_add_u32 s3, s3, s4
v_add_u32 v28, s3, v{vL}
v_mul_u32_u24 v28, 1152, v28
v_mov_b32 v29, {OOB}
v_cmp_gt_u32 vcc, 18, v{vL}
v_cndmask_b32 v28, v29, v28, vcc
s_lshl_b32 s3, s{sW}, 7
s_add_u32 s3, s3, 256
s_cmp_eq_u32 s{sW}, 7
s_cselect_b32 s3, {OOB}, s3""", (f"buffer_load_dword v26, v28, {S4(sD)}, s3 offen {TPOLD}", "touch")]
        NS = 16 if fuse else 18
        for s in range(NS):
            put(xread(s))
            for f in range(look): put(wread(s, f))
            dma = dmaX(s+2) + dmaW(s+2, not five) if s+2 < 18 else dmaB(s-16, five)
            if early and s == 0: dma = dmaW(2, not five) + [("s_nop 0\n" + xflag(sLN), "XQ")]
            if late1 == 2 and s == 0: dma = dmaW(1, not five) + dma
            if early and s == 1:
                spin(f"{name}_{P}y", xflag(sLN), f"v_cmp_eq_u32 vcc, 0, v{vQ}")
                dma = dmaX(2) + dma
            if not five: dma = dma + roll(s+ahead)
            if droll and five and dstage <= s < dstage+droll:
                dma = dma + [(f"s_add_u32 s94, s{sS1}, {(s-dstage)*(5184//droll)*128}\nbuffer_load_dword v28, v31, {S4(sD)}, s94 offen {TPOLD}", "touch")]
            if LP and five and istage <= s < istage+4:
                dma = dma + [(f"s_add_u32 s94, s{sPO}, {(5+s-istage)*8192}\nbuffer_store_dwordx4 v[28:31], v{vPO}, {S4(sP)}, s94 offen offset:{h*128} sc1", "I") for h in range(2)]
            seq = sum((mfa(s-1, f) for f in range(nf-nd, nf)), []) if s > 0 else []
            for f in range(nf-nd):
                extra = late[f*len(late)//(nf-nd):(f+1)*len(late)//(nf-nd)] if s == 17 else []
                seq += interleave(mfa(s, f), (wread(s, f+look) if f+look < nf else []) + extra)
            put(spread_in(seq, dma, spread if len(dma) < 8 else 2))
            if s == dstage and "notouch" not in abl and not droll and not depi: touch([sD], f"{name}_{P}td", 27)
            if depi == s and s > 1: put(dtouch)
            if ptouch and five and s == ptouch:
                k(f"""v_lshrrev_b32 v{vT0}, 2, v{vL}
s_lshl_b32 s3, s{sW}, 2
v_add_u32 v{vT0}, s3, v{vT0}
v_mul_u32_u24 v{vT0}, {9*16384 + 1024}, v{vT0}
v_and_b32 v{vT1}, 3, v{vL}
v_min_u32 v{vT1}, 2, v{vT1}
v_lshl_add_u32 v{vT0}, v{vT1}, 16, v{vT0}
v_mov_b32 v{vT1}, {OOB}
v_cmp_gt_u32 vcc, 16, v{vL}
v_cndmask_b32 v{vT0}, v{vT1}, v{vT0}, vcc""")
                k(f"buffer_load_dword v28, v{vT0}, {S4(sP)}, s{sRD} offen", tag="touch")
            if nl:
                el = f"buffer_load_dword v29, v{vT2}, {S4(sF)}, 0 offen sc1"
                if s == 3 and five:
                    k(f"s_cmp_eq_u32 s{sAct}, 0\ns_cbranch_scc1 {name}_rsig\ns_cmp_lg_u32 s{sW}, 0\ns_cbranch_scc1 {name}_rsig")
                    k.wait_vm("R2")
                    k(f"v_mov_b32 v{vT0}, 1\ns_mov_b32 s3, {F_E}\nbuffer_store_dword v{vT0}, v30, {S4(sF)}, s3 offen sc1\n{name}_rsig:")
                if s == 12:
                    k(f"s_and_b32 s3, s{sLN}, -128\ns_lshl_b32 s4, s{sRG}, 4\ns_add_u32 s3, s3, s4\ns_add_u32 s3, s3, {F_E}\nv_and_b32 v{vT2}, 3, v{vL}\nv_lshl_add_u32 v{vT2}, v{vT2}, 2, s3")
                    k(el)
                if s == 14:
                    spin(f"{name}_{P}e", el, "v_cmp_eq_u32 vcc, 0, v29")
                    k(f"s_lshl_b32 s3, s{sMT}, 9\ns_lshl_b32 s4, s{sRG}, 8\ns_add_u32 s3, s3, s4\ns_add_u32 s3, s3, {F_R}\nv_and_b32 v{vT2}, 0xf0, v{vDX}\nbuffer_load_dwordx4 v[28:31], v{vT2}, {S4(sF)}, s3 offen sc1")
            xl = f"buffer_load_dword v{vQ}, v{vZ}, {S4(sF)}, s{sF1} offen sc1"
            if LP and five and s == tstage:
                k.wait_vm("I")
                k(f"""v_lshrrev_b32 v{vT0}, 4, v{vL}
v_lshlrev_b32 v{vT0}, 13, v{vT0}
v_bfe_u32 v{vT1}, v{vL}, 1, 3
v_lshl_add_u32 v{vT0}, v{vT1}, 10, v{vT0}
v_and_b32 v{vT1}, 1, v{vL}
v_lshl_add_u32 v{vT0}, v{vT1}, 7, v{vT0}
s_add_u32 s3, s{sPO}, {5*8192}
v_mov_b32 v{vT1}, s{sLoc}""")
                k(f"buffer_load_dword v28, v{vT0}, {S4(sP)}, s3 offen", tag="touch")
                k(f"buffer_store_dword v{vT1}, v{vZ}, {S4(sF)}, s{sF1} offen sc1")
            if LP and not five and s == 13: k(xl)
            if LP and not five and s == 15:
                spin(f"{name}_xid", xl, f"v_cmp_eq_u32 vcc, 0, v{vQ}")
                k(f"v_readfirstlane_b32 s3, v{vQ}\ns_cmp_eq_u32 s3, s{sLoc}\ns_cselect_b32 s{sLoc}, {0 if 'remote' in abl else 1}, 0")
            k.wait_lg(); k.wait_vm(f"A{s+1}", "A17" if fuse and s == 15 else "-"); k("s_barrier")
        if fuse:
            n0 = 16*nf
            wj = lambda j: WR + 4*((n0+j) % 8)
            def rd(j):
                f, s = j >> 1, 16 + (j & 1); i, u = f >> 1, f & 1
                va = (vWA if i % 2 == 0 else vWB)[s % 3]; d = wj(j)
                return [f"ds_read_b64_tr_b16 v[{d+2*h}:{d+2*h+1}], v{va} offset:{h*4*576 + i*32 + u*18432}" for h in range(2)]
            def mm(f): return [f"{MF} {vr(acc(f, nt), 4)}, {vr(wj(2*f+c), 4)}, {vr(XB[c]+4*nt, 4)}, {vr(acc(f, nt), 4)}" for nt in range(4) for c in range(2)]
            put(xread(16))
            for j in range(4): put(rd(j))
            put(spread_in(sum((mfa(15, f) for f in range(nf-nd, nf)), []), dmaB(0, five), 2))
            put(xread(17))
            for f in range(nf):
                fill = (rd(2*f+4) + rd(2*f+5)) if f+2 < nf else []
                if f < 2: fill = fill + late[f*len(late)//2:(f+1)*len(late)//2]
                else:
                    gl = glu(f//2 - 1); fill = fill + gl[(f % 2)*len(gl)//2:(f % 2 + 1)*len(gl)//2]
                put(interleave(mm(f), fill))
            k.wait_lg(); k("s_barrier")
            st(7)
            put(dmaB(1, five))
            for i in range(nt5-1): put(hwrite(i))
            put(sel)
            put(glu(nt5-1)); put(hwrite(nt5-1))
        else:
            put(sum((mfa(17, f) for f in range(nf-nd, nf)), []))
            st(7)
            if depi == 1: put(dtouch)
            k("s_mov_b32 s4, 1.0\ns_mov_b32 s5, 1.0")
            if nl:
                for i in range(8): k(f"v_mov_b32 v{64+i}, v{28+(i >> 1)}")
            for i in range(nt5): put(glu(i)); put(hwrite(i))
            put(sel)
        if prio: k("s_setprio 0")
        k.wait_lg(); k.wait_vm("B0"); k("s_barrier")
        st(8); stb(0)
        if "dbl" in abl: k(f"s_cmp_eq_u32 s{sB}, 0\ns_mov_b32 s101, {288*1152}\ns_cselect_b32 s101, s101, {-288*1152}")
        if "cnt" in abl: k("s_mov_b32 s99, 0")
        HB = 112; AB = [80, 96]; WG = [28, 40, 52]; SD = 64
        def hreg(kp, nt): return HB + (kp*4+nt)*4
        def wgreg(gi, c): return WG[gi] + 4*c
        def wdread(u, gi):
            out = []
            for c in range(3):
                d = wgreg(gi, c); kp = gi*3+c
                out += [f"ds_read_b64_tr_b16 v[{d+2*h}:{d+2*h+1}], v{vWD[u % 4]} offset:{kp*4096 + h*2048}" for h in range(2)]
            return out
        def mfb(u, gi):
            out = []
            for nt in range(4):
                a = AB[u % 2]+4*nt
                for c in range(3):
                    out.append(f"{MF} {vr(a, 4)}, {vr(wgreg(gi, c), 4)}, {vr(hreg(gi*3+c, nt), 4)}, {'0' if gi == 0 and c == 0 else vr(a, 4)}")
            return out
        cvt = lambda u, h: [f"v_cvt_pk_bf16_f32 v{AB[u % 2]+8*h+q}, v{AB[u % 2]+8*h+2*q}, v{AB[u % 2]+8*h+2*q+1}" for q in range(4)]
        hread = lambda kp: [f"ds_read_b128 {vr(hreg(kp, nt), 4)}, v{vHR} offset:{(nt*9+kp)*1024}" for nt in range(4)]
        dmat = lambda t: (dmaB(2, five) + dmaB(3, five)) if t == 1 else (dmaB(t+2, five) if 2 <= t <= 6 else [])
        def phaseB_L():
            rounds = lambda ph: list(range(PH[ph-1]+1 if ph else 0, PH[ph]+1))
            TAG = lambda u: [0x1, 0x10000, 0x10001][(u+3)//4]
            alias = lambda u: 5 + (u-5) % 4
            def endslot(t):
                if t <= 7: k.wait_lg(); k.wait_vm(f"B{t+1}"); k("s_barrier")
                if t < 9: stb(t+1)
            arr_at = {c+4: ph for ph, c in enumerate(PH) if c+4 <= 9}
            tch_at = {t+1: ph for t, ph in arr_at.items() if t+1 <= 8 and ph < ntouch}
            if not five:
                def send(u):
                    lab = f"{name}_s{u}"
                    txt = f"s_add_u32 s3, s{sPO}, {alias(u)*8192}\n" + "\n".join(f"buffer_store_dwordx4 {vr(AB[u % 2]+8*h, 4)}, v{vPO}, {S4(sP)}, s3 offen offset:{h*128} POL" for h in range(2))
                    k(f"s_cmp_eq_u32 s{sLoc}, 0\ns_cbranch_scc1 {lab}_r")
                    q0 = k.seq
                    k(txt.replace("POL", ""))
                    k(f"s_branch {lab}_d\n{lab}_r:")
                    k.seq = q0
                    k(txt.replace("POL", "sc1"))
                    k.seq += 1
                    k(f"{lab}_d:")
                tag = lambda u, h: [f"s_mov_b32 s4, {TAG(u)}\nv_bfi_b32 v{AB[u % 2]+8*h}, v{vMK}, s4, v{AB[u % 2]+8*h}"]
                poll = lambda ph, tv: f"s_mov_b32 s3, {ph*32768}\nbuffer_load_dword v{tv}, v{vFL}, {S4(sF)}, s3 offen sc1"
                def check(ph, tv): spin(f"{name}_c{ph}", poll(ph, tv).split("\n")[1], f"s_mov_b32 s3, {ph*32768}\nv_cmp_eq_u32 vcc, 0, v{tv}")
                for t in range(9):
                    put(wdread(t, 0))
                    if t == 0:
                        for kp in range(3): put(hread(kp))
                        put(interleave(mfb(0, 0), wdread(0, 1) + hread(3)+hread(4)+hread(5)))
                        put(interleave(mfb(0, 1), wdread(0, 2) + hread(6)+hread(7)+hread(8)))
                    else:
                        d = mfb(t-1, 2)
                        put(d[:9]); put(interleave(d[9:], cvt(t-1, 0) + tag(t-1, 0)))
                        g0 = mfb(t, 0); g1 = mfb(t, 1)
                        put(interleave(g0[:3], wdread(t, 1)[:2] + cvt(t-1, 1) + tag(t-1, 1)))
                        send(t-1)
                        dm = dmat(t); h = (len(dm)+1)//2
                        put(spread_in(interleave(g0[3:], wdread(t, 1)[2:] + [""]*5), dm[:h], 2 if h <= 5 else 1))
                        put(spread_in(interleave(g1, wdread(t, 2) + [""]*6), dm[h:], 2 if h <= 5 else 1))
                        if t in tch_at:
                            ph = tch_at[t]; check(ph, 64)
                            if ph == 0: k(f"buffer_load_dword v65, v{vHT}, {S4(sH)}, 0 offen sc1", tag="touch")
                            rr = rounds(ph); assert len(rr) <= 4
                            k(f"s_cmp_lt_u32 s{sCG}, {len(rr)}\ns_cselect_b32 s3, s{sCG}, {OOB >> 13}\ns_add_u32 s3, s3, {rr[0]}\ns_lshl_b32 s3, s3, 13\nbuffer_load_dword v65, v{vTR}, {S4(sP)}, s3 offen sc1", tag="touch")
                    endslot(t)
                    if t+1 in tch_at: k(poll(tch_at[t+1], 64))
                first = len(tch_at)
                put(mfb(8, 2)); put(cvt(8, 0) + tag(8, 0) + cvt(8, 1) + tag(8, 1)); send(8)
                st(9)
                home = lambda r: (HB+16*r, HB+16*r+8, HB+16*r+12)
                def rloads(r):
                    RB, HV, DA = home(r)
                    for pg in range(2): k(f"s_add_u32 s3, s{sRD}, {r*8192 + pg*4*9*8192}\nbuffer_load_dwordx4 {vr(RB+4*pg, 4)}, v{vRD}, {S4(sP)}, s3 offen sc1")
                    k(f"s_movk_i32 s3, {r*2048}\nbuffer_load_dwordx2 {vr(HV, 2)}, v{vHO}, {S4(sH)}, s3 offen sc1")
                def rsum(r):
                    RB, HV, DA = home(r)
                    for pg in range(2): k(f"{MF} {vr(DA, 4)}, {vr(SEL, 4)}, {vr(RB+4*pg, 4)}, {'0' if pg == 0 else vr(DA, 4)}")
                    k(f"v_lshlrev_b32 v{RB}, 16, v{HV}\nv_and_b32 v{RB+1}, 0xffff0000, v{HV}\nv_lshlrev_b32 v{RB+2}, 16, v{HV+1}\nv_and_b32 v{RB+3}, 0xffff0000, v{HV+1}")
                def rfin(r):
                    RB, HV, DA = home(r)
                    for q in range(4): k(f"v_fma_f32 v{RB+q}, v{DA+q}, s{sLN}, v{RB+q}")
                    k(f"v_cvt_pk_bf16_f32 v{HV}, v{RB}, v{RB+1}\nv_cvt_pk_bf16_f32 v{HV+1}, v{RB+2}, v{RB+3}")
                rout = lambda r: k(f"buffer_store_dwordx2 {vr(home(r)[1], 2)}, v{vOO}, {S4(sO)}, 0 offen offset:{r*128} {OUTPOL}")
                pend = [r for ph in range(first) for r in rounds(ph)]
                for r in pend: rloads(r)
                for ph in range(first, len(PH)):
                    k(poll(ph, 64))
                    for r in pend: rsum(r)
                    for r in pend: rfin(r)
                    check(ph, 64)
                    for r in rounds(ph): rloads(r)
                    for r in pend: rout(r)
                    pend = rounds(ph)
                for r in pend: rsum(r)
                for r in pend: rfin(r); rout(r)
            else:
                sld = lambda u: f"s_add_u32 s3, s{sPO}, {alias(u)*8192}\n" + "\n".join(f"buffer_load_dwordx4 {vr(SD+4*h, 4)}, v{vPO}, {S4(sP)}, s3 offen offset:{h*128} sc1" for h in range(2))
                def add(u):
                    if "nol1chk" not in abl:
                        spin(f"{name}_k{u}", sld(u), f"s_mov_b32 s4, {TAG(u)}\nv_and_b32 v78, v{vMK}, v{SD}\nv_and_b32 v79, v{vMK}, v{SD+4}\nv_xor_b32 v78, s4, v78\nv_xor_b32 v79, s4, v79\nv_or_b32 v78, v78, v79\nv_cmp_ne_u32 vcc, 0, v78")
                    put([f"{MF} {vr(AB[u % 2]+8*h+4*q, 4)}, {vr(SK+2-2*q, 4)}, {vr(SD+4*h, 4)}, {vr(AB[u % 2]+8*h+4*q, 4)}" for h in range(2) for q in range(2)])
                pst = lambda u: [(f"s_add_u32 s3, s{sPO}, {u*8192}\nbuffer_store_dwordx4 {vr(AB[u % 2]+8*h, 4)}, v{vPO}, {S4(sP)}, s3 offen offset:{h*128} sc1", f"P{u}") for h in range(2)]
                def arrive1(ph):
                    k.wait_vm(f"P{PH[ph]}")
                    k(f"s_mov_b64 exec, 1\nds_add_rtn_u32 v7, v{vFL}, v{vFV} offset:{ph*4}\ns_mov_b64 exec, -1")
                def arrive2(ph):
                    k(f"v_readfirstlane_b32 s3, v7\ns_cmp_lg_u32 s3, 3\ns_cbranch_scc1 {name}_ar{ph}\ns_mov_b32 s3, {ph*32768}\nbuffer_store_dword v{vFV}, v{vFS}, {S4(sF)}, s3 offen sc1\n{name}_ar{ph}:")
                for kp in range(9): put(hread(kp))
                endslot(0)
                for t in range(1, 10):
                    u = t-1
                    put(wdread(u, 0))
                    if u >= 1: k(sld(u-1))
                    if u >= 2: put(pst(u-2))
                    if u >= 1: put(mfb(u-1, 2))
                    put(interleave(mfb(u, 0), wdread(u, 1) + [""]*6))
                    g1 = mfb(u, 1)
                    put(interleave(g1[:6], wdread(u, 2)))
                    if u >= 1:
                        add(u-1)
                        if t == 9: k(sld(8))
                        if t in arr_at: arrive1(arr_at[t])
                        put(g1[6:9])
                        put(interleave(g1[9:], cvt(u-1, 0) + cvt(u-1, 1)))
                        if t in arr_at: arrive2(arr_at[t])
                    else: put(g1[6:])
                    endslot(t)
                put(pst(7))
                put(mfb(8, 2)); add(8)
                st(9)
                p8 = pst(8)
                put(cvt(8, 0) + p8[:1] + cvt(8, 1) + p8[1:])
                for ph in range(len(arr_at), len(PH)): arrive1(ph); arrive2(ph)
        def phaseB_S():
            OWN = 73728
            pst = lambda u, h: (f"s_add_u32 s3, s{sPO}, {u*16384}\nbuffer_store_dwordx4 {vr(AB[u % 2]+8*h, 4)}, v{vPO}, {S4(sP)}, s3 offen offset:{h*128} sc1", f"P{u}")
            own = lambda u: [f"s_mov_b64 exec, s[{sEX}:{sEX+1}]\n" + "\n".join(f"ds_write_b128 v{vTR}, {vr(AB[u % 2]+8*h, 4)} offset:{u*1024+h*128}" for h in range(2)) + "\ns_mov_b64 exec, -1"] if skip else []
            epib = lambda u: cvt(u, 0) + [pst(u, 0)] + cvt(u, 1) + ([] if "half" in abl else [pst(u, 1)]) + own(u)
            def signal(ph):
                if five: k(f"s_cmp_lg_u32 s{sW}, 0\ns_cbranch_scc1 {name}_sig{ph}\ns_mov_b32 s3, {ph*32768}\nbuffer_store_dword v{vFV}, v{vFS}, {S4(sF)}, s3 offen sc1\n{name}_sig{ph}:")
            poll = lambda ph, tv: f"s_mov_b32 s3, {ph*32768}\nbuffer_load_dword v{tv}, v{vFL}, {S4(sF)}, s3 offen sc1"
            def check(ph, tv): spin(f"{name}_{P}c{ph}", poll(ph, tv).split("\n")[1], f"s_mov_b32 s3, {ph*32768}\n{notyet(tv)}")
            rounds = lambda ph: list(range(PH[ph-1]+1 if ph else 0, PH[ph]+1))
            mine = lambda rr: [r for r in rr if (r % 2 == 0) == five]
            sig_at = {c+lag+1: ph for ph, c in enumerate(PH) if c+lag+1 <= 8}
            rd_at = {u+1: ph for u, ph in sig_at.items() if u+1 <= 8 and ph < inl}
            inloop = [r for ph in rd_at.values() for r in rounds(ph)]
            assert not (nl and inloop)
            home = lambda r: (64, 6, 24) if r in inloop else (HB+24*(r >> 1), HB+24*(r >> 1)+16, HB+24*(r >> 1)+20)
            def rloads(r):
                RB, HV, DA = home(r); out = []
                for pg in range(2 if "half" in abl else 4):
                    ld = f"buffer_load_dwordx4 {vr(RB+4*pg, 4)}, v{vRD}, {S4(sP)}, s3 offen sc1"
                    if skip and pg == 0: ld = f"s_mov_b64 exec, 0xffff\nds_read_b128 {vr(RB, 4)}, v{vHT} offset:{r*1024}\ns_mov_b32 exec_hi, -1\ns_mov_b32 exec_lo, 0xffff0000\n{ld}\ns_mov_b64 exec, -1"
                    out.append(f"s_add_u32 s3, s{sRP+pg}, {r*16384}\n{ld}")
                out.append(f"s_movk_i32 s3, {r*2048}\nbuffer_load_dwordx2 {vr(HV, 2)}, v{vHO}, {S4(sH)}, s3 offen sc1")
                return out
            def rsum(r):
                RB, HV, DA = home(r)
                return [f"{MF} {vr(DA, 4)}, {vr(SEL, 4)}, {vr(RB+4*pg, 4)}, {'0' if pg == 3 else vr(DA, 4)}" for pg in (3, 2, 1, 0)]
            def rfin(r):
                RB, HV, DA = home(r)
                return [f"v_lshlrev_b32 v{RB}, 16, v{HV}", f"v_and_b32 v{RB+1}, 0xffff0000, v{HV}", f"v_lshlrev_b32 v{RB+2}, 16, v{HV+1}", f"v_and_b32 v{RB+3}, 0xffff0000, v{HV+1}"] + \
                       [f"v_fma_f32 v{RB+q}, v{DA+q}, {f'v{vSC}' if nl else f's{sLN}'}, v{RB+q}" for q in range(4)] + \
                       [f"v_cvt_pk_bf16_f32 v{HV}, v{RB}, v{RB+1}", f"v_cvt_pk_bf16_f32 v{HV+1}, v{RB+2}, v{RB+3}"]
            rout = lambda r: [f"buffer_store_dwordx2 {vr(home(r)[1], 2)}, v{vOO}, {S4(sO)}, 0 offen offset:{r*128} {OUTPOL}"]
            pend = []
            for u in range(9):
                put(wdread(u, 0))
                if u in sig_at: signal(sig_at[u])
                if u == 0:
                    for kp in range(3): put(hread(kp))
                    put(interleave(mfb(0, 0), wdread(0, 1) + hread(3)+hread(4)+hread(5)))
                    put(interleave(mfb(0, 1), wdread(0, 2) + hread(6)+hread(7)+hread(8)))
                    if nl: k(f"buffer_load_dword v{vSC}, v{vSC}, {S4(sF)}, 0 offen sc1")
                    if otouch: k(f"buffer_load_dword v19, v{vOO}, {S4(sO)}, 0 offen", tag="touch")
                else:
                    put(spread_in(mfb(u-1, 2), dmat(u), 2 if u > 1 and 'dbl' not in abl else 1))
                    put(interleave(mfb(u, 0), wdread(u, 1) + epib(u-1)))
                    g1 = mfb(u, 1); fill = []
                    if pend and u not in rd_at:
                        r = pend.pop(); g1 = g1[:6] + rsum(r) + g1[6:]; fill = [""]*8 + rfin(r) + rout(r)
                    elif u in rd_at and mine(rounds(rd_at[u])):
                        assert not pend and len(mine(rounds(rd_at[u]))) == 1
                        check(rd_at[u], 19); pend = mine(rounds(rd_at[u])); fill = rloads(pend[0])
                    put(interleave(g1[:6], wdread(u, 2))); put(interleave(g1[6:], fill) if fill else g1[6:])
                    if u == 8:
                        for ph in sig_at.values():
                            if ph not in rd_at.values(): k(poll(ph, 28+ph))
                if u < 8:
                    k.wait_lg(); k.wait_vm(f"B{u+1}", f"P{PH[sig_at[u+1]]}" if u+1 in sig_at else "-"); k("s_barrier")
                if u+1 in rd_at and mine(rounds(rd_at[u+1])): k(poll(rd_at[u+1], 19))
                if u < 9: stb(u+1)
            put(mfb(8, 2))
            st(9)
            put(epib(8))
            if nl: k(f"v_mul_f32 v{vSC}, s{sLN}, v{vSC}")
            tailph = list(range(len(sig_at), len(PH)))
            if sigfirst and len(tailph) > 1 and order == 0:
                for ph in tailph[:-1]:
                    k.wait_vm(f"P{PH[ph]}"); k("s_barrier"); signal(ph)
            for ph in sig_at.values():
                if ph in rd_at.values(): continue
                check(ph, 28+ph)
                if "tail" in abl: k("s_memrealtime s[62:63]")
                for r in mine(rounds(ph)): put(rloads(r)); pend.append(r)
            if sigfirst:
                for ph in (tailph if order else tailph[-1:]):
                    k.wait_lg(); k.wait_vm(f"P{PH[ph]}")
                    if "tail" in abl: k("s_memrealtime s[64:65]")
                    k("s_barrier")
                    if "tail" in abl: k("s_memrealtime s[66:67]")
                    signal(ph)
            for ph in tailph:
                if not sigfirst:
                    k.wait_lg(); k.wait_vm(f"P{PH[ph]}"); k("s_barrier"); signal(ph)
                if not mine(rounds(ph)): continue
                k(poll(ph, 19))
                done = list(pend) if sigfirst and ph == len(PH)-1 else pend[:1]
                for r in done: put(rsum(r)); put(rfin(r))
                check(ph, 19)
                if "tail" in abl: k("s_memrealtime s[68:69]")
                for r in mine(rounds(ph)): put(rloads(r)); pend.append(r)
                for r in done: put(rout(r)); pend.remove(r)
            for r in pend: put(rsum(r)); put(rfin(r)); put(rout(r))
        phaseB_L() if LP else phaseB_S()
        if stamp:
            k("s_waitcnt vmcnt(0) lgkmcnt(0)\ns_memrealtime s[4:5]\ns_waitcnt lgkmcnt(0)")
            for i in range(10): k(f"v_mov_b32 v{28+i}, s{60+2*i}")
            k(f"""v_mov_b32 v38, s4
v_mov_b32 v39, s99
s_lshl_b32 s3, s2, 3
s_add_u32 s3, s3, s{sW}
s_lshl_b32 s3, s3, 6
s_add_u32 s3, s3, {O_STAMP}
v_mov_b32 v40, s3
global_store_dwordx4 v40, v[28:31], s[6:7]
global_store_dwordx4 v40, v[32:35], s[6:7] offset:16
global_store_dwordx4 v40, v[36:39], s[6:7] offset:32""")
            if "orc" in abl and not five:
                X = int(abl.split("orc")[1][:3])/10; which = abl.split("orc")[1][3:4] or "a"
                k(f"""s_cmp_lg_u32 s2, 0
s_cbranch_scc1 {name}_noorc
s_cmp_lg_u32 s{sW}, 4
s_cbranch_scc1 {name}_noorc
v_mov_b32 v41, {O_STAMP + 262144}
global_load_dword v44, v41, s[6:7]
s_waitcnt vmcnt(0)
v_readfirstlane_b32 s3, v44
s_sub_u32 s3, s{4 if which == 'a' else 60+2*int(which)}, s3
s_cmp_lt_u32 s3, {int(X*100)}
s_cbranch_scc1 {name}_noorc
s_movk_i32 s3, 60
{name}_orcl:
s_sleep 64
s_sub_u32 s3, s3, 1
s_cbranch_scc0 {name}_orcl
{name}_noorc:""")
                k.saved.pop(f"{name}_orcl", None)
            if "until" in abl and not five:
                k(f"""s_cmp_lg_u32 s2, 0
s_cbranch_scc1 {name}_nount
s_cmp_lg_u32 s{sW}, 4
s_cbranch_scc1 {name}_nount
v_mov_b32 v41, {O_STAMP + 262144}
global_load_dword v44, v41, s[6:7]
s_waitcnt vmcnt(0)
v_readfirstlane_b32 s3, v44
{name}_untl:
s_memrealtime s[4:5]
s_waitcnt lgkmcnt(0)
s_sub_u32 s4, s4, s3
s_cmp_lt_u32 s4, 8000
s_cbranch_scc1 {name}_untl
{name}_nount:""")
                k.saved.pop(f"{name}_untl", None)
            if "dbg" in abl and not five:
                k(f"""s_cmp_lg_u32 s2, 0
s_cbranch_scc1 {name}_nodbg
s_cmp_lg_u32 s{sW}, 4
s_cbranch_scc1 {name}_nodbg
s_load_dwordx2 s[8:9], s[0:1], 64
v_mov_b32 v41, {O_STAMP + 262144}
global_load_dwordx4 v[44:47], v41, s[6:7]
global_load_dwordx4 v[48:51], v41, s[6:7] offset:16
v_mov_b32 v41, {O_STAMP + 2*262144}
global_load_dwordx4 v[52:55], v41, s[6:7]
global_load_dwordx4 v[56:59], v41, s[6:7] offset:16
s_waitcnt vmcnt(0) lgkmcnt(0)
s_sub_u32 s8, s8, {int(abl.split('dbg')[1][0])*512}
s_subb_u32 s9, s9, 0
v_sub_u32 v60, v46, v44
v_sub_u32 v61, v50, v44
v_sub_u32 v62, v52, v44
v_sub_u32 v63, v57, v44""")
                for i in range(11): k(f"v_sub_u32 v{64+i}, v{28+i}, v44")
                k(f"""v_mov_b32 v75, 12345
v_mov_b32 v41, 0
global_store_dwordx4 v41, v[60:63], s[8:9]
global_store_dwordx4 v41, v[64:67], s[8:9] offset:16
global_store_dwordx4 v41, v[68:71], s[8:9] offset:32
global_store_dwordx4 v41, v[72:75], s[8:9] offset:48
{name}_nodbg:""")
    k(f"s_cmp_ge_u32 s{sW}, 4\ns_cbranch_scc1 {name}_p4")
    path(True)
    k(f"s_endpgm\n{name}_p4:")
    path(False)
    k(f"{name}_end:")
    return k
```

```python
from asmlib import *
from layout import *
from pf import ws_srd
import struct
def fl(x): return "0x%08x" % struct.unpack("<I", struct.pack("<f", x))[0]
MF32 = "v_mfma_f32_16x16x32_bf16"
MF16 = "v_mfma_f32_16x16x16_bf16"

def stamp(k, on, i):
    if on: k(f"s_memrealtime s[{60+2*i}:{61+2*i}]")
def stamp_out(k, on, slot, wavereg, n):
    if not on: return
    k("s_waitcnt vmcnt(0)"); stamp(k, on, n)
    k("s_waitcnt lgkmcnt(0)")
    for i in range(8): k(f"v_mov_b32 v{8+i}, s{60+2*i}" if i <= n else f"v_mov_b32 v{8+i}, 0")
    k(f"""
s_lshl_b32 s3, s2, 3
s_add_u32 s3, s3, {wavereg}
s_lshl_b32 s3, s3, 5
s_add_u32 s3, s3, {O_STAMP + 262144*slot}
v_mov_b32 v16, s3
global_store_dwordx4 v16, v[8:11], s[6:7]
global_store_dwordx4 v16, v[12:15], s[6:7] offset:16
""")

def build_p1(st=False, FPOL="", P1PRIO=0, SELFPF=0, SIDEFIRST=0, TLB=0, XNT="", MERGE=0, NST=0, NPOL="", mono=None, NZ=3, CPF=1):
    NEXT = "pf_join" if mono else "pf_kernel" if MERGE else "p2_kernel"
    XL = 9216
    EX = 4*XL
    HB = 8192+6144
    WL = EX + HB
    k = mono or K("p1", 256, 512, lds=WL+33344, vgpr=136)
    if mono: st = False; assert MERGE and not NST
    END = "s_branch pf_join" if mono else "s_endpgm"
    END3 = "s_branch p1_bar3" if mono else "s_endpgm"
    sW, sS2, sJT, sHF, sTY = 30, 31, 32, 50, 51
    def nonce():
        if mono: k(f"v_mov_b32 v201, {O_FLG + F_N}\nglobal_load_dword v200, v201, s[6:7] sc1")
    stamp(k, st, 0)
    if SELFPF:
        k(f"""s_getpc_b64 s[4:5]
p1_pc0:
v_lshlrev_b32 v1, 7, v0
v_min_u32 v1, p1_code_end-p1_pc0-4, v1""")
        k("global_load_dword v19, v1, s[4:5]", tag="touch")
    k(f"""
s_setprio 3
s_load_dwordx4 s[44:47], s[0:1], 0
s_load_dwordx2 s[48:49], s[0:1], 16
s_load_dwordx2 s[6:7], s[0:1], 72
s_cmp_ge_u32 s2, 256
s_cbranch_scc1 {'pf_end' if mono else 'p1_end'}
v_lshrrev_b32 v1, 6, v0
v_and_b32 v0, 63, v0
v_readfirstlane_b32 s3, v1
{'s_mov_b32 s100, s3' if mono else ''}
{'s_mov_b32 s101, s2' if mono else ''}
v_lshrrev_b32 v2, 4, v0
v_and_b32 v3, 15, v0
s_and_b32 s{sW}, s3, 3
s_lshr_b32 s{sHF}, s3, 2
s_lshr_b32 s{sTY}, s2, 6
s_and_b32 s{sS2}, s2, 63
s_lshl_b32 s{sJT}, s{sTY}, 1
s_add_u32 s{sJT}, s{sJT}, s{sHF}
s_lshl_b32 s2, s{sJT}, 6
s_add_u32 s2, s2, s{sS2}
s_cmp_ge_u32 s{sJT}, 5
s_cbranch_scc1 p1_side
v_lshrrev_b32 v4, 3, v0
v_and_b32 v5, 7, v0
s_lshl_b32 s3, s{sW}, 9
s_add_u32 s3, s3, s{sS2}
v_lshl_add_u32 v6, v4, 6, s3
v_mul_u32_u24 v6, 1152, v6
v_lshlrev_b32 v4, 1, v4
v_and_b32 v4, 4, v4
v_xor_b32 v5, v5, v4
v_lshl_add_u32 v6, v5, 4, v6
s_mul_i32 s34, s{sW}, {XL}
s_waitcnt lgkmcnt(0)
""")
    srd(k, 8, 44, N_H)
    X, FR, FI, AF, AC, MA, TW, ON, SM = 20, 28, 46, 64, 100, 116, 124, 20, 28+0
    xl = lambda i: k(f"s_add_u32 m0, s34, {i*896}\nbuffer_load_dwordx4 v6, s[8:11], 0 offen offset:{i*128} {XNT} lds", tag="X")
    k(f"s_cmp_lg_u32 s{sHF}, 0\ns_cbranch_scc1 p1_x2")
    for i in range(5): xl(i)
    k(f"s_cmp_lg_u32 s{sTY}, 2\ns_cbranch_scc1 p1_x3\np1_x2:")
    for i in range(5, 9): xl(i)
    k("p1_x3:")
    nonce()
    k("s_setprio 0")
    ws_srd(k, 12, O_U, N_U)
    k(f"""
v_and_b32 v7, 3, v0
v_lshrrev_b32 v9, 2, v0
v_lshlrev_b32 v9, 3, v9
v_lshlrev_b32 v4, 5, v7
v_and_b32 v4, 64, v4
v_lshl_add_u32 v7, v7, 7, s34
v_xor_b32 v8, v9, v4
v_add_u32 v8, v8, v7
v_xor_b32 v5, 64, v8
v_lshrrev_b32 v4, 1, v2
v_lshl_add_u32 v5, v4, 10, v5
v_lshl_add_u32 v7, v4, 12, v8
s_lshl_b32 s3, s{sJT}, 4
v_add_u32 v13, s3, v3
v_cvt_f32_u32 v9, v13
v_lshlrev_b32 v11, 4, v0
s_mul_i32 s3, s{sHF}, {HB}
s_add_u32 s3, s3, {EX}
v_add_u32 v11, s3, v11
s_lshr_b32 s3, s{sW}, 1
s_lshl_b32 s3, s3, 10
s_and_b32 s4, s{sW}, 1
s_lshl_b32 s4, s4, 3
s_add_u32 s3, s3, s4
v_add_u32 v10, s3, v11
s_lshl_b32 s3, s{sW}, 9
s_add_u32 s3, s3, s{sS2}
v_lshl_add_u32 v12, v2, 7, s3
v_mul_u32_u24 v12, {ROWB}, v12
v_lshl_add_u32 v12, v13, 4, v12
v_cvt_f32_u32 v14, v2
v_mul_f32 v15, {fl(1/144)}, v9
v_mul_f32 v14, 4.0, v14
v_mul_f32 v16, v14, v15
""")
    t = 132
    k(f"""v_lshlrev_b32 v17, 31, v13
v_lshrrev_b32 v18, 16, v17
v_or_b32 v17, v17, v18
v_lshrrev_b32 v18, 1, v2
v_cvt_f32_u32 v18, v18
v_mul_f32 v18, 0x42800000, v18
v_fma_f32 v18, v18, v15, v16""")
    FL = 8192
    k(f"""s_lshl_b32 s3, s{sW}, 1
s_cmp_ge_u32 s{sW}, 2
s_cselect_b32 s4, 12, 0
s_add_u32 s4, s4, s3
v_cvt_f32_u32 v19, s4
v_fma_f32 v16, v19, v15, v16
s_and_b32 s3, s3, 2
v_cvt_f32_u32 v19, s3
v_fma_f32 v18, v19, v15, v18
s_lshl_b32 s4, s{sW}, 2
v_add_u32 v19, s4, v11
s_lshl_b32 s3, s3, 1
v_add_u32 v1, s3, v11""")
    for i, (c0, base) in enumerate(((0, 16), (32, 16), (64, 18))):
        k(f"v_fmamk_f32 v{t}, v15, {fl(float(c0))}, v{base}\nv_add_f32 v{t+1}, v{t}, v15")
        k(f"v_cos_f32 v{t+2}, v{t}\nv_cos_f32 v{t+3}, v{t+1}\nv_sin_f32 v{t}, v{t}\nv_sin_f32 v{t+1}, v{t+1}")
        k(f"v_cvt_pk_bf16_f32 v{FR+i}, v{t+2}, v{t+3}\nv_cvt_pk_bf16_f32 v{FI+i}, -v{t}, -v{t+1}")
        k(f"ds_write_b32 v{19 if i < 2 else 1}, v{FR+i} offset:{FL+i*2048}\nds_write_b32 v{19 if i < 2 else 1}, v{FI+i} offset:{FL+i*2048+1024}")
    k(f"v_mov_b32 v{TW}, 1.0\nv_mov_b32 v{TW+4}, 0")
    for q in range(1, 4):
        k(f"v_mul_f32 v{t}, {fl(q/576)}, v9\nv_cos_f32 v{TW+q}, v{t}\nv_sin_f32 v{TW+4+q}, v{t}")
    k(f"""
v_lshrrev_b32 v14, 1, v3
s_lshl_b32 s3, s{sW}, 3
v_add_u32 v14, s3, v14
v_lshl_add_u32 v15, v2, 6, s{sS2}
v_mul_u32_u24 v15, v14, v15
v_and_b32 v16, 1, v3
v_lshl_add_u32 v15, v16, 9, v15
v_cvt_f32_u32 v15, v15
v_mul_f32 v15, {fl(1/2048)}, v15
v_cvt_f32_u32 v14, v14
""")
    for kk in range(2):
        for tt in range(4):
            k(f"v_fmamk_f32 v{t}, v14, {fl((16*kk+4*tt)/32)}, v15\nv_cos_f32 v{t+1}, v{t}\nv_sin_f32 v{t}, v{t}\nv_cvt_pk_bf16_f32 v{MA+4*kk+tt}, v{t+1}, v{t}")
    k.wait_lg(); k("s_barrier")
    for c, Fb in enumerate((FR, FI)):
        for kk in range(2): k(f"ds_read_b128 {vr(Fb+4*kk, 4)}, v11 offset:{FL+kk*2048+c*1024}")
        k(f"ds_read_b64 {vr(Fb+16, 2)}, v11 offset:{FL+4096+c*1024}")
    for Fb in (FR, FI):
        for i in range(8): k(f"v_xor_b32 v{Fb+8+i}, v17, v{Fb+i}")
    k("v_mov_b32 v16, 0\nv_mov_b32 v17, 0")
    for i in range(4): k(f"v_mov_b32 v{ON+i}, 0x3f803f80")
    k(f"v_lshlrev_b32 v18, 4, v2")
    stamp(k, st, 1)
    if P1PRIO: k("s_setprio 1")
    k.wait_vm("X"); k("s_barrier")
    stamp(k, st, 2)
    for mu in range(2):
        for kk in range(5):
            for h in range(2 if kk < 4 else 1):
                d = AF+18*mu+4*kk+2*h
                va, blk = [(8, h), (8, 2+h), (5, 4+h), (5, 6+h), (7, 4)][kk]
                k(f"ds_read_b64_tr_b16 v[{d}:{d+1}], v{va} offset:{mu*512 + blk*1024}")
    mf = []; dots = []
    SX = 24
    for mu in range(2):
        for kk in range(5):
            for a, Fb in ((AC+8*mu, FR+4*kk), (AC+8*mu+4, FI+4*kk), ([24, 132][mu], ON)):
                if kk < 4: mf.append(f"{MF32} {vr(a, 4)}, {vr(AF+18*mu+4*kk, 4)}, {vr(Fb, 4)}, {'0' if kk == 0 else vr(a, 4)}")
                else: mf.append(f"{MF16} {vr(a, 4)}, {vr(AF+18*mu+16, 2)}, {vr(Fb, 2)}, {vr(a, 4)}")
        dots += [f"v_dot2_f32_bf16 v{16+mu}, v{AF+18*mu+i}, v{AF+18*mu+i}, v{16+mu}" for i in range(18)]
    dpp = "row_mask:0xf bank_mask:0xf"
    red = f"""v_permlane32_swap_b32 v16, v17
v_add_f32 v16, v16, v17
v_add_f32_dpp v16, v16, v16 quad_perm:[1,0,3,2] {dpp}
v_add_f32_dpp v16, v16, v16 quad_perm:[2,3,0,1] {dpp}
v_mov_b32 v17, v16
v_permlane16_swap_b32 v16, v17
v_add_f32 v16, v16, v17
ds_bpermute_b32 v14, v18, v16
ds_bpermute_b32 v15, v18, v16 offset:128""".split("\n")
    for x in interleave(mf[:24], dots) + interleave(mf[24:], red): k(x)
    stamp(k, st, 3)
    E = X
    p2 = lambda x: vr(x, 2)
    NEG = "neg_lo:[0,1] neg_hi:[0,1]"
    for mu in range(2):
        R, I = AC+8*mu, AC+8*mu+4
        T = AF+16*mu
        rr = f"v[{14+2*mu}:{15+2*mu}]"
        k(f"""
v_pk_mul_f32 {p2(T)}, {p2(TW)}, {p2(R)}
v_pk_mul_f32 {p2(T+2)}, {p2(TW+2)}, {p2(R+2)}
v_pk_mul_f32 {p2(T+4)}, {p2(TW)}, {p2(I)}
v_pk_mul_f32 {p2(T+6)}, {p2(TW+2)}, {p2(I+2)}
v_pk_fma_f32 {p2(T)}, {p2(TW+4)}, {p2(I)}, {p2(T)}
v_pk_fma_f32 {p2(T+2)}, {p2(TW+6)}, {p2(I+2)}, {p2(T+2)}
v_pk_fma_f32 {p2(T+4)}, {p2(TW+4)}, {p2(R)}, {p2(T+4)} neg_lo:[1,0,0] neg_hi:[1,0,0]
v_pk_fma_f32 {p2(T+6)}, {p2(TW+6)}, {p2(R+2)}, {p2(T+6)} neg_lo:[1,0,0] neg_hi:[1,0,0]
v_pk_add_f32 {p2(T+8)}, {p2(T)}, {p2(T+2)}
v_pk_add_f32 {p2(T+10)}, {p2(T+4)}, {p2(T+6)}
v_pk_add_f32 {p2(T+12)}, {p2(T)}, {p2(T+2)} {NEG}
v_pk_add_f32 {p2(T+14)}, {p2(T+4)}, {p2(T+6)} {NEG}""")
    k(f"""v_pk_add_f32 v[24:25], v[24:25], v[26:27]
v_pk_add_f32 v[132:133], v[132:133], v[134:135]
v_add_f32 v24, v24, v25
v_add_f32 v25, v132, v133
s_mov_b32 s4, {fl(1/576)}
s_mov_b32 s5, s4
v_pk_mul_f32 v[24:25], v[24:25], s[4:5]
v_pk_mul_f32 v[24:25], v[24:25], v[24:25]
v_pk_fma_f32 v[14:15], v[14:15], s[4:5], v[24:25] neg_lo:[0,0,1] neg_hi:[0,0,1]
v_max_f32 v14, 0, v14
v_max_f32 v15, 0, v15
v_add_f32 v14, {fl(1e-5)}, v14
v_add_f32 v15, {fl(1e-5)}, v15
v_rsq_f32 v16, v15
v_rsq_f32 v17, v15
v_rsq_f32 v15, v14
v_rsq_f32 v14, v14""")
    for mu in range(2):
        T = AF+16*mu
        rr = f"v[{14+2*mu}:{15+2*mu}]"
        k(f"""
v_pk_mul_f32 {p2(T+8)}, {p2(T+8)}, {rr}
v_pk_mul_f32 {p2(T+10)}, {p2(T+10)}, {rr}
v_pk_mul_f32 {p2(T+12)}, {p2(T+12)}, {rr}
v_pk_mul_f32 {p2(T+14)}, {p2(T+14)}, {rr}
v_add_f32 v{T}, v{T+8}, v{T+9}
v_add_f32 v{T+1}, v{T+10}, v{T+11}
v_add_f32 v{T+2}, v{T+12}, v{T+15}
v_sub_f32 v{T+3}, v{T+14}, v{T+13}
v_sub_f32 v{T+4}, v{T+8}, v{T+9}
v_sub_f32 v{T+5}, v{T+10}, v{T+11}
v_sub_f32 v{T+6}, v{T+12}, v{T+15}
v_add_f32 v{T+7}, v{T+14}, v{T+13}
""")
        for m in range(4): k(f"v_cvt_pk_bf16_f32 v{E+2*m+mu}, v{T+2*m}, v{T+2*m+1}")
    for m in range(4): k(f"ds_write_b64 v10, {vr(E+2*m, 2)} offset:{m*2048}")
    k.wait_lg(); k("s_barrier")
    stamp(k, st, 4)
    B = FR
    for m in range(4):
        for kk in range(2): k(f"ds_read_b128 {vr(B+8*m+4*kk, 4)}, v11 offset:{m*2048+kk*1024}")
    for kk in range(2):
        for m in range(4): k(f"{MF32} {vr(AC+4*m, 4)}, {vr(MA+4*kk, 4)}, {vr(B+8*m+4*kk, 4)}, {'0' if kk == 0 else vr(AC+4*m, 4)}")
    k(f"s_mov_b32 s3, {64*ROWB}")
    for a in range(2):
        for m in range(4): k(f"v_cvt_pk_bf16_f32 v{X+4*a+m}, v{AC+4*m+2*a}, v{AC+4*m+2*a+1}")
        if MERGE: k(f"v_and_b32 v{X+4*a}, -2, v{X+4*a}")
        k(f"buffer_store_dwordx4 {vr(X+4*a, 4)}, v12, s[12:15], {'s3' if a else '0'} offen sc1")
    stamp(k, st, 5)
    stamp_out(k, st, 1, f"s{sW}", 6)
    k(f"{END}\np1_side:")
    k(f"""
s_cmp_ge_u32 s2, 448
s_cbranch_scc1 p1_tab
s_sub_u32 s3, s2, 320
s_and_b32 s32, s3, 7
s_lshl_b32 s32, s32, 2
s_bfe_u32 s4, s3, 0x20003
s_add_u32 s32, s32, s4
s_lshr_b32 s31, s3, 5
s_lshl_b32 s3, s31, 9
s_add_u32 s33, s32, s3
s_and_b32 s3, s{sW}, 1
s_mul_i32 s4, s3, 138
s_cmp_eq_u32 s3, 0
s_cselect_b32 s34, 1, -1
v_lshrrev_b32 v4, 5, v0
v_lshl_add_u32 v6, v4, 5, s33
v_mul_lo_u32 v6, v6, s34
s_lshl_b32 s35, s34, 6
v_and_b32 v5, 1, v2
v_mul_u32_u24 v5, 288, v5
v_add_u32 v5, s4, v5
v_mov_b32 v12, {OOB}
v_lshlrev_b32 v7, 2, v2
v_and_b32 v7, 4, v7
v_sub_u32 v7, v3, v7
v_cmp_gt_u32 vcc, 11, v7
v_lshlrev_b32 v7, 4, v7
v_cndmask_b32 v12, v12, v7, vcc
s_movk_i32 s36, 578
s_mul_i32 s38, s{sW}, 8336
s_add_u32 s38, s38, {WL}
s_waitcnt lgkmcnt(0)
s_cmp_lt_u32 s{sW}, 2
s_cselect_b32 s8, s46, s48
s_cselect_b32 s9, s47, s49
s_mov_b32 s10, {N_WF}
s_mov_b32 s11, 0x20000
""")
    for i in range(8):
        k(f"""v_and_b32 v8, 2047, v6
v_mad_u32_u24 v8, v8, s36, v5
v_and_b32 v8, -16, v8
s_add_u32 m0, s38, {i*1040}
v_add_u32 v8, v8, v12
buffer_load_dwordx4 v8, s[8:11], 0 offen {FPOL} lds
v_add_u32 v6, s35, v6""", tag="W")
    nonce()
    stamp(k, st, 1)
    ws_srd(k, 16, O_WH, N_WH)
    k(f"""
v_lshrrev_b32 v4, 2, v3
s_lshl_b32 s3, s{sW}, 2
v_add_u32 v4, s3, v4
v_and_b32 v10, 3, v3
v_sub_u32 v13, 75, v4
v_cmp_gt_u32 vcc, 2, v10
v_cndmask_b32 v13, v13, v4, vcc
v_mov_b32 v14, 0xffffffe0
v_cndmask_b32 v14, v14, 32, vcc
v_bfrev_b32 v15, 1
v_cndmask_b32 v15, v15, 0, vcc
v_mov_b32 v16, 8336
v_cndmask_b32 v16, v16, 0, vcc
v_lshl_add_u32 v16, v13, 1, v16
v_mul_u32_u24 v17, 2080, v2
v_add_u32 v16, v16, v17
v_lshrrev_b32 v17, 1, v10
v_xor_b32 v17, v17, v10
v_and_b32 v17, 1, v17
v_mul_u32_u24 v17, 320, v17
v_add_u32 v16, v16, v17
v_sub_u32 v17, 5, s33
v_mov_b32 v18, s33
v_cndmask_b32 v17, v17, v18, vcc
v_lshlrev_b32 v17, 1, v17
v_and_b32 v17, 14, v17
v_add_u32 v84, v16, v17
v_add_u32 v84, {WL}, v84
v_or_b32 v11, v10, v4
v_cmp_eq_u32 s[40:41], 0, v11
s_mul_i32 s3, s32, 19
s_add_u32 s3, s3, s{sW}
s_lshl_b32 s3, s3, 12
s_lshl_b32 s4, s31, 10
s_add_u32 s37, s3, s4
v_lshlrev_b32 v93, 4, v0
""")
    k("s_barrier\ns_barrier")
    stamp(k, st, 2)
    k.wait_vm("W")
    stamp(k, st, 3)
    k("s_barrier")
    stamp(k, st, 4)
    for it in range(5):
        D0 = 20 + 12*it
        if it: k(f"v_add_u32 v84, v84, v14")
        for r in range(4): k(f"ds_read_u16 v{D0+r}, v84 offset:{(r >> 1)*1040 + (r & 1)*512}\nds_read_u16 v{D0+4+r}, v84 offset:{(r >> 1)*1040 + (r & 1)*512 + 16672}")
    k("v_cmp_lt_u32 vcc, 8, v4")
    for it in range(5):
        if it == 4: k(f"s_cmp_eq_u32 s{sW}, 3\ns_cbranch_scc1 p1_wend")
        D0 = 20 + 12*it
        for r in range(4): k(f"v_lshl_or_b32 v{D0+8+r}, v{D0+4+r}, 16, v{D0+r}\nv_xor_b32 v{D0+8+r}, v15, v{D0+8+r}")
        if it == 0:
            for r in range(4): k(f"v_cndmask_b32 v{D0+8+r}, v{D0+8+r}, 0, s[40:41]")
        if it == 4:
            for r in range(4): k(f"v_cndmask_b32 v{D0+8+r}, v{D0+8+r}, 0, vcc")
        k(f"buffer_store_dwordx4 {vr(D0+8, 4)}, v93, s[16:19], s37 offen sc1\ns_add_u32 s37, s37, 16384")
    k("p1_wend:")
    stamp(k, st, 5)
    stamp_out(k, st, 1, f"s{sW}", 6)
    k(f"{END}\np1_tab:")
    sc = 1.0/(S*D)
    k(f"""
s_cmp_ge_u32 s2, 464
s_cbranch_scc1 p1_pf
s_sub_u32 s3, s2, 448
s_lshl_b32 s3, s3, 2
s_add_u32 s31, s3, s{sW}
s_cmp_ge_u32 s31, 61
s_cbranch_scc1 {'p1_bar3' if mono else 'p1_end'}
s_lshr_b32 s32, s31, 2
s_and_b32 s33, s31, 3
s_mov_b32 s34, {fl(1/64)}
s_cmp_lt_u32 s31, 16
s_cbranch_scc1 p1_tabA
s_sub_u32 s3, s31, 16
s_mul_i32 s32, s3, 52
s_lshr_b32 s32, s32, 8
s_mul_i32 s4, s32, 5
s_sub_u32 s33, s3, s4
s_mov_b32 s34, {fl(1/144)}
p1_tabA:
s_lshl_b32 s32, s32, 4
s_lshl_b32 s33, s33, 4
v_add_u32 v4, s32, v3
v_lshl_add_u32 v5, v2, 2, s33
s_waitcnt lgkmcnt(0)
""")
    ws_srd(k, 8, O_TAB, N_TAB)
    for r in range(4):
        k(f"""
v_add_u32 v6, {r}, v5
v_mul_u32_u24 v7, v6, v4
v_cvt_f32_u32 v7, v7
v_mul_f32 v7, s34, v7
v_fract_f32 v7, v7
v_cos_f32 v8, v7
v_sin_f32 v9, v7
s_cmp_lt_u32 s31, 16
s_cbranch_scc1 p1_tabB{r}
v_mov_b32 v10, {fl(2*sc)}
v_mov_b32 v11, {fl(sc)}
v_cmp_eq_u32 vcc, 0, v6
v_cndmask_b32 v10, v10, v11, vcc
v_cmp_eq_u32 vcc, 72, v6
v_cndmask_b32 v10, v10, v11, vcc
v_cmp_gt_u32 vcc, 73, v6
v_cndmask_b32 v10, 0, v10, vcc
v_mul_f32 v8, v8, v10
v_mul_f32 v9, -v9, v10
p1_tabB{r}:
v_cvt_pk_bf16_f32 v{12+r}, v8, v9
""")
    k(f"v_lshlrev_b32 v4, 4, v0\ns_lshl_b32 s3, s31, 10\nbuffer_store_dwordx4 v[12:15], v4, s[8:11], s3 offen sc1\n{END3}\np1_pf:")
    CP0 = f"s_getpc_b64 s[4:5]\np1_pc:\ns_add_u32 s4, s4, {NEXT}-p1_pc\ns_addc_u32 s5, s5, 0\n" if CPF else ""
    CP1 = f"v_min_u32 v5, pf_code_end-{NEXT}-4, v5\nglobal_load_dword v6, v5, s[4:5]\n" if CPF else ""
    k(f"""
s_cmp_ge_u32 s2, 480
s_cbranch_scc1 {'p1_wpf' if NST else 'p1_bar3' if mono else 'p1_end'}
{CP0}s_lshl_b32 s3, s{sW}, 6
v_add_u32 v4, s3, v0
s_sub_u32 s3, s2, 464
s_lshr_b32 s3, s3, 3
s_lshl_b32 s3, s3, 15
v_lshl_add_u32 v5, v4, 7, s3
{CP1}s_waitcnt lgkmcnt(0)
""")
    if TLB:
        k(f"""s_load_dwordx4 s[36:39], s[0:1], 32
s_load_dwordx4 s[40:43], s[0:1], 48
v_lshlrev_b32 v12, {TLB}, v4
s_waitcnt lgkmcnt(0)""")
        ws_srd(k, 8, 0, O_P + N_P)
        for i in range((O_P + N_P + (256 << TLB) - 1)//(256 << TLB)):
            k(f"s_mov_b32 s3, {i*(256 << TLB)}\nbuffer_load_dword v13, v12, s[8:11], s3 offen", tag="touch")
        for b, n in ((36, N_W), (38, N_W), (40, N_W), (42, N_H)):
            srd(k, 8, b, n)
            k("buffer_load_dword v13, v12, s[8:11], 0 offen", tag="touch")
    if mono:
        k("p1_bar3:\ns_waitcnt lgkmcnt(0)")
        nonce()
        k("s_barrier\ns_barrier\ns_barrier")
        return k
    ws_srd(k, 8, O_FLG, N_ZERO)
    k(f"""
s_and_b32 s3, s2, 15
s_mul_i32 s3, s3, {NZ*4096}
v_lshlrev_b32 v4, 4, v4
v_mov_b32 v8, 0
v_mov_b32 v9, 0
v_mov_b32 v10, 0
v_mov_b32 v11, 0
""")
    for i in range(NZ): k(f"buffer_store_dwordx4 v[8:11], v4, s[8:11], s3 offen sc1\ns_add_u32 s3, s3, 4096")
    if NST:
        per = 36*NST; n = (per + 63)//64; ln = per//n
        assert ln*n == per
        k(f"""s_endpgm
p1_wpf:
s_load_dwordx4 s[36:39], s[0:1], 32
s_sub_u32 s3, s2, 480
s_lshr_b32 s4, s3, 3
s_and_b32 s5, s4, 1
s_lshl_b32 s5, s5, 2
s_add_u32 s5, s5, s{sW}
s_mul_i32 s5, s5, {per}
v_add_u32 v4, s5, v0
s_and_b32 s3, s3, 7
s_mul_i32 s33, s3, 1152
v_mov_b32 v7, {OOB}
v_cmp_gt_u32 vcc, {ln}, v0
s_waitcnt lgkmcnt(0)
s_cmp_lt_u32 s4, 2
s_cselect_b32 s8, s36, s38
s_cselect_b32 s9, s37, s39
s_mov_b32 s10, {N_W}
s_mov_b32 s11, 0x20000
s_barrier
s_barrier
s_barrier""")
        for i in range(n):
            k(f"""v_mul_u32_u24 v5, 7282, v4
v_lshrrev_b32 v5, 16, v5
v_mul_u32_u24 v6, 9, v5
v_sub_u32 v6, v4, v6
v_mul_u32_u24 v5, 9216, v5
v_lshl_add_u32 v5, v6, 7, v5
v_cndmask_b32 v5, v7, v5, vcc""")
            k(f"buffer_load_dword v8, v5, s[8:11], s33 offen {NPOL}", tag="touch")
            k(f"v_add_u32 v4, {ln}, v4")
    k(f"""p1_end:""")
    return k

def build_p2(st=False):
    k = K("p2", 608, 64, vgpr=160)
    stamp(k, st, 0)
    k(f"""
s_load_dwordx2 s[6:7], s[0:1], 72
s_cmp_ge_u32 s2, 608
s_cbranch_scc1 p2_end
s_lshr_b32 s3, s2, 3
s_mul_i32 s4, s3, 27
s_lshr_b32 s4, s4, 9
s_mul_i32 s5, s4, 19
s_sub_u32 s31, s3, s5
s_and_b32 s3, s2, 7
s_lshl_b32 s3, s3, 2
s_add_u32 s32, s3, s4
v_lshrrev_b32 v2, 4, v0
v_and_b32 v3, 15, v0
v_mul_u32_u24 v4, {4*ROWB}, v2
v_lshl_add_u32 v4, v3, 2, v4
v_lshlrev_b32 v5, 4, v0
s_mul_i32 s33, s32, {64*ROWB}
s_lshl_b32 s3, s31, 6
s_add_u32 s33, s33, s3
s_waitcnt lgkmcnt(0)
""")
    ws_srd(k, 8, O_U, N_U)
    B, B2, A, WH, XR, XI = 8, 24, 40, 104, 120, 136
    for T in range(4):
        if T: k(f"s_add_u32 s33, s33, {16*ROWB}")
        for r in range(4): k(f"buffer_load_dword v{B+4*T+r}, v4, s[8:11], s33 offen offset:{r*ROWB}")
    ws_srd(k, 12, O_TAB, N_TAB)
    for f in range(16):
        if f % 4 == 0: k(f"s_movk_i32 s3, {f*1024}")
        k(f"buffer_load_dwordx4 {vr(A+4*f, 4)}, v5, s[12:15], s3 offen offset:{(f % 4)*1024}")
    ws_srd(k, 16, O_WH, N_WH)
    k("s_mul_i32 s34, s32, 19\ns_add_u32 s34, s34, s31\ns_lshl_b32 s34, s34, 12")
    for T in range(4): k(f"buffer_load_dwordx4 {vr(WH+4*T, 4)}, v5, s[16:19], s34 offen offset:{T*1024}")
    k(f"""
v_mul_u32_u24 v6, {ROWB}, v3
v_lshl_add_u32 v6, v2, 4, v6
s_mul_i32 s35, s32, {64*ROWB}
s_lshl_b32 s3, s31, 6
s_add_u32 s35, s35, s3
s_brev_b32 s36, 1
s_mov_b32 s37, 0xffff0000
""")
    stamp(k, st, 1)
    for i in range(16): k(f"v_alignbit_b32 v{B2+i}, v{B+i}, v{B+i}, 16\nv_xor_b32 v{B2+i}, s36, v{B2+i}")
    stamp(k, st, 2)
    def fwd(Tp): return [f"{MF32} {vr(o+4*Tp, 4)}, {vr(A+16*Tp+4*T, 4)}, {vr(b+4*T, 4)}, {'0' if T == 0 else vr(o+4*Tp, 4)}" for T in range(4) for o, b in ((XR, B), (XI, B2))]
    D1, D2 = 152, B
    def filt(T):
        out = []
        for r in (0, 2):
            w = WH+4*T+r; xr, xi = XR+4*T+r, XI+4*T+r
            out += [f"v_lshlrev_b32 v152, 16, v{w}", f"v_lshlrev_b32 v153, 16, v{w+1}", f"v_and_b32 v154, s37, v{w}", f"v_and_b32 v155, s37, v{w+1}",
                    f"v_pk_mul_f32 v[156:157], {vr(xr, 2)}, v[152:153]", f"v_pk_mul_f32 v[158:159], {vr(xr, 2)}, v[154:155]",
                    f"v_pk_fma_f32 v[156:157], {vr(xi, 2)}, v[154:155], v[156:157] neg_lo:[1,0,0] neg_hi:[1,0,0]", f"v_pk_fma_f32 v[158:159], {vr(xi, 2)}, v[152:153], v[158:159]",
                    f"v_cvt_pk_bf16_f32 v{w}, v156, -v158", f"v_cvt_pk_bf16_f32 v{w+1}, v157, -v159", f"v_cvt_pk_bf16_f32 v{xr}, v158, v156", f"v_cvt_pk_bf16_f32 v{xr+1}, v159, v157"]
        return out
    for x in fwd(0): k(x)
    for Tp in range(1, 4):
        for x in interleave(fwd(Tp), filt(Tp-1)): k(x)
    for x in filt(3): k(x)
    stamp(k, st, 3)
    VR, VI = B, B2
    def inv(Tp): return [f"{MF32} {vr(o+4*Tp, 4)}, {vr(d+4*T, 4)}, {vr(A+16*Tp+4*T, 4)}, {'0' if T == 0 else vr(o+4*Tp, 4)}" for T in range(4) for o, d in ((VR, WH), (VI, XR))]
    def outp(Tp):
        return [f"v_cvt_pk_bf16_f32 v{XI+4*Tp+r}, v{VR+4*Tp+r}, v{VI+4*Tp+r}" for r in range(4)] + \
               [f"buffer_store_dwordx4 {vr(XI+4*Tp, 4)}, v6, s[8:11], s35 offen sc1\ns_add_u32 s35, s35, {16*ROWB}"]
    for x in inv(0): k(x)
    for Tp in range(1, 4):
        m = inv(Tp)
        for x in m[:3] + interleave(m[3:], outp(Tp-1)): k(x)
    for x in outp(3): k(x)
    stamp(k, st, 4)
    stamp_out(k, st, 2, "0", 5)
    k("p2_end:")
    return k


def column_task(k, o, sTile, sK1, sB, srd, vlane16, vL, shadow, between):
    D = f"s[{srd}:{srd+3}]"
    B, B2, A, WH, XR, XI, TP = (x+o for x in (8, 24, 40, 104, 120, 136, 152))
    k(f"""
v_lshrrev_b32 v2, 4, v{vL}
v_and_b32 v3, 15, v{vL}
v_mul_u32_u24 v4, {4*ROWB}, v2
v_lshl_add_u32 v4, v3, 2, v4
s_mul_i32 s{sB}, s{sK1}, {64*ROWB}
s_lshl_b32 s3, s{sTile}, 6
s_add_u32 s{sB}, s{sB}, s3
s_mov_b32 s{sB+1}, s{sB}
""")
    for T in range(4):
        if T: k(f"s_add_u32 s{sB}, s{sB}, {16*ROWB}")
        for r in range(4): k(f"buffer_load_dword v{B+4*T+r}, v4, {D}, s{sB} offen offset:{r*ROWB}")
    for f in range(16):
        if f % 4 == 0: k(f"s_mov_b32 s3, {O_TAB - O_U + f*1024}")
        k(f"buffer_load_dwordx4 {vr(A+4*f, 4)}, v{vlane16}, {D}, s3 offen offset:{(f % 4)*1024}")
    k(f"s_mul_i32 s3, s{sK1}, 19\ns_add_u32 s3, s3, s{sTile}\ns_lshl_b32 s3, s3, 12\ns_add_u32 s3, s3, {O_WH - O_U}")
    for T in range(4): k(f"buffer_load_dwordx4 {vr(WH+4*T, 4)}, v{vlane16}, {D}, s3 offen offset:{T*1024}")
    k(f"""
v_mul_u32_u24 v6, {ROWB}, v3
v_lshl_add_u32 v6, v2, 4, v6
s_brev_b32 s{sB+2}, 1
s_mov_b32 s{sB+3}, 0xffff0000
""")
    shadow()
    for i in range(16): k(f"v_alignbit_b32 v{B2+i}, v{B+i}, v{B+i}, 16\nv_xor_b32 v{B2+i}, s{sB+2}, v{B2+i}")
    between()
    def fwd(Tp): return [f"{MF32} {vr(q+4*Tp, 4)}, {vr(A+16*Tp+4*T, 4)}, {vr(b+4*T, 4)}, {'0' if T == 0 else vr(q+4*Tp, 4)}" for T in range(4) for q, b in ((XR, B), (XI, B2))]
    def filt(T):
        out = []; t = TP
        for r in (0, 2):
            w = WH+4*T+r; xr, xi = XR+4*T+r, XI+4*T+r
            out += [f"v_lshlrev_b32 v{t}, 16, v{w}", f"v_lshlrev_b32 v{t+1}, 16, v{w+1}", f"v_and_b32 v{t+2}, s{sB+3}, v{w}", f"v_and_b32 v{t+3}, s{sB+3}, v{w+1}",
                    f"v_pk_mul_f32 {vr(t+4, 2)}, {vr(xr, 2)}, {vr(t, 2)}", f"v_pk_mul_f32 {vr(t+6, 2)}, {vr(xr, 2)}, {vr(t+2, 2)}",
                    f"v_pk_fma_f32 {vr(t+4, 2)}, {vr(xi, 2)}, {vr(t+2, 2)}, {vr(t+4, 2)} neg_lo:[1,0,0] neg_hi:[1,0,0]", f"v_pk_fma_f32 {vr(t+6, 2)}, {vr(xi, 2)}, {vr(t, 2)}, {vr(t+6, 2)}",
                    f"v_cvt_pk_bf16_f32 v{w}, v{t+4}, -v{t+6}", f"v_cvt_pk_bf16_f32 v{w+1}, v{t+5}, -v{t+7}", f"v_cvt_pk_bf16_f32 v{xr}, v{t+6}, v{t+4}", f"v_cvt_pk_bf16_f32 v{xr+1}, v{t+7}, v{t+5}"]
        return out
    for x in fwd(0): k(x)
    for Tp in range(1, 4):
        for x in interleave(fwd(Tp), filt(Tp-1)): k(x)
    for x in filt(3): k(x)
    def inv(Tp): return [f"{MF32} {vr(q+4*Tp, 4)}, {vr(d+4*T, 4)}, {vr(A+16*Tp+4*T, 4)}, {'0' if T == 0 else vr(q+4*Tp, 4)}" for T in range(4) for q, d in ((B, WH), (B2, XR))]
    def outp(Tp):
        return [f"v_cvt_pk_bf16_f32 v{XI+4*Tp+r}, v{B+4*Tp+r}, v{B2+4*Tp+r}" for r in range(4)] + [f"v_or_b32 v{XI+4*Tp}, 1, v{XI+4*Tp}"] + \
               [f"buffer_store_dwordx4 {vr(XI+4*Tp, 4)}, v6, {D}, s{sB+1} offen sc1\ns_add_u32 s{sB+1}, s{sB+1}, {16*ROWB}"]
    for x in inv(0): k(x)
    for Tp in range(1, 4):
        m = inv(Tp)
        for x in m[:3] + interleave(m[3:], outp(Tp-1)): k(x)
    for x in outp(3): k(x)
```

```python
from asmlib import *
from layout import *
import struct
def fl(x): return "0x%08x" % struct.unpack("<I", struct.pack("<f", x))[0]
MF = "v_mfma_f32_16x16x32_bf16"
def ws_srd(k, d, off, nbytes, ws=6):
    k(f"s_add_u32 s{d}, s{ws}, {off}\ns_addc_u32 s{d+1}, s{ws+1}, 0\ns_mov_b32 s{d+2}, {nbytes}\ns_mov_b32 s{d+3}, 0x20000")
def srd_tail(k, d, nbytes): k(f"s_mov_b32 s{d+2}, {nbytes}\ns_mov_b32 s{d+3}, 0x20000")
S4 = lambda d: f"s[{d}:{d+3}]"


def build_pf(look=3, nd=2, spread=3, stamp=False, abl="", name="pf", OUTPOL="", WPOL="", DPOL="", TPOL="", dstage=11, safe=0, XPOL="sc1", TPOLD="", ahead=4,
             phases="478", lag=2, ntouch=0, prio="", fuse=0, pk=1, W2=1, mode="S", merge=1, ctouch="h", pair=0, spread4=0, sp0=0, upos=1, eprio=0, bprio=0, mono=0, gnap=0, p1o={}, NREPL=16, depi=17, droll=0, nl=0, wlate=1, sigfirst=1, order=0, ptouch=0, otouch=0, bulk=0, vprio=1, cprio=0, drain=1, ib2=1, nap=0, early=0, su3=0, w4p=0, late1=0, idlepf=1, inl=0, skip=1, lph="1358", istage=1, tstage=7):
    LP = mode == "L"
    PH = [int(c) for c in str(lph if LP else phases)]
    k = K(name, 256, 512, lds=163840, vgpr=256, sgpr=102)
    sG, sU, sD, sX, sP, sF, sS, sH, sO, sV, sI, sT = 8, 12, 16, 20, 24, 28, 32, 36, 40, 44, 48, 52
    sW, sMT, sSL, sRG = 56, 57, 58, 59
    sA, sKW, sKX, sM0a, sM0x, sM0s, sKD, sM0d, sPO, sCG, sRD, sLN, sLoc, sS1 = range(80, 94)
    sF1 = 96; sB = 97; sXC = 98
    vL, vDX, vD0, vD1, vD2, vT0, vT1, vT2 = range(8)
    vXr = [8, 9, 10]; vWA = [11, 12, 13]; vWB = [14, 15, 16]
    SLOT_A = [0, 45056, 90112]; RING_B = [0, 36864, 90112, 126976]; HH = 90112; OWN = 73728; WO = 8192
    wslot = lambda s: SLOT_A[s % 3]; xslot = wslot
    if pair:
        assert not (early or LP or fuse or bulk or nl or droll or late1)
        RING_B = [73728, 110592, 0, 36864]; HH = 0; OWN = 147456; WO = 0
        wslot = lambda s: (s % 4)*36864; xslot = lambda s: 147456 + (s & 1)*8192
        vWA = [13, 11]; vWB = [16, 14]
    vDD, vPO, vHW = 17, 18, 19
    vWD = [20, 21, 22, 23]
    vHR, vHW2, vZ, vQ = 24, 25, 26, 27
    def stb(i):
        if stamp and "bst" in abl: k(f"s_memrealtime s[{60+2*i}:{61+2*i}]")
    def st(i):
        if stamp and "clk" in abl:
            if i >= 6: k(f"s_memrealtime s[{60+2*i}:{61+2*i}]\ns_memtime s[{60+2*(i-5)}:{61+2*(i-5)}]")
            elif i == 0: k("s_memrealtime s[60:61]")
            return
        if stamp and "bst" not in abl: k(f"s_memrealtime s[{60+2*i}:{61+2*i}]")
    def put(items):
        for x in items:
            t = x[0] if isinstance(x, tuple) else x
            if "nodma" in abl and " lds" in t and x[1] not in ("A0", "A1"): continue
            if "nop2" in abl and "buffer_store" in t and isinstance(x, tuple) and x[1].startswith("P"): continue
            if "nomfma" in abl and "v_mfma" in t: continue
            if isinstance(x, tuple): k(x[0], tag=x[1])
            else: k(x)
    def spin(lab, load, cond, nap=0):
        bound = f"s_sub_u32 s5, s5, 1\ns_cbranch_scc1 {lab}_ok\n" if safe else ""
        k(f"{cond}\ns_cbranch_vccz {lab}_ok\n{f's_mov_b32 s5, {20000 if safe == 1 else 4000000}' if safe else ''}\n{lab}_spin:\n{'s_add_u32 s99, s99, 1' if 'cnt' in abl else ''}\n{bound}{f's_sleep {nap}' if nap else ''}\n{load}\ns_waitcnt vmcnt(0)\n{cond}\ns_cbranch_vccnz {lab}_spin\n{lab}_ok:")
        k.saved.pop(lab + "_spin", None)
    st(0)
    sNC = 0 if mono else None
    FV = f"s{sNC}" if mono else "1"
    notyet = lambda v: f"v_cmp_ne_u32 vcc, s{sNC}, v{v}" if mono else f"v_cmp_eq_u32 vcc, 0, v{v}"
    if mono:
        assert not (early or nl or droll or LP)
        from fft import build_p1
        build_p1(MERGE=1, mono=k, **p1o)
        k(f"""{name}_join:
s_setprio 0
s_mov_b32 s2, s101
s_mov_b32 s{sW}, s100""")
    k(f"""
{'' if mono else 's_load_dwordx2 s[6:7], s[0:1], 72'}
s_load_dwordx2 s[{sG}:{sG+1}], s[0:1], 32
s_load_dwordx2 s[{sU}:{sU+1}], s[0:1], 40
s_load_dwordx2 s[{sI}:{sI+1}], s[0:1], 0
s_load_dwordx2 s[{sD}:{sD+1}], s[0:1], 48
s_load_dwordx2 s[{sO}:{sO+1}], s[0:1], 56""")
    if not mono: k(f"""s_cmp_ge_u32 s2, 256
s_cbranch_scc1 {name}_end
v_lshrrev_b32 v{vT0}, 6, v0
v_and_b32 v{vL}, 63, v0
v_readfirstlane_b32 s{sW}, v{vT0}""")
    k(f"""
s_lshr_b32 s3, s2, 3
s_and_b32 s{sMT}, s3, 15
s_lshr_b32 s{sB}, s3, 4
s_and_b32 s{sXC}, s2, 7
s_lshl_b32 s4, s{sXC}, 1
s_add_u32 s{sSL}, s4, s{sB}
v_lshlrev_b32 v{vDX}, 4, v{vL}
v_mov_b32 v{vZ}, 0
v_mov_b32 v37, 0
v_mov_b32 v2, 0
v_mov_b32 v3, 0
v_mov_b32 v4, 0
v_mov_b32 v47, 0
v_mov_b32 v30, 0
""")
    o = 32
    R = lambda n: n + o
    sS2, sNT, sVB, sXO, sSO = 99, sB, 100, 101, (96 if early else sRD)
    assert not (early and LP)
    sAct = 92
    L, MB_, AC, TW, G, XX = R(16), R(48), R(64), R(96), R(120), R(160)
    EZ = 90112; ES = EZ + 20480
    g_, n_, vVA, vHS, vRow, vXo, vEW, vSW, vSR = R(2), R(3), R(4), R(5), R(6), R(7), R(9), R(14), R(15)
    t0, t1, t2, t3 = R(10), R(11), R(12), R(13)
    assert merge
    NV = O_TAB - O_U + N_TAB
    vloads = "\n".join(f"s_add_u32 s3, s{sVB}, {(16*kk+t)*64*ROWB}\nbuffer_load_dwordx4 {vr(L+16*kk+4*t, 4)}, v{vVA}, {S4(sV)}, s3 offen sc1" for kk in range(2) for t in range(4))
    k(f"""
s_and_b32 s3, s{sXC}, 3
s_lshl_b32 s{sS2}, s{sMT}, 2
s_add_u32 s{sS2}, s{sS2}, s3
s_lshr_b32 s3, s{sXC}, 2
s_and_b32 s4, s{sMT}, 1
s_cmp_eq_u32 s3, s4
s_cselect_b32 s{sAct}, 1, 0
s_lshl_b32 s3, s{sB}, 3
s_lshr_b32 s4, s{sMT}, 1
s_add_u32 s81, s3, s4
s_waitcnt lgkmcnt(0)
""")
    ws_srd(k, sV, O_V, NV)
    if mono:
        ws_srd(k, sF, O_FLG, N_FLG)
        gl = f"buffer_load_dwordx4 v[8:11], v{vDX}, {S4(sF)}, s94 offen sc1"
        k(f"""v_readfirstlane_b32 s{sNC}, v200
s_add_u32 s{sNC}, s{sNC}, 1
s_lshl_b32 s3, s2, 2
v_lshl_add_u32 v{vT0}, v{vL}, 10, s3
v_mov_b32 v{vT1}, {OOB}
v_cmp_gt_u32 vcc, {NREPL}, v{vL}
v_cndmask_b32 v{vT0}, v{vT1}, v{vT0}, vcc
v_mov_b32 v{vT1}, s{sNC}
s_lshr_b32 s3, s2, 3
s_and_b32 s3, s3, {NREPL-1}
s_lshl_b32 s3, s3, 10
s_add_u32 s94, s3, {F_G}
s_mov_b32 s3, {F_G}
s_waitcnt vmcnt(0)
s_barrier""")
        st(1)
        k(f"""s_cmp_lg_u32 s{sW}, 7
s_cbranch_scc1 {name}_j2
buffer_store_dword v{vT1}, v{vT0}, {S4(sF)}, s3 offen sc1
{gl}""")
        spin(f"{name}_g", gl, f"v_xor_b32 v8, s{sNC}, v8\nv_xor_b32 v9, s{sNC}, v9\nv_xor_b32 v10, s{sNC}, v10\nv_xor_b32 v11, s{sNC}, v11\nv_or3_b32 v8, v8, v9, v10\nv_or_b32 v8, v8, v11\nv_cmp_ne_u32 vcc, 0, v8", gnap)
        k(f"""s_cmp_lg_u32 s2, 0
s_cbranch_scc1 {name}_j2
s_mov_b32 s3, {F_N}
buffer_store_dword v{vT1}, v{vZ}, {S4(sF)}, s3 offen sc1
{name}_j2:
s_barrier""")
    def common_setup():
        k(f"""
v_lshrrev_b32 v{g_}, 4, v{vL}
v_and_b32 v{n_}, 15, v{vL}
s_lshl_b32 s3, s{sW}, 4
v_add_u32 v{vVA}, s3, v{n_}
v_lshlrev_b32 v{vVA}, 4, v{vVA}
v_mul_u32_u24 v{t0}, {4*64*ROWB}, v{g_}
v_add_u32 v{vVA}, v{vVA}, v{t0}
s_mul_i32 s{sVB}, s{sS2}, {ROWB}
s_lshl_b32 s3, s{sNT}, 4
v_add_u32 v{vRow}, s3, v{n_}
v_lshl_add_u32 v{vRow}, v{vRow}, 6, s{sS2}
v_mul_u32_u24 v{vXo}, 1152, v{vRow}
v_lshl_add_u32 v{vXo}, v{g_}, 5, v{vXo}
s_lshl_b32 s{sXO}, s{sW}, 7
""")
        srd_tail(k, sI, N_H); ws_srd(k, sT, O_TAB, N_TAB)
        ws_srd(k, sX, O_XF, N_XF); ws_srd(k, sH, O_H, N_H); ws_srd(k, sF, O_FLG, N_FLG)
        for d in (sG, sU, sD): srd_tail(k, d, N_W)
        srd_tail(k, sO, N_H)
        ws_srd(k, sP, O_P, N_P)
        k(f"s_bitcmp0_b32 s{sW}, 1\ns_cselect_b32 s{sS}, s{sG}, s{sU}\ns_cselect_b32 s{sS+1}, s{sG+1}, s{sU+1}")
        srd_tail(k, sS, N_W)
    def pattern(vd):
        k(f"""
s_lshl_b32 s4, s3, 6
v_add_u32 v{vT0}, s4, v{vL}
v_mul_u32_u24 v{vT1}, 1821, v{vT0}
v_lshrrev_b32 v{vT1}, 16, v{vT1}
v_mul_u32_u24 v{vT2}, 36, v{vT1}
v_sub_u32 v{vT0}, v{vT0}, v{vT2}
v_lshrrev_b32 v{vT2}, 2, v{vT1}
v_and_b32 v{vT2}, 2, v{vT2}
v_xor_b32 v{vT0}, v{vT0}, v{vT2}
v_lshlrev_b32 v{vT0}, 4, v{vT0}
v_and_b32 v{vT2}, 24, v{vT1}
v_add_u32 v{vT1}, v{vT1}, v{vT2}
v_mul_u32_u24 v{vT1}, 9216, v{vT1}
v_add_u32 v{vd}, v{vT0}, v{vT1}
""")
    def mlp_setup():
        k(f"s_and_b32 s{sRG}, s{sW}, 1\ns_bfe_u32 s{sA}, s{sW}, 0x10001\n{'s_and_b32' if LP else 's_lshr_b32'} s{sCG}, s{sW}, {3 if LP else 1}")
        k(f"s_lshl_b32 s3, s{sW}, 1"); pattern(vD0)
        k(f"s_add_u32 s3, s3, 1"); pattern(vD1)
        k(f"s_add_u32 s3, s{sRG}, 16"); pattern(vD2)
        k(f"""
s_mul_i32 s{sKW}, s{sSL}, 576
s_lshl_b32 s3, s{sMT}, 3
s_add_u32 s3, s3, s{sW}
s_mul_i32 s{sKX}, s3, 18432
s_lshl_b32 s{sM0x}, s{sW}, 10
s_lshl_b32 s{sM0a}, s{sW}, 11
s_add_u32 s{sM0a}, s{sM0a}, {WO}
s_mul_i32 s3, s{sA}, 18432
s_lshl_b32 s4, s{sRG}, 10
s_add_u32 s3, s3, s4
s_add_u32 s{sM0s}, s3, {WO+16*1024}
""")
    def dmaX(s):
        return [(f"s_add_u32 m0, s{sM0x}, {xslot(s)}\ns_add_u32 s94, s{sKX}, {s*1024}\nbuffer_load_dwordx4 v{vDX}, {S4(sX)}, s94 offen {XPOL} lds", f"A{s}")]
    def dmaW(s, six):
        o = wslot(s)
        g = [f"s_add_u32 m0, s{sM0a}, {o}\ns_add_u32 s95, s{sKW}, {((s >> 1)*64 + (s & 1)*8)*9216}\nbuffer_load_dwordx4 v{vD0}, {S4(sG)}, s95 offen {WPOL} lds",
             f"s_add_u32 m0, s{sM0a}, {o+1024}\nbuffer_load_dwordx4 v{vD1}, {S4(sG)}, s95 offen {WPOL} lds",
             f"s_add_u32 m0, s{sM0a}, {o+18432}\nbuffer_load_dwordx4 v{vD0}, {S4(sU)}, s95 offen {WPOL} lds",
             f"s_add_u32 m0, s{sM0a}, {o+18432+1024}\nbuffer_load_dwordx4 v{vD1}, {S4(sU)}, s95 offen {WPOL} lds"]
        if six: g.append(f"s_add_u32 m0, s{sM0s}, {o}\nbuffer_load_dwordx4 v{vD2}, {S4(sS)}, s95 offen {WPOL} lds")
        return [(x, f"A{s}") for x in g]
    def dmaB(u, five):
        o = RING_B[u % 4]
        if LP and five: return []
        if "dbl" in abl:
            return [(f"s_add_u32 m0, s{sM0d}, {o+i*1024}\ns_add_u32 s94, s{sKD}, {i*8*1152+u*128}\n{'s_xor_b32 s94, s94, 0' if q == 0 else 's_add_u32 s94, s94, s101'}\nbuffer_load_dwordx4 v{vDD}, {S4(sD)}, s94 offen {DPOL} lds", f"B{u}") for q in range(2) for i in range(4 if five else 5)]
        return [(f"s_add_u32 m0, s{sM0d}, {o+i*1024}\ns_add_u32 s94, s{sKD}, {i*8*1152+u*128}\nbuffer_load_dwordx4 v{vDD}, {S4(sD)}, s94 offen {DPOL} lds", f"B{u}") for i in range(9 if LP else 4 if five else 5)]
    def first_w(lab, only=None):
        for s in (only or ((0,) if late1 else (0, 1))):
            put(dmaW(s, False))
            k(f"s_cmp_lt_u32 s{sW}, 4\ns_cbranch_scc1 {lab}{s}")
            put(dmaW(s, True)[4:])
            k(f"{lab}{s}:")
    def bulk_w():
        k(f"s_sub_u32 s3, s{sW}, 5\ns_mul_i32 s3, s3, 6\ns_lshl_b32 s5, s3, 10\ns_add_u32 s5, s5, 8192\ns_add_u32 s95, s{sKW}, {8*9216}")
        for i in range(6):
            pattern(t0)
            for s_, so in ((0, sKW), (1, 95))[:1 if bulk == 2 else 2]:
                for m, d in enumerate((sG, sU)):
                    k(f"s_add_u32 m0, s5, {SLOT_A[s_] + m*18432 + i*1024}\nbuffer_load_dwordx4 v{t0}, {S4(d)}, s{so} offen {WPOL} lds", tag="A0")
            k("s_add_u32 s3, s3, 1")
    def rest_loads(lab):
        k(f"buffer_load_dwordx4 {vr(XX, 4)}, v{vXo}, {S4(sI)}, s{sXO} offen\nbuffer_load_dwordx4 {vr(XX+4, 4)}, v{vXo}, {S4(sI)}, s{sXO} offen offset:16")
        k(f"s_mul_i32 s3, s{sW}, 5120\ns_add_u32 s3, s3, 16384\ns_add_u32 s4, s3, 4096")
        for f in range(5): k(f"buffer_load_dwordx4 {vr(G+4*f, 4)}, v{vDX}, {S4(sT)}, s{3+f//4} offen offset:{(f % 4)*1024}")
        k(f"s_cmp_lg_u32 s{sW}, {W2}\ns_cbranch_scc1 {lab}")
        k(f"buffer_load_dwordx4 {vr(XX+8, 4)}, v{vXo}, {S4(sI)}, 0 offen offset:1024\nbuffer_load_dwordx4 {vr(XX+12, 4)}, v{vXo}, {S4(sI)}, 0 offen offset:1040")
        k(f"s_mov_b32 s3, {(16+40)*1024}\ns_mov_b32 s4, {(16+44)*1024}")
        for f in range(5): k(f"buffer_load_dwordx4 {vr(G+20+4*f, 4)}, v{vDX}, {S4(sT)}, s{3+f//4} offen offset:{(f % 4)*1024}")
        k(f"{lab}:")
    def matrices():
        k(f"""
v_cvt_f32_u32 v{t0}, v{vRow}
v_mul_f32 v{t0}, {fl(1/2048)}, v{t0}
v_cvt_f32_u32 v{t1}, v{g_}
v_mul_f32 v{t1}, 4.0, v{t1}
v_mul_f32 v{vEW}, v{t0}, v{t1}
""")
        for kk in range(2):
            for t in range(4):
                k(f"""v_fmamk_f32 v{t2}, v{t0}, {fl(float(16*kk+t))}, v{vEW}
v_cos_f32 v{t3}, v{t2}
v_sin_f32 v{t2}, v{t2}
v_cvt_pk_bf16_f32 v{MB_+4*kk+t}, v{t3}, -v{t2}
v_cvt_pk_bf16_f32 v{MB_+8+4*kk+t}, v{t2}, v{t3}""")
        tw = [f"s_lshl_b32 s3, s{sW}, 4", f"v_cvt_f32_u32 v{t0}, s3", f"v_add_f32 v{t1}, v{t1}, v{t0}"]
        for r in range(4):
            if r: tw.append(f"v_add_f32 v{t1}, 1.0, v{t1}")
            for q in range(1, 4):
                tw += [f"v_mul_f32 v{t2}, {fl(q/576)}, v{t1}", f"v_cos_f32 v{TW+8*(q-1)+r}, v{t2}", f"v_sin_f32 v{TW+8*(q-1)+4+r}, v{t2}"]
        return tw
    sSU = 96
    if merge:
        from fft import column_task
        k(f"""s_mov_b32 s{sSU}, 0
s_cmp_eq_u32 s{sAct}, 0
s_cbranch_scc1 {name}_qi
s_lshl_b32 s3, s81, 1
s_sub_u32 s4, s{sW}, 5
s_add_u32 s3, s3, s4
s_cmp_lt_u32 s4, 2
s_cbranch_scc1 {name}_col
s_cmp_lt_u32 s{sW}, 5
s_cbranch_scc0 {name}_nocol""")
        common_setup()
        put(matrices())
        k(f"""v_cmp_le_u32 vcc, 12, v{n_}
s_cmp_eq_u32 s{sW}, 4
s_cselect_b64 vcc, vcc, 0
v_cndmask_b32 v{vHS}, 0, 1, vcc
s_barrier""")
        rest_loads(f"{name}_rl3")
        k(f"s_barrier")
        if not mono: st(1)
        if vprio: k(f"s_and_b32 s3, s{sW}, 3\ns_cmp_lg_u32 s3, 0\ns_cbranch_scc1 {name}_vp\ns_setprio 2\n{name}_vp:")
        k(vloads)
        chk = "\n".join([f"v_and_b32 v{t0}, v{L}, v{L+4}"] + [f"v_and_b32 v{t0}, v{t0}, v{L+4*i}" for i in range(2, 8)] + [f"v_or_b32 v{t0}, v{t0}, v{vHS}", f"v_and_b32 v{t0}, 1, v{t0}", f"v_cmp_eq_u32 vcc, 0, v{t0}"])
        spin(f"{name}_v", vloads, chk, nap)
        if bulk == 2: k("s_barrier")
        k(f"""s_branch {name}_doA
{name}_qi:
s_mul_i32 s3, s81, 3
s_add_u32 s3, s3, s{sW}
s_add_u32 s3, s3, 32
s_cmp_ge_u32 s{sW}, 3
s_cbranch_scc1 {name}_nocol
s_cmp_ge_u32 s3, 76
s_cbranch_scc1 {name}_nocol
{name}_col:
s_mul_i32 s4, s3, 27
s_lshr_b32 s4, s4, 9
s_mul_i32 s5, s4, 19
s_sub_u32 s81, s3, s5
s_lshl_b32 s3, s{sXC}, 2
s_add_u32 s82, s3, s4""")
        if cprio: k(f"s_setprio {cprio}")
        column_task(k, 48, 81, 82, 83, sV, vDX, vL, common_setup, lambda: (None if mono else st(1), k("s_barrier")))
        st(2)
        if cprio: k("s_setprio 0")
        if drain: k("s_waitcnt vmcnt(0)")
        if ib2: k(f"s_barrier\ns_cmp_eq_u32 s{sAct}, 0\ns_cbranch_scc1 {name}_fin")
        else: k(f"s_cmp_eq_u32 s{sAct}, 0\ns_cbranch_scc1 {name}_fin\ns_barrier")
        mlp_setup()
        k(f"s_mov_b32 s{sSU}, 1")
        rest_loads(f"{name}_rl4")
        k(f"s_branch {name}_bulk\n{name}_nocol:")
        common_setup()
        mlp_setup()
        k(f"s_mov_b32 s{sSU}, 1\ns_barrier\ns_cmp_eq_u32 s{sAct}, 0\ns_cbranch_scc1 {name}_ib")
        rest_loads(f"{name}_rl1")
        k(f"s_barrier\n{name}_bulk:")
        if bulk == 2: k("s_barrier")
        if bulk: bulk_w()
        k(f"s_branch {name}_noA\n{name}_ib:\n{'s_barrier' if ib2 else ''}\ns_branch {name}_fin\n{name}_doA:")
        tw = [""]*22
    else:
        k(f"s_cmp_lt_u32 s{sW}, 5\ns_cbranch_scc1 {name}_doA")
        mlp_setup()
        rest_loads(f"{name}_rl1")
        k(f"s_branch {name}_noA\n{name}_doA:")
        tw = matrices()
        put(tw[:22])
    st(2)
    for kk in range(2):
        for a in range(4):
            for b in range(a+1, 4): k(f"v_swap_b32 v{L+16*kk+4*a+b}, v{L+16*kk+4*b+a}")
    mf = []
    for m in (0, 2, 1, 3):
        for kk in range(2):
            for c in range(2):
                a = AC+8*m+4*c
                mf.append(f"{MF} {vr(a, 4)}, {vr(L+16*kk+4*m, 4)}, {vr(MB_+8*c+4*kk, 4)}, {'0' if kk == 0 else vr(a, 4)}")
    put(interleave(mf, tw[22:]) if tw[22:] else mf)
    if not merge: rest_loads(f"{name}_rl2")
    Z = L; T = L+16
    p2 = lambda x: vr(x, 2)
    NEG = "neg_lo:[0,1] neg_hi:[0,1]"
    for r in (0, 2):
        Rr = lambda m: AC+8*m+r
        I = lambda m: AC+8*m+4+r
        ar, ai, br, bi, cr, ci, dr, di = (T+2*i for i in range(8))
        k(f"""
v_pk_add_f32 {p2(ar)}, {p2(Rr(0))}, {p2(Rr(2))}
v_pk_add_f32 {p2(ai)}, {p2(I(0))}, {p2(I(2))}
v_pk_add_f32 {p2(cr)}, {p2(Rr(1))}, {p2(Rr(3))}
v_pk_add_f32 {p2(ci)}, {p2(I(1))}, {p2(I(3))}
v_pk_add_f32 {p2(br)}, {p2(Rr(0))}, {p2(Rr(2))} {NEG}
v_pk_add_f32 {p2(bi)}, {p2(I(0))}, {p2(I(2))} {NEG}
v_pk_add_f32 {p2(dr)}, {p2(Rr(1))}, {p2(Rr(3))} {NEG}
v_pk_add_f32 {p2(di)}, {p2(I(1))}, {p2(I(3))} {NEG}
v_pk_add_f32 {p2(Rr(0))}, {p2(ar)}, {p2(cr)}
v_pk_add_f32 {p2(I(0))}, {p2(ai)}, {p2(ci)}
v_pk_add_f32 {p2(Rr(1))}, {p2(br)}, {p2(di)} {NEG}
v_pk_add_f32 {p2(I(1))}, {p2(bi)}, {p2(dr)}
v_pk_add_f32 {p2(Rr(2))}, {p2(ar)}, {p2(cr)} {NEG}
v_pk_add_f32 {p2(I(2))}, {p2(ai)}, {p2(ci)} {NEG}
v_pk_add_f32 {p2(Rr(3))}, {p2(br)}, {p2(di)}
v_pk_add_f32 {p2(I(3))}, {p2(bi)}, {p2(dr)} {NEG}
v_cvt_pk_bf16_f32 v{Z+r}, v{Rr(0)}, v{I(0)}
v_cvt_pk_bf16_f32 v{Z+r+1}, v{Rr(0)+1}, v{I(0)+1}
""")
        for q in range(1, 4):
            cc = TW+8*(q-1)+r
            k(f"v_pk_mul_f32 {p2(T+4*q)}, {p2(cc)}, {p2(Rr(q))}\nv_pk_mul_f32 {p2(T+4*q+2)}, {p2(cc)}, {p2(I(q))}")
        for q in range(1, 4):
            ss = TW+8*(q-1)+4+r
            k(f"v_pk_fma_f32 {p2(T+4*q)}, {p2(ss)}, {p2(I(q))}, {p2(T+4*q)} neg_lo:[1,0,0] neg_hi:[1,0,0]\nv_pk_fma_f32 {p2(T+4*q+2)}, {p2(ss)}, {p2(Rr(q))}, {p2(T+4*q+2)}")
        for q in range(1, 4):
            k(f"v_cvt_pk_bf16_f32 v{Z+4*q+r}, v{T+4*q}, v{T+4*q+2}\nv_cvt_pk_bf16_f32 v{Z+4*q+r+1}, v{T+4*q+1}, v{T+4*q+3}")
    k(f"s_lshl_b32 s3, s{sW}, 10\ns_add_u32 s3, s3, {EZ}\nv_add_u32 v{vEW}, s3, v{vDX}")
    for q in range(4): k(f"ds_write_b128 v{vEW}, {vr(Z+4*q, 4)} offset:{q*5120}")
    k(f"s_setprio 0\ns_cmp_eq_u32 s{sW}, 4\ns_cbranch_scc1 {name}_noA")
    if su3: mlp_setup()
    k(f"{name}_noA:")
    k(f"""
v_lshlrev_b32 v{vSR}, 6, v{n_}
v_add_u32 v{vSR}, {ES}, v{vSR}
v_lshrrev_b32 v{vSW}, {2 if nl else 1}, v{g_}
v_lshl_add_u32 v{vSW}, v{vSW}, 2, v{vSR}
s_lshl_b32 s3, s{sW}, 3
v_add_u32 v{vSW}, s3, v{vSW}
v_lshrrev_b32 v{vHS}, 1, v{n_}
v_lshlrev_b32 v{vHS}, 7, v{vHS}
v_and_b32 v{t0}, 1, v{n_}
v_lshl_add_u32 v{vHS}, v{t0}, 6, v{vHS}
v_lshl_add_u32 v{vHS}, v{g_}, 4, v{vHS}
v_add_u32 v{vEW}, {EZ}, v{vDX}
s_lshl_b32 s3, s{sS2}, 1
s_add_u32 s3, s3, s{sNT}
s_mul_i32 s4, s3, 18432
s_lshl_b32 s5, s{sW}, 11
s_add_u32 s{sSO}, s4, s5
s_add_u32 s{sVB}, s4, 16384
s_and_b32 s3, s3, 7
s_lshl_b32 s3, s3, 2
s_lshl_b32 s4, s{sMT}, 11
s_add_u32 s{sXO}, s3, s4
s_mov_b32 s5, 0xffff0000
""")
    A2 = AC; ZR = L
    def allsum(a, b):
        k(f"""v_add_f32 v{a}, v{a}, v{a+1}
v_mov_b32 v{b}, v{a}
v_permlane32_swap_b32 v{a}, v{b}
v_add_f32 v{a}, v{a}, v{b}
v_mov_b32 v{b}, v{a}
v_permlane16_swap_b32 v{a}, v{b}
v_add_f32 v{a}, v{a}, v{b}""")
    def final_nl(nmt):
        so = [sSO, sVB]
        prs = [A2+16*mt+4*q+2*p for mt in range(nmt) for q in range(4) for p in range(2)]
        for mt in range(nmt):
            for r in range(4):
                for q in range(4):
                    src = XX+8*mt+2*r+(q >> 1); dst = A2+16*mt+4*q+r
                    k(f"v_and_b32 v{dst}, s5, v{src}" if q & 1 else f"v_lshlrev_b32 v{dst}, 16, v{src}")
        k(f"v_pk_add_f32 {vr(t0, 2)}, {vr(prs[0], 2)}, {vr(prs[1], 2)}\nv_pk_add_f32 {vr(t2, 2)}, {vr(prs[2], 2)}, {vr(prs[3], 2)}")
        for i, a in enumerate(prs[4:]): k(f"v_pk_add_f32 {vr(t0+2*(i & 1), 2)}, {vr(t0+2*(i & 1), 2)}, {vr(a, 2)}")
        k(f"v_pk_add_f32 {vr(t0, 2)}, {vr(t0, 2)}, {vr(t2, 2)}")
        allsum(t0, t1)
        k(f"ds_write_b32 v{vSW}, v{t0}")
        k.wait_lg(); k("s_barrier")
        st(3)
        idx = [(jt, q) for jt in range(5) for q in range(4)]
        rd = lambda i: f"ds_read_b128 {vr(ZR+4*(i % 8), 4)}, v{vEW} offset:{idx[i][1]*5120+idx[i][0]*1024}"
        for i in range(7): k(rd(i))
        for w in range(4): k(f"ds_read_b128 {vr(MB_+4*w, 4)}, v{vSR} offset:{16*w}")
        mean = [f"v_add_f32 v{MB_+a}, v{MB_+a}, v{MB_+b}" for a, b in ((0, 2), (4, 6), (8, 10), (12, 14), (0, 4), (8, 12), (0, 8))] + \
               [f"v_mul_f32 v{t0}, {fl(-1/576)}, v{MB_}", f"v_mul_f32 v{t1}, {fl(-1/576)}, v{MB_}"]
        for i, (jt, q) in enumerate(idx):
            for mt in range(nmt):
                a = A2+16*mt+4*q
                k(f"{MF} {vr(a, 4)}, {vr(G+20*mt+4*jt, 4)}, {vr(ZR+4*(i % 8), 4)}, {vr(a, 4)}")
            if i+7 < 20: k(rd(i+7))
            if 8 <= i < 8+len(mean): k(mean[i-8])
        def pack(dst, src, h):
            for p in range(4):
                r, q = 2*h+(p >> 1), 2*(p & 1)
                k(f"v_cvt_pk_bf16_f32 v{dst+p}, v{src+4*q+r}, v{src+4*(q+1)+r}")
        HC = G
        for mt in range(nmt):
            for h in range(2):
                for q in range(4): k(f"v_pk_add_f32 {vr(HC+16*mt+4*q+2*h, 2)}, {vr(A2+16*mt+4*q+2*h, 2)}, {vr(t0, 2)}")
                pack(L+8*mt+4*h, HC+16*mt, h)
                k(f"buffer_store_dwordx4 {vr(L+8*mt+4*h, 4)}, v{vDX}, {S4(sX)}, s{so[mt]} offen offset:{h*1024} sc1", tag="XF")
        hp = [a - A2 + HC for a in prs]
        k(f"v_pk_mul_f32 {vr(t0, 2)}, {vr(hp[0], 2)}, {vr(hp[0], 2)}\nv_pk_mul_f32 {vr(t2, 2)}, {vr(hp[1], 2)}, {vr(hp[1], 2)}")
        for i, a in enumerate(hp[2:]): k(f"v_pk_fma_f32 {vr(t0+2*(i & 1), 2)}, {vr(a, 2)}, {vr(a, 2)}, {vr(t0+2*(i & 1), 2)}")
        k(f"v_pk_add_f32 {vr(t0, 2)}, {vr(t0, 2)}, {vr(t2, 2)}")
        allsum(t0, t1)
        k(f"ds_write_b32 v{vSW}, v{t0} offset:4")
        for mt in range(nmt):
            for h in range(2): pack(XX+8*mt+4*h, A2+16*mt, h)
        k(f"""v_mov_b32 v{vEW}, v{vSR}
v_lshl_add_u32 v30, v{vL}, 7, s{sXO}
v_mov_b32 v{vSR}, {OOB}
v_cmp_gt_u32 vcc, 16, v{vL}
v_cndmask_b32 v30, v{vSR}, v30, vcc
v_mov_b32 v{vSW}, {FV}""")
    def final(nmt):
        if nl: return final_nl(nmt)
        so = [sSO, sVB]
        for mt in range(nmt):
            for r in range(4):
                for q in range(4):
                    src = XX+8*mt+2*r+(q >> 1); dst = A2+16*mt+4*q+r
                    k(f"v_and_b32 v{dst}, s5, v{src}" if q & 1 else f"v_lshlrev_b32 v{dst}, 16, v{src}")
        k.wait_lg(); k("s_barrier")
        st(3)
        idx = [(jt, q) for jt in range(5) for q in range(4)]
        rd = lambda i: f"ds_read_b128 {vr(ZR+4*(i % 8), 4)}, v{vEW} offset:{idx[i][1]*5120+idx[i][0]*1024}"
        for i in range(7): k(rd(i))
        for i, (jt, q) in enumerate(idx):
            for mt in range(nmt):
                a = A2+16*mt+4*q
                k(f"{MF} {vr(a, 4)}, {vr(G+20*mt+4*jt, 4)}, {vr(ZR+4*(i % 8), 4)}, {vr(a, 4)}")
            if i+7 < 20: k(rd(i+7))
        if "p3st" in abl: k("s_memrealtime s[62:63]")
        first = True
        for mt in range(nmt):
            for q in range(4):
                for p in range(2):
                    a = A2+16*mt+4*q+2*p
                    if first: k(f"v_mov_b64 {vr(t0, 2)}, {vr(a, 2)}\nv_pk_mul_f32 {vr(t2, 2)}, {vr(a, 2)}, {vr(a, 2)}"); first = False
                    else: k(f"v_pk_add_f32 {vr(t0, 2)}, {vr(t0, 2)}, {vr(a, 2)}\nv_pk_fma_f32 {vr(t2, 2)}, {vr(a, 2)}, {vr(a, 2)}, {vr(t2, 2)}")
        k(f"""
v_add_f32 v{t0}, v{t0}, v{t1}
v_add_f32 v{t2}, v{t2}, v{t3}
v_permlane32_swap_b32 v{t0}, v{t2}
v_add_f32 v{t0}, v{t0}, v{t2}
v_mov_b32 v{t1}, v{t0}
v_permlane16_swap_b32 v{t0}, v{t1}
v_add_f32 v{t0}, v{t0}, v{t1}
ds_write_b32 v{vSW}, v{t0}
""")
        def pack(dst, mt, h):
            for p in range(4):
                r, q = 2*h+(p >> 1), 2*(p & 1)
                k(f"v_cvt_pk_bf16_f32 v{dst+p}, v{A2+16*mt+4*q+r}, v{A2+16*mt+4*(q+1)+r}")
        for mt in range(nmt):
            for h in range(2): pack(XX+8*mt+4*h, mt, h)
        k.wait_lg(); k("s_barrier")
        if "p3st" in abl: k("s_memrealtime s[64:65]")
        for w in range(4): k(f"ds_read_b128 {vr(L+4*w, 4)}, v{vSR} offset:{16*w}")
        k(f"""v_lshl_add_u32 v{vSW}, v{vL}, 7, s{sXO}
v_mov_b32 v{vSR}, {OOB}
v_cmp_gt_u32 vcc, 16, v{vL}
v_cndmask_b32 v{vSR}, v{vSR}, v{vSW}, vcc
v_mov_b32 v{vSW}, {FV}""")
        for a, b in ((0, 2), (4, 6), (8, 10), (12, 14), (0, 4), (8, 12), (0, 8)):
            k(f"v_pk_add_f32 {vr(L+a, 2)}, {vr(L+a, 2)}, {vr(L+b, 2)}")
        k(f"""
v_mul_f32 v{t0}, {fl(1/576)}, v{L}
v_mul_f32 v{t1}, v{t0}, v{t0}
v_fmamk_f32 v{t2}, v{L+1}, {fl(1/576)}, v{t1}
v_fma_f32 v{t2}, -2.0, v{t1}, v{t2}
v_max_f32 v{t2}, 0, v{t2}
v_add_f32 v{t2}, {fl(1e-5)}, v{t2}
v_rsq_f32 v{t2}, v{t2}
v_mul_f32 v{t2}, {fl(LOG2E)}, v{t2}
v_mul_f32 v{t0}, -v{t0}, v{t2}
v_mov_b32 v{t3}, v{t2}
v_mov_b32 v{t1}, v{t0}
s_cmp_eq_u32 s{sW}, 0
s_cselect_b32 s4, 0x10001, 0
""")
        for mt in range(nmt):
            for q in range(4):
                for p in range(2):
                    a = A2+16*mt+4*q+2*p
                    k(f"v_pk_fma_f32 {vr(a, 2)}, {vr(a, 2)}, {vr(t2, 2)}, {vr(t0, 2)}")
            for h in range(2):
                pack(L+8*mt+4*h, mt, h)
                if early and nmt == 1: k(f"v_or_b32 v{L+4*h}, s4, v{L+4*h}")
                k(f"buffer_store_dwordx4 {vr(L+8*mt+4*h, 4)}, v{vDX}, {S4(sX)}, s{so[mt]} offen offset:{h*1024} sc1", tag="XF")
    def hstores(lab):
        for mt in range(2):
            if mt: k(f"s_cmp_lg_u32 s{sW}, {W2}\ns_cbranch_scc1 {lab}")
            for h in range(2): k(f"buffer_store_dwordx4 {vr(XX+8*mt+4*h, 4)}, v{vHS}, {S4(sH)}, s{[sSO, sVB][mt]} offen offset:{h*1024} sc1", tag="H")
        k(f"{lab}:")
    k(f"s_cmp_eq_u32 s{sW}, {W2}\ns_cbranch_scc1 {name}_fin2")
    final(1)
    if early:
        k(f"""s_cmp_lg_u32 s{sW}, 0
s_cbranch_scc1 {name}_fin
s_mov_b32 s3, {F_E}
buffer_store_dword v{vSW}, v{vSR}, {S4(sF)}, s3 offen sc1""")
    k(f"s_branch {name}_fin\n{name}_fin2:")
    final(2)
    k(f"{name}_fin:")
    if "p3st" in abl: k("s_memrealtime s[60:61]")
    if merge: k(f"s_cmp_eq_u32 s{sSU}, 1\ns_cbranch_scc1 {name}_sudone")
    else: k(f"s_cmp_eq_u32 s{sAct}, 0\ns_cbranch_scc1 {name}_su\n{'s_cmp_lg_u32' if su3 else 's_cmp_gt_u32'} s{sW}, 4\ns_cbranch_scc1 {name}_sudone\n{name}_su:")
    mlp_setup()
    k(f"{name}_sudone:")
    if bulk or wlate: k(f"s_cmp_lg_u32 s{sAct}, 0\ns_cbranch_scc1 {name}_wdone")
    first_w(f"{name}_wc")
    if bulk or wlate: k(f"{name}_wdone:")
    def touch(mats, lab, dst):
        k(f"""
s_lshr_b32 s3, s2, 3
s_lshl_b32 s3, s3, 3
s_add_u32 s3, s3, s{sW}
s_cmp_ge_u32 s3, {81*len(mats)}
s_cbranch_scc1 {lab}_x
s_cmp_ge_u32 s3, 81
s_cselect_b32 s4, 81, 0
s_sub_u32 s4, s3, s4
v_lshl_add_u32 v{vT0}, s4, 6, v{vL}
v_mul_u32_u24 v{vT1}, 7282, v{vT0}
v_lshrrev_b32 v{vT1}, 16, v{vT1}
v_mul_u32_u24 v{vT2}, 9, v{vT1}
v_sub_u32 v{vT2}, v{vT0}, v{vT2}
v_mul_u32_u24 v{vT1}, {9216 if mats[0] != sD else 1152}, v{vT1}
v_lshl_add_u32 v{vT1}, v{vT2}, 7, v{vT1}
s_mul_i32 s4, s{sXC}, {1152 if mats[0] != sD else 576*1152}
""")
        if len(mats) == 2: k(f"s_cmp_ge_u32 s3, 81\ns_cbranch_scc1 {lab}_u")
        k(f"buffer_load_dword v{dst}, v{vT1}, {S4(mats[0])}, s4 offen {TPOL if len(mats) == 2 else TPOLD}", tag="touch")
        if len(mats) == 2: k(f"s_branch {lab}_x\n{lab}_u:\nbuffer_load_dword v{dst}, v{vT1}, {S4(mats[1])}, s4 offen {TPOL}")
        k(f"{lab}_x:")
    vTW = 31
    k(f"""
s_cmp_eq_u32 s{sB}, 0
s_cselect_b32 s{sV}, s{sG}, s{sU}
s_cselect_b32 s{sV+1}, s{sG+1}, s{sU+1}
s_mov_b32 s{sV+2}, {N_W}
s_mov_b32 s{sV+3}, 0x20000
s_and_b32 s3, s{sW}, 3
s_mul_i32 s3, s3, 5
v_add_u32 v{vTW}, s3, v{vL}
v_cmp_lt_u32 vcc, 8, v{vTW}
v_cndmask_b32 v{vT0}, 0, 1, vcc
v_mul_u32_u24 v{vT1}, 9, v{vT0}
v_sub_u32 v{vT1}, v{vTW}, v{vT1}
s_lshr_b32 s3, s{sW}, 2
s_xor_b32 s3, s3, 1
s_xor_b32 s3, s3, s{sMT}
s_lshl_b32 s3, s3, 1
v_add_u32 v{vT0}, s3, v{vT0}
v_and_b32 v{vT2}, 24, v{vT0}
v_add_u32 v{vT0}, v{vT0}, v{vT2}
v_mul_u32_u24 v{vT0}, 9216, v{vT0}
v_lshl_add_u32 v{vT0}, v{vT1}, 7, v{vT0}
s_mul_i32 s3, s{sXC}, 1152
v_add_u32 v{vT0}, s3, v{vT0}
v_mov_b32 v{vT1}, {OOB}
v_cmp_gt_u32 vcc, 18, v{vTW}
v_cndmask_b32 v{vT0}, v{vT1}, v{vT0}, vcc
v_cmp_gt_u32 vcc, 5, v{vL}
v_cndmask_b32 v{vTW}, v{vT1}, v{vT0}, vcc
""")
    def roll(s):
        if "notouch" in abl or "noroll" in abl or s >= 18: return []
        return [(f"s_mov_b32 s94, {((s >> 1)*64 + (s & 1)*8)*9216}\nbuffer_load_dword v28, v{vTW}, {S4(sV)}, s94 offen {TPOL}", "touch")]
    if not early:
        k(f"""s_cmp_eq_u32 s{sAct}, 0
s_cbranch_scc1 {name}_p3done
""")
        k.wait_lg(); k.wait_vm("XF")
        k(f"""s_barrier
s_cmp_lg_u32 s{sW}, 0
s_cbranch_scc1 {name}_p3sig
buffer_store_dword v{vSW}, v{30 if nl else vSR}, {S4(sF)}, 0 offen sc1""")
        if nl:
            for w in range(4): k(f"ds_read_b128 {vr(MB_+4*w, 4)}, v{vEW} offset:{16*w}")
            k(f"""s_lshl_b32 s3, s{sS2}, 1
s_add_u32 s3, s3, s{sNT}
s_bfe_u32 s4, s3, 0x10002
s_lshl_b32 s4, s4, 8
s_and_b32 s3, s3, 3
s_lshl_b32 s3, s3, 2
s_add_u32 s3, s3, s4
s_lshl_b32 s4, s{sMT}, 9
s_add_u32 s3, s3, s4
s_add_u32 s3, s3, {F_R}
v_lshl_add_u32 v{t1}, v{vL}, 4, s3
v_cmp_gt_u32 vcc, 16, v{vL}
v_cndmask_b32 v{t1}, v{vSR}, v{t1}, vcc""")
            for a, b in ((1, 3), (5, 7), (9, 11), (13, 15), (1, 5), (9, 13), (1, 9)): k(f"v_add_f32 v{MB_+a}, v{MB_+a}, v{MB_+b}")
            k(f"""v_mov_b32 v{t2}, {fl(1e-5)}
v_fmac_f32 v{t2}, {fl(1/576)}, v{MB_+1}
v_rsq_f32 v{t2}, v{t2}
v_mul_f32 v{t2}, {fl(LOG2E)}, v{t2}""")
            k(f"buffer_store_dword v{t2}, v{t1}, {S4(sF)}, 0 offen sc1", tag="R2")
        k(f"{name}_p3sig:")
        if bulk == 2 and not late1: first_w(f"{name}_wd", (1,))
        elif wlate == 1 and not bulk: first_w(f"{name}_wd")
        hstores(f"{name}_hs")
        if wlate == 2: first_w(f"{name}_wd")
        k(f"{name}_p3done:")
    st(4)

    def path(five):
        nt5 = 5 if five else 4
        nf = 2*nt5
        P = "a" if five else "b"
        k(f"""
s_lshl_b32 s3, s{sMT}, 4
s_add_u32 s3, s3, s{sSL}
s_lshl_b32 s3, s3, 7
s_lshl_b32 s4, s{sW}, 2
s_add_u32 s{sLN}, s3, s4
s_add_u32 s{sS1}, s{sLN}, {F_E if early else 0}
buffer_load_dword v{vQ}, v{vZ}, {S4(sF)}, s{sS1} offen sc1
v_lshrrev_b32 v{vT0}, 4, v{vL}
v_bfe_u32 v{vT1}, v{vL}, 2, 2
v_lshl_add_u32 v{vT2}, v{vT0}, 3, v{vT1}
v_mul_u32_u24 v{vT2}, 576, v{vT2}
v_and_b32 v{vWB[0]}, 3, v{vL}
v_lshl_add_u32 v{vT2}, v{vWB[0]}, 3, v{vT2}
s_mul_i32 s3, s{sA}, 9
s_add_u32 s3, s3, {0 if five else 5}
s_lshl_b32 s4, s3, 5
s_add_u32 s4, s4, {WO}
v_add_u32 v{vT2}, s4, v{vT2}
s_and_b32 s3, s3, 1
s_cmp_eq_u32 s3, 0
s_cselect_b32 s3, 32, -32
v_and_b32 v{vWB[0]}, 1, v{vT0}
v_mul_i32_i24 v{vWB[0]}, s3, v{vWB[0]}
v_add_u32 v{vWA[0]}, v{vT2}, v{vWB[0]}
v_sub_u32 v{vWB[0]}, v{vT2}, v{vWB[0]}
s_lshl_b32 s3, s{sRG}, 12
s_add_u32 s3, s3, {xslot(0)}
v_add_u32 v{vXr[0]}, s3, v{vDX}
""")
        if pair: k(f"v_add_u32 v{vWA[1]}, 73728, v{vWA[0]}\nv_add_u32 v{vWB[1]}, 73728, v{vWB[0]}")
        for i in (() if pair else (1, 2)):
            k(f"v_add_u32 v{vXr[i]}, {SLOT_A[i]}, v{vXr[0]}\nv_add_u32 v{vWA[i]}, {SLOT_A[i]}, v{vWA[0]}\nv_add_u32 v{vWB[i]}, {SLOT_A[i]}, v{vWB[0]}")
        k(f"""
v_lshrrev_b32 v{vDD}, 3, v{vL}
v_mul_u32_u24 v{vDD}, 1152, v{vDD}
v_bfe_u32 v{vT2}, v{vL}, 1, 2
v_xor_b32 v{vT2}, v{vT2}, v{vT0}
v_lshl_add_u32 v{vDD}, v{vT2}, 5, v{vDD}
v_and_b32 v{vT2}, 1, v{vL}
v_lshl_add_u32 v{vDD}, v{vT2}, 4, v{vDD}
s_mul_i32 s3, s{sCG if LP else sW}, {9 if LP else 4 if five else 5}
s_sub_u32 s3, s3, {0 if five or LP else 4}
s_lshl_b32 s{sM0d}, s3, 10
s_mul_i32 s3, s3, {8*1152}
s_mul_i32 s{sKD}, s{sSL}, {288*1152}
s_add_u32 s{sKD}, s{sKD}, s3
v_lshl_add_u32 v{vWD[0]}, v{vT0}, 2, v{vT1}
v_bfe_u32 v{vT2}, v{vWD[0]}, 1, 2
v_xor_b32 v{vT2}, s{sCG}, v{vT2}
v_lshlrev_b32 v{vT2}, 5, v{vT2}
v_lshl_add_u32 v{vWD[0]}, v{vWD[0]}, 7, v{vT2}
v_and_b32 v{vT2}, 3, v{vL}
v_lshl_add_u32 v{vWD[0]}, v{vT2}, 3, v{vWD[0]}
v_add_u32 v{vWD[1]}, {RING_B[1]}, v{vWD[0]}
v_add_u32 v{vWD[2]}, {RING_B[2]}, v{vWD[0]}
v_add_u32 v{vWD[3]}, {RING_B[3]}, v{vWD[0]}
v_add_u32 v{vWD[0]}, {RING_B[0]}, v{vWD[0]}
s_xor_b32 s3, s{sB if LP else sRG}, {1 if LP and not five else 0}
s_mul_i32 s3, s3, {4*9*1024}
s_add_u32 s3, s3, {HH}
v_add_u32 v{vHR}, s3, v{vDX}
s_mul_i32 s3, s{sRG}, {4*9*1024}
s_add_u32 s3, s3, {HH}
s_mul_i32 s4, s{sA}, 9
s_add_u32 s4, s4, {0 if five else 5}
s_lshr_b32 s5, s4, 1
s_lshl_b32 s5, s5, 10
s_add_u32 s3, s3, s5
s_and_b32 s4, s4, 1
s_lshl_b32 s5, s4, 3
s_add_u32 s5, s5, s3
v_add_u32 v{vHW}, s5, v{vDX}
s_mul_i32 s5, s4, 1024
s_add_u32 s5, s5, s3
s_xor_b32 s4, s4, 1
s_lshl_b32 s4, s4, 3
s_add_u32 s5, s5, s4
v_add_u32 v{vHW2}, s5, v{vDX}
v_bfe_u32 v{vT2}, v{vL}, 1, 3
v_lshlrev_b32 v{vPO}, 10, v{vT2}
v_and_b32 v{vT2}, 1, v{vL}
v_lshl_add_u32 v{vPO}, v{vT2}, 6, v{vPO}
v_lshl_add_u32 v{vPO}, v{vT0}, 4, v{vPO}
""")
        if LP:
            k(f"""s_lshl_b32 s3, s{sMT}, 1
s_add_u32 s4, s3, s{sB}
s_mul_i32 s{sRD}, s4, {8*9*8192}
s_xor_b32 s4, s4, {0 if five else 1}
s_lshl_b32 s4, s4, 3
s_add_u32 s4, s4, s{sXC}
s_mul_i32 s{sPO}, s4, {9*8192}
s_lshl_b32 s4, s{sCG}, 8
s_add_u32 s{sPO}, s{sPO}, s4
s_xor_b32 s3, s2, {0 if five else 128}
s_lshl_b32 s3, s3, 9
s_lshl_b32 s4, s{sCG}, 7
s_add_u32 s3, s3, s4
s_add_u32 s{sF1}, s3, {F_1}
s_getreg_b32 s{sLoc}, hwreg(HW_REG_XCC_ID, 0, 4)
s_add_u32 s{sLoc}, s{sLoc}, 1""")
            if five:
                for i in range(4): k(f"v_mov_b32 v{28+i}, 0")
        else:
            k(f"""s_mul_i32 s{sRD}, s{sMT}, {16*9*16384}
s_mul_i32 s3, s{sSL}, {9*16384}
s_add_u32 s{sPO}, s{sRD}, s3
s_lshl_b32 s4, s{sRG}, 13
s_add_u32 s{sPO}, s{sPO}, s4
s_lshl_b32 s4, s{sCG}, 8
s_add_u32 s{sPO}, s{sPO}, s4""")
        if idlepf:
            k(f"s_cmp_lg_u32 s{sAct}, 0\ns_cbranch_scc1 {name}_{P}ip")
            if late1: put(dmaW(1, not five))
            for q in range(2, ahead): put(roll(q))
            k(f"{name}_{P}ip:")
        elif not five and not early:
            for q in range(2, ahead): put(roll(q))
        if droll and five:
            n = -(-(5184//droll)//128)
            k(f"""s_lshr_b32 s3, s2, 3
s_lshl_b32 s3, s3, 2
s_add_u32 s3, s3, s{sW}
s_mul_i32 s3, s3, {n}
v_add_u32 v{vT0}, s3, v{vL}
v_mov_b32 v{vT1}, {OOB}
v_cmp_gt_u32 vcc, {5184//droll}, v{vT0}
v_lshlrev_b32 v{vT0}, 7, v{vT0}
v_cndmask_b32 v{vT0}, v{vT1}, v{vT0}, vcc
v_cmp_gt_u32 vcc, {n}, v{vL}
v_cndmask_b32 v{vT2}, v{vT1}, v{vT0}, vcc""")
        xflag = lambda so: f"buffer_load_dword v{vQ}, v{vZ}, {S4(sF)}, s{so} offen sc1"
        spin(f"{name}_{P}x", xflag(sS1), notyet(vQ))
        if early:
            ld = f"buffer_load_dwordx4 v[64:67], v{vDX}, {S4(sX)}, s{sKX} offen sc1\nbuffer_load_dwordx4 v[68:71], v{vDX}, {S4(sX)}, s{sKX} offen offset:1024 sc1"
            k(ld)
            k(f"v_add_u32 v{vT0}, s{sM0x}, v{vDX}\ns_mov_b32 s4, 0x10001")
            spin(f"{name}_{P}t", ld, f"v_and_b32 v{vT1}, v64, v68\nv_and_b32 v{vT1}, s4, v{vT1}\nv_cmp_ne_u32 vcc, s4, v{vT1}")
            k(f"s_cmp_eq_u32 s{sAct}, 0\ns_cbranch_scc1 {name}_{P}hs")
            hstores(f"{name}_{P}hs")
            if not five and not idlepf:
                for q in range(2, ahead): put(roll(q))
            k(f"ds_write_b128 v{vT0}, v[64:67] offset:{SLOT_A[0]}\nds_write_b128 v{vT0}, v[68:71] offset:{SLOT_A[1]}")
        else:
            put(dmaX(0)); put(dmaX(1))
        if late1 == 1:
            if idlepf: k(f"s_cmp_eq_u32 s{sAct}, 0\ns_cbranch_scc1 {name}_{P}l1")
            put(dmaW(1, not five))
            if idlepf: k(f"{name}_{P}l1:")
        if droll and five: k(f"v_mov_b32 v31, v{vT2}\ns_mul_i32 s{sS1}, s{sXC}, {576*1152}")
        st(5)
        ACC = 256-nf*16; XB = [64, 80]; WR = 32
        def acc(f, nt): return ACC + f*16 + nt*4
        def wreg(s, f): return WR + 4*((s*nf+f) % 8)
        def wread(s, f):
            i, u = f >> 1, f & 1
            va = (vWA if i % 2 == 0 else vWB)[s % 3]; d = wreg(s, f)
            return [f"ds_read_b64_tr_b16 v[{d+2*h}:{d+2*h+1}], v{va} offset:{h*4*576 + i*32 + u*18432}" for h in range(2)]
        def mfa(s, f):
            w = wreg(s, f)
            return [f"{MF} {vr(acc(f, nt), 4)}, {vr(w, 4)}, {vr(XB[s % 2]+4*nt, 4)}, {'0' if s == 0 else vr(acc(f, nt), 4)}" for nt in range(4)]
        vRD, vHO, vOO, vFL, vFS, SEL, vFV, vTR, vHT = 2, 3, 4, 8, 9, 12, 5, 10, 11
        assert not fuse
        vSC = 27
        sRP, sEX = 44, 48
        late = f"""v_mov_b32 v{vFS}, {OOB}
v_lshrrev_b32 v5, 4, v{vL}
v_and_b32 v6, 3, v{vL}
v_bfe_u32 v7, v{vL}, 3, 1
s_and_b32 s4, s{sSL}, 3
v_xor_b32 v14, s4, v5
v_mul_u32_u24 v{vRD}, {9*16384}, v14
v_lshlrev_b32 v{vHT}, 8, v7
v_and_b32 v14, 7, v{vL}
v_lshl_add_u32 v{vHT}, v14, 4, v{vHT}
v_add_u32 v{vRD}, v{vRD}, v{vHT}
s_lshl_b32 s4, s{sRG}, 1
v_add_u32 v7, s4, v7
s_lshl_b32 s4, s{sA}, 7
s_lshl_b32 s5, s{sRG}, 9
s_add_u32 s4, s4, s5
s_add_u32 s5, s4, {OWN}
v_add_u32 v{vHT}, s5, v{vHT}
s_add_u32 s{sRD}, s{sRD}, s4
s_lshl_b32 s4, s{sSL}, 10
s_add_u32 s{sRD}, s{sRD}, s4
s_and_b32 s4, s{sSL}, 12
s_mul_i32 s{sRP}, s4, {9*16384}
s_add_u32 s{sRP}, s{sRP}, s{sRD}
s_xor_b32 s5, s4, 4
s_mul_i32 s{sRP+1}, s5, {9*16384}
s_add_u32 s{sRP+1}, s{sRP+1}, s{sRD}
s_xor_b32 s5, s4, 8
s_mul_i32 s{sRP+2}, s5, {9*16384}
s_add_u32 s{sRP+2}, s{sRP+2}, s{sRD}
s_xor_b32 s5, s4, 12
s_mul_i32 s{sRP+3}, s5, {9*16384}
s_add_u32 s{sRP+3}, s{sRP+3}, s{sRD}
v_and_b32 v{vTR}, 1023, v{vPO}
s_lshl_b32 s4, s{sCG}, 8
s_add_u32 s4, s4, {OWN}
v_add_u32 v{vTR}, s4, v{vTR}
s_lshr_b32 s3, s{sSL}, 3
s_and_b32 s5, s{sSL}, 7
v_lshrrev_b32 v14, 10, v{vPO}
v_cmp_eq_u32 s[{sEX}:{sEX+1}], s5, v14
s_cmp_eq_u32 s3, s{sRG}|s_cselect_b64 s[{sEX}:{sEX+1}], s[{sEX}:{sEX+1}], 0
{f"v_cndmask_b32 v{vPO}, v{vPO}, v{vFS}, s[{sEX}:{sEX+1}]" if skip else ""}
s_lshl_b32 s5, s5, 7
s_lshl_b32 s{sLN}, s{sMT}, 2
s_lshl_b32 s3, s3, 1
s_add_u32 s{sLN}, s{sLN}, s3
s_add_u32 s{sLN}, s{sLN}, s{sA}
s_lshl_b32 s3, s{sLN}, 1
v_add_u32 v{vHO}, s3, v5
v_mul_u32_u24 v{vHO}, 18432, v{vHO}
v_lshrrev_b32 v14, 1, v6
v_lshl_add_u32 v{vHO}, v14, 10, v{vHO}
v_lshl_add_u32 v{vHO}, v7, 4, v{vHO}
v_and_b32 v14, 1, v6
v_lshl_add_u32 v{vHO}, v14, 3, v{vHO}
v_add_u32 v{vHO}, s5, v{vHO}
v_bfe_u32 v14, v{vL}, 2, 1
v_lshl_add_u32 v{vHO}, v14, 6, v{vHO}
s_lshr_b32 s4, s5, 6
v_lshl_add_u32 v{vOO}, v5, 4, s4
v_add_u32 v{vOO}, v{vOO}, v14
v_lshl_add_u32 v{vOO}, v{vOO}, 6, s{sLN}
v_mul_u32_u24 v{vOO}, 1152, v{vOO}
v_lshl_add_u32 v{vOO}, v7, 5, v{vOO}
v_lshl_add_u32 v{vOO}, v6, 3, v{vOO}
v_cmp_gt_u32 vcc, 32, v{vL}
v_cndmask_b32 v{vHO}, v{vFS}, v{vHO}, vcc
v_cndmask_b32 v{vOO}, v{vFS}, v{vOO}, vcc
v_lshlrev_b32 v14, 4, v14
v_lshl_add_u32 v14, v5, 2, v14
s_lshl_b32 s4, s{sSL}, 5
s_lshl_b32 s5, s{sA}, 3
s_add_u32 s4, s4, s5
s_lshl_b32 s5, s{sMT}, 9
s_add_u32 s4, s4, s5
s_add_u32 s4, s4, {F_R}
v_add_u32 v{vSC}, s4, v14
s_lshl_b32 s4, s{sMT}, 11
s_add_u32 s4, s4, {F_2}
s_lshl_b32 s5, s{sSL}, 2
s_add_u32 s5, s5, s4
v_lshl_add_u32 v5, v{vL}, 7, s5
v_cmp_gt_u32 vcc, 16, v{vL}
v_cndmask_b32 v{vFS}, v{vFS}, v5, vcc
s_lshl_b32 s5, s{sSL}, 7
s_add_u32 s5, s5, s4
v_and_b32 v5, 15, v{vL}
v_lshl_add_u32 v{vFL}, v5, 2, s5
s_mov_b32 s{sLN}, {LN2!r}""".split("\n")
        late = [x.replace('|', '\n') for x in late]
        CNT = 73728; SK = 72; vMK = 16
        if LP and five:
            late = f"""v_mov_b32 v{vFS}, {OOB}
s_lshl_b32 s4, s{sMT}, 11
s_lshl_b32 s5, s{sB}, 7
s_add_u32 s4, s4, s5
s_add_u32 s4, s4, {F_2}
s_lshl_b32 s5, s{sXC}, 2
s_add_u32 s5, s5, s4
v_lshl_add_u32 v5, v{vL}, 8, s5
v_cmp_gt_u32 vcc, 8, v{vL}
v_cndmask_b32 v{vFS}, v{vFS}, v5, vcc
v_mov_b32 v{vFL}, {CNT}""".split("\n")
        elif LP:
            late = f"""v_mov_b32 v{vFS}, {OOB}
s_lshl_b32 s4, s{sMT}, 11
s_lshl_b32 s5, s{sSL}, 7
s_add_u32 s4, s4, s5
s_add_u32 s4, s4, {F_2}
v_and_b32 v5, 7, v{vL}
v_lshl_add_u32 v{vFL}, v5, 2, s4
s_lshl_b32 s5, s{sXC}, 10
s_add_u32 s{sRD}, s{sRD}, s5
v_lshrrev_b32 v{vTR}, 3, v{vL}
v_mul_u32_u24 v{vTR}, {9*8192}, v{vTR}
v_lshl_add_u32 v{vTR}, v5, 7, v{vTR}
v_add_u32 v{vTR}, s{sRD}, v{vTR}
v_lshlrev_b32 v{vRD}, 4, v5
v_lshrrev_b32 v5, 4, v{vL}
v_and_b32 v6, 3, v{vL}
v_bfe_u32 v7, v{vL}, 3, 1
v_mul_u32_u24 v14, {9*8192}, v5
v_add_u32 v{vRD}, v{vRD}, v14
v_lshl_add_u32 v{vRD}, v7, 8, v{vRD}
s_lshl_b32 s4, s{sRG}, 1
v_add_u32 v7, s4, v7
s_lshl_b32 s4, s{sA}, 7
s_add_u32 s{sRD}, s{sRD}, s4
s_lshl_b32 s4, s{sRG}, 9
s_add_u32 s{sRD}, s{sRD}, s4
s_lshl_b32 s5, s{sXC}, 7
s_lshl_b32 s{sLN}, s{sMT}, 2
s_lshl_b32 s3, s{sB}, 1
s_add_u32 s{sLN}, s{sLN}, s3
s_lshl_b32 s3, s{sLN}, 1
s_add_u32 s3, s3, s{sCG}
s_mul_i32 s3, s3, 18432
s_add_u32 s3, s3, s5
v_lshl_add_u32 v{vHT}, v{vL}, 10, s3
v_cmp_gt_u32 vcc, 18, v{vL}
v_cndmask_b32 v{vHT}, v{vFS}, v{vHT}, vcc
s_add_u32 s{sLN}, s{sLN}, s{sA}
s_lshl_b32 s3, s{sLN}, 1
v_add_u32 v{vHO}, s3, v5
v_mul_u32_u24 v{vHO}, 18432, v{vHO}
v_lshrrev_b32 v14, 1, v6
v_lshl_add_u32 v{vHO}, v14, 10, v{vHO}
v_lshl_add_u32 v{vHO}, v7, 4, v{vHO}
v_and_b32 v14, 1, v6
v_lshl_add_u32 v{vHO}, v14, 3, v{vHO}
v_add_u32 v{vHO}, s5, v{vHO}
v_bfe_u32 v14, v{vL}, 2, 1
v_lshl_add_u32 v{vHO}, v14, 6, v{vHO}
s_lshl_b32 s4, s{sXC}, 1
v_lshl_add_u32 v{vOO}, v5, 4, s4
v_add_u32 v{vOO}, v{vOO}, v14
v_lshl_add_u32 v{vOO}, v{vOO}, 6, s{sLN}
v_mul_u32_u24 v{vOO}, 1152, v{vOO}
v_lshl_add_u32 v{vOO}, v7, 5, v{vOO}
v_lshl_add_u32 v{vOO}, v6, 3, v{vOO}
v_cmp_gt_u32 vcc, 32, v{vL}
v_cndmask_b32 v{vHO}, v{vFS}, v{vHO}, vcc
v_cndmask_b32 v{vOO}, v{vFS}, v{vOO}, vcc
s_mov_b32 s{sLN}, {LN2!r}""".split("\n")
        sel = f"""v_and_b32 v5, 1, v{vL}
v_lshlrev_b32 v5, 4, v5
s_movk_i32 s3, 0x3f80
v_lshlrev_b32 v5, v5, s3
v_bfe_u32 v6, v{vL}, 1, 3""".split("\n")
        if LP and five:
            sel += [f"v_lshrrev_b32 v7, 3, v{vL}", f"v_and_b32 v7, 6, v7", f"v_sub_u32 v6, v6, v7"]
            for i in range(2): sel += [f"v_cmp_eq_u32 vcc, {i}, v6", f"v_cndmask_b32 v{SK+2+i}, 0, v5, vcc"]
            sel += [f"v_mov_b32 v{SK+i}, 0" for i in (0, 1, 4, 5)]
            sel += [f"ds_write_b64 v{vFL}, v[{SK}:{SK+1}] offset:{8*i}" for i in range(3)]
        else:
            for i in range(4): sel += [f"v_cmp_eq_u32 vcc, {i}, v6", f"v_cndmask_b32 v{SEL+i}, 0, v5, vcc"]
        sel += [f"v_mov_b32 v{vFV}, {FV}", f"v_mov_b32 v{vMK}, 0x10001"]
        def split_m0(d):
            out = []
            for t, tag in d:
                ls = t.split("\n")
                out += ["\n".join(ls[:-1]), (ls[-1], tag)]
            return out
        def spread_in(seq, dma, every):
            items = split_m0(dma); out = []; n = 0; j = 0
            for x in seq:
                out.append(x)
                if isinstance(x, str) and x.startswith("v_mfma"):
                    n += 1
                    if j < len(items) and (j % 2 == 1 or n % every == every-1): out.append(items[j]); j += 1
            return out + items[j:]
        k.wait_lg(); k.wait_vm("A0", "XF", "A1" if pair else "-"); k("s_barrier")
        if early and five:
            k(f"s_cmp_eq_u32 s{sAct}, 0\ns_cbranch_scc1 {name}_xsig\ns_cmp_lg_u32 s{sW}, 0\ns_cbranch_scc1 {name}_xsig\nbuffer_store_dword v{vSW}, v{vSR}, {S4(sF)}, 0 offen sc1\n{name}_xsig:")
        st(6)
        if prio == ("lo" if five else "hi"): k("s_setprio 1")
        def glu(i):
            out = []
            for np_ in range(2):
                g, u = acc(2*i, 2*np_), acc(2*i+1, 2*np_)
                if nl: out += [f"v_pk_mul_f32 {vr(g+r, 2)}, {vr(g+r, 2)}, {vr(64+4*np_+2*(r >> 2), 2)}" for r in range(0, 8, 2)]
                out += [f"v_exp_f32 v{g+r}, -v{g+r}" for r in range(8)]
                out += [f"v_pk_add_f32 {vr(g+r, 2)}, {vr(g+r, 2)}, s[4:5]" for r in range(0, 8, 2)] if pk else [f"v_add_f32 v{g+r}, 1.0, v{g+r}" for r in range(8)]
                out += [f"v_rcp_f32 v{g+r}, v{g+r}" for r in range(8)]
                out += [f"v_pk_mul_f32 {vr(g+r, 2)}, {vr(g+r, 2)}, {vr(u+r, 2)}" for r in range(0, 8, 2)] if pk else [f"v_mul_f32 v{g+r}, v{g+r}, v{u+r}" for r in range(8)]
                for q in range(2): out += [f"v_cvt_pk_bf16_f32 v{u+4*q}, v{g+4*q}, v{g+4*q+1}", f"v_cvt_pk_bf16_f32 v{u+4*q+1}, v{g+4*q+2}, v{g+4*q+3}"]
            return out
        hwrite = lambda i: [f"ds_write_b64 v{vHW if i % 2 == 0 else vHW2}, {vr(acc(2*i+1, nt), 2)} offset:{nt*9*1024 + (i >> 1)*1024}" for nt in range(4)]
        xread = lambda s: [f"ds_read_b128 {vr(XB[s % 2]+4*nt, 4)}, v{vXr[s % 3]} offset:{nt*1024}" for nt in range(4)]
        dtouch = [f"""s_lshr_b32 s3, s2, 3
s_mul_i32 s3, s3, 18
s_mul_i32 s4, s{sXC}, 576
s_add_u32 s3, s3, s4
v_add_u32 v28, s3, v{vL}
v_mul_u32_u24 v28, 1152, v28
v_mov_b32 v29, {OOB}
v_cmp_gt_u32 vcc, 18, v{vL}
v_cndmask_b32 v28, v29, v28, vcc
s_lshl_b32 s3, s{sW}, 7
s_add_u32 s3, s3, 256
s_cmp_eq_u32 s{sW}, 7
s_cselect_b32 s3, {OOB}, s3""", (f"buffer_load_dword v26, v28, {S4(sD)}, s3 offen {TPOLD}", "touch")]
        CT = [int(c, 36) for c in str(ctouch)] if ctouch else []
        def code_touch(n):
            if n not in CT or not five: return
            k(f"""s_getpc_b64 s[4:5]
{name}_ct{n}:
s_sub_u32 s4, s4, {name}_ct{n}-{name}_kernel
s_subb_u32 s5, s5, 0
s_bfe_u32 s3, s2, 0x30003
s_lshl_b32 s3, s3, 2
s_add_u32 s3, s3, s{sW}
s_lshl_b32 s3, s3, 11
v_and_b32 v{vQ}, 15, v{vL}
v_lshl_add_u32 v{vQ}, v{vQ}, 7, s3
v_min_u32 v{vQ}, {name}_code_end-{name}_kernel-4, v{vQ}""")
            k(f"global_load_dword v26, v{vQ}, s[4:5]", tag="touch")
        NS = 0 if pair else 16 if fuse else 18
        if pair:
            wj = lambda p, j: WR + 4*((p*2*nf + j) % 8)
            def rd(p, j):
                f, c = j >> 1, j & 1; i, u = f >> 1, f & 1
                va = (vWA if i % 2 == 0 else vWB)[p & 1]; d = wj(p, j)
                return [f"ds_read_b64_tr_b16 v[{d+2*h}:{d+2*h+1}], v{va} offset:{c*36864 + h*4*576 + i*32 + u*18432}" for h in range(2)]
            def mm(p, f, cs=(0, 1)):
                return [f"{MF} {vr(acc(f, nt), 4)}, {vr(wj(p, 2*f+c), 4)}, {vr(XB[c]+4*nt, 4)}, {'0' if p == 0 and c == 0 else vr(acc(f, nt), 4)}" for nt in range(4) for c in cs]
            xr = lambda c: [f"ds_read_b128 {vr(XB[c]+4*nt, 4)}, v{vXr[0]} offset:{c*8192 + nt*1024}" for nt in range(4)]
            defer = lambda p: mm(p, nf-2, (1,)) + mm(p, nf-1, (1,))
            for p in range(9):
                put(xr(0))
                for j in range(4): put(rd(p, j))
                dw = (dmaW(2*p+2, not five) + dmaW(2*p+3, not five)) if p < 8 else (dmaB(0, five) + dmaB(1, five))
                dx = (dmaX(2*p+2) + dmaX(2*p+3)) if p < 8 else []
                if not five: dx = dx + roll(2*p+ahead) + roll(2*p+1+ahead)
                head = (defer(p-1) if p else []) + xr(1)
                body = []
                for f in range(nf):
                    fill = (rd(p, 2*f+4) + rd(p, 2*f+5)) if f+2 < nf else []
                    if p == 8: fill = fill + late[f*len(late)//nf:(f+1)*len(late)//nf]
                    body.append(interleave(mm(p, f, (0, 1) if f < nf-2 else (0,)), fill))
                first = head + sum(body[:upos], []); rest = sum(body[upos:], [])
                sp = spread if five or not spread4 else spread4
                n1 = min(len(dw), sum(1 for x in first if isinstance(x, str) and x.startswith("v_mfma"))//(sp0 or sp))
                put(spread_in(first, dw[:n1], sp0 or sp))
                if p < 8: k("s_barrier")
                put(spread_in(rest, dx[:2] + dw[n1:] + dx[2:], sp))
                if p == 8 and depi: put(dtouch)
                k.wait_lg(); k.wait_vm(f"A{2*p+2}", f"A{2*p+3}"); k("s_barrier")
        for s in range(NS):
            put(xread(s))
            for f in range(look): put(wread(s, f))
            dma = dmaX(s+2) + dmaW(s+2, not five) if s+2 < 18 else dmaB(s-16, five)
            if early and s == 0: dma = dmaW(2, not five) + [("s_nop 0\n" + xflag(sLN), "XQ")]
            if late1 == 2 and s == 0: dma = dmaW(1, not five) + dma
            if early and s == 1:
                spin(f"{name}_{P}y", xflag(sLN), f"v_cmp_eq_u32 vcc, 0, v{vQ}")
                dma = dmaX(2) + dma
            if not five: dma = dma + roll(s+ahead)
            if droll and five and dstage <= s < dstage+droll:
                dma = dma + [(f"s_add_u32 s94, s{sS1}, {(s-dstage)*(5184//droll)*128}\nbuffer_load_dword v28, v31, {S4(sD)}, s94 offen {TPOLD}", "touch")]
            if LP and five and istage <= s < istage+4:
                dma = dma + [(f"s_add_u32 s94, s{sPO}, {(5+s-istage)*8192}\nbuffer_store_dwordx4 v[28:31], v{vPO}, {S4(sP)}, s94 offen offset:{h*128} sc1", "I") for h in range(2)]
            seq = sum((mfa(s-1, f) for f in range(nf-nd, nf)), []) if s > 0 else []
            for f in range(nf-nd):
                extra = late[f*len(late)//(nf-nd):(f+1)*len(late)//(nf-nd)] if s == 17 else []
                mm_ = mfa(s, f)
                if "chain" in abl:
                    f0 = f & ~1
                    mm_ = [f"{MF} {vr(acc(f0 + (s & 1), nt), 4)}, {vr(wreg(s, f0+c), 4)}, {vr(XB[s % 2]+4*nt, 4)}, {vr(acc(f0 + (s & 1), nt), 4)}" for nt in ((0, 1) if f % 2 == 0 else (2, 3)) for c in range(2)]
                seq += interleave(mm_, (wread(s, f+look) if f+look < nf else []) + extra)
            put(spread_in(seq, dma, spread if len(dma) < 8 else 2))
            if s == dstage and "notouch" not in abl and not droll and not depi: touch([sD], f"{name}_{P}td", 27)
            if depi == s and s > 1: put(dtouch)
            code_touch(s)
            if ptouch and five and s == ptouch:
                k(f"""v_lshrrev_b32 v{vT0}, 2, v{vL}
s_lshl_b32 s3, s{sW}, 2
v_add_u32 v{vT0}, s3, v{vT0}
v_mul_u32_u24 v{vT0}, {9*16384 + 1024}, v{vT0}
v_and_b32 v{vT1}, 3, v{vL}
v_min_u32 v{vT1}, 2, v{vT1}
v_lshl_add_u32 v{vT0}, v{vT1}, 16, v{vT0}
v_mov_b32 v{vT1}, {OOB}
v_cmp_gt_u32 vcc, 16, v{vL}
v_cndmask_b32 v{vT0}, v{vT1}, v{vT0}, vcc""")
                k(f"buffer_load_dword v28, v{vT0}, {S4(sP)}, s{sRD} offen", tag="touch")
            if nl:
                el = f"buffer_load_dword v29, v{vT2}, {S4(sF)}, 0 offen sc1"
                if s == 3 and five:
                    k(f"s_cmp_eq_u32 s{sAct}, 0\ns_cbranch_scc1 {name}_rsig\ns_cmp_lg_u32 s{sW}, 0\ns_cbranch_scc1 {name}_rsig")
                    k.wait_vm("R2")
                    k(f"v_mov_b32 v{vT0}, 1\ns_mov_b32 s3, {F_E}\nbuffer_store_dword v{vT0}, v30, {S4(sF)}, s3 offen sc1\n{name}_rsig:")
                if s == 12:
                    k(f"s_and_b32 s3, s{sLN}, -128\ns_lshl_b32 s4, s{sRG}, 4\ns_add_u32 s3, s3, s4\ns_add_u32 s3, s3, {F_E}\nv_and_b32 v{vT2}, 3, v{vL}\nv_lshl_add_u32 v{vT2}, v{vT2}, 2, s3")
                    k(el)
                if s == 14:
                    spin(f"{name}_{P}e", el, "v_cmp_eq_u32 vcc, 0, v29")
                    k(f"s_lshl_b32 s3, s{sMT}, 9\ns_lshl_b32 s4, s{sRG}, 8\ns_add_u32 s3, s3, s4\ns_add_u32 s3, s3, {F_R}\nv_and_b32 v{vT2}, 0xf0, v{vDX}\nbuffer_load_dwordx4 v[28:31], v{vT2}, {S4(sF)}, s3 offen sc1")
            xl = f"buffer_load_dword v{vQ}, v{vZ}, {S4(sF)}, s{sF1} offen sc1"
            if LP and five and s == tstage:
                k.wait_vm("I")
                k(f"""v_lshrrev_b32 v{vT0}, 4, v{vL}
v_lshlrev_b32 v{vT0}, 13, v{vT0}
v_bfe_u32 v{vT1}, v{vL}, 1, 3
v_lshl_add_u32 v{vT0}, v{vT1}, 10, v{vT0}
v_and_b32 v{vT1}, 1, v{vL}
v_lshl_add_u32 v{vT0}, v{vT1}, 7, v{vT0}
s_add_u32 s3, s{sPO}, {5*8192}
v_mov_b32 v{vT1}, s{sLoc}""")
                k(f"buffer_load_dword v28, v{vT0}, {S4(sP)}, s3 offen", tag="touch")
                k(f"buffer_store_dword v{vT1}, v{vZ}, {S4(sF)}, s{sF1} offen sc1")
            if LP and not five and s == 13: k(xl)
            if LP and not five and s == 15:
                spin(f"{name}_xid", xl, f"v_cmp_eq_u32 vcc, 0, v{vQ}")
                k(f"v_readfirstlane_b32 s3, v{vQ}\ns_cmp_eq_u32 s3, s{sLoc}\ns_cselect_b32 s{sLoc}, {0 if 'remote' in abl else 1}, 0")
            k.wait_lg(); k.wait_vm(f"A{s+1}", "A17" if fuse and s == 15 else "-")
            if not ("halfbar" in abl and s % 2 == 0): k("s_barrier")
        if fuse:
            n0 = 16*nf
            wj = lambda j: WR + 4*((n0+j) % 8)
            def rd(j):
                f, s = j >> 1, 16 + (j & 1); i, u = f >> 1, f & 1
                va = (vWA if i % 2 == 0 else vWB)[s % 3]; d = wj(j)
                return [f"ds_read_b64_tr_b16 v[{d+2*h}:{d+2*h+1}], v{va} offset:{h*4*576 + i*32 + u*18432}" for h in range(2)]
            def mm(f): return [f"{MF} {vr(acc(f, nt), 4)}, {vr(wj(2*f+c), 4)}, {vr(XB[c]+4*nt, 4)}, {vr(acc(f, nt), 4)}" for nt in range(4) for c in range(2)]
            put(xread(16))
            for j in range(4): put(rd(j))
            put(spread_in(sum((mfa(15, f) for f in range(nf-nd, nf)), []), dmaB(0, five), 2))
            put(xread(17))
            for f in range(nf):
                fill = (rd(2*f+4) + rd(2*f+5)) if f+2 < nf else []
                if f < 2: fill = fill + late[f*len(late)//2:(f+1)*len(late)//2]
                else:
                    gl = glu(f//2 - 1); fill = fill + gl[(f % 2)*len(gl)//2:(f % 2 + 1)*len(gl)//2]
                put(interleave(mm(f), fill))
            k.wait_lg(); k("s_barrier")
            st(7)
            put(dmaB(1, five))
            for i in range(nt5-1): put(hwrite(i))
            put(sel)
            put(glu(nt5-1)); put(hwrite(nt5-1))
        else:
            put(defer(8) if pair else sum((mfa(17, f) for f in range(nf-nd, nf)), []))
            st(7)
            if eprio and five == (eprio == 1): k("s_setprio 1")
            if depi == 1: put(dtouch)
            k("s_mov_b32 s4, 1.0\ns_mov_b32 s5, 1.0")
            if nl:
                for i in range(8): k(f"v_mov_b32 v{64+i}, v{28+(i >> 1)}")
            for i in range(nt5): put(glu(i)); put(hwrite(i))
            put(sel)
        if prio or eprio: k("s_setprio 0")
        k.wait_lg(); k.wait_vm("B0"); k("s_barrier")
        st(8); stb(0)
        if "dbl" in abl: k(f"s_cmp_eq_u32 s{sB}, 0\ns_mov_b32 s101, {288*1152}\ns_cselect_b32 s101, s101, {-288*1152}")
        if "cnt" in abl: k("s_mov_b32 s99, 0")
        HB = 112; AB = [80, 96]; WG = [28, 40, 52]; SD = 64
        def hreg(kp, nt): return HB + (kp*4+nt)*4
        def wgreg(gi, c): return WG[gi] + 4*c
        def wdread(u, gi):
            out = []
            for c in range(3):
                d = wgreg(gi, c); kp = gi*3+c
                out += [f"ds_read_b64_tr_b16 v[{d+2*h}:{d+2*h+1}], v{vWD[u % 4]} offset:{kp*4096 + h*2048}" for h in range(2)]
            return out
        def mfb(u, gi):
            out = []
            for nt in range(4):
                a = AB[u % 2]+4*nt
                for c in range(3):
                    out.append(f"{MF} {vr(a, 4)}, {vr(wgreg(gi, c), 4)}, {vr(hreg(gi*3+c, nt), 4)}, {'0' if gi == 0 and c == 0 else vr(a, 4)}")
            return out
        cvt = lambda u, h: [f"v_cvt_pk_bf16_f32 v{AB[u % 2]+8*h+q}, v{AB[u % 2]+8*h+2*q}, v{AB[u % 2]+8*h+2*q+1}" for q in range(4)]
        hread = lambda kp: [f"ds_read_b128 {vr(hreg(kp, nt), 4)}, v{vHR} offset:{(nt*9+kp)*1024}" for nt in range(4)]
        dmat = lambda t: (dmaB(2, five) + dmaB(3, five)) if t == 1 else (dmaB(t+2, five) if 2 <= t <= 6 else [])
        def phaseB_L():
            rounds = lambda ph: list(range(PH[ph-1]+1 if ph else 0, PH[ph]+1))
            TAG = lambda u: [0x1, 0x10000, 0x10001][(u+3)//4]
            alias = lambda u: 5 + (u-5) % 4
            def endslot(t):
                if t <= 7: k.wait_lg(); k.wait_vm(f"B{t+1}"); k("s_barrier")
                if t < 9: stb(t+1)
            arr_at = {c+4: ph for ph, c in enumerate(PH) if c+4 <= 9}
            tch_at = {t+1: ph for t, ph in arr_at.items() if t+1 <= 8 and ph < ntouch}
            if not five:
                def send(u):
                    lab = f"{name}_s{u}"
                    txt = f"s_add_u32 s3, s{sPO}, {alias(u)*8192}\n" + "\n".join(f"buffer_store_dwordx4 {vr(AB[u % 2]+8*h, 4)}, v{vPO}, {S4(sP)}, s3 offen offset:{h*128} POL" for h in range(2))
                    k(f"s_cmp_eq_u32 s{sLoc}, 0\ns_cbranch_scc1 {lab}_r")
                    q0 = k.seq
                    k(txt.replace("POL", ""))
                    k(f"s_branch {lab}_d\n{lab}_r:")
                    k.seq = q0
                    k(txt.replace("POL", "sc1"))
                    k.seq += 1
                    k(f"{lab}_d:")
                tag = lambda u, h: [f"s_mov_b32 s4, {TAG(u)}\nv_bfi_b32 v{AB[u % 2]+8*h}, v{vMK}, s4, v{AB[u % 2]+8*h}"]
                poll = lambda ph, tv: f"s_mov_b32 s3, {ph*32768}\nbuffer_load_dword v{tv}, v{vFL}, {S4(sF)}, s3 offen sc1"
                def check(ph, tv): spin(f"{name}_c{ph}", poll(ph, tv).split("\n")[1], f"s_mov_b32 s3, {ph*32768}\nv_cmp_eq_u32 vcc, 0, v{tv}")
                for t in range(9):
                    put(wdread(t, 0))
                    if t == 0:
                        for kp in range(3): put(hread(kp))
                        put(interleave(mfb(0, 0), wdread(0, 1) + hread(3)+hread(4)+hread(5)))
                        put(interleave(mfb(0, 1), wdread(0, 2) + hread(6)+hread(7)+hread(8)))
                    else:
                        d = mfb(t-1, 2)
                        put(d[:9]); put(interleave(d[9:], cvt(t-1, 0) + tag(t-1, 0)))
                        g0 = mfb(t, 0); g1 = mfb(t, 1)
                        put(interleave(g0[:3], wdread(t, 1)[:2] + cvt(t-1, 1) + tag(t-1, 1)))
                        send(t-1)
                        dm = dmat(t); h = (len(dm)+1)//2
                        put(spread_in(interleave(g0[3:], wdread(t, 1)[2:] + [""]*5), dm[:h], 2 if h <= 5 else 1))
                        put(spread_in(interleave(g1, wdread(t, 2) + [""]*6), dm[h:], 2 if h <= 5 else 1))
                        if t in tch_at:
                            ph = tch_at[t]; check(ph, 64)
                            if ph == 0: k(f"buffer_load_dword v65, v{vHT}, {S4(sH)}, 0 offen sc1", tag="touch")
                            rr = rounds(ph); assert len(rr) <= 4
                            k(f"s_cmp_lt_u32 s{sCG}, {len(rr)}\ns_cselect_b32 s3, s{sCG}, {OOB >> 13}\ns_add_u32 s3, s3, {rr[0]}\ns_lshl_b32 s3, s3, 13\nbuffer_load_dword v65, v{vTR}, {S4(sP)}, s3 offen sc1", tag="touch")
                    endslot(t)
                    if t+1 in tch_at: k(poll(tch_at[t+1], 64))
                first = len(tch_at)
                put(mfb(8, 2)); put(cvt(8, 0) + tag(8, 0) + cvt(8, 1) + tag(8, 1)); send(8)
                st(9)
                home = lambda r: (HB+16*r, HB+16*r+8, HB+16*r+12)
                def rloads(r):
                    RB, HV, DA = home(r)
                    for pg in range(2): k(f"s_add_u32 s3, s{sRD}, {r*8192 + pg*4*9*8192}\nbuffer_load_dwordx4 {vr(RB+4*pg, 4)}, v{vRD}, {S4(sP)}, s3 offen sc1")
                    k(f"s_movk_i32 s3, {r*2048}\nbuffer_load_dwordx2 {vr(HV, 2)}, v{vHO}, {S4(sH)}, s3 offen sc1")
                def rsum(r):
                    RB, HV, DA = home(r)
                    for pg in range(2): k(f"{MF} {vr(DA, 4)}, {vr(SEL, 4)}, {vr(RB+4*pg, 4)}, {'0' if pg == 0 else vr(DA, 4)}")
                    k(f"v_lshlrev_b32 v{RB}, 16, v{HV}\nv_and_b32 v{RB+1}, 0xffff0000, v{HV}\nv_lshlrev_b32 v{RB+2}, 16, v{HV+1}\nv_and_b32 v{RB+3}, 0xffff0000, v{HV+1}")
                def rfin(r):
                    RB, HV, DA = home(r)
                    for q in range(4): k(f"v_fma_f32 v{RB+q}, v{DA+q}, s{sLN}, v{RB+q}")
                    k(f"v_cvt_pk_bf16_f32 v{HV}, v{RB}, v{RB+1}\nv_cvt_pk_bf16_f32 v{HV+1}, v{RB+2}, v{RB+3}")
                rout = lambda r: k(f"buffer_store_dwordx2 {vr(home(r)[1], 2)}, v{vOO}, {S4(sO)}, 0 offen offset:{r*128} {OUTPOL}")
                pend = [r for ph in range(first) for r in rounds(ph)]
                for r in pend: rloads(r)
                for ph in range(first, len(PH)):
                    k(poll(ph, 64))
                    for r in pend: rsum(r)
                    for r in pend: rfin(r)
                    check(ph, 64)
                    for r in rounds(ph): rloads(r)
                    for r in pend: rout(r)
                    pend = rounds(ph)
                for r in pend: rsum(r)
                for r in pend: rfin(r); rout(r)
            else:
                sld = lambda u: f"s_add_u32 s3, s{sPO}, {alias(u)*8192}\n" + "\n".join(f"buffer_load_dwordx4 {vr(SD+4*h, 4)}, v{vPO}, {S4(sP)}, s3 offen offset:{h*128} sc1" for h in range(2))
                def add(u):
                    if "nol1chk" not in abl:
                        spin(f"{name}_k{u}", sld(u), f"s_mov_b32 s4, {TAG(u)}\nv_and_b32 v78, v{vMK}, v{SD}\nv_and_b32 v79, v{vMK}, v{SD+4}\nv_xor_b32 v78, s4, v78\nv_xor_b32 v79, s4, v79\nv_or_b32 v78, v78, v79\nv_cmp_ne_u32 vcc, 0, v78")
                    put([f"{MF} {vr(AB[u % 2]+8*h+4*q, 4)}, {vr(SK+2-2*q, 4)}, {vr(SD+4*h, 4)}, {vr(AB[u % 2]+8*h+4*q, 4)}" for h in range(2) for q in range(2)])
                pst = lambda u: [(f"s_add_u32 s3, s{sPO}, {u*8192}\nbuffer_store_dwordx4 {vr(AB[u % 2]+8*h, 4)}, v{vPO}, {S4(sP)}, s3 offen offset:{h*128} sc1", f"P{u}") for h in range(2)]
                def arrive1(ph):
                    k.wait_vm(f"P{PH[ph]}")
                    k(f"s_mov_b64 exec, 1\nds_add_rtn_u32 v7, v{vFL}, v{vFV} offset:{ph*4}\ns_mov_b64 exec, -1")
                def arrive2(ph):
                    k(f"v_readfirstlane_b32 s3, v7\ns_cmp_lg_u32 s3, 3\ns_cbranch_scc1 {name}_ar{ph}\ns_mov_b32 s3, {ph*32768}\nbuffer_store_dword v{vFV}, v{vFS}, {S4(sF)}, s3 offen sc1\n{name}_ar{ph}:")
                for kp in range(9): put(hread(kp))
                endslot(0)
                for t in range(1, 10):
                    u = t-1
                    put(wdread(u, 0))
                    if u >= 1: k(sld(u-1))
                    if u >= 2: put(pst(u-2))
                    if u >= 1: put(mfb(u-1, 2))
                    put(interleave(mfb(u, 0), wdread(u, 1) + [""]*6))
                    g1 = mfb(u, 1)
                    put(interleave(g1[:6], wdread(u, 2)))
                    if u >= 1:
                        add(u-1)
                        if t == 9: k(sld(8))
                        if t in arr_at: arrive1(arr_at[t])
                        put(g1[6:9])
                        put(interleave(g1[9:], cvt(u-1, 0) + cvt(u-1, 1)))
                        if t in arr_at: arrive2(arr_at[t])
                    else: put(g1[6:])
                    endslot(t)
                put(pst(7))
                put(mfb(8, 2)); add(8)
                st(9)
                p8 = pst(8)
                put(cvt(8, 0) + p8[:1] + cvt(8, 1) + p8[1:])
                for ph in range(len(arr_at), len(PH)): arrive1(ph); arrive2(ph)
        def phaseB_S():
            pst = lambda u, h: (f"s_add_u32 s3, s{sPO}, {u*16384}\nbuffer_store_dwordx4 {vr(AB[u % 2]+8*h, 4)}, v{vPO}, {S4(sP)}, s3 offen offset:{h*128} sc1", f"P{u}")
            own = lambda u: [f"s_mov_b64 exec, s[{sEX}:{sEX+1}]\n" + "\n".join(f"ds_write_b128 v{vTR}, {vr(AB[u % 2]+8*h, 4)} offset:{u*1024+h*128}" for h in range(2)) + "\ns_mov_b64 exec, -1"] if skip else []
            epib = lambda u: cvt(u, 0) + [pst(u, 0)] + cvt(u, 1) + ([] if "half" in abl else [pst(u, 1)]) + own(u)
            def signal(ph):
                if five: k(f"s_cmp_lg_u32 s{sW}, 0\ns_cbranch_scc1 {name}_sig{ph}\ns_mov_b32 s3, {ph*32768}\nbuffer_store_dword v{vFV}, v{vFS}, {S4(sF)}, s3 offen sc1\n{name}_sig{ph}:")
            poll = lambda ph, tv: f"s_mov_b32 s3, {ph*32768}\nbuffer_load_dword v{tv}, v{vFL}, {S4(sF)}, s3 offen sc1"
            def check(ph, tv): spin(f"{name}_{P}c{ph}", poll(ph, tv).split("\n")[1], f"s_mov_b32 s3, {ph*32768}\n{notyet(tv)}")
            rounds = lambda ph: list(range(PH[ph-1]+1 if ph else 0, PH[ph]+1))
            mine = lambda rr: [r for r in rr if (r % 2 == 0) == five]
            sig_at = {c+lag+1: ph for ph, c in enumerate(PH) if c+lag+1 <= 8}
            rd_at = {u+1: ph for u, ph in sig_at.items() if u+1 <= 8 and ph < inl}
            inloop = [r for ph in rd_at.values() for r in rounds(ph)]
            assert not (nl and inloop)
            home = lambda r: (64, 6, 24) if r in inloop else (HB+24*(r >> 1), HB+24*(r >> 1)+16, HB+24*(r >> 1)+20)
            def rloads(r):
                RB, HV, DA = home(r); out = []
                for pg in range(2 if "half" in abl else 4):
                    ld = f"buffer_load_dwordx4 {vr(RB+4*pg, 4)}, v{vRD}, {S4(sP)}, s3 offen sc1"
                    if skip and pg == 0: ld = f"s_mov_b64 exec, 0xffff\nds_read_b128 {vr(RB, 4)}, v{vHT} offset:{r*1024}\ns_mov_b32 exec_hi, -1\ns_mov_b32 exec_lo, 0xffff0000\n{ld}\ns_mov_b64 exec, -1"
                    out.append(f"s_add_u32 s3, s{sRP+pg}, {r*16384}\n{ld}")
                out.append(f"s_movk_i32 s3, {r*2048}\nbuffer_load_dwordx2 {vr(HV, 2)}, v{vHO}, {S4(sH)}, s3 offen sc1")
                return out
            def rsum(r):
                RB, HV, DA = home(r)
                return [f"{MF} {vr(DA, 4)}, {vr(SEL, 4)}, {vr(RB+4*pg, 4)}, {'0' if pg == 3 else vr(DA, 4)}" for pg in (3, 2, 1, 0)]
            def rfin(r):
                RB, HV, DA = home(r)
                return [f"v_lshlrev_b32 v{RB}, 16, v{HV}", f"v_and_b32 v{RB+1}, 0xffff0000, v{HV}", f"v_lshlrev_b32 v{RB+2}, 16, v{HV+1}", f"v_and_b32 v{RB+3}, 0xffff0000, v{HV+1}"] + \
                       [f"v_fma_f32 v{RB+q}, v{DA+q}, {f'v{vSC}' if nl else f's{sLN}'}, v{RB+q}" for q in range(4)] + \
                       [f"v_cvt_pk_bf16_f32 v{HV}, v{RB}, v{RB+1}", f"v_cvt_pk_bf16_f32 v{HV+1}, v{RB+2}, v{RB+3}"]
            rout = lambda r: [f"buffer_store_dwordx2 {vr(home(r)[1], 2)}, v{vOO}, {S4(sO)}, 0 offen offset:{r*128} {OUTPOL}"]
            pend = []
            if bprio and five == (bprio == 1): k("s_setprio 1")
            for u in range(9):
                put(wdread(u, 0))
                if u in sig_at: signal(sig_at[u])
                if u == 0:
                    for kp in range(3): put(hread(kp))
                    put(interleave(mfb(0, 0), wdread(0, 1) + hread(3)+hread(4)+hread(5)))
                    put(interleave(mfb(0, 1), wdread(0, 2) + hread(6)+hread(7)+hread(8)))
                    if nl: k(f"buffer_load_dword v{vSC}, v{vSC}, {S4(sF)}, 0 offen sc1")
                    if otouch: k(f"buffer_load_dword v19, v{vOO}, {S4(sO)}, 0 offen", tag="touch")
                else:
                    put(spread_in(mfb(u-1, 2), dmat(u), 2 if u > 1 and 'dbl' not in abl else 1))
                    put(interleave(mfb(u, 0), wdread(u, 1) + epib(u-1)))
                    g1 = mfb(u, 1); fill = []
                    if pend and u not in rd_at:
                        r = pend.pop(); g1 = g1[:6] + rsum(r) + g1[6:]; fill = [""]*8 + rfin(r) + rout(r)
                    elif u in rd_at and mine(rounds(rd_at[u])):
                        assert not pend and len(mine(rounds(rd_at[u]))) == 1
                        check(rd_at[u], 19); pend = mine(rounds(rd_at[u])); fill = rloads(pend[0])
                    put(interleave(g1[:6], wdread(u, 2))); put(interleave(g1[6:], fill) if fill else g1[6:])
                    if u == 8:
                        for ph in sig_at.values():
                            if ph not in rd_at.values(): k(poll(ph, 28+ph))
                code_touch(18+u)
                if u < 8:
                    k.wait_lg(); k.wait_vm(f"B{u+1}", f"P{PH[sig_at[u+1]]}" if u+1 in sig_at else "-"); k("s_barrier")
                if u+1 in rd_at and mine(rounds(rd_at[u+1])): k(poll(rd_at[u+1], 19))
                if u < 9: stb(u+1)
            put(mfb(8, 2))
            st(9)
            put(epib(8))
            if nl: k(f"v_mul_f32 v{vSC}, s{sLN}, v{vSC}")
            tailph = list(range(len(sig_at), len(PH)))
            if sigfirst and len(tailph) > 1 and order == 0:
                for ph in tailph[:-1]:
                    k.wait_vm(f"P{PH[ph]}"); k("s_barrier"); signal(ph)
            for ph in sig_at.values():
                if ph in rd_at.values(): continue
                check(ph, 28+ph)
                if "tail" in abl: k("s_memrealtime s[62:63]")
                for r in mine(rounds(ph)): put(rloads(r)); pend.append(r)
            if sigfirst:
                for ph in (tailph if order else tailph[-1:]):
                    k.wait_lg(); k.wait_vm(f"P{PH[ph]}")
                    if "tail" in abl: k("s_memrealtime s[64:65]")
                    k("s_barrier")
                    if "tail" in abl: k("s_memrealtime s[66:67]")
                    signal(ph)
            for ph in tailph:
                if not sigfirst:
                    k.wait_lg(); k.wait_vm(f"P{PH[ph]}"); k("s_barrier"); signal(ph)
                if not mine(rounds(ph)): continue
                k(poll(ph, 19))
                done = list(pend) if sigfirst and ph == len(PH)-1 else pend[:1]
                for r in done: put(rsum(r)); put(rfin(r))
                check(ph, 19)
                if "tail" in abl: k("s_memrealtime s[68:69]")
                for r in mine(rounds(ph)): put(rloads(r)); pend.append(r)
                for r in done: put(rout(r)); pend.remove(r)
            for r in pend: put(rsum(r)); put(rfin(r)); put(rout(r))
        phaseB_L() if LP else phaseB_S()
        if stamp:
            k("s_waitcnt vmcnt(0) lgkmcnt(0)\ns_memrealtime s[4:5]" + ("\ns_memtime s[70:71]" if "clk" in abl else "") + "\ns_waitcnt lgkmcnt(0)")
            for i in range(10): k(f"v_mov_b32 v{28+i}, s{60+2*i}")
            k(f"""v_mov_b32 v38, s4
v_mov_b32 v39, s99
s_lshl_b32 s3, s2, 3
s_add_u32 s3, s3, s{sW}
s_lshl_b32 s3, s3, 6
s_add_u32 s3, s3, {O_STAMP}
v_mov_b32 v40, s3
global_store_dwordx4 v40, v[28:31], s[6:7]
global_store_dwordx4 v40, v[32:35], s[6:7] offset:16
global_store_dwordx4 v40, v[36:39], s[6:7] offset:32""")
            if "orc" in abl and not five:
                X = int(abl.split("orc")[1][:3])/10; which = abl.split("orc")[1][3:4] or "a"
                k(f"""s_cmp_lg_u32 s2, 0
s_cbranch_scc1 {name}_noorc
s_cmp_lg_u32 s{sW}, 4
s_cbranch_scc1 {name}_noorc
v_mov_b32 v41, {O_STAMP + 262144}
global_load_dword v44, v41, s[6:7]
s_waitcnt vmcnt(0)
v_readfirstlane_b32 s3, v44
s_sub_u32 s3, s{4 if which == 'a' else 60+2*int(which)}, s3
s_cmp_lt_u32 s3, {int(X*100)}
s_cbranch_scc1 {name}_noorc
s_movk_i32 s3, 60
{name}_orcl:
s_sleep 64
s_sub_u32 s3, s3, 1
s_cbranch_scc0 {name}_orcl
{name}_noorc:""")
                k.saved.pop(f"{name}_orcl", None)
            if "until" in abl and not five:
                k(f"""s_cmp_lg_u32 s2, 0
s_cbranch_scc1 {name}_nount
s_cmp_lg_u32 s{sW}, 4
s_cbranch_scc1 {name}_nount
v_mov_b32 v41, {O_STAMP + 262144}
global_load_dword v44, v41, s[6:7]
s_waitcnt vmcnt(0)
v_readfirstlane_b32 s3, v44
{name}_untl:
s_memrealtime s[4:5]
s_waitcnt lgkmcnt(0)
s_sub_u32 s4, s4, s3
s_cmp_lt_u32 s4, 8000
s_cbranch_scc1 {name}_untl
{name}_nount:""")
                k.saved.pop(f"{name}_untl", None)
            if "dbg" in abl and not five:
                k(f"""s_cmp_lg_u32 s2, 0
s_cbranch_scc1 {name}_nodbg
s_cmp_lg_u32 s{sW}, 4
s_cbranch_scc1 {name}_nodbg
s_load_dwordx2 s[8:9], s[0:1], 64
v_mov_b32 v41, {O_STAMP + 262144}
global_load_dwordx4 v[44:47], v41, s[6:7]
global_load_dwordx4 v[48:51], v41, s[6:7] offset:16
v_mov_b32 v41, {O_STAMP + 2*262144}
global_load_dwordx4 v[52:55], v41, s[6:7]
global_load_dwordx4 v[56:59], v41, s[6:7] offset:16
s_waitcnt vmcnt(0) lgkmcnt(0)
s_sub_u32 s8, s8, {int(abl.split('dbg')[1][0])*512}
s_subb_u32 s9, s9, 0
v_sub_u32 v60, v46, v44
v_sub_u32 v61, v50, v44
v_sub_u32 v62, v52, v44
v_sub_u32 v63, v57, v44""")
                for i in range(11): k(f"v_sub_u32 v{64+i}, v{28+i}, v44")
                k(f"""v_mov_b32 v75, 12345
v_mov_b32 v41, 0
global_store_dwordx4 v41, v[60:63], s[8:9]
global_store_dwordx4 v41, v[64:67], s[8:9] offset:16
global_store_dwordx4 v41, v[68:71], s[8:9] offset:32
global_store_dwordx4 v41, v[72:75], s[8:9] offset:48
{name}_nodbg:""")
    k(f"s_cmp_ge_u32 s{sW}, 4\ns_cbranch_scc1 {name}_p4")
    path(True)
    k(f"s_endpgm\n{name}_p4:")
    path(False)
    k(f"{name}_end:")
    return k
```

```python
from asmlib import *
from layout import *
import struct
def fl(x): return "0x%08x" % struct.unpack("<I", struct.pack("<f", x))[0]
MF = "v_mfma_f32_16x16x32_bf16"
def ws_srd(k, d, off, nbytes, ws=6):
    k(f"s_add_u32 s{d}, s{ws}, {off}\ns_addc_u32 s{d+1}, s{ws+1}, 0\ns_mov_b32 s{d+2}, {nbytes}\ns_mov_b32 s{d+3}, 0x20000")
def srd_tail(k, d, nbytes): k(f"s_mov_b32 s{d+2}, {nbytes}\ns_mov_b32 s{d+3}, 0x20000")
S4 = lambda d: f"s[{d}:{d+3}]"


def build_pf(look=3, nd=2, spread=3, stamp=False, abl="", name="pf", OUTPOL="", WPOL="", DPOL="", TPOL="", dstage=11, safe=0, XPOL="sc1", TPOLD="", ahead=4,
             phases="478", lag=2, ntouch=0, prio="", fuse=0, pk=1, W2=1, mode="S", merge=1, hlate=1, ctouch="h", pair=0, spread4=0, sp0=0, upos=1, eprio=0, bprio=0, mono=0, gnap=0, p1o={}, NREPL=16, depi=17, droll=0, nl=0, wlate=1, sigfirst=1, order=0, ptouch=0, otouch=0, bulk=0, vprio=1, cprio=0, drain=1, ib2=1, nap=0, early=0, su3=0, w4p=0, late1=0, idlepf=1, inl=0, skip=1, lph="1358", istage=1, tstage=7):
    LP = mode == "L"
    PH = [int(c) for c in str(lph if LP else phases)]
    k = K(name, 256, 512, lds=163840, vgpr=256, sgpr=102)
    sG, sU, sD, sX, sP, sF, sS, sH, sO, sV, sI, sT = 8, 12, 16, 20, 24, 28, 32, 36, 40, 44, 48, 52
    sW, sMT, sSL, sRG = 56, 57, 58, 59
    sA, sKW, sKX, sM0a, sM0x, sM0s, sKD, sM0d, sPO, sCG, sRD, sLN, sLoc, sS1 = range(80, 94)
    sF1 = 96; sB = 97; sXC = 98
    vL, vDX, vD0, vD1, vD2, vT0, vT1, vT2 = range(8)
    vXr = [8, 9, 10]; vWA = [11, 12, 13]; vWB = [14, 15, 16]
    SLOT_A = [0, 45056, 90112]; RING_B = [0, 36864, 90112, 126976]; HH = 90112; OWN = 73728; WO = 8192
    wslot = lambda s: SLOT_A[s % 3]; xslot = wslot
    if pair:
        assert not (early or LP or fuse or bulk or nl or droll or late1)
        RING_B = [73728, 110592, 0, 36864]; HH = 0; OWN = 147456; WO = 0
        wslot = lambda s: (s % 4)*36864; xslot = lambda s: 147456 + (s & 1)*8192
        vWA = [13, 11]; vWB = [16, 14]
    vDD, vPO, vHW = 17, 18, 19
    vWD = [20, 21, 22, 23]
    vHR, vHW2, vZ, vQ = 24, 25, 26, 27
    def stb(i):
        if stamp and "bst" in abl: k(f"s_memrealtime s[{60+2*i}:{61+2*i}]")
    def st(i):
        if stamp and "clk" in abl:
            if i >= 6: k(f"s_memrealtime s[{60+2*i}:{61+2*i}]\ns_memtime s[{60+2*(i-5)}:{61+2*(i-5)}]")
            elif i == 0: k("s_memrealtime s[60:61]")
            return
        if stamp and "bst" not in abl: k(f"s_memrealtime s[{60+2*i}:{61+2*i}]")
    def put(items):
        for x in items:
            t = x[0] if isinstance(x, tuple) else x
            if "nodma" in abl and " lds" in t and x[1] not in ("A0", "A1"): continue
            if "nop2" in abl and "buffer_store" in t and isinstance(x, tuple) and x[1].startswith("P"): continue
            if "nomfma" in abl and "v_mfma" in t: continue
            if isinstance(x, tuple): k(x[0], tag=x[1])
            else: k(x)
    def spin(lab, load, cond, nap=0):
        bound = f"s_sub_u32 s5, s5, 1\ns_cbranch_scc1 {lab}_ok\n" if safe else ""
        k(f"{cond}\ns_cbranch_vccz {lab}_ok\n{f's_mov_b32 s5, {20000 if safe == 1 else 4000000}' if safe else ''}\n{lab}_spin:\n{'s_add_u32 s99, s99, 1' if 'cnt' in abl else ''}\n{bound}{f's_sleep {nap}' if nap else ''}\n{load}\ns_waitcnt vmcnt(0)\n{cond}\ns_cbranch_vccnz {lab}_spin\n{lab}_ok:")
        k.saved.pop(lab + "_spin", None)
    st(0)
    sNC = 0 if mono else None
    FV = f"s{sNC}" if mono else "1"
    notyet = lambda v: f"v_cmp_ne_u32 vcc, s{sNC}, v{v}" if mono else f"v_cmp_eq_u32 vcc, 0, v{v}"
    if mono:
        assert not (early or nl or droll or LP)
        from fft import build_p1
        build_p1(MERGE=1, mono=k, **p1o)
        k(f"""{name}_join:
s_setprio 0
s_mov_b32 s2, s101
s_mov_b32 s{sW}, s100""")
    k(f"""
{'' if mono else 's_load_dwordx2 s[6:7], s[0:1], 72'}
s_load_dwordx2 s[{sG}:{sG+1}], s[0:1], 32
s_load_dwordx2 s[{sU}:{sU+1}], s[0:1], 40
s_load_dwordx2 s[{sI}:{sI+1}], s[0:1], 0
s_load_dwordx2 s[{sD}:{sD+1}], s[0:1], 48
s_load_dwordx2 s[{sO}:{sO+1}], s[0:1], 56""")
    if not mono: k(f"""s_cmp_ge_u32 s2, 256
s_cbranch_scc1 {name}_end
v_lshrrev_b32 v{vT0}, 6, v0
v_and_b32 v{vL}, 63, v0
v_readfirstlane_b32 s{sW}, v{vT0}""")
    k(f"""
s_lshr_b32 s3, s2, 3
s_and_b32 s{sMT}, s3, 15
s_lshr_b32 s{sB}, s3, 4
s_and_b32 s{sXC}, s2, 7
s_lshl_b32 s4, s{sXC}, 1
s_add_u32 s{sSL}, s4, s{sB}
v_lshlrev_b32 v{vDX}, 4, v{vL}
v_mov_b32 v{vZ}, 0
v_mov_b32 v37, 0
v_mov_b32 v2, 0
v_mov_b32 v3, 0
v_mov_b32 v4, 0
v_mov_b32 v47, 0
v_mov_b32 v30, 0
""")
    o = 32
    R = lambda n: n + o
    sS2, sNT, sVB, sXO, sSO = 99, sB, 100, 101, (96 if early else 50 if hlate else sRD)
    assert not (early and LP)
    sAct = 92
    L, MB_, AC, TW, G, XX = R(16), R(48), R(64), R(96), R(120), R(160)
    EZ = 90112; ES = EZ + 20480
    g_, n_, vVA, vHS, vRow, vXo, vEW, vSW, vSR = R(2), R(3), R(4), R(5), R(6), R(7), R(9), R(14), R(15)
    t0, t1, t2, t3 = R(10), R(11), R(12), R(13)
    assert merge
    NV = O_TAB - O_U + N_TAB
    vloads = "\n".join(f"s_add_u32 s3, s{sVB}, {(16*kk+t)*64*ROWB}\nbuffer_load_dwordx4 {vr(L+16*kk+4*t, 4)}, v{vVA}, {S4(sV)}, s3 offen sc1" for kk in range(2) for t in range(4))
    k(f"""
s_and_b32 s3, s{sXC}, 3
s_lshl_b32 s{sS2}, s{sMT}, 2
s_add_u32 s{sS2}, s{sS2}, s3
s_lshr_b32 s3, s{sXC}, 2
s_and_b32 s4, s{sMT}, 1
s_cmp_eq_u32 s3, s4
s_cselect_b32 s{sAct}, 1, 0
s_lshl_b32 s3, s{sB}, 3
s_lshr_b32 s4, s{sMT}, 1
s_add_u32 s81, s3, s4
s_waitcnt lgkmcnt(0)
""")
    ws_srd(k, sV, O_V, NV)
    if mono:
        ws_srd(k, sF, O_FLG, N_FLG)
        gl = f"buffer_load_dwordx4 v[8:11], v{vDX}, {S4(sF)}, s94 offen sc1"
        k(f"""v_readfirstlane_b32 s{sNC}, v200
s_add_u32 s{sNC}, s{sNC}, 1
s_lshl_b32 s3, s2, 2
v_lshl_add_u32 v{vT0}, v{vL}, 10, s3
v_mov_b32 v{vT1}, {OOB}
v_cmp_gt_u32 vcc, {NREPL}, v{vL}
v_cndmask_b32 v{vT0}, v{vT1}, v{vT0}, vcc
v_mov_b32 v{vT1}, s{sNC}
s_lshr_b32 s3, s2, 3
s_and_b32 s3, s3, {NREPL-1}
s_lshl_b32 s3, s3, 10
s_add_u32 s94, s3, {F_G}
s_mov_b32 s3, {F_G}
s_waitcnt vmcnt(0)
s_barrier""")
        st(1)
        k(f"""s_cmp_lg_u32 s{sW}, 7
s_cbranch_scc1 {name}_j2
buffer_store_dword v{vT1}, v{vT0}, {S4(sF)}, s3 offen sc1
{gl}""")
        spin(f"{name}_g", gl, f"v_xor_b32 v8, s{sNC}, v8\nv_xor_b32 v9, s{sNC}, v9\nv_xor_b32 v10, s{sNC}, v10\nv_xor_b32 v11, s{sNC}, v11\nv_or3_b32 v8, v8, v9, v10\nv_or_b32 v8, v8, v11\nv_cmp_ne_u32 vcc, 0, v8", gnap)
        k(f"""s_cmp_lg_u32 s2, 0
s_cbranch_scc1 {name}_j2
s_mov_b32 s3, {F_N}
buffer_store_dword v{vT1}, v{vZ}, {S4(sF)}, s3 offen sc1
{name}_j2:
s_barrier""")
    def common_setup():
        k(f"""
v_lshrrev_b32 v{g_}, 4, v{vL}
v_and_b32 v{n_}, 15, v{vL}
s_lshl_b32 s3, s{sW}, 4
v_add_u32 v{vVA}, s3, v{n_}
v_lshlrev_b32 v{vVA}, 4, v{vVA}
v_mul_u32_u24 v{t0}, {4*64*ROWB}, v{g_}
v_add_u32 v{vVA}, v{vVA}, v{t0}
s_mul_i32 s{sVB}, s{sS2}, {ROWB}
s_lshl_b32 s3, s{sNT}, 4
v_add_u32 v{vRow}, s3, v{n_}
v_lshl_add_u32 v{vRow}, v{vRow}, 6, s{sS2}
v_mul_u32_u24 v{vXo}, 1152, v{vRow}
v_lshl_add_u32 v{vXo}, v{g_}, 5, v{vXo}
s_lshl_b32 s{sXO}, s{sW}, 7
""")
        srd_tail(k, sI, N_H); ws_srd(k, sT, O_TAB, N_TAB)
        ws_srd(k, sX, O_XF, N_XF); ws_srd(k, sH, O_H, N_H); ws_srd(k, sF, O_FLG, N_FLG)
        for d in (sG, sU, sD): srd_tail(k, d, N_W)
        srd_tail(k, sO, N_H)
        ws_srd(k, sP, O_P, N_P)
        k(f"s_bitcmp0_b32 s{sW}, 1\ns_cselect_b32 s{sS}, s{sG}, s{sU}\ns_cselect_b32 s{sS+1}, s{sG+1}, s{sU+1}")
        srd_tail(k, sS, N_W)
    def pattern(vd):
        k(f"""
s_lshl_b32 s4, s3, 6
v_add_u32 v{vT0}, s4, v{vL}
v_mul_u32_u24 v{vT1}, 1821, v{vT0}
v_lshrrev_b32 v{vT1}, 16, v{vT1}
v_mul_u32_u24 v{vT2}, 36, v{vT1}
v_sub_u32 v{vT0}, v{vT0}, v{vT2}
v_lshrrev_b32 v{vT2}, 2, v{vT1}
v_and_b32 v{vT2}, 2, v{vT2}
v_xor_b32 v{vT0}, v{vT0}, v{vT2}
v_lshlrev_b32 v{vT0}, 4, v{vT0}
v_and_b32 v{vT2}, 24, v{vT1}
v_add_u32 v{vT1}, v{vT1}, v{vT2}
v_mul_u32_u24 v{vT1}, 9216, v{vT1}
v_add_u32 v{vd}, v{vT0}, v{vT1}
""")
    def mlp_setup():
        k(f"s_and_b32 s{sRG}, s{sW}, 1\ns_bfe_u32 s{sA}, s{sW}, 0x10001\n{'s_and_b32' if LP else 's_lshr_b32'} s{sCG}, s{sW}, {3 if LP else 1}")
        k(f"s_lshl_b32 s3, s{sW}, 1"); pattern(vD0)
        k(f"s_add_u32 s3, s3, 1"); pattern(vD1)
        k(f"s_add_u32 s3, s{sRG}, 16"); pattern(vD2)
        k(f"""
s_mul_i32 s{sKW}, s{sSL}, 576
s_lshl_b32 s3, s{sMT}, 3
s_add_u32 s3, s3, s{sW}
s_mul_i32 s{sKX}, s3, 18432
s_lshl_b32 s{sM0x}, s{sW}, 10
s_lshl_b32 s{sM0a}, s{sW}, 11
s_add_u32 s{sM0a}, s{sM0a}, {WO}
s_mul_i32 s3, s{sA}, 18432
s_lshl_b32 s4, s{sRG}, 10
s_add_u32 s3, s3, s4
s_add_u32 s{sM0s}, s3, {WO+16*1024}
""")
    def dmaX(s):
        return [(f"s_add_u32 m0, s{sM0x}, {xslot(s)}\ns_add_u32 s94, s{sKX}, {s*1024}\nbuffer_load_dwordx4 v{vDX}, {S4(sX)}, s94 offen {XPOL} lds", f"A{s}")]
    def dmaW(s, six):
        o = wslot(s)
        g = [f"s_add_u32 m0, s{sM0a}, {o}\ns_add_u32 s95, s{sKW}, {((s >> 1)*64 + (s & 1)*8)*9216}\nbuffer_load_dwordx4 v{vD0}, {S4(sG)}, s95 offen {WPOL} lds",
             f"s_add_u32 m0, s{sM0a}, {o+1024}\nbuffer_load_dwordx4 v{vD1}, {S4(sG)}, s95 offen {WPOL} lds",
             f"s_add_u32 m0, s{sM0a}, {o+18432}\nbuffer_load_dwordx4 v{vD0}, {S4(sU)}, s95 offen {WPOL} lds",
             f"s_add_u32 m0, s{sM0a}, {o+18432+1024}\nbuffer_load_dwordx4 v{vD1}, {S4(sU)}, s95 offen {WPOL} lds"]
        if six: g.append(f"s_add_u32 m0, s{sM0s}, {o}\nbuffer_load_dwordx4 v{vD2}, {S4(sS)}, s95 offen {WPOL} lds")
        return [(x, f"A{s}") for x in g]
    def dmaB(u, five):
        o = RING_B[u % 4]
        if LP and five: return []
        if "dbl" in abl:
            return [(f"s_add_u32 m0, s{sM0d}, {o+i*1024}\ns_add_u32 s94, s{sKD}, {i*8*1152+u*128}\n{'s_xor_b32 s94, s94, 0' if q == 0 else 's_add_u32 s94, s94, s101'}\nbuffer_load_dwordx4 v{vDD}, {S4(sD)}, s94 offen {DPOL} lds", f"B{u}") for q in range(2) for i in range(4 if five else 5)]
        return [(f"s_add_u32 m0, s{sM0d}, {o+i*1024}\ns_add_u32 s94, s{sKD}, {i*8*1152+u*128}\nbuffer_load_dwordx4 v{vDD}, {S4(sD)}, s94 offen {DPOL} lds", f"B{u}") for i in range(9 if LP else 4 if five else 5)]
    def first_w(lab, only=None):
        for s in (only or ((0,) if late1 else (0, 1))):
            put(dmaW(s, False))
            k(f"s_cmp_lt_u32 s{sW}, 4\ns_cbranch_scc1 {lab}{s}")
            put(dmaW(s, True)[4:])
            k(f"{lab}{s}:")
    def bulk_w():
        k(f"s_sub_u32 s3, s{sW}, 5\ns_mul_i32 s3, s3, 6\ns_lshl_b32 s5, s3, 10\ns_add_u32 s5, s5, 8192\ns_add_u32 s95, s{sKW}, {8*9216}")
        for i in range(6):
            pattern(t0)
            for s_, so in ((0, sKW), (1, 95))[:1 if bulk == 2 else 2]:
                for m, d in enumerate((sG, sU)):
                    k(f"s_add_u32 m0, s5, {SLOT_A[s_] + m*18432 + i*1024}\nbuffer_load_dwordx4 v{t0}, {S4(d)}, s{so} offen {WPOL} lds", tag="A0")
            k("s_add_u32 s3, s3, 1")
    def rest_loads(lab):
        k(f"buffer_load_dwordx4 {vr(XX, 4)}, v{vXo}, {S4(sI)}, s{sXO} offen\nbuffer_load_dwordx4 {vr(XX+4, 4)}, v{vXo}, {S4(sI)}, s{sXO} offen offset:16")
        k(f"s_mul_i32 s3, s{sW}, 5120\ns_add_u32 s3, s3, 16384\ns_add_u32 s4, s3, 4096")
        for f in range(5): k(f"buffer_load_dwordx4 {vr(G+4*f, 4)}, v{vDX}, {S4(sT)}, s{3+f//4} offen offset:{(f % 4)*1024}")
        k(f"s_cmp_lg_u32 s{sW}, {W2}\ns_cbranch_scc1 {lab}")
        k(f"buffer_load_dwordx4 {vr(XX+8, 4)}, v{vXo}, {S4(sI)}, 0 offen offset:1024\nbuffer_load_dwordx4 {vr(XX+12, 4)}, v{vXo}, {S4(sI)}, 0 offen offset:1040")
        k(f"s_mov_b32 s3, {(16+40)*1024}\ns_mov_b32 s4, {(16+44)*1024}")
        for f in range(5): k(f"buffer_load_dwordx4 {vr(G+20+4*f, 4)}, v{vDX}, {S4(sT)}, s{3+f//4} offen offset:{(f % 4)*1024}")
        k(f"{lab}:")
    def matrices():
        k(f"""
v_cvt_f32_u32 v{t0}, v{vRow}
v_mul_f32 v{t0}, {fl(1/2048)}, v{t0}
v_cvt_f32_u32 v{t1}, v{g_}
v_mul_f32 v{t1}, 4.0, v{t1}
v_mul_f32 v{vEW}, v{t0}, v{t1}
""")
        for kk in range(2):
            for t in range(4):
                k(f"""v_fmamk_f32 v{t2}, v{t0}, {fl(float(16*kk+t))}, v{vEW}
v_cos_f32 v{t3}, v{t2}
v_sin_f32 v{t2}, v{t2}
v_cvt_pk_bf16_f32 v{MB_+4*kk+t}, v{t3}, -v{t2}
v_cvt_pk_bf16_f32 v{MB_+8+4*kk+t}, v{t2}, v{t3}""")
        tw = [f"s_lshl_b32 s3, s{sW}, 4", f"v_cvt_f32_u32 v{t0}, s3", f"v_add_f32 v{t1}, v{t1}, v{t0}"]
        for r in range(4):
            if r: tw.append(f"v_add_f32 v{t1}, 1.0, v{t1}")
            for q in range(1, 4):
                tw += [f"v_mul_f32 v{t2}, {fl(q/576)}, v{t1}", f"v_cos_f32 v{TW+8*(q-1)+r}, v{t2}", f"v_sin_f32 v{TW+8*(q-1)+4+r}, v{t2}"]
        return tw
    sSU = 96
    if merge:
        from fft import column_task
        k(f"""s_mov_b32 s{sSU}, 0
s_cmp_eq_u32 s{sAct}, 0
s_cbranch_scc1 {name}_qi
s_lshl_b32 s3, s81, 1
s_sub_u32 s4, s{sW}, 5
s_add_u32 s3, s3, s4
s_cmp_lt_u32 s4, 2
s_cbranch_scc1 {name}_col
s_cmp_lt_u32 s{sW}, 5
s_cbranch_scc0 {name}_nocol""")
        common_setup()
        put(matrices())
        k(f"""v_cmp_le_u32 vcc, 12, v{n_}
s_cmp_eq_u32 s{sW}, 4
s_cselect_b64 vcc, vcc, 0
v_cndmask_b32 v{vHS}, 0, 1, vcc
s_barrier""")
        rest_loads(f"{name}_rl3")
        k(f"s_barrier")
        if not mono: st(1)
        if vprio: k(f"s_and_b32 s3, s{sW}, 3\ns_cmp_lg_u32 s3, 0\ns_cbranch_scc1 {name}_vp\ns_setprio 2\n{name}_vp:")
        k(vloads)
        chk = "\n".join([f"v_and_b32 v{t0}, v{L}, v{L+4}"] + [f"v_and_b32 v{t0}, v{t0}, v{L+4*i}" for i in range(2, 8)] + [f"v_or_b32 v{t0}, v{t0}, v{vHS}", f"v_and_b32 v{t0}, 1, v{t0}", f"v_cmp_eq_u32 vcc, 0, v{t0}"])
        spin(f"{name}_v", vloads, chk, nap)
        if bulk == 2: k("s_barrier")
        k(f"""s_branch {name}_doA
{name}_qi:
s_mul_i32 s3, s81, 3
s_add_u32 s3, s3, s{sW}
s_add_u32 s3, s3, 32
s_cmp_ge_u32 s{sW}, 3
s_cbranch_scc1 {name}_nocol
s_cmp_ge_u32 s3, 76
s_cbranch_scc1 {name}_nocol
{name}_col:
s_mul_i32 s4, s3, 27
s_lshr_b32 s4, s4, 9
s_mul_i32 s5, s4, 19
s_sub_u32 s81, s3, s5
s_lshl_b32 s3, s{sXC}, 2
s_add_u32 s82, s3, s4""")
        if cprio: k(f"s_setprio {cprio}")
        column_task(k, 48, 81, 82, 83, sV, vDX, vL, common_setup, lambda: (None if mono else st(1), k("s_barrier")))
        st(2)
        if cprio: k("s_setprio 0")
        if drain: k("s_waitcnt vmcnt(0)")
        if ib2: k(f"s_barrier\ns_cmp_eq_u32 s{sAct}, 0\ns_cbranch_scc1 {name}_fin")
        else: k(f"s_cmp_eq_u32 s{sAct}, 0\ns_cbranch_scc1 {name}_fin\ns_barrier")
        mlp_setup()
        k(f"s_mov_b32 s{sSU}, 1")
        rest_loads(f"{name}_rl4")
        k(f"s_branch {name}_bulk\n{name}_nocol:")
        common_setup()
        mlp_setup()
        k(f"s_mov_b32 s{sSU}, 1\ns_barrier\ns_cmp_eq_u32 s{sAct}, 0\ns_cbranch_scc1 {name}_ib")
        rest_loads(f"{name}_rl1")
        k(f"s_barrier\n{name}_bulk:")
        if bulk == 2: k("s_barrier")
        if bulk: bulk_w()
        k(f"s_branch {name}_noA\n{name}_ib:\n{'s_barrier' if ib2 else ''}\ns_branch {name}_fin\n{name}_doA:")
        tw = [""]*22
    else:
        k(f"s_cmp_lt_u32 s{sW}, 5\ns_cbranch_scc1 {name}_doA")
        mlp_setup()
        rest_loads(f"{name}_rl1")
        k(f"s_branch {name}_noA\n{name}_doA:")
        tw = matrices()
        put(tw[:22])
    st(2)
    for kk in range(2):
        for a in range(4):
            for b in range(a+1, 4): k(f"v_swap_b32 v{L+16*kk+4*a+b}, v{L+16*kk+4*b+a}")
    mf = []
    for m in (0, 2, 1, 3):
        for kk in range(2):
            for c in range(2):
                a = AC+8*m+4*c
                mf.append(f"{MF} {vr(a, 4)}, {vr(L+16*kk+4*m, 4)}, {vr(MB_+8*c+4*kk, 4)}, {'0' if kk == 0 else vr(a, 4)}")
    put(interleave(mf, tw[22:]) if tw[22:] else mf)
    if not merge: rest_loads(f"{name}_rl2")
    Z = L; T = L+16
    p2 = lambda x: vr(x, 2)
    NEG = "neg_lo:[0,1] neg_hi:[0,1]"
    for r in (0, 2):
        Rr = lambda m: AC+8*m+r
        I = lambda m: AC+8*m+4+r
        ar, ai, br, bi, cr, ci, dr, di = (T+2*i for i in range(8))
        k(f"""
v_pk_add_f32 {p2(ar)}, {p2(Rr(0))}, {p2(Rr(2))}
v_pk_add_f32 {p2(ai)}, {p2(I(0))}, {p2(I(2))}
v_pk_add_f32 {p2(cr)}, {p2(Rr(1))}, {p2(Rr(3))}
v_pk_add_f32 {p2(ci)}, {p2(I(1))}, {p2(I(3))}
v_pk_add_f32 {p2(br)}, {p2(Rr(0))}, {p2(Rr(2))} {NEG}
v_pk_add_f32 {p2(bi)}, {p2(I(0))}, {p2(I(2))} {NEG}
v_pk_add_f32 {p2(dr)}, {p2(Rr(1))}, {p2(Rr(3))} {NEG}
v_pk_add_f32 {p2(di)}, {p2(I(1))}, {p2(I(3))} {NEG}
v_pk_add_f32 {p2(Rr(0))}, {p2(ar)}, {p2(cr)}
v_pk_add_f32 {p2(I(0))}, {p2(ai)}, {p2(ci)}
v_pk_add_f32 {p2(Rr(1))}, {p2(br)}, {p2(di)} {NEG}
v_pk_add_f32 {p2(I(1))}, {p2(bi)}, {p2(dr)}
v_pk_add_f32 {p2(Rr(2))}, {p2(ar)}, {p2(cr)} {NEG}
v_pk_add_f32 {p2(I(2))}, {p2(ai)}, {p2(ci)} {NEG}
v_pk_add_f32 {p2(Rr(3))}, {p2(br)}, {p2(di)}
v_pk_add_f32 {p2(I(3))}, {p2(bi)}, {p2(dr)} {NEG}
v_cvt_pk_bf16_f32 v{Z+r}, v{Rr(0)}, v{I(0)}
v_cvt_pk_bf16_f32 v{Z+r+1}, v{Rr(0)+1}, v{I(0)+1}
""")
        for q in range(1, 4):
            cc = TW+8*(q-1)+r
            k(f"v_pk_mul_f32 {p2(T+4*q)}, {p2(cc)}, {p2(Rr(q))}\nv_pk_mul_f32 {p2(T+4*q+2)}, {p2(cc)}, {p2(I(q))}")
        for q in range(1, 4):
            ss = TW+8*(q-1)+4+r
            k(f"v_pk_fma_f32 {p2(T+4*q)}, {p2(ss)}, {p2(I(q))}, {p2(T+4*q)} neg_lo:[1,0,0] neg_hi:[1,0,0]\nv_pk_fma_f32 {p2(T+4*q+2)}, {p2(ss)}, {p2(Rr(q))}, {p2(T+4*q+2)}")
        for q in range(1, 4):
            k(f"v_cvt_pk_bf16_f32 v{Z+4*q+r}, v{T+4*q}, v{T+4*q+2}\nv_cvt_pk_bf16_f32 v{Z+4*q+r+1}, v{T+4*q+1}, v{T+4*q+3}")
    k(f"s_lshl_b32 s3, s{sW}, 10\ns_add_u32 s3, s3, {EZ}\nv_add_u32 v{vEW}, s3, v{vDX}")
    for q in range(4): k(f"ds_write_b128 v{vEW}, {vr(Z+4*q, 4)} offset:{q*5120}")
    k(f"s_setprio 0\ns_cmp_eq_u32 s{sW}, 4\ns_cbranch_scc1 {name}_noA")
    if su3: mlp_setup()
    k(f"{name}_noA:")
    k(f"""
v_lshlrev_b32 v{vSR}, 6, v{n_}
v_add_u32 v{vSR}, {ES}, v{vSR}
v_lshrrev_b32 v{vSW}, {2 if nl else 1}, v{g_}
v_lshl_add_u32 v{vSW}, v{vSW}, 2, v{vSR}
s_lshl_b32 s3, s{sW}, 3
v_add_u32 v{vSW}, s3, v{vSW}
v_lshrrev_b32 v{vHS}, 1, v{n_}
v_lshlrev_b32 v{vHS}, 7, v{vHS}
v_and_b32 v{t0}, 1, v{n_}
v_lshl_add_u32 v{vHS}, v{t0}, 6, v{vHS}
v_lshl_add_u32 v{vHS}, v{g_}, 4, v{vHS}
v_add_u32 v{vEW}, {EZ}, v{vDX}
s_lshl_b32 s3, s{sS2}, 1
s_add_u32 s3, s3, s{sNT}
s_mul_i32 s4, s3, 18432
s_lshl_b32 s5, s{sW}, 11
s_add_u32 s{sSO}, s4, s5
s_add_u32 s{sVB}, s4, 16384
s_and_b32 s3, s3, 7
s_lshl_b32 s3, s3, 2
s_lshl_b32 s4, s{sMT}, 11
s_add_u32 s{sXO}, s3, s4
s_mov_b32 s5, 0xffff0000
""")
    A2 = AC; ZR = L
    def allsum(a, b):
        k(f"""v_add_f32 v{a}, v{a}, v{a+1}
v_mov_b32 v{b}, v{a}
v_permlane32_swap_b32 v{a}, v{b}
v_add_f32 v{a}, v{a}, v{b}
v_mov_b32 v{b}, v{a}
v_permlane16_swap_b32 v{a}, v{b}
v_add_f32 v{a}, v{a}, v{b}""")
    def final_nl(nmt):
        so = [sSO, sVB]
        prs = [A2+16*mt+4*q+2*p for mt in range(nmt) for q in range(4) for p in range(2)]
        for mt in range(nmt):
            for r in range(4):
                for q in range(4):
                    src = XX+8*mt+2*r+(q >> 1); dst = A2+16*mt+4*q+r
                    k(f"v_and_b32 v{dst}, s5, v{src}" if q & 1 else f"v_lshlrev_b32 v{dst}, 16, v{src}")
        k(f"v_pk_add_f32 {vr(t0, 2)}, {vr(prs[0], 2)}, {vr(prs[1], 2)}\nv_pk_add_f32 {vr(t2, 2)}, {vr(prs[2], 2)}, {vr(prs[3], 2)}")
        for i, a in enumerate(prs[4:]): k(f"v_pk_add_f32 {vr(t0+2*(i & 1), 2)}, {vr(t0+2*(i & 1), 2)}, {vr(a, 2)}")
        k(f"v_pk_add_f32 {vr(t0, 2)}, {vr(t0, 2)}, {vr(t2, 2)}")
        allsum(t0, t1)
        k(f"ds_write_b32 v{vSW}, v{t0}")
        k.wait_lg(); k("s_barrier")
        st(3)
        idx = [(jt, q) for jt in range(5) for q in range(4)]
        rd = lambda i: f"ds_read_b128 {vr(ZR+4*(i % 8), 4)}, v{vEW} offset:{idx[i][1]*5120+idx[i][0]*1024}"
        for i in range(7): k(rd(i))
        for w in range(4): k(f"ds_read_b128 {vr(MB_+4*w, 4)}, v{vSR} offset:{16*w}")
        mean = [f"v_add_f32 v{MB_+a}, v{MB_+a}, v{MB_+b}" for a, b in ((0, 2), (4, 6), (8, 10), (12, 14), (0, 4), (8, 12), (0, 8))] + \
               [f"v_mul_f32 v{t0}, {fl(-1/576)}, v{MB_}", f"v_mul_f32 v{t1}, {fl(-1/576)}, v{MB_}"]
        for i, (jt, q) in enumerate(idx):
            for mt in range(nmt):
                a = A2+16*mt+4*q
                k(f"{MF} {vr(a, 4)}, {vr(G+20*mt+4*jt, 4)}, {vr(ZR+4*(i % 8), 4)}, {vr(a, 4)}")
            if i+7 < 20: k(rd(i+7))
            if 8 <= i < 8+len(mean): k(mean[i-8])
        def pack(dst, src, h):
            for p in range(4):
                r, q = 2*h+(p >> 1), 2*(p & 1)
                k(f"v_cvt_pk_bf16_f32 v{dst+p}, v{src+4*q+r}, v{src+4*(q+1)+r}")
        HC = G
        for mt in range(nmt):
            for h in range(2):
                for q in range(4): k(f"v_pk_add_f32 {vr(HC+16*mt+4*q+2*h, 2)}, {vr(A2+16*mt+4*q+2*h, 2)}, {vr(t0, 2)}")
                pack(L+8*mt+4*h, HC+16*mt, h)
                k(f"buffer_store_dwordx4 {vr(L+8*mt+4*h, 4)}, v{vDX}, {S4(sX)}, s{so[mt]} offen offset:{h*1024} sc1", tag="XF")
        hp = [a - A2 + HC for a in prs]
        k(f"v_pk_mul_f32 {vr(t0, 2)}, {vr(hp[0], 2)}, {vr(hp[0], 2)}\nv_pk_mul_f32 {vr(t2, 2)}, {vr(hp[1], 2)}, {vr(hp[1], 2)}")
        for i, a in enumerate(hp[2:]): k(f"v_pk_fma_f32 {vr(t0+2*(i & 1), 2)}, {vr(a, 2)}, {vr(a, 2)}, {vr(t0+2*(i & 1), 2)}")
        k(f"v_pk_add_f32 {vr(t0, 2)}, {vr(t0, 2)}, {vr(t2, 2)}")
        allsum(t0, t1)
        k(f"ds_write_b32 v{vSW}, v{t0} offset:4")
        for mt in range(nmt):
            for h in range(2): pack(XX+8*mt+4*h, A2+16*mt, h)
        k(f"""v_mov_b32 v{vEW}, v{vSR}
v_lshl_add_u32 v30, v{vL}, 7, s{sXO}
v_mov_b32 v{vSR}, {OOB}
v_cmp_gt_u32 vcc, 16, v{vL}
v_cndmask_b32 v30, v{vSR}, v30, vcc
v_mov_b32 v{vSW}, {FV}""")
    def final(nmt):
        if nl: return final_nl(nmt)
        so = [sSO, sVB]
        for mt in range(nmt):
            for r in range(4):
                for q in range(4):
                    src = XX+8*mt+2*r+(q >> 1); dst = A2+16*mt+4*q+r
                    k(f"v_and_b32 v{dst}, s5, v{src}" if q & 1 else f"v_lshlrev_b32 v{dst}, 16, v{src}")
        k.wait_lg(); k("s_barrier")
        st(3)
        idx = [(jt, q) for jt in range(5) for q in range(4)]
        rd = lambda i: f"ds_read_b128 {vr(ZR+4*(i % 8), 4)}, v{vEW} offset:{idx[i][1]*5120+idx[i][0]*1024}"
        for i in range(7): k(rd(i))
        for i, (jt, q) in enumerate(idx):
            for mt in range(nmt):
                a = A2+16*mt+4*q
                k(f"{MF} {vr(a, 4)}, {vr(G+20*mt+4*jt, 4)}, {vr(ZR+4*(i % 8), 4)}, {vr(a, 4)}")
            if i+7 < 20: k(rd(i+7))
        if "p3st" in abl: k("s_memrealtime s[62:63]")
        first = True
        for mt in range(nmt):
            for q in range(4):
                for p in range(2):
                    a = A2+16*mt+4*q+2*p
                    if first: k(f"v_mov_b64 {vr(t0, 2)}, {vr(a, 2)}\nv_pk_mul_f32 {vr(t2, 2)}, {vr(a, 2)}, {vr(a, 2)}"); first = False
                    else: k(f"v_pk_add_f32 {vr(t0, 2)}, {vr(t0, 2)}, {vr(a, 2)}\nv_pk_fma_f32 {vr(t2, 2)}, {vr(a, 2)}, {vr(a, 2)}, {vr(t2, 2)}")
        k(f"""
v_add_f32 v{t0}, v{t0}, v{t1}
v_add_f32 v{t2}, v{t2}, v{t3}
v_permlane32_swap_b32 v{t0}, v{t2}
v_add_f32 v{t0}, v{t0}, v{t2}
v_mov_b32 v{t1}, v{t0}
v_permlane16_swap_b32 v{t0}, v{t1}
v_add_f32 v{t0}, v{t0}, v{t1}
ds_write_b32 v{vSW}, v{t0}
""")
        def pack(dst, mt, h):
            for p in range(4):
                r, q = 2*h+(p >> 1), 2*(p & 1)
                k(f"v_cvt_pk_bf16_f32 v{dst+p}, v{A2+16*mt+4*q+r}, v{A2+16*mt+4*(q+1)+r}")
        for mt in range(nmt):
            for h in range(2): pack(XX+8*mt+4*h, mt, h)
        k.wait_lg(); k("s_barrier")
        if "p3st" in abl: k("s_memrealtime s[64:65]")
        for w in range(4): k(f"ds_read_b128 {vr(L+4*w, 4)}, v{vSR} offset:{16*w}")
        k(f"""v_lshl_add_u32 v{vSW}, v{vL}, 7, s{sXO}
v_mov_b32 v{vSR}, {OOB}
v_cmp_gt_u32 vcc, 16, v{vL}
v_cndmask_b32 v{vSR}, v{vSR}, v{vSW}, vcc
v_mov_b32 v{vSW}, {FV}""")
        for a, b in ((0, 2), (4, 6), (8, 10), (12, 14), (0, 4), (8, 12), (0, 8)):
            k(f"v_pk_add_f32 {vr(L+a, 2)}, {vr(L+a, 2)}, {vr(L+b, 2)}")
        k(f"""
v_mul_f32 v{t0}, {fl(1/576)}, v{L}
v_mul_f32 v{t1}, v{t0}, v{t0}
v_fmamk_f32 v{t2}, v{L+1}, {fl(1/576)}, v{t1}
v_fma_f32 v{t2}, -2.0, v{t1}, v{t2}
v_max_f32 v{t2}, 0, v{t2}
v_add_f32 v{t2}, {fl(1e-5)}, v{t2}
v_rsq_f32 v{t2}, v{t2}
v_mul_f32 v{t2}, {fl(LOG2E)}, v{t2}
v_mul_f32 v{t0}, -v{t0}, v{t2}
v_mov_b32 v{t3}, v{t2}
v_mov_b32 v{t1}, v{t0}
s_cmp_eq_u32 s{sW}, 0
s_cselect_b32 s4, 0x10001, 0
""")
        for mt in range(nmt):
            for q in range(4):
                for p in range(2):
                    a = A2+16*mt+4*q+2*p
                    k(f"v_pk_fma_f32 {vr(a, 2)}, {vr(a, 2)}, {vr(t2, 2)}, {vr(t0, 2)}")
            for h in range(2):
                pack(L+8*mt+4*h, mt, h)
                if early and nmt == 1: k(f"v_or_b32 v{L+4*h}, s4, v{L+4*h}")
                k(f"buffer_store_dwordx4 {vr(L+8*mt+4*h, 4)}, v{vDX}, {S4(sX)}, s{so[mt]} offen offset:{h*1024} sc1", tag="XF")
    def hstores(lab):
        for mt in range(2):
            if mt: k(f"s_cmp_lg_u32 s{sW}, {W2}\ns_cbranch_scc1 {lab}")
            for h in range(2): k(f"buffer_store_dwordx4 {vr(XX+8*mt+4*h, 4)}, v{vHS}, {S4(sH)}, s{[sSO, sVB][mt]} offen offset:{h*1024} sc1", tag="H")
        k(f"{lab}:")
    k(f"s_cmp_eq_u32 s{sW}, {W2}\ns_cbranch_scc1 {name}_fin2")
    final(1)
    if early:
        k(f"""s_cmp_lg_u32 s{sW}, 0
s_cbranch_scc1 {name}_fin
s_mov_b32 s3, {F_E}
buffer_store_dword v{vSW}, v{vSR}, {S4(sF)}, s3 offen sc1""")
    k(f"s_branch {name}_fin\n{name}_fin2:")
    final(2)
    k(f"{name}_fin:")
    if "p3st" in abl: k("s_memrealtime s[60:61]")
    if merge: k(f"s_cmp_eq_u32 s{sSU}, 1\ns_cbranch_scc1 {name}_sudone")
    else: k(f"s_cmp_eq_u32 s{sAct}, 0\ns_cbranch_scc1 {name}_su\n{'s_cmp_lg_u32' if su3 else 's_cmp_gt_u32'} s{sW}, 4\ns_cbranch_scc1 {name}_sudone\n{name}_su:")
    mlp_setup()
    k(f"{name}_sudone:")
    if wlate == 3: first_w(f"{name}_w0", (0,))
    if bulk or wlate: k(f"s_cmp_lg_u32 s{sAct}, 0\ns_cbranch_scc1 {name}_wdone")
    first_w(f"{name}_wc", (1,) if wlate == 3 else None)
    if bulk or wlate: k(f"{name}_wdone:")
    def touch(mats, lab, dst):
        k(f"""
s_lshr_b32 s3, s2, 3
s_lshl_b32 s3, s3, 3
s_add_u32 s3, s3, s{sW}
s_cmp_ge_u32 s3, {81*len(mats)}
s_cbranch_scc1 {lab}_x
s_cmp_ge_u32 s3, 81
s_cselect_b32 s4, 81, 0
s_sub_u32 s4, s3, s4
v_lshl_add_u32 v{vT0}, s4, 6, v{vL}
v_mul_u32_u24 v{vT1}, 7282, v{vT0}
v_lshrrev_b32 v{vT1}, 16, v{vT1}
v_mul_u32_u24 v{vT2}, 9, v{vT1}
v_sub_u32 v{vT2}, v{vT0}, v{vT2}
v_mul_u32_u24 v{vT1}, {9216 if mats[0] != sD else 1152}, v{vT1}
v_lshl_add_u32 v{vT1}, v{vT2}, 7, v{vT1}
s_mul_i32 s4, s{sXC}, {1152 if mats[0] != sD else 576*1152}
""")
        if len(mats) == 2: k(f"s_cmp_ge_u32 s3, 81\ns_cbranch_scc1 {lab}_u")
        k(f"buffer_load_dword v{dst}, v{vT1}, {S4(mats[0])}, s4 offen {TPOL if len(mats) == 2 else TPOLD}", tag="touch")
        if len(mats) == 2: k(f"s_branch {lab}_x\n{lab}_u:\nbuffer_load_dword v{dst}, v{vT1}, {S4(mats[1])}, s4 offen {TPOL}")
        k(f"{lab}_x:")
    vTW = 31
    k(f"""
s_cmp_eq_u32 s{sB}, 0
s_cselect_b32 s{sV}, s{sG}, s{sU}
s_cselect_b32 s{sV+1}, s{sG+1}, s{sU+1}
s_mov_b32 s{sV+2}, {N_W}
s_mov_b32 s{sV+3}, 0x20000
s_and_b32 s3, s{sW}, 3
s_mul_i32 s3, s3, 5
v_add_u32 v{vTW}, s3, v{vL}
v_cmp_lt_u32 vcc, 8, v{vTW}
v_cndmask_b32 v{vT0}, 0, 1, vcc
v_mul_u32_u24 v{vT1}, 9, v{vT0}
v_sub_u32 v{vT1}, v{vTW}, v{vT1}
s_lshr_b32 s3, s{sW}, 2
s_xor_b32 s3, s3, 1
s_xor_b32 s3, s3, s{sMT}
s_lshl_b32 s3, s3, 1
v_add_u32 v{vT0}, s3, v{vT0}
v_and_b32 v{vT2}, 24, v{vT0}
v_add_u32 v{vT0}, v{vT0}, v{vT2}
v_mul_u32_u24 v{vT0}, 9216, v{vT0}
v_lshl_add_u32 v{vT0}, v{vT1}, 7, v{vT0}
s_mul_i32 s3, s{sXC}, 1152
v_add_u32 v{vT0}, s3, v{vT0}
v_mov_b32 v{vT1}, {OOB}
v_cmp_gt_u32 vcc, 18, v{vTW}
v_cndmask_b32 v{vT0}, v{vT1}, v{vT0}, vcc
v_cmp_gt_u32 vcc, 5, v{vL}
v_cndmask_b32 v{vTW}, v{vT1}, v{vT0}, vcc
""")
    def roll(s):
        if "notouch" in abl or "noroll" in abl or s >= 18: return []
        return [(f"s_mov_b32 s94, {((s >> 1)*64 + (s & 1)*8)*9216}\nbuffer_load_dword v28, v{vTW}, {S4(sV)}, s94 offen {TPOL}", "touch")]
    if not early:
        k(f"""s_cmp_eq_u32 s{sAct}, 0
s_cbranch_scc1 {name}_p3done
""")
        k.wait_lg(); k.wait_vm("XF")
        k(f"""s_barrier
s_cmp_lg_u32 s{sW}, 0
s_cbranch_scc1 {name}_p3sig
buffer_store_dword v{vSW}, v{30 if nl else vSR}, {S4(sF)}, 0 offen sc1""")
        if nl:
            for w in range(4): k(f"ds_read_b128 {vr(MB_+4*w, 4)}, v{vEW} offset:{16*w}")
            k(f"""s_lshl_b32 s3, s{sS2}, 1
s_add_u32 s3, s3, s{sNT}
s_bfe_u32 s4, s3, 0x10002
s_lshl_b32 s4, s4, 8
s_and_b32 s3, s3, 3
s_lshl_b32 s3, s3, 2
s_add_u32 s3, s3, s4
s_lshl_b32 s4, s{sMT}, 9
s_add_u32 s3, s3, s4
s_add_u32 s3, s3, {F_R}
v_lshl_add_u32 v{t1}, v{vL}, 4, s3
v_cmp_gt_u32 vcc, 16, v{vL}
v_cndmask_b32 v{t1}, v{vSR}, v{t1}, vcc""")
            for a, b in ((1, 3), (5, 7), (9, 11), (13, 15), (1, 5), (9, 13), (1, 9)): k(f"v_add_f32 v{MB_+a}, v{MB_+a}, v{MB_+b}")
            k(f"""v_mov_b32 v{t2}, {fl(1e-5)}
v_fmac_f32 v{t2}, {fl(1/576)}, v{MB_+1}
v_rsq_f32 v{t2}, v{t2}
v_mul_f32 v{t2}, {fl(LOG2E)}, v{t2}""")
            k(f"buffer_store_dword v{t2}, v{t1}, {S4(sF)}, 0 offen sc1", tag="R2")
        k(f"{name}_p3sig:")
        if bulk == 2 and not late1: first_w(f"{name}_wd", (1,))
        elif wlate == 1 and not bulk: first_w(f"{name}_wd")
        elif wlate == 3: first_w(f"{name}_wd", (1,))
        if not hlate: hstores(f"{name}_hs")
        if wlate == 2: first_w(f"{name}_wd")
        k(f"{name}_p3done:")
    st(4)

    def path(five):
        nt5 = 5 if five else 4
        nf = 2*nt5
        P = "a" if five else "b"
        k(f"""
s_lshl_b32 s3, s{sMT}, 4
s_add_u32 s3, s3, s{sSL}
s_lshl_b32 s3, s3, 7
s_lshl_b32 s4, s{sW}, 2
s_add_u32 s{sLN}, s3, s4
s_add_u32 s{sS1}, s{sLN}, {F_E if early else 0}
buffer_load_dword v{vQ}, v{vZ}, {S4(sF)}, s{sS1} offen sc1
v_lshrrev_b32 v{vT0}, 4, v{vL}
v_bfe_u32 v{vT1}, v{vL}, 2, 2
v_lshl_add_u32 v{vT2}, v{vT0}, 3, v{vT1}
v_mul_u32_u24 v{vT2}, 576, v{vT2}
v_and_b32 v{vWB[0]}, 3, v{vL}
v_lshl_add_u32 v{vT2}, v{vWB[0]}, 3, v{vT2}
s_mul_i32 s3, s{sA}, 9
s_add_u32 s3, s3, {0 if five else 5}
s_lshl_b32 s4, s3, 5
s_add_u32 s4, s4, {WO}
v_add_u32 v{vT2}, s4, v{vT2}
s_and_b32 s3, s3, 1
s_cmp_eq_u32 s3, 0
s_cselect_b32 s3, 32, -32
v_and_b32 v{vWB[0]}, 1, v{vT0}
v_mul_i32_i24 v{vWB[0]}, s3, v{vWB[0]}
v_add_u32 v{vWA[0]}, v{vT2}, v{vWB[0]}
v_sub_u32 v{vWB[0]}, v{vT2}, v{vWB[0]}
s_lshl_b32 s3, s{sRG}, 12
s_add_u32 s3, s3, {xslot(0)}
v_add_u32 v{vXr[0]}, s3, v{vDX}
""")
        if pair: k(f"v_add_u32 v{vWA[1]}, 73728, v{vWA[0]}\nv_add_u32 v{vWB[1]}, 73728, v{vWB[0]}")
        for i in (() if pair else (1, 2)):
            k(f"v_add_u32 v{vXr[i]}, {SLOT_A[i]}, v{vXr[0]}\nv_add_u32 v{vWA[i]}, {SLOT_A[i]}, v{vWA[0]}\nv_add_u32 v{vWB[i]}, {SLOT_A[i]}, v{vWB[0]}")
        k(f"""
v_lshrrev_b32 v{vDD}, 3, v{vL}
v_mul_u32_u24 v{vDD}, 1152, v{vDD}
v_bfe_u32 v{vT2}, v{vL}, 1, 2
v_xor_b32 v{vT2}, v{vT2}, v{vT0}
v_lshl_add_u32 v{vDD}, v{vT2}, 5, v{vDD}
v_and_b32 v{vT2}, 1, v{vL}
v_lshl_add_u32 v{vDD}, v{vT2}, 4, v{vDD}
s_mul_i32 s3, s{sCG if LP else sW}, {9 if LP else 4 if five else 5}
s_sub_u32 s3, s3, {0 if five or LP else 4}
s_lshl_b32 s{sM0d}, s3, 10
s_mul_i32 s3, s3, {8*1152}
s_mul_i32 s{sKD}, s{sSL}, {288*1152}
s_add_u32 s{sKD}, s{sKD}, s3
v_lshl_add_u32 v{vWD[0]}, v{vT0}, 2, v{vT1}
v_bfe_u32 v{vT2}, v{vWD[0]}, 1, 2
v_xor_b32 v{vT2}, s{sCG}, v{vT2}
v_lshlrev_b32 v{vT2}, 5, v{vT2}
v_lshl_add_u32 v{vWD[0]}, v{vWD[0]}, 7, v{vT2}
v_and_b32 v{vT2}, 3, v{vL}
v_lshl_add_u32 v{vWD[0]}, v{vT2}, 3, v{vWD[0]}
v_add_u32 v{vWD[1]}, {RING_B[1]}, v{vWD[0]}
v_add_u32 v{vWD[2]}, {RING_B[2]}, v{vWD[0]}
v_add_u32 v{vWD[3]}, {RING_B[3]}, v{vWD[0]}
v_add_u32 v{vWD[0]}, {RING_B[0]}, v{vWD[0]}
s_xor_b32 s3, s{sB if LP else sRG}, {1 if LP and not five else 0}
s_mul_i32 s3, s3, {4*9*1024}
s_add_u32 s3, s3, {HH}
v_add_u32 v{vHR}, s3, v{vDX}
s_mul_i32 s3, s{sRG}, {4*9*1024}
s_add_u32 s3, s3, {HH}
s_mul_i32 s4, s{sA}, 9
s_add_u32 s4, s4, {0 if five else 5}
s_lshr_b32 s5, s4, 1
s_lshl_b32 s5, s5, 10
s_add_u32 s3, s3, s5
s_and_b32 s4, s4, 1
s_lshl_b32 s5, s4, 3
s_add_u32 s5, s5, s3
v_add_u32 v{vHW}, s5, v{vDX}
s_mul_i32 s5, s4, 1024
s_add_u32 s5, s5, s3
s_xor_b32 s4, s4, 1
s_lshl_b32 s4, s4, 3
s_add_u32 s5, s5, s4
v_add_u32 v{vHW2}, s5, v{vDX}
v_bfe_u32 v{vT2}, v{vL}, 1, 3
v_lshlrev_b32 v{vPO}, 10, v{vT2}
v_and_b32 v{vT2}, 1, v{vL}
v_lshl_add_u32 v{vPO}, v{vT2}, 6, v{vPO}
v_lshl_add_u32 v{vPO}, v{vT0}, 4, v{vPO}
""")
        if LP:
            k(f"""s_lshl_b32 s3, s{sMT}, 1
s_add_u32 s4, s3, s{sB}
s_mul_i32 s{sRD}, s4, {8*9*8192}
s_xor_b32 s4, s4, {0 if five else 1}
s_lshl_b32 s4, s4, 3
s_add_u32 s4, s4, s{sXC}
s_mul_i32 s{sPO}, s4, {9*8192}
s_lshl_b32 s4, s{sCG}, 8
s_add_u32 s{sPO}, s{sPO}, s4
s_xor_b32 s3, s2, {0 if five else 128}
s_lshl_b32 s3, s3, 9
s_lshl_b32 s4, s{sCG}, 7
s_add_u32 s3, s3, s4
s_add_u32 s{sF1}, s3, {F_1}
s_getreg_b32 s{sLoc}, hwreg(HW_REG_XCC_ID, 0, 4)
s_add_u32 s{sLoc}, s{sLoc}, 1""")
            if five:
                for i in range(4): k(f"v_mov_b32 v{28+i}, 0")
        else:
            k(f"""s_mul_i32 s{sRD}, s{sMT}, {16*9*16384}
s_mul_i32 s3, s{sSL}, {9*16384}
s_add_u32 s{sPO}, s{sRD}, s3
s_lshl_b32 s4, s{sRG}, 13
s_add_u32 s{sPO}, s{sPO}, s4
s_lshl_b32 s4, s{sCG}, 8
s_add_u32 s{sPO}, s{sPO}, s4""")
        if idlepf:
            k(f"s_cmp_lg_u32 s{sAct}, 0\ns_cbranch_scc1 {name}_{P}ip")
            if late1: put(dmaW(1, not five))
            for q in range(2, ahead): put(roll(q))
            k(f"{name}_{P}ip:")
        elif not five and not early:
            for q in range(2, ahead): put(roll(q))
        if droll and five:
            n = -(-(5184//droll)//128)
            k(f"""s_lshr_b32 s3, s2, 3
s_lshl_b32 s3, s3, 2
s_add_u32 s3, s3, s{sW}
s_mul_i32 s3, s3, {n}
v_add_u32 v{vT0}, s3, v{vL}
v_mov_b32 v{vT1}, {OOB}
v_cmp_gt_u32 vcc, {5184//droll}, v{vT0}
v_lshlrev_b32 v{vT0}, 7, v{vT0}
v_cndmask_b32 v{vT0}, v{vT1}, v{vT0}, vcc
v_cmp_gt_u32 vcc, {n}, v{vL}
v_cndmask_b32 v{vT2}, v{vT1}, v{vT0}, vcc""")
        xflag = lambda so: f"buffer_load_dword v{vQ}, v{vZ}, {S4(sF)}, s{so} offen sc1"
        spin(f"{name}_{P}x", xflag(sS1), notyet(vQ))
        if early:
            ld = f"buffer_load_dwordx4 v[64:67], v{vDX}, {S4(sX)}, s{sKX} offen sc1\nbuffer_load_dwordx4 v[68:71], v{vDX}, {S4(sX)}, s{sKX} offen offset:1024 sc1"
            k(ld)
            k(f"v_add_u32 v{vT0}, s{sM0x}, v{vDX}\ns_mov_b32 s4, 0x10001")
            spin(f"{name}_{P}t", ld, f"v_and_b32 v{vT1}, v64, v68\nv_and_b32 v{vT1}, s4, v{vT1}\nv_cmp_ne_u32 vcc, s4, v{vT1}")
            k(f"s_cmp_eq_u32 s{sAct}, 0\ns_cbranch_scc1 {name}_{P}hs")
            hstores(f"{name}_{P}hs")
            if not five and not idlepf:
                for q in range(2, ahead): put(roll(q))
            k(f"ds_write_b128 v{vT0}, v[64:67] offset:{SLOT_A[0]}\nds_write_b128 v{vT0}, v[68:71] offset:{SLOT_A[1]}")
        else:
            put(dmaX(0)); put(dmaX(1))
        if late1 == 1:
            if idlepf: k(f"s_cmp_eq_u32 s{sAct}, 0\ns_cbranch_scc1 {name}_{P}l1")
            put(dmaW(1, not five))
            if idlepf: k(f"{name}_{P}l1:")
        if droll and five: k(f"v_mov_b32 v31, v{vT2}\ns_mul_i32 s{sS1}, s{sXC}, {576*1152}")
        if hlate:
            k.wait_vm("A0", "XF", "A1" if pair else "-")
            k(f"s_cmp_eq_u32 s{sAct}, 0\ns_cbranch_scc1 {name}_{P}hl")
            hstores(f"{name}_{P}hl")
        st(5)
        ACC = 256-nf*16; XB = [64, 80]; WR = 32
        def acc(f, nt): return ACC + f*16 + nt*4
        def wreg(s, f): return WR + 4*((s*nf+f) % 8)
        def wread(s, f):
            i, u = f >> 1, f & 1
            va = (vWA if i % 2 == 0 else vWB)[s % 3]; d = wreg(s, f)
            return [f"ds_read_b64_tr_b16 v[{d+2*h}:{d+2*h+1}], v{va} offset:{h*4*576 + i*32 + u*18432}" for h in range(2)]
        def mfa(s, f):
            w = wreg(s, f)
            return [f"{MF} {vr(acc(f, nt), 4)}, {vr(w, 4)}, {vr(XB[s % 2]+4*nt, 4)}, {'0' if s == 0 else vr(acc(f, nt), 4)}" for nt in range(4)]
        vRD, vHO, vOO, vFL, vFS, SEL, vFV, vTR, vHT = 2, 3, 4, 8, 9, 12, 5, 10, 11
        assert not fuse
        vSC = 27
        sRP, sEX = 44, 48
        late = f"""v_mov_b32 v{vFS}, {OOB}
v_lshrrev_b32 v5, 4, v{vL}
v_and_b32 v6, 3, v{vL}
v_bfe_u32 v7, v{vL}, 3, 1
s_and_b32 s4, s{sSL}, 3
v_xor_b32 v14, s4, v5
v_mul_u32_u24 v{vRD}, {9*16384}, v14
v_lshlrev_b32 v{vHT}, 8, v7
v_and_b32 v14, 7, v{vL}
v_lshl_add_u32 v{vHT}, v14, 4, v{vHT}
v_add_u32 v{vRD}, v{vRD}, v{vHT}
s_lshl_b32 s4, s{sRG}, 1
v_add_u32 v7, s4, v7
s_lshl_b32 s4, s{sA}, 7
s_lshl_b32 s5, s{sRG}, 9
s_add_u32 s4, s4, s5
s_add_u32 s5, s4, {OWN}
v_add_u32 v{vHT}, s5, v{vHT}
s_add_u32 s{sRD}, s{sRD}, s4
s_lshl_b32 s4, s{sSL}, 10
s_add_u32 s{sRD}, s{sRD}, s4
s_and_b32 s4, s{sSL}, 12
s_mul_i32 s{sRP}, s4, {9*16384}
s_add_u32 s{sRP}, s{sRP}, s{sRD}
s_xor_b32 s5, s4, 4
s_mul_i32 s{sRP+1}, s5, {9*16384}
s_add_u32 s{sRP+1}, s{sRP+1}, s{sRD}
s_xor_b32 s5, s4, 8
s_mul_i32 s{sRP+2}, s5, {9*16384}
s_add_u32 s{sRP+2}, s{sRP+2}, s{sRD}
s_xor_b32 s5, s4, 12
s_mul_i32 s{sRP+3}, s5, {9*16384}
s_add_u32 s{sRP+3}, s{sRP+3}, s{sRD}
v_and_b32 v{vTR}, 1023, v{vPO}
s_lshl_b32 s4, s{sCG}, 8
s_add_u32 s4, s4, {OWN}
v_add_u32 v{vTR}, s4, v{vTR}
s_lshr_b32 s3, s{sSL}, 3
s_and_b32 s5, s{sSL}, 7
v_lshrrev_b32 v14, 10, v{vPO}
v_cmp_eq_u32 s[{sEX}:{sEX+1}], s5, v14
s_cmp_eq_u32 s3, s{sRG}|s_cselect_b64 s[{sEX}:{sEX+1}], s[{sEX}:{sEX+1}], 0
{f"v_cndmask_b32 v{vPO}, v{vPO}, v{vFS}, s[{sEX}:{sEX+1}]" if skip else ""}
s_lshl_b32 s5, s5, 7
s_lshl_b32 s{sLN}, s{sMT}, 2
s_lshl_b32 s3, s3, 1
s_add_u32 s{sLN}, s{sLN}, s3
s_add_u32 s{sLN}, s{sLN}, s{sA}
s_lshl_b32 s3, s{sLN}, 1
v_add_u32 v{vHO}, s3, v5
v_mul_u32_u24 v{vHO}, 18432, v{vHO}
v_lshrrev_b32 v14, 1, v6
v_lshl_add_u32 v{vHO}, v14, 10, v{vHO}
v_lshl_add_u32 v{vHO}, v7, 4, v{vHO}
v_and_b32 v14, 1, v6
v_lshl_add_u32 v{vHO}, v14, 3, v{vHO}
v_add_u32 v{vHO}, s5, v{vHO}
v_bfe_u32 v14, v{vL}, 2, 1
v_lshl_add_u32 v{vHO}, v14, 6, v{vHO}
s_lshr_b32 s4, s5, 6
v_lshl_add_u32 v{vOO}, v5, 4, s4
v_add_u32 v{vOO}, v{vOO}, v14
v_lshl_add_u32 v{vOO}, v{vOO}, 6, s{sLN}
v_mul_u32_u24 v{vOO}, 1152, v{vOO}
v_lshl_add_u32 v{vOO}, v7, 5, v{vOO}
v_lshl_add_u32 v{vOO}, v6, 3, v{vOO}
v_cmp_gt_u32 vcc, 32, v{vL}
v_cndmask_b32 v{vHO}, v{vFS}, v{vHO}, vcc
v_cndmask_b32 v{vOO}, v{vFS}, v{vOO}, vcc
v_lshlrev_b32 v14, 4, v14
v_lshl_add_u32 v14, v5, 2, v14
s_lshl_b32 s4, s{sSL}, 5
s_lshl_b32 s5, s{sA}, 3
s_add_u32 s4, s4, s5
s_lshl_b32 s5, s{sMT}, 9
s_add_u32 s4, s4, s5
s_add_u32 s4, s4, {F_R}
v_add_u32 v{vSC}, s4, v14
s_lshl_b32 s4, s{sMT}, 11
s_add_u32 s4, s4, {F_2}
s_lshl_b32 s5, s{sSL}, 2
s_add_u32 s5, s5, s4
v_lshl_add_u32 v5, v{vL}, 7, s5
v_cmp_gt_u32 vcc, 16, v{vL}
v_cndmask_b32 v{vFS}, v{vFS}, v5, vcc
s_lshl_b32 s5, s{sSL}, 7
s_add_u32 s5, s5, s4
v_and_b32 v5, 15, v{vL}
v_lshl_add_u32 v{vFL}, v5, 2, s5
s_mov_b32 s{sLN}, {LN2!r}""".split("\n")
        late = [x.replace('|', '\n') for x in late]
        CNT = 73728; SK = 72; vMK = 16
        if LP and five:
            late = f"""v_mov_b32 v{vFS}, {OOB}
s_lshl_b32 s4, s{sMT}, 11
s_lshl_b32 s5, s{sB}, 7
s_add_u32 s4, s4, s5
s_add_u32 s4, s4, {F_2}
s_lshl_b32 s5, s{sXC}, 2
s_add_u32 s5, s5, s4
v_lshl_add_u32 v5, v{vL}, 8, s5
v_cmp_gt_u32 vcc, 8, v{vL}
v_cndmask_b32 v{vFS}, v{vFS}, v5, vcc
v_mov_b32 v{vFL}, {CNT}""".split("\n")
        elif LP:
            late = f"""v_mov_b32 v{vFS}, {OOB}
s_lshl_b32 s4, s{sMT}, 11
s_lshl_b32 s5, s{sSL}, 7
s_add_u32 s4, s4, s5
s_add_u32 s4, s4, {F_2}
v_and_b32 v5, 7, v{vL}
v_lshl_add_u32 v{vFL}, v5, 2, s4
s_lshl_b32 s5, s{sXC}, 10
s_add_u32 s{sRD}, s{sRD}, s5
v_lshrrev_b32 v{vTR}, 3, v{vL}
v_mul_u32_u24 v{vTR}, {9*8192}, v{vTR}
v_lshl_add_u32 v{vTR}, v5, 7, v{vTR}
v_add_u32 v{vTR}, s{sRD}, v{vTR}
v_lshlrev_b32 v{vRD}, 4, v5
v_lshrrev_b32 v5, 4, v{vL}
v_and_b32 v6, 3, v{vL}
v_bfe_u32 v7, v{vL}, 3, 1
v_mul_u32_u24 v14, {9*8192}, v5
v_add_u32 v{vRD}, v{vRD}, v14
v_lshl_add_u32 v{vRD}, v7, 8, v{vRD}
s_lshl_b32 s4, s{sRG}, 1
v_add_u32 v7, s4, v7
s_lshl_b32 s4, s{sA}, 7
s_add_u32 s{sRD}, s{sRD}, s4
s_lshl_b32 s4, s{sRG}, 9
s_add_u32 s{sRD}, s{sRD}, s4
s_lshl_b32 s5, s{sXC}, 7
s_lshl_b32 s{sLN}, s{sMT}, 2
s_lshl_b32 s3, s{sB}, 1
s_add_u32 s{sLN}, s{sLN}, s3
s_lshl_b32 s3, s{sLN}, 1
s_add_u32 s3, s3, s{sCG}
s_mul_i32 s3, s3, 18432
s_add_u32 s3, s3, s5
v_lshl_add_u32 v{vHT}, v{vL}, 10, s3
v_cmp_gt_u32 vcc, 18, v{vL}
v_cndmask_b32 v{vHT}, v{vFS}, v{vHT}, vcc
s_add_u32 s{sLN}, s{sLN}, s{sA}
s_lshl_b32 s3, s{sLN}, 1
v_add_u32 v{vHO}, s3, v5
v_mul_u32_u24 v{vHO}, 18432, v{vHO}
v_lshrrev_b32 v14, 1, v6
v_lshl_add_u32 v{vHO}, v14, 10, v{vHO}
v_lshl_add_u32 v{vHO}, v7, 4, v{vHO}
v_and_b32 v14, 1, v6
v_lshl_add_u32 v{vHO}, v14, 3, v{vHO}
v_add_u32 v{vHO}, s5, v{vHO}
v_bfe_u32 v14, v{vL}, 2, 1
v_lshl_add_u32 v{vHO}, v14, 6, v{vHO}
s_lshl_b32 s4, s{sXC}, 1
v_lshl_add_u32 v{vOO}, v5, 4, s4
v_add_u32 v{vOO}, v{vOO}, v14
v_lshl_add_u32 v{vOO}, v{vOO}, 6, s{sLN}
v_mul_u32_u24 v{vOO}, 1152, v{vOO}
v_lshl_add_u32 v{vOO}, v7, 5, v{vOO}
v_lshl_add_u32 v{vOO}, v6, 3, v{vOO}
v_cmp_gt_u32 vcc, 32, v{vL}
v_cndmask_b32 v{vHO}, v{vFS}, v{vHO}, vcc
v_cndmask_b32 v{vOO}, v{vFS}, v{vOO}, vcc
s_mov_b32 s{sLN}, {LN2!r}""".split("\n")
        sel = f"""v_and_b32 v5, 1, v{vL}
v_lshlrev_b32 v5, 4, v5
s_movk_i32 s3, 0x3f80
v_lshlrev_b32 v5, v5, s3
v_bfe_u32 v6, v{vL}, 1, 3""".split("\n")
        if LP and five:
            sel += [f"v_lshrrev_b32 v7, 3, v{vL}", f"v_and_b32 v7, 6, v7", f"v_sub_u32 v6, v6, v7"]
            for i in range(2): sel += [f"v_cmp_eq_u32 vcc, {i}, v6", f"v_cndmask_b32 v{SK+2+i}, 0, v5, vcc"]
            sel += [f"v_mov_b32 v{SK+i}, 0" for i in (0, 1, 4, 5)]
            sel += [f"ds_write_b64 v{vFL}, v[{SK}:{SK+1}] offset:{8*i}" for i in range(3)]
        else:
            for i in range(4): sel += [f"v_cmp_eq_u32 vcc, {i}, v6", f"v_cndmask_b32 v{SEL+i}, 0, v5, vcc"]
        sel += [f"v_mov_b32 v{vFV}, {FV}", f"v_mov_b32 v{vMK}, 0x10001"]
        def split_m0(d):
            out = []
            for t, tag in d:
                ls = t.split("\n")
                out += ["\n".join(ls[:-1]), (ls[-1], tag)]
            return out
        def spread_in(seq, dma, every):
            items = split_m0(dma); out = []; n = 0; j = 0
            for x in seq:
                out.append(x)
                if isinstance(x, str) and x.startswith("v_mfma"):
                    n += 1
                    if j < len(items) and (j % 2 == 1 or n % every == every-1): out.append(items[j]); j += 1
            return out + items[j:]
        k.wait_lg(); k.wait_vm("A0", "XF", "A1" if pair else "-"); k("s_barrier")
        if early and five:
            k(f"s_cmp_eq_u32 s{sAct}, 0\ns_cbranch_scc1 {name}_xsig\ns_cmp_lg_u32 s{sW}, 0\ns_cbranch_scc1 {name}_xsig\nbuffer_store_dword v{vSW}, v{vSR}, {S4(sF)}, 0 offen sc1\n{name}_xsig:")
        st(6)
        if prio == ("lo" if five else "hi"): k("s_setprio 1")
        def glu(i):
            out = []
            for np_ in range(2):
                g, u = acc(2*i, 2*np_), acc(2*i+1, 2*np_)
                if nl: out += [f"v_pk_mul_f32 {vr(g+r, 2)}, {vr(g+r, 2)}, {vr(64+4*np_+2*(r >> 2), 2)}" for r in range(0, 8, 2)]
                out += [f"v_exp_f32 v{g+r}, -v{g+r}" for r in range(8)]
                out += [f"v_pk_add_f32 {vr(g+r, 2)}, {vr(g+r, 2)}, s[4:5]" for r in range(0, 8, 2)] if pk else [f"v_add_f32 v{g+r}, 1.0, v{g+r}" for r in range(8)]
                out += [f"v_rcp_f32 v{g+r}, v{g+r}" for r in range(8)]
                out += [f"v_pk_mul_f32 {vr(g+r, 2)}, {vr(g+r, 2)}, {vr(u+r, 2)}" for r in range(0, 8, 2)] if pk else [f"v_mul_f32 v{g+r}, v{g+r}, v{u+r}" for r in range(8)]
                for q in range(2): out += [f"v_cvt_pk_bf16_f32 v{u+4*q}, v{g+4*q}, v{g+4*q+1}", f"v_cvt_pk_bf16_f32 v{u+4*q+1}, v{g+4*q+2}, v{g+4*q+3}"]
            return out
        hwrite = lambda i: [f"ds_write_b64 v{vHW if i % 2 == 0 else vHW2}, {vr(acc(2*i+1, nt), 2)} offset:{nt*9*1024 + (i >> 1)*1024}" for nt in range(4)]
        xread = lambda s: [f"ds_read_b128 {vr(XB[s % 2]+4*nt, 4)}, v{vXr[s % 3]} offset:{nt*1024}" for nt in range(4)]
        dtouch = [f"""s_lshr_b32 s3, s2, 3
s_mul_i32 s3, s3, 18
s_mul_i32 s4, s{sXC}, 576
s_add_u32 s3, s3, s4
v_add_u32 v28, s3, v{vL}
v_mul_u32_u24 v28, 1152, v28
v_mov_b32 v29, {OOB}
v_cmp_gt_u32 vcc, 18, v{vL}
v_cndmask_b32 v28, v29, v28, vcc
s_lshl_b32 s3, s{sW}, 7
s_add_u32 s3, s3, 256
s_cmp_eq_u32 s{sW}, 7
s_cselect_b32 s3, {OOB}, s3""", (f"buffer_load_dword v26, v28, {S4(sD)}, s3 offen {TPOLD}", "touch")]
        CT = [int(c, 36) for c in str(ctouch)] if ctouch else []
        def code_touch(n):
            if n not in CT or not five: return
            k(f"""s_getpc_b64 s[4:5]
{name}_ct{n}:
s_sub_u32 s4, s4, {name}_ct{n}-{name}_kernel
s_subb_u32 s5, s5, 0
s_bfe_u32 s3, s2, 0x30003
s_lshl_b32 s3, s3, 2
s_add_u32 s3, s3, s{sW}
s_lshl_b32 s3, s3, 11
v_and_b32 v{vQ}, 15, v{vL}
v_lshl_add_u32 v{vQ}, v{vQ}, 7, s3
v_min_u32 v{vQ}, {name}_code_end-{name}_kernel-4, v{vQ}""")
            k(f"global_load_dword v26, v{vQ}, s[4:5]", tag="touch")
        NS = 0 if pair else 16 if fuse else 18
        if pair:
            wj = lambda p, j: WR + 4*((p*2*nf + j) % 8)
            def rd(p, j):
                f, c = j >> 1, j & 1; i, u = f >> 1, f & 1
                va = (vWA if i % 2 == 0 else vWB)[p & 1]; d = wj(p, j)
                return [f"ds_read_b64_tr_b16 v[{d+2*h}:{d+2*h+1}], v{va} offset:{c*36864 + h*4*576 + i*32 + u*18432}" for h in range(2)]
            def mm(p, f, cs=(0, 1)):
                return [f"{MF} {vr(acc(f, nt), 4)}, {vr(wj(p, 2*f+c), 4)}, {vr(XB[c]+4*nt, 4)}, {'0' if p == 0 and c == 0 else vr(acc(f, nt), 4)}" for nt in range(4) for c in cs]
            xr = lambda c: [f"ds_read_b128 {vr(XB[c]+4*nt, 4)}, v{vXr[0]} offset:{c*8192 + nt*1024}" for nt in range(4)]
            defer = lambda p: mm(p, nf-2, (1,)) + mm(p, nf-1, (1,))
            for p in range(9):
                put(xr(0))
                for j in range(4): put(rd(p, j))
                dw = (dmaW(2*p+2, not five) + dmaW(2*p+3, not five)) if p < 8 else (dmaB(0, five) + dmaB(1, five))
                dx = (dmaX(2*p+2) + dmaX(2*p+3)) if p < 8 else []
                if not five: dx = dx + roll(2*p+ahead) + roll(2*p+1+ahead)
                head = (defer(p-1) if p else []) + xr(1)
                body = []
                for f in range(nf):
                    fill = (rd(p, 2*f+4) + rd(p, 2*f+5)) if f+2 < nf else []
                    if p == 8: fill = fill + late[f*len(late)//nf:(f+1)*len(late)//nf]
                    body.append(interleave(mm(p, f, (0, 1) if f < nf-2 else (0,)), fill))
                first = head + sum(body[:upos], []); rest = sum(body[upos:], [])
                sp = spread if five or not spread4 else spread4
                n1 = min(len(dw), sum(1 for x in first if isinstance(x, str) and x.startswith("v_mfma"))//(sp0 or sp))
                put(spread_in(first, dw[:n1], sp0 or sp))
                if p < 8: k("s_barrier")
                put(spread_in(rest, dx[:2] + dw[n1:] + dx[2:], sp))
                if p == 8 and depi: put(dtouch)
                k.wait_lg(); k.wait_vm(f"A{2*p+2}", f"A{2*p+3}"); k("s_barrier")
        for s in range(NS):
            put(xread(s))
            for f in range(look): put(wread(s, f))
            dma = dmaX(s+2) + dmaW(s+2, not five) if s+2 < 18 else dmaB(s-16, five)
            if early and s == 0: dma = dmaW(2, not five) + [("s_nop 0\n" + xflag(sLN), "XQ")]
            if late1 == 2 and s == 0: dma = dmaW(1, not five) + dma
            if early and s == 1:
                spin(f"{name}_{P}y", xflag(sLN), f"v_cmp_eq_u32 vcc, 0, v{vQ}")
                dma = dmaX(2) + dma
            if not five: dma = dma + roll(s+ahead)
            if droll and five and dstage <= s < dstage+droll:
                dma = dma + [(f"s_add_u32 s94, s{sS1}, {(s-dstage)*(5184//droll)*128}\nbuffer_load_dword v28, v31, {S4(sD)}, s94 offen {TPOLD}", "touch")]
            if LP and five and istage <= s < istage+4:
                dma = dma + [(f"s_add_u32 s94, s{sPO}, {(5+s-istage)*8192}\nbuffer_store_dwordx4 v[28:31], v{vPO}, {S4(sP)}, s94 offen offset:{h*128} sc1", "I") for h in range(2)]
            seq = sum((mfa(s-1, f) for f in range(nf-nd, nf)), []) if s > 0 else []
            for f in range(nf-nd):
                extra = late[f*len(late)//(nf-nd):(f+1)*len(late)//(nf-nd)] if s == 17 else []
                mm_ = mfa(s, f)
                if "chain" in abl:
                    f0 = f & ~1
                    mm_ = [f"{MF} {vr(acc(f0 + (s & 1), nt), 4)}, {vr(wreg(s, f0+c), 4)}, {vr(XB[s % 2]+4*nt, 4)}, {vr(acc(f0 + (s & 1), nt), 4)}" for nt in ((0, 1) if f % 2 == 0 else (2, 3)) for c in range(2)]
                seq += interleave(mm_, (wread(s, f+look) if f+look < nf else []) + extra)
            put(spread_in(seq, dma, spread if len(dma) < 8 else 2))
            if s == dstage and "notouch" not in abl and not droll and not depi: touch([sD], f"{name}_{P}td", 27)
            if depi == s and s > 1: put(dtouch)
            code_touch(s)
            if ptouch and five and s == ptouch:
                k(f"""v_lshrrev_b32 v{vT0}, 2, v{vL}
s_lshl_b32 s3, s{sW}, 2
v_add_u32 v{vT0}, s3, v{vT0}
v_mul_u32_u24 v{vT0}, {9*16384 + 1024}, v{vT0}
v_and_b32 v{vT1}, 3, v{vL}
v_min_u32 v{vT1}, 2, v{vT1}
v_lshl_add_u32 v{vT0}, v{vT1}, 16, v{vT0}
v_mov_b32 v{vT1}, {OOB}
v_cmp_gt_u32 vcc, 16, v{vL}
v_cndmask_b32 v{vT0}, v{vT1}, v{vT0}, vcc""")
                k(f"buffer_load_dword v28, v{vT0}, {S4(sP)}, s{sRD} offen", tag="touch")
            if nl:
                el = f"buffer_load_dword v29, v{vT2}, {S4(sF)}, 0 offen sc1"
                if s == 3 and five:
                    k(f"s_cmp_eq_u32 s{sAct}, 0\ns_cbranch_scc1 {name}_rsig\ns_cmp_lg_u32 s{sW}, 0\ns_cbranch_scc1 {name}_rsig")
                    k.wait_vm("R2")
                    k(f"v_mov_b32 v{vT0}, 1\ns_mov_b32 s3, {F_E}\nbuffer_store_dword v{vT0}, v30, {S4(sF)}, s3 offen sc1\n{name}_rsig:")
                if s == 12:
                    k(f"s_and_b32 s3, s{sLN}, -128\ns_lshl_b32 s4, s{sRG}, 4\ns_add_u32 s3, s3, s4\ns_add_u32 s3, s3, {F_E}\nv_and_b32 v{vT2}, 3, v{vL}\nv_lshl_add_u32 v{vT2}, v{vT2}, 2, s3")
                    k(el)
                if s == 14:
                    spin(f"{name}_{P}e", el, "v_cmp_eq_u32 vcc, 0, v29")
                    k(f"s_lshl_b32 s3, s{sMT}, 9\ns_lshl_b32 s4, s{sRG}, 8\ns_add_u32 s3, s3, s4\ns_add_u32 s3, s3, {F_R}\nv_and_b32 v{vT2}, 0xf0, v{vDX}\nbuffer_load_dwordx4 v[28:31], v{vT2}, {S4(sF)}, s3 offen sc1")
            xl = f"buffer_load_dword v{vQ}, v{vZ}, {S4(sF)}, s{sF1} offen sc1"
            if LP and five and s == tstage:
                k.wait_vm("I")
                k(f"""v_lshrrev_b32 v{vT0}, 4, v{vL}
v_lshlrev_b32 v{vT0}, 13, v{vT0}
v_bfe_u32 v{vT1}, v{vL}, 1, 3
v_lshl_add_u32 v{vT0}, v{vT1}, 10, v{vT0}
v_and_b32 v{vT1}, 1, v{vL}
v_lshl_add_u32 v{vT0}, v{vT1}, 7, v{vT0}
s_add_u32 s3, s{sPO}, {5*8192}
v_mov_b32 v{vT1}, s{sLoc}""")
                k(f"buffer_load_dword v28, v{vT0}, {S4(sP)}, s3 offen", tag="touch")
                k(f"buffer_store_dword v{vT1}, v{vZ}, {S4(sF)}, s{sF1} offen sc1")
            if LP and not five and s == 13: k(xl)
            if LP and not five and s == 15:
                spin(f"{name}_xid", xl, f"v_cmp_eq_u32 vcc, 0, v{vQ}")
                k(f"v_readfirstlane_b32 s3, v{vQ}\ns_cmp_eq_u32 s3, s{sLoc}\ns_cselect_b32 s{sLoc}, {0 if 'remote' in abl else 1}, 0")
            k.wait_lg(); k.wait_vm(f"A{s+1}", "A17" if fuse and s == 15 else "-")
            if not ("halfbar" in abl and s % 2 == 0): k("s_barrier")
        if fuse:
            n0 = 16*nf
            wj = lambda j: WR + 4*((n0+j) % 8)
            def rd(j):
                f, s = j >> 1, 16 + (j & 1); i, u = f >> 1, f & 1
                va = (vWA if i % 2 == 0 else vWB)[s % 3]; d = wj(j)
                return [f"ds_read_b64_tr_b16 v[{d+2*h}:{d+2*h+1}], v{va} offset:{h*4*576 + i*32 + u*18432}" for h in range(2)]
            def mm(f): return [f"{MF} {vr(acc(f, nt), 4)}, {vr(wj(2*f+c), 4)}, {vr(XB[c]+4*nt, 4)}, {vr(acc(f, nt), 4)}" for nt in range(4) for c in range(2)]
            put(xread(16))
            for j in range(4): put(rd(j))
            put(spread_in(sum((mfa(15, f) for f in range(nf-nd, nf)), []), dmaB(0, five), 2))
            put(xread(17))
            for f in range(nf):
                fill = (rd(2*f+4) + rd(2*f+5)) if f+2 < nf else []
                if f < 2: fill = fill + late[f*len(late)//2:(f+1)*len(late)//2]
                else:
                    gl = glu(f//2 - 1); fill = fill + gl[(f % 2)*len(gl)//2:(f % 2 + 1)*len(gl)//2]
                put(interleave(mm(f), fill))
            k.wait_lg(); k("s_barrier")
            st(7)
            put(dmaB(1, five))
            for i in range(nt5-1): put(hwrite(i))
            put(sel)
            put(glu(nt5-1)); put(hwrite(nt5-1))
        else:
            put(defer(8) if pair else sum((mfa(17, f) for f in range(nf-nd, nf)), []))
            st(7)
            if eprio and five == (eprio == 1): k("s_setprio 1")
            if depi == 1: put(dtouch)
            k("s_mov_b32 s4, 1.0\ns_mov_b32 s5, 1.0")
            if nl:
                for i in range(8): k(f"v_mov_b32 v{64+i}, v{28+(i >> 1)}")
            for i in range(nt5): put(glu(i)); put(hwrite(i))
            put(sel)
        if prio or eprio: k("s_setprio 0")
        k.wait_lg(); k.wait_vm("B0"); k("s_barrier")
        st(8); stb(0)
        if "dbl" in abl: k(f"s_cmp_eq_u32 s{sB}, 0\ns_mov_b32 s101, {288*1152}\ns_cselect_b32 s101, s101, {-288*1152}")
        if "cnt" in abl: k("s_mov_b32 s99, 0")
        HB = 112; AB = [80, 96]; WG = [28, 40, 52]; SD = 64
        def hreg(kp, nt): return HB + (kp*4+nt)*4
        def wgreg(gi, c): return WG[gi] + 4*c
        def wdread(u, gi):
            out = []
            for c in range(3):
                d = wgreg(gi, c); kp = gi*3+c
                out += [f"ds_read_b64_tr_b16 v[{d+2*h}:{d+2*h+1}], v{vWD[u % 4]} offset:{kp*4096 + h*2048}" for h in range(2)]
            return out
        def mfb(u, gi):
            out = []
            for nt in range(4):
                a = AB[u % 2]+4*nt
                for c in range(3):
                    out.append(f"{MF} {vr(a, 4)}, {vr(wgreg(gi, c), 4)}, {vr(hreg(gi*3+c, nt), 4)}, {'0' if gi == 0 and c == 0 else vr(a, 4)}")
            return out
        cvt = lambda u, h: [f"v_cvt_pk_bf16_f32 v{AB[u % 2]+8*h+q}, v{AB[u % 2]+8*h+2*q}, v{AB[u % 2]+8*h+2*q+1}" for q in range(4)]
        hread = lambda kp: [f"ds_read_b128 {vr(hreg(kp, nt), 4)}, v{vHR} offset:{(nt*9+kp)*1024}" for nt in range(4)]
        dmat = lambda t: (dmaB(2, five) + dmaB(3, five)) if t == 1 else (dmaB(t+2, five) if 2 <= t <= 6 else [])
        def phaseB_L():
            rounds = lambda ph: list(range(PH[ph-1]+1 if ph else 0, PH[ph]+1))
            TAG = lambda u: [0x1, 0x10000, 0x10001][(u+3)//4]
            alias = lambda u: 5 + (u-5) % 4
            def endslot(t):
                if t <= 7: k.wait_lg(); k.wait_vm(f"B{t+1}"); k("s_barrier")
                if t < 9: stb(t+1)
            arr_at = {c+4: ph for ph, c in enumerate(PH) if c+4 <= 9}
            tch_at = {t+1: ph for t, ph in arr_at.items() if t+1 <= 8 and ph < ntouch}
            if not five:
                def send(u):
                    lab = f"{name}_s{u}"
                    txt = f"s_add_u32 s3, s{sPO}, {alias(u)*8192}\n" + "\n".join(f"buffer_store_dwordx4 {vr(AB[u % 2]+8*h, 4)}, v{vPO}, {S4(sP)}, s3 offen offset:{h*128} POL" for h in range(2))
                    k(f"s_cmp_eq_u32 s{sLoc}, 0\ns_cbranch_scc1 {lab}_r")
                    q0 = k.seq
                    k(txt.replace("POL", ""))
                    k(f"s_branch {lab}_d\n{lab}_r:")
                    k.seq = q0
                    k(txt.replace("POL", "sc1"))
                    k.seq += 1
                    k(f"{lab}_d:")
                tag = lambda u, h: [f"s_mov_b32 s4, {TAG(u)}\nv_bfi_b32 v{AB[u % 2]+8*h}, v{vMK}, s4, v{AB[u % 2]+8*h}"]
                poll = lambda ph, tv: f"s_mov_b32 s3, {ph*32768}\nbuffer_load_dword v{tv}, v{vFL}, {S4(sF)}, s3 offen sc1"
                def check(ph, tv): spin(f"{name}_c{ph}", poll(ph, tv).split("\n")[1], f"s_mov_b32 s3, {ph*32768}\nv_cmp_eq_u32 vcc, 0, v{tv}")
                for t in range(9):
                    put(wdread(t, 0))
                    if t == 0:
                        for kp in range(3): put(hread(kp))
                        put(interleave(mfb(0, 0), wdread(0, 1) + hread(3)+hread(4)+hread(5)))
                        put(interleave(mfb(0, 1), wdread(0, 2) + hread(6)+hread(7)+hread(8)))
                    else:
                        d = mfb(t-1, 2)
                        put(d[:9]); put(interleave(d[9:], cvt(t-1, 0) + tag(t-1, 0)))
                        g0 = mfb(t, 0); g1 = mfb(t, 1)
                        put(interleave(g0[:3], wdread(t, 1)[:2] + cvt(t-1, 1) + tag(t-1, 1)))
                        send(t-1)
                        dm = dmat(t); h = (len(dm)+1)//2
                        put(spread_in(interleave(g0[3:], wdread(t, 1)[2:] + [""]*5), dm[:h], 2 if h <= 5 else 1))
                        put(spread_in(interleave(g1, wdread(t, 2) + [""]*6), dm[h:], 2 if h <= 5 else 1))
                        if t in tch_at:
                            ph = tch_at[t]; check(ph, 64)
                            if ph == 0: k(f"buffer_load_dword v65, v{vHT}, {S4(sH)}, 0 offen sc1", tag="touch")
                            rr = rounds(ph); assert len(rr) <= 4
                            k(f"s_cmp_lt_u32 s{sCG}, {len(rr)}\ns_cselect_b32 s3, s{sCG}, {OOB >> 13}\ns_add_u32 s3, s3, {rr[0]}\ns_lshl_b32 s3, s3, 13\nbuffer_load_dword v65, v{vTR}, {S4(sP)}, s3 offen sc1", tag="touch")
                    endslot(t)
                    if t+1 in tch_at: k(poll(tch_at[t+1], 64))
                first = len(tch_at)
                put(mfb(8, 2)); put(cvt(8, 0) + tag(8, 0) + cvt(8, 1) + tag(8, 1)); send(8)
                st(9)
                home = lambda r: (HB+16*r, HB+16*r+8, HB+16*r+12)
                def rloads(r):
                    RB, HV, DA = home(r)
                    for pg in range(2): k(f"s_add_u32 s3, s{sRD}, {r*8192 + pg*4*9*8192}\nbuffer_load_dwordx4 {vr(RB+4*pg, 4)}, v{vRD}, {S4(sP)}, s3 offen sc1")
                    k(f"s_movk_i32 s3, {r*2048}\nbuffer_load_dwordx2 {vr(HV, 2)}, v{vHO}, {S4(sH)}, s3 offen sc1")
                def rsum(r):
                    RB, HV, DA = home(r)
                    for pg in range(2): k(f"{MF} {vr(DA, 4)}, {vr(SEL, 4)}, {vr(RB+4*pg, 4)}, {'0' if pg == 0 else vr(DA, 4)}")
                    k(f"v_lshlrev_b32 v{RB}, 16, v{HV}\nv_and_b32 v{RB+1}, 0xffff0000, v{HV}\nv_lshlrev_b32 v{RB+2}, 16, v{HV+1}\nv_and_b32 v{RB+3}, 0xffff0000, v{HV+1}")
                def rfin(r):
                    RB, HV, DA = home(r)
                    for q in range(4): k(f"v_fma_f32 v{RB+q}, v{DA+q}, s{sLN}, v{RB+q}")
                    k(f"v_cvt_pk_bf16_f32 v{HV}, v{RB}, v{RB+1}\nv_cvt_pk_bf16_f32 v{HV+1}, v{RB+2}, v{RB+3}")
                rout = lambda r: k(f"buffer_store_dwordx2 {vr(home(r)[1], 2)}, v{vOO}, {S4(sO)}, 0 offen offset:{r*128} {OUTPOL}")
                pend = [r for ph in range(first) for r in rounds(ph)]
                for r in pend: rloads(r)
                for ph in range(first, len(PH)):
                    k(poll(ph, 64))
                    for r in pend: rsum(r)
                    for r in pend: rfin(r)
                    check(ph, 64)
                    for r in rounds(ph): rloads(r)
                    for r in pend: rout(r)
                    pend = rounds(ph)
                for r in pend: rsum(r)
                for r in pend: rfin(r); rout(r)
            else:
                sld = lambda u: f"s_add_u32 s3, s{sPO}, {alias(u)*8192}\n" + "\n".join(f"buffer_load_dwordx4 {vr(SD+4*h, 4)}, v{vPO}, {S4(sP)}, s3 offen offset:{h*128} sc1" for h in range(2))
                def add(u):
                    if "nol1chk" not in abl:
                        spin(f"{name}_k{u}", sld(u), f"s_mov_b32 s4, {TAG(u)}\nv_and_b32 v78, v{vMK}, v{SD}\nv_and_b32 v79, v{vMK}, v{SD+4}\nv_xor_b32 v78, s4, v78\nv_xor_b32 v79, s4, v79\nv_or_b32 v78, v78, v79\nv_cmp_ne_u32 vcc, 0, v78")
                    put([f"{MF} {vr(AB[u % 2]+8*h+4*q, 4)}, {vr(SK+2-2*q, 4)}, {vr(SD+4*h, 4)}, {vr(AB[u % 2]+8*h+4*q, 4)}" for h in range(2) for q in range(2)])
                pst = lambda u: [(f"s_add_u32 s3, s{sPO}, {u*8192}\nbuffer_store_dwordx4 {vr(AB[u % 2]+8*h, 4)}, v{vPO}, {S4(sP)}, s3 offen offset:{h*128} sc1", f"P{u}") for h in range(2)]
                def arrive1(ph):
                    k.wait_vm(f"P{PH[ph]}")
                    k(f"s_mov_b64 exec, 1\nds_add_rtn_u32 v7, v{vFL}, v{vFV} offset:{ph*4}\ns_mov_b64 exec, -1")
                def arrive2(ph):
                    k(f"v_readfirstlane_b32 s3, v7\ns_cmp_lg_u32 s3, 3\ns_cbranch_scc1 {name}_ar{ph}\ns_mov_b32 s3, {ph*32768}\nbuffer_store_dword v{vFV}, v{vFS}, {S4(sF)}, s3 offen sc1\n{name}_ar{ph}:")
                for kp in range(9): put(hread(kp))
                endslot(0)
                for t in range(1, 10):
                    u = t-1
                    put(wdread(u, 0))
                    if u >= 1: k(sld(u-1))
                    if u >= 2: put(pst(u-2))
                    if u >= 1: put(mfb(u-1, 2))
                    put(interleave(mfb(u, 0), wdread(u, 1) + [""]*6))
                    g1 = mfb(u, 1)
                    put(interleave(g1[:6], wdread(u, 2)))
                    if u >= 1:
                        add(u-1)
                        if t == 9: k(sld(8))
                        if t in arr_at: arrive1(arr_at[t])
                        put(g1[6:9])
                        put(interleave(g1[9:], cvt(u-1, 0) + cvt(u-1, 1)))
                        if t in arr_at: arrive2(arr_at[t])
                    else: put(g1[6:])
                    endslot(t)
                put(pst(7))
                put(mfb(8, 2)); add(8)
                st(9)
                p8 = pst(8)
                put(cvt(8, 0) + p8[:1] + cvt(8, 1) + p8[1:])
                for ph in range(len(arr_at), len(PH)): arrive1(ph); arrive2(ph)
        def phaseB_S():
            pst = lambda u, h: (f"s_add_u32 s3, s{sPO}, {u*16384}\nbuffer_store_dwordx4 {vr(AB[u % 2]+8*h, 4)}, v{vPO}, {S4(sP)}, s3 offen offset:{h*128} sc1", f"P{u}")
            own = lambda u: [f"s_mov_b64 exec, s[{sEX}:{sEX+1}]\n" + "\n".join(f"ds_write_b128 v{vTR}, {vr(AB[u % 2]+8*h, 4)} offset:{u*1024+h*128}" for h in range(2)) + "\ns_mov_b64 exec, -1"] if skip else []
            epib = lambda u: cvt(u, 0) + [pst(u, 0)] + cvt(u, 1) + ([] if "half" in abl else [pst(u, 1)]) + own(u)
            def signal(ph):
                if five: k(f"s_cmp_lg_u32 s{sW}, 0\ns_cbranch_scc1 {name}_sig{ph}\ns_mov_b32 s3, {ph*32768}\nbuffer_store_dword v{vFV}, v{vFS}, {S4(sF)}, s3 offen sc1\n{name}_sig{ph}:")
            poll = lambda ph, tv: f"s_mov_b32 s3, {ph*32768}\nbuffer_load_dword v{tv}, v{vFL}, {S4(sF)}, s3 offen sc1"
            def check(ph, tv): spin(f"{name}_{P}c{ph}", poll(ph, tv).split("\n")[1], f"s_mov_b32 s3, {ph*32768}\n{notyet(tv)}")
            rounds = lambda ph: list(range(PH[ph-1]+1 if ph else 0, PH[ph]+1))
            mine = lambda rr: [r for r in rr if (r % 2 == 0) == five]
            sig_at = {c+lag+1: ph for ph, c in enumerate(PH) if c+lag+1 <= 8}
            rd_at = {u+1: ph for u, ph in sig_at.items() if u+1 <= 8 and ph < inl}
            inloop = [r for ph in rd_at.values() for r in rounds(ph)]
            assert not (nl and inloop)
            home = lambda r: (64, 6, 24) if r in inloop else (HB+24*(r >> 1), HB+24*(r >> 1)+16, HB+24*(r >> 1)+20)
            def rloads(r):
                RB, HV, DA = home(r); out = []
                for pg in range(2 if "half" in abl else 4):
                    ld = f"buffer_load_dwordx4 {vr(RB+4*pg, 4)}, v{vRD}, {S4(sP)}, s3 offen sc1"
                    if skip and pg == 0: ld = f"s_mov_b64 exec, 0xffff\nds_read_b128 {vr(RB, 4)}, v{vHT} offset:{r*1024}\ns_mov_b32 exec_hi, -1\ns_mov_b32 exec_lo, 0xffff0000\n{ld}\ns_mov_b64 exec, -1"
                    out.append(f"s_add_u32 s3, s{sRP+pg}, {r*16384}\n{ld}")
                out.append(f"s_movk_i32 s3, {r*2048}\nbuffer_load_dwordx2 {vr(HV, 2)}, v{vHO}, {S4(sH)}, s3 offen sc1")
                return out
            def rsum(r):
                RB, HV, DA = home(r)
                return [f"{MF} {vr(DA, 4)}, {vr(SEL, 4)}, {vr(RB+4*pg, 4)}, {'0' if pg == 3 else vr(DA, 4)}" for pg in (3, 2, 1, 0)]
            def rfin(r):
                RB, HV, DA = home(r)
                return [f"v_lshlrev_b32 v{RB}, 16, v{HV}", f"v_and_b32 v{RB+1}, 0xffff0000, v{HV}", f"v_lshlrev_b32 v{RB+2}, 16, v{HV+1}", f"v_and_b32 v{RB+3}, 0xffff0000, v{HV+1}"] + \
                       [f"v_fma_f32 v{RB+q}, v{DA+q}, {f'v{vSC}' if nl else f's{sLN}'}, v{RB+q}" for q in range(4)] + \
                       [f"v_cvt_pk_bf16_f32 v{HV}, v{RB}, v{RB+1}", f"v_cvt_pk_bf16_f32 v{HV+1}, v{RB+2}, v{RB+3}"]
            rout = lambda r: [f"buffer_store_dwordx2 {vr(home(r)[1], 2)}, v{vOO}, {S4(sO)}, 0 offen offset:{r*128} {OUTPOL}"]
            pend = []
            if bprio and five == (bprio == 1): k("s_setprio 1")
            for u in range(9):
                put(wdread(u, 0))
                if u in sig_at: signal(sig_at[u])
                if u == 0:
                    for kp in range(3): put(hread(kp))
                    put(interleave(mfb(0, 0), wdread(0, 1) + hread(3)+hread(4)+hread(5)))
                    put(interleave(mfb(0, 1), wdread(0, 2) + hread(6)+hread(7)+hread(8)))
                    if nl: k(f"buffer_load_dword v{vSC}, v{vSC}, {S4(sF)}, 0 offen sc1")
                    if otouch: k(f"buffer_load_dword v19, v{vOO}, {S4(sO)}, 0 offen", tag="touch")
                else:
                    put(spread_in(mfb(u-1, 2), dmat(u), 2 if u > 1 and 'dbl' not in abl else 1))
                    put(interleave(mfb(u, 0), wdread(u, 1) + epib(u-1)))
                    g1 = mfb(u, 1); fill = []
                    if pend and u not in rd_at:
                        r = pend.pop(); g1 = g1[:6] + rsum(r) + g1[6:]; fill = [""]*8 + rfin(r) + rout(r)
                    elif u in rd_at and mine(rounds(rd_at[u])):
                        assert not pend and len(mine(rounds(rd_at[u]))) == 1
                        check(rd_at[u], 19); pend = mine(rounds(rd_at[u])); fill = rloads(pend[0])
                    put(interleave(g1[:6], wdread(u, 2))); put(interleave(g1[6:], fill) if fill else g1[6:])
                    if u == 8:
                        for ph in sig_at.values():
                            if ph not in rd_at.values(): k(poll(ph, 28+ph))
                code_touch(18+u)
                if u < 8:
                    k.wait_lg(); k.wait_vm(f"B{u+1}", f"P{PH[sig_at[u+1]]}" if u+1 in sig_at else "-"); k("s_barrier")
                if u+1 in rd_at and mine(rounds(rd_at[u+1])): k(poll(rd_at[u+1], 19))
                if u < 9: stb(u+1)
            put(mfb(8, 2))
            st(9)
            put(epib(8))
            if nl: k(f"v_mul_f32 v{vSC}, s{sLN}, v{vSC}")
            tailph = list(range(len(sig_at), len(PH)))
            if sigfirst and len(tailph) > 1 and order == 0:
                for ph in tailph[:-1]:
                    k.wait_vm(f"P{PH[ph]}"); k("s_barrier"); signal(ph)
            for ph in sig_at.values():
                if ph in rd_at.values(): continue
                check(ph, 28+ph)
                if "tail" in abl: k("s_memrealtime s[62:63]")
                for r in mine(rounds(ph)): put(rloads(r)); pend.append(r)
            if sigfirst:
                for ph in (tailph if order else tailph[-1:]):
                    k.wait_lg(); k.wait_vm(f"P{PH[ph]}")
                    if "tail" in abl: k("s_memrealtime s[64:65]")
                    k("s_barrier")
                    if "tail" in abl: k("s_memrealtime s[66:67]")
                    signal(ph)
            for ph in tailph:
                if not sigfirst:
                    k.wait_lg(); k.wait_vm(f"P{PH[ph]}"); k("s_barrier"); signal(ph)
                if not mine(rounds(ph)): continue
                k(poll(ph, 19))
                done = list(pend) if sigfirst and ph == len(PH)-1 else pend[:1]
                for r in done: put(rsum(r)); put(rfin(r))
                check(ph, 19)
                if "tail" in abl: k("s_memrealtime s[68:69]")
                for r in mine(rounds(ph)): put(rloads(r)); pend.append(r)
                for r in done: put(rout(r)); pend.remove(r)
            for r in pend: put(rsum(r)); put(rfin(r)); put(rout(r))
        phaseB_L() if LP else phaseB_S()
        if stamp:
            k("s_waitcnt vmcnt(0) lgkmcnt(0)\ns_memrealtime s[4:5]" + ("\ns_memtime s[70:71]" if "clk" in abl else "") + "\ns_waitcnt lgkmcnt(0)")
            for i in range(10): k(f"v_mov_b32 v{28+i}, s{60+2*i}")
            k(f"""v_mov_b32 v38, s4
v_mov_b32 v39, s99
s_lshl_b32 s3, s2, 3
s_add_u32 s3, s3, s{sW}
s_lshl_b32 s3, s3, 6
s_add_u32 s3, s3, {O_STAMP}
v_mov_b32 v40, s3
global_store_dwordx4 v40, v[28:31], s[6:7]
global_store_dwordx4 v40, v[32:35], s[6:7] offset:16
global_store_dwordx4 v40, v[36:39], s[6:7] offset:32""")
            if "orc" in abl and not five:
                X = int(abl.split("orc")[1][:3])/10; which = abl.split("orc")[1][3:4] or "a"
                k(f"""s_cmp_lg_u32 s2, 0
s_cbranch_scc1 {name}_noorc
s_cmp_lg_u32 s{sW}, 4
s_cbranch_scc1 {name}_noorc
v_mov_b32 v41, {O_STAMP + 262144}
global_load_dword v44, v41, s[6:7]
s_waitcnt vmcnt(0)
v_readfirstlane_b32 s3, v44
s_sub_u32 s3, s{4 if which == 'a' else 60+2*int(which)}, s3
s_cmp_lt_u32 s3, {int(X*100)}
s_cbranch_scc1 {name}_noorc
s_movk_i32 s3, 60
{name}_orcl:
s_sleep 64
s_sub_u32 s3, s3, 1
s_cbranch_scc0 {name}_orcl
{name}_noorc:""")
                k.saved.pop(f"{name}_orcl", None)
            if "until" in abl and not five:
                k(f"""s_cmp_lg_u32 s2, 0
s_cbranch_scc1 {name}_nount
s_cmp_lg_u32 s{sW}, 4
s_cbranch_scc1 {name}_nount
v_mov_b32 v41, {O_STAMP + 262144}
global_load_dword v44, v41, s[6:7]
s_waitcnt vmcnt(0)
v_readfirstlane_b32 s3, v44
{name}_untl:
s_memrealtime s[4:5]
s_waitcnt lgkmcnt(0)
s_sub_u32 s4, s4, s3
s_cmp_lt_u32 s4, 8000
s_cbranch_scc1 {name}_untl
{name}_nount:""")
                k.saved.pop(f"{name}_untl", None)
            if "dbg" in abl and not five:
                k(f"""s_cmp_lg_u32 s2, 0
s_cbranch_scc1 {name}_nodbg
s_cmp_lg_u32 s{sW}, 4
s_cbranch_scc1 {name}_nodbg
s_load_dwordx2 s[8:9], s[0:1], 64
v_mov_b32 v41, {O_STAMP + 262144}
global_load_dwordx4 v[44:47], v41, s[6:7]
global_load_dwordx4 v[48:51], v41, s[6:7] offset:16
v_mov_b32 v41, {O_STAMP + 2*262144}
global_load_dwordx4 v[52:55], v41, s[6:7]
global_load_dwordx4 v[56:59], v41, s[6:7] offset:16
s_waitcnt vmcnt(0) lgkmcnt(0)
s_sub_u32 s8, s8, {int(abl.split('dbg')[1][0])*512}
s_subb_u32 s9, s9, 0
v_sub_u32 v60, v46, v44
v_sub_u32 v61, v50, v44
v_sub_u32 v62, v52, v44
v_sub_u32 v63, v57, v44""")
                for i in range(11): k(f"v_sub_u32 v{64+i}, v{28+i}, v44")
                k(f"""v_mov_b32 v75, 12345
v_mov_b32 v41, 0
global_store_dwordx4 v41, v[60:63], s[8:9]
global_store_dwordx4 v41, v[64:67], s[8:9] offset:16
global_store_dwordx4 v41, v[68:71], s[8:9] offset:32
global_store_dwordx4 v41, v[72:75], s[8:9] offset:48
{name}_nodbg:""")
    k(f"s_cmp_ge_u32 s{sW}, 4\ns_cbranch_scc1 {name}_p4")
    path(True)
    k(f"s_endpgm\n{name}_p4:")
    path(False)
    k(f"{name}_end:")
    return k
```

```python
from asmlib import *
from layout import *
import struct
def fl(x): return "0x%08x" % struct.unpack("<I", struct.pack("<f", x))[0]
MF = "v_mfma_f32_16x16x32_bf16"
def ws_srd(k, d, off, nbytes, ws=6):
    k(f"s_add_u32 s{d}, s{ws}, {off}\ns_addc_u32 s{d+1}, s{ws+1}, 0\ns_mov_b32 s{d+2}, {nbytes}\ns_mov_b32 s{d+3}, 0x20000")
def srd_tail(k, d, nbytes): k(f"s_mov_b32 s{d+2}, {nbytes}\ns_mov_b32 s{d+3}, 0x20000")
S4 = lambda d: f"s[{d}:{d+3}]"


def build_pf(look=3, nd=2, spread=3, stamp=False, abl="", name="pf", OUTPOL="", WPOL="", DPOL="", TPOL="", dstage=11, safe=0, XPOL="sc1", TPOLD="", ahead=4,
             phases="478", lag=2, ntouch=0, prio="", fuse=0, pk=1, W2=1, mode="S", merge=1, wat=0, cnap=0, tseq=0, hlate=1, ctouch="h", pair=0, spread4=0, sp0=0, upos=1, eprio=0, bprio=0, mono=0, gnap=0, p1o={}, NREPL=16, depi=17, droll=0, nl=0, wlate=1, sigfirst=1, order=0, ptouch=0, otouch=0, bulk=0, vprio=1, cprio=0, drain=1, ib2=1, nap=0, early=0, su3=0, w4p=0, late1=0, idlepf=1, inl=0, skip=1, lph="1358", istage=1, tstage=7):
    LP = mode == "L"
    PH = [int(c) for c in str(lph if LP else phases)]
    k = K(name, 256, 512, lds=163840, vgpr=256, sgpr=102)
    sG, sU, sD, sX, sP, sF, sS, sH, sO, sV, sI, sT = 8, 12, 16, 20, 24, 28, 32, 36, 40, 44, 48, 52
    sW, sMT, sSL, sRG = 56, 57, 58, 59
    sA, sKW, sKX, sM0a, sM0x, sM0s, sKD, sM0d, sPO, sCG, sRD, sLN, sLoc, sS1 = range(80, 94)
    sF1 = 96; sB = 97; sXC = 98
    vL, vDX, vD0, vD1, vD2, vT0, vT1, vT2 = range(8)
    vXr = [8, 9, 10]; vWA = [11, 12, 13]; vWB = [14, 15, 16]
    SLOT_A = [0, 45056, 90112]; RING_B = [0, 36864, 90112, 126976]; HH = 90112; OWN = 73728; WO = 8192
    wslot = lambda s: SLOT_A[s % 3]; xslot = wslot
    if pair:
        assert not (early or LP or fuse or bulk or nl or droll or late1)
        RING_B = [73728, 110592, 0, 36864]; HH = 0; OWN = 147456; WO = 0
        wslot = lambda s: (s % 4)*36864; xslot = lambda s: 147456 + (s & 1)*8192
        vWA = [13, 11]; vWB = [16, 14]
    vDD, vPO, vHW = 17, 18, 19
    vWD = [20, 21, 22, 23]
    vHR, vHW2, vZ, vQ = 24, 25, 26, 27
    def stb(i):
        if stamp and "bst" in abl: k(f"s_memrealtime s[{60+2*i}:{61+2*i}]")
    def st(i):
        if stamp and "clk" in abl:
            if i >= 6: k(f"s_memrealtime s[{60+2*i}:{61+2*i}]\ns_memtime s[{60+2*(i-5)}:{61+2*(i-5)}]")
            elif i == 0: k("s_memrealtime s[60:61]")
            return
        if stamp and "bst" not in abl: k(f"s_memrealtime s[{60+2*i}:{61+2*i}]")
    def put(items):
        for x in items:
            t = x[0] if isinstance(x, tuple) else x
            if "nodma" in abl and " lds" in t and x[1] not in ("A0", "A1"): continue
            if "nop2" in abl and "buffer_store" in t and isinstance(x, tuple) and x[1].startswith("P"): continue
            if "nomfma" in abl and "v_mfma" in t: continue
            if isinstance(x, tuple): k(x[0], tag=x[1])
            else: k(x)
    cold = []
    def spin(lab, load, cond, nap=0):
        bound = f"s_sub_u32 s5, s5, 1\ns_cbranch_scc1 {lab}_ok\n" if safe else ""
        k(f"{cond}\ns_cbranch_vccnz {lab}_slow\n{lab}_ok:")
        k.saved.pop(lab + "_slow", None)
        def emit_cold():
            k(f"{lab}_slow:\ns_waitcnt vmcnt(0) lgkmcnt(0)\n{f's_mov_b32 s5, {20000 if safe == 1 else 4000000}' if safe else ''}\n{lab}_spin:\n{'s_add_u32 s99, s99, 1' if 'cnt' in abl else ''}\n{bound}{f's_sleep {nap}' if nap else ''}\n{load}\ns_waitcnt vmcnt(0)\n{cond}\ns_cbranch_vccnz {lab}_spin\ns_branch {lab}_ok")
            k.saved.clear()
        cold.append(emit_cold)
    st(0)
    sNC = 0 if mono else None
    FV = f"s{sNC}" if mono else "1"
    notyet = lambda v: f"v_cmp_ne_u32 vcc, s{sNC}, v{v}" if mono else f"v_cmp_eq_u32 vcc, 0, v{v}"
    if mono:
        assert not (early or nl or droll or LP)
        from fft import build_p1
        build_p1(MERGE=1, mono=k, **p1o)
        k(f"""{name}_join:
s_setprio 0
s_mov_b32 s2, s101
s_mov_b32 s{sW}, s100""")
    k(f"""
{'' if mono else 's_load_dwordx2 s[6:7], s[0:1], 72'}
s_load_dwordx2 s[{sG}:{sG+1}], s[0:1], 32
s_load_dwordx2 s[{sU}:{sU+1}], s[0:1], 40
s_load_dwordx2 s[{sI}:{sI+1}], s[0:1], 0
s_load_dwordx2 s[{sD}:{sD+1}], s[0:1], 48
s_load_dwordx2 s[{sO}:{sO+1}], s[0:1], 56""")
    if not mono: k(f"""s_cmp_ge_u32 s2, 256
s_cbranch_scc1 {name}_end
v_lshrrev_b32 v{vT0}, 6, v0
v_and_b32 v{vL}, 63, v0
v_readfirstlane_b32 s{sW}, v{vT0}""")
    k(f"""
s_lshr_b32 s3, s2, 3
s_and_b32 s{sMT}, s3, 15
s_lshr_b32 s{sB}, s3, 4
s_and_b32 s{sXC}, s2, 7
s_lshl_b32 s4, s{sXC}, 1
s_add_u32 s{sSL}, s4, s{sB}
v_lshlrev_b32 v{vDX}, 4, v{vL}
v_mov_b32 v{vZ}, 0
v_mov_b32 v37, 0
v_mov_b32 v2, 0
v_mov_b32 v3, 0
v_mov_b32 v4, 0
v_mov_b32 v47, 0
v_mov_b32 v30, 0
""")
    o = 32
    R = lambda n: n + o
    sS2, sNT, sVB, sXO, sSO = 99, sB, 100, 101, (96 if early else 50 if hlate else sRD)
    assert not (early and LP)
    sAct = 92
    L, MB_, AC, TW, G, XX = R(16), R(48), R(64), R(96), R(120), R(160)
    EZ = 90112; ES = EZ + 20480
    g_, n_, vVA, vHS, vRow, vXo, vEW, vSW, vSR = R(2), R(3), R(4), R(5), R(6), R(7), R(9), R(14), R(15)
    t0, t1, t2, t3 = R(10), R(11), R(12), R(13)
    assert merge
    NV = O_TAB - O_U + N_TAB
    vloads = "\n".join(f"s_add_u32 s3, s{sVB}, {(16*kk+t)*64*ROWB}\nbuffer_load_dwordx4 {vr(L+16*kk+4*t, 4)}, v{vVA}, {S4(sV)}, s3 offen sc1" for kk in range(2) for t in range(4))
    k(f"""
s_and_b32 s3, s{sXC}, 3
s_lshl_b32 s{sS2}, s{sMT}, 2
s_add_u32 s{sS2}, s{sS2}, s3
s_lshr_b32 s3, s{sXC}, 2
s_and_b32 s4, s{sMT}, 1
s_cmp_eq_u32 s3, s4
s_cselect_b32 s{sAct}, 1, 0
s_lshl_b32 s3, s{sB}, 3
s_lshr_b32 s4, s{sMT}, 1
s_add_u32 s81, s3, s4
s_waitcnt lgkmcnt(0)
""")
    ws_srd(k, sV, O_V, NV)
    if mono:
        ws_srd(k, sF, O_FLG, N_FLG)
        gl = f"buffer_load_dwordx4 v[8:11], v{vDX}, {S4(sF)}, s94 offen sc1"
        k(f"""v_readfirstlane_b32 s{sNC}, v200
s_add_u32 s{sNC}, s{sNC}, 1
s_lshl_b32 s3, s2, 2
v_lshl_add_u32 v{vT0}, v{vL}, 10, s3
v_mov_b32 v{vT1}, {OOB}
v_cmp_gt_u32 vcc, {NREPL}, v{vL}
v_cndmask_b32 v{vT0}, v{vT1}, v{vT0}, vcc
v_mov_b32 v{vT1}, s{sNC}
s_lshr_b32 s3, s2, 3
s_and_b32 s3, s3, {NREPL-1}
s_lshl_b32 s3, s3, 10
s_add_u32 s94, s3, {F_G}
s_mov_b32 s3, {F_G}
s_waitcnt vmcnt(0)
s_barrier""")
        st(1)
        k(f"""s_cmp_lg_u32 s{sW}, 7
s_cbranch_scc1 {name}_j2
buffer_store_dword v{vT1}, v{vT0}, {S4(sF)}, s3 offen sc1
{gl}""")
        spin(f"{name}_g", gl, f"v_xor_b32 v8, s{sNC}, v8\nv_xor_b32 v9, s{sNC}, v9\nv_xor_b32 v10, s{sNC}, v10\nv_xor_b32 v11, s{sNC}, v11\nv_or3_b32 v8, v8, v9, v10\nv_or_b32 v8, v8, v11\nv_cmp_ne_u32 vcc, 0, v8", gnap)
        k(f"""s_cmp_lg_u32 s2, 0
s_cbranch_scc1 {name}_j2
s_mov_b32 s3, {F_N}
buffer_store_dword v{vT1}, v{vZ}, {S4(sF)}, s3 offen sc1
{name}_j2:
s_barrier""")
    def common_setup():
        k(f"""
v_lshrrev_b32 v{g_}, 4, v{vL}
v_and_b32 v{n_}, 15, v{vL}
s_lshl_b32 s3, s{sW}, 4
v_add_u32 v{vVA}, s3, v{n_}
v_lshlrev_b32 v{vVA}, 4, v{vVA}
v_mul_u32_u24 v{t0}, {4*64*ROWB}, v{g_}
v_add_u32 v{vVA}, v{vVA}, v{t0}
s_mul_i32 s{sVB}, s{sS2}, {ROWB}
s_lshl_b32 s3, s{sNT}, 4
v_add_u32 v{vRow}, s3, v{n_}
v_lshl_add_u32 v{vRow}, v{vRow}, 6, s{sS2}
v_mul_u32_u24 v{vXo}, 1152, v{vRow}
v_lshl_add_u32 v{vXo}, v{g_}, 5, v{vXo}
s_lshl_b32 s{sXO}, s{sW}, 7
""")
        srd_tail(k, sI, N_H); ws_srd(k, sT, O_TAB, N_TAB)
        ws_srd(k, sX, O_XF, N_XF); ws_srd(k, sH, O_H, N_H); ws_srd(k, sF, O_FLG, N_FLG)
        for d in (sG, sU, sD): srd_tail(k, d, N_W)
        srd_tail(k, sO, N_H)
        ws_srd(k, sP, O_P, N_P)
        k(f"s_bitcmp0_b32 s{sW}, 1\ns_cselect_b32 s{sS}, s{sG}, s{sU}\ns_cselect_b32 s{sS+1}, s{sG+1}, s{sU+1}")
        srd_tail(k, sS, N_W)
    def pattern(vd):
        k(f"""
s_lshl_b32 s4, s3, 6
v_add_u32 v{vT0}, s4, v{vL}
v_mul_u32_u24 v{vT1}, 1821, v{vT0}
v_lshrrev_b32 v{vT1}, 16, v{vT1}
v_mul_u32_u24 v{vT2}, 36, v{vT1}
v_sub_u32 v{vT0}, v{vT0}, v{vT2}
v_lshrrev_b32 v{vT2}, 2, v{vT1}
v_and_b32 v{vT2}, 2, v{vT2}
v_xor_b32 v{vT0}, v{vT0}, v{vT2}
v_lshlrev_b32 v{vT0}, 4, v{vT0}
v_and_b32 v{vT2}, 24, v{vT1}
v_add_u32 v{vT1}, v{vT1}, v{vT2}
v_mul_u32_u24 v{vT1}, 9216, v{vT1}
v_add_u32 v{vd}, v{vT0}, v{vT1}
""")
    def mlp_setup():
        k(f"s_and_b32 s{sRG}, s{sW}, 1\ns_bfe_u32 s{sA}, s{sW}, 0x10001\n{'s_and_b32' if LP else 's_lshr_b32'} s{sCG}, s{sW}, {3 if LP else 1}")
        k(f"s_lshl_b32 s3, s{sW}, 1"); pattern(vD0)
        k(f"s_add_u32 s3, s3, 1"); pattern(vD1)
        k(f"s_add_u32 s3, s{sRG}, 16"); pattern(vD2)
        k(f"""
s_mul_i32 s{sKW}, s{sSL}, 576
s_lshl_b32 s3, s{sMT}, 3
s_add_u32 s3, s3, s{sW}
s_mul_i32 s{sKX}, s3, 18432
s_lshl_b32 s{sM0x}, s{sW}, 10
s_lshl_b32 s{sM0a}, s{sW}, 11
s_add_u32 s{sM0a}, s{sM0a}, {WO}
s_mul_i32 s3, s{sA}, 18432
s_lshl_b32 s4, s{sRG}, 10
s_add_u32 s3, s3, s4
s_add_u32 s{sM0s}, s3, {WO+16*1024}
""")
    def dmaX(s):
        return [(f"s_add_u32 m0, s{sM0x}, {xslot(s)}\ns_add_u32 s94, s{sKX}, {s*1024}\nbuffer_load_dwordx4 v{vDX}, {S4(sX)}, s94 offen {XPOL} lds", f"A{s}")]
    def dmaW(s, six):
        o = wslot(s)
        g = [f"s_add_u32 m0, s{sM0a}, {o}\ns_add_u32 s95, s{sKW}, {((s >> 1)*64 + (s & 1)*8)*9216}\nbuffer_load_dwordx4 v{vD0}, {S4(sG)}, s95 offen {WPOL} lds",
             f"s_add_u32 m0, s{sM0a}, {o+1024}\nbuffer_load_dwordx4 v{vD1}, {S4(sG)}, s95 offen {WPOL} lds",
             f"s_add_u32 m0, s{sM0a}, {o+18432}\nbuffer_load_dwordx4 v{vD0}, {S4(sU)}, s95 offen {WPOL} lds",
             f"s_add_u32 m0, s{sM0a}, {o+18432+1024}\nbuffer_load_dwordx4 v{vD1}, {S4(sU)}, s95 offen {WPOL} lds"]
        if six: g.append(f"s_add_u32 m0, s{sM0s}, {o}\nbuffer_load_dwordx4 v{vD2}, {S4(sS)}, s95 offen {WPOL} lds")
        return [(x, f"A{s}") for x in g]
    def dmaB(u, five):
        o = RING_B[u % 4]
        if LP and five: return []
        if "dbl" in abl:
            return [(f"s_add_u32 m0, s{sM0d}, {o+i*1024}\ns_add_u32 s94, s{sKD}, {i*8*1152+u*128}\n{'s_xor_b32 s94, s94, 0' if q == 0 else 's_add_u32 s94, s94, s101'}\nbuffer_load_dwordx4 v{vDD}, {S4(sD)}, s94 offen {DPOL} lds", f"B{u}") for q in range(2) for i in range(4 if five else 5)]
        return [(f"s_add_u32 m0, s{sM0d}, {o+i*1024}\ns_add_u32 s94, s{sKD}, {i*8*1152+u*128}\nbuffer_load_dwordx4 v{vDD}, {S4(sD)}, s94 offen {DPOL} lds", f"B{u}") for i in range(9 if LP else 4 if five else 5)]
    def first_w(lab, only=None):
        for s in (only or ((0,) if late1 else (0, 1))):
            put(dmaW(s, False))
            k(f"s_cmp_lt_u32 s{sW}, 4\ns_cbranch_scc1 {lab}{s}")
            put(dmaW(s, True)[4:])
            k(f"{lab}{s}:")
    def bulk_w():
        k(f"s_sub_u32 s3, s{sW}, 5\ns_mul_i32 s3, s3, 6\ns_lshl_b32 s5, s3, 10\ns_add_u32 s5, s5, 8192\ns_add_u32 s95, s{sKW}, {8*9216}")
        for i in range(6):
            pattern(t0)
            for s_, so in ((0, sKW), (1, 95))[:1 if bulk == 2 else 2]:
                for m, d in enumerate((sG, sU)):
                    k(f"s_add_u32 m0, s5, {SLOT_A[s_] + m*18432 + i*1024}\nbuffer_load_dwordx4 v{t0}, {S4(d)}, s{so} offen {WPOL} lds", tag="A0")
            k("s_add_u32 s3, s3, 1")
    def rest_loads(lab):
        k(f"buffer_load_dwordx4 {vr(XX, 4)}, v{vXo}, {S4(sI)}, s{sXO} offen\nbuffer_load_dwordx4 {vr(XX+4, 4)}, v{vXo}, {S4(sI)}, s{sXO} offen offset:16")
        k(f"s_mul_i32 s3, s{sW}, 5120\ns_add_u32 s3, s3, 16384\ns_add_u32 s4, s3, 4096")
        for f in range(5): k(f"buffer_load_dwordx4 {vr(G+4*f, 4)}, v{vDX}, {S4(sT)}, s{3+f//4} offen offset:{(f % 4)*1024}")
        k(f"s_cmp_lg_u32 s{sW}, {W2}\ns_cbranch_scc1 {lab}")
        k(f"buffer_load_dwordx4 {vr(XX+8, 4)}, v{vXo}, {S4(sI)}, 0 offen offset:1024\nbuffer_load_dwordx4 {vr(XX+12, 4)}, v{vXo}, {S4(sI)}, 0 offen offset:1040")
        k(f"s_mov_b32 s3, {(16+40)*1024}\ns_mov_b32 s4, {(16+44)*1024}")
        for f in range(5): k(f"buffer_load_dwordx4 {vr(G+20+4*f, 4)}, v{vDX}, {S4(sT)}, s{3+f//4} offen offset:{(f % 4)*1024}")
        k(f"{lab}:")
    def matrices():
        k(f"""
v_cvt_f32_u32 v{t0}, v{vRow}
v_mul_f32 v{t0}, {fl(1/2048)}, v{t0}
v_cvt_f32_u32 v{t1}, v{g_}
v_mul_f32 v{t1}, 4.0, v{t1}
v_mul_f32 v{vEW}, v{t0}, v{t1}
""")
        for kk in range(2):
            for t in range(4):
                k(f"""v_fmamk_f32 v{t2}, v{t0}, {fl(float(16*kk+t))}, v{vEW}
v_cos_f32 v{t3}, v{t2}
v_sin_f32 v{t2}, v{t2}
v_cvt_pk_bf16_f32 v{MB_+4*kk+t}, v{t3}, -v{t2}
v_cvt_pk_bf16_f32 v{MB_+8+4*kk+t}, v{t2}, v{t3}""")
        tw = [f"s_lshl_b32 s3, s{sW}, 4", f"v_cvt_f32_u32 v{t0}, s3", f"v_add_f32 v{t1}, v{t1}, v{t0}"]
        for r in range(4):
            if r: tw.append(f"v_add_f32 v{t1}, 1.0, v{t1}")
            for q in range(1, 4):
                tw += [f"v_mul_f32 v{t2}, {fl(q/576)}, v{t1}", f"v_cos_f32 v{TW+8*(q-1)+r}, v{t2}", f"v_sin_f32 v{TW+8*(q-1)+4+r}, v{t2}"]
        return tw
    sSU = 96
    if merge:
        from fft import column_task
        k(f"""s_mov_b32 s{sSU}, 0
s_lshl_b32 s3, s81, 1
s_sub_u32 s4, s{sW}, 5
s_add_u32 s3, s3, s4
s_cmp_lt_u32 s4, 2
s_cselect_b32 s3, s3, 64+12
s_mul_i32 s4, s81, 3
s_add_u32 s4, s4, s{sW}
s_add_u32 s4, s4, 32
s_cmp_lt_u32 s{sW}, 3
s_cselect_b32 s4, s4, 64+12
s_cmp_eq_u32 s{sAct}, 0
s_cselect_b32 s3, s4, s3
s_cmp_ge_u32 s3, 76
s_cbranch_scc1 {name}_other
s_mul_i32 s4, s3, 27
s_lshr_b32 s4, s4, 9
s_mul_i32 s5, s4, 19
s_sub_u32 s81, s3, s5
s_lshl_b32 s3, s{sXC}, 2
s_add_u32 s82, s3, s4""")
        if cprio: k(f"s_setprio {cprio}")
        column_task(k, 48, 81, 82, 83, sV, vDX, vL, common_setup, lambda: (None if mono else st(1), k("s_barrier")))
        st(2)
        if cprio: k("s_setprio 0")
        if drain: k("s_waitcnt vmcnt(0)")
        if ib2: k(f"s_barrier\ns_cmp_eq_u32 s{sAct}, 0\ns_cbranch_scc1 {name}_fin")
        else: k(f"s_cmp_eq_u32 s{sAct}, 0\ns_cbranch_scc1 {name}_fin\ns_barrier")
        mlp_setup()
        k(f"s_mov_b32 s{sSU}, 1")
        rest_loads(f"{name}_rl4")
        k(f"s_branch {name}_bulk\n{name}_other:")
        common_setup()
        k(f"s_cmp_eq_u32 s{sAct}, 0\ns_cbranch_scc1 {name}_nocol\ns_cmp_lt_u32 s{sW}, 5\ns_cbranch_scc1 {name}_rows\n{name}_nocol:")
        mlp_setup()
        k(f"s_mov_b32 s{sSU}, 1\ns_barrier\ns_cmp_eq_u32 s{sAct}, 0\ns_cbranch_scc1 {name}_ib")
        rest_loads(f"{name}_rl1")
        k(f"s_barrier\n{name}_bulk:")
        if bulk == 2: k("s_barrier")
        if bulk: bulk_w()
        k(f"s_branch {name}_noA\n{name}_ib:\n{'s_barrier' if ib2 else ''}\ns_branch {name}_fin\n{name}_rows:")
        put(matrices())
        if wlate == 5:
            mlp_setup()
            k(f"s_mov_b32 s{sSU}, 1")
        k(f"""v_cmp_le_u32 vcc, 12, v{n_}
s_cmp_eq_u32 s{sW}, 4
s_cselect_b64 vcc, vcc, 0
v_cndmask_b32 v{vHS}, 0, 1, vcc
s_barrier""")
        rest_loads(f"{name}_rl3")
        k(f"s_barrier")
        if not mono: st(1)
        if vprio: k(f"s_and_b32 s3, s{sW}, 3\ns_cmp_lg_u32 s3, 0\ns_cbranch_scc1 {name}_vp\ns_setprio 2\n{name}_vp:")
        k(vloads)
        chk = "\n".join([f"v_and_b32 v{t0}, v{L}, v{L+4}"] + [f"v_and_b32 v{t0}, v{t0}, v{L+4*i}" for i in range(2, 8)] + [f"v_or_b32 v{t0}, v{t0}, v{vHS}", f"v_and_b32 v{t0}, 1, v{t0}", f"v_cmp_eq_u32 vcc, 0, v{t0}"])
        spin(f"{name}_v", vloads, chk, nap)
        if bulk == 2: k("s_barrier")
        tw = [""]*22
    else:
        k(f"s_cmp_lt_u32 s{sW}, 5\ns_cbranch_scc1 {name}_doA")
        mlp_setup()
        rest_loads(f"{name}_rl1")
        k(f"s_branch {name}_noA\n{name}_doA:")
        tw = matrices()
        put(tw[:22])
    st(2)
    for kk in range(2):
        for a in range(4):
            for b in range(a+1, 4): k(f"v_swap_b32 v{L+16*kk+4*a+b}, v{L+16*kk+4*b+a}")
    mf = []
    for m in (0, 2, 1, 3):
        for kk in range(2):
            for c in range(2):
                a = AC+8*m+4*c
                mf.append(f"{MF} {vr(a, 4)}, {vr(L+16*kk+4*m, 4)}, {vr(MB_+8*c+4*kk, 4)}, {'0' if kk == 0 else vr(a, 4)}")
    put(interleave(mf, tw[22:]) if tw[22:] else mf)
    if not merge: rest_loads(f"{name}_rl2")
    Z = L; T = L+16
    p2 = lambda x: vr(x, 2)
    NEG = "neg_lo:[0,1] neg_hi:[0,1]"
    for r in (0, 2):
        Rr = lambda m: AC+8*m+r
        I = lambda m: AC+8*m+4+r
        ar, ai, br, bi, cr, ci, dr, di = (T+2*i for i in range(8))
        k(f"""
v_pk_add_f32 {p2(ar)}, {p2(Rr(0))}, {p2(Rr(2))}
v_pk_add_f32 {p2(ai)}, {p2(I(0))}, {p2(I(2))}
v_pk_add_f32 {p2(cr)}, {p2(Rr(1))}, {p2(Rr(3))}
v_pk_add_f32 {p2(ci)}, {p2(I(1))}, {p2(I(3))}
v_pk_add_f32 {p2(br)}, {p2(Rr(0))}, {p2(Rr(2))} {NEG}
v_pk_add_f32 {p2(bi)}, {p2(I(0))}, {p2(I(2))} {NEG}
v_pk_add_f32 {p2(dr)}, {p2(Rr(1))}, {p2(Rr(3))} {NEG}
v_pk_add_f32 {p2(di)}, {p2(I(1))}, {p2(I(3))} {NEG}
v_pk_add_f32 {p2(Rr(0))}, {p2(ar)}, {p2(cr)}
v_pk_add_f32 {p2(I(0))}, {p2(ai)}, {p2(ci)}
v_pk_add_f32 {p2(Rr(1))}, {p2(br)}, {p2(di)} {NEG}
v_pk_add_f32 {p2(I(1))}, {p2(bi)}, {p2(dr)}
v_pk_add_f32 {p2(Rr(2))}, {p2(ar)}, {p2(cr)} {NEG}
v_pk_add_f32 {p2(I(2))}, {p2(ai)}, {p2(ci)} {NEG}
v_pk_add_f32 {p2(Rr(3))}, {p2(br)}, {p2(di)}
v_pk_add_f32 {p2(I(3))}, {p2(bi)}, {p2(dr)} {NEG}
v_cvt_pk_bf16_f32 v{Z+r}, v{Rr(0)}, v{I(0)}
v_cvt_pk_bf16_f32 v{Z+r+1}, v{Rr(0)+1}, v{I(0)+1}
""")
        for q in range(1, 4):
            cc = TW+8*(q-1)+r
            k(f"v_pk_mul_f32 {p2(T+4*q)}, {p2(cc)}, {p2(Rr(q))}\nv_pk_mul_f32 {p2(T+4*q+2)}, {p2(cc)}, {p2(I(q))}")
        for q in range(1, 4):
            ss = TW+8*(q-1)+4+r
            k(f"v_pk_fma_f32 {p2(T+4*q)}, {p2(ss)}, {p2(I(q))}, {p2(T+4*q)} neg_lo:[1,0,0] neg_hi:[1,0,0]\nv_pk_fma_f32 {p2(T+4*q+2)}, {p2(ss)}, {p2(Rr(q))}, {p2(T+4*q+2)}")
        for q in range(1, 4):
            k(f"v_cvt_pk_bf16_f32 v{Z+4*q+r}, v{T+4*q}, v{T+4*q+2}\nv_cvt_pk_bf16_f32 v{Z+4*q+r+1}, v{T+4*q+1}, v{T+4*q+3}")
    k(f"s_lshl_b32 s3, s{sW}, 10\ns_add_u32 s3, s3, {EZ}\nv_add_u32 v{vEW}, s3, v{vDX}")
    for q in range(4): k(f"ds_write_b128 v{vEW}, {vr(Z+4*q, 4)} offset:{q*5120}")
    k(f"s_setprio 0\ns_cmp_eq_u32 s{sW}, 4\ns_cbranch_scc1 {name}_noA")
    if su3: mlp_setup()
    k(f"{name}_noA:")
    k(f"""
v_lshlrev_b32 v{vSR}, 6, v{n_}
v_add_u32 v{vSR}, {ES}, v{vSR}
v_lshrrev_b32 v{vSW}, {2 if nl else 1}, v{g_}
v_lshl_add_u32 v{vSW}, v{vSW}, 2, v{vSR}
s_lshl_b32 s3, s{sW}, 3
v_add_u32 v{vSW}, s3, v{vSW}
v_lshrrev_b32 v{vHS}, 1, v{n_}
v_lshlrev_b32 v{vHS}, 7, v{vHS}
v_and_b32 v{t0}, 1, v{n_}
v_lshl_add_u32 v{vHS}, v{t0}, 6, v{vHS}
v_lshl_add_u32 v{vHS}, v{g_}, 4, v{vHS}
v_add_u32 v{vEW}, {EZ}, v{vDX}
s_lshl_b32 s3, s{sS2}, 1
s_add_u32 s3, s3, s{sNT}
s_mul_i32 s4, s3, 18432
s_lshl_b32 s5, s{sW}, 11
s_add_u32 s{sSO}, s4, s5
s_add_u32 s{sVB}, s4, 16384
s_and_b32 s3, s3, 7
s_lshl_b32 s3, s3, 2
s_lshl_b32 s4, s{sMT}, 11
s_add_u32 s{sXO}, s3, s4
s_mov_b32 s5, 0xffff0000
""")
    A2 = AC; ZR = L
    def allsum(a, b):
        k(f"""v_add_f32 v{a}, v{a}, v{a+1}
v_mov_b32 v{b}, v{a}
v_permlane32_swap_b32 v{a}, v{b}
v_add_f32 v{a}, v{a}, v{b}
v_mov_b32 v{b}, v{a}
v_permlane16_swap_b32 v{a}, v{b}
v_add_f32 v{a}, v{a}, v{b}""")
    def final_nl(nmt):
        so = [sSO, sVB]
        prs = [A2+16*mt+4*q+2*p for mt in range(nmt) for q in range(4) for p in range(2)]
        for mt in range(nmt):
            for r in range(4):
                for q in range(4):
                    src = XX+8*mt+2*r+(q >> 1); dst = A2+16*mt+4*q+r
                    k(f"v_and_b32 v{dst}, s5, v{src}" if q & 1 else f"v_lshlrev_b32 v{dst}, 16, v{src}")
        k(f"v_pk_add_f32 {vr(t0, 2)}, {vr(prs[0], 2)}, {vr(prs[1], 2)}\nv_pk_add_f32 {vr(t2, 2)}, {vr(prs[2], 2)}, {vr(prs[3], 2)}")
        for i, a in enumerate(prs[4:]): k(f"v_pk_add_f32 {vr(t0+2*(i & 1), 2)}, {vr(t0+2*(i & 1), 2)}, {vr(a, 2)}")
        k(f"v_pk_add_f32 {vr(t0, 2)}, {vr(t0, 2)}, {vr(t2, 2)}")
        allsum(t0, t1)
        k(f"ds_write_b32 v{vSW}, v{t0}")
        k.wait_lg(); k("s_barrier")
        st(3)
        idx = [(jt, q) for jt in range(5) for q in range(4)]
        rd = lambda i: f"ds_read_b128 {vr(ZR+4*(i % 8), 4)}, v{vEW} offset:{idx[i][1]*5120+idx[i][0]*1024}"
        for i in range(7): k(rd(i))
        for w in range(4): k(f"ds_read_b128 {vr(MB_+4*w, 4)}, v{vSR} offset:{16*w}")
        mean = [f"v_add_f32 v{MB_+a}, v{MB_+a}, v{MB_+b}" for a, b in ((0, 2), (4, 6), (8, 10), (12, 14), (0, 4), (8, 12), (0, 8))] + \
               [f"v_mul_f32 v{t0}, {fl(-1/576)}, v{MB_}", f"v_mul_f32 v{t1}, {fl(-1/576)}, v{MB_}"]
        for i, (jt, q) in enumerate(idx):
            for mt in range(nmt):
                a = A2+16*mt+4*q
                k(f"{MF} {vr(a, 4)}, {vr(G+20*mt+4*jt, 4)}, {vr(ZR+4*(i % 8), 4)}, {vr(a, 4)}")
            if i+7 < 20: k(rd(i+7))
            if 8 <= i < 8+len(mean): k(mean[i-8])
        def pack(dst, src, h):
            for p in range(4):
                r, q = 2*h+(p >> 1), 2*(p & 1)
                k(f"v_cvt_pk_bf16_f32 v{dst+p}, v{src+4*q+r}, v{src+4*(q+1)+r}")
        HC = G
        for mt in range(nmt):
            for h in range(2):
                for q in range(4): k(f"v_pk_add_f32 {vr(HC+16*mt+4*q+2*h, 2)}, {vr(A2+16*mt+4*q+2*h, 2)}, {vr(t0, 2)}")
                pack(L+8*mt+4*h, HC+16*mt, h)
                k(f"buffer_store_dwordx4 {vr(L+8*mt+4*h, 4)}, v{vDX}, {S4(sX)}, s{so[mt]} offen offset:{h*1024} sc1", tag="XF")
        hp = [a - A2 + HC for a in prs]
        k(f"v_pk_mul_f32 {vr(t0, 2)}, {vr(hp[0], 2)}, {vr(hp[0], 2)}\nv_pk_mul_f32 {vr(t2, 2)}, {vr(hp[1], 2)}, {vr(hp[1], 2)}")
        for i, a in enumerate(hp[2:]): k(f"v_pk_fma_f32 {vr(t0+2*(i & 1), 2)}, {vr(a, 2)}, {vr(a, 2)}, {vr(t0+2*(i & 1), 2)}")
        k(f"v_pk_add_f32 {vr(t0, 2)}, {vr(t0, 2)}, {vr(t2, 2)}")
        allsum(t0, t1)
        k(f"ds_write_b32 v{vSW}, v{t0} offset:4")
        for mt in range(nmt):
            for h in range(2): pack(XX+8*mt+4*h, A2+16*mt, h)
        k(f"""v_mov_b32 v{vEW}, v{vSR}
v_lshl_add_u32 v30, v{vL}, 7, s{sXO}
v_mov_b32 v{vSR}, {OOB}
v_cmp_gt_u32 vcc, 16, v{vL}
v_cndmask_b32 v30, v{vSR}, v30, vcc
v_mov_b32 v{vSW}, {FV}""")
    def final(nmt):
        if nl: return final_nl(nmt)
        so = [sSO, sVB]
        for mt in range(nmt):
            for r in range(4):
                for q in range(4):
                    src = XX+8*mt+2*r+(q >> 1); dst = A2+16*mt+4*q+r
                    k(f"v_and_b32 v{dst}, s5, v{src}" if q & 1 else f"v_lshlrev_b32 v{dst}, 16, v{src}")
        k.wait_lg(); k("s_barrier")
        st(3)
        idx = [(jt, q) for jt in range(5) for q in range(4)]
        rd = lambda i: f"ds_read_b128 {vr(ZR+4*(i % 8), 4)}, v{vEW} offset:{idx[i][1]*5120+idx[i][0]*1024}"
        for i in range(7): k(rd(i))
        for i, (jt, q) in enumerate(idx):
            for mt in range(nmt):
                a = A2+16*mt+4*q
                k(f"{MF} {vr(a, 4)}, {vr(G+20*mt+4*jt, 4)}, {vr(ZR+4*(i % 8), 4)}, {vr(a, 4)}")
            if i+7 < 20: k(rd(i+7))
            if wlate == 5 and wat <= i < wat+10:
                q = i - wat; d = dmaW(q // 5, True)[q % 5]
                if q % 5 == 4: k(f"s_cmp_lt_u32 s{sW}, 4\ns_cbranch_scc1 {name}_f{nmt}w{q}")
                put([d])
                if q % 5 == 4: k(f"{name}_f{nmt}w{q}:")
        if "p3st" in abl: k("s_memrealtime s[62:63]")
        first = True
        for mt in range(nmt):
            for q in range(4):
                for p in range(2):
                    a = A2+16*mt+4*q+2*p
                    if first: k(f"v_mov_b64 {vr(t0, 2)}, {vr(a, 2)}\nv_pk_mul_f32 {vr(t2, 2)}, {vr(a, 2)}, {vr(a, 2)}"); first = False
                    else: k(f"v_pk_add_f32 {vr(t0, 2)}, {vr(t0, 2)}, {vr(a, 2)}\nv_pk_fma_f32 {vr(t2, 2)}, {vr(a, 2)}, {vr(a, 2)}, {vr(t2, 2)}")
        k(f"""
v_add_f32 v{t0}, v{t0}, v{t1}
v_add_f32 v{t2}, v{t2}, v{t3}
v_permlane32_swap_b32 v{t0}, v{t2}
v_add_f32 v{t0}, v{t0}, v{t2}
v_mov_b32 v{t1}, v{t0}
v_permlane16_swap_b32 v{t0}, v{t1}
v_add_f32 v{t0}, v{t0}, v{t1}
ds_write_b32 v{vSW}, v{t0}
""")
        def pack(dst, mt, h):
            for p in range(4):
                r, q = 2*h+(p >> 1), 2*(p & 1)
                k(f"v_cvt_pk_bf16_f32 v{dst+p}, v{A2+16*mt+4*q+r}, v{A2+16*mt+4*(q+1)+r}")
        for mt in range(nmt):
            for h in range(2): pack(XX+8*mt+4*h, mt, h)
        k.wait_lg(); k("s_barrier")
        if "p3st" in abl: k("s_memrealtime s[64:65]")
        for w in range(4): k(f"ds_read_b128 {vr(L+4*w, 4)}, v{vSR} offset:{16*w}")
        k(f"""v_lshl_add_u32 v{vSW}, v{vL}, 7, s{sXO}
v_mov_b32 v{vSR}, {OOB}
v_cmp_gt_u32 vcc, 16, v{vL}
v_cndmask_b32 v{vSR}, v{vSR}, v{vSW}, vcc
v_mov_b32 v{vSW}, {FV}""")
        for a, b in ((0, 2), (4, 6), (8, 10), (12, 14), (0, 4), (8, 12), (0, 8)):
            k(f"v_pk_add_f32 {vr(L+a, 2)}, {vr(L+a, 2)}, {vr(L+b, 2)}")
        k(f"""
v_mul_f32 v{t0}, {fl(1/576)}, v{L}
v_mul_f32 v{t1}, v{t0}, v{t0}
v_fmamk_f32 v{t2}, v{L+1}, {fl(1/576)}, v{t1}
v_fma_f32 v{t2}, -2.0, v{t1}, v{t2}
v_max_f32 v{t2}, 0, v{t2}
v_add_f32 v{t2}, {fl(1e-5)}, v{t2}
v_rsq_f32 v{t2}, v{t2}
v_mul_f32 v{t2}, {fl(LOG2E)}, v{t2}
v_mul_f32 v{t0}, -v{t0}, v{t2}
v_mov_b32 v{t3}, v{t2}
v_mov_b32 v{t1}, v{t0}
s_cmp_eq_u32 s{sW}, 0
s_cselect_b32 s4, 0x10001, 0
""")
        for mt in range(nmt):
            for q in range(4):
                for p in range(2):
                    a = A2+16*mt+4*q+2*p
                    k(f"v_pk_fma_f32 {vr(a, 2)}, {vr(a, 2)}, {vr(t2, 2)}, {vr(t0, 2)}")
            for h in range(2):
                pack(L+8*mt+4*h, mt, h)
                if early and nmt == 1: k(f"v_or_b32 v{L+4*h}, s4, v{L+4*h}")
                k(f"buffer_store_dwordx4 {vr(L+8*mt+4*h, 4)}, v{vDX}, {S4(sX)}, s{so[mt]} offen offset:{h*1024} sc1", tag="XF")
    def hstores(lab):
        for mt in range(2):
            if mt: k(f"s_cmp_lg_u32 s{sW}, {W2}\ns_cbranch_scc1 {lab}")
            for h in range(2): k(f"buffer_store_dwordx4 {vr(XX+8*mt+4*h, 4)}, v{vHS}, {S4(sH)}, s{[sSO, sVB][mt]} offen offset:{h*1024} sc1", tag="H")
        k(f"{lab}:")
    k(f"s_cmp_eq_u32 s{sW}, {W2}\ns_cbranch_scc1 {name}_fin2")
    final(1)
    if early:
        k(f"""s_cmp_lg_u32 s{sW}, 0
s_cbranch_scc1 {name}_fin
s_mov_b32 s3, {F_E}
buffer_store_dword v{vSW}, v{vSR}, {S4(sF)}, s3 offen sc1""")
    st2 = k.saved.pop(f"{name}_fin2"); st1 = k.st; main = k.lines
    k.lines = []; k.st = None; k.saved[f"{name}_fin2"] = st2
    k(f"{name}_fin2:")
    final(2)
    k(f"s_branch {name}_fin")
    fin2 = k.lines; k.lines = main; k.st = st1
    cold.append(lambda: k.lines.extend(fin2))
    k(f"{name}_fin:")
    if "p3st" in abl: k("s_memrealtime s[60:61]")
    if merge: k(f"s_cmp_eq_u32 s{sSU}, 1\ns_cbranch_scc1 {name}_sudone")
    else: k(f"s_cmp_eq_u32 s{sAct}, 0\ns_cbranch_scc1 {name}_su\n{'s_cmp_lg_u32' if su3 else 's_cmp_gt_u32'} s{sW}, 4\ns_cbranch_scc1 {name}_sudone\n{name}_su:")
    mlp_setup()
    k(f"{name}_sudone:")
    if wlate == 3: first_w(f"{name}_w0", (0,))
    if bulk or wlate: k(f"s_cmp_lg_u32 s{sAct}, 0\ns_cbranch_scc1 {name}_wdone")
    first_w(f"{name}_wc", (1,) if wlate == 3 else None)
    if bulk or wlate: k(f"{name}_wdone:")
    def touch(mats, lab, dst):
        k(f"""
s_lshr_b32 s3, s2, 3
s_lshl_b32 s3, s3, 3
s_add_u32 s3, s3, s{sW}
s_cmp_ge_u32 s3, {81*len(mats)}
s_cbranch_scc1 {lab}_x
s_cmp_ge_u32 s3, 81
s_cselect_b32 s4, 81, 0
s_sub_u32 s4, s3, s4
v_lshl_add_u32 v{vT0}, s4, 6, v{vL}
v_mul_u32_u24 v{vT1}, 7282, v{vT0}
v_lshrrev_b32 v{vT1}, 16, v{vT1}
v_mul_u32_u24 v{vT2}, 9, v{vT1}
v_sub_u32 v{vT2}, v{vT0}, v{vT2}
v_mul_u32_u24 v{vT1}, {9216 if mats[0] != sD else 1152}, v{vT1}
v_lshl_add_u32 v{vT1}, v{vT2}, 7, v{vT1}
s_mul_i32 s4, s{sXC}, {1152 if mats[0] != sD else 576*1152}
""")
        if len(mats) == 2: k(f"s_cmp_ge_u32 s3, 81\ns_cbranch_scc1 {lab}_u")
        k(f"buffer_load_dword v{dst}, v{vT1}, {S4(mats[0])}, s4 offen {TPOL if len(mats) == 2 else TPOLD}", tag="touch")
        if len(mats) == 2: k(f"s_branch {lab}_x\n{lab}_u:\nbuffer_load_dword v{dst}, v{vT1}, {S4(mats[1])}, s4 offen {TPOL}")
        k(f"{lab}_x:")
    vTW = 31
    k(f"""
s_cmp_eq_u32 s{sB}, 0
s_cselect_b32 s{sV}, s{sG}, s{sU}
s_cselect_b32 s{sV+1}, s{sG+1}, s{sU+1}
s_mov_b32 s{sV+2}, {N_W}
s_mov_b32 s{sV+3}, 0x20000
s_and_b32 s3, s{sW}, 3
s_mul_i32 s3, s3, 5
v_add_u32 v{vTW}, s3, v{vL}
v_cmp_lt_u32 vcc, 8, v{vTW}
v_cndmask_b32 v{vT0}, 0, 1, vcc
v_mul_u32_u24 v{vT1}, 9, v{vT0}
v_sub_u32 v{vT1}, v{vTW}, v{vT1}
s_lshr_b32 s3, s{sW}, 2
s_xor_b32 s3, s3, 1
s_xor_b32 s3, s3, s{sMT}
s_lshl_b32 s3, s3, 1
v_add_u32 v{vT0}, s3, v{vT0}
v_and_b32 v{vT2}, 24, v{vT0}
v_add_u32 v{vT0}, v{vT0}, v{vT2}
v_mul_u32_u24 v{vT0}, 9216, v{vT0}
v_lshl_add_u32 v{vT0}, v{vT1}, 7, v{vT0}
s_mul_i32 s3, s{sXC}, 1152
v_add_u32 v{vT0}, s3, v{vT0}
v_mov_b32 v{vT1}, {OOB}
v_cmp_gt_u32 vcc, 18, v{vTW}
v_cndmask_b32 v{vT0}, v{vT1}, v{vT0}, vcc
v_cmp_gt_u32 vcc, 5, v{vL}
v_cndmask_b32 v{vTW}, v{vT1}, v{vT0}, vcc
""")
    def roll(s):
        if "notouch" in abl or "noroll" in abl or s >= 18: return []
        return [(f"s_mov_b32 s94, {((s >> 1)*64 + (s & 1)*8)*9216}\nbuffer_load_dword v28, v{vTW}, {S4(sV)}, s94 offen {TPOL}", "touch")]
    if not early:
        k(f"""s_cmp_eq_u32 s{sAct}, 0
s_cbranch_scc1 {name}_p3done
""")
        k.wait_lg(); k.wait_vm("XF")
        k(f"""s_barrier
s_cmp_lg_u32 s{sW}, 0
s_cbranch_scc1 {name}_p3sig
buffer_store_dword v{vSW}, v{30 if nl else vSR}, {S4(sF)}, 0 offen sc1""")
        if nl:
            for w in range(4): k(f"ds_read_b128 {vr(MB_+4*w, 4)}, v{vEW} offset:{16*w}")
            k(f"""s_lshl_b32 s3, s{sS2}, 1
s_add_u32 s3, s3, s{sNT}
s_bfe_u32 s4, s3, 0x10002
s_lshl_b32 s4, s4, 8
s_and_b32 s3, s3, 3
s_lshl_b32 s3, s3, 2
s_add_u32 s3, s3, s4
s_lshl_b32 s4, s{sMT}, 9
s_add_u32 s3, s3, s4
s_add_u32 s3, s3, {F_R}
v_lshl_add_u32 v{t1}, v{vL}, 4, s3
v_cmp_gt_u32 vcc, 16, v{vL}
v_cndmask_b32 v{t1}, v{vSR}, v{t1}, vcc""")
            for a, b in ((1, 3), (5, 7), (9, 11), (13, 15), (1, 5), (9, 13), (1, 9)): k(f"v_add_f32 v{MB_+a}, v{MB_+a}, v{MB_+b}")
            k(f"""v_mov_b32 v{t2}, {fl(1e-5)}
v_fmac_f32 v{t2}, {fl(1/576)}, v{MB_+1}
v_rsq_f32 v{t2}, v{t2}
v_mul_f32 v{t2}, {fl(LOG2E)}, v{t2}""")
            k(f"buffer_store_dword v{t2}, v{t1}, {S4(sF)}, 0 offen sc1", tag="R2")
        k(f"{name}_p3sig:")
        if bulk == 2 and not late1: first_w(f"{name}_wd", (1,))
        elif wlate == 4: first_w(f"{name}_wd", (0,))
        elif wlate == 1 and not bulk: first_w(f"{name}_wd")
        elif wlate == 3: first_w(f"{name}_wd", (1,))
        if not hlate: hstores(f"{name}_hs")
        if wlate == 2: first_w(f"{name}_wd")
        k(f"{name}_p3done:")
    st(4)

    def path(five):
        nt5 = 5 if five else 4
        nf = 2*nt5
        P = "a" if five else "b"
        k(f"""
s_lshl_b32 s3, s{sMT}, 4
s_add_u32 s3, s3, s{sSL}
s_lshl_b32 s3, s3, 7
s_lshl_b32 s4, s{sW}, 2
s_add_u32 s{sLN}, s3, s4
s_add_u32 s{sS1}, s{sLN}, {F_E if early else 0}
buffer_load_dword v{vQ}, v{vZ}, {S4(sF)}, s{sS1} offen sc1
v_lshrrev_b32 v{vT0}, 4, v{vL}
v_bfe_u32 v{vT1}, v{vL}, 2, 2
v_lshl_add_u32 v{vT2}, v{vT0}, 3, v{vT1}
v_mul_u32_u24 v{vT2}, 576, v{vT2}
v_and_b32 v{vWB[0]}, 3, v{vL}
v_lshl_add_u32 v{vT2}, v{vWB[0]}, 3, v{vT2}
s_mul_i32 s3, s{sA}, 9
s_add_u32 s3, s3, {0 if five else 5}
s_lshl_b32 s4, s3, 5
s_add_u32 s4, s4, {WO}
v_add_u32 v{vT2}, s4, v{vT2}
s_and_b32 s3, s3, 1
s_cmp_eq_u32 s3, 0
s_cselect_b32 s3, 32, -32
v_and_b32 v{vWB[0]}, 1, v{vT0}
v_mul_i32_i24 v{vWB[0]}, s3, v{vWB[0]}
v_add_u32 v{vWA[0]}, v{vT2}, v{vWB[0]}
v_sub_u32 v{vWB[0]}, v{vT2}, v{vWB[0]}
s_lshl_b32 s3, s{sRG}, 12
s_add_u32 s3, s3, {xslot(0)}
v_add_u32 v{vXr[0]}, s3, v{vDX}
""")
        if pair: k(f"v_add_u32 v{vWA[1]}, 73728, v{vWA[0]}\nv_add_u32 v{vWB[1]}, 73728, v{vWB[0]}")
        for i in (() if pair else (1, 2)):
            k(f"v_add_u32 v{vXr[i]}, {SLOT_A[i]}, v{vXr[0]}\nv_add_u32 v{vWA[i]}, {SLOT_A[i]}, v{vWA[0]}\nv_add_u32 v{vWB[i]}, {SLOT_A[i]}, v{vWB[0]}")
        k(f"""
v_lshrrev_b32 v{vDD}, 3, v{vL}
v_mul_u32_u24 v{vDD}, 1152, v{vDD}
v_bfe_u32 v{vT2}, v{vL}, 1, 2
v_xor_b32 v{vT2}, v{vT2}, v{vT0}
v_lshl_add_u32 v{vDD}, v{vT2}, 5, v{vDD}
v_and_b32 v{vT2}, 1, v{vL}
v_lshl_add_u32 v{vDD}, v{vT2}, 4, v{vDD}
s_mul_i32 s3, s{sCG if LP else sW}, {9 if LP else 4 if five else 5}
s_sub_u32 s3, s3, {0 if five or LP else 4}
s_lshl_b32 s{sM0d}, s3, 10
s_mul_i32 s3, s3, {8*1152}
s_mul_i32 s{sKD}, s{sSL}, {288*1152}
s_add_u32 s{sKD}, s{sKD}, s3
v_lshl_add_u32 v{vWD[0]}, v{vT0}, 2, v{vT1}
v_bfe_u32 v{vT2}, v{vWD[0]}, 1, 2
v_xor_b32 v{vT2}, s{sCG}, v{vT2}
v_lshlrev_b32 v{vT2}, 5, v{vT2}
v_lshl_add_u32 v{vWD[0]}, v{vWD[0]}, 7, v{vT2}
v_and_b32 v{vT2}, 3, v{vL}
v_lshl_add_u32 v{vWD[0]}, v{vT2}, 3, v{vWD[0]}
v_add_u32 v{vWD[1]}, {RING_B[1]}, v{vWD[0]}
v_add_u32 v{vWD[2]}, {RING_B[2]}, v{vWD[0]}
v_add_u32 v{vWD[3]}, {RING_B[3]}, v{vWD[0]}
v_add_u32 v{vWD[0]}, {RING_B[0]}, v{vWD[0]}
s_xor_b32 s3, s{sB if LP else sRG}, {1 if LP and not five else 0}
s_mul_i32 s3, s3, {4*9*1024}
s_add_u32 s3, s3, {HH}
v_add_u32 v{vHR}, s3, v{vDX}
s_mul_i32 s3, s{sRG}, {4*9*1024}
s_add_u32 s3, s3, {HH}
s_mul_i32 s4, s{sA}, 9
s_add_u32 s4, s4, {0 if five else 5}
s_lshr_b32 s5, s4, 1
s_lshl_b32 s5, s5, 10
s_add_u32 s3, s3, s5
s_and_b32 s4, s4, 1
s_lshl_b32 s5, s4, 3
s_add_u32 s5, s5, s3
v_add_u32 v{vHW}, s5, v{vDX}
s_mul_i32 s5, s4, 1024
s_add_u32 s5, s5, s3
s_xor_b32 s4, s4, 1
s_lshl_b32 s4, s4, 3
s_add_u32 s5, s5, s4
v_add_u32 v{vHW2}, s5, v{vDX}
v_bfe_u32 v{vT2}, v{vL}, 1, 3
v_lshlrev_b32 v{vPO}, 10, v{vT2}
v_and_b32 v{vT2}, 1, v{vL}
v_lshl_add_u32 v{vPO}, v{vT2}, 6, v{vPO}
v_lshl_add_u32 v{vPO}, v{vT0}, 4, v{vPO}
""")
        if LP:
            k(f"""s_lshl_b32 s3, s{sMT}, 1
s_add_u32 s4, s3, s{sB}
s_mul_i32 s{sRD}, s4, {8*9*8192}
s_xor_b32 s4, s4, {0 if five else 1}
s_lshl_b32 s4, s4, 3
s_add_u32 s4, s4, s{sXC}
s_mul_i32 s{sPO}, s4, {9*8192}
s_lshl_b32 s4, s{sCG}, 8
s_add_u32 s{sPO}, s{sPO}, s4
s_xor_b32 s3, s2, {0 if five else 128}
s_lshl_b32 s3, s3, 9
s_lshl_b32 s4, s{sCG}, 7
s_add_u32 s3, s3, s4
s_add_u32 s{sF1}, s3, {F_1}
s_getreg_b32 s{sLoc}, hwreg(HW_REG_XCC_ID, 0, 4)
s_add_u32 s{sLoc}, s{sLoc}, 1""")
            if five:
                for i in range(4): k(f"v_mov_b32 v{28+i}, 0")
        else:
            k(f"""s_mul_i32 s{sRD}, s{sMT}, {16*9*16384}
s_mul_i32 s3, s{sSL}, {9*16384}
s_add_u32 s{sPO}, s{sRD}, s3
s_lshl_b32 s4, s{sRG}, 13
s_add_u32 s{sPO}, s{sPO}, s4
s_lshl_b32 s4, s{sCG}, 8
s_add_u32 s{sPO}, s{sPO}, s4""")
        if idlepf:
            k(f"s_cmp_lg_u32 s{sAct}, 0\ns_cbranch_scc1 {name}_{P}ip")
            if late1: put(dmaW(1, not five))
            for q in range(2, ahead): put(roll(q))
            k(f"{name}_{P}ip:")
        elif not five and not early:
            for q in range(2, ahead): put(roll(q))
        if droll and five:
            n = -(-(5184//droll)//128)
            k(f"""s_lshr_b32 s3, s2, 3
s_lshl_b32 s3, s3, 2
s_add_u32 s3, s3, s{sW}
s_mul_i32 s3, s3, {n}
v_add_u32 v{vT0}, s3, v{vL}
v_mov_b32 v{vT1}, {OOB}
v_cmp_gt_u32 vcc, {5184//droll}, v{vT0}
v_lshlrev_b32 v{vT0}, 7, v{vT0}
v_cndmask_b32 v{vT0}, v{vT1}, v{vT0}, vcc
v_cmp_gt_u32 vcc, {n}, v{vL}
v_cndmask_b32 v{vT2}, v{vT1}, v{vT0}, vcc""")
        xflag = lambda so: f"buffer_load_dword v{vQ}, v{vZ}, {S4(sF)}, s{so} offen sc1"
        spin(f"{name}_{P}x", xflag(sS1), notyet(vQ))
        if early:
            ld = f"buffer_load_dwordx4 v[64:67], v{vDX}, {S4(sX)}, s{sKX} offen sc1\nbuffer_load_dwordx4 v[68:71], v{vDX}, {S4(sX)}, s{sKX} offen offset:1024 sc1"
            k(ld)
            k(f"v_add_u32 v{vT0}, s{sM0x}, v{vDX}\ns_mov_b32 s4, 0x10001")
            spin(f"{name}_{P}t", ld, f"v_and_b32 v{vT1}, v64, v68\nv_and_b32 v{vT1}, s4, v{vT1}\nv_cmp_ne_u32 vcc, s4, v{vT1}")
            k(f"s_cmp_eq_u32 s{sAct}, 0\ns_cbranch_scc1 {name}_{P}hs")
            hstores(f"{name}_{P}hs")
            if not five and not idlepf:
                for q in range(2, ahead): put(roll(q))
            k(f"ds_write_b128 v{vT0}, v[64:67] offset:{SLOT_A[0]}\nds_write_b128 v{vT0}, v[68:71] offset:{SLOT_A[1]}")
        else:
            put(dmaX(0)); put(dmaX(1))
        if late1 == 1:
            if idlepf: k(f"s_cmp_eq_u32 s{sAct}, 0\ns_cbranch_scc1 {name}_{P}l1")
            put(dmaW(1, not five))
            if idlepf: k(f"{name}_{P}l1:")
        if droll and five: k(f"v_mov_b32 v31, v{vT2}\ns_mul_i32 s{sS1}, s{sXC}, {576*1152}")
        if hlate:
            k.wait_vm("A0", "XF", "A1" if pair else "-")
            k(f"s_cmp_eq_u32 s{sAct}, 0\ns_cbranch_scc1 {name}_{P}hl")
            hstores(f"{name}_{P}hl")
        st(5)
        ACC = 256-nf*16; XB = [64, 80]; WR = 32
        def acc(f, nt): return ACC + f*16 + nt*4
        def wreg(s, f): return WR + 4*((s*nf+f) % 8)
        def wread(s, f):
            i, u = f >> 1, f & 1
            va = (vWA if i % 2 == 0 else vWB)[s % 3]; d = wreg(s, f)
            return [f"ds_read_b64_tr_b16 v[{d+2*h}:{d+2*h+1}], v{va} offset:{h*4*576 + i*32 + u*18432}" for h in range(2)]
        def mfa(s, f):
            w = wreg(s, f)
            return [f"{MF} {vr(acc(f, nt), 4)}, {vr(w, 4)}, {vr(XB[s % 2]+4*nt, 4)}, {'0' if s == 0 else vr(acc(f, nt), 4)}" for nt in range(4)]
        vRD, vHO, vOO, vFL, vFS, SEL, vFV, vTR, vHT = 2, 3, 4, 8, 9, 12, 5, 10, 11
        assert not fuse
        vSC = 27
        sRP, sEX = 44, 48
        late = f"""v_mov_b32 v{vFS}, {OOB}
v_lshrrev_b32 v5, 4, v{vL}
v_and_b32 v6, 3, v{vL}
v_bfe_u32 v7, v{vL}, 3, 1
s_and_b32 s4, s{sSL}, 3
v_xor_b32 v14, s4, v5
v_mul_u32_u24 v{vRD}, {9*16384}, v14
v_lshlrev_b32 v{vHT}, 8, v7
v_and_b32 v14, 7, v{vL}
v_lshl_add_u32 v{vHT}, v14, 4, v{vHT}
v_add_u32 v{vRD}, v{vRD}, v{vHT}
s_lshl_b32 s4, s{sRG}, 1
v_add_u32 v7, s4, v7
s_lshl_b32 s4, s{sA}, 7
s_lshl_b32 s5, s{sRG}, 9
s_add_u32 s4, s4, s5
s_add_u32 s5, s4, {OWN}
v_add_u32 v{vHT}, s5, v{vHT}
s_add_u32 s{sRD}, s{sRD}, s4
s_lshl_b32 s4, s{sSL}, 10
s_add_u32 s{sRD}, s{sRD}, s4
s_and_b32 s4, s{sSL}, 12
s_mul_i32 s{sRP}, s4, {9*16384}
s_add_u32 s{sRP}, s{sRP}, s{sRD}
s_xor_b32 s5, s4, 4
s_mul_i32 s{sRP+1}, s5, {9*16384}
s_add_u32 s{sRP+1}, s{sRP+1}, s{sRD}
s_xor_b32 s5, s4, 8
s_mul_i32 s{sRP+2}, s5, {9*16384}
s_add_u32 s{sRP+2}, s{sRP+2}, s{sRD}
s_xor_b32 s5, s4, 12
s_mul_i32 s{sRP+3}, s5, {9*16384}
s_add_u32 s{sRP+3}, s{sRP+3}, s{sRD}
v_and_b32 v{vTR}, 1023, v{vPO}
s_lshl_b32 s4, s{sCG}, 8
s_add_u32 s4, s4, {OWN}
v_add_u32 v{vTR}, s4, v{vTR}
s_lshr_b32 s3, s{sSL}, 3
s_and_b32 s5, s{sSL}, 7
v_lshrrev_b32 v14, 10, v{vPO}
v_cmp_eq_u32 s[{sEX}:{sEX+1}], s5, v14
s_cmp_eq_u32 s3, s{sRG}|s_cselect_b64 s[{sEX}:{sEX+1}], s[{sEX}:{sEX+1}], 0
{f"v_cndmask_b32 v{vPO}, v{vPO}, v{vFS}, s[{sEX}:{sEX+1}]" if skip else ""}
s_lshl_b32 s5, s5, 7
s_lshl_b32 s{sLN}, s{sMT}, 2
s_lshl_b32 s3, s3, 1
s_add_u32 s{sLN}, s{sLN}, s3
s_add_u32 s{sLN}, s{sLN}, s{sA}
s_lshl_b32 s3, s{sLN}, 1
v_add_u32 v{vHO}, s3, v5
v_mul_u32_u24 v{vHO}, 18432, v{vHO}
v_lshrrev_b32 v14, 1, v6
v_lshl_add_u32 v{vHO}, v14, 10, v{vHO}
v_lshl_add_u32 v{vHO}, v7, 4, v{vHO}
v_and_b32 v14, 1, v6
v_lshl_add_u32 v{vHO}, v14, 3, v{vHO}
v_add_u32 v{vHO}, s5, v{vHO}
v_bfe_u32 v14, v{vL}, 2, 1
v_lshl_add_u32 v{vHO}, v14, 6, v{vHO}
s_lshr_b32 s4, s5, 6
v_lshl_add_u32 v{vOO}, v5, 4, s4
v_add_u32 v{vOO}, v{vOO}, v14
v_lshl_add_u32 v{vOO}, v{vOO}, 6, s{sLN}
v_mul_u32_u24 v{vOO}, 1152, v{vOO}
v_lshl_add_u32 v{vOO}, v7, 5, v{vOO}
v_lshl_add_u32 v{vOO}, v6, 3, v{vOO}
v_cmp_gt_u32 vcc, 32, v{vL}
v_cndmask_b32 v{vHO}, v{vFS}, v{vHO}, vcc
v_cndmask_b32 v{vOO}, v{vFS}, v{vOO}, vcc
v_lshlrev_b32 v14, 4, v14
v_lshl_add_u32 v14, v5, 2, v14
s_lshl_b32 s4, s{sSL}, 5
s_lshl_b32 s5, s{sA}, 3
s_add_u32 s4, s4, s5
s_lshl_b32 s5, s{sMT}, 9
s_add_u32 s4, s4, s5
s_add_u32 s4, s4, {F_R}
v_add_u32 v{vSC}, s4, v14
s_lshl_b32 s4, s{sMT}, 11
s_add_u32 s4, s4, {F_2}
s_lshl_b32 s5, s{sSL}, 2
s_add_u32 s5, s5, s4
v_lshl_add_u32 v5, v{vL}, 7, s5
v_cmp_gt_u32 vcc, 16, v{vL}
v_cndmask_b32 v{vFS}, v{vFS}, v5, vcc
s_lshl_b32 s5, s{sSL}, 7
s_add_u32 s5, s5, s4
v_and_b32 v5, 15, v{vL}
v_lshl_add_u32 v{vFL}, v5, 2, s5
s_mov_b32 s{sLN}, {LN2!r}""".split("\n")
        late = [x.replace('|', '\n') for x in late]
        CNT = 73728; SK = 72; vMK = 16
        if LP and five:
            late = f"""v_mov_b32 v{vFS}, {OOB}
s_lshl_b32 s4, s{sMT}, 11
s_lshl_b32 s5, s{sB}, 7
s_add_u32 s4, s4, s5
s_add_u32 s4, s4, {F_2}
s_lshl_b32 s5, s{sXC}, 2
s_add_u32 s5, s5, s4
v_lshl_add_u32 v5, v{vL}, 8, s5
v_cmp_gt_u32 vcc, 8, v{vL}
v_cndmask_b32 v{vFS}, v{vFS}, v5, vcc
v_mov_b32 v{vFL}, {CNT}""".split("\n")
        elif LP:
            late = f"""v_mov_b32 v{vFS}, {OOB}
s_lshl_b32 s4, s{sMT}, 11
s_lshl_b32 s5, s{sSL}, 7
s_add_u32 s4, s4, s5
s_add_u32 s4, s4, {F_2}
v_and_b32 v5, 7, v{vL}
v_lshl_add_u32 v{vFL}, v5, 2, s4
s_lshl_b32 s5, s{sXC}, 10
s_add_u32 s{sRD}, s{sRD}, s5
v_lshrrev_b32 v{vTR}, 3, v{vL}
v_mul_u32_u24 v{vTR}, {9*8192}, v{vTR}
v_lshl_add_u32 v{vTR}, v5, 7, v{vTR}
v_add_u32 v{vTR}, s{sRD}, v{vTR}
v_lshlrev_b32 v{vRD}, 4, v5
v_lshrrev_b32 v5, 4, v{vL}
v_and_b32 v6, 3, v{vL}
v_bfe_u32 v7, v{vL}, 3, 1
v_mul_u32_u24 v14, {9*8192}, v5
v_add_u32 v{vRD}, v{vRD}, v14
v_lshl_add_u32 v{vRD}, v7, 8, v{vRD}
s_lshl_b32 s4, s{sRG}, 1
v_add_u32 v7, s4, v7
s_lshl_b32 s4, s{sA}, 7
s_add_u32 s{sRD}, s{sRD}, s4
s_lshl_b32 s4, s{sRG}, 9
s_add_u32 s{sRD}, s{sRD}, s4
s_lshl_b32 s5, s{sXC}, 7
s_lshl_b32 s{sLN}, s{sMT}, 2
s_lshl_b32 s3, s{sB}, 1
s_add_u32 s{sLN}, s{sLN}, s3
s_lshl_b32 s3, s{sLN}, 1
s_add_u32 s3, s3, s{sCG}
s_mul_i32 s3, s3, 18432
s_add_u32 s3, s3, s5
v_lshl_add_u32 v{vHT}, v{vL}, 10, s3
v_cmp_gt_u32 vcc, 18, v{vL}
v_cndmask_b32 v{vHT}, v{vFS}, v{vHT}, vcc
s_add_u32 s{sLN}, s{sLN}, s{sA}
s_lshl_b32 s3, s{sLN}, 1
v_add_u32 v{vHO}, s3, v5
v_mul_u32_u24 v{vHO}, 18432, v{vHO}
v_lshrrev_b32 v14, 1, v6
v_lshl_add_u32 v{vHO}, v14, 10, v{vHO}
v_lshl_add_u32 v{vHO}, v7, 4, v{vHO}
v_and_b32 v14, 1, v6
v_lshl_add_u32 v{vHO}, v14, 3, v{vHO}
v_add_u32 v{vHO}, s5, v{vHO}
v_bfe_u32 v14, v{vL}, 2, 1
v_lshl_add_u32 v{vHO}, v14, 6, v{vHO}
s_lshl_b32 s4, s{sXC}, 1
v_lshl_add_u32 v{vOO}, v5, 4, s4
v_add_u32 v{vOO}, v{vOO}, v14
v_lshl_add_u32 v{vOO}, v{vOO}, 6, s{sLN}
v_mul_u32_u24 v{vOO}, 1152, v{vOO}
v_lshl_add_u32 v{vOO}, v7, 5, v{vOO}
v_lshl_add_u32 v{vOO}, v6, 3, v{vOO}
v_cmp_gt_u32 vcc, 32, v{vL}
v_cndmask_b32 v{vHO}, v{vFS}, v{vHO}, vcc
v_cndmask_b32 v{vOO}, v{vFS}, v{vOO}, vcc
s_mov_b32 s{sLN}, {LN2!r}""".split("\n")
        sel = f"""v_and_b32 v5, 1, v{vL}
v_lshlrev_b32 v5, 4, v5
s_movk_i32 s3, 0x3f80
v_lshlrev_b32 v5, v5, s3
v_bfe_u32 v6, v{vL}, 1, 3""".split("\n")
        if LP and five:
            sel += [f"v_lshrrev_b32 v7, 3, v{vL}", f"v_and_b32 v7, 6, v7", f"v_sub_u32 v6, v6, v7"]
            for i in range(2): sel += [f"v_cmp_eq_u32 vcc, {i}, v6", f"v_cndmask_b32 v{SK+2+i}, 0, v5, vcc"]
            sel += [f"v_mov_b32 v{SK+i}, 0" for i in (0, 1, 4, 5)]
            sel += [f"ds_write_b64 v{vFL}, v[{SK}:{SK+1}] offset:{8*i}" for i in range(3)]
        else:
            for i in range(4): sel += [f"v_cmp_eq_u32 vcc, {i}, v6", f"v_cndmask_b32 v{SEL+i}, 0, v5, vcc"]
        sel += [f"v_mov_b32 v{vFV}, {FV}", f"v_mov_b32 v{vMK}, 0x10001"]
        def split_m0(d):
            out = []
            for t, tag in d:
                ls = t.split("\n")
                out += ["\n".join(ls[:-1]), (ls[-1], tag)]
            return out
        def spread_in(seq, dma, every):
            items = split_m0(dma); out = []; n = 0; j = 0
            for x in seq:
                out.append(x)
                if isinstance(x, str) and x.startswith("v_mfma"):
                    n += 1
                    if j < len(items) and (j % 2 == 1 or n % every == every-1): out.append(items[j]); j += 1
            return out + items[j:]
        k.wait_lg(); k.wait_vm("A0", "XF", "A1" if pair else "-"); k("s_barrier")
        if early and five:
            k(f"s_cmp_eq_u32 s{sAct}, 0\ns_cbranch_scc1 {name}_xsig\ns_cmp_lg_u32 s{sW}, 0\ns_cbranch_scc1 {name}_xsig\nbuffer_store_dword v{vSW}, v{vSR}, {S4(sF)}, 0 offen sc1\n{name}_xsig:")
        st(6)
        if prio == ("lo" if five else "hi"): k("s_setprio 1")
        def glu(i):
            out = []
            for np_ in range(2):
                g, u = acc(2*i, 2*np_), acc(2*i+1, 2*np_)
                if nl: out += [f"v_pk_mul_f32 {vr(g+r, 2)}, {vr(g+r, 2)}, {vr(64+4*np_+2*(r >> 2), 2)}" for r in range(0, 8, 2)]
                out += [f"v_exp_f32 v{g+r}, -v{g+r}" for r in range(8)]
                out += [f"v_pk_add_f32 {vr(g+r, 2)}, {vr(g+r, 2)}, s[4:5]" for r in range(0, 8, 2)] if pk else [f"v_add_f32 v{g+r}, 1.0, v{g+r}" for r in range(8)]
                out += [f"v_rcp_f32 v{g+r}, v{g+r}" for r in range(8)]
                out += [f"v_pk_mul_f32 {vr(g+r, 2)}, {vr(g+r, 2)}, {vr(u+r, 2)}" for r in range(0, 8, 2)] if pk else [f"v_mul_f32 v{g+r}, v{g+r}, v{u+r}" for r in range(8)]
                for q in range(2): out += [f"v_cvt_pk_bf16_f32 v{u+4*q}, v{g+4*q}, v{g+4*q+1}", f"v_cvt_pk_bf16_f32 v{u+4*q+1}, v{g+4*q+2}, v{g+4*q+3}"]
            return out
        hwrite = lambda i: [f"ds_write_b64 v{vHW if i % 2 == 0 else vHW2}, {vr(acc(2*i+1, nt), 2)} offset:{nt*9*1024 + (i >> 1)*1024}" for nt in range(4)]
        xread = lambda s: [f"ds_read_b128 {vr(XB[s % 2]+4*nt, 4)}, v{vXr[s % 3]} offset:{nt*1024}" for nt in range(4)]
        dtouch = [f"""s_lshr_b32 s3, s2, 3
s_mul_i32 s3, s3, 18
s_mul_i32 s4, s{sXC}, 576
s_add_u32 s3, s3, s4
v_add_u32 v28, s3, v{vL}
v_mul_u32_u24 v28, 1152, v28
v_mov_b32 v29, {OOB}
v_cmp_gt_u32 vcc, 18, v{vL}
v_cndmask_b32 v28, v29, v28, vcc
s_lshl_b32 s3, s{sW}, 7
s_add_u32 s3, s3, 256
s_cmp_eq_u32 s{sW}, 7
s_cselect_b32 s3, {OOB}, s3""", (f"buffer_load_dword v26, v28, {S4(sD)}, s3 offen {TPOLD}", "touch")]
        CT = [int(c, 36) for c in str(ctouch)] if ctouch else []
        def code_touch(n):
            if n not in CT or not five: return
            k(f"""s_getpc_b64 s[4:5]
{name}_ct{n}:
s_sub_u32 s4, s4, {name}_ct{n}-{name}_kernel
s_subb_u32 s5, s5, 0
s_bfe_u32 s3, s2, 0x30003
s_lshl_b32 s3, s3, 2
s_add_u32 s3, s3, s{sW}
s_lshl_b32 s3, s3, 11
v_and_b32 v{vQ}, 15, v{vL}
v_lshl_add_u32 v{vQ}, v{vQ}, 7, s3
v_min_u32 v{vQ}, {name}_code_end-{name}_kernel-4, v{vQ}""")
            k(f"global_load_dword v26, v{vQ}, s[4:5]", tag="touch")
        NS = 0 if pair else 16 if fuse else 18
        if pair:
            wj = lambda p, j: WR + 4*((p*2*nf + j) % 8)
            def rd(p, j):
                f, c = j >> 1, j & 1; i, u = f >> 1, f & 1
                va = (vWA if i % 2 == 0 else vWB)[p & 1]; d = wj(p, j)
                return [f"ds_read_b64_tr_b16 v[{d+2*h}:{d+2*h+1}], v{va} offset:{c*36864 + h*4*576 + i*32 + u*18432}" for h in range(2)]
            def mm(p, f, cs=(0, 1)):
                return [f"{MF} {vr(acc(f, nt), 4)}, {vr(wj(p, 2*f+c), 4)}, {vr(XB[c]+4*nt, 4)}, {'0' if p == 0 and c == 0 else vr(acc(f, nt), 4)}" for nt in range(4) for c in cs]
            xr = lambda c: [f"ds_read_b128 {vr(XB[c]+4*nt, 4)}, v{vXr[0]} offset:{c*8192 + nt*1024}" for nt in range(4)]
            defer = lambda p: mm(p, nf-2, (1,)) + mm(p, nf-1, (1,))
            for p in range(9):
                put(xr(0))
                for j in range(4): put(rd(p, j))
                dw = (dmaW(2*p+2, not five) + dmaW(2*p+3, not five)) if p < 8 else (dmaB(0, five) + dmaB(1, five))
                dx = (dmaX(2*p+2) + dmaX(2*p+3)) if p < 8 else []
                if not five: dx = dx + roll(2*p+ahead) + roll(2*p+1+ahead)
                head = (defer(p-1) if p else []) + xr(1)
                body = []
                for f in range(nf):
                    fill = (rd(p, 2*f+4) + rd(p, 2*f+5)) if f+2 < nf else []
                    if p == 8: fill = fill + late[f*len(late)//nf:(f+1)*len(late)//nf]
                    body.append(interleave(mm(p, f, (0, 1) if f < nf-2 else (0,)), fill))
                first = head + sum(body[:upos], []); rest = sum(body[upos:], [])
                sp = spread if five or not spread4 else spread4
                n1 = min(len(dw), sum(1 for x in first if isinstance(x, str) and x.startswith("v_mfma"))//(sp0 or sp))
                put(spread_in(first, dw[:n1], sp0 or sp))
                if p < 8: k("s_barrier")
                put(spread_in(rest, dx[:2] + dw[n1:] + dx[2:], sp))
                if p == 8 and depi: put(dtouch)
                k.wait_lg(); k.wait_vm(f"A{2*p+2}", f"A{2*p+3}"); k("s_barrier")
        for s in range(NS):
            put(xread(s))
            for f in range(look): put(wread(s, f))
            if wlate == 4 and s == 0:
                k(f"s_cmp_eq_u32 s{sAct}, 0\ns_cbranch_scc1 {name}_{P}w1")
                put(dmaW(1, not five))
                k(f"{name}_{P}w1:")
            dma = dmaX(s+2) + dmaW(s+2, not five) if s+2 < 18 else dmaB(s-16, five)
            if early and s == 0: dma = dmaW(2, not five) + [("s_nop 0\n" + xflag(sLN), "XQ")]
            if late1 == 2 and s == 0: dma = dmaW(1, not five) + dma
            if early and s == 1:
                spin(f"{name}_{P}y", xflag(sLN), f"v_cmp_eq_u32 vcc, 0, v{vQ}")
                dma = dmaX(2) + dma
            if not five: dma = dma + roll(s+ahead)
            if droll and five and dstage <= s < dstage+droll:
                dma = dma + [(f"s_add_u32 s94, s{sS1}, {(s-dstage)*(5184//droll)*128}\nbuffer_load_dword v28, v31, {S4(sD)}, s94 offen {TPOLD}", "touch")]
            if LP and five and istage <= s < istage+4:
                dma = dma + [(f"s_add_u32 s94, s{sPO}, {(5+s-istage)*8192}\nbuffer_store_dwordx4 v[28:31], v{vPO}, {S4(sP)}, s94 offen offset:{h*128} sc1", "I") for h in range(2)]
            seq = sum((mfa(s-1, f) for f in range(nf-nd, nf)), []) if s > 0 else []
            for f in range(nf-nd):
                extra = late[f*len(late)//(nf-nd):(f+1)*len(late)//(nf-nd)] if s == 17 else []
                mm_ = mfa(s, f)
                if "chain" in abl:
                    f0 = f & ~1
                    mm_ = [f"{MF} {vr(acc(f0 + (s & 1), nt), 4)}, {vr(wreg(s, f0+c), 4)}, {vr(XB[s % 2]+4*nt, 4)}, {vr(acc(f0 + (s & 1), nt), 4)}" for nt in ((0, 1) if f % 2 == 0 else (2, 3)) for c in range(2)]
                seq += interleave(mm_, (wread(s, f+look) if f+look < nf else []) + extra)
            put(spread_in(seq, dma, spread if len(dma) < 8 else 2))
            if s == dstage and "notouch" not in abl and not droll and not depi: touch([sD], f"{name}_{P}td", 27)
            if depi == s and s > 1: put(dtouch)
            code_touch(s)
            if ptouch and five and s == ptouch:
                k(f"""v_lshrrev_b32 v{vT0}, 2, v{vL}
s_lshl_b32 s3, s{sW}, 2
v_add_u32 v{vT0}, s3, v{vT0}
v_mul_u32_u24 v{vT0}, {9*16384 + 1024}, v{vT0}
v_and_b32 v{vT1}, 3, v{vL}
v_min_u32 v{vT1}, 2, v{vT1}
v_lshl_add_u32 v{vT0}, v{vT1}, 16, v{vT0}
v_mov_b32 v{vT1}, {OOB}
v_cmp_gt_u32 vcc, 16, v{vL}
v_cndmask_b32 v{vT0}, v{vT1}, v{vT0}, vcc""")
                k(f"buffer_load_dword v28, v{vT0}, {S4(sP)}, s{sRD} offen", tag="touch")
            if nl:
                el = f"buffer_load_dword v29, v{vT2}, {S4(sF)}, 0 offen sc1"
                if s == 3 and five:
                    k(f"s_cmp_eq_u32 s{sAct}, 0\ns_cbranch_scc1 {name}_rsig\ns_cmp_lg_u32 s{sW}, 0\ns_cbranch_scc1 {name}_rsig")
                    k.wait_vm("R2")
                    k(f"v_mov_b32 v{vT0}, 1\ns_mov_b32 s3, {F_E}\nbuffer_store_dword v{vT0}, v30, {S4(sF)}, s3 offen sc1\n{name}_rsig:")
                if s == 12:
                    k(f"s_and_b32 s3, s{sLN}, -128\ns_lshl_b32 s4, s{sRG}, 4\ns_add_u32 s3, s3, s4\ns_add_u32 s3, s3, {F_E}\nv_and_b32 v{vT2}, 3, v{vL}\nv_lshl_add_u32 v{vT2}, v{vT2}, 2, s3")
                    k(el)
                if s == 14:
                    spin(f"{name}_{P}e", el, "v_cmp_eq_u32 vcc, 0, v29")
                    k(f"s_lshl_b32 s3, s{sMT}, 9\ns_lshl_b32 s4, s{sRG}, 8\ns_add_u32 s3, s3, s4\ns_add_u32 s3, s3, {F_R}\nv_and_b32 v{vT2}, 0xf0, v{vDX}\nbuffer_load_dwordx4 v[28:31], v{vT2}, {S4(sF)}, s3 offen sc1")
            xl = f"buffer_load_dword v{vQ}, v{vZ}, {S4(sF)}, s{sF1} offen sc1"
            if LP and five and s == tstage:
                k.wait_vm("I")
                k(f"""v_lshrrev_b32 v{vT0}, 4, v{vL}
v_lshlrev_b32 v{vT0}, 13, v{vT0}
v_bfe_u32 v{vT1}, v{vL}, 1, 3
v_lshl_add_u32 v{vT0}, v{vT1}, 10, v{vT0}
v_and_b32 v{vT1}, 1, v{vL}
v_lshl_add_u32 v{vT0}, v{vT1}, 7, v{vT0}
s_add_u32 s3, s{sPO}, {5*8192}
v_mov_b32 v{vT1}, s{sLoc}""")
                k(f"buffer_load_dword v28, v{vT0}, {S4(sP)}, s3 offen", tag="touch")
                k(f"buffer_store_dword v{vT1}, v{vZ}, {S4(sF)}, s{sF1} offen sc1")
            if LP and not five and s == 13: k(xl)
            if LP and not five and s == 15:
                spin(f"{name}_xid", xl, f"v_cmp_eq_u32 vcc, 0, v{vQ}")
                k(f"v_readfirstlane_b32 s3, v{vQ}\ns_cmp_eq_u32 s3, s{sLoc}\ns_cselect_b32 s{sLoc}, {0 if 'remote' in abl else 1}, 0")
            k.wait_lg(); k.wait_vm(f"A{s+1}", "A17" if fuse and s == 15 else "-")
            if not ("halfbar" in abl and s % 2 == 0): k("s_barrier")
        if fuse:
            n0 = 16*nf
            wj = lambda j: WR + 4*((n0+j) % 8)
            def rd(j):
                f, s = j >> 1, 16 + (j & 1); i, u = f >> 1, f & 1
                va = (vWA if i % 2 == 0 else vWB)[s % 3]; d = wj(j)
                return [f"ds_read_b64_tr_b16 v[{d+2*h}:{d+2*h+1}], v{va} offset:{h*4*576 + i*32 + u*18432}" for h in range(2)]
            def mm(f): return [f"{MF} {vr(acc(f, nt), 4)}, {vr(wj(2*f+c), 4)}, {vr(XB[c]+4*nt, 4)}, {vr(acc(f, nt), 4)}" for nt in range(4) for c in range(2)]
            put(xread(16))
            for j in range(4): put(rd(j))
            put(spread_in(sum((mfa(15, f) for f in range(nf-nd, nf)), []), dmaB(0, five), 2))
            put(xread(17))
            for f in range(nf):
                fill = (rd(2*f+4) + rd(2*f+5)) if f+2 < nf else []
                if f < 2: fill = fill + late[f*len(late)//2:(f+1)*len(late)//2]
                else:
                    gl = glu(f//2 - 1); fill = fill + gl[(f % 2)*len(gl)//2:(f % 2 + 1)*len(gl)//2]
                put(interleave(mm(f), fill))
            k.wait_lg(); k("s_barrier")
            st(7)
            put(dmaB(1, five))
            for i in range(nt5-1): put(hwrite(i))
            put(sel)
            put(glu(nt5-1)); put(hwrite(nt5-1))
        else:
            put(defer(8) if pair else sum((mfa(17, f) for f in range(nf-nd, nf)), []))
            st(7)
            if eprio and five == (eprio == 1): k("s_setprio 1")
            if depi == 1: put(dtouch)
            k("s_mov_b32 s4, 1.0\ns_mov_b32 s5, 1.0")
            if nl:
                for i in range(8): k(f"v_mov_b32 v{64+i}, v{28+(i >> 1)}")
            for i in range(nt5): put(glu(i)); put(hwrite(i))
            put(sel)
        if prio or eprio: k("s_setprio 0")
        k.wait_lg(); k.wait_vm("B0"); k("s_barrier")
        st(8); stb(0)
        if "dbl" in abl: k(f"s_cmp_eq_u32 s{sB}, 0\ns_mov_b32 s101, {288*1152}\ns_cselect_b32 s101, s101, {-288*1152}")
        if "cnt" in abl: k("s_mov_b32 s99, 0")
        HB = 112; AB = [80, 96]; WG = [28, 40, 52]; SD = 64
        def hreg(kp, nt): return HB + (kp*4+nt)*4
        def wgreg(gi, c): return WG[gi] + 4*c
        def wdread(u, gi):
            out = []
            for c in range(3):
                d = wgreg(gi, c); kp = gi*3+c
                out += [f"ds_read_b64_tr_b16 v[{d+2*h}:{d+2*h+1}], v{vWD[u % 4]} offset:{kp*4096 + h*2048}" for h in range(2)]
            return out
        def mfb(u, gi):
            out = []
            for nt in range(4):
                a = AB[u % 2]+4*nt
                for c in range(3):
                    out.append(f"{MF} {vr(a, 4)}, {vr(wgreg(gi, c), 4)}, {vr(hreg(gi*3+c, nt), 4)}, {'0' if gi == 0 and c == 0 else vr(a, 4)}")
            return out
        cvt = lambda u, h: [f"v_cvt_pk_bf16_f32 v{AB[u % 2]+8*h+q}, v{AB[u % 2]+8*h+2*q}, v{AB[u % 2]+8*h+2*q+1}" for q in range(4)]
        hread = lambda kp: [f"ds_read_b128 {vr(hreg(kp, nt), 4)}, v{vHR} offset:{(nt*9+kp)*1024}" for nt in range(4)]
        dmat = lambda t: (dmaB(2, five) + dmaB(3, five)) if t == 1 else (dmaB(t+2, five) if 2 <= t <= 6 else [])
        def phaseB_L():
            rounds = lambda ph: list(range(PH[ph-1]+1 if ph else 0, PH[ph]+1))
            TAG = lambda u: [0x1, 0x10000, 0x10001][(u+3)//4]
            alias = lambda u: 5 + (u-5) % 4
            def endslot(t):
                if t <= 7: k.wait_lg(); k.wait_vm(f"B{t+1}"); k("s_barrier")
                if t < 9: stb(t+1)
            arr_at = {c+4: ph for ph, c in enumerate(PH) if c+4 <= 9}
            tch_at = {t+1: ph for t, ph in arr_at.items() if t+1 <= 8 and ph < ntouch}
            if not five:
                def send(u):
                    lab = f"{name}_s{u}"
                    txt = f"s_add_u32 s3, s{sPO}, {alias(u)*8192}\n" + "\n".join(f"buffer_store_dwordx4 {vr(AB[u % 2]+8*h, 4)}, v{vPO}, {S4(sP)}, s3 offen offset:{h*128} POL" for h in range(2))
                    k(f"s_cmp_eq_u32 s{sLoc}, 0\ns_cbranch_scc1 {lab}_r")
                    q0 = k.seq
                    k(txt.replace("POL", ""))
                    k(f"s_branch {lab}_d\n{lab}_r:")
                    k.seq = q0
                    k(txt.replace("POL", "sc1"))
                    k.seq += 1
                    k(f"{lab}_d:")
                tag = lambda u, h: [f"s_mov_b32 s4, {TAG(u)}\nv_bfi_b32 v{AB[u % 2]+8*h}, v{vMK}, s4, v{AB[u % 2]+8*h}"]
                poll = lambda ph, tv: f"s_mov_b32 s3, {ph*32768}\nbuffer_load_dword v{tv}, v{vFL}, {S4(sF)}, s3 offen sc1"
                def check(ph, tv): spin(f"{name}_c{ph}", poll(ph, tv).split("\n")[1], f"s_mov_b32 s3, {ph*32768}\nv_cmp_eq_u32 vcc, 0, v{tv}")
                for t in range(9):
                    put(wdread(t, 0))
                    if t == 0:
                        for kp in range(3): put(hread(kp))
                        put(interleave(mfb(0, 0), wdread(0, 1) + hread(3)+hread(4)+hread(5)))
                        put(interleave(mfb(0, 1), wdread(0, 2) + hread(6)+hread(7)+hread(8)))
                    else:
                        d = mfb(t-1, 2)
                        put(d[:9]); put(interleave(d[9:], cvt(t-1, 0) + tag(t-1, 0)))
                        g0 = mfb(t, 0); g1 = mfb(t, 1)
                        put(interleave(g0[:3], wdread(t, 1)[:2] + cvt(t-1, 1) + tag(t-1, 1)))
                        send(t-1)
                        dm = dmat(t); h = (len(dm)+1)//2
                        put(spread_in(interleave(g0[3:], wdread(t, 1)[2:] + [""]*5), dm[:h], 2 if h <= 5 else 1))
                        put(spread_in(interleave(g1, wdread(t, 2) + [""]*6), dm[h:], 2 if h <= 5 else 1))
                        if t in tch_at:
                            ph = tch_at[t]; check(ph, 64)
                            if ph == 0: k(f"buffer_load_dword v65, v{vHT}, {S4(sH)}, 0 offen sc1", tag="touch")
                            rr = rounds(ph); assert len(rr) <= 4
                            k(f"s_cmp_lt_u32 s{sCG}, {len(rr)}\ns_cselect_b32 s3, s{sCG}, {OOB >> 13}\ns_add_u32 s3, s3, {rr[0]}\ns_lshl_b32 s3, s3, 13\nbuffer_load_dword v65, v{vTR}, {S4(sP)}, s3 offen sc1", tag="touch")
                    endslot(t)
                    if t+1 in tch_at: k(poll(tch_at[t+1], 64))
                first = len(tch_at)
                put(mfb(8, 2)); put(cvt(8, 0) + tag(8, 0) + cvt(8, 1) + tag(8, 1)); send(8)
                st(9)
                home = lambda r: (HB+16*r, HB+16*r+8, HB+16*r+12)
                def rloads(r):
                    RB, HV, DA = home(r)
                    for pg in range(2): k(f"s_add_u32 s3, s{sRD}, {r*8192 + pg*4*9*8192}\nbuffer_load_dwordx4 {vr(RB+4*pg, 4)}, v{vRD}, {S4(sP)}, s3 offen sc1")
                    k(f"s_movk_i32 s3, {r*2048}\nbuffer_load_dwordx2 {vr(HV, 2)}, v{vHO}, {S4(sH)}, s3 offen sc1")
                def rsum(r):
                    RB, HV, DA = home(r)
                    for pg in range(2): k(f"{MF} {vr(DA, 4)}, {vr(SEL, 4)}, {vr(RB+4*pg, 4)}, {'0' if pg == 0 else vr(DA, 4)}")
                    k(f"v_lshlrev_b32 v{RB}, 16, v{HV}\nv_and_b32 v{RB+1}, 0xffff0000, v{HV}\nv_lshlrev_b32 v{RB+2}, 16, v{HV+1}\nv_and_b32 v{RB+3}, 0xffff0000, v{HV+1}")
                def rfin(r):
                    RB, HV, DA = home(r)
                    for q in range(4): k(f"v_fma_f32 v{RB+q}, v{DA+q}, s{sLN}, v{RB+q}")
                    k(f"v_cvt_pk_bf16_f32 v{HV}, v{RB}, v{RB+1}\nv_cvt_pk_bf16_f32 v{HV+1}, v{RB+2}, v{RB+3}")
                rout = lambda r: k(f"buffer_store_dwordx2 {vr(home(r)[1], 2)}, v{vOO}, {S4(sO)}, 0 offen offset:{r*128} {OUTPOL}")
                pend = [r for ph in range(first) for r in rounds(ph)]
                for r in pend: rloads(r)
                for ph in range(first, len(PH)):
                    k(poll(ph, 64))
                    for r in pend: rsum(r)
                    for r in pend: rfin(r)
                    check(ph, 64)
                    for r in rounds(ph): rloads(r)
                    for r in pend: rout(r)
                    pend = rounds(ph)
                for r in pend: rsum(r)
                for r in pend: rfin(r); rout(r)
            else:
                sld = lambda u: f"s_add_u32 s3, s{sPO}, {alias(u)*8192}\n" + "\n".join(f"buffer_load_dwordx4 {vr(SD+4*h, 4)}, v{vPO}, {S4(sP)}, s3 offen offset:{h*128} sc1" for h in range(2))
                def add(u):
                    if "nol1chk" not in abl:
                        spin(f"{name}_k{u}", sld(u), f"s_mov_b32 s4, {TAG(u)}\nv_and_b32 v78, v{vMK}, v{SD}\nv_and_b32 v79, v{vMK}, v{SD+4}\nv_xor_b32 v78, s4, v78\nv_xor_b32 v79, s4, v79\nv_or_b32 v78, v78, v79\nv_cmp_ne_u32 vcc, 0, v78")
                    put([f"{MF} {vr(AB[u % 2]+8*h+4*q, 4)}, {vr(SK+2-2*q, 4)}, {vr(SD+4*h, 4)}, {vr(AB[u % 2]+8*h+4*q, 4)}" for h in range(2) for q in range(2)])
                pst = lambda u: [(f"s_add_u32 s3, s{sPO}, {u*8192}\nbuffer_store_dwordx4 {vr(AB[u % 2]+8*h, 4)}, v{vPO}, {S4(sP)}, s3 offen offset:{h*128} sc1", f"P{u}") for h in range(2)]
                def arrive1(ph):
                    k.wait_vm(f"P{PH[ph]}")
                    k(f"s_mov_b64 exec, 1\nds_add_rtn_u32 v7, v{vFL}, v{vFV} offset:{ph*4}\ns_mov_b64 exec, -1")
                def arrive2(ph):
                    k(f"v_readfirstlane_b32 s3, v7\ns_cmp_lg_u32 s3, 3\ns_cbranch_scc1 {name}_ar{ph}\ns_mov_b32 s3, {ph*32768}\nbuffer_store_dword v{vFV}, v{vFS}, {S4(sF)}, s3 offen sc1\n{name}_ar{ph}:")
                for kp in range(9): put(hread(kp))
                endslot(0)
                for t in range(1, 10):
                    u = t-1
                    put(wdread(u, 0))
                    if u >= 1: k(sld(u-1))
                    if u >= 2: put(pst(u-2))
                    if u >= 1: put(mfb(u-1, 2))
                    put(interleave(mfb(u, 0), wdread(u, 1) + [""]*6))
                    g1 = mfb(u, 1)
                    put(interleave(g1[:6], wdread(u, 2)))
                    if u >= 1:
                        add(u-1)
                        if t == 9: k(sld(8))
                        if t in arr_at: arrive1(arr_at[t])
                        put(g1[6:9])
                        put(interleave(g1[9:], cvt(u-1, 0) + cvt(u-1, 1)))
                        if t in arr_at: arrive2(arr_at[t])
                    else: put(g1[6:])
                    endslot(t)
                put(pst(7))
                put(mfb(8, 2)); add(8)
                st(9)
                p8 = pst(8)
                put(cvt(8, 0) + p8[:1] + cvt(8, 1) + p8[1:])
                for ph in range(len(arr_at), len(PH)): arrive1(ph); arrive2(ph)
        def phaseB_S():
            pst = lambda u, h: (f"s_add_u32 s3, s{sPO}, {u*16384}\nbuffer_store_dwordx4 {vr(AB[u % 2]+8*h, 4)}, v{vPO}, {S4(sP)}, s3 offen offset:{h*128} sc1", f"P{u}")
            own = lambda u: [f"s_mov_b64 exec, s[{sEX}:{sEX+1}]\n" + "\n".join(f"ds_write_b128 v{vTR}, {vr(AB[u % 2]+8*h, 4)} offset:{u*1024+h*128}" for h in range(2)) + "\ns_mov_b64 exec, -1"] if skip else []
            epib = lambda u: cvt(u, 0) + [pst(u, 0)] + cvt(u, 1) + ([] if "half" in abl else [pst(u, 1)]) + own(u)
            def signal(ph):
                if five: k(f"s_cmp_lg_u32 s{sW}, 0\ns_cbranch_scc1 {name}_sig{ph}\ns_mov_b32 s3, {ph*32768}\nbuffer_store_dword v{vFV}, v{vFS}, {S4(sF)}, s3 offen sc1\n{name}_sig{ph}:")
            poll = lambda ph, tv: f"s_mov_b32 s3, {ph*32768}\nbuffer_load_dword v{tv}, v{vFL}, {S4(sF)}, s3 offen sc1"
            def check(ph, tv): spin(f"{name}_{P}c{ph}", poll(ph, tv).split("\n")[1], f"s_mov_b32 s3, {ph*32768}\n{notyet(tv)}", cnap)
            rounds = lambda ph: list(range(PH[ph-1]+1 if ph else 0, PH[ph]+1))
            mine = lambda rr: [r for r in rr if (r % 2 == 0) == five]
            sig_at = {c+lag+1: ph for ph, c in enumerate(PH) if c+lag+1 <= 8}
            rd_at = {u+1: ph for u, ph in sig_at.items() if u+1 <= 8 and ph < inl}
            inloop = [r for ph in rd_at.values() for r in rounds(ph)]
            assert not (nl and inloop)
            home = lambda r: (64, 6, 24) if r in inloop else (HB+24*(r >> 1), HB+24*(r >> 1)+16, HB+24*(r >> 1)+20)
            def rloads(r):
                RB, HV, DA = home(r); out = []
                for pg in range(2 if "half" in abl else 4):
                    ld = f"buffer_load_dwordx4 {vr(RB+4*pg, 4)}, v{vRD}, {S4(sP)}, s3 offen sc1"
                    if skip and pg == 0: ld = f"s_mov_b64 exec, 0xffff\nds_read_b128 {vr(RB, 4)}, v{vHT} offset:{r*1024}\ns_mov_b32 exec_hi, -1\ns_mov_b32 exec_lo, 0xffff0000\n{ld}\ns_mov_b64 exec, -1"
                    out.append(f"s_add_u32 s3, s{sRP+pg}, {r*16384}\n{ld}")
                out.append(f"s_movk_i32 s3, {r*2048}\nbuffer_load_dwordx2 {vr(HV, 2)}, v{vHO}, {S4(sH)}, s3 offen sc1")
                return out
            def rsum(r):
                RB, HV, DA = home(r)
                return [f"{MF} {vr(DA, 4)}, {vr(SEL, 4)}, {vr(RB+4*pg, 4)}, {'0' if pg == 3 else vr(DA, 4)}" for pg in (3, 2, 1, 0)]
            def rfin(r):
                RB, HV, DA = home(r)
                return [f"v_lshlrev_b32 v{RB}, 16, v{HV}", f"v_and_b32 v{RB+1}, 0xffff0000, v{HV}", f"v_lshlrev_b32 v{RB+2}, 16, v{HV+1}", f"v_and_b32 v{RB+3}, 0xffff0000, v{HV+1}"] + \
                       [f"v_fma_f32 v{RB+q}, v{DA+q}, {f'v{vSC}' if nl else f's{sLN}'}, v{RB+q}" for q in range(4)] + \
                       [f"v_cvt_pk_bf16_f32 v{HV}, v{RB}, v{RB+1}", f"v_cvt_pk_bf16_f32 v{HV+1}, v{RB+2}, v{RB+3}"]
            rout = lambda r: [f"buffer_store_dwordx2 {vr(home(r)[1], 2)}, v{vOO}, {S4(sO)}, 0 offen offset:{r*128} {OUTPOL}"]
            pend = []
            if bprio and five == (bprio == 1): k("s_setprio 1")
            for u in range(9):
                put(wdread(u, 0))
                if u in sig_at: signal(sig_at[u])
                if u == 0:
                    for kp in range(3): put(hread(kp))
                    put(interleave(mfb(0, 0), wdread(0, 1) + hread(3)+hread(4)+hread(5)))
                    put(interleave(mfb(0, 1), wdread(0, 2) + hread(6)+hread(7)+hread(8)))
                    if nl: k(f"buffer_load_dword v{vSC}, v{vSC}, {S4(sF)}, 0 offen sc1")
                    if otouch: k(f"buffer_load_dword v19, v{vOO}, {S4(sO)}, 0 offen", tag="touch")
                else:
                    put(spread_in(mfb(u-1, 2), dmat(u), 2 if u > 1 and 'dbl' not in abl else 1))
                    put(interleave(mfb(u, 0), wdread(u, 1) + epib(u-1)))
                    g1 = mfb(u, 1); fill = []
                    if pend and u not in rd_at:
                        r = pend.pop(); g1 = g1[:6] + rsum(r) + g1[6:]; fill = [""]*8 + rfin(r) + rout(r)
                    elif u in rd_at and mine(rounds(rd_at[u])):
                        assert not pend and len(mine(rounds(rd_at[u]))) == 1
                        check(rd_at[u], 19); pend = mine(rounds(rd_at[u])); fill = rloads(pend[0])
                    put(interleave(g1[:6], wdread(u, 2))); put(interleave(g1[6:], fill) if fill else g1[6:])
                    if u == 8:
                        for ph in sig_at.values():
                            if ph not in rd_at.values(): k(poll(ph, 28+ph))
                code_touch(18+u)
                if u < 8:
                    k.wait_lg(); k.wait_vm(f"B{u+1}", f"P{PH[sig_at[u+1]]}" if u+1 in sig_at else "-"); k("s_barrier")
                if u+1 in rd_at and mine(rounds(rd_at[u+1])): k(poll(rd_at[u+1], 19))
                if u < 9: stb(u+1)
            put(mfb(8, 2))
            st(9)
            put(epib(8))
            if nl: k(f"v_mul_f32 v{vSC}, s{sLN}, v{vSC}")
            tailph = list(range(len(sig_at), len(PH))); held = []
            if sigfirst and len(tailph) > 1 and order == 0:
                for ph in tailph[:-1]:
                    k.wait_vm(f"P{PH[ph]}"); k("s_barrier"); signal(ph)
            for ph in sig_at.values():
                if ph in rd_at.values(): continue
                check(ph, 28+ph)
                if "tail" in abl: k("s_memrealtime s[62:63]")
                for r in mine(rounds(ph))[:tseq or 9]: put(rloads(r)); pend.append(r)
                held = mine(rounds(ph))[tseq or 9:]
            if sigfirst:
                for ph in (tailph if order else tailph[-1:]):
                    k.wait_lg(); k.wait_vm(f"P{PH[ph]}")
                    if "tail" in abl: k("s_memrealtime s[64:65]")
                    k("s_barrier")
                    if "tail" in abl: k("s_memrealtime s[66:67]")
                    signal(ph)
            for r in held:
                q = pend.pop(0); put(rsum(q)); put(rloads(r)); put(rfin(q)); put(rout(q)); pend.append(r)
            for ph in tailph:
                if not sigfirst:
                    k.wait_lg(); k.wait_vm(f"P{PH[ph]}"); k("s_barrier"); signal(ph)
                if not mine(rounds(ph)): continue
                k(poll(ph, 19))
                done = list(pend) if sigfirst and ph == len(PH)-1 else pend[:1]
                for r in done: put(rsum(r)); put(rfin(r))
                check(ph, 19)
                if "tail" in abl: k("s_memrealtime s[68:69]")
                for r in mine(rounds(ph)): put(rloads(r)); pend.append(r)
                for r in done: put(rout(r)); pend.remove(r)
            for r in pend: put(rsum(r)); put(rfin(r)); put(rout(r))
        phaseB_L() if LP else phaseB_S()
        if stamp:
            k("s_waitcnt vmcnt(0) lgkmcnt(0)\ns_memrealtime s[4:5]" + ("\ns_memtime s[70:71]" if "clk" in abl else "") + "\ns_waitcnt lgkmcnt(0)")
            for i in range(10): k(f"v_mov_b32 v{28+i}, s{60+2*i}")
            k(f"""v_mov_b32 v38, s4
v_mov_b32 v39, s99
s_lshl_b32 s3, s2, 3
s_add_u32 s3, s3, s{sW}
s_lshl_b32 s3, s3, 6
s_add_u32 s3, s3, {O_STAMP}
v_mov_b32 v40, s3
global_store_dwordx4 v40, v[28:31], s[6:7]
global_store_dwordx4 v40, v[32:35], s[6:7] offset:16
global_store_dwordx4 v40, v[36:39], s[6:7] offset:32""")
            if "orc" in abl and not five:
                X = int(abl.split("orc")[1][:3])/10; which = abl.split("orc")[1][3:4] or "a"
                k(f"""s_cmp_lg_u32 s2, 0
s_cbranch_scc1 {name}_noorc
s_cmp_lg_u32 s{sW}, 4
s_cbranch_scc1 {name}_noorc
v_mov_b32 v41, {O_STAMP + 262144}
global_load_dword v44, v41, s[6:7]
s_waitcnt vmcnt(0)
v_readfirstlane_b32 s3, v44
s_sub_u32 s3, s{4 if which == 'a' else 60+2*int(which)}, s3
s_cmp_lt_u32 s3, {int(X*100)}
s_cbranch_scc1 {name}_noorc
s_movk_i32 s3, 60
{name}_orcl:
s_sleep 64
s_sub_u32 s3, s3, 1
s_cbranch_scc0 {name}_orcl
{name}_noorc:""")
                k.saved.pop(f"{name}_orcl", None)
            if "until" in abl and not five:
                k(f"""s_cmp_lg_u32 s2, 0
s_cbranch_scc1 {name}_nount
s_cmp_lg_u32 s{sW}, 4
s_cbranch_scc1 {name}_nount
v_mov_b32 v41, {O_STAMP + 262144}
global_load_dword v44, v41, s[6:7]
s_waitcnt vmcnt(0)
v_readfirstlane_b32 s3, v44
{name}_untl:
s_memrealtime s[4:5]
s_waitcnt lgkmcnt(0)
s_sub_u32 s4, s4, s3
s_cmp_lt_u32 s4, 8000
s_cbranch_scc1 {name}_untl
{name}_nount:""")
                k.saved.pop(f"{name}_untl", None)
            if "dbg" in abl and not five:
                k(f"""s_cmp_lg_u32 s2, 0
s_cbranch_scc1 {name}_nodbg
s_cmp_lg_u32 s{sW}, 4
s_cbranch_scc1 {name}_nodbg
s_load_dwordx2 s[8:9], s[0:1], 64
v_mov_b32 v41, {O_STAMP + 262144}
global_load_dwordx4 v[44:47], v41, s[6:7]
global_load_dwordx4 v[48:51], v41, s[6:7] offset:16
v_mov_b32 v41, {O_STAMP + 2*262144}
global_load_dwordx4 v[52:55], v41, s[6:7]
global_load_dwordx4 v[56:59], v41, s[6:7] offset:16
s_waitcnt vmcnt(0) lgkmcnt(0)
s_sub_u32 s8, s8, {int(abl.split('dbg')[1][0])*512}
s_subb_u32 s9, s9, 0
v_sub_u32 v60, v46, v44
v_sub_u32 v61, v50, v44
v_sub_u32 v62, v52, v44
v_sub_u32 v63, v57, v44""")
                for i in range(11): k(f"v_sub_u32 v{64+i}, v{28+i}, v44")
                k(f"""v_mov_b32 v75, 12345
v_mov_b32 v41, 0
global_store_dwordx4 v41, v[60:63], s[8:9]
global_store_dwordx4 v41, v[64:67], s[8:9] offset:16
global_store_dwordx4 v41, v[68:71], s[8:9] offset:32
global_store_dwordx4 v41, v[72:75], s[8:9] offset:48
{name}_nodbg:""")
    k(f"s_cmp_ge_u32 s{sW}, 4\ns_cbranch_scc1 {name}_p4")
    path(True)
    k(f"s_endpgm\n{name}_p4:")
    path(False)
    k("s_endpgm")
    for c in cold: c()
    k(f"{name}_end:")
    return k
```

```python
from asmlib import *
from layout import *
import struct
def fl(x): return "0x%08x" % struct.unpack("<I", struct.pack("<f", x))[0]
MF = "v_mfma_f32_16x16x32_bf16"
def ws_srd(k, d, off, nbytes, ws=6):
    k(f"s_add_u32 s{d}, s{ws}, {off}\ns_addc_u32 s{d+1}, s{ws+1}, 0\ns_mov_b32 s{d+2}, {nbytes}\ns_mov_b32 s{d+3}, 0x20000")
def srd_tail(k, d, nbytes): k(f"s_mov_b32 s{d+2}, {nbytes}\ns_mov_b32 s{d+3}, 0x20000")
S4 = lambda d: f"s[{d}:{d+3}]"


def build_pf(look=3, nd=2, spread=3, stamp=False, abl="", name="pf", OUTPOL="", WPOL="", DPOL="", TPOL="", dstage=11, safe=0, XPOL="sc1", TPOLD="", ahead=4,
             phases="1478", lag=2, ntouch=0, prio="", fuse=0, pk=1, W2=1, mode="S", merge=1, smooth=0, drip=1, wat=0, cnap=0, tseq=0, hlate=1, ctouch="h", pair=0, spread4=0, sp0=0, upos=1, eprio=0, bprio=0, mono=0, gnap=0, p1o={}, NREPL=16, depi=17, droll=0, nl=0, wlate=1, sigfirst=1, order=0, ptouch=0, otouch=0, bulk=0, vprio=1, cprio=0, drain=1, ib2=1, nap=0, early=0, su3=0, w4p=0, late1=0, idlepf=1, inl=1, skip=1, lph="1358", istage=1, tstage=7):
    LP = mode == "L"
    PH = [int(c) for c in str(lph if LP else phases) if c.isdigit()]
    k = K(name, 256, 512, lds=163840, vgpr=256, sgpr=102)
    sG, sU, sD, sX, sP, sF, sS, sH, sO, sV, sI, sT = 8, 12, 16, 20, 24, 28, 32, 36, 40, 44, 48, 52
    sW, sMT, sSL, sRG = 56, 57, 58, 59
    sA, sKW, sKX, sM0a, sM0x, sM0s, sKD, sM0d, sPO, sCG, sRD, sLN, sLoc, sS1 = range(80, 94)
    sF1 = 96; sB = 97; sXC = 98
    vL, vDX, vD0, vD1, vD2, vT0, vT1, vT2 = range(8)
    vXr = [8, 9, 10]; vWA = [11, 12, 13]; vWB = [14, 15, 16]
    SLOT_A = [0, 45056, 90112]; RING_B = [0, 36864, 90112, 126976]; HH = 90112; OWN = 73728; WO = 8192
    wslot = lambda s: SLOT_A[s % 3]; xslot = wslot
    if pair:
        assert not (early or LP or fuse or bulk or nl or droll or late1)
        RING_B = [73728, 110592, 0, 36864]; HH = 0; OWN = 147456; WO = 0
        wslot = lambda s: (s % 4)*36864; xslot = lambda s: 147456 + (s & 1)*8192
        vWA = [13, 11]; vWB = [16, 14]
    vDD, vPO, vHW = 17, 18, 19
    vWD = [20, 21, 22, 23]
    vHR, vHW2, vZ, vQ = 24, 25, 26, 27
    def stb(i):
        if stamp and "bst" in abl: k(f"s_memrealtime s[{60+2*i}:{61+2*i}]")
    def st(i):
        if stamp and "clk" in abl:
            if i >= 6: k(f"s_memrealtime s[{60+2*i}:{61+2*i}]\ns_memtime s[{60+2*(i-5)}:{61+2*(i-5)}]")
            elif i == 0: k("s_memrealtime s[60:61]")
            return
        if stamp and "bst" not in abl: k(f"s_memrealtime s[{60+2*i}:{61+2*i}]")
    def put(items):
        for x in items:
            t = x[0] if isinstance(x, tuple) else x
            if "nodma" in abl and " lds" in t and x[1] not in ("A0", "A1"): continue
            if "nop2" in abl and "buffer_store" in t and isinstance(x, tuple) and x[1].startswith("P"): continue
            if "nomfma" in abl and "v_mfma" in t: continue
            if isinstance(x, tuple): k(x[0], tag=x[1])
            else: k(x)
    cold = []
    def spin(lab, load, cond, nap=0):
        bound = f"s_sub_u32 s5, s5, 1\ns_cbranch_scc1 {lab}_ok\n" if safe else ""
        k(f"{cond}\ns_cbranch_vccnz {lab}_slow\n{lab}_ok:")
        k.saved.pop(lab + "_slow", None)
        def emit_cold():
            k(f"{lab}_slow:\ns_waitcnt vmcnt(0) lgkmcnt(0)\n{f's_mov_b32 s5, {20000 if safe == 1 else 4000000}' if safe else ''}\n{lab}_spin:\n{'s_add_u32 s99, s99, 1' if 'cnt' in abl else ''}\n{bound}{f's_sleep {nap}' if nap else ''}\n{load}\ns_waitcnt vmcnt(0)\n{cond}\ns_cbranch_vccnz {lab}_spin\ns_branch {lab}_ok")
            k.saved.clear()
        cold.append(emit_cold)
    st(0)
    sNC = 0 if mono else None
    FV = f"s{sNC}" if mono else "1"
    notyet = lambda v: f"v_cmp_ne_u32 vcc, s{sNC}, v{v}" if mono else f"v_cmp_eq_u32 vcc, 0, v{v}"
    if mono:
        assert not (early or nl or droll or LP)
        from fft import build_p1
        build_p1(MERGE=1, mono=k, **p1o)
        k(f"""{name}_join:
s_setprio 0
s_mov_b32 s2, s101
s_mov_b32 s{sW}, s100""")
    k(f"""
{'' if mono else 's_load_dwordx2 s[6:7], s[0:1], 72'}
s_load_dwordx2 s[{sG}:{sG+1}], s[0:1], 32
s_load_dwordx2 s[{sU}:{sU+1}], s[0:1], 40
s_load_dwordx2 s[{sI}:{sI+1}], s[0:1], 0
s_load_dwordx2 s[{sD}:{sD+1}], s[0:1], 48
s_load_dwordx2 s[{sO}:{sO+1}], s[0:1], 56""")
    if not mono: k(f"""s_cmp_ge_u32 s2, 256
s_cbranch_scc1 {name}_end
v_lshrrev_b32 v{vT0}, 6, v0
v_and_b32 v{vL}, 63, v0
v_readfirstlane_b32 s{sW}, v{vT0}""")
    k(f"""
s_lshr_b32 s3, s2, 3
s_and_b32 s{sMT}, s3, 15
s_lshr_b32 s{sB}, s3, 4
s_and_b32 s{sXC}, s2, 7
s_lshl_b32 s4, s{sXC}, 1
s_add_u32 s{sSL}, s4, s{sB}
v_lshlrev_b32 v{vDX}, 4, v{vL}
v_mov_b32 v{vZ}, 0
v_mov_b32 v37, 0
v_mov_b32 v2, 0
v_mov_b32 v3, 0
v_mov_b32 v4, 0
v_mov_b32 v47, 0
v_mov_b32 v30, 0
""")
    o = 32
    R = lambda n: n + o
    sS2, sNT, sVB, sXO, sSO = 99, sB, 100, 101, (96 if early else 50 if hlate else sRD)
    assert not (early and LP)
    sAct = 92
    L, MB_, AC, TW, G, XX = R(16), R(48), R(64), R(96), R(120), R(160)
    EZ = 90112; ES = EZ + 20480
    g_, n_, vVA, vHS, vRow, vXo, vEW, vSW, vSR = R(2), R(3), R(4), R(5), R(6), R(7), R(9), R(14), R(15)
    t0, t1, t2, t3 = R(10), R(11), R(12), R(13)
    assert merge
    NV = O_TAB - O_U + N_TAB
    vloads = "\n".join(f"s_add_u32 s3, s{sVB}, {(16*kk+t)*64*ROWB}\nbuffer_load_dwordx4 {vr(L+16*kk+4*t, 4)}, v{vVA}, {S4(sV)}, s3 offen sc1" for kk in range(2) for t in range(4))
    k(f"""
s_and_b32 s3, s{sXC}, 3
s_lshl_b32 s{sS2}, s{sMT}, 2
s_add_u32 s{sS2}, s{sS2}, s3
s_lshr_b32 s3, s{sXC}, 2
s_and_b32 s4, s{sMT}, 1
s_cmp_eq_u32 s3, s4
s_cselect_b32 s{sAct}, 1, 0
s_lshl_b32 s3, s{sB}, 3
s_lshr_b32 s4, s{sMT}, 1
s_add_u32 s81, s3, s4
s_waitcnt lgkmcnt(0)
""")
    ws_srd(k, sV, O_V, NV)
    if mono:
        ws_srd(k, sF, O_FLG, N_FLG)
        gl = f"buffer_load_dwordx4 v[8:11], v{vDX}, {S4(sF)}, s94 offen sc1"
        k(f"""v_readfirstlane_b32 s{sNC}, v200
s_add_u32 s{sNC}, s{sNC}, 1
s_lshl_b32 s3, s2, 2
v_lshl_add_u32 v{vT0}, v{vL}, 10, s3
v_mov_b32 v{vT1}, {OOB}
v_cmp_gt_u32 vcc, {NREPL}, v{vL}
v_cndmask_b32 v{vT0}, v{vT1}, v{vT0}, vcc
v_mov_b32 v{vT1}, s{sNC}
s_lshr_b32 s3, s2, 3
s_and_b32 s3, s3, {NREPL-1}
s_lshl_b32 s3, s3, 10
s_add_u32 s94, s3, {F_G}
s_mov_b32 s3, {F_G}
s_waitcnt vmcnt(0)
s_barrier""")
        st(1)
        k(f"""s_cmp_lg_u32 s{sW}, 7
s_cbranch_scc1 {name}_j2
buffer_store_dword v{vT1}, v{vT0}, {S4(sF)}, s3 offen sc1
{gl}""")
        spin(f"{name}_g", gl, f"v_xor_b32 v8, s{sNC}, v8\nv_xor_b32 v9, s{sNC}, v9\nv_xor_b32 v10, s{sNC}, v10\nv_xor_b32 v11, s{sNC}, v11\nv_or3_b32 v8, v8, v9, v10\nv_or_b32 v8, v8, v11\nv_cmp_ne_u32 vcc, 0, v8", gnap)
        k(f"""s_cmp_lg_u32 s2, 0
s_cbranch_scc1 {name}_j2
s_mov_b32 s3, {F_N}
buffer_store_dword v{vT1}, v{vZ}, {S4(sF)}, s3 offen sc1
{name}_j2:
s_barrier""")
    def common_setup():
        k(f"""
v_lshrrev_b32 v{g_}, 4, v{vL}
v_and_b32 v{n_}, 15, v{vL}
s_lshl_b32 s3, s{sW}, 4
v_add_u32 v{vVA}, s3, v{n_}
v_lshlrev_b32 v{vVA}, 4, v{vVA}
v_mul_u32_u24 v{t0}, {4*64*ROWB}, v{g_}
v_add_u32 v{vVA}, v{vVA}, v{t0}
s_mul_i32 s{sVB}, s{sS2}, {ROWB}
s_lshl_b32 s3, s{sNT}, 4
v_add_u32 v{vRow}, s3, v{n_}
v_lshl_add_u32 v{vRow}, v{vRow}, 6, s{sS2}
v_mul_u32_u24 v{vXo}, 1152, v{vRow}
v_lshl_add_u32 v{vXo}, v{g_}, 5, v{vXo}
s_lshl_b32 s{sXO}, s{sW}, 7
""")
        srd_tail(k, sI, N_H); ws_srd(k, sT, O_TAB, N_TAB)
        ws_srd(k, sX, O_XF, N_XF); ws_srd(k, sH, O_H, N_H); ws_srd(k, sF, O_FLG, N_FLG)
        for d in (sG, sU, sD): srd_tail(k, d, N_W)
        srd_tail(k, sO, N_H)
        ws_srd(k, sP, O_P, N_P)
        k(f"s_bitcmp0_b32 s{sW}, 1\ns_cselect_b32 s{sS}, s{sG}, s{sU}\ns_cselect_b32 s{sS+1}, s{sG+1}, s{sU+1}")
        srd_tail(k, sS, N_W)
    def pattern(vd):
        k(f"""
s_lshl_b32 s4, s3, 6
v_add_u32 v{vT0}, s4, v{vL}
v_mul_u32_u24 v{vT1}, 1821, v{vT0}
v_lshrrev_b32 v{vT1}, 16, v{vT1}
v_mul_u32_u24 v{vT2}, 36, v{vT1}
v_sub_u32 v{vT0}, v{vT0}, v{vT2}
v_lshrrev_b32 v{vT2}, 2, v{vT1}
v_and_b32 v{vT2}, 2, v{vT2}
v_xor_b32 v{vT0}, v{vT0}, v{vT2}
v_lshlrev_b32 v{vT0}, 4, v{vT0}
v_and_b32 v{vT2}, 24, v{vT1}
v_add_u32 v{vT1}, v{vT1}, v{vT2}
v_mul_u32_u24 v{vT1}, 9216, v{vT1}
v_add_u32 v{vd}, v{vT0}, v{vT1}
""")
    def mlp_setup():
        k(f"s_and_b32 s{sRG}, s{sW}, 1\ns_bfe_u32 s{sA}, s{sW}, 0x10001\n{'s_and_b32' if LP else 's_lshr_b32'} s{sCG}, s{sW}, {3 if LP else 1}")
        k(f"s_lshl_b32 s3, s{sW}, 1"); pattern(vD0)
        k(f"s_add_u32 s3, s3, 1"); pattern(vD1)
        k(f"s_add_u32 s3, s{sRG}, 16"); pattern(vD2)
        k(f"""
s_mul_i32 s{sKW}, s{sSL}, 576
s_lshl_b32 s3, s{sMT}, 3
s_add_u32 s3, s3, s{sW}
s_mul_i32 s{sKX}, s3, 18432
s_lshl_b32 s{sM0x}, s{sW}, 10
s_lshl_b32 s{sM0a}, s{sW}, 11
s_add_u32 s{sM0a}, s{sM0a}, {WO}
s_mul_i32 s3, s{sA}, 18432
s_lshl_b32 s4, s{sRG}, 10
s_add_u32 s3, s3, s4
s_add_u32 s{sM0s}, s3, {WO+16*1024}
""")
    def dmaX(s):
        return [(f"s_add_u32 m0, s{sM0x}, {xslot(s)}\ns_add_u32 s94, s{sKX}, {s*1024}\nbuffer_load_dwordx4 v{vDX}, {S4(sX)}, s94 offen {XPOL} lds", f"A{s}")]
    def dmaW(s, six):
        o = wslot(s)
        g = [f"s_add_u32 m0, s{sM0a}, {o}\ns_add_u32 s95, s{sKW}, {((s >> 1)*64 + (s & 1)*8)*9216}\nbuffer_load_dwordx4 v{vD0}, {S4(sG)}, s95 offen {WPOL} lds",
             f"s_add_u32 m0, s{sM0a}, {o+1024}\nbuffer_load_dwordx4 v{vD1}, {S4(sG)}, s95 offen {WPOL} lds",
             f"s_add_u32 m0, s{sM0a}, {o+18432}\nbuffer_load_dwordx4 v{vD0}, {S4(sU)}, s95 offen {WPOL} lds",
             f"s_add_u32 m0, s{sM0a}, {o+18432+1024}\nbuffer_load_dwordx4 v{vD1}, {S4(sU)}, s95 offen {WPOL} lds"]
        if six: g.append(f"s_add_u32 m0, s{sM0s}, {o}\nbuffer_load_dwordx4 v{vD2}, {S4(sS)}, s95 offen {WPOL} lds")
        return [(x, f"A{s}") for x in g]
    def dmaB(u, five):
        o = RING_B[u % 4]
        if LP and five: return []
        if "dbl" in abl:
            return [(f"s_add_u32 m0, s{sM0d}, {o+i*1024}\ns_add_u32 s94, s{sKD}, {i*8*1152+u*128}\n{'s_xor_b32 s94, s94, 0' if q == 0 else 's_add_u32 s94, s94, s101'}\nbuffer_load_dwordx4 v{vDD}, {S4(sD)}, s94 offen {DPOL} lds", f"B{u}") for q in range(2) for i in range(4 if five else 5)]
        return [(f"s_add_u32 m0, s{sM0d}, {o+i*1024}\ns_add_u32 s94, s{sKD}, {i*8*1152+u*128}\nbuffer_load_dwordx4 v{vDD}, {S4(sD)}, s94 offen {DPOL} lds", f"B{u}") for i in range(9 if LP else 4 if five else 5)]
    def first_w(lab, only=None):
        for s in (only or ((0,) if late1 else (0, 1))):
            put(dmaW(s, False))
            k(f"s_cmp_lt_u32 s{sW}, 4\ns_cbranch_scc1 {lab}{s}")
            put(dmaW(s, True)[4:])
            k(f"{lab}{s}:")
    def bulk_w():
        k(f"s_sub_u32 s3, s{sW}, 5\ns_mul_i32 s3, s3, 6\ns_lshl_b32 s5, s3, 10\ns_add_u32 s5, s5, 8192\ns_add_u32 s95, s{sKW}, {8*9216}")
        for i in range(6):
            pattern(t0)
            for s_, so in ((0, sKW), (1, 95))[:1 if bulk == 2 else 2]:
                for m, d in enumerate((sG, sU)):
                    k(f"s_add_u32 m0, s5, {SLOT_A[s_] + m*18432 + i*1024}\nbuffer_load_dwordx4 v{t0}, {S4(d)}, s{so} offen {WPOL} lds", tag="A0")
            k("s_add_u32 s3, s3, 1")
    def rest_loads(lab):
        k(f"buffer_load_dwordx4 {vr(XX, 4)}, v{vXo}, {S4(sI)}, s{sXO} offen\nbuffer_load_dwordx4 {vr(XX+4, 4)}, v{vXo}, {S4(sI)}, s{sXO} offen offset:16")
        k(f"s_mul_i32 s3, s{sW}, 5120\ns_add_u32 s3, s3, 16384\ns_add_u32 s4, s3, 4096")
        for f in range(5): k(f"buffer_load_dwordx4 {vr(G+4*f, 4)}, v{vDX}, {S4(sT)}, s{3+f//4} offen offset:{(f % 4)*1024}")
        k(f"s_cmp_lg_u32 s{sW}, {W2}\ns_cbranch_scc1 {lab}")
        k(f"buffer_load_dwordx4 {vr(XX+8, 4)}, v{vXo}, {S4(sI)}, 0 offen offset:1024\nbuffer_load_dwordx4 {vr(XX+12, 4)}, v{vXo}, {S4(sI)}, 0 offen offset:1040")
        k(f"s_mov_b32 s3, {(16+40)*1024}\ns_mov_b32 s4, {(16+44)*1024}")
        for f in range(5): k(f"buffer_load_dwordx4 {vr(G+20+4*f, 4)}, v{vDX}, {S4(sT)}, s{3+f//4} offen offset:{(f % 4)*1024}")
        k(f"{lab}:")
    def matrices():
        k(f"""
v_cvt_f32_u32 v{t0}, v{vRow}
v_mul_f32 v{t0}, {fl(1/2048)}, v{t0}
v_cvt_f32_u32 v{t1}, v{g_}
v_mul_f32 v{t1}, 4.0, v{t1}
v_mul_f32 v{vEW}, v{t0}, v{t1}
""")
        for kk in range(2):
            for t in range(4):
                k(f"""v_fmamk_f32 v{t2}, v{t0}, {fl(float(16*kk+t))}, v{vEW}
v_cos_f32 v{t3}, v{t2}
v_sin_f32 v{t2}, v{t2}
v_cvt_pk_bf16_f32 v{MB_+4*kk+t}, v{t3}, -v{t2}
v_cvt_pk_bf16_f32 v{MB_+8+4*kk+t}, v{t2}, v{t3}""")
        tw = [f"s_lshl_b32 s3, s{sW}, 4", f"v_cvt_f32_u32 v{t0}, s3", f"v_add_f32 v{t1}, v{t1}, v{t0}"]
        for r in range(4):
            if r: tw.append(f"v_add_f32 v{t1}, 1.0, v{t1}")
            for q in range(1, 4):
                tw += [f"v_mul_f32 v{t2}, {fl(q/576)}, v{t1}", f"v_cos_f32 v{TW+8*(q-1)+r}, v{t2}", f"v_sin_f32 v{TW+8*(q-1)+4+r}, v{t2}"]
        return tw
    sSU = 96
    if merge:
        from fft import column_task
        k(f"""s_mov_b32 s{sSU}, 0
s_lshl_b32 s3, s81, 1
s_sub_u32 s4, s{sW}, 5
s_add_u32 s3, s3, s4
s_cmp_lt_u32 s4, 2
s_cselect_b32 s3, s3, 64+12
s_mul_i32 s4, s81, 3
s_add_u32 s4, s4, s{sW}
s_add_u32 s4, s4, 32
s_cmp_lt_u32 s{sW}, 3
s_cselect_b32 s4, s4, 64+12
s_cmp_eq_u32 s{sAct}, 0
s_cselect_b32 s3, s4, s3
s_cmp_ge_u32 s3, 76
s_cbranch_scc1 {name}_other
s_mul_i32 s4, s3, 27
s_lshr_b32 s4, s4, 9
s_mul_i32 s5, s4, 19
s_sub_u32 s81, s3, s5
s_lshl_b32 s3, s{sXC}, 2
s_add_u32 s82, s3, s4""")
        if cprio: k(f"s_setprio {cprio}")
        column_task(k, 48, 81, 82, 83, sV, vDX, vL, common_setup, lambda: (None if mono else st(1), k("s_barrier")))
        st(2)
        if cprio: k("s_setprio 0")
        if drain: k("s_waitcnt vmcnt(0)")
        if ib2: k(f"s_barrier\ns_cmp_eq_u32 s{sAct}, 0\ns_cbranch_scc1 {name}_fin")
        else: k(f"s_cmp_eq_u32 s{sAct}, 0\ns_cbranch_scc1 {name}_fin\ns_barrier")
        mlp_setup()
        k(f"s_mov_b32 s{sSU}, 1")
        rest_loads(f"{name}_rl4")
        k(f"s_branch {name}_bulk\n{name}_other:")
        common_setup()
        k(f"s_cmp_eq_u32 s{sAct}, 0\ns_cbranch_scc1 {name}_nocol\ns_cmp_lt_u32 s{sW}, 5\ns_cbranch_scc1 {name}_rows\n{name}_nocol:")
        mlp_setup()
        k(f"s_mov_b32 s{sSU}, 1\ns_barrier\ns_cmp_eq_u32 s{sAct}, 0\ns_cbranch_scc1 {name}_ib")
        rest_loads(f"{name}_rl1")
        k(f"s_barrier\n{name}_bulk:")
        if bulk == 2: k("s_barrier")
        if bulk: bulk_w()
        k(f"s_branch {name}_noA\n{name}_ib:\n{'s_barrier' if ib2 else ''}\ns_branch {name}_fin\n{name}_rows:")
        put(matrices())
        if wlate == 5:
            mlp_setup()
            k(f"s_mov_b32 s{sSU}, 1")
        k(f"""v_cmp_le_u32 vcc, 12, v{n_}
s_cmp_eq_u32 s{sW}, 4
s_cselect_b64 vcc, vcc, 0
v_cndmask_b32 v{vHS}, 0, 1, vcc
s_barrier""")
        rest_loads(f"{name}_rl3")
        k(f"s_barrier")
        if not mono: st(1)
        if vprio: k(f"s_and_b32 s3, s{sW}, 3\ns_cmp_lg_u32 s3, 0\ns_cbranch_scc1 {name}_vp\ns_setprio 2\n{name}_vp:")
        k(vloads)
        chk = "\n".join([f"v_and_b32 v{t0}, v{L}, v{L+4}"] + [f"v_and_b32 v{t0}, v{t0}, v{L+4*i}" for i in range(2, 8)] + [f"v_or_b32 v{t0}, v{t0}, v{vHS}", f"v_and_b32 v{t0}, 1, v{t0}", f"v_cmp_eq_u32 vcc, 0, v{t0}"])
        spin(f"{name}_v", vloads, chk, nap)
        if bulk == 2: k("s_barrier")
        tw = [""]*22
    else:
        k(f"s_cmp_lt_u32 s{sW}, 5\ns_cbranch_scc1 {name}_doA")
        mlp_setup()
        rest_loads(f"{name}_rl1")
        k(f"s_branch {name}_noA\n{name}_doA:")
        tw = matrices()
        put(tw[:22])
    st(2)
    for kk in range(2):
        for a in range(4):
            for b in range(a+1, 4): k(f"v_swap_b32 v{L+16*kk+4*a+b}, v{L+16*kk+4*b+a}")
    mf = []
    for m in (0, 2, 1, 3):
        for kk in range(2):
            for c in range(2):
                a = AC+8*m+4*c
                mf.append(f"{MF} {vr(a, 4)}, {vr(L+16*kk+4*m, 4)}, {vr(MB_+8*c+4*kk, 4)}, {'0' if kk == 0 else vr(a, 4)}")
    put(interleave(mf, tw[22:]) if tw[22:] else mf)
    if not merge: rest_loads(f"{name}_rl2")
    Z = L; T = L+16
    p2 = lambda x: vr(x, 2)
    NEG = "neg_lo:[0,1] neg_hi:[0,1]"
    for r in (0, 2):
        Rr = lambda m: AC+8*m+r
        I = lambda m: AC+8*m+4+r
        ar, ai, br, bi, cr, ci, dr, di = (T+2*i for i in range(8))
        k(f"""
v_pk_add_f32 {p2(ar)}, {p2(Rr(0))}, {p2(Rr(2))}
v_pk_add_f32 {p2(ai)}, {p2(I(0))}, {p2(I(2))}
v_pk_add_f32 {p2(cr)}, {p2(Rr(1))}, {p2(Rr(3))}
v_pk_add_f32 {p2(ci)}, {p2(I(1))}, {p2(I(3))}
v_pk_add_f32 {p2(br)}, {p2(Rr(0))}, {p2(Rr(2))} {NEG}
v_pk_add_f32 {p2(bi)}, {p2(I(0))}, {p2(I(2))} {NEG}
v_pk_add_f32 {p2(dr)}, {p2(Rr(1))}, {p2(Rr(3))} {NEG}
v_pk_add_f32 {p2(di)}, {p2(I(1))}, {p2(I(3))} {NEG}
v_pk_add_f32 {p2(Rr(0))}, {p2(ar)}, {p2(cr)}
v_pk_add_f32 {p2(I(0))}, {p2(ai)}, {p2(ci)}
v_pk_add_f32 {p2(Rr(1))}, {p2(br)}, {p2(di)} {NEG}
v_pk_add_f32 {p2(I(1))}, {p2(bi)}, {p2(dr)}
v_pk_add_f32 {p2(Rr(2))}, {p2(ar)}, {p2(cr)} {NEG}
v_pk_add_f32 {p2(I(2))}, {p2(ai)}, {p2(ci)} {NEG}
v_pk_add_f32 {p2(Rr(3))}, {p2(br)}, {p2(di)}
v_pk_add_f32 {p2(I(3))}, {p2(bi)}, {p2(dr)} {NEG}
v_cvt_pk_bf16_f32 v{Z+r}, v{Rr(0)}, v{I(0)}
v_cvt_pk_bf16_f32 v{Z+r+1}, v{Rr(0)+1}, v{I(0)+1}
""")
        for q in range(1, 4):
            cc = TW+8*(q-1)+r
            k(f"v_pk_mul_f32 {p2(T+4*q)}, {p2(cc)}, {p2(Rr(q))}\nv_pk_mul_f32 {p2(T+4*q+2)}, {p2(cc)}, {p2(I(q))}")
        for q in range(1, 4):
            ss = TW+8*(q-1)+4+r
            k(f"v_pk_fma_f32 {p2(T+4*q)}, {p2(ss)}, {p2(I(q))}, {p2(T+4*q)} neg_lo:[1,0,0] neg_hi:[1,0,0]\nv_pk_fma_f32 {p2(T+4*q+2)}, {p2(ss)}, {p2(Rr(q))}, {p2(T+4*q+2)}")
        for q in range(1, 4):
            k(f"v_cvt_pk_bf16_f32 v{Z+4*q+r}, v{T+4*q}, v{T+4*q+2}\nv_cvt_pk_bf16_f32 v{Z+4*q+r+1}, v{T+4*q+1}, v{T+4*q+3}")
    k(f"s_lshl_b32 s3, s{sW}, 10\ns_add_u32 s3, s3, {EZ}\nv_add_u32 v{vEW}, s3, v{vDX}")
    for q in range(4): k(f"ds_write_b128 v{vEW}, {vr(Z+4*q, 4)} offset:{q*5120}")
    k(f"s_setprio 0\ns_cmp_eq_u32 s{sW}, 4\ns_cbranch_scc1 {name}_noA")
    if su3: mlp_setup()
    k(f"{name}_noA:")
    k(f"""
v_lshlrev_b32 v{vSR}, 6, v{n_}
v_add_u32 v{vSR}, {ES}, v{vSR}
v_lshrrev_b32 v{vSW}, {2 if nl else 1}, v{g_}
v_lshl_add_u32 v{vSW}, v{vSW}, 2, v{vSR}
s_lshl_b32 s3, s{sW}, 3
v_add_u32 v{vSW}, s3, v{vSW}
v_lshrrev_b32 v{vHS}, 1, v{n_}
v_lshlrev_b32 v{vHS}, 7, v{vHS}
v_and_b32 v{t0}, 1, v{n_}
v_lshl_add_u32 v{vHS}, v{t0}, 6, v{vHS}
v_lshl_add_u32 v{vHS}, v{g_}, 4, v{vHS}
v_add_u32 v{vEW}, {EZ}, v{vDX}
s_lshl_b32 s3, s{sS2}, 1
s_add_u32 s3, s3, s{sNT}
s_mul_i32 s4, s3, 18432
s_lshl_b32 s5, s{sW}, 11
s_add_u32 s{sSO}, s4, s5
s_add_u32 s{sVB}, s4, 16384
s_and_b32 s3, s3, 7
s_lshl_b32 s3, s3, 2
s_lshl_b32 s4, s{sMT}, 11
s_add_u32 s{sXO}, s3, s4
s_mov_b32 s5, 0xffff0000
""")
    A2 = AC; ZR = L
    def allsum(a, b):
        k(f"""v_add_f32 v{a}, v{a}, v{a+1}
v_mov_b32 v{b}, v{a}
v_permlane32_swap_b32 v{a}, v{b}
v_add_f32 v{a}, v{a}, v{b}
v_mov_b32 v{b}, v{a}
v_permlane16_swap_b32 v{a}, v{b}
v_add_f32 v{a}, v{a}, v{b}""")
    def final_nl(nmt):
        so = [sSO, sVB]
        prs = [A2+16*mt+4*q+2*p for mt in range(nmt) for q in range(4) for p in range(2)]
        for mt in range(nmt):
            for r in range(4):
                for q in range(4):
                    src = XX+8*mt+2*r+(q >> 1); dst = A2+16*mt+4*q+r
                    k(f"v_and_b32 v{dst}, s5, v{src}" if q & 1 else f"v_lshlrev_b32 v{dst}, 16, v{src}")
        k(f"v_pk_add_f32 {vr(t0, 2)}, {vr(prs[0], 2)}, {vr(prs[1], 2)}\nv_pk_add_f32 {vr(t2, 2)}, {vr(prs[2], 2)}, {vr(prs[3], 2)}")
        for i, a in enumerate(prs[4:]): k(f"v_pk_add_f32 {vr(t0+2*(i & 1), 2)}, {vr(t0+2*(i & 1), 2)}, {vr(a, 2)}")
        k(f"v_pk_add_f32 {vr(t0, 2)}, {vr(t0, 2)}, {vr(t2, 2)}")
        allsum(t0, t1)
        k(f"ds_write_b32 v{vSW}, v{t0}")
        k.wait_lg(); k("s_barrier")
        st(3)
        idx = [(jt, q) for jt in range(5) for q in range(4)]
        rd = lambda i: f"ds_read_b128 {vr(ZR+4*(i % 8), 4)}, v{vEW} offset:{idx[i][1]*5120+idx[i][0]*1024}"
        for i in range(7): k(rd(i))
        for w in range(4): k(f"ds_read_b128 {vr(MB_+4*w, 4)}, v{vSR} offset:{16*w}")
        mean = [f"v_add_f32 v{MB_+a}, v{MB_+a}, v{MB_+b}" for a, b in ((0, 2), (4, 6), (8, 10), (12, 14), (0, 4), (8, 12), (0, 8))] + \
               [f"v_mul_f32 v{t0}, {fl(-1/576)}, v{MB_}", f"v_mul_f32 v{t1}, {fl(-1/576)}, v{MB_}"]
        for i, (jt, q) in enumerate(idx):
            for mt in range(nmt):
                a = A2+16*mt+4*q
                k(f"{MF} {vr(a, 4)}, {vr(G+20*mt+4*jt, 4)}, {vr(ZR+4*(i % 8), 4)}, {vr(a, 4)}")
            if i+7 < 20: k(rd(i+7))
            if 8 <= i < 8+len(mean): k(mean[i-8])
        def pack(dst, src, h):
            for p in range(4):
                r, q = 2*h+(p >> 1), 2*(p & 1)
                k(f"v_cvt_pk_bf16_f32 v{dst+p}, v{src+4*q+r}, v{src+4*(q+1)+r}")
        HC = G
        for mt in range(nmt):
            for h in range(2):
                for q in range(4): k(f"v_pk_add_f32 {vr(HC+16*mt+4*q+2*h, 2)}, {vr(A2+16*mt+4*q+2*h, 2)}, {vr(t0, 2)}")
                pack(L+8*mt+4*h, HC+16*mt, h)
                k(f"buffer_store_dwordx4 {vr(L+8*mt+4*h, 4)}, v{vDX}, {S4(sX)}, s{so[mt]} offen offset:{h*1024} sc1", tag="XF")
        hp = [a - A2 + HC for a in prs]
        k(f"v_pk_mul_f32 {vr(t0, 2)}, {vr(hp[0], 2)}, {vr(hp[0], 2)}\nv_pk_mul_f32 {vr(t2, 2)}, {vr(hp[1], 2)}, {vr(hp[1], 2)}")
        for i, a in enumerate(hp[2:]): k(f"v_pk_fma_f32 {vr(t0+2*(i & 1), 2)}, {vr(a, 2)}, {vr(a, 2)}, {vr(t0+2*(i & 1), 2)}")
        k(f"v_pk_add_f32 {vr(t0, 2)}, {vr(t0, 2)}, {vr(t2, 2)}")
        allsum(t0, t1)
        k(f"ds_write_b32 v{vSW}, v{t0} offset:4")
        for mt in range(nmt):
            for h in range(2): pack(XX+8*mt+4*h, A2+16*mt, h)
        k(f"""v_mov_b32 v{vEW}, v{vSR}
v_lshl_add_u32 v30, v{vL}, 7, s{sXO}
v_mov_b32 v{vSR}, {OOB}
v_cmp_gt_u32 vcc, 16, v{vL}
v_cndmask_b32 v30, v{vSR}, v30, vcc
v_mov_b32 v{vSW}, {FV}""")
    def final(nmt):
        if nl: return final_nl(nmt)
        so = [sSO, sVB]
        for mt in range(nmt):
            for r in range(4):
                for q in range(4):
                    src = XX+8*mt+2*r+(q >> 1); dst = A2+16*mt+4*q+r
                    k(f"v_and_b32 v{dst}, s5, v{src}" if q & 1 else f"v_lshlrev_b32 v{dst}, 16, v{src}")
        k.wait_lg(); k("s_barrier")
        st(3)
        idx = [(jt, q) for jt in range(5) for q in range(4)]
        rd = lambda i: f"ds_read_b128 {vr(ZR+4*(i % 8), 4)}, v{vEW} offset:{idx[i][1]*5120+idx[i][0]*1024}"
        for i in range(7): k(rd(i))
        for i, (jt, q) in enumerate(idx):
            for mt in range(nmt):
                a = A2+16*mt+4*q
                k(f"{MF} {vr(a, 4)}, {vr(G+20*mt+4*jt, 4)}, {vr(ZR+4*(i % 8), 4)}, {vr(a, 4)}")
            if i+7 < 20: k(rd(i+7))
            if wlate == 5 and wat <= i < wat+10:
                q = i - wat; d = dmaW(q // 5, True)[q % 5]
                if q % 5 == 4: k(f"s_cmp_lt_u32 s{sW}, 4\ns_cbranch_scc1 {name}_f{nmt}w{q}")
                put([d])
                if q % 5 == 4: k(f"{name}_f{nmt}w{q}:")
        if "p3st" in abl: k("s_memrealtime s[62:63]")
        first = True
        for mt in range(nmt):
            for q in range(4):
                for p in range(2):
                    a = A2+16*mt+4*q+2*p
                    if first: k(f"v_mov_b64 {vr(t0, 2)}, {vr(a, 2)}\nv_pk_mul_f32 {vr(t2, 2)}, {vr(a, 2)}, {vr(a, 2)}"); first = False
                    else: k(f"v_pk_add_f32 {vr(t0, 2)}, {vr(t0, 2)}, {vr(a, 2)}\nv_pk_fma_f32 {vr(t2, 2)}, {vr(a, 2)}, {vr(a, 2)}, {vr(t2, 2)}")
        k(f"""
v_add_f32 v{t0}, v{t0}, v{t1}
v_add_f32 v{t2}, v{t2}, v{t3}
v_permlane32_swap_b32 v{t0}, v{t2}
v_add_f32 v{t0}, v{t0}, v{t2}
v_mov_b32 v{t1}, v{t0}
v_permlane16_swap_b32 v{t0}, v{t1}
v_add_f32 v{t0}, v{t0}, v{t1}
ds_write_b32 v{vSW}, v{t0}
""")
        def pack(dst, mt, h):
            for p in range(4):
                r, q = 2*h+(p >> 1), 2*(p & 1)
                k(f"v_cvt_pk_bf16_f32 v{dst+p}, v{A2+16*mt+4*q+r}, v{A2+16*mt+4*(q+1)+r}")
        for mt in range(nmt):
            for h in range(2): pack(XX+8*mt+4*h, mt, h)
        k.wait_lg(); k("s_barrier")
        if "p3st" in abl: k("s_memrealtime s[64:65]")
        for w in range(4): k(f"ds_read_b128 {vr(L+4*w, 4)}, v{vSR} offset:{16*w}")
        k(f"""v_lshl_add_u32 v{vSW}, v{vL}, 7, s{sXO}
v_mov_b32 v{vSR}, {OOB}
v_cmp_gt_u32 vcc, 16, v{vL}
v_cndmask_b32 v{vSR}, v{vSR}, v{vSW}, vcc
v_mov_b32 v{vSW}, {FV}""")
        for a, b in ((0, 2), (4, 6), (8, 10), (12, 14), (0, 4), (8, 12), (0, 8)):
            k(f"v_pk_add_f32 {vr(L+a, 2)}, {vr(L+a, 2)}, {vr(L+b, 2)}")
        k(f"""
v_mul_f32 v{t0}, {fl(1/576)}, v{L}
v_mul_f32 v{t1}, v{t0}, v{t0}
v_fmamk_f32 v{t2}, v{L+1}, {fl(1/576)}, v{t1}
v_fma_f32 v{t2}, -2.0, v{t1}, v{t2}
v_max_f32 v{t2}, 0, v{t2}
v_add_f32 v{t2}, {fl(1e-5)}, v{t2}
v_rsq_f32 v{t2}, v{t2}
v_mul_f32 v{t2}, {fl(LOG2E)}, v{t2}
v_mul_f32 v{t0}, -v{t0}, v{t2}
v_mov_b32 v{t3}, v{t2}
v_mov_b32 v{t1}, v{t0}
s_cmp_eq_u32 s{sW}, 0
s_cselect_b32 s4, 0x10001, 0
""")
        for mt in range(nmt):
            for q in range(4):
                for p in range(2):
                    a = A2+16*mt+4*q+2*p
                    k(f"v_pk_fma_f32 {vr(a, 2)}, {vr(a, 2)}, {vr(t2, 2)}, {vr(t0, 2)}")
            for h in range(2):
                pack(L+8*mt+4*h, mt, h)
                if early and nmt == 1: k(f"v_or_b32 v{L+4*h}, s4, v{L+4*h}")
                k(f"buffer_store_dwordx4 {vr(L+8*mt+4*h, 4)}, v{vDX}, {S4(sX)}, s{so[mt]} offen offset:{h*1024} sc1", tag="XF")
    def hstores(lab):
        for mt in range(2):
            if mt: k(f"s_cmp_lg_u32 s{sW}, {W2}\ns_cbranch_scc1 {lab}")
            for h in range(2): k(f"buffer_store_dwordx4 {vr(XX+8*mt+4*h, 4)}, v{vHS}, {S4(sH)}, s{[sSO, sVB][mt]} offen offset:{h*1024} sc1", tag="H")
        k(f"{lab}:")
    k(f"s_cmp_eq_u32 s{sW}, {W2}\ns_cbranch_scc1 {name}_fin2")
    final(1)
    if early:
        k(f"""s_cmp_lg_u32 s{sW}, 0
s_cbranch_scc1 {name}_fin
s_mov_b32 s3, {F_E}
buffer_store_dword v{vSW}, v{vSR}, {S4(sF)}, s3 offen sc1""")
    st2 = k.saved.pop(f"{name}_fin2"); st1 = k.st; main = k.lines
    k.lines = []; k.st = None; k.saved[f"{name}_fin2"] = st2
    k(f"{name}_fin2:")
    final(2)
    k(f"s_branch {name}_fin")
    fin2 = k.lines; k.lines = main; k.st = st1
    cold.append(lambda: k.lines.extend(fin2))
    k(f"{name}_fin:")
    if "p3st" in abl: k("s_memrealtime s[60:61]")
    if merge: k(f"s_cmp_eq_u32 s{sSU}, 1\ns_cbranch_scc1 {name}_sudone")
    else: k(f"s_cmp_eq_u32 s{sAct}, 0\ns_cbranch_scc1 {name}_su\n{'s_cmp_lg_u32' if su3 else 's_cmp_gt_u32'} s{sW}, 4\ns_cbranch_scc1 {name}_sudone\n{name}_su:")
    mlp_setup()
    k(f"{name}_sudone:")
    if wlate == 3: first_w(f"{name}_w0", (0,))
    if bulk or wlate: k(f"s_cmp_lg_u32 s{sAct}, 0\ns_cbranch_scc1 {name}_wdone")
    first_w(f"{name}_wc", (1,) if wlate == 3 else None)
    if bulk or wlate: k(f"{name}_wdone:")
    def touch(mats, lab, dst):
        k(f"""
s_lshr_b32 s3, s2, 3
s_lshl_b32 s3, s3, 3
s_add_u32 s3, s3, s{sW}
s_cmp_ge_u32 s3, {81*len(mats)}
s_cbranch_scc1 {lab}_x
s_cmp_ge_u32 s3, 81
s_cselect_b32 s4, 81, 0
s_sub_u32 s4, s3, s4
v_lshl_add_u32 v{vT0}, s4, 6, v{vL}
v_mul_u32_u24 v{vT1}, 7282, v{vT0}
v_lshrrev_b32 v{vT1}, 16, v{vT1}
v_mul_u32_u24 v{vT2}, 9, v{vT1}
v_sub_u32 v{vT2}, v{vT0}, v{vT2}
v_mul_u32_u24 v{vT1}, {9216 if mats[0] != sD else 1152}, v{vT1}
v_lshl_add_u32 v{vT1}, v{vT2}, 7, v{vT1}
s_mul_i32 s4, s{sXC}, {1152 if mats[0] != sD else 576*1152}
""")
        if len(mats) == 2: k(f"s_cmp_ge_u32 s3, 81\ns_cbranch_scc1 {lab}_u")
        k(f"buffer_load_dword v{dst}, v{vT1}, {S4(mats[0])}, s4 offen {TPOL if len(mats) == 2 else TPOLD}", tag="touch")
        if len(mats) == 2: k(f"s_branch {lab}_x\n{lab}_u:\nbuffer_load_dword v{dst}, v{vT1}, {S4(mats[1])}, s4 offen {TPOL}")
        k(f"{lab}_x:")
    vTW = 31
    k(f"""
s_cmp_eq_u32 s{sB}, 0
s_cselect_b32 s{sV}, s{sG}, s{sU}
s_cselect_b32 s{sV+1}, s{sG+1}, s{sU+1}
s_mov_b32 s{sV+2}, {N_W}
s_mov_b32 s{sV+3}, 0x20000
s_and_b32 s3, s{sW}, 3
s_mul_i32 s3, s3, 5
v_add_u32 v{vTW}, s3, v{vL}
v_cmp_lt_u32 vcc, 8, v{vTW}
v_cndmask_b32 v{vT0}, 0, 1, vcc
v_mul_u32_u24 v{vT1}, 9, v{vT0}
v_sub_u32 v{vT1}, v{vTW}, v{vT1}
s_lshr_b32 s3, s{sW}, 2
s_xor_b32 s3, s3, 1
s_xor_b32 s3, s3, s{sMT}
s_lshl_b32 s3, s3, 1
v_add_u32 v{vT0}, s3, v{vT0}
v_and_b32 v{vT2}, 24, v{vT0}
v_add_u32 v{vT0}, v{vT0}, v{vT2}
v_mul_u32_u24 v{vT0}, 9216, v{vT0}
v_lshl_add_u32 v{vT0}, v{vT1}, 7, v{vT0}
s_mul_i32 s3, s{sXC}, 1152
v_add_u32 v{vT0}, s3, v{vT0}
v_mov_b32 v{vT1}, {OOB}
v_cmp_gt_u32 vcc, 18, v{vTW}
v_cndmask_b32 v{vT0}, v{vT1}, v{vT0}, vcc
v_cmp_gt_u32 vcc, 5, v{vL}
v_cndmask_b32 v{vTW}, v{vT1}, v{vT0}, vcc
""")
    def roll(s):
        if "notouch" in abl or "noroll" in abl or s >= 18: return []
        return [(f"s_mov_b32 s94, {((s >> 1)*64 + (s & 1)*8)*9216}\nbuffer_load_dword v28, v{vTW}, {S4(sV)}, s94 offen {TPOL}", "touch")]
    if not early:
        k(f"""s_cmp_eq_u32 s{sAct}, 0
s_cbranch_scc1 {name}_p3done
""")
        k.wait_lg(); k.wait_vm("XF")
        k(f"""s_barrier
s_cmp_lg_u32 s{sW}, 0
s_cbranch_scc1 {name}_p3sig
buffer_store_dword v{vSW}, v{30 if nl else vSR}, {S4(sF)}, 0 offen sc1""")
        if nl:
            for w in range(4): k(f"ds_read_b128 {vr(MB_+4*w, 4)}, v{vEW} offset:{16*w}")
            k(f"""s_lshl_b32 s3, s{sS2}, 1
s_add_u32 s3, s3, s{sNT}
s_bfe_u32 s4, s3, 0x10002
s_lshl_b32 s4, s4, 8
s_and_b32 s3, s3, 3
s_lshl_b32 s3, s3, 2
s_add_u32 s3, s3, s4
s_lshl_b32 s4, s{sMT}, 9
s_add_u32 s3, s3, s4
s_add_u32 s3, s3, {F_R}
v_lshl_add_u32 v{t1}, v{vL}, 4, s3
v_cmp_gt_u32 vcc, 16, v{vL}
v_cndmask_b32 v{t1}, v{vSR}, v{t1}, vcc""")
            for a, b in ((1, 3), (5, 7), (9, 11), (13, 15), (1, 5), (9, 13), (1, 9)): k(f"v_add_f32 v{MB_+a}, v{MB_+a}, v{MB_+b}")
            k(f"""v_mov_b32 v{t2}, {fl(1e-5)}
v_fmac_f32 v{t2}, {fl(1/576)}, v{MB_+1}
v_rsq_f32 v{t2}, v{t2}
v_mul_f32 v{t2}, {fl(LOG2E)}, v{t2}""")
            k(f"buffer_store_dword v{t2}, v{t1}, {S4(sF)}, 0 offen sc1", tag="R2")
        k(f"{name}_p3sig:")
        if bulk == 2 and not late1: first_w(f"{name}_wd", (1,))
        elif wlate == 4: first_w(f"{name}_wd", (0,))
        elif wlate == 1 and not bulk: first_w(f"{name}_wd")
        elif wlate == 3: first_w(f"{name}_wd", (1,))
        if not hlate: hstores(f"{name}_hs")
        if wlate == 2: first_w(f"{name}_wd")
        k(f"{name}_p3done:")
    st(4)

    def path(five):
        nt5 = 5 if five else 4
        nf = 2*nt5
        P = "a" if five else "b"
        k(f"""
s_lshl_b32 s3, s{sMT}, 4
s_add_u32 s3, s3, s{sSL}
s_lshl_b32 s3, s3, 7
s_lshl_b32 s4, s{sW}, 2
s_add_u32 s{sLN}, s3, s4
s_add_u32 s{sS1}, s{sLN}, {F_E if early else 0}
buffer_load_dword v{vQ}, v{vZ}, {S4(sF)}, s{sS1} offen sc1
v_lshrrev_b32 v{vT0}, 4, v{vL}
v_bfe_u32 v{vT1}, v{vL}, 2, 2
v_lshl_add_u32 v{vT2}, v{vT0}, 3, v{vT1}
v_mul_u32_u24 v{vT2}, 576, v{vT2}
v_and_b32 v{vWB[0]}, 3, v{vL}
v_lshl_add_u32 v{vT2}, v{vWB[0]}, 3, v{vT2}
s_mul_i32 s3, s{sA}, 9
s_add_u32 s3, s3, {0 if five else 5}
s_lshl_b32 s4, s3, 5
s_add_u32 s4, s4, {WO}
v_add_u32 v{vT2}, s4, v{vT2}
s_and_b32 s3, s3, 1
s_cmp_eq_u32 s3, 0
s_cselect_b32 s3, 32, -32
v_and_b32 v{vWB[0]}, 1, v{vT0}
v_mul_i32_i24 v{vWB[0]}, s3, v{vWB[0]}
v_add_u32 v{vWA[0]}, v{vT2}, v{vWB[0]}
v_sub_u32 v{vWB[0]}, v{vT2}, v{vWB[0]}
s_lshl_b32 s3, s{sRG}, 12
s_add_u32 s3, s3, {xslot(0)}
v_add_u32 v{vXr[0]}, s3, v{vDX}
""")
        if pair: k(f"v_add_u32 v{vWA[1]}, 73728, v{vWA[0]}\nv_add_u32 v{vWB[1]}, 73728, v{vWB[0]}")
        for i in (() if pair else (1, 2)):
            k(f"v_add_u32 v{vXr[i]}, {SLOT_A[i]}, v{vXr[0]}\nv_add_u32 v{vWA[i]}, {SLOT_A[i]}, v{vWA[0]}\nv_add_u32 v{vWB[i]}, {SLOT_A[i]}, v{vWB[0]}")
        k(f"""
v_lshrrev_b32 v{vDD}, 3, v{vL}
v_mul_u32_u24 v{vDD}, 1152, v{vDD}
v_bfe_u32 v{vT2}, v{vL}, 1, 2
v_xor_b32 v{vT2}, v{vT2}, v{vT0}
v_lshl_add_u32 v{vDD}, v{vT2}, 5, v{vDD}
v_and_b32 v{vT2}, 1, v{vL}
v_lshl_add_u32 v{vDD}, v{vT2}, 4, v{vDD}
s_mul_i32 s3, s{sCG if LP else sW}, {9 if LP else 4 if five else 5}
s_sub_u32 s3, s3, {0 if five or LP else 4}
s_lshl_b32 s{sM0d}, s3, 10
s_mul_i32 s3, s3, {8*1152}
s_mul_i32 s{sKD}, s{sSL}, {288*1152}
s_add_u32 s{sKD}, s{sKD}, s3
v_lshl_add_u32 v{vWD[0]}, v{vT0}, 2, v{vT1}
v_bfe_u32 v{vT2}, v{vWD[0]}, 1, 2
v_xor_b32 v{vT2}, s{sCG}, v{vT2}
v_lshlrev_b32 v{vT2}, 5, v{vT2}
v_lshl_add_u32 v{vWD[0]}, v{vWD[0]}, 7, v{vT2}
v_and_b32 v{vT2}, 3, v{vL}
v_lshl_add_u32 v{vWD[0]}, v{vT2}, 3, v{vWD[0]}
v_add_u32 v{vWD[1]}, {RING_B[1]}, v{vWD[0]}
v_add_u32 v{vWD[2]}, {RING_B[2]}, v{vWD[0]}
v_add_u32 v{vWD[3]}, {RING_B[3]}, v{vWD[0]}
v_add_u32 v{vWD[0]}, {RING_B[0]}, v{vWD[0]}
s_xor_b32 s3, s{sB if LP else sRG}, {1 if LP and not five else 0}
s_mul_i32 s3, s3, {4*9*1024}
s_add_u32 s3, s3, {HH}
v_add_u32 v{vHR}, s3, v{vDX}
s_mul_i32 s3, s{sRG}, {4*9*1024}
s_add_u32 s3, s3, {HH}
s_mul_i32 s4, s{sA}, 9
s_add_u32 s4, s4, {0 if five else 5}
s_lshr_b32 s5, s4, 1
s_lshl_b32 s5, s5, 10
s_add_u32 s3, s3, s5
s_and_b32 s4, s4, 1
s_lshl_b32 s5, s4, 3
s_add_u32 s5, s5, s3
v_add_u32 v{vHW}, s5, v{vDX}
s_mul_i32 s5, s4, 1024
s_add_u32 s5, s5, s3
s_xor_b32 s4, s4, 1
s_lshl_b32 s4, s4, 3
s_add_u32 s5, s5, s4
v_add_u32 v{vHW2}, s5, v{vDX}
v_bfe_u32 v{vT2}, v{vL}, 1, 3
v_lshlrev_b32 v{vPO}, 10, v{vT2}
v_and_b32 v{vT2}, 1, v{vL}
v_lshl_add_u32 v{vPO}, v{vT2}, 6, v{vPO}
v_lshl_add_u32 v{vPO}, v{vT0}, 4, v{vPO}
""")
        if LP:
            k(f"""s_lshl_b32 s3, s{sMT}, 1
s_add_u32 s4, s3, s{sB}
s_mul_i32 s{sRD}, s4, {8*9*8192}
s_xor_b32 s4, s4, {0 if five else 1}
s_lshl_b32 s4, s4, 3
s_add_u32 s4, s4, s{sXC}
s_mul_i32 s{sPO}, s4, {9*8192}
s_lshl_b32 s4, s{sCG}, 8
s_add_u32 s{sPO}, s{sPO}, s4
s_xor_b32 s3, s2, {0 if five else 128}
s_lshl_b32 s3, s3, 9
s_lshl_b32 s4, s{sCG}, 7
s_add_u32 s3, s3, s4
s_add_u32 s{sF1}, s3, {F_1}
s_getreg_b32 s{sLoc}, hwreg(HW_REG_XCC_ID, 0, 4)
s_add_u32 s{sLoc}, s{sLoc}, 1""")
            if five:
                for i in range(4): k(f"v_mov_b32 v{28+i}, 0")
        else:
            k(f"""s_mul_i32 s{sRD}, s{sMT}, {16*9*16384}
s_mul_i32 s3, s{sSL}, {9*16384}
s_add_u32 s{sPO}, s{sRD}, s3
s_lshl_b32 s4, s{sRG}, 13
s_add_u32 s{sPO}, s{sPO}, s4
s_lshl_b32 s4, s{sCG}, 8
s_add_u32 s{sPO}, s{sPO}, s4""")
        if idlepf:
            k(f"s_cmp_lg_u32 s{sAct}, 0\ns_cbranch_scc1 {name}_{P}ip")
            if late1: put(dmaW(1, not five))
            for q in range(2, ahead): put(roll(q))
            k(f"{name}_{P}ip:")
        elif not five and not early:
            for q in range(2, ahead): put(roll(q))
        if droll and five:
            n = -(-(5184//droll)//128)
            k(f"""s_lshr_b32 s3, s2, 3
s_lshl_b32 s3, s3, 2
s_add_u32 s3, s3, s{sW}
s_mul_i32 s3, s3, {n}
v_add_u32 v{vT0}, s3, v{vL}
v_mov_b32 v{vT1}, {OOB}
v_cmp_gt_u32 vcc, {5184//droll}, v{vT0}
v_lshlrev_b32 v{vT0}, 7, v{vT0}
v_cndmask_b32 v{vT0}, v{vT1}, v{vT0}, vcc
v_cmp_gt_u32 vcc, {n}, v{vL}
v_cndmask_b32 v{vT2}, v{vT1}, v{vT0}, vcc""")
        xflag = lambda so: f"buffer_load_dword v{vQ}, v{vZ}, {S4(sF)}, s{so} offen sc1"
        spin(f"{name}_{P}x", xflag(sS1), notyet(vQ))
        if early:
            ld = f"buffer_load_dwordx4 v[64:67], v{vDX}, {S4(sX)}, s{sKX} offen sc1\nbuffer_load_dwordx4 v[68:71], v{vDX}, {S4(sX)}, s{sKX} offen offset:1024 sc1"
            k(ld)
            k(f"v_add_u32 v{vT0}, s{sM0x}, v{vDX}\ns_mov_b32 s4, 0x10001")
            spin(f"{name}_{P}t", ld, f"v_and_b32 v{vT1}, v64, v68\nv_and_b32 v{vT1}, s4, v{vT1}\nv_cmp_ne_u32 vcc, s4, v{vT1}")
            k(f"s_cmp_eq_u32 s{sAct}, 0\ns_cbranch_scc1 {name}_{P}hs")
            hstores(f"{name}_{P}hs")
            if not five and not idlepf:
                for q in range(2, ahead): put(roll(q))
            k(f"ds_write_b128 v{vT0}, v[64:67] offset:{SLOT_A[0]}\nds_write_b128 v{vT0}, v[68:71] offset:{SLOT_A[1]}")
        else:
            put(dmaX(0)); put(dmaX(1))
        if late1 == 1:
            if idlepf: k(f"s_cmp_eq_u32 s{sAct}, 0\ns_cbranch_scc1 {name}_{P}l1")
            put(dmaW(1, not five))
            if idlepf: k(f"{name}_{P}l1:")
        if droll and five: k(f"v_mov_b32 v31, v{vT2}\ns_mul_i32 s{sS1}, s{sXC}, {576*1152}")
        if hlate:
            k.wait_vm("A0", "XF", "A1" if pair else "-")
            k(f"s_cmp_eq_u32 s{sAct}, 0\ns_cbranch_scc1 {name}_{P}hl")
            hstores(f"{name}_{P}hl")
        st(5)
        ACC = 256-nf*16; XB = [64, 80]; WR = 32
        def acc(f, nt): return ACC + f*16 + nt*4
        def wreg(s, f): return WR + 4*((s*nf+f) % 8)
        def wread(s, f):
            i, u = f >> 1, f & 1
            va = (vWA if i % 2 == 0 else vWB)[s % 3]; d = wreg(s, f)
            return [f"ds_read_b64_tr_b16 v[{d+2*h}:{d+2*h+1}], v{va} offset:{h*4*576 + i*32 + u*18432}" for h in range(2)]
        def mfa(s, f):
            w = wreg(s, f)
            return [f"{MF} {vr(acc(f, nt), 4)}, {vr(w, 4)}, {vr(XB[s % 2]+4*nt, 4)}, {'0' if s == 0 else vr(acc(f, nt), 4)}" for nt in range(4)]
        vRD, vHO, vOO, vFL, vFS, SEL, vFV, vTR, vHT = 2, 3, 4, 8, 9, 12, 5, 10, 11
        assert not fuse
        vSC = 27
        sRP, sEX = 44, 48
        late = f"""v_mov_b32 v{vFS}, {OOB}
v_lshrrev_b32 v5, 4, v{vL}
v_and_b32 v6, 3, v{vL}
v_bfe_u32 v7, v{vL}, 3, 1
s_and_b32 s4, s{sSL}, 3
v_xor_b32 v14, s4, v5
v_mul_u32_u24 v{vRD}, {9*16384}, v14
v_lshlrev_b32 v{vHT}, 8, v7
v_and_b32 v14, 7, v{vL}
v_lshl_add_u32 v{vHT}, v14, 4, v{vHT}
v_add_u32 v{vRD}, v{vRD}, v{vHT}
s_lshl_b32 s4, s{sRG}, 1
v_add_u32 v7, s4, v7
s_lshl_b32 s4, s{sA}, 7
s_lshl_b32 s5, s{sRG}, 9
s_add_u32 s4, s4, s5
s_add_u32 s5, s4, {OWN}
v_add_u32 v{vHT}, s5, v{vHT}
s_add_u32 s{sRD}, s{sRD}, s4
s_lshl_b32 s4, s{sSL}, 10
s_add_u32 s{sRD}, s{sRD}, s4
s_and_b32 s4, s{sSL}, 12
s_mul_i32 s{sRP}, s4, {9*16384}
s_add_u32 s{sRP}, s{sRP}, s{sRD}
s_xor_b32 s5, s4, 4
s_mul_i32 s{sRP+1}, s5, {9*16384}
s_add_u32 s{sRP+1}, s{sRP+1}, s{sRD}
s_xor_b32 s5, s4, 8
s_mul_i32 s{sRP+2}, s5, {9*16384}
s_add_u32 s{sRP+2}, s{sRP+2}, s{sRD}
s_xor_b32 s5, s4, 12
s_mul_i32 s{sRP+3}, s5, {9*16384}
s_add_u32 s{sRP+3}, s{sRP+3}, s{sRD}
v_and_b32 v{vTR}, 1023, v{vPO}
s_lshl_b32 s4, s{sCG}, 8
s_add_u32 s4, s4, {OWN}
v_add_u32 v{vTR}, s4, v{vTR}
s_lshr_b32 s3, s{sSL}, 3
s_and_b32 s5, s{sSL}, 7
v_lshrrev_b32 v14, 10, v{vPO}
v_cmp_eq_u32 s[{sEX}:{sEX+1}], s5, v14
s_cmp_eq_u32 s3, s{sRG}|s_cselect_b64 s[{sEX}:{sEX+1}], s[{sEX}:{sEX+1}], 0
{f"v_cndmask_b32 v{vPO}, v{vPO}, v{vFS}, s[{sEX}:{sEX+1}]" if skip else ""}
s_lshl_b32 s5, s5, 7
s_lshl_b32 s{sLN}, s{sMT}, 2
s_lshl_b32 s3, s3, 1
s_add_u32 s{sLN}, s{sLN}, s3
s_add_u32 s{sLN}, s{sLN}, s{sA}
s_lshl_b32 s3, s{sLN}, 1
v_add_u32 v{vHO}, s3, v5
v_mul_u32_u24 v{vHO}, 18432, v{vHO}
v_lshrrev_b32 v14, 1, v6
v_lshl_add_u32 v{vHO}, v14, 10, v{vHO}
v_lshl_add_u32 v{vHO}, v7, 4, v{vHO}
v_and_b32 v14, 1, v6
v_lshl_add_u32 v{vHO}, v14, 3, v{vHO}
v_add_u32 v{vHO}, s5, v{vHO}
v_bfe_u32 v14, v{vL}, 2, 1
v_lshl_add_u32 v{vHO}, v14, 6, v{vHO}
s_lshr_b32 s4, s5, 6
v_lshl_add_u32 v{vOO}, v5, 4, s4
v_add_u32 v{vOO}, v{vOO}, v14
v_lshl_add_u32 v{vOO}, v{vOO}, 6, s{sLN}
v_mul_u32_u24 v{vOO}, 1152, v{vOO}
v_lshl_add_u32 v{vOO}, v7, 5, v{vOO}
v_lshl_add_u32 v{vOO}, v6, 3, v{vOO}
v_cmp_gt_u32 vcc, 32, v{vL}
v_cndmask_b32 v{vHO}, v{vFS}, v{vHO}, vcc
v_cndmask_b32 v{vOO}, v{vFS}, v{vOO}, vcc
v_lshlrev_b32 v14, 4, v14
v_lshl_add_u32 v14, v5, 2, v14
s_lshl_b32 s4, s{sSL}, 5
s_lshl_b32 s5, s{sA}, 3
s_add_u32 s4, s4, s5
s_lshl_b32 s5, s{sMT}, 9
s_add_u32 s4, s4, s5
s_add_u32 s4, s4, {F_R}
v_add_u32 v{vSC}, s4, v14
s_lshl_b32 s4, s{sMT}, 11
s_add_u32 s4, s4, {F_2}
s_lshl_b32 s5, s{sSL}, 2
s_add_u32 s5, s5, s4
v_lshl_add_u32 v5, v{vL}, 7, s5
v_cmp_gt_u32 vcc, 16, v{vL}
v_cndmask_b32 v{vFS}, v{vFS}, v5, vcc
s_lshl_b32 s5, s{sSL}, 7
s_add_u32 s5, s5, s4
v_and_b32 v5, 15, v{vL}
v_lshl_add_u32 v{vFL}, v5, 2, s5
s_mov_b32 s{sLN}, {LN2!r}""".split("\n")
        late = [x.replace('|', '\n') for x in late]
        CNT = 73728; SK = 72; vMK = 16
        if LP and five:
            late = f"""v_mov_b32 v{vFS}, {OOB}
s_lshl_b32 s4, s{sMT}, 11
s_lshl_b32 s5, s{sB}, 7
s_add_u32 s4, s4, s5
s_add_u32 s4, s4, {F_2}
s_lshl_b32 s5, s{sXC}, 2
s_add_u32 s5, s5, s4
v_lshl_add_u32 v5, v{vL}, 8, s5
v_cmp_gt_u32 vcc, 8, v{vL}
v_cndmask_b32 v{vFS}, v{vFS}, v5, vcc
v_mov_b32 v{vFL}, {CNT}""".split("\n")
        elif LP:
            late = f"""v_mov_b32 v{vFS}, {OOB}
s_lshl_b32 s4, s{sMT}, 11
s_lshl_b32 s5, s{sSL}, 7
s_add_u32 s4, s4, s5
s_add_u32 s4, s4, {F_2}
v_and_b32 v5, 7, v{vL}
v_lshl_add_u32 v{vFL}, v5, 2, s4
s_lshl_b32 s5, s{sXC}, 10
s_add_u32 s{sRD}, s{sRD}, s5
v_lshrrev_b32 v{vTR}, 3, v{vL}
v_mul_u32_u24 v{vTR}, {9*8192}, v{vTR}
v_lshl_add_u32 v{vTR}, v5, 7, v{vTR}
v_add_u32 v{vTR}, s{sRD}, v{vTR}
v_lshlrev_b32 v{vRD}, 4, v5
v_lshrrev_b32 v5, 4, v{vL}
v_and_b32 v6, 3, v{vL}
v_bfe_u32 v7, v{vL}, 3, 1
v_mul_u32_u24 v14, {9*8192}, v5
v_add_u32 v{vRD}, v{vRD}, v14
v_lshl_add_u32 v{vRD}, v7, 8, v{vRD}
s_lshl_b32 s4, s{sRG}, 1
v_add_u32 v7, s4, v7
s_lshl_b32 s4, s{sA}, 7
s_add_u32 s{sRD}, s{sRD}, s4
s_lshl_b32 s4, s{sRG}, 9
s_add_u32 s{sRD}, s{sRD}, s4
s_lshl_b32 s5, s{sXC}, 7
s_lshl_b32 s{sLN}, s{sMT}, 2
s_lshl_b32 s3, s{sB}, 1
s_add_u32 s{sLN}, s{sLN}, s3
s_lshl_b32 s3, s{sLN}, 1
s_add_u32 s3, s3, s{sCG}
s_mul_i32 s3, s3, 18432
s_add_u32 s3, s3, s5
v_lshl_add_u32 v{vHT}, v{vL}, 10, s3
v_cmp_gt_u32 vcc, 18, v{vL}
v_cndmask_b32 v{vHT}, v{vFS}, v{vHT}, vcc
s_add_u32 s{sLN}, s{sLN}, s{sA}
s_lshl_b32 s3, s{sLN}, 1
v_add_u32 v{vHO}, s3, v5
v_mul_u32_u24 v{vHO}, 18432, v{vHO}
v_lshrrev_b32 v14, 1, v6
v_lshl_add_u32 v{vHO}, v14, 10, v{vHO}
v_lshl_add_u32 v{vHO}, v7, 4, v{vHO}
v_and_b32 v14, 1, v6
v_lshl_add_u32 v{vHO}, v14, 3, v{vHO}
v_add_u32 v{vHO}, s5, v{vHO}
v_bfe_u32 v14, v{vL}, 2, 1
v_lshl_add_u32 v{vHO}, v14, 6, v{vHO}
s_lshl_b32 s4, s{sXC}, 1
v_lshl_add_u32 v{vOO}, v5, 4, s4
v_add_u32 v{vOO}, v{vOO}, v14
v_lshl_add_u32 v{vOO}, v{vOO}, 6, s{sLN}
v_mul_u32_u24 v{vOO}, 1152, v{vOO}
v_lshl_add_u32 v{vOO}, v7, 5, v{vOO}
v_lshl_add_u32 v{vOO}, v6, 3, v{vOO}
v_cmp_gt_u32 vcc, 32, v{vL}
v_cndmask_b32 v{vHO}, v{vFS}, v{vHO}, vcc
v_cndmask_b32 v{vOO}, v{vFS}, v{vOO}, vcc
s_mov_b32 s{sLN}, {LN2!r}""".split("\n")
        sel = f"""v_and_b32 v5, 1, v{vL}
v_lshlrev_b32 v5, 4, v5
s_movk_i32 s3, 0x3f80
v_lshlrev_b32 v5, v5, s3
v_bfe_u32 v6, v{vL}, 1, 3""".split("\n")
        if LP and five:
            sel += [f"v_lshrrev_b32 v7, 3, v{vL}", f"v_and_b32 v7, 6, v7", f"v_sub_u32 v6, v6, v7"]
            for i in range(2): sel += [f"v_cmp_eq_u32 vcc, {i}, v6", f"v_cndmask_b32 v{SK+2+i}, 0, v5, vcc"]
            sel += [f"v_mov_b32 v{SK+i}, 0" for i in (0, 1, 4, 5)]
            sel += [f"ds_write_b64 v{vFL}, v[{SK}:{SK+1}] offset:{8*i}" for i in range(3)]
        else:
            for i in range(4): sel += [f"v_cmp_eq_u32 vcc, {i}, v6", f"v_cndmask_b32 v{SEL+i}, 0, v5, vcc"]
        sel += [f"v_mov_b32 v{vFV}, {FV}", f"v_mov_b32 v{vMK}, 0x10001"]
        def split_m0(d):
            out = []
            for t, tag in d:
                ls = t.split("\n")
                out += ["\n".join(ls[:-1]), (ls[-1], tag)]
            return out
        def spread_in(seq, dma, every):
            items = split_m0(dma); out = []; n = 0; j = 0
            for x in seq:
                out.append(x)
                if isinstance(x, str) and x.startswith("v_mfma"):
                    n += 1
                    if j < len(items) and (j % 2 == 1 or n % every == every-1): out.append(items[j]); j += 1
            return out + items[j:]
        k.wait_lg(); k.wait_vm("A0", "XF", "A1" if pair else "-"); k("s_barrier")
        if early and five:
            k(f"s_cmp_eq_u32 s{sAct}, 0\ns_cbranch_scc1 {name}_xsig\ns_cmp_lg_u32 s{sW}, 0\ns_cbranch_scc1 {name}_xsig\nbuffer_store_dword v{vSW}, v{vSR}, {S4(sF)}, 0 offen sc1\n{name}_xsig:")
        st(6)
        if prio == ("lo" if five else "hi"): k("s_setprio 1")
        def glu(i):
            out = []
            for np_ in range(2):
                g, u = acc(2*i, 2*np_), acc(2*i+1, 2*np_)
                if nl: out += [f"v_pk_mul_f32 {vr(g+r, 2)}, {vr(g+r, 2)}, {vr(64+4*np_+2*(r >> 2), 2)}" for r in range(0, 8, 2)]
                out += [f"v_exp_f32 v{g+r}, -v{g+r}" for r in range(8)]
                out += [f"v_pk_add_f32 {vr(g+r, 2)}, {vr(g+r, 2)}, s[4:5]" for r in range(0, 8, 2)] if pk else [f"v_add_f32 v{g+r}, 1.0, v{g+r}" for r in range(8)]
                out += [f"v_rcp_f32 v{g+r}, v{g+r}" for r in range(8)]
                out += [f"v_pk_mul_f32 {vr(g+r, 2)}, {vr(g+r, 2)}, {vr(u+r, 2)}" for r in range(0, 8, 2)] if pk else [f"v_mul_f32 v{g+r}, v{g+r}, v{u+r}" for r in range(8)]
                for q in range(2): out += [f"v_cvt_pk_bf16_f32 v{u+4*q}, v{g+4*q}, v{g+4*q+1}", f"v_cvt_pk_bf16_f32 v{u+4*q+1}, v{g+4*q+2}, v{g+4*q+3}"]
            return out
        hwrite = lambda i: [f"ds_write_b64 v{vHW if i % 2 == 0 else vHW2}, {vr(acc(2*i+1, nt), 2)} offset:{nt*9*1024 + (i >> 1)*1024}" for nt in range(4)]
        xread = lambda s: [f"ds_read_b128 {vr(XB[s % 2]+4*nt, 4)}, v{vXr[s % 3]} offset:{nt*1024}" for nt in range(4)]
        dtouch = [f"""s_lshr_b32 s3, s2, 3
s_mul_i32 s3, s3, 18
s_mul_i32 s4, s{sXC}, 576
s_add_u32 s3, s3, s4
v_add_u32 v28, s3, v{vL}
v_mul_u32_u24 v28, 1152, v28
v_mov_b32 v29, {OOB}
v_cmp_gt_u32 vcc, 18, v{vL}
v_cndmask_b32 v28, v29, v28, vcc
s_lshl_b32 s3, s{sW}, 7
s_add_u32 s3, s3, 256
s_cmp_eq_u32 s{sW}, 7
s_cselect_b32 s3, {OOB}, s3""", (f"buffer_load_dword v26, v28, {S4(sD)}, s3 offen {TPOLD}", "touch")]
        CT = [int(c, 36) for c in str(ctouch)] if ctouch else []
        def code_touch(n):
            if n not in CT or not five: return
            k(f"""s_getpc_b64 s[4:5]
{name}_ct{n}:
s_sub_u32 s4, s4, {name}_ct{n}-{name}_kernel
s_subb_u32 s5, s5, 0
s_bfe_u32 s3, s2, 0x30003
s_lshl_b32 s3, s3, 2
s_add_u32 s3, s3, s{sW}
s_lshl_b32 s3, s3, 11
v_and_b32 v{vQ}, 15, v{vL}
v_lshl_add_u32 v{vQ}, v{vQ}, 7, s3
v_min_u32 v{vQ}, {name}_code_end-{name}_kernel-4, v{vQ}""")
            k(f"global_load_dword v26, v{vQ}, s[4:5]", tag="touch")
        NS = 0 if pair else 16 if fuse else 18
        if pair:
            wj = lambda p, j: WR + 4*((p*2*nf + j) % 8)
            def rd(p, j):
                f, c = j >> 1, j & 1; i, u = f >> 1, f & 1
                va = (vWA if i % 2 == 0 else vWB)[p & 1]; d = wj(p, j)
                return [f"ds_read_b64_tr_b16 v[{d+2*h}:{d+2*h+1}], v{va} offset:{c*36864 + h*4*576 + i*32 + u*18432}" for h in range(2)]
            def mm(p, f, cs=(0, 1)):
                return [f"{MF} {vr(acc(f, nt), 4)}, {vr(wj(p, 2*f+c), 4)}, {vr(XB[c]+4*nt, 4)}, {'0' if p == 0 and c == 0 else vr(acc(f, nt), 4)}" for nt in range(4) for c in cs]
            xr = lambda c: [f"ds_read_b128 {vr(XB[c]+4*nt, 4)}, v{vXr[0]} offset:{c*8192 + nt*1024}" for nt in range(4)]
            defer = lambda p: mm(p, nf-2, (1,)) + mm(p, nf-1, (1,))
            for p in range(9):
                put(xr(0))
                for j in range(4): put(rd(p, j))
                dw = (dmaW(2*p+2, not five) + dmaW(2*p+3, not five)) if p < 8 else (dmaB(0, five) + dmaB(1, five))
                dx = (dmaX(2*p+2) + dmaX(2*p+3)) if p < 8 else []
                if not five: dx = dx + roll(2*p+ahead) + roll(2*p+1+ahead)
                head = (defer(p-1) if p else []) + xr(1)
                body = []
                for f in range(nf):
                    fill = (rd(p, 2*f+4) + rd(p, 2*f+5)) if f+2 < nf else []
                    if p == 8: fill = fill + late[f*len(late)//nf:(f+1)*len(late)//nf]
                    body.append(interleave(mm(p, f, (0, 1) if f < nf-2 else (0,)), fill))
                first = head + sum(body[:upos], []); rest = sum(body[upos:], [])
                sp = spread if five or not spread4 else spread4
                n1 = min(len(dw), sum(1 for x in first if isinstance(x, str) and x.startswith("v_mfma"))//(sp0 or sp))
                put(spread_in(first, dw[:n1], sp0 or sp))
                if p < 8: k("s_barrier")
                put(spread_in(rest, dx[:2] + dw[n1:] + dx[2:], sp))
                if p == 8 and depi: put(dtouch)
                k.wait_lg(); k.wait_vm(f"A{2*p+2}", f"A{2*p+3}"); k("s_barrier")
        for s in range(NS):
            put(xread(s))
            for f in range(look): put(wread(s, f))
            if wlate == 4 and s == 0:
                k(f"s_cmp_eq_u32 s{sAct}, 0\ns_cbranch_scc1 {name}_{P}w1")
                put(dmaW(1, not five))
                k(f"{name}_{P}w1:")
            dma = dmaX(s+2) + dmaW(s+2, not five) if s+2 < 18 else dmaB(s-16, five)
            if early and s == 0: dma = dmaW(2, not five) + [("s_nop 0\n" + xflag(sLN), "XQ")]
            if late1 == 2 and s == 0: dma = dmaW(1, not five) + dma
            if early and s == 1:
                spin(f"{name}_{P}y", xflag(sLN), f"v_cmp_eq_u32 vcc, 0, v{vQ}")
                dma = dmaX(2) + dma
            if not five: dma = dma + roll(s+ahead)
            if droll and five and dstage <= s < dstage+droll:
                dma = dma + [(f"s_add_u32 s94, s{sS1}, {(s-dstage)*(5184//droll)*128}\nbuffer_load_dword v28, v31, {S4(sD)}, s94 offen {TPOLD}", "touch")]
            if LP and five and istage <= s < istage+4:
                dma = dma + [(f"s_add_u32 s94, s{sPO}, {(5+s-istage)*8192}\nbuffer_store_dwordx4 v[28:31], v{vPO}, {S4(sP)}, s94 offen offset:{h*128} sc1", "I") for h in range(2)]
            seq = sum((mfa(s-1, f) for f in range(nf-nd, nf)), []) if s > 0 else []
            for f in range(nf-nd):
                extra = late[f*len(late)//(nf-nd):(f+1)*len(late)//(nf-nd)] if s == 17 else []
                mm_ = mfa(s, f)
                if "chain" in abl:
                    f0 = f & ~1
                    mm_ = [f"{MF} {vr(acc(f0 + (s & 1), nt), 4)}, {vr(wreg(s, f0+c), 4)}, {vr(XB[s % 2]+4*nt, 4)}, {vr(acc(f0 + (s & 1), nt), 4)}" for nt in ((0, 1) if f % 2 == 0 else (2, 3)) for c in range(2)]
                seq += interleave(mm_, (wread(s, f+look) if f+look < nf else []) + extra)
            put(spread_in(seq, dma, spread if len(dma) < 8 else 2))
            if s == dstage and "notouch" not in abl and not droll and not depi: touch([sD], f"{name}_{P}td", 27)
            if depi == s and s > 1: put(dtouch)
            code_touch(s)
            if ptouch and five and s == ptouch:
                k(f"""v_lshrrev_b32 v{vT0}, 2, v{vL}
s_lshl_b32 s3, s{sW}, 2
v_add_u32 v{vT0}, s3, v{vT0}
v_mul_u32_u24 v{vT0}, {9*16384 + 1024}, v{vT0}
v_and_b32 v{vT1}, 3, v{vL}
v_min_u32 v{vT1}, 2, v{vT1}
v_lshl_add_u32 v{vT0}, v{vT1}, 16, v{vT0}
v_mov_b32 v{vT1}, {OOB}
v_cmp_gt_u32 vcc, 16, v{vL}
v_cndmask_b32 v{vT0}, v{vT1}, v{vT0}, vcc""")
                k(f"buffer_load_dword v28, v{vT0}, {S4(sP)}, s{sRD} offen", tag="touch")
            if nl:
                el = f"buffer_load_dword v29, v{vT2}, {S4(sF)}, 0 offen sc1"
                if s == 3 and five:
                    k(f"s_cmp_eq_u32 s{sAct}, 0\ns_cbranch_scc1 {name}_rsig\ns_cmp_lg_u32 s{sW}, 0\ns_cbranch_scc1 {name}_rsig")
                    k.wait_vm("R2")
                    k(f"v_mov_b32 v{vT0}, 1\ns_mov_b32 s3, {F_E}\nbuffer_store_dword v{vT0}, v30, {S4(sF)}, s3 offen sc1\n{name}_rsig:")
                if s == 12:
                    k(f"s_and_b32 s3, s{sLN}, -128\ns_lshl_b32 s4, s{sRG}, 4\ns_add_u32 s3, s3, s4\ns_add_u32 s3, s3, {F_E}\nv_and_b32 v{vT2}, 3, v{vL}\nv_lshl_add_u32 v{vT2}, v{vT2}, 2, s3")
                    k(el)
                if s == 14:
                    spin(f"{name}_{P}e", el, "v_cmp_eq_u32 vcc, 0, v29")
                    k(f"s_lshl_b32 s3, s{sMT}, 9\ns_lshl_b32 s4, s{sRG}, 8\ns_add_u32 s3, s3, s4\ns_add_u32 s3, s3, {F_R}\nv_and_b32 v{vT2}, 0xf0, v{vDX}\nbuffer_load_dwordx4 v[28:31], v{vT2}, {S4(sF)}, s3 offen sc1")
            xl = f"buffer_load_dword v{vQ}, v{vZ}, {S4(sF)}, s{sF1} offen sc1"
            if LP and five and s == tstage:
                k.wait_vm("I")
                k(f"""v_lshrrev_b32 v{vT0}, 4, v{vL}
v_lshlrev_b32 v{vT0}, 13, v{vT0}
v_bfe_u32 v{vT1}, v{vL}, 1, 3
v_lshl_add_u32 v{vT0}, v{vT1}, 10, v{vT0}
v_and_b32 v{vT1}, 1, v{vL}
v_lshl_add_u32 v{vT0}, v{vT1}, 7, v{vT0}
s_add_u32 s3, s{sPO}, {5*8192}
v_mov_b32 v{vT1}, s{sLoc}""")
                k(f"buffer_load_dword v28, v{vT0}, {S4(sP)}, s3 offen", tag="touch")
                k(f"buffer_store_dword v{vT1}, v{vZ}, {S4(sF)}, s{sF1} offen sc1")
            if LP and not five and s == 13: k(xl)
            if LP and not five and s == 15:
                spin(f"{name}_xid", xl, f"v_cmp_eq_u32 vcc, 0, v{vQ}")
                k(f"v_readfirstlane_b32 s3, v{vQ}\ns_cmp_eq_u32 s3, s{sLoc}\ns_cselect_b32 s{sLoc}, {0 if 'remote' in abl else 1}, 0")
            k.wait_lg(); k.wait_vm(f"A{s+1}", "A17" if fuse and s == 15 else "-")
            if not ("halfbar" in abl and s % 2 == 0): k("s_barrier")
        if fuse:
            n0 = 16*nf
            wj = lambda j: WR + 4*((n0+j) % 8)
            def rd(j):
                f, s = j >> 1, 16 + (j & 1); i, u = f >> 1, f & 1
                va = (vWA if i % 2 == 0 else vWB)[s % 3]; d = wj(j)
                return [f"ds_read_b64_tr_b16 v[{d+2*h}:{d+2*h+1}], v{va} offset:{h*4*576 + i*32 + u*18432}" for h in range(2)]
            def mm(f): return [f"{MF} {vr(acc(f, nt), 4)}, {vr(wj(2*f+c), 4)}, {vr(XB[c]+4*nt, 4)}, {vr(acc(f, nt), 4)}" for nt in range(4) for c in range(2)]
            put(xread(16))
            for j in range(4): put(rd(j))
            put(spread_in(sum((mfa(15, f) for f in range(nf-nd, nf)), []), dmaB(0, five), 2))
            put(xread(17))
            for f in range(nf):
                fill = (rd(2*f+4) + rd(2*f+5)) if f+2 < nf else []
                if f < 2: fill = fill + late[f*len(late)//2:(f+1)*len(late)//2]
                else:
                    gl = glu(f//2 - 1); fill = fill + gl[(f % 2)*len(gl)//2:(f % 2 + 1)*len(gl)//2]
                put(interleave(mm(f), fill))
            k.wait_lg(); k("s_barrier")
            st(7)
            put(dmaB(1, five))
            for i in range(nt5-1): put(hwrite(i))
            put(sel)
            put(glu(nt5-1)); put(hwrite(nt5-1))
        else:
            put(defer(8) if pair else sum((mfa(17, f) for f in range(nf-nd, nf)), []))
            st(7)
            if eprio and five == (eprio == 1): k("s_setprio 1")
            if depi == 1: put(dtouch)
            k("s_mov_b32 s4, 1.0\ns_mov_b32 s5, 1.0")
            if nl:
                for i in range(8): k(f"v_mov_b32 v{64+i}, v{28+(i >> 1)}")
            for i in range(nt5): put(glu(i)); put(hwrite(i))
            put(sel)
        if prio or eprio: k("s_setprio 0")
        k.wait_lg(); k.wait_vm("B0"); k("s_barrier")
        st(8); stb(0)
        if "dbl" in abl: k(f"s_cmp_eq_u32 s{sB}, 0\ns_mov_b32 s101, {288*1152}\ns_cselect_b32 s101, s101, {-288*1152}")
        if "cnt" in abl: k("s_mov_b32 s99, 0")
        HB = 112; AB = [80, 96]; WG = [28, 40, 52]; SD = 64
        def hreg(kp, nt): return HB + (kp*4+nt)*4
        def wgreg(gi, c): return WG[gi] + 4*c
        def wdread(u, gi):
            out = []
            for c in range(3):
                d = wgreg(gi, c); kp = gi*3+c
                out += [f"ds_read_b64_tr_b16 v[{d+2*h}:{d+2*h+1}], v{vWD[u % 4]} offset:{kp*4096 + h*2048}" for h in range(2)]
            return out
        def mfb(u, gi):
            out = []
            for nt in range(4):
                a = AB[u % 2]+4*nt
                for c in range(3):
                    out.append(f"{MF} {vr(a, 4)}, {vr(wgreg(gi, c), 4)}, {vr(hreg(gi*3+c, nt), 4)}, {'0' if gi == 0 and c == 0 else vr(a, 4)}")
            return out
        cvt = lambda u, h: [f"v_cvt_pk_bf16_f32 v{AB[u % 2]+8*h+q}, v{AB[u % 2]+8*h+2*q}, v{AB[u % 2]+8*h+2*q+1}" for q in range(4)]
        hread = lambda kp: [f"ds_read_b128 {vr(hreg(kp, nt), 4)}, v{vHR} offset:{(nt*9+kp)*1024}" for nt in range(4)]
        dmat = lambda t: (dmaB(2, five) + dmaB(3, five)) if t == 1 else (dmaB(t+2, five) if 2 <= t <= 6 else [])
        if smooth:
            allp = sum((dmaB(u, five) for u in range(2, 9)), []); per = len(allp)//7
            cut = [0] + [min(per*(t+1), per*t + smooth*t) for t in range(1, 7)] + [len(allp), len(allp)]
            dmat = lambda t: allp[cut[t-1]:cut[t]]
        def phaseB_L():
            rounds = lambda ph: list(range(PH[ph-1]+1 if ph else 0, PH[ph]+1))
            TAG = lambda u: [0x1, 0x10000, 0x10001][(u+3)//4]
            alias = lambda u: 5 + (u-5) % 4
            def endslot(t):
                if t <= 7: k.wait_lg(); k.wait_vm(f"B{t+1}"); k("s_barrier")
                if t < 9: stb(t+1)
            arr_at = {c+4: ph for ph, c in enumerate(PH) if c+4 <= 9}
            tch_at = {t+1: ph for t, ph in arr_at.items() if t+1 <= 8 and ph < ntouch}
            if not five:
                def send(u):
                    lab = f"{name}_s{u}"
                    txt = f"s_add_u32 s3, s{sPO}, {alias(u)*8192}\n" + "\n".join(f"buffer_store_dwordx4 {vr(AB[u % 2]+8*h, 4)}, v{vPO}, {S4(sP)}, s3 offen offset:{h*128} POL" for h in range(2))
                    k(f"s_cmp_eq_u32 s{sLoc}, 0\ns_cbranch_scc1 {lab}_r")
                    q0 = k.seq
                    k(txt.replace("POL", ""))
                    k(f"s_branch {lab}_d\n{lab}_r:")
                    k.seq = q0
                    k(txt.replace("POL", "sc1"))
                    k.seq += 1
                    k(f"{lab}_d:")
                tag = lambda u, h: [f"s_mov_b32 s4, {TAG(u)}\nv_bfi_b32 v{AB[u % 2]+8*h}, v{vMK}, s4, v{AB[u % 2]+8*h}"]
                poll = lambda ph, tv: f"s_mov_b32 s3, {ph*32768}\nbuffer_load_dword v{tv}, v{vFL}, {S4(sF)}, s3 offen sc1"
                def check(ph, tv): spin(f"{name}_c{ph}", poll(ph, tv).split("\n")[1], f"s_mov_b32 s3, {ph*32768}\nv_cmp_eq_u32 vcc, 0, v{tv}")
                for t in range(9):
                    put(wdread(t, 0))
                    if t == 0:
                        for kp in range(3): put(hread(kp))
                        put(interleave(mfb(0, 0), wdread(0, 1) + hread(3)+hread(4)+hread(5)))
                        put(interleave(mfb(0, 1), wdread(0, 2) + hread(6)+hread(7)+hread(8)))
                    else:
                        d = mfb(t-1, 2)
                        put(d[:9]); put(interleave(d[9:], cvt(t-1, 0) + tag(t-1, 0)))
                        g0 = mfb(t, 0); g1 = mfb(t, 1)
                        put(interleave(g0[:3], wdread(t, 1)[:2] + cvt(t-1, 1) + tag(t-1, 1)))
                        send(t-1)
                        dm = dmat(t); h = (len(dm)+1)//2
                        put(spread_in(interleave(g0[3:], wdread(t, 1)[2:] + [""]*5), dm[:h], 2 if h <= 5 else 1))
                        put(spread_in(interleave(g1, wdread(t, 2) + [""]*6), dm[h:], 2 if h <= 5 else 1))
                        if t in tch_at:
                            ph = tch_at[t]; check(ph, 64)
                            if ph == 0: k(f"buffer_load_dword v65, v{vHT}, {S4(sH)}, 0 offen sc1", tag="touch")
                            rr = rounds(ph); assert len(rr) <= 4
                            k(f"s_cmp_lt_u32 s{sCG}, {len(rr)}\ns_cselect_b32 s3, s{sCG}, {OOB >> 13}\ns_add_u32 s3, s3, {rr[0]}\ns_lshl_b32 s3, s3, 13\nbuffer_load_dword v65, v{vTR}, {S4(sP)}, s3 offen sc1", tag="touch")
                    endslot(t)
                    if t+1 in tch_at: k(poll(tch_at[t+1], 64))
                first = len(tch_at)
                put(mfb(8, 2)); put(cvt(8, 0) + tag(8, 0) + cvt(8, 1) + tag(8, 1)); send(8)
                st(9)
                home = lambda r: (HB+16*r, HB+16*r+8, HB+16*r+12)
                def rloads(r):
                    RB, HV, DA = home(r)
                    for pg in range(2): k(f"s_add_u32 s3, s{sRD}, {r*8192 + pg*4*9*8192}\nbuffer_load_dwordx4 {vr(RB+4*pg, 4)}, v{vRD}, {S4(sP)}, s3 offen sc1")
                    k(f"s_movk_i32 s3, {r*2048}\nbuffer_load_dwordx2 {vr(HV, 2)}, v{vHO}, {S4(sH)}, s3 offen sc1")
                def rsum(r):
                    RB, HV, DA = home(r)
                    for pg in range(2): k(f"{MF} {vr(DA, 4)}, {vr(SEL, 4)}, {vr(RB+4*pg, 4)}, {'0' if pg == 0 else vr(DA, 4)}")
                    k(f"v_lshlrev_b32 v{RB}, 16, v{HV}\nv_and_b32 v{RB+1}, 0xffff0000, v{HV}\nv_lshlrev_b32 v{RB+2}, 16, v{HV+1}\nv_and_b32 v{RB+3}, 0xffff0000, v{HV+1}")
                def rfin(r):
                    RB, HV, DA = home(r)
                    for q in range(4): k(f"v_fma_f32 v{RB+q}, v{DA+q}, s{sLN}, v{RB+q}")
                    k(f"v_cvt_pk_bf16_f32 v{HV}, v{RB}, v{RB+1}\nv_cvt_pk_bf16_f32 v{HV+1}, v{RB+2}, v{RB+3}")
                rout = lambda r: k(f"buffer_store_dwordx2 {vr(home(r)[1], 2)}, v{vOO}, {S4(sO)}, 0 offen offset:{r*128} {OUTPOL}")
                pend = [r for ph in range(first) for r in rounds(ph)]
                for r in pend: rloads(r)
                for ph in range(first, len(PH)):
                    k(poll(ph, 64))
                    for r in pend: rsum(r)
                    for r in pend: rfin(r)
                    check(ph, 64)
                    for r in rounds(ph): rloads(r)
                    for r in pend: rout(r)
                    pend = rounds(ph)
                for r in pend: rsum(r)
                for r in pend: rfin(r); rout(r)
            else:
                sld = lambda u: f"s_add_u32 s3, s{sPO}, {alias(u)*8192}\n" + "\n".join(f"buffer_load_dwordx4 {vr(SD+4*h, 4)}, v{vPO}, {S4(sP)}, s3 offen offset:{h*128} sc1" for h in range(2))
                def add(u):
                    if "nol1chk" not in abl:
                        spin(f"{name}_k{u}", sld(u), f"s_mov_b32 s4, {TAG(u)}\nv_and_b32 v78, v{vMK}, v{SD}\nv_and_b32 v79, v{vMK}, v{SD+4}\nv_xor_b32 v78, s4, v78\nv_xor_b32 v79, s4, v79\nv_or_b32 v78, v78, v79\nv_cmp_ne_u32 vcc, 0, v78")
                    put([f"{MF} {vr(AB[u % 2]+8*h+4*q, 4)}, {vr(SK+2-2*q, 4)}, {vr(SD+4*h, 4)}, {vr(AB[u % 2]+8*h+4*q, 4)}" for h in range(2) for q in range(2)])
                pst = lambda u: [(f"s_add_u32 s3, s{sPO}, {u*8192}\nbuffer_store_dwordx4 {vr(AB[u % 2]+8*h, 4)}, v{vPO}, {S4(sP)}, s3 offen offset:{h*128} sc1", f"P{u}") for h in range(2)]
                def arrive1(ph):
                    k.wait_vm(f"P{PH[ph]}")
                    k(f"s_mov_b64 exec, 1\nds_add_rtn_u32 v7, v{vFL}, v{vFV} offset:{ph*4}\ns_mov_b64 exec, -1")
                def arrive2(ph):
                    k(f"v_readfirstlane_b32 s3, v7\ns_cmp_lg_u32 s3, 3\ns_cbranch_scc1 {name}_ar{ph}\ns_mov_b32 s3, {ph*32768}\nbuffer_store_dword v{vFV}, v{vFS}, {S4(sF)}, s3 offen sc1\n{name}_ar{ph}:")
                for kp in range(9): put(hread(kp))
                endslot(0)
                for t in range(1, 10):
                    u = t-1
                    put(wdread(u, 0))
                    if u >= 1: k(sld(u-1))
                    if u >= 2: put(pst(u-2))
                    if u >= 1: put(mfb(u-1, 2))
                    put(interleave(mfb(u, 0), wdread(u, 1) + [""]*6))
                    g1 = mfb(u, 1)
                    put(interleave(g1[:6], wdread(u, 2)))
                    if u >= 1:
                        add(u-1)
                        if t == 9: k(sld(8))
                        if t in arr_at: arrive1(arr_at[t])
                        put(g1[6:9])
                        put(interleave(g1[9:], cvt(u-1, 0) + cvt(u-1, 1)))
                        if t in arr_at: arrive2(arr_at[t])
                    else: put(g1[6:])
                    endslot(t)
                put(pst(7))
                put(mfb(8, 2)); add(8)
                st(9)
                p8 = pst(8)
                put(cvt(8, 0) + p8[:1] + cvt(8, 1) + p8[1:])
                for ph in range(len(arr_at), len(PH)): arrive1(ph); arrive2(ph)
        def phaseB_S():
            pst = lambda u, h: (f"s_add_u32 s3, s{sPO}, {u*16384}\nbuffer_store_dwordx4 {vr(AB[u % 2]+8*h, 4)}, v{vPO}, {S4(sP)}, s3 offen offset:{h*128} sc1", f"P{u}")
            own = lambda u: [f"s_mov_b64 exec, s[{sEX}:{sEX+1}]\n" + "\n".join(f"ds_write_b128 v{vTR}, {vr(AB[u % 2]+8*h, 4)} offset:{u*1024+h*128}" for h in range(2)) + "\ns_mov_b64 exec, -1"] if skip else []
            epib = lambda u: cvt(u, 0) + [pst(u, 0)] + cvt(u, 1) + ([] if "half" in abl else [pst(u, 1)]) + own(u)
            def signal(ph):
                if five: k(f"s_cmp_lg_u32 s{sW}, 0\ns_cbranch_scc1 {name}_sig{ph}\ns_mov_b32 s3, {ph*32768}\nbuffer_store_dword v{vFV}, v{vFS}, {S4(sF)}, s3 offen sc1\n{name}_sig{ph}:")
            poll = lambda ph, tv: f"s_mov_b32 s3, {ph*32768}\nbuffer_load_dword v{tv}, v{vFL}, {S4(sF)}, s3 offen sc1"
            def check(ph, tv): spin(f"{name}_{P}c{ph}", poll(ph, tv).split("\n")[1], f"s_mov_b32 s3, {ph*32768}\n{notyet(tv)}", cnap)
            rounds = lambda ph: list(range(PH[ph-1]+1 if ph else 0, PH[ph]+1))
            mine = lambda rr: [r for r in rr if (r % 2 == 0) == five]
            sig_at = {c+lag+1: ph for ph, c in enumerate(PH) if c+lag+1 <= 8}
            rd_at = {u+1: ph for u, ph in sig_at.items() if u+1 <= 8 and ph < inl}
            inloop = [r for ph in rd_at.values() for r in rounds(ph)]
            assert not (nl and inloop)
            home = lambda r: (64, 6, 24) if r in inloop else (HB+24*(r >> 1), HB+24*(r >> 1)+16, HB+24*(r >> 1)+20)
            def rloads(r):
                RB, HV, DA = home(r); out = []
                for pg in range(2 if "half" in abl else 4):
                    ld = f"buffer_load_dwordx4 {vr(RB+4*pg, 4)}, v{vRD}, {S4(sP)}, s3 offen sc1"
                    if skip and pg == 0: ld = f"s_mov_b64 exec, 0xffff\nds_read_b128 {vr(RB, 4)}, v{vHT} offset:{r*1024}\ns_mov_b32 exec_hi, -1\ns_mov_b32 exec_lo, 0xffff0000\n{ld}\ns_mov_b64 exec, -1"
                    out.append(f"s_add_u32 s3, s{sRP+pg}, {r*16384}\n{ld}")
                out.append(f"s_movk_i32 s3, {r*2048}\nbuffer_load_dwordx2 {vr(HV, 2)}, v{vHO}, {S4(sH)}, s3 offen sc1")
                return out
            def rsum(r):
                RB, HV, DA = home(r)
                return [f"{MF} {vr(DA, 4)}, {vr(SEL, 4)}, {vr(RB+4*pg, 4)}, {'0' if pg == 3 else vr(DA, 4)}" for pg in (3, 2, 1, 0)]
            def rfin(r):
                RB, HV, DA = home(r)
                return [f"v_lshlrev_b32 v{RB}, 16, v{HV}", f"v_and_b32 v{RB+1}, 0xffff0000, v{HV}", f"v_lshlrev_b32 v{RB+2}, 16, v{HV+1}", f"v_and_b32 v{RB+3}, 0xffff0000, v{HV+1}"] + \
                       [f"v_fma_f32 v{RB+q}, v{DA+q}, {f'v{vSC}' if nl else f's{sLN}'}, v{RB+q}" for q in range(4)] + \
                       [f"v_cvt_pk_bf16_f32 v{HV}, v{RB}, v{RB+1}", f"v_cvt_pk_bf16_f32 v{HV+1}, v{RB+2}, v{RB+3}"]
            rout = lambda r: [f"buffer_store_dwordx2 {vr(home(r)[1], 2)}, v{vOO}, {S4(sO)}, 0 offen offset:{r*128} {OUTPOL}"]
            pend = []; todo = []
            if bprio and five == (bprio == 1): k("s_setprio 1")
            for u in range(9):
                put(wdread(u, 0))
                if u in sig_at: signal(sig_at[u])
                if u == 0:
                    for kp in range(3): put(hread(kp))
                    put(interleave(mfb(0, 0), wdread(0, 1) + hread(3)+hread(4)+hread(5)))
                    put(interleave(mfb(0, 1), wdread(0, 2) + hread(6)+hread(7)+hread(8)))
                    if nl: k(f"buffer_load_dword v{vSC}, v{vSC}, {S4(sF)}, 0 offen sc1")
                    if otouch: k(f"buffer_load_dword v19, v{vOO}, {S4(sO)}, 0 offen", tag="touch")
                else:
                    put(spread_in(mfb(u-1, 2), dmat(u), 2 if u > 1 and 'dbl' not in abl else 1))
                    put(interleave(mfb(u, 0), wdread(u, 1) + epib(u-1)))
                    g1 = mfb(u, 1); fill = []
                    if drip:
                        start = u in rd_at and mine(rounds(rd_at[u]))
                        if start and pend:
                            assert not todo
                            r = pend.pop(); put(rsum(r)); put(g1[:3]); g1 = g1[3:]; put(rfin(r)); put(rout(r))
                        if start:
                            check(rd_at[u], 19); pend = mine(rounds(rd_at[u])); assert len(pend) == 1
                            todo = rloads(pend[0])
                            nxt = min([v for v in rd_at if v > u and mine(rounds(rd_at[v]))] + [10]) - 1
                        if todo:
                            left = min(nxt, 9) - u
                            n = max(drip, -(-len(todo)//max(left, 1)))
                            fill = [""]*(4 if len(g1) == 12 else 1) + todo[:n]; todo = todo[n:]
                    elif pend and u not in rd_at:
                        r = pend.pop(); g1 = g1[:6] + rsum(r) + g1[6:]; fill = [""]*8 + rfin(r) + rout(r)
                    elif u in rd_at and mine(rounds(rd_at[u])):
                        assert not pend and len(mine(rounds(rd_at[u]))) == 1
                        check(rd_at[u], 19); pend = mine(rounds(rd_at[u])); fill = rloads(pend[0])
                    put(interleave(g1[:6], wdread(u, 2))); put(interleave(g1[6:], fill) if fill else g1[6:])
                    if u == 8:
                        for ph in sig_at.values():
                            if ph not in rd_at.values(): k(poll(ph, 28+ph))
                code_touch(18+u)
                if u < 8:
                    k.wait_lg(); k.wait_vm(f"B{u+1}", f"P{PH[sig_at[u+1]]}" if u+1 in sig_at else "-"); k("s_barrier")
                if u+1 in rd_at and mine(rounds(rd_at[u+1])): k(poll(rd_at[u+1], 19))
                if u < 9: stb(u+1)
            put(mfb(8, 2))
            st(9)
            put(epib(8))
            if nl: k(f"v_mul_f32 v{vSC}, s{sLN}, v{vSC}")
            tailph = list(range(len(sig_at), len(PH))); held = []
            if sigfirst and len(tailph) > 1 and order == 0:
                for ph in tailph[:-1]:
                    k.wait_vm(f"P{PH[ph]}"); k("s_barrier"); signal(ph)
            for ph in sig_at.values():
                if ph in rd_at.values(): continue
                check(ph, 28+ph)
                if "tail" in abl: k("s_memrealtime s[62:63]")
                for r in mine(rounds(ph))[:tseq or 9]: put(rloads(r)); pend.append(r)
                held = mine(rounds(ph))[tseq or 9:]
            if sigfirst:
                for ph in (tailph if order else tailph[-1:]):
                    k.wait_lg(); k.wait_vm(f"P{PH[ph]}")
                    if "tail" in abl: k("s_memrealtime s[64:65]")
                    k("s_barrier")
                    if "tail" in abl: k("s_memrealtime s[66:67]")
                    signal(ph)
            for r in held:
                q = pend.pop(0); put(rsum(q)); put(rloads(r)); put(rfin(q)); put(rout(q)); pend.append(r)
            for ph in tailph:
                if not sigfirst:
                    k.wait_lg(); k.wait_vm(f"P{PH[ph]}"); k("s_barrier"); signal(ph)
                if not mine(rounds(ph)): continue
                k(poll(ph, 19))
                done = list(pend) if sigfirst and ph == len(PH)-1 else pend[:1]
                for r in done: put(rsum(r)); put(rfin(r))
                check(ph, 19)
                if "tail" in abl: k("s_memrealtime s[68:69]")
                for r in mine(rounds(ph)): put(rloads(r)); pend.append(r)
                for r in done: put(rout(r)); pend.remove(r)
            for r in pend: put(rsum(r)); put(rfin(r)); put(rout(r))
        phaseB_L() if LP else phaseB_S()
        if stamp:
            k("s_waitcnt vmcnt(0) lgkmcnt(0)\ns_memrealtime s[4:5]" + ("\ns_memtime s[70:71]" if "clk" in abl else "") + "\ns_waitcnt lgkmcnt(0)")
            for i in range(10): k(f"v_mov_b32 v{28+i}, s{60+2*i}")
            k(f"""v_mov_b32 v38, s4
v_mov_b32 v39, s99
s_lshl_b32 s3, s2, 3
s_add_u32 s3, s3, s{sW}
s_lshl_b32 s3, s3, 6
s_add_u32 s3, s3, {O_STAMP}
v_mov_b32 v40, s3
global_store_dwordx4 v40, v[28:31], s[6:7]
global_store_dwordx4 v40, v[32:35], s[6:7] offset:16
global_store_dwordx4 v40, v[36:39], s[6:7] offset:32""")
            if "orc" in abl and not five:
                X = int(abl.split("orc")[1][:3])/10; which = abl.split("orc")[1][3:4] or "a"
                k(f"""s_cmp_lg_u32 s2, 0
s_cbranch_scc1 {name}_noorc
s_cmp_lg_u32 s{sW}, 4
s_cbranch_scc1 {name}_noorc
v_mov_b32 v41, {O_STAMP + 262144}
global_load_dword v44, v41, s[6:7]
s_waitcnt vmcnt(0)
v_readfirstlane_b32 s3, v44
s_sub_u32 s3, s{4 if which == 'a' else 60+2*int(which)}, s3
s_cmp_lt_u32 s3, {int(X*100)}
s_cbranch_scc1 {name}_noorc
s_movk_i32 s3, 60
{name}_orcl:
s_sleep 64
s_sub_u32 s3, s3, 1
s_cbranch_scc0 {name}_orcl
{name}_noorc:""")
                k.saved.pop(f"{name}_orcl", None)
            if "until" in abl and not five:
                k(f"""s_cmp_lg_u32 s2, 0
s_cbranch_scc1 {name}_nount
s_cmp_lg_u32 s{sW}, 4
s_cbranch_scc1 {name}_nount
v_mov_b32 v41, {O_STAMP + 262144}
global_load_dword v44, v41, s[6:7]
s_waitcnt vmcnt(0)
v_readfirstlane_b32 s3, v44
{name}_untl:
s_memrealtime s[4:5]
s_waitcnt lgkmcnt(0)
s_sub_u32 s4, s4, s3
s_cmp_lt_u32 s4, 8000
s_cbranch_scc1 {name}_untl
{name}_nount:""")
                k.saved.pop(f"{name}_untl", None)
            if "dbg" in abl and not five:
                k(f"""s_cmp_lg_u32 s2, 0
s_cbranch_scc1 {name}_nodbg
s_cmp_lg_u32 s{sW}, 4
s_cbranch_scc1 {name}_nodbg
s_load_dwordx2 s[8:9], s[0:1], 64
v_mov_b32 v41, {O_STAMP + 262144}
global_load_dwordx4 v[44:47], v41, s[6:7]
global_load_dwordx4 v[48:51], v41, s[6:7] offset:16
v_mov_b32 v41, {O_STAMP + 2*262144}
global_load_dwordx4 v[52:55], v41, s[6:7]
global_load_dwordx4 v[56:59], v41, s[6:7] offset:16
s_waitcnt vmcnt(0) lgkmcnt(0)
s_sub_u32 s8, s8, {int(abl.split('dbg')[1][0])*512}
s_subb_u32 s9, s9, 0
v_sub_u32 v60, v46, v44
v_sub_u32 v61, v50, v44
v_sub_u32 v62, v52, v44
v_sub_u32 v63, v57, v44""")
                for i in range(11): k(f"v_sub_u32 v{64+i}, v{28+i}, v44")
                k(f"""v_mov_b32 v75, 12345
v_mov_b32 v41, 0
global_store_dwordx4 v41, v[60:63], s[8:9]
global_store_dwordx4 v41, v[64:67], s[8:9] offset:16
global_store_dwordx4 v41, v[68:71], s[8:9] offset:32
global_store_dwordx4 v41, v[72:75], s[8:9] offset:48
{name}_nodbg:""")
    k(f"s_cmp_ge_u32 s{sW}, 4\ns_cbranch_scc1 {name}_p4")
    path(True)
    k(f"s_endpgm\n{name}_p4:")
    path(False)
    k("s_endpgm")
    for c in cold: c()
    k(f"{name}_end:")
    return k
```

```python
import re, copy

_REG = re.compile(r"^(-|abs\(|\|)?([vsa])(?:(\d+)|\[(\d+):(\d+)\])\)?\|?$")
def regs_of(op):
    op = op.strip()
    if op in ("vcc",): return {("s", "vcc")}
    if op in ("exec", "exec_lo", "exec_hi"): return {("s", "exec")}
    if op == "m0": return {("s", "m0")}
    m = _REG.match(op)
    if not m: return set()
    f = m.group(2)
    if m.group(3) is not None: return {(f, int(m.group(3)))}
    return {(f, i) for i in range(int(m.group(4)), int(m.group(5))+1)}

import os
TRANS_PK = int(os.environ.get('TRANS_PK', 1))
PK_PK = int(os.environ.get('PK_PK', 0))
PK_V = int(os.environ.get('PK_V', 0))
TRANS = ("v_exp_f32", "v_log_f32", "v_rcp_f32", "v_rsq_f32", "v_sqrt_f32", "v_sin_f32", "v_cos_f32")
class Ins:
    __slots__ = ("text", "mn", "kind", "w", "r", "rc", "rab", "data", "passes", "dpp", "trans", "sdwa_dst", "states", "wide", "lds_dma")
    def __init__(s, text):
        s.text = text
        t = text.split(";")[0].strip()
        parts = t.split(None, 1)
        s.mn = mn = parts[0]
        rest = parts[1] if len(parts) > 1 else ""
        ops = []
        depth = 0; cur = ""
        for ch in rest:
            if ch in "[(": depth += 1
            if ch in "])": depth -= 1
            if ch == "," and depth == 0: ops.append(cur.strip()); cur = ""
            else: cur += ch
        if cur.strip(): ops.append(cur.strip())
        mods = ""
        if ops:
            last = ops[-1].split(None, 1)
            ops[-1] = last[0]
            mods = last[1] if len(last) > 1 else ""
        R = [regs_of(o) for o in ops]
        U = lambda l: set().union(*l) if l else set()
        s.w = set(); s.r = set(); s.rc = set(); s.rab = set(); s.data = set(); s.passes = 0
        s.dpp = "_dpp" in mn or "row_" in mods or "quad_perm" in mods
        s.trans = mn.replace("_e32", "").replace("_e64", "") in TRANS
        s.sdwa_dst = ("_sdwa" in mn and "dst_sel:DWORD" not in mods) or ("op_sel" in mods and not mn.startswith("v_pk") and not mn.startswith("v_mfma"))
        s.states = 1; s.wide = False; s.lds_dma = False
        if mn.startswith("v_mfma"):
            s.kind = "mfma"; s.w = R[0]; s.rab = R[1] | R[2]; s.rc = R[3]; s.r = s.rab | s.rc
            s.passes = 8 if "32x32" in mn else 2 if "4x4x4" in mn else 4
        elif mn.startswith("v_cmpx"):
            s.kind = "valu"; s.w = R[0] | {("s", "exec")}; s.r = U(R[1:])
        elif mn.startswith("v_"):
            s.kind = "valu"
            if mn.startswith(("v_permlane", "v_swap")): s.w = R[0] | R[1]; s.r = R[0] | R[1]
            elif "_co_" in mn or mn.startswith(("v_div_scale", "v_mad_u64")): s.w = R[0] | R[1]; s.r = U(R[2:])
            elif mn == "v_nop": pass
            else:
                s.w = R[0]; s.r = U(R[1:])
                if mn.startswith("v_dot"): s.rab = R[1] | R[2]
                if mn.startswith(("v_fmac", "v_dot2c", "v_writelane", "v_pk_fmac")) or s.dpp or s.sdwa_dst: s.r |= R[0]
        elif mn.startswith("ds_"):
            s.kind = "ds"
            if mn.startswith(("ds_read", "ds_bpermute", "ds_permute", "ds_swizzle")) or "_rtn" in mn: s.w = R[0]; s.r = U(R[1:])
            else: s.r = U(R); s.data = U(R[1:])
        elif mn.startswith("buffer_") or mn.startswith("global_"):
            s.kind = "vmem"
            lds = re.search(r"\blds\b", mods) is not None or "load_lds" in mn
            if mn.startswith(("buffer_wbl2", "buffer_inv")): pass
            elif lds: s.r = U(R) | {("s", "m0")}; s.lds_dma = True
            elif "_load" in mn:
                s.w = R[0]; s.r = U(R[1:])
                if "d16" in mn: s.r |= R[0]
            elif "atomic" in mn:
                ret = "sc0" in mods
                if mn.startswith("global_"):
                    if ret: s.w = R[0]; s.r = U(R[1:])
                    else: s.r = U(R)
                else:
                    s.r = U(R); s.w = R[0] if ret else set()
            else:
                s.r = U(R); s.data = R[0] if mn.startswith("buffer_") else R[1]
                s.wide = "x3" in mn or "x4" in mn
        elif mn.startswith(("s_load", "s_buffer_load", "s_memtime", "s_memrealtime")):
            s.kind = "smem"; s.w = R[0]; s.r = U(R[1:])
        elif mn.startswith("s_"):
            s.kind = "salu"
            if mn == "s_nop": s.states = int(ops[0], 0)+1
            elif mn.startswith(("s_cmp", "s_bitcmp", "s_setpc")): s.r = U(R)
            elif mn.startswith(("s_waitcnt", "s_barrier", "s_branch", "s_cbranch", "s_setprio", "s_sleep", "s_endpgm")): pass
            elif "saveexec" in mn: s.w = R[0] | {("s", "exec")}; s.r = U(R[1:])
            else:
                s.w = R[0]; s.r = U(R[1:])
                if mn.startswith(("s_addk", "s_mulk", "s_cmov", "s_bitset")): s.r |= R[0]
        else:
            raise ValueError("unknown instr: " + text)

def isv(x): return x[0] in "va"
def need_states(p, c):
    n = 0
    if p.kind == "valu":
        pv = {x for x in p.w if isv(x)}; ps = p.w - pv
        if p.mn.startswith("v_dot") and (pv & (c.r | c.w)):
            chain = c.mn == p.mn and not (pv & c.rab)
            if not chain: n = max(n, 3)
        if c.kind == "mfma":
            if pv & c.r: n = max(n, 2)
            if ("s", "exec") in ps: n = max(n, 4)
        if c.kind == "valu":
            if c.mn.startswith("v_permlane"):
                if pv & c.r: n = max(n, 2)
                if ("s", "exec") in ps: n = max(n, 4)
            if c.dpp:
                if pv & c.r: n = max(n, 2)
                if ("s", "exec") in ps: n = max(n, 5)
            if c.mn.startswith(("v_readlane", "v_readfirstlane", "v_writelane")):
                if pv & c.r: n = max(n, 1)
                if ps & c.r: n = max(n, 4)
                if ("s", "exec") in ps: n = max(n, 4)
            if ps & c.r: n = max(n, 2)
            if c.mn.startswith("v_div_fmas") and ("s", "vcc") in ps: n = max(n, 4)
            if p.trans and not c.trans and (pv & c.r): n = max(n, TRANS_PK if c.mn.startswith("v_pk") else 1)
            if p.mn.startswith("v_pk") and (pv & c.r): n = max(n, PK_PK if c.mn.startswith("v_pk") else PK_V)
            if p.sdwa_dst and (pv & (c.r | c.w)): n = max(n, 1)
        if c.kind in ("vmem", "ds") and (ps & c.r): n = max(n, 5)
        if c.kind in ("vmem", "ds") and p.trans and (pv & c.r): n = max(n, 1)
        if c.kind in ("salu", "smem") and (ps & c.r): n = max(n, 1)
    elif p.kind == "mfma":
        big = {2: 5, 4: 8, 8: 12}[p.passes]
        if c.kind == "mfma":
            if p.w & c.rab: n = max(n, big)
            if p.w & c.rc:
                if not (p.w == c.rc and p.mn == c.mn): n = max(n, {2: 4, 4: 6, 8: 10}[p.passes])
                elif p.passes == 2: n = max(n, 2)
            elif p.w & c.w: n = max(n, big)
        elif c.kind in ("valu", "ds", "vmem"):
            if p.w & (c.r | c.w): n = max(n, big)
            if c.kind == "valu" and (p.rc & c.w): n = max(n, {2: 1, 4: 3, 8: 7}[p.passes])
            if c.kind != "valu" and (p.rc & c.w): n = max(n, big)
    elif p.kind == "vmem":
        if p.wide and c.kind in ("valu", "mfma") and (p.data & c.w): n = max(n, 2)
        elif p.wide and (p.data & c.w): n = max(n, 1)
    elif p.kind == "ds":
        if len(p.data) >= 3 and c.kind in ("valu", "mfma") and (p.data & c.w): n = max(n, 2)
    elif p.kind == "salu":
        if ("s", "m0") in p.w and (c.lds_dma or "addtid" in c.mn): n = max(n, 1)
    return n

class Q:
    def __init__(s): s.e = []; s.done = 0
    def clone(s):
        o = Q(); o.e = list(s.e); o.done = s.done; return o
    def younger(s, q): return sum(1 for x in s.e[q+1:] if not x[3])
    def wait(s, n, now):
        if n == 0: s.e = []; s.done = now; return
        for q in range(len(s.e)-1, -1, -1):
            if s.younger(q) >= n:
                s.done = max(s.done, s.e[q][0]); s.e = s.e[q+1:]; return
    @staticmethod
    def merge(a, b):
        A = {x[0]: x for x in a.e}; B = {x[0]: x for x in b.e}
        o = Q(); o.done = min(a.done, b.done)
        for sq in sorted(set(A) | set(B)):
            if sq in A and sq in B: o.e.append((sq, A[sq][1], A[sq][2], A[sq][3] or B[sq][3]))
            else:
                x, other = (A[sq], b) if sq in A else (B[sq], a)
                o.e.append((sq, x[1], x[2], x[3] or sq > other.done))
        return o

class State:
    def __init__(s):
        s.hists = [[]]; s.vm = Q(); s.lg = Q(); s.sm = set()
    def clone(s):
        o = State(); o.hists = [list(h) for h in s.hists]; o.vm = s.vm.clone(); o.lg = s.lg.clone(); o.sm = set(s.sm); return o
    @staticmethod
    def merge(a, b):
        o = State(); o.vm = Q.merge(a.vm, b.vm); o.lg = Q.merge(a.lg, b.lg); o.sm = a.sm | b.sm
        seen = {}
        for h in a.hists + b.hists: seen.setdefault(tuple(id(i) for i in h), h)
        o.hists = [list(h) for h in seen.values()]
        return o

class K:
    def __init__(self, name, grid, block, lds=0, vgpr=128, agpr=0, sgpr=96, auto=True):
        self.name, self.grid, self.block, self.lds = name, grid, block, lds
        self.vgpr, self.agpr, self.sgpr = vgpr, agpr, sgpr
        self.lines = []; self.data = []
        self.auto = auto
        self.st = State()
        self.saved = {}
        self.seq = 0
        self.nops = 0
        self.maxv = 0
        self.count = {}
    def __call__(self, s, tag=None):
        for l in s.strip("\n").split("\n"):
            l = l.strip()
            if not l: continue
            if l.startswith(";"): self.lines.append(l); continue
            if l.endswith(":"): self._label(l[:-1]); continue
            if l.startswith("."): self.lines.append(l); continue
            if not self.auto: self.lines.append(l); continue
            self._ins(l, tag)
    def _label(self, lab):
        self.lines.append(lab + ":")
        for o in self.saved.pop(lab, []):
            self.st = o if self.st is None else State.merge(self.st, o)
        if self.st is None: self.st = State()
    def _emit(self, i):
        self.lines.append(i.text)
        self.count[i.kind] = self.count.get(i.kind, 0) + 1
        seen = {}
        for h in self.st.hists:
            h.append(i)
            d = 0; n = len(h)
            while n > 0 and d < 14: n -= 1; d += h[n].states
            del h[:n]
            seen.setdefault(tuple(id(x) for x in h), h)
        self.st.hists = list(seen.values())
        assert len(self.st.hists) < 256
    def _wait(self, vm=None, lg=None):
        t = "s_waitcnt"
        if vm is not None: t += f" vmcnt({vm})"
        if lg is not None: t += f" lgkmcnt({lg})"
        self._apply_wait(vm, lg)
        self._emit(Ins(t))
    def _apply_wait(self, vm, lg):
        st = self.st
        if vm is not None: st.vm.wait(vm, self.seq)
        if lg is not None:
            if lg == 0: st.lg.wait(0, self.seq); st.sm = set()
            elif not st.sm: st.lg.wait(lg, self.seq)
    def _need(self, q, pred, cap):
        n = None
        for j, x in enumerate(q.e):
            if pred(x):
                m = min(cap, q.younger(j)); n = m if n is None else min(n, m)
        return n
    def _ins(self, text, tag):
        i = Ins(text)

        if self.st is None: self.st = State()
        st = self.st
        for f, n in (i.w | i.r):
            if f == "v": self.maxv = max(self.maxv, n)
        if i.mn == "s_waitcnt":
            vm = re.search(r"vmcnt\((\d+)\)", text); lg = re.search(r"lgkmcnt\((\d+)\)", text)
            self._apply_wait(int(vm.group(1)) if vm else None, int(lg.group(1)) if lg else None)
            self._emit(i); return
        touch = i.r | i.w
        vm = self._need(st.vm, lambda x: x[2] & (i.r if tag == "touch" and x[1] == "touch" and i.kind == "vmem" else touch), 63)
        lg = self._need(st.lg, lambda x: x[2] & touch, 15)
        if (lg is not None and st.sm) or (st.sm & touch): lg = 0
        if vm is not None or lg is not None: self._wait(vm, lg)
        need = 0
        for h in st.hists:
            dist = 0
            for p in reversed(h):
                n = need_states(p, i)
                if n > dist: need = max(need, n-dist)
                dist += p.states
        if need:
            self.nops += need
            self._emit(Ins(f"s_nop {need-1}"))
        self._emit(i)
        self.seq += 1
        if i.kind == "vmem": st.vm.e.append((self.seq, tag, i.w, False))
        elif i.kind == "ds": st.lg.e.append((self.seq, tag, i.w, False))
        elif i.kind == "smem": st.sm |= (i.w or {("s", -1)})
        if i.mn.startswith(("s_cbranch", "s_branch")):
            lab = text.split()[1]
            self.saved.setdefault(lab, []).append(st.clone())
            if i.mn == "s_branch": self.st = None
        if i.mn == "s_endpgm": self.st = None
    def wait_vm(self, *tags):
        n = self._need(self.st.vm, lambda x: x[1] in tags, 63)
        if n is not None: self._wait(vm=n)
    def wait_lg(self, *tags):
        n = self._need(self.st.lg, lambda x: not tags or x[1] in tags, 15)
        if n is not None: self._wait(lg=0 if self.st.sm else n)
    def launch_line(self):
        g = self.grid if isinstance(self.grid, tuple) else (self.grid, 1, 1)
        return f"; @launch kernel={self.name}_kernel grid=({g[0]},{g[1]},{g[2]}) block=({self.block},1,1) lds={self.lds}"
    def text(self):
        assert self.maxv < self.vgpr, (self.name, self.maxv, self.vgpr)
        acc = (self.vgpr + 3)//4*4
        nfv = acc + self.agpr if self.agpr else self.vgpr
        body = "\n".join(self.lines)
        return f""".text
.globl {self.name}_kernel
.p2align 8
.type {self.name}_kernel,@function
{self.name}_kernel:
{body}
s_endpgm
{self.name}_code_end:
{chr(10).join(self.data)}
.section .rodata,"a"
.p2align 6
.amdhsa_kernel {self.name}_kernel
  .amdhsa_next_free_vgpr {nfv}
  .amdhsa_next_free_sgpr {self.sgpr}
  .amdhsa_accum_offset {acc}
  .amdhsa_group_segment_fixed_size 0
  .amdhsa_kernarg_size 80
  .amdhsa_user_sgpr_count 2
  .amdhsa_user_sgpr_kernarg_segment_ptr 1
  .amdhsa_system_sgpr_workgroup_id_x 1
  .amdhsa_float_denorm_mode_32 3
.end_amdhsa_kernel
"""
def emit(launch_order, kernels, header="", tail=""):
    out = [k.launch_line() for k in launch_order]
    if header: out.append(header)
    out.append('.amdgcn_target "amdgcn-amd-amdhsa--gfx950"')
    for k in kernels: out.append(k.text())
    if tail: out.append(tail)
    return "\n".join(out) + "\n"
def vr(a, n=1): return f"v{a}" if n == 1 else f"v[{a}:{a+n-1}]"
def sr(a, n=1): return f"s{a}" if n == 1 else f"s[{a}:{a+n-1}]"
def srd(k, d, base, nbytes):
    k(f"s_mov_b32 s{d}, s{base}\ns_mov_b32 s{d+1}, s{base+1}\ns_mov_b32 s{d+2}, {nbytes}\ns_mov_b32 s{d+3}, 0x20000")
def interleave(main, fill):
    out = []; n, m = len(main), len(fill); j = 0
    for i, x in enumerate(main):
        out.append(x)
        hi = (i+1)*m//n
        out += fill[j:hi]; j = hi
    return out
```

```python
from asmlib import *
from layout import *
from pf import ws_srd
import struct
def fl(x): return "0x%08x" % struct.unpack("<I", struct.pack("<f", x))[0]
MF32 = "v_mfma_f32_16x16x32_bf16"
MF16 = "v_mfma_f32_16x16x16_bf16"

def stamp(k, on, i):
    if on: k(f"s_memrealtime s[{60+2*i}:{61+2*i}]")
def stamp_out(k, on, slot, wavereg, n):
    if not on: return
    k("s_waitcnt vmcnt(0)"); stamp(k, on, n)
    k("s_waitcnt lgkmcnt(0)")
    for i in range(8): k(f"v_mov_b32 v{8+i}, s{60+2*i}" if i <= n else f"v_mov_b32 v{8+i}, 0")
    k(f"""
s_lshl_b32 s3, s2, 3
s_add_u32 s3, s3, {wavereg}
s_lshl_b32 s3, s3, 5
s_add_u32 s3, s3, {O_STAMP + 262144*slot}
v_mov_b32 v16, s3
global_store_dwordx4 v16, v[8:11], s[6:7]
global_store_dwordx4 v16, v[12:15], s[6:7] offset:16
""")

def build_p1(st=False, FPOL="", P1PRIO=0, SELFPF=0, SIDEFIRST=0, TLB=0, XNT="", MERGE=0, NST=0, NPOL="", mono=None, NZ=3, CPF=1, MAPOS=0, GRAM=1):
    NEXT = "pf_join" if mono else "pf_kernel" if MERGE else "p2_kernel"
    XL = 9216
    EX = 4*XL
    HB = 8192+6144
    WL = EX + HB
    k = mono or K("p1", 256, 512, lds=WL+33344, vgpr=144)
    if mono: st = False; assert MERGE and not NST
    END = "s_branch pf_join" if mono else "s_endpgm"
    END3 = "s_branch p1_bar3" if mono else "s_endpgm"
    sW, sS2, sJT, sHF, sTY = 30, 31, 32, 50, 51
    def nonce():
        if mono: k(f"v_mov_b32 v201, {O_FLG + F_N}\nglobal_load_dword v200, v201, s[6:7] sc1")
    stamp(k, st, 0)
    if SELFPF:
        k(f"""s_getpc_b64 s[4:5]
p1_pc0:
v_lshlrev_b32 v1, 7, v0
v_min_u32 v1, p1_code_end-p1_pc0-4, v1""")
        k("global_load_dword v19, v1, s[4:5]", tag="touch")
    k(f"""
s_setprio 3
s_load_dwordx4 s[44:47], s[0:1], 0
s_load_dwordx2 s[48:49], s[0:1], 16
s_load_dwordx2 s[6:7], s[0:1], 72
s_cmp_ge_u32 s2, 256
s_cbranch_scc1 {'pf_end' if mono else 'p1_end'}
v_lshrrev_b32 v1, 6, v0
v_and_b32 v0, 63, v0
v_readfirstlane_b32 s3, v1
{'s_mov_b32 s100, s3' if mono else ''}
{'s_mov_b32 s101, s2' if mono else ''}
v_lshrrev_b32 v2, 4, v0
v_and_b32 v3, 15, v0
s_and_b32 s{sW}, s3, 3
s_lshr_b32 s{sHF}, s3, 2
s_lshr_b32 s{sTY}, s2, 6
s_and_b32 s{sS2}, s2, 63
s_lshl_b32 s{sJT}, s{sTY}, 1
s_add_u32 s{sJT}, s{sJT}, s{sHF}
s_lshl_b32 s2, s{sJT}, 6
s_add_u32 s2, s2, s{sS2}
s_cmp_ge_u32 s{sJT}, 5
s_cbranch_scc1 p1_side
v_lshrrev_b32 v4, 3, v0
v_and_b32 v5, 7, v0
s_lshl_b32 s3, s{sW}, 9
s_add_u32 s3, s3, s{sS2}
v_lshl_add_u32 v6, v4, 6, s3
v_mul_u32_u24 v6, 1152, v6
v_lshlrev_b32 v4, 1, v4
v_and_b32 v4, 4, v4
v_xor_b32 v5, v5, v4
v_lshl_add_u32 v6, v5, 4, v6
s_mul_i32 s34, s{sW}, {XL}
s_waitcnt lgkmcnt(0)
""")
    srd(k, 8, 44, N_H)
    X, FR, FI, AF, AC, MA, TW, ON, SM = 20, 28, 46, 64, 100, 116, 124, 20, 28+0
    xl = lambda i: k(f"s_add_u32 m0, s34, {i*896}\nbuffer_load_dwordx4 v6, s[8:11], 0 offen offset:{i*128} {XNT} lds", tag="X")
    k(f"s_cmp_lg_u32 s{sHF}, 0\ns_cbranch_scc1 p1_x2")
    for i in range(5): xl(i)
    k(f"s_cmp_lg_u32 s{sTY}, 2\ns_cbranch_scc1 p1_x3\np1_x2:")
    for i in range(5, 9): xl(i)
    k("p1_x3:")
    nonce()
    k("s_setprio 0")
    ws_srd(k, 12, O_U, N_U)
    k(f"""
v_and_b32 v7, 3, v0
v_lshrrev_b32 v9, 2, v0
v_lshlrev_b32 v9, 3, v9
v_lshlrev_b32 v4, 5, v7
v_and_b32 v4, 64, v4
v_lshl_add_u32 v7, v7, 7, s34
v_xor_b32 v8, v9, v4
v_add_u32 v8, v8, v7
v_xor_b32 v5, 64, v8
v_lshrrev_b32 v4, 1, v2
v_lshl_add_u32 v5, v4, 10, v5
v_lshl_add_u32 v7, v4, 12, v8
s_lshl_b32 s3, s{sJT}, 4
v_add_u32 v13, s3, v3
v_cvt_f32_u32 v9, v13
v_lshlrev_b32 v11, 4, v0
s_mul_i32 s3, s{sHF}, {HB}
s_add_u32 s3, s3, {EX}
v_add_u32 v11, s3, v11
s_lshr_b32 s3, s{sW}, 1
s_lshl_b32 s3, s3, 10
s_and_b32 s4, s{sW}, 1
s_lshl_b32 s4, s4, 3
s_add_u32 s3, s3, s4
v_add_u32 v10, s3, v11
s_lshl_b32 s3, s{sW}, 9
s_add_u32 s3, s3, s{sS2}
v_lshl_add_u32 v12, v2, 7, s3
v_mul_u32_u24 v12, {ROWB}, v12
v_lshl_add_u32 v12, v13, 4, v12
v_cvt_f32_u32 v14, v2
v_mul_f32 v15, {fl(1/144)}, v9
v_mul_f32 v14, 4.0, v14
v_mul_f32 v16, v14, v15
""")
    t = 132
    k(f"""v_lshlrev_b32 v17, 31, v13
v_lshrrev_b32 v18, 16, v17
v_or_b32 v17, v17, v18
v_lshrrev_b32 v18, 1, v2
v_cvt_f32_u32 v18, v18
v_mul_f32 v18, 0x42800000, v18
v_fma_f32 v18, v18, v15, v16""")
    FL = 8192
    k(f"""s_lshl_b32 s3, s{sW}, 1
s_cmp_ge_u32 s{sW}, 2
s_cselect_b32 s4, 12, 0
s_add_u32 s4, s4, s3
v_cvt_f32_u32 v19, s4
v_fma_f32 v16, v19, v15, v16
s_and_b32 s3, s3, 2
v_cvt_f32_u32 v19, s3
v_fma_f32 v18, v19, v15, v18
s_lshl_b32 s4, s{sW}, 2
v_add_u32 v19, s4, v11
s_lshl_b32 s3, s3, 1
v_add_u32 v1, s3, v11""")
    for i, (c0, base) in enumerate(((0, 16), (32, 16), (64, 18))):
        k(f"v_fmamk_f32 v{t}, v15, {fl(float(c0))}, v{base}\nv_add_f32 v{t+1}, v{t}, v15")
        k(f"v_cos_f32 v{t+2}, v{t}\nv_cos_f32 v{t+3}, v{t+1}\nv_sin_f32 v{t}, v{t}\nv_sin_f32 v{t+1}, v{t+1}")
        k(f"v_cvt_pk_bf16_f32 v{FR+i}, v{t+2}, v{t+3}\nv_cvt_pk_bf16_f32 v{FI+i}, -v{t}, -v{t+1}")
        k(f"ds_write_b32 v{19 if i < 2 else 1}, v{FR+i} offset:{FL+i*2048}\nds_write_b32 v{19 if i < 2 else 1}, v{FI+i} offset:{FL+i*2048+1024}")
    k(f"v_mov_b32 v{TW}, 1.0\nv_mov_b32 v{TW+4}, 0")
    for q in range(1, 4):
        k(f"v_mul_f32 v{t}, {fl(q/576)}, v9\nv_cos_f32 v{TW+q}, v{t}\nv_sin_f32 v{TW+4+q}, v{t}")
    def stage_a_matrix(a=14, b=15, c=16):
        k(f"""
v_lshrrev_b32 v{a}, 1, v3
s_lshl_b32 s3, s{sW}, 3
v_add_u32 v{a}, s3, v{a}
v_lshl_add_u32 v{b}, v2, 6, s{sS2}
v_mul_u32_u24 v{b}, v{a}, v{b}
v_and_b32 v{c}, 1, v3
v_lshl_add_u32 v{b}, v{c}, 9, v{b}
v_cvt_f32_u32 v{b}, v{b}
v_mul_f32 v{b}, {fl(1/2048)}, v{b}
v_cvt_f32_u32 v{a}, v{a}
""")
        for kk in range(2):
            for tt in range(4):
                k(f"v_fmamk_f32 v{t}, v{a}, {fl((16*kk+4*tt)/32)}, v{b}\nv_cos_f32 v{t+1}, v{t}\nv_sin_f32 v{t}, v{t}\nv_cvt_pk_bf16_f32 v{MA+4*kk+tt}, v{t+1}, v{t}")
    if MAPOS == 0: stage_a_matrix()
    k.wait_lg(); k("s_barrier")
    for c, Fb in enumerate((FR, FI)):
        for kk in range(2): k(f"ds_read_b128 {vr(Fb+4*kk, 4)}, v11 offset:{FL+kk*2048+c*1024}")
        k(f"ds_read_b64 {vr(Fb+16, 2)}, v11 offset:{FL+4096+c*1024}")
    for Fb in (FR, FI):
        for i in range(8): k(f"v_xor_b32 v{Fb+8+i}, v17, v{Fb+i}")
    if GRAM: k("s_mov_b32 s36, 0x22222222\ns_mov_b32 s37, s36\ns_lshl_b64 s[38:39], s[36:37], 1\ns_lshl_b64 s[40:41], s[36:37], 2")
    else: k("v_mov_b32 v16, 0\nv_mov_b32 v17, 0")
    for i in range(4): k(f"v_mov_b32 v{ON+i}, 0x3f803f80")
    k(f"v_lshlrev_b32 v18, 4, v2")
    stamp(k, st, 1)
    if P1PRIO: k("s_setprio 1")
    k.wait_vm("X"); k("s_barrier")
    stamp(k, st, 2)
    for mu in range(2):
        for kk in range(5):
            for h in range(2 if kk < 4 else 1):
                d = AF+18*mu+4*kk+2*h
                va, blk = [(8, h), (8, 2+h), (5, 4+h), (5, 6+h), (7, 4)][kk]
                k(f"ds_read_b64_tr_b16 v[{d}:{d+1}], v{va} offset:{mu*512 + blk*1024}")
    if MAPOS == 2: stage_a_matrix(14, 15, 19)
    mf = []; dots = []
    SX = 24
    for mu in range(2):
        for kk in range(5):
            for a, Fb in ((AC+8*mu, FR+4*kk), (AC+8*mu+4, FI+4*kk), ([24, 132][mu], ON)):
                if kk < 4: mf.append(f"{MF32} {vr(a, 4)}, {vr(AF+18*mu+4*kk, 4)}, {vr(Fb, 4)}, {'0' if kk == 0 else vr(a, 4)}")
                else: mf.append(f"{MF16} {vr(a, 4)}, {vr(AF+18*mu+16, 2)}, {vr(Fb, 2)}, {vr(a, 4)}")
        if GRAM: dots += [f"v_mfma_f32_4x4x4_16b_bf16 {vr(136+4*mu, 4)}, {vr(AF+18*mu+2*i, 2)}, {vr(AF+18*mu+2*i, 2)}, {'0' if i == 0 else vr(136+4*mu, 4)}" for i in range(9)]
        else: dots += [f"v_dot2_f32_bf16 v{16+mu}, v{AF+18*mu+i}, v{AF+18*mu+i}, v{16+mu}" for i in range(18)]
    dpp = "row_mask:0xf bank_mask:0xf"
    red = f"""v_permlane32_swap_b32 v16, v17
v_add_f32 v16, v16, v17
v_add_f32_dpp v16, v16, v16 quad_perm:[1,0,3,2] {dpp}
v_add_f32_dpp v16, v16, v16 quad_perm:[2,3,0,1] {dpp}
v_mov_b32 v17, v16
v_permlane16_swap_b32 v16, v17
v_add_f32 v16, v16, v17
ds_bpermute_b32 v14, v18, v16
ds_bpermute_b32 v15, v18, v16 offset:128""".split("\n")
    if GRAM:
        pick = lambda mu: [f"v_cndmask_b32 v{16+mu}, v{136+4*mu}, v{137+4*mu}, s[36:37]", f"v_cndmask_b32 v{16+mu}, v{16+mu}, v{138+4*mu}, s[38:39]", f"v_cndmask_b32 v{16+mu}, v{16+mu}, v{139+4*mu}, s[40:41]"]
        for x in interleave(mf[:12], dots[:9]) + mf[12:15] + interleave(mf[15:24], dots[9:]) + interleave(mf[24:], pick(0) + [""] + pick(1) + red[:4]) + red[4:]: k(x)
    else:
        for x in interleave(mf[:24], dots) + interleave(mf[24:], red): k(x)
    stamp(k, st, 3)
    E = X
    p2 = lambda x: vr(x, 2)
    NEG = "neg_lo:[0,1] neg_hi:[0,1]"
    for mu in range(2):
        R, I = AC+8*mu, AC+8*mu+4
        T = AF+16*mu
        rr = f"v[{14+2*mu}:{15+2*mu}]"
        k(f"""
v_pk_mul_f32 {p2(T)}, {p2(TW)}, {p2(R)}
v_pk_mul_f32 {p2(T+2)}, {p2(TW+2)}, {p2(R+2)}
v_pk_mul_f32 {p2(T+4)}, {p2(TW)}, {p2(I)}
v_pk_mul_f32 {p2(T+6)}, {p2(TW+2)}, {p2(I+2)}
v_pk_fma_f32 {p2(T)}, {p2(TW+4)}, {p2(I)}, {p2(T)}
v_pk_fma_f32 {p2(T+2)}, {p2(TW+6)}, {p2(I+2)}, {p2(T+2)}
v_pk_fma_f32 {p2(T+4)}, {p2(TW+4)}, {p2(R)}, {p2(T+4)} neg_lo:[1,0,0] neg_hi:[1,0,0]
v_pk_fma_f32 {p2(T+6)}, {p2(TW+6)}, {p2(R+2)}, {p2(T+6)} neg_lo:[1,0,0] neg_hi:[1,0,0]
v_pk_add_f32 {p2(T+8)}, {p2(T)}, {p2(T+2)}
v_pk_add_f32 {p2(T+10)}, {p2(T+4)}, {p2(T+6)}
v_pk_add_f32 {p2(T+12)}, {p2(T)}, {p2(T+2)} {NEG}
v_pk_add_f32 {p2(T+14)}, {p2(T+4)}, {p2(T+6)} {NEG}""")
    k(f"""v_pk_add_f32 v[24:25], v[24:25], v[26:27]
v_pk_add_f32 v[132:133], v[132:133], v[134:135]
v_add_f32 v24, v24, v25
v_add_f32 v25, v132, v133
s_mov_b32 s4, {fl(1/576)}
s_mov_b32 s5, s4
v_pk_mul_f32 v[24:25], v[24:25], s[4:5]
v_pk_mul_f32 v[24:25], v[24:25], v[24:25]
v_pk_fma_f32 v[14:15], v[14:15], s[4:5], v[24:25] neg_lo:[0,0,1] neg_hi:[0,0,1]
v_max_f32 v14, 0, v14
v_max_f32 v15, 0, v15
v_add_f32 v14, {fl(1e-5)}, v14
v_add_f32 v15, {fl(1e-5)}, v15
v_rsq_f32 v16, v15
v_rsq_f32 v17, v15
v_rsq_f32 v15, v14
v_rsq_f32 v14, v14""")
    for mu in range(2):
        T = AF+16*mu
        rr = f"v[{14+2*mu}:{15+2*mu}]"
        k(f"""
v_pk_mul_f32 {p2(T+8)}, {p2(T+8)}, {rr}
v_pk_mul_f32 {p2(T+10)}, {p2(T+10)}, {rr}
v_pk_mul_f32 {p2(T+12)}, {p2(T+12)}, {rr}
v_pk_mul_f32 {p2(T+14)}, {p2(T+14)}, {rr}
v_add_f32 v{T}, v{T+8}, v{T+9}
v_add_f32 v{T+1}, v{T+10}, v{T+11}
v_add_f32 v{T+2}, v{T+12}, v{T+15}
v_sub_f32 v{T+3}, v{T+14}, v{T+13}
v_sub_f32 v{T+4}, v{T+8}, v{T+9}
v_sub_f32 v{T+5}, v{T+10}, v{T+11}
v_sub_f32 v{T+6}, v{T+12}, v{T+15}
v_add_f32 v{T+7}, v{T+14}, v{T+13}
""")
        for m in range(4): k(f"v_cvt_pk_bf16_f32 v{E+2*m+mu}, v{T+2*m}, v{T+2*m+1}")
    for m in range(4): k(f"ds_write_b64 v10, {vr(E+2*m, 2)} offset:{m*2048}")
    if MAPOS == 1: stage_a_matrix()
    k.wait_lg(); k("s_barrier")
    stamp(k, st, 4)
    B = FR
    for m in range(4):
        for kk in range(2): k(f"ds_read_b128 {vr(B+8*m+4*kk, 4)}, v11 offset:{m*2048+kk*1024}")
    for kk in range(2):
        for m in range(4): k(f"{MF32} {vr(AC+4*m, 4)}, {vr(MA+4*kk, 4)}, {vr(B+8*m+4*kk, 4)}, {'0' if kk == 0 else vr(AC+4*m, 4)}")
    k(f"s_mov_b32 s3, {64*ROWB}")
    for a in range(2):
        for m in range(4): k(f"v_cvt_pk_bf16_f32 v{X+4*a+m}, v{AC+4*m+2*a}, v{AC+4*m+2*a+1}")
        if MERGE: k(f"v_and_b32 v{X+4*a}, -2, v{X+4*a}")
        k(f"buffer_store_dwordx4 {vr(X+4*a, 4)}, v12, s[12:15], {'s3' if a else '0'} offen sc1")
    stamp(k, st, 5)
    stamp_out(k, st, 1, f"s{sW}", 6)
    k(f"{END}\np1_side:")
    k(f"""
s_cmp_ge_u32 s2, 448
s_cbranch_scc1 p1_tab
s_sub_u32 s3, s2, 320
s_and_b32 s32, s3, 7
s_lshl_b32 s32, s32, 2
s_bfe_u32 s4, s3, 0x20003
s_add_u32 s32, s32, s4
s_lshr_b32 s31, s3, 5
s_lshl_b32 s3, s31, 9
s_add_u32 s33, s32, s3
s_and_b32 s3, s{sW}, 1
s_mul_i32 s4, s3, 138
s_cmp_eq_u32 s3, 0
s_cselect_b32 s34, 1, -1
v_lshrrev_b32 v4, 5, v0
v_lshl_add_u32 v6, v4, 5, s33
v_mul_lo_u32 v6, v6, s34
s_lshl_b32 s35, s34, 6
v_and_b32 v5, 1, v2
v_mul_u32_u24 v5, 288, v5
v_add_u32 v5, s4, v5
v_mov_b32 v12, {OOB}
v_lshlrev_b32 v7, 2, v2
v_and_b32 v7, 4, v7
v_sub_u32 v7, v3, v7
v_cmp_gt_u32 vcc, 11, v7
v_lshlrev_b32 v7, 4, v7
v_cndmask_b32 v12, v12, v7, vcc
s_movk_i32 s36, 578
s_mul_i32 s38, s{sW}, 8336
s_add_u32 s38, s38, {WL}
s_waitcnt lgkmcnt(0)
s_cmp_lt_u32 s{sW}, 2
s_cselect_b32 s8, s46, s48
s_cselect_b32 s9, s47, s49
s_mov_b32 s10, {N_WF}
s_mov_b32 s11, 0x20000
""")
    for i in range(8):
        k(f"""v_and_b32 v8, 2047, v6
v_mad_u32_u24 v8, v8, s36, v5
v_and_b32 v8, -16, v8
s_add_u32 m0, s38, {i*1040}
v_add_u32 v8, v8, v12
buffer_load_dwordx4 v8, s[8:11], 0 offen {FPOL} lds
v_add_u32 v6, s35, v6""", tag="W")
    nonce()
    stamp(k, st, 1)
    ws_srd(k, 16, O_WH, N_WH)
    k(f"""
v_lshrrev_b32 v4, 2, v3
s_lshl_b32 s3, s{sW}, 2
v_add_u32 v4, s3, v4
v_and_b32 v10, 3, v3
v_sub_u32 v13, 75, v4
v_cmp_gt_u32 vcc, 2, v10
v_cndmask_b32 v13, v13, v4, vcc
v_mov_b32 v14, 0xffffffe0
v_cndmask_b32 v14, v14, 32, vcc
v_bfrev_b32 v15, 1
v_cndmask_b32 v15, v15, 0, vcc
v_mov_b32 v16, 8336
v_cndmask_b32 v16, v16, 0, vcc
v_lshl_add_u32 v16, v13, 1, v16
v_mul_u32_u24 v17, 2080, v2
v_add_u32 v16, v16, v17
v_lshrrev_b32 v17, 1, v10
v_xor_b32 v17, v17, v10
v_and_b32 v17, 1, v17
v_mul_u32_u24 v17, 320, v17
v_add_u32 v16, v16, v17
v_sub_u32 v17, 5, s33
v_mov_b32 v18, s33
v_cndmask_b32 v17, v17, v18, vcc
v_lshlrev_b32 v17, 1, v17
v_and_b32 v17, 14, v17
v_add_u32 v84, v16, v17
v_add_u32 v84, {WL}, v84
v_or_b32 v11, v10, v4
v_cmp_eq_u32 s[40:41], 0, v11
s_mul_i32 s3, s32, 19
s_add_u32 s3, s3, s{sW}
s_lshl_b32 s3, s3, 12
s_lshl_b32 s4, s31, 10
s_add_u32 s37, s3, s4
v_lshlrev_b32 v93, 4, v0
""")
    k("s_barrier\ns_barrier")
    stamp(k, st, 2)
    k.wait_vm("W")
    stamp(k, st, 3)
    k("s_barrier")
    stamp(k, st, 4)
    for it in range(5):
        D0 = 20 + 12*it
        if it: k(f"v_add_u32 v84, v84, v14")
        for r in range(4): k(f"ds_read_u16 v{D0+r}, v84 offset:{(r >> 1)*1040 + (r & 1)*512}\nds_read_u16 v{D0+4+r}, v84 offset:{(r >> 1)*1040 + (r & 1)*512 + 16672}")
    k("v_cmp_lt_u32 vcc, 8, v4")
    for it in range(5):
        if it == 4: k(f"s_cmp_eq_u32 s{sW}, 3\ns_cbranch_scc1 p1_wend")
        D0 = 20 + 12*it
        for r in range(4): k(f"v_lshl_or_b32 v{D0+8+r}, v{D0+4+r}, 16, v{D0+r}\nv_xor_b32 v{D0+8+r}, v15, v{D0+8+r}")
        if it == 0:
            for r in range(4): k(f"v_cndmask_b32 v{D0+8+r}, v{D0+8+r}, 0, s[40:41]")
        if it == 4:
            for r in range(4): k(f"v_cndmask_b32 v{D0+8+r}, v{D0+8+r}, 0, vcc")
        k(f"buffer_store_dwordx4 {vr(D0+8, 4)}, v93, s[16:19], s37 offen sc1\ns_add_u32 s37, s37, 16384")
    k("p1_wend:")
    stamp(k, st, 5)
    stamp_out(k, st, 1, f"s{sW}", 6)
    k(f"{END}\np1_tab:")
    sc = 1.0/(S*D)
    k(f"""
s_cmp_ge_u32 s2, 464
s_cbranch_scc1 p1_pf
s_sub_u32 s3, s2, 448
s_lshl_b32 s3, s3, 2
s_add_u32 s31, s3, s{sW}
s_cmp_ge_u32 s31, 61
s_cbranch_scc1 {'p1_bar3' if mono else 'p1_end'}
s_lshr_b32 s32, s31, 2
s_and_b32 s33, s31, 3
s_mov_b32 s34, {fl(1/64)}
s_cmp_lt_u32 s31, 16
s_cbranch_scc1 p1_tabA
s_sub_u32 s3, s31, 16
s_mul_i32 s32, s3, 52
s_lshr_b32 s32, s32, 8
s_mul_i32 s4, s32, 5
s_sub_u32 s33, s3, s4
s_mov_b32 s34, {fl(1/144)}
p1_tabA:
s_lshl_b32 s32, s32, 4
s_lshl_b32 s33, s33, 4
v_add_u32 v4, s32, v3
v_lshl_add_u32 v5, v2, 2, s33
s_waitcnt lgkmcnt(0)
""")
    ws_srd(k, 8, O_TAB, N_TAB)
    for r in range(4):
        k(f"""
v_add_u32 v6, {r}, v5
v_mul_u32_u24 v7, v6, v4
v_cvt_f32_u32 v7, v7
v_mul_f32 v7, s34, v7
v_fract_f32 v7, v7
v_cos_f32 v8, v7
v_sin_f32 v9, v7
s_cmp_lt_u32 s31, 16
s_cbranch_scc1 p1_tabB{r}
v_mov_b32 v10, {fl(2*sc)}
v_mov_b32 v11, {fl(sc)}
v_cmp_eq_u32 vcc, 0, v6
v_cndmask_b32 v10, v10, v11, vcc
v_cmp_eq_u32 vcc, 72, v6
v_cndmask_b32 v10, v10, v11, vcc
v_cmp_gt_u32 vcc, 73, v6
v_cndmask_b32 v10, 0, v10, vcc
v_mul_f32 v8, v8, v10
v_mul_f32 v9, -v9, v10
p1_tabB{r}:
v_cvt_pk_bf16_f32 v{12+r}, v8, v9
""")
    k(f"v_lshlrev_b32 v4, 4, v0\ns_lshl_b32 s3, s31, 10\nbuffer_store_dwordx4 v[12:15], v4, s[8:11], s3 offen sc1\n{END3}\np1_pf:")
    CP0 = f"s_getpc_b64 s[4:5]\np1_pc:\ns_add_u32 s4, s4, {NEXT}-p1_pc\ns_addc_u32 s5, s5, 0\n" if CPF else ""
    CP1 = f"v_min_u32 v5, pf_code_end-{NEXT}-4, v5\nglobal_load_dword v6, v5, s[4:5]\n" if CPF else ""
    k(f"""
s_cmp_ge_u32 s2, 480
s_cbranch_scc1 {'p1_wpf' if NST else 'p1_bar3' if mono else 'p1_end'}
{CP0}s_lshl_b32 s3, s{sW}, 6
v_add_u32 v4, s3, v0
s_sub_u32 s3, s2, 464
s_lshr_b32 s3, s3, 3
s_lshl_b32 s3, s3, 15
v_lshl_add_u32 v5, v4, 7, s3
{CP1}s_waitcnt lgkmcnt(0)
""")
    if TLB:
        k(f"""s_load_dwordx4 s[36:39], s[0:1], 32
s_load_dwordx4 s[40:43], s[0:1], 48
v_lshlrev_b32 v12, {TLB}, v4
s_waitcnt lgkmcnt(0)""")
        ws_srd(k, 8, 0, O_P + N_P)
        for i in range((O_P + N_P + (256 << TLB) - 1)//(256 << TLB)):
            k(f"s_mov_b32 s3, {i*(256 << TLB)}\nbuffer_load_dword v13, v12, s[8:11], s3 offen", tag="touch")
        for b, n in ((36, N_W), (38, N_W), (40, N_W), (42, N_H)):
            srd(k, 8, b, n)
            k("buffer_load_dword v13, v12, s[8:11], 0 offen", tag="touch")
    if mono:
        k("p1_bar3:\ns_waitcnt lgkmcnt(0)")
        nonce()
        k("s_barrier\ns_barrier\ns_barrier")
        return k
    ws_srd(k, 8, O_FLG, N_ZERO)
    k(f"""
s_and_b32 s3, s2, 15
s_mul_i32 s3, s3, {NZ*4096}
v_lshlrev_b32 v4, 4, v4
v_mov_b32 v8, 0
v_mov_b32 v9, 0
v_mov_b32 v10, 0
v_mov_b32 v11, 0
""")
    for i in range(NZ): k(f"buffer_store_dwordx4 v[8:11], v4, s[8:11], s3 offen sc1\ns_add_u32 s3, s3, 4096")
    if NST:
        per = 36*NST; n = (per + 63)//64; ln = per//n
        assert ln*n == per
        k(f"""s_endpgm
p1_wpf:
s_load_dwordx4 s[36:39], s[0:1], 32
s_sub_u32 s3, s2, 480
s_lshr_b32 s4, s3, 3
s_and_b32 s5, s4, 1
s_lshl_b32 s5, s5, 2
s_add_u32 s5, s5, s{sW}
s_mul_i32 s5, s5, {per}
v_add_u32 v4, s5, v0
s_and_b32 s3, s3, 7
s_mul_i32 s33, s3, 1152
v_mov_b32 v7, {OOB}
v_cmp_gt_u32 vcc, {ln}, v0
s_waitcnt lgkmcnt(0)
s_cmp_lt_u32 s4, 2
s_cselect_b32 s8, s36, s38
s_cselect_b32 s9, s37, s39
s_mov_b32 s10, {N_W}
s_mov_b32 s11, 0x20000
s_barrier
s_barrier
s_barrier""")
        for i in range(n):
            k(f"""v_mul_u32_u24 v5, 7282, v4
v_lshrrev_b32 v5, 16, v5
v_mul_u32_u24 v6, 9, v5
v_sub_u32 v6, v4, v6
v_mul_u32_u24 v5, 9216, v5
v_lshl_add_u32 v5, v6, 7, v5
v_cndmask_b32 v5, v7, v5, vcc""")
            k(f"buffer_load_dword v8, v5, s[8:11], s33 offen {NPOL}", tag="touch")
            k(f"v_add_u32 v4, {ln}, v4")
    k(f"""p1_end:""")
    return k

def build_p2(st=False):
    k = K("p2", 608, 64, vgpr=160)
    stamp(k, st, 0)
    k(f"""
s_load_dwordx2 s[6:7], s[0:1], 72
s_cmp_ge_u32 s2, 608
s_cbranch_scc1 p2_end
s_lshr_b32 s3, s2, 3
s_mul_i32 s4, s3, 27
s_lshr_b32 s4, s4, 9
s_mul_i32 s5, s4, 19
s_sub_u32 s31, s3, s5
s_and_b32 s3, s2, 7
s_lshl_b32 s3, s3, 2
s_add_u32 s32, s3, s4
v_lshrrev_b32 v2, 4, v0
v_and_b32 v3, 15, v0
v_mul_u32_u24 v4, {4*ROWB}, v2
v_lshl_add_u32 v4, v3, 2, v4
v_lshlrev_b32 v5, 4, v0
s_mul_i32 s33, s32, {64*ROWB}
s_lshl_b32 s3, s31, 6
s_add_u32 s33, s33, s3
s_waitcnt lgkmcnt(0)
""")
    ws_srd(k, 8, O_U, N_U)
    B, B2, A, WH, XR, XI = 8, 24, 40, 104, 120, 136
    for T in range(4):
        if T: k(f"s_add_u32 s33, s33, {16*ROWB}")
        for r in range(4): k(f"buffer_load_dword v{B+4*T+r}, v4, s[8:11], s33 offen offset:{r*ROWB}")
    ws_srd(k, 12, O_TAB, N_TAB)
    for f in range(16):
        if f % 4 == 0: k(f"s_movk_i32 s3, {f*1024}")
        k(f"buffer_load_dwordx4 {vr(A+4*f, 4)}, v5, s[12:15], s3 offen offset:{(f % 4)*1024}")
    ws_srd(k, 16, O_WH, N_WH)
    k("s_mul_i32 s34, s32, 19\ns_add_u32 s34, s34, s31\ns_lshl_b32 s34, s34, 12")
    for T in range(4): k(f"buffer_load_dwordx4 {vr(WH+4*T, 4)}, v5, s[16:19], s34 offen offset:{T*1024}")
    k(f"""
v_mul_u32_u24 v6, {ROWB}, v3
v_lshl_add_u32 v6, v2, 4, v6
s_mul_i32 s35, s32, {64*ROWB}
s_lshl_b32 s3, s31, 6
s_add_u32 s35, s35, s3
s_brev_b32 s36, 1
s_mov_b32 s37, 0xffff0000
""")
    stamp(k, st, 1)
    for i in range(16): k(f"v_alignbit_b32 v{B2+i}, v{B+i}, v{B+i}, 16\nv_xor_b32 v{B2+i}, s36, v{B2+i}")
    stamp(k, st, 2)
    def fwd(Tp): return [f"{MF32} {vr(o+4*Tp, 4)}, {vr(A+16*Tp+4*T, 4)}, {vr(b+4*T, 4)}, {'0' if T == 0 else vr(o+4*Tp, 4)}" for T in range(4) for o, b in ((XR, B), (XI, B2))]
    D1, D2 = 152, B
    def filt(T):
        out = []
        for r in (0, 2):
            w = WH+4*T+r; xr, xi = XR+4*T+r, XI+4*T+r
            out += [f"v_lshlrev_b32 v152, 16, v{w}", f"v_lshlrev_b32 v153, 16, v{w+1}", f"v_and_b32 v154, s37, v{w}", f"v_and_b32 v155, s37, v{w+1}",
                    f"v_pk_mul_f32 v[156:157], {vr(xr, 2)}, v[152:153]", f"v_pk_mul_f32 v[158:159], {vr(xr, 2)}, v[154:155]",
                    f"v_pk_fma_f32 v[156:157], {vr(xi, 2)}, v[154:155], v[156:157] neg_lo:[1,0,0] neg_hi:[1,0,0]", f"v_pk_fma_f32 v[158:159], {vr(xi, 2)}, v[152:153], v[158:159]",
                    f"v_cvt_pk_bf16_f32 v{w}, v156, -v158", f"v_cvt_pk_bf16_f32 v{w+1}, v157, -v159", f"v_cvt_pk_bf16_f32 v{xr}, v158, v156", f"v_cvt_pk_bf16_f32 v{xr+1}, v159, v157"]
        return out
    for x in fwd(0): k(x)
    for Tp in range(1, 4):
        for x in interleave(fwd(Tp), filt(Tp-1)): k(x)
    for x in filt(3): k(x)
    stamp(k, st, 3)
    VR, VI = B, B2
    def inv(Tp): return [f"{MF32} {vr(o+4*Tp, 4)}, {vr(d+4*T, 4)}, {vr(A+16*Tp+4*T, 4)}, {'0' if T == 0 else vr(o+4*Tp, 4)}" for T in range(4) for o, d in ((VR, WH), (VI, XR))]
    def outp(Tp):
        return [f"v_cvt_pk_bf16_f32 v{XI+4*Tp+r}, v{VR+4*Tp+r}, v{VI+4*Tp+r}" for r in range(4)] + \
               [f"buffer_store_dwordx4 {vr(XI+4*Tp, 4)}, v6, s[8:11], s35 offen sc1\ns_add_u32 s35, s35, {16*ROWB}"]
    for x in inv(0): k(x)
    for Tp in range(1, 4):
        m = inv(Tp)
        for x in m[:3] + interleave(m[3:], outp(Tp-1)): k(x)
    for x in outp(3): k(x)
    stamp(k, st, 4)
    stamp_out(k, st, 2, "0", 5)
    k("p2_end:")
    return k


def column_task(k, o, sTile, sK1, sB, srd, vlane16, vL, shadow, between):
    D = f"s[{srd}:{srd+3}]"
    B, B2, A, WH, XR, XI, TP = (x+o for x in (8, 24, 40, 104, 120, 136, 152))
    k(f"""
v_lshrrev_b32 v2, 4, v{vL}
v_and_b32 v3, 15, v{vL}
v_mul_u32_u24 v4, {4*ROWB}, v2
v_lshl_add_u32 v4, v3, 2, v4
s_mul_i32 s{sB}, s{sK1}, {64*ROWB}
s_lshl_b32 s3, s{sTile}, 6
s_add_u32 s{sB}, s{sB}, s3
s_mov_b32 s{sB+1}, s{sB}
""")
    for T in range(4):
        if T: k(f"s_add_u32 s{sB}, s{sB}, {16*ROWB}")
        for r in range(4): k(f"buffer_load_dword v{B+4*T+r}, v4, {D}, s{sB} offen offset:{r*ROWB}")
    for f in range(16):
        if f % 4 == 0: k(f"s_mov_b32 s3, {O_TAB - O_U + f*1024}")
        k(f"buffer_load_dwordx4 {vr(A+4*f, 4)}, v{vlane16}, {D}, s3 offen offset:{(f % 4)*1024}")
    k(f"s_mul_i32 s3, s{sK1}, 19\ns_add_u32 s3, s3, s{sTile}\ns_lshl_b32 s3, s3, 12\ns_add_u32 s3, s3, {O_WH - O_U}")
    for T in range(4): k(f"buffer_load_dwordx4 {vr(WH+4*T, 4)}, v{vlane16}, {D}, s3 offen offset:{T*1024}")
    k(f"""
v_mul_u32_u24 v6, {ROWB}, v3
v_lshl_add_u32 v6, v2, 4, v6
s_brev_b32 s{sB+2}, 1
s_mov_b32 s{sB+3}, 0xffff0000
""")
    shadow()
    for i in range(16): k(f"v_alignbit_b32 v{B2+i}, v{B+i}, v{B+i}, 16\nv_xor_b32 v{B2+i}, s{sB+2}, v{B2+i}")
    between()
    def fwd(Tp): return [f"{MF32} {vr(q+4*Tp, 4)}, {vr(A+16*Tp+4*T, 4)}, {vr(b+4*T, 4)}, {'0' if T == 0 else vr(q+4*Tp, 4)}" for T in range(4) for q, b in ((XR, B), (XI, B2))]
    def filt(T):
        out = []; t = TP
        for r in (0, 2):
            w = WH+4*T+r; xr, xi = XR+4*T+r, XI+4*T+r
            out += [f"v_lshlrev_b32 v{t}, 16, v{w}", f"v_lshlrev_b32 v{t+1}, 16, v{w+1}", f"v_and_b32 v{t+2}, s{sB+3}, v{w}", f"v_and_b32 v{t+3}, s{sB+3}, v{w+1}",
                    f"v_pk_mul_f32 {vr(t+4, 2)}, {vr(xr, 2)}, {vr(t, 2)}", f"v_pk_mul_f32 {vr(t+6, 2)}, {vr(xr, 2)}, {vr(t+2, 2)}",
                    f"v_pk_fma_f32 {vr(t+4, 2)}, {vr(xi, 2)}, {vr(t+2, 2)}, {vr(t+4, 2)} neg_lo:[1,0,0] neg_hi:[1,0,0]", f"v_pk_fma_f32 {vr(t+6, 2)}, {vr(xi, 2)}, {vr(t, 2)}, {vr(t+6, 2)}",
                    f"v_cvt_pk_bf16_f32 v{w}, v{t+4}, -v{t+6}", f"v_cvt_pk_bf16_f32 v{w+1}, v{t+5}, -v{t+7}", f"v_cvt_pk_bf16_f32 v{xr}, v{t+6}, v{t+4}", f"v_cvt_pk_bf16_f32 v{xr+1}, v{t+7}, v{t+5}"]
        return out
    for x in fwd(0): k(x)
    for Tp in range(1, 4):
        for x in interleave(fwd(Tp), filt(Tp-1)): k(x)
    for x in filt(3): k(x)
    def inv(Tp): return [f"{MF32} {vr(q+4*Tp, 4)}, {vr(d+4*T, 4)}, {vr(A+16*Tp+4*T, 4)}, {'0' if T == 0 else vr(q+4*Tp, 4)}" for T in range(4) for q, d in ((B, WH), (B2, XR))]
    def outp(Tp):
        return [f"v_cvt_pk_bf16_f32 v{XI+4*Tp+r}, v{B+4*Tp+r}, v{B2+4*Tp+r}" for r in range(4)] + [f"v_or_b32 v{XI+4*Tp}, 1, v{XI+4*Tp}"] + \
               [f"buffer_store_dwordx4 {vr(XI+4*Tp, 4)}, v6, {D}, s{sB+1} offen sc1\ns_add_u32 s{sB+1}, s{sB+1}, {16*ROWB}"]
    for x in inv(0): k(x)
    for Tp in range(1, 4):
        m = inv(Tp)
        for x in m[:3] + interleave(m[3:], outp(Tp-1)): k(x)
    for x in outp(3): k(x)
```
